```python
import torch

def _softmax(x, axis=-1):
    return torch.softmax(x, dim=axis)
def _gelu(x):
    return torch.nn.functional.gelu(x, approximate="tanh")
def _silu(x):
    return torch.nn.functional.silu(x)
def _sigmoid(x):
    return torch.sigmoid(x)
def _layernorm(x, axis=-1, eps=1e-5):
    m = x.mean(dim=axis, keepdim=True)
    v = x.var(dim=axis, keepdim=True, unbiased=False)
    return (x - m) / torch.sqrt(v + eps)
def _scatter_add(tgt, idx, src, axis=0):
    return tgt.clone().index_add_(axis, idx, src)
def _segment_sum(src, seg, n):
    out = torch.zeros((n,) + src.shape[1:], dtype=src.dtype)
    return out.index_add_(0, seg, src)
def _pad(x, pw):
    flat = tuple(v for pair in reversed(pw) for v in pair)
    return torch.nn.functional.pad(x, flat)

kernel_name = 'parallel_sum__compressed_kv_cla__dense_activation_squared_relu__decode'

def setup_inputs():

    _w = (lambda a: (lambda t: t.to(torch.bfloat16) if t.is_floating_point() else t)(torch.as_tensor(a)))
    def _A_setup():
        B, H, Sq, Sk, D, M = 1, 32, 1, 16384, 128, 512
        Dc = 4 * D
        return {
            "x": _w((lambda *s: torch.randn(*s, dtype=torch.bfloat16) * 0.05)(B, Sq, M)),
            "c_kv": _w((lambda *s: torch.randn(*s, dtype=torch.bfloat16) * 3.2)(B, Sk, Dc)),
            "w_q": _w((lambda *s: torch.randn(*s, dtype=torch.bfloat16) * 1.6)(M, H, D) * (M ** -0.5)),
            "w_uk": _w((lambda *s: torch.randn(*s, dtype=torch.bfloat16) * 1.6)(Dc, H, D) * (Dc ** -0.5)),
            "w_uv": _w((lambda *s: torch.randn(*s, dtype=torch.bfloat16) * 3.2)(Dc, H, D) * (Dc ** -0.5)),
            "w_o": _w((lambda *s: torch.randn(*s, dtype=torch.bfloat16) * 3.2)(H, D, M) * ((H * D) ** -0.5)),
        }
    _A_in = _A_setup()

    def _B_setup():
        B, S, D, F = 1, 1, 512, 1792
        return {
            "x": _w((lambda *s: torch.randn(*s, dtype=torch.bfloat16) * 0.05)(B, S, D)),
            "w1": _w((lambda *s: torch.randn(*s, dtype=torch.bfloat16) * 0.1)(D, F)),
            "b1": _w((lambda *s: torch.randn(*s, dtype=torch.bfloat16) * 0.8)(F)),
            "w2": _w((lambda *s: torch.randn(*s, dtype=torch.bfloat16) * 0.1)(F, D)),
            "b2": _w((lambda *s: torch.randn(*s, dtype=torch.bfloat16) * 12.8)(D)),
        }
    _B_in = _B_setup()

    return {
        "A_x": _A_in["x"],
        "A_c_kv": _A_in["c_kv"],
        "A_w_q": _A_in["w_q"],
        "A_w_uk": _A_in["w_uk"],
        "A_w_uv": _A_in["w_uv"],
        "A_w_o": _A_in["w_o"],
        "B_x": _B_in["x"],
        "B_w1": _B_in["w1"],
        "B_b1": _B_in["b1"],
        "B_w2": _B_in["w2"],
        "B_b2": _B_in["b2"],
    }

def reference(A_x, A_c_kv, A_w_q, A_w_uk, A_w_uv, A_w_o, B_x, B_w1, B_b1, B_w2, B_b2):
    def _A_ref(x, c_kv, w_q, w_uk, w_uv, w_o):
        B, Sq, M = x.shape[0], x.shape[1], x.shape[2]
        Sk = c_kv.shape[1]
        H, D = w_q.shape[1], w_q.shape[2]
        q = torch.einsum("bqm,mhd->bhqd", x, w_q)
        k = torch.einsum("bkc,chd->bhkd", c_kv, w_uk)
        v = torch.einsum("bkc,chd->bhkd", c_kv, w_uv)
        scores = torch.einsum("bhqd,bhkd->bhqk", q, k) * (D ** -0.5)
        off = Sk - Sq
        qi = torch.arange(Sq)[:, None]
        kj = torch.arange(Sk)[None, :]
        cmask = kj <= (qi + off)
        scores = torch.where(cmask[None, None], scores, -1e9)
        p = _softmax(scores, axis=-1)
        ctx = torch.einsum("bhqk,bhkd->bhqd", p, v)
        return torch.einsum("bhqd,hdm->bqm", ctx, w_o)

    def _B_ref(x, w1, b1, w2, b2):
        h = torch.einsum("bsd,df->bsf", x, w1) + b1
        zero = torch.zeros_like(h)
        r = torch.where(h > zero, h, zero)
        h = r * r
        out = torch.einsum("bsf,fd->bsd", h, w2) + b2
        return out

    x = A_x
    xn = _layernorm(x, axis=-1)
    return x + _A_ref(xn, A_c_kv, A_w_q, A_w_uk, A_w_uv, A_w_o) + _B_ref(xn, B_w1, B_b1, B_w2, B_b2)
```

```python
import re

REG_RE = re.compile(r'\b([vsa])\[(\d+):(\d+)\]|\b([vsa])(\d+)\b|\b(vcc|exec|m0|scc)\b')
TRANS = ('v_exp_f32', 'v_log_f32', 'v_rcp_f32', 'v_rsq_f32', 'v_sqrt_f32', 'v_sin_f32', 'v_cos_f32')


def regs_of(op):
    out = set()
    for m in REG_RE.finditer(op):
        if m.group(1):
            for i in range(int(m.group(2)), int(m.group(3)) + 1):
                out.add(m.group(1) + str(i))
        elif m.group(4):
            out.add(m.group(4) + m.group(5))
        else:
            out.add(m.group(6))
    return out


def split_ops(s):
    ops, depth, cur = [], 0, ''
    for ch in s:
        if ch == '[':
            depth += 1
        if ch == ']':
            depth -= 1
        if ch == ',' and depth == 0:
            ops.append(cur.strip())
            cur = ''
        else:
            cur += ch
    if cur.strip():
        ops.append(cur.strip())
    return ops


class Ins:
    def __init__(self, text):
        self.text = text
        t = text.split(';')[0].strip()
        parts = t.split(None, 1)
        self.mn = mn = parts[0]
        ops = split_ops(parts[1]) if len(parts) > 1 else []
        self.ops = ops
        self.is_mfma = mn.startswith('v_mfma')
        self.is_valu = mn.startswith('v_') and not self.is_mfma
        self.is_salu = mn.startswith('s_') and not mn.startswith(('s_load', 's_memrealtime', 's_memtime', 's_buffer_load'))
        self.is_vmem = mn.startswith(('global_', 'buffer_', 'flat_'))
        self.is_ds = mn.startswith('ds_')
        self.is_trans = mn.replace('_e32', '').replace('_e64', '') in TRANS
        self.is_dot = mn.startswith('v_dot')
        self.is_dpp = bool(re.search(r'row_ror|row_shr|row_shl|quad_perm|row_mirror|row_half_mirror|row_bcast|row_newbcast', t))
        self.is_perml = mn.startswith('v_permlane')
        self.is_rdlane = mn.startswith(('v_readlane', 'v_readfirstlane'))
        self.is_wrlane = mn.startswith('v_writelane')
        self.is_lds_dma = self.is_vmem and (' lds' in t or '_lds_' in mn)
        self.is_store = (self.is_vmem and 'store' in mn) or mn.startswith(('ds_write', 'ds_add', 'ds_max'))
        self.wide_store = self.is_vmem and 'store' in mn and ('x4' in mn or 'x3' in mn)
        R = [regs_of(o) for o in ops]
        allr = set().union(*R) if R else set()
        self.store_data = set()
        if self.is_store or self.is_lds_dma or mn.startswith(('s_cmp', 's_cbranch', 's_branch', 's_waitcnt', 's_barrier', 's_nop', 's_endpgm', 's_sleep', 's_setprio', 's_bitcmp')):
            self.w, self.r = set(), allr
            if self.wide_store:
                self.store_data = R[1] if mn.startswith('global_') else R[0]
        elif self.is_perml or mn.startswith('v_swap'):
            self.w, self.r = allr, allr
        else:
            self.w = set(R[0]) if R else set()
            self.r = set().union(*R[1:]) if len(R) > 1 else set()
            if mn.startswith(('v_fmac', 'v_dot2c', 'v_writelane')) or self.is_dpp or 'd16' in mn:
                self.r |= self.w
            if mn.startswith(('v_add_co', 'v_addc_co', 'v_sub_co')):
                self.w |= R[1]
            if mn.startswith('s_and_saveexec'):
                self.w |= {'exec'}
        if self.is_lds_dma:
            self.r |= {'m0'}
        if self.is_mfma:
            self.srcA, self.srcB, self.srcC = R[1], R[2], R[3]
            self.passes = 8 if '32x32' in mn else 4
        self.states = 1
        if mn == 's_nop':
            self.states = int(ops[0], 0) + 1


def vg(s):
    return {r for r in s if r[0] in 'va' and r not in ('vcc',)}


def sg(s):
    return {r for r in s if r[0] == 's' or r == 'vcc'}


def need(p, c):
    n = 0
    if p.is_valu:
        pv, ps = vg(p.w), sg(p.w)
        if c.is_mfma and pv & c.r:
            n = max(n, 3 if p.is_dot else 2)
        if c.is_dpp and pv & c.r:
            n = max(n, 2)
        if c.is_perml and pv & c.r:
            n = max(n, 2)
        if c.is_rdlane and pv & c.r:
            n = max(n, 1)
        if ps & c.r:
            if c.is_vmem:
                n = max(n, 5)
            elif c.is_rdlane or c.is_wrlane:
                n = max(n, 4)
            elif c.is_valu or c.is_mfma:
                n = max(n, 2)
            elif c.is_salu:
                n = max(n, 1)
        if p.is_trans and (c.is_valu or c.is_mfma) and pv & c.r:
            n = max(n, 1)
        if p.is_dot and pv & (c.r | c.w):
            same_c = c.is_dot and c.mn == p.mn and not (pv & (regs_of(c.ops[1]) | regs_of(c.ops[2])))
            if not same_c:
                n = max(n, 3)
        if 'exec' in p.w:
            n = max(n, 5)
    if p.is_mfma:
        d = p.w
        big = {4: 8, 8: 12}[p.passes]
        if c.is_mfma:
            if d & (c.srcA | c.srcB):
                n = max(n, big)
            if d & c.srcC and d != c.srcC:
                n = max(n, big - 2)
            if d & c.w and not (d & c.srcC):
                n = max(n, big)
        elif (c.is_valu or c.is_vmem or c.is_ds) and d & (c.r | c.w):
            n = max(n, big)
        if c.is_valu and p.srcC & c.w:
            n = max(n, {4: 3, 8: 7}[p.passes])
    if p.is_salu and 'm0' in p.w and c.is_lds_dma:
        n = max(n, 1)
    if p.wide_store and p.store_data & c.w:
        n = max(n, 2)
    return n


def worst(p):
    if p.is_mfma:
        return {4: 8, 8: 12}[p.passes]
    if p.is_valu:
        if sg(p.w) or 'exec' in p.w:
            return 5
        return 3 if p.is_dot else 2
    if p.is_salu and 'm0' in p.w:
        return 1
    if p.wide_store:
        return 2
    return 0


class Asm:
    def __init__(self):
        self.out = []
        self.hist = []
        self.nlab = 0

    def raw(self, text):
        self.out.append(text)

    def _pad(self, k):
        while k > 0:
            m = min(k, 16)
            i = Ins('s_nop %d' % (m - 1))
            self.out.append('    ' + i.text)
            self.hist.append(i)
            k -= m

    def flush(self, credit=0):
        dist, k = credit, 0
        for p in reversed(self.hist[-24:]):
            k = max(k, worst(p) - dist)
            dist += p.states
        self._pad(k)

    def B(self, text):
        self.out.append('    ' + text)
        self.hist.append(Ins(text))

    def I(self, text):
        for line in text.strip().split('\n'):
            line = line.strip()
            if not line or line.startswith(';'):
                if line:
                    self.out.append('    ' + line)
                continue
            c = Ins(line)
            if c.mn.startswith(('s_cbranch', 's_branch')):
                self.flush(credit=1)
            dist, k = 0, 0
            for p in reversed(self.hist[-24:]):
                k = max(k, need(p, c) - dist)
                dist += p.states
            self._pad(k)
            self.out.append('    ' + line)
            self.hist.append(c)

    def label(self, name):
        self.out.append(name + ':')

    def newlabel(self, base='L'):
        self.nlab += 1
        return '%s_%d' % (base, self.nlab)

    def text(self):
        return '\n'.join(self.out) + '\n'


def v(i, n=1):
    return 'v%d' % i if n == 1 else 'v[%d:%d]' % (i, i + n - 1)


def s(i, n=1):
    return 's%d' % i if n == 1 else 's[%d:%d]' % (i, i + n - 1)
```

```python
import sys, argparse, re
from asmlib import Asm, v, s

NAME = 'parallel_sum__compressed_kv_cla__dense_activation_squared_relu__decode'

ap = argparse.ArgumentParser()
A_ = lambda n, d, t=int: ap.add_argument('--' + n, type=t, default=d)
ap.add_argument('-o', default='out.s')
A_('ts', 0)
A_('nt', 1)
A_('d1', 2); A_('k1', 4); A_('d2', 8); A_('k2', 16); A_('d3', 8)
A_('swap', 0)
A_('qa', 31)
A_('h2', 1)
A_('h3', 1)
A_('nt1', 0)
A_('wor', 3)
A_('dyn', 4)
A_('own', 1)
A_('ns', 4)
A_('nb', 4)
A_('w1', 0)
A_('mimic', 1)
A_('touch', 0)
A_('spin', 20000)
A_('notail', 0)
A_('tsn', 0)
A_('amp', '', str)
A_('tsmask', 0xffff, lambda x: int(x, 0))
args = ap.parse_args()
NT = ' nt' if args.nt else ''

PITCH = 1056
L_QA = 128 * PITCH
L_P = L_QA + 16384
L_XN = L_P + 4096
L_MX = L_XN + 1024
L_MF = L_MX + 256
L_CL = L_MF + 64
L_CX = L_CL + 2048
L_FL = L_CX + 2048
L_END = L_FL + 64
assert L_END <= 163840
F_F0, C_ISS, F_H2, C_K0, C_K1, C_QA, C_ST, C_ACK = range(8)
W_EP = 0
W_H1 = 0x1000
W_H2 = W_H1 + 0x20000
W_ML = W_H2 + 0x10000
W_HF = W_ML + 0x40000
W_H5 = W_HF + 0x40000
W_H3 = 0x200000
W_TS = 0x600000
assert W_H5 + 0x100000 <= W_H3

pX, pCKV, pWQ, pWUK, pWUV, pWO, pW1 = 4, 6, 8, 10, 12, 14, 18
pB1, pW2, pB2, pOUT, pDBG, pWS = 20, 22, 24, 26, 28, 30
sWV = 3
sX, sY, sFC, sGA, sS, sR, sHT, sCI, sDI = range(32, 41)
sJ, sH = sX, sY
sEP, sT0, sT1, sT2, sT3, sCNT, sW = 41, 42, 43, 44, 45, 46, 47
sB = 48
sM1, sM2, sM3, sM4 = 50, 52, 54, 56
sK0, sK1, sK2 = 58, 59, 60
TSB = 64
VFL, VONE, VFT = 13, 14, 15

a = Asm()
P = lambda r: s(r, 2)
MFMA = 'v_mfma_f32_16x16x32_bf16'


def I(text):
    if args.notail:
        out = []
        for line in text.split('\n'):
            m = re.match(r'\s*global_load_dwordx4 (v\[\d+:\d+\]), v\d+, s\[(\d+):', line)
            if m and int(m.group(2)) in (pWUV, pWO, pW1, pW2):
                line = f'global_load_dwordx4 {m.group(1)}, v3, s[4:5]'
            out.append(line)
        text = '\n'.join(out)
    a.I(text)


def TS(i):
    if args.ts and (args.tsmask >> i) & 1:
        I(f's_memrealtime {s(TSB + 2 * i, 2)}')


def TSN(k=None):
    if args.ts and (k is None or k == args.tsn):
        I(f's_sub_u32 {s(TSB + 2 * 15)}, {args.spin}, {s(sCNT)}')


def ts_dump(n=16):
    if not args.ts:
        return
    if args.amp:
        wg, w, k = map(int, args.amp.split(','))
        lab, done = a.newlabel('L_amp'), a.newlabel('L_ampd')
        I(f's_cmp_lg_u32 s2, {wg}')
        I(f's_cbranch_scc1 {done}')
        I(f's_cmp_lg_u32 {s(sWV)}, {w}')
        I(f's_cbranch_scc1 {done}')
        I('s_memrealtime s[96:97]')
        I('s_waitcnt lgkmcnt(0)')
        I(f's_sub_u32 {s(sT0)}, {s(TSB + 2 * k)}, {s(TSB)}')
        I(f's_lshl_b32 {s(sT0)}, {s(sT0)}, 3')
        I(f's_min_u32 {s(sT0)}, {s(sT0)}, 100000')
        a.label(lab)
        I('s_memrealtime s[98:99]')
        I('s_waitcnt lgkmcnt(0)')
        I(f's_sub_u32 {s(sT1)}, s98, s96')
        I(f's_cmp_lt_u32 {s(sT1)}, {s(sT0)}')
        I(f's_cbranch_scc1 {lab}')
        a.label(done)
    I('s_waitcnt lgkmcnt(0)')
    I('s_mov_b64 exec, -1')
    I('v_mov_b32 v4, 0')
    for i in range(n):
        I(f'v_writelane_b32 v4, {s(TSB + 2 * i)}, {i}')
    I(f's_lshl_b32 {s(sT0)}, s2, 3')
    I(f's_add_u32 {s(sT0)}, {s(sT0)}, {s(sWV)}')
    I(f's_lshl_b32 {s(sT0)}, {s(sT0)}, 6')
    I(f's_add_u32 {s(sT0)}, {s(sT0)}, {W_TS}')
    I(f'v_lshl_add_u32 v5, v0, 2, {s(sT0)}')
    I('s_mov_b64 exec, 0xffff')
    I(f'global_store_dword v5, v4, {P(pWS)}')
    I('s_waitcnt vmcnt(0)')


def load_epoch():
    I(f's_load_dword {s(sEP)}, {P(pWS)}, {W_EP}')


def epoch_ready():
    I('s_waitcnt lgkmcnt(0)')
    I(f's_add_u32 {s(sEP)}, {s(sEP)}, 1')


def row_allreduce(op, regs, steps=(8, 4, 2, 1)):
    for st in steps:
        for r in regs:
            I(f'{op} {v(r)}, {v(r)}, {v(r)} row_ror:{st}')


def cross_rows_allreduce(op, r, t):
    for sw in ('v_permlane16_swap_b32', 'v_permlane32_swap_b32'):
        I(f'v_mov_b32 {v(t)}, {v(r)}')
        I(f'{sw} {v(t)}, {v(r)}')
        I(f'{op} {v(r)}, {v(r)}, {v(t)}')


def flag_add(idx):
    I('s_mov_b64 exec, 1')
    I(f'ds_add_u32 {v(VFL)}, {v(VONE)} offset:{4 * idx}')
    I('s_mov_b64 exec, -1')


def flag_wait(idx, n):
    lab, done = a.newlabel('L_fw'), a.newlabel('L_fwd')
    a.label(lab)
    I(f'ds_read_b32 {v(VFT)}, {v(VFL)} offset:{4 * idx}')
    I(f's_sub_u32 {s(sFC)}, {s(sFC)}, 1')
    I('s_waitcnt lgkmcnt(0)')
    I(f'v_cmp_gt_u32 vcc, {n}, {v(VFT)}')
    a.B(f's_cbranch_scc1 {done}')
    a.B(f's_cbranch_vccnz {lab}')
    a.label(done)
    I(f's_max_i32 {s(sFC)}, {s(sFC)}, 0')


def build_masks(M, t0, t1):
    I(f'v_and_b32 {v(t0)}, 1, v1')
    I(f'v_lshlrev_b32 {v(t0)}, 4, {v(t0)}')
    I(f'v_mov_b32 {v(t1)}, 0xffff')
    I(f'v_lshlrev_b32 {v(t1)}, {v(t0)}, {v(t1)}')
    I(f'v_bfe_u32 {v(t0)}, v1, 1, 2')
    for r in range(4):
        I(f'v_cmp_eq_u32 vcc, {r}, {v(t0)}')
        I(f'v_cndmask_b32 {v(M + r)}, 0, {v(t1)}, vcc')


BF, ACC, PF = 128, 96, 80
AT, SEL, XP, ACC0, REC = 72, 32, 80, 88, 92


def build_sel():
    I('''
    v_and_b32 v6, 1, v1
    v_cmp_eq_u32 vcc, 1, v6
    v_mov_b32 v7, 0x0c0c0100
    v_mov_b32 v8, 0x01000c0c
    v_cndmask_b32 v7, v7, v8, vcc
    v_mov_b32 v8, 0x0c0c0302
    v_mov_b32 v9, 0x03020c0c
    v_cndmask_b32 v8, v8, v9, vcc
    v_mov_b32 v9, 0x0c0c0c0c
    v_bfe_u32 v6, v1, 1, 2
    ''')
    for r in range(4):
        I(f'v_cmp_eq_u32 vcc, {r}, v6')
        I(f'v_cndmask_b32 {v(SEL + r)}, v9, v7, vcc')
        I(f'v_cndmask_b32 {v(SEL + 4 + r)}, v9, v8, vcc')


def diag_stage(n, W):
    def perms(k):
        for r in range(4):
            I(f'v_perm_b32 {v(AT + 4 * (k & 1) + r)}, {v(XP + (k >> 1))}, {v(XP + (k >> 1))}, {v(SEL + 4 * (k & 1) + r)}')
    perms(0)
    for k in range(n):
        if k < n - 1:
            perms(k + 1)
        else:
            I(f'v_mov_b32 {v(REC + 2)}, {s(sEP)}')
            I(f'v_mov_b32 {v(REC + 3)}, {s(sEP)}')
        I(f's_waitcnt vmcnt({n - 1 - k})')
        I(f'{MFMA} {v(ACC0, 4)}, {v(AT + 4 * (k & 1), 4)}, {v(W + 4 * k, 4)}, {"0" if k == 0 else v(ACC0, 4)}')


def tr_addr():
    I(f'''
    v_lshrrev_b32 v4, 2, v0
    v_mul_u32_u24 v4, {PITCH}, v4
    v_and_b32 v5, 3, v0
    v_lshl_add_u32 v4, v5, 3, v4
    s_lshl_b32 {s(sT0)}, {s(sW)}, 8
    v_add_u32 v4, {s(sT0)}, v4
    v_add_u32 v5, {64 * PITCH}, v4
    ''')


def tr_reads(tau):
    for u in range(4):
        for T in range(8):
            I(f'ds_read_b64_tr_b16 {v(BF + (u * 8 + T) * 4 + 2 * tau, 2)}, {"v4" if u < 2 else "v5"} offset:{(u & 1) * 32 * PITCH + tau * 16 * PITCH + T * 32}')


def round_pairs(base, n, tmp):
    for i in range(n // 2):
        I(f'v_cvt_pk_bf16_f32 {v(tmp + i)}, {v(base + 2 * i)}, {v(base + 2 * i + 1)}')
    for i in range(n // 2):
        I(f'v_lshlrev_b32 {v(base + 2 * i)}, 16, {v(tmp + i)}')
        I(f'v_and_b32 {v(base + 2 * i + 1)}, {s(sT3)}, {v(tmp + i)}')


hdr = open('cdna_kernels/%s.s.ref' % NAME).read().split('; Override launch geometry')[0]
a.raw(hdr.rstrip())
a.raw(f'; @launch grid=(256,1,1) block=(512,1,1) lds={L_END}')
a.raw('.amdgcn_target "amdgcn-amd-amdhsa--gfx950"')
a.raw('.text')
a.raw(f'.globl {NAME}_kernel')
a.raw('.p2align 8')
a.raw(f'.type {NAME}_kernel,@function')
a.label(f'{NAME}_kernel')
a.label('L_start')
I('s_load_dwordx16 s[4:19], s[0:1], 0')
I('s_load_dwordx8 s[20:27], s[0:1], 64')
I('s_load_dwordx4 s[28:31], s[0:1], 96')
I('s_cmp_ge_u32 s2, 0x100')
I('s_cbranch_scc1 L_end')
TS(0)
I(f'''
v_lshrrev_b32 v3, 6, v0
v_and_b32 v0, 63, v0
v_readfirstlane_b32 {s(sWV)}, v3
v_and_b32 v1, 15, v0
v_lshrrev_b32 v2, 4, v0
s_and_b32 {s(sX)}, s2, 7
s_lshr_b32 {s(sY)}, s2, 3
s_lshr_b32 {s(sGA)}, {s(sY)}, 4
s_xor_b32 {s(sGA)}, {s(sGA)}, 1
s_and_b32 {s(sT0)}, {s(sY)}, 15
s_lshl4_add_u32 {s(sS)}, {s(sX)}, {s(sT0)}
s_and_b32 {s(sW)}, {s(sWV)}, 3
v_lshlrev_b32 v3, 4, v0
v_mov_b32 {v(VFL)}, {L_FL}
v_mov_b32 {v(VONE)}, 1
s_mov_b32 {s(sFC)}, 0x200000
s_lshl_b32 {s(sT0)}, {s(sJ)}, 19
s_lshl_b32 {s(sT1)}, {s(sH)}, 8
s_add_u32 {s(sT0)}, {s(sT0)}, {s(sT1)}
s_cmp_lg_u32 {s(sWV)}, 0
''')
a.B('s_cbranch_scc1 L_notF0')

Wq, XR = 128, 120
I(f'''
v_lshlrev_b32 v5, 17, v2
v_lshl_add_u32 v5, v1, 4, v5
v_add_u32 v5, {s(sT0)}, v5
s_movk_i32 {s(sT2)}, 0x2000
s_waitcnt lgkmcnt(0)
''')
I(f'global_load_dwordx4 {v(XR, 4)}, v3, {P(pX)}')
for k in range(16):
    I(f'global_load_dwordx4 {v(Wq + 4 * k, 4)}, v5, {P(pWQ)}{NT}')
    if k < 15:
        I(f'v_add_u32 v5, {s(sT2)}, v5')
I('s_barrier')
load_epoch()
TS(1)
build_sel()
I(f'''
v_add_u32 v10, {L_XN}, v3
s_lshl_b32 {s(sT0)}, {s(sJ)}, 7
s_add_u32 {s(sT0)}, {s(sT0)}, {L_XN}
v_lshl_add_u32 v11, v2, 5, {s(sT0)}
s_lshl_b32 {s(sT0)}, s2, 9
s_add_u32 {s(sT0)}, {s(sT0)}, {W_H1}
v_add_u32 v12, {s(sT0)}, v3
s_mov_b32 {s(sT3)}, 0xffff0000
s_mov_b32 {s(sK0)}, 0x07060501
s_mov_b32 {s(sK1)}, 0x07060502
s_mov_b32 {s(sK2)}, 0x07060503
''')
I('s_barrier')
F, Dd, t0, t1, t2, t3, PK = 96, 104, 112, 113, 114, 115, 116
I('s_waitcnt vmcnt(16)')
TS(2)
for i in range(4):
    I(f'v_lshlrev_b32 {v(F + 2 * i)}, 16, {v(XR + i)}')
    I(f'v_and_b32 {v(F + 2 * i + 1)}, {s(sT3)}, {v(XR + i)}')
I(f'''
v_add_f32 {v(t0)}, {v(F)}, {v(F + 1)}
v_add_f32 {v(t1)}, {v(F + 2)}, {v(F + 3)}
v_add_f32 {v(t2)}, {v(F + 4)}, {v(F + 5)}
v_add_f32 {v(t3)}, {v(F + 6)}, {v(F + 7)}
v_add_f32 {v(t0)}, {v(t0)}, {v(t1)}
v_add_f32 {v(t2)}, {v(t2)}, {v(t3)}
v_add_f32 {v(t0)}, {v(t0)}, {v(t2)}
''')
row_allreduce('v_add_f32', [t0])
I(f'v_add_f32 {v(t0)}, {v(t0)}, {v(t0)} row_bcast:15 row_mask:0xa')
I(f'v_add_f32 {v(t0)}, {v(t0)}, {v(t0)} row_bcast:31 row_mask:0xc')
I(f'v_mov_b32 {v(t1)}, 0x3b000000')
I(f'v_readlane_b32 {s(sT0)}, {v(t0)}, 63')
I(f'v_mul_f32 {v(t1)}, {s(sT0)}, {v(t1)}')
for i in range(8):
    I(f'v_sub_f32 {v(Dd + i)}, {v(F + i)}, {v(t1)}')
I(f'v_mul_f32 {v(t0)}, {v(Dd)}, {v(Dd)}')
I(f'v_mul_f32 {v(t2)}, {v(Dd + 1)}, {v(Dd + 1)}')
for i in range(2, 8, 2):
    I(f'v_fmac_f32 {v(t0)}, {v(Dd + i)}, {v(Dd + i)}')
    I(f'v_fmac_f32 {v(t2)}, {v(Dd + i + 1)}, {v(Dd + i + 1)}')
I(f'v_add_f32 {v(t0)}, {v(t0)}, {v(t2)}')
I(f'v_cvt_pk_bf16_f32 {v(t1)}, {v(t1)}, {v(t1)}')
I(f'v_and_b32 {v(t1)}, {s(sT3)}, {v(t1)}')
row_allreduce('v_add_f32', [t0], steps=(8,))
for i in range(0, 4):
    I(f'v_sub_f32 {v(Dd + i)}, {v(F + i)}, {v(t1)}')
row_allreduce('v_add_f32', [t0], steps=(4,))
for i in range(4, 8):
    I(f'v_sub_f32 {v(Dd + i)}, {v(F + i)}, {v(t1)}')
row_allreduce('v_add_f32', [t0], steps=(2,))
for i in range(0, 2):
    I(f'v_cvt_pk_bf16_f32 {v(PK + i)}, {v(Dd + 2 * i)}, {v(Dd + 2 * i + 1)}')
row_allreduce('v_add_f32', [t0], steps=(1,))
for i in range(2, 4):
    I(f'v_cvt_pk_bf16_f32 {v(PK + i)}, {v(Dd + 2 * i)}, {v(Dd + 2 * i + 1)}')
I(f'v_add_f32 {v(t0)}, {v(t0)}, {v(t0)} row_bcast:15 row_mask:0xa')
for i in range(0, 2):
    I(f'v_lshlrev_b32 {v(Dd + 2 * i)}, 16, {v(PK + i)}')
    I(f'v_and_b32 {v(Dd + 2 * i + 1)}, {s(sT3)}, {v(PK + i)}')
I(f'v_add_f32 {v(t0)}, {v(t0)}, {v(t0)} row_bcast:31 row_mask:0xc')
for i in range(2, 4):
    I(f'v_lshlrev_b32 {v(Dd + 2 * i)}, 16, {v(PK + i)}')
    I(f'v_and_b32 {v(Dd + 2 * i + 1)}, {s(sT3)}, {v(PK + i)}')
I(f'v_mov_b32 {v(t1)}, 0x3b000000')
I(f'v_readlane_b32 {s(sT0)}, {v(t0)}, 63')
I(f'''
v_mul_f32 {v(t1)}, {s(sT0)}, {v(t1)}
v_cvt_pk_bf16_f32 {v(t1)}, {v(t1)}, {v(t1)}
v_and_b32 {v(t1)}, {s(sT3)}, {v(t1)}
v_add_f32 {v(t1)}, 0x3727c5ac, {v(t1)}
v_cvt_pk_bf16_f32 {v(t1)}, {v(t1)}, {v(t1)}
v_and_b32 {v(t1)}, {s(sT3)}, {v(t1)}
v_sqrt_f32 {v(t1)}, {v(t1)}
v_cvt_pk_bf16_f32 {v(t1)}, {v(t1)}, {v(t1)}
v_and_b32 {v(t1)}, {s(sT3)}, {v(t1)}
v_rcp_f32 {v(t1)}, {v(t1)}
''')
for i in range(8):
    I(f'v_mul_f32 {v(Dd + i)}, {v(Dd + i)}, {v(t1)}')
for i in range(4):
    I(f'v_cvt_pk_bf16_f32 {v(PK + i)}, {v(Dd + 2 * i)}, {v(Dd + 2 * i + 1)}')
I(f'ds_write_b128 v10, {v(PK, 4)}')
I(f'ds_read_b128 {v(XP, 4)}, v11')
I(f'ds_read_b128 {v(XP + 4, 4)}, v11 offset:16')
epoch_ready()
TS(3)
diag_stage(16, Wq)
for i in range(3):
    I(f'v_perm_b32 {v(REC + i)}, {v(ACC0 + i)}, {v(ACC0 + 3)}, {s(sK0 + i)}')
I('s_mov_b32 exec_hi, 0')
I(f'global_store_dwordx4 v12, {v(REC, 4)}, {P(pWS)} sc1')
if args.own:
    I(f'ds_write_b128 v10, {v(REC, 4)} offset:{L_CX - L_XN}')
TS(4)
flag_add(F_F0)
I('s_branch L_QG')

a.label('L_notF0')
I(f's_cmp_ge_u32 {s(sWV)}, 4')
I('s_cbranch_scc1 L_S')
I(f's_cmp_eq_u32 {s(sWV)}, 2')
I('s_cbranch_scc1 L_F2')
I(f's_cmp_eq_u32 {s(sWV)}, 3')
I('s_cbranch_scc1 L_F3')

WK, G1, QF, DK = 128, 192, 96, 112
I(f'''
v_lshlrev_b32 v6, 1, v2
v_xor_b32 v6, v6, v1
v_lshlrev_b32 v5, 13, v2
v_lshl_add_u32 v5, v6, 4, v5
v_add_u32 v5, {s(sT0)}, v5
v_xor_b32 v6, 0x80, v5
v_add_u32 v6, 0x8000, v6
s_mov_b32 {s(sT2)}, 0x10000
s_mov_b32 m0, {L_QA}
s_waitcnt lgkmcnt(0)
''')
load_epoch()
I('s_barrier')
for k in range(16):
    I(f'global_load_lds_dwordx4 {"v6" if k & 1 else "v5"}, {P(pWUK)}{NT}')
    if k < 15:
        I('s_add_u32 m0, m0, 0x400')
    if k < 14:
        I(f'v_add_u32 {"v6" if k & 1 else "v5"}, {s(sT2)}, {"v6" if k & 1 else "v5"}')
I('s_barrier')
TS(1)
I(f'''
v_and_b32 v5, 7, v1
v_lshlrev_b32 v5, 1, v5
v_xor_b32 v5, v5, v2
v_lshlrev_b32 v5, 4, v5
v_lshl_add_u32 v5, v1, 8, v5
v_add_u32 v24, {L_QA}, v5
v_xor_b32 v25, 64, v24
v_xor_b32 v26, 0x80, v24
v_xor_b32 v27, 0xc0, v24
s_lshl_b32 {s(sT0)}, {s(sH)}, 12
s_add_u32 {s(sT0)}, {s(sT0)}, {W_H1}
v_add_u32 v8, {s(sT0)}, v3
s_lshl_b32 {s(sT1)}, {s(sJ)}, 9
v_add_u32 v6, {s(sT1)}, v3
s_movk_i32 {s(sT1)}, 0xfff
v_and_b32 v16, {s(sT1)}, v6
v_add_u32 v6, 0x400, v6
v_and_b32 v17, {s(sT1)}, v6
v_add_u32 v6, 0x400, v6
v_and_b32 v18, {s(sT1)}, v6
v_add_u32 v6, 0x400, v6
v_and_b32 v19, {s(sT1)}, v6
v_add_u32 v32, {s(sT0)}, v16
v_add_u32 v33, {s(sT0)}, v17
v_add_u32 v34, {s(sT0)}, v18
v_add_u32 v35, {s(sT0)}, v19
v_add_u32 v9, {L_CX}, v3
v_and_b32 v10, 1, v2
v_lshlrev_b32 v10, 1, v10
v_lshrrev_b32 v11, 1, v2
v_add_u32 v10, v10, v11
v_lshl_add_u32 v10, v1, 2, v10
v_lshlrev_b32 v10, 2, v10
v_add_u32 v10, {L_CL}, v10
v_lshlrev_b32 v11, 4, v2
v_add_u32 v11, {L_CL}, v11
s_lshl_b32 {s(sT0)}, s2, 8
s_add_u32 {s(sT0)}, {s(sT0)}, {W_H2}
v_lshl_add_u32 v12, v2, 2, v1
v_lshlrev_b32 v12, 4, v12
v_add_u32 v12, {s(sT0)}, v12
v_cmp_eq_u32 {P(sM1)}, 1, v1
v_cmp_eq_u32 {P(sM2)}, 2, v1
v_cmp_eq_u32 {P(sM3)}, 3, v1
s_mov_b32 {s(sK0)}, 0x0c04000c
s_mov_b32 {s(sK1)}, 0x0402010c
''')
epoch_ready()
I(f'v_mov_b32 v22, {s(sEP)}')
I(f'v_mov_b32 v23, {s(sEP)}')
I('s_setprio 1')
if args.own:
    I(f'v_mov_b32 {v(G1 + 3)}, v22')
    I('s_waitcnt vmcnt(8)')
else:
    flag_wait(F_F0, 1)
TS(2)


def h1_loads():
    for k in range(4):
        if args.own:
            if k == 0:
                I('s_mov_b32 exec_lo, 0')
            I(f'global_load_dwordx4 {v(G1 + 4 * k, 4)}, {v(32 + k)}, {P(pWS)} sc1')
            if k == 0:
                I('s_mov_b32 exec_lo, -1')
        else:
            I(f'global_load_dwordx4 {v(G1 + 4 * k, 4)}, v8, {P(pWS)} offset:{k * 1024} sc1')


h1_loads()
I('s_waitcnt vmcnt(4)')
for tau in range(4):
    for t in range(4):
        I(f'ds_read_b128 {v(WK + 16 * tau + 4 * t, 4)}, {v(24 + t)} offset:{4096 * tau}')
I(f's_mov_b32 {s(sCNT)}, {args.spin}')
I('s_branch L_F1_chk')
a.label('L_F1_retry')
h1_loads()
a.label('L_F1_chk')
I(f's_sub_u32 {s(sCNT)}, {s(sCNT)}, 1')
I('s_waitcnt vmcnt(0)')
I(f'v_xor_b32 v16, {v(G1 + 3)}, v22')
for k in range(1, 4):
    I(f'v_bitop3_b32 v16, {v(G1 + 4 * k + 3)}, v22, v16 bitop3:0xbe')
I('v_cmp_ne_u32 vcc, 0, v16')
a.B('s_cbranch_scc1 L_F1_go')
a.B('s_cbranch_vccnz L_F1_retry')
a.label('L_F1_go')
if args.own:
    flag_wait(F_F0, 1)
    I('s_mov_b32 exec_hi, 0')
    I(f'ds_read_b128 {v(G1, 4)}, v9')
    I('s_mov_b64 exec, -1')
    I('s_waitcnt lgkmcnt(0)')
TS(3)
TSN()
for k in range(4):
    I(f'v_perm_b32 {v(G1 + 4 * k + 3)}, {v(G1 + 4 * k + 1)}, {v(G1 + 4 * k)}, {s(sK0)}')
for k in range(4):
    I(f'v_perm_b32 {v(G1 + 4 * k + 3)}, {v(G1 + 4 * k + 2)}, {v(G1 + 4 * k + 3)}, {s(sK1)}')
for st in (2, 1):
    for k in range(st):
        for e in range(4):
            I(f'v_add_f32 {v(G1 + 4 * k + e)}, {v(G1 + 4 * k + e)}, {v(G1 + 4 * (k + st) + e)}')
I(f'v_permlane32_swap_b32 {v(G1)}, {v(G1 + 2)}')
I(f'v_permlane32_swap_b32 {v(G1 + 1)}, {v(G1 + 3)}')
I(f'v_add_f32 {v(G1)}, {v(G1)}, {v(G1 + 2)}')
I(f'v_add_f32 {v(G1 + 1)}, {v(G1 + 1)}, {v(G1 + 3)}')
I(f'v_cvt_pk_bf16_f32 v16, {v(G1)}, {v(G1 + 1)}')
I('ds_write_b32 v10, v16')
for t in range(4):
    I(f'ds_read_b128 {v(QF + 4 * t, 4)}, v11 offset:{64 * t}')
for t in range(4):
    I(f's_waitcnt lgkmcnt({3 - t})')
    for tau in range(4):
        I(f'{MFMA} {v(DK + 4 * tau, 4)}, {v(WK + 16 * tau + 4 * t, 4)}, {v(QF + 4 * t, 4)}, {"0" if t == 0 else v(DK + 4 * tau, 4)}')
for tau in range(4):
    I(f'v_cvt_pk_bf16_f32 {v(24 + 2 * tau)}, {v(DK + 4 * tau)}, {v(DK + 4 * tau + 1)}')
    I(f'v_cvt_pk_bf16_f32 {v(25 + 2 * tau)}, {v(DK + 4 * tau + 2)}, {v(DK + 4 * tau + 3)}')
    if tau == 1:
        I(f'v_cndmask_b32 v20, v24, v26, {P(sM1)}')
        I(f'v_cndmask_b32 v21, v25, v27, {P(sM1)}')
    if tau == 2:
        I(f'v_cndmask_b32 v20, v20, v28, {P(sM2)}')
        I(f'v_cndmask_b32 v21, v21, v29, {P(sM2)}')
I(f'v_cndmask_b32 v20, v20, v30, {P(sM3)}')
I(f'v_cndmask_b32 v21, v21, v31, {P(sM3)}')
I('s_mov_b32 exec_lo, 0x000f000f')
I('s_mov_b32 exec_hi, 0x000f000f')
I(f'global_store_dwordx4 v12, v[20:23], {P(pWS)} sc1')
TS(4)
I('s_setprio 0')
flag_add(F_H2)
if args.h2:
    I('s_waitcnt vmcnt(0)')
    flag_add(F_H2)
a.label('L_PV1')
tr_addr()
flag_wait(C_K0, 4)
tr_reads(0)
flag_wait(C_K1, 4)
tr_reads(1)
I('s_branch L_PV')

a.label('L_F3')
W1R = 40
I('s_waitcnt lgkmcnt(0)')
load_epoch()
I('s_barrier')
I('s_barrier')
epoch_ready()
I('s_cmp_ge_u32 s2, 224')
I('s_cbranch_scc1 L_PV1')
build_sel()
tr_addr()
I(f'''
s_and_b32 {s(sT3)}, s2, 15
s_mul_i32 {s(sT0)}, {s(sT3)}, {32 * 3584}
s_lshr_b32 {s(sT1)}, s2, 4
s_lshl_b32 {s(sT1)}, {s(sT1)}, 8
s_add_u32 {s(sT0)}, {s(sT0)}, {s(sT1)}
v_mul_u32_u24 v8, {8 * 3584}, v2
v_lshl_add_u32 v8, v1, 4, v8
v_add_u32 v8, {s(sT0)}, v8
s_movk_i32 {s(sT2)}, {2 * 3584}
s_lshl_b32 {s(sT3)}, {s(sT3)}, 6
s_add_u32 {s(sT0)}, {s(sT3)}, {L_XN}
v_lshl_add_u32 v10, v2, 4, {s(sT0)}
s_lshl_b32 {s(sT0)}, {s(sT1)}, 6
s_add_u32 {s(sT0)}, {s(sT0)}, {s(sT3)}
s_add_u32 {s(sT0)}, {s(sT0)}, {W_HF}
v_lshrrev_b32 v12, 2, v0
v_lshlrev_b32 v12, 10, v12
v_and_b32 v9, 3, v0
v_lshl_add_u32 v12, v9, 4, v12
v_add_u32 v12, {s(sT0)}, v12
v_cmp_gt_u32 {P(sM1)}, v0, 31
''')
flag_wait(F_F0, 1)
I(f'ds_read_b128 {v(XP, 4)}, v10')
flag_wait(C_K0, 4)
tr_reads(0)
flag_wait(C_K1 if args.w1 else C_ISS, 4)
for k in range(8):
    I(f'global_load_dwordx4 {v(W1R + 4 * k, 4)}, v8, {P(pW1)} offset:{3584 * (k & 1)}{NT}')
    if k & 1 and k < 7:
        I(f'v_add_u32 v8, {s(sT2)}, v8')
flag_wait(C_K1, 4)
tr_reads(1)
diag_stage(8, W1R)
I(f'v_cndmask_b32 {v(REC)}, {v(ACC0)}, {v(ACC0 + 2)}, {P(sM1)}')
I(f'v_cndmask_b32 {v(REC + 1)}, {v(ACC0 + 1)}, {v(ACC0 + 3)}, {P(sM1)}')
I(f'global_store_dwordx4 v12, {v(REC, 4)}, {P(pWS)} sc1')
TS(4)
I('s_branch L_PV')

a.label('L_F2')
I(f'''
v_mov_b32 v16, 0
v_mov_b32 v17, 0
v_mov_b32 v18, 0
v_mov_b32 v19, 0
ds_write_b128 {v(VFL)}, v[16:19]
ds_write_b128 {v(VFL)}, v[16:19] offset:16
''')
I(f's_getpc_b64 {P(sB)}')
a.label('L_pc')
I(f's_sub_u32 {s(sB)}, {s(sB)}, L_pc-L_start')
I(f's_subb_u32 {s(sB + 1)}, {s(sB + 1)}, 0')
I(f's_and_b32 {s(sT1)}, {s(sY)}, 7')
I(f's_lshl_b32 {s(sT1)}, {s(sT1)}, 11')
I(f'v_lshl_add_u32 v5, v1, 7, {s(sT1)}')
I('v_min_u32 v6, L_end-L_start, v5')
I('s_mov_b64 exec, 0xffff')
I(f'global_load_dword v20, v6, {P(sB)}')
I('s_mov_b64 exec, -1')
I('v_and_b32 v5, 3, v0')
I('v_lshlrev_b32 v5, 21, v5')
I('s_waitcnt lgkmcnt(0)')
load_epoch()
if args.touch != 2:
    I('s_barrier')
I('s_mov_b64 exec, 7')
I(f'global_load_dword v22, v5, {P(pWS)} offset:256')
I('s_mov_b64 exec, 3')
if args.touch:
    I(f'global_load_dword v24, v5, {P(pWUV)}')
    I(f'global_load_dword v25, v5, {P(pWO)}')
I('s_mov_b64 exec, 1')
I(f'global_load_dword v23, v16, {P(pOUT)}')
if args.touch:
    for k, p in enumerate((pW1, pW2, pB1, pB2)):
        I(f'global_load_dword {v(26 + k)}, v16, {P(p)}')
I('s_mov_b64 exec, -1')
if args.touch == 2:
    I('s_barrier')
I('s_barrier')
epoch_ready()

a.label('L_QG')
G2, LA = 64, 56
I(f'''
s_lshr_b32 {s(sT1)}, {s(sWV)}, 1
s_lshl1_add_u32 {s(sT0)}, {s(sGA)}, {s(sT1)}
s_lshl_b32 {s(sT0)}, {s(sT0)}, 14
s_add_u32 {s(sT0)}, {s(sT0)}, {W_H2}
v_add_u32 v8, {s(sT0)}, v3
v_add_u32 v9, 0x1000, v8
v_add_u32 v10, 0x2000, v8
v_add_u32 v11, 0x3000, v8
v_and_b32 v6, 3, v0
v_bfe_u32 v7, v0, 3, 1
v_lshl_add_u32 v6, v6, 1, v7
v_bfe_u32 v7, v0, 2, 1
v_lshlrev_b32 v7, 3, v7
v_lshl_add_u32 v7, v2, 11, v7
v_lshl_add_u32 v7, v6, 8, v7
s_lshl_b32 {s(sT1)}, {s(sT1)}, 7
s_add_u32 {s(sT1)}, {s(sT1)}, {L_QA}
v_add_u32 v7, {s(sT1)}, v7
''')
for hd in range(8):
    I(f'v_xor_b32 v12, {hd}, v6')
    I(f'v_lshl_add_u32 {v(LA + hd)}, v12, 4, v7')
tr_addr()
I(f'v_mov_b32 v12, {s(sEP)}')
I('s_setprio 1')
flag_wait(C_K0, 4)
tr_reads(0)
flag_wait(C_ISS, 4)
flag_wait(F_H2, 1 + args.h2)
TS(10)


def qa_loads():
    for k in range(16):
        I(f'global_load_dwordx4 {v(G2 + 4 * k, 4)}, {v(8 + (k >> 2))}, {P(pWS)} offset:{(k & 3) * 1024} sc1')


qa_loads()
if args.qa == 31:
    flag_wait(C_K1, 4)
    tr_reads(1)
I(f's_mov_b32 {s(sCNT)}, {args.spin}')
I('s_branch L_F2_chk')
a.label('L_F2_retry')
qa_loads()
a.label('L_F2_chk')
I('v_mov_b32 v6, 0')
for k in range(16):
    I(f's_waitcnt vmcnt({15 - k})')
    I(f'ds_write_b64 {v(LA + (k >> 1))}, {v(G2 + 4 * k, 2)} offset:{(k & 1) * 8192}')
    I(f'v_bitop3_b32 v6, {v(G2 + 4 * k + 2)}, v12, v6 bitop3:0xbe')
I(f's_sub_u32 {s(sCNT)}, {s(sCNT)}, 1')
I('v_cmp_ne_u32 vcc, 0, v6')
a.B('s_cbranch_scc1 L_F2_go')
a.B('s_cbranch_vccz L_F2_go')
I('s_waitcnt lgkmcnt(0)')
I('s_branch L_F2_retry')
a.label('L_F2_go')
flag_add(C_QA)
I('s_setprio 0')
TS(11)
TSN()
if args.qa != 31:
    flag_wait(C_K1, 4)
    tr_reads(1)

a.label('L_PV')
ONES, LACC, RC, CK = 32, 36, 40, 44
I(f'''
v_add_u32 v6, {L_P}, v3
s_lshl_b32 {s(sT0)}, {s(sGA)}, 6
s_add_u32 {s(sT0)}, {s(sT0)}, {s(sW)}
s_lshl_b32 {s(sT0)}, {s(sT0)}, 11
s_lshl4_add_u32 {s(sT0)}, {s(sS)}, {s(sT0)}
s_lshl_b32 {s(sT1)}, {s(sT0)}, 4
s_add_u32 {s(sT1)}, {s(sT1)}, {W_H3}
s_add_u32 {s(sT0)}, {s(sT0)}, {W_ML}
v_lshlrev_b32 v7, 19, v2
v_lshl_add_u32 v7, v1, 4, v7
v_add_u32 v7, {s(sT1)}, v7
s_mov_b32 {s(sT2)}, 0x20000
v_add_u32 v9, {s(sT2)}, v7
v_add_u32 v10, {s(sT2)}, v9
v_add_u32 v11, {s(sT2)}, v10
v_and_b32 v16, 3, v1
v_lshl_add_u32 v12, v2, 2, v16
v_lshl_add_u32 v8, v12, 13, {s(sT0)}
v_lshlrev_b32 v12, 2, v12
v_add_u32 v12, {L_MF}, v12
v_cmp_eq_u32 {P(sM4)}, 1, v16
v_cmp_eq_u32 {P(sM2)}, 2, v16
v_cmp_eq_u32 {P(sM3)}, 3, v16
v_mov_b32 {v(RC + 3)}, {s(sEP)}
''')
for i in range(4):
    I(f'v_mov_b32 {v(ONES + i)}, 0x3f803f80')
TS(6)
I('s_barrier')
I('s_barrier')
for u in range(4):
    I(f'ds_read_b128 {v(PF + 4 * u, 4)}, v6 offset:{u * 1024}')
I(f'ds_read_b32 {v(RC)}, v12')
TS(7)
O = 16


def o_cvt(k):
    for r in range(4):
        I(f'v_cvt_pk_bf16_f32 {v(O + 4 * r + k)}, {v(ACC + 8 * k + r)}, {v(ACC + 8 * k + 4 + r)}')


for u in range(4):
    I(f's_waitcnt lgkmcnt({4 - u})')
    for T in range(8):
        I(f'{MFMA} {v(ACC + 4 * T, 4)}, {v(PF + 4 * u, 4)}, {v(BF + (u * 8 + T) * 4, 4)}, {"0" if u == 0 else v(ACC + 4 * T, 4)}')
for u in range(4):
    I(f'{MFMA} {v(LACC, 4)}, {v(PF + 4 * u, 4)}, {v(ONES, 4)}, {"0" if u == 0 else v(LACC, 4)}')
    if u >= 1:
        o_cvt(u - 1)
for r in range(4):
    I(f'v_cvt_pk_bf16_f32 {v(O + 4 * r + 3)}, {v(ACC + 24 + r)}, {v(ACC + 28 + r)}')
    I(f'global_store_dwordx4 {v((7, 9, 10, 11)[r])}, {v(O + 4 * r, 4)}, {P(pWS)} sc1')
for r in range(4):
    I(f'v_add3_u32 {v(CK + r)}, {v(O + 4 * r)}, {v(O + 4 * r + 1)}, {v(O + 4 * r + 2)}')
for r in range(4):
    I(f'v_add_u32 {v(CK + r)}, {v(CK + r)}, {v(O + 4 * r + 3)}')
row_allreduce('v_add_u32', [CK, CK + 1, CK + 2, CK + 3], steps=(1, 2))
I(f'v_cndmask_b32 {v(CK)}, {v(CK)}, {v(CK + 1)}, {P(sM4)}')
I(f'v_cndmask_b32 {v(CK)}, {v(CK)}, {v(CK + 2)}, {P(sM2)}')
I(f'v_cndmask_b32 {v(RC + 2)}, {v(CK)}, {v(CK + 3)}, {P(sM3)}')
I(f'v_cndmask_b32 {v(LACC)}, {v(LACC)}, {v(LACC + 1)}, {P(sM4)}')
I(f'v_cndmask_b32 {v(LACC)}, {v(LACC)}, {v(LACC + 2)}, {P(sM2)}')
row_allreduce('v_add_u32', [RC + 2], steps=(4,))
I(f'v_cndmask_b32 {v(RC + 1)}, {v(LACC)}, {v(LACC + 3)}, {P(sM3)}')
I('s_waitcnt lgkmcnt(0)')
row_allreduce('v_add_u32', [RC + 2], steps=(8,))
I('s_mov_b32 exec_lo, 0x000f000f')
I('s_mov_b32 exec_hi, 0x000f000f')
I(f'global_store_dwordx4 v8, {v(RC, 4)}, {P(pWS)} sc1')
flag_add(C_ST)
TS(8)
I('s_waitcnt vmcnt(0)')
flag_add(C_ACK)
TS(9)
I('s_waitcnt lgkmcnt(0)')
ts_dump()
I('s_endpgm')

a.label('L_S')
AF, QB, WUV, SA, MK, WO0 = 128, 96, 48, 40, 36, 64
WOR, PL, AW, AT2 = 128, 176, 208, 240
W2R, HFG, B1R, XR2, B2R, OA = 80, 88, 92, 93, 94, 104
WOq = lambda q: WO0 + 4 * q if q < 4 else WOR + 4 * (q - 4)
I(f'''
s_lshl2_add_u32 {s(sT0)}, {s(sS)}, {s(sW)}
s_lshl_b32 {s(sT0)}, {s(sT0)}, 15
v_add_u32 v4, {s(sT0)}, v3
s_mul_i32 {s(sT1)}, {s(sW)}, {32 * PITCH}
s_mov_b32 m0, {s(sT1)}
s_movk_i32 {s(sT2)}, 0x1000
v_mul_u32_u24 v5, {PITCH}, v1
v_lshl_add_u32 v5, v2, 4, v5
v_add_u32 v5, {s(sT1)}, v5
s_lshr_b32 {s(sHT)}, {s(sY)}, 3
s_lshl2_add_u32 {s(sHT)}, {s(sX)}, {s(sHT)}
s_and_b32 {s(sCI)}, {s(sY)}, 3
s_bfe_u32 {s(sDI)}, {s(sY)}, 0x10002
''')
if args.swap:
    I(f's_lshl_b32 {s(sT0)}, {s(sGA)}, 14')
    I(f'v_xor_b32 v4, {s(sT0)}, v4')
I(f'''
v_xor_b32 v6, v1, v2
v_lshlrev_b32 v6, 4, v6
v_lshl_add_u32 v6, v2, 8, v6
v_add_u32 v6, {L_QA}, v6
v_xor_b32 v7, 64, v6
''')
I(f'''
s_lshr_b32 {s(sT0)}, {s(sW)}, 1
s_lshl1_add_u32 {s(sT0)}, {s(sCI)}, {s(sT0)}
s_lshl_b32 {s(sT0)}, {s(sT0)}, 19
s_and_b32 {s(sT3)}, {s(sW)}, 1
s_lshl_b32 {s(sT3)}, {s(sT3)}, 16
s_add_u32 {s(sT0)}, {s(sT0)}, {s(sT3)}
s_lshl1_add_u32 {s(sT3)}, {s(sHT)}, {s(sDI)}
s_lshl_b32 {s(sT1)}, {s(sT3)}, 7
s_add_u32 {s(sT0)}, {s(sT0)}, {s(sT1)}
v_lshrrev_b32 v8, 3, v0
v_lshlrev_b32 v8, 13, v8
v_and_b32 v9, 7, v0
v_lshl_add_u32 v8, v9, 4, v8
v_add_u32 v8, {s(sT0)}, v8
''')
I('s_waitcnt lgkmcnt(0)')
load_epoch()
I('s_barrier')
I(f'''
s_lshl_b32 {s(sT0)}, {s(sT3)}, 16
s_lshl_b32 {s(sT1)}, {s(sW)}, 8
s_add_u32 {s(sT0)}, {s(sT0)}, {s(sT1)}
v_lshlrev_b32 v34, 12, v2
v_lshl_add_u32 v34, v1, 4, v34
v_add_u32 v34, {s(sT0)}, v34
''')
for b in range(4):
    I(f's_add_u32 {s(sT0)}, {s(sCI)}, {b}')
    I(f's_and_b32 {s(sT0)}, {s(sT0)}, 3')
    I(f's_lshl_b32 {s(sT0)}, {s(sT0)}, 14')
    I(f'v_add_u32 {v(28 + b)}, {s(sT0)}, v34')
build_masks(MK, 9, 10)
I('s_barrier')
TS(1)


def s_setup():
    I(f'''
    v_lshlrev_b32 v10, 4, v1
    v_add_u32 v10, {L_MX}, v10
    s_lshl_b32 {s(sT0)}, {s(sW)}, 2
    v_add_u32 v9, {s(sT0)}, v10
    s_lshl_b32 {s(sT0)}, {s(sW)}, 10
    s_add_u32 {s(sT0)}, {s(sT0)}, {L_P}
    v_add_u32 v11, {s(sT0)}, v3
    v_lshlrev_b32 v33, 2, v1
    v_add_u32 v33, {L_MF}, v33
    ''')
    I(f'''
    s_lshr_b32 {s(sT0)}, s2, 4
    s_lshl_b32 {s(sT0)}, {s(sT0)}, 7
    s_and_b32 {s(sT1)}, s2, 3
    s_lshl_b32 {s(sT1)}, {s(sT1)}, 5
    s_add_u32 {s(sT0)}, {s(sT0)}, {s(sT1)}
    s_bfe_u32 {s(sT1)}, s2, 0x10002
    s_lshl2_add_u32 {s(sT0)}, {s(sT1)}, {s(sT0)}
    s_bfe_u32 {s(sT1)}, s2, 0x10003
    s_lshl1_add_u32 {s(sT0)}, {s(sT1)}, {s(sT0)}
    s_lshl_b32 {s(sT1)}, {s(sT0)}, 1
    s_and_b32 {s(sT1)}, {s(sT1)}, 0x3ff
    v_and_b32 v35, 3, v0
    v_lshl_add_u32 v12, v35, 4, {s(sT1)}
    s_cmp_lt_u32 s2, 224
    s_cselect_b32 {s(sR)}, -1, 0
    s_cselect_b32 {s(sT1)}, 0, 256
    s_sub_u32 {s(sT0)}, {s(sT0)}, {s(sT1)}
    s_lshl_b32 {s(sT1)}, {s(sT0)}, 1
    v_lshl_add_u32 v27, v35, 4, {s(sT1)}
    s_lshl2_add_u32 {s(sT0)}, {s(sT0)}, {s(sW)}
    s_lshl_b32 {s(sT0)}, {s(sT0)}, 8
    v_lshlrev_b32 v26, 13, v2
    v_lshl_add_u32 v26, v1, 4, v26
    v_add_u32 v26, {s(sT0)}, v26
    s_mov_b32 {s(sK0)}, 0x20000
    ''')


def dma_row(r):
    I(f'global_load_lds_dwordx4 v4, {P(pCKV)} offset:{(r & 3) * 1024}{NT}')
    if r < 31:
        if r & 3 == 3:
            I(f's_add_u32 m0, m0, {PITCH + 3 * 1024}')
            I(f'v_add_u32 v4, {s(sT2)}, v4')
            if args.swap and r == 15:
                I(f's_lshl_b32 {s(sT0)}, {s(sGA)}, 15')
                I(f'v_subrev_u32 v4, {s(sT0)}, v4')
        else:
            I(f's_add_u32 m0, m0, {PITCH - 1024}')
    if r == args.qa:
        flag_add(C_ISS)


def tile_ready(tau):
    flag_add(C_K0 + tau)
    for t in range(16):
        I(f'ds_read_b128 {v(AF + 64 * tau + 4 * t, 4)}, v5 offset:{16 * PITCH * tau + 64 * t}')


tail = []
for i in range(4):
    tail.append(f'global_load_dwordx4 {v(WO0 + 4 * i, 4)}, v28, {P(pWO)} offset:{1024 * i}{NT}')
for i in range(4):
    tail.append(f'global_load_dwordx4 {v(WUV + 4 * i, 4)}, v8, {P(pWUV)}{NT}' + (f'\nv_add_u32 v8, {s(sK0)}, v8' if i < 3 else ''))
for i in range(2):
    tail.append(f'global_load_dwordx4 {v(W2R + 4 * i, 4)}, v26, {P(pW2)} offset:{1024 * i}{NT}')
tail.append(f'global_load_dword {v(B1R)}, v27, {P(pB1)}\nglobal_load_dword {v(XR2)}, v12, {P(pX)}\nglobal_load_dword {v(B2R)}, v12, {P(pB2)}')
assert args.nt1 <= 10

depth = lambda r: args.d1 if r < args.k1 else (args.d2 if r < args.k2 else args.d3)
for r in range(args.d1):
    dma_row(r)
s_setup()
I('s_mov_b64 vcc, -1')
done0 = False
for r in range(args.d1, 32 + args.nt1):
    if r < 32:
        dma_row(r)
    else:
        I(tail.pop(0))
    d = depth(r)
    if args.dyn and r >= args.k1 and r < 31:
        lab = a.newlabel('L_dy')
        a.B(f's_cbranch_vccz {lab}')
        I(f'ds_read_b32 {v(VFT)}, {v(VFL)} offset:{4 * F_H2}')
        I(f's_waitcnt vmcnt({args.dyn}) lgkmcnt(0)')
        I(f'v_cmp_eq_u32 vcc, 0, {v(VFT)}')
        a.label(lab)
    if r + 1 > d and r < 31 + args.nt1:
        I(f's_waitcnt vmcnt({max(d, r - 31)})')
        if not done0 and r + 1 - d >= 16:
            done0 = True
            tile_ready(0)
assert done0
TS(2)
epoch_ready()
I('s_setprio 2')
I(f's_waitcnt vmcnt({args.nt1})')
TS(3)
tile_ready(1)
flag_wait(C_QA, 2)
TS(4)
LOOK = 4


def qa_read(t):
    I(f'ds_read_b128 {v(QB + 4 * (t & 7), 4)}, {"v7" if t & 1 else "v6"} offset:{1024 * t}')


def wo_rest():
    for q in range(4, 16):
        I(f'global_load_dwordx4 {v(WOq(q), 4)}, {v(28 + (q >> 2))}, {P(pWO)} offset:{1024 * (q & 3)}{NT}')


for t in range(LOOK):
    qa_read(t)
for t in range(16):
    if t + LOOK < 16:
        qa_read(t + LOOK)
    I(f's_waitcnt lgkmcnt({min(LOOK, 15 - t)})')
    for tau in range(2):
        I(f'{MFMA} {v(SA + 4 * tau, 4)}, {v(AF + 64 * tau + 4 * t, 4)}, {v(QB + 4 * (t & 7), 4)}, {"0" if t == 0 else v(SA + 4 * tau, 4)}')
    if 1 <= t <= args.ns and tail:
        I(tail.pop(0))
    if args.wor == 0 and t >= 4:
        q = t
        I(f'global_load_dwordx4 {v(WOq(q), 4)}, {v(28 + (q >> 2))}, {P(pWO)} offset:{1024 * (q & 3)}{NT}')
TS(5)
I(f'''
s_mov_b32 {s(sT3)}, 0xffff0000
s_mov_b32 {s(sT0)}, 0x3db504f3
s_mov_b32 {s(sT1)}, 0x3fb8aa3b
v_max3_f32 v24, {v(SA)}, {v(SA + 1)}, {v(SA + 2)}
v_max3_f32 v25, {v(SA + 4)}, {v(SA + 5)}, {v(SA + 6)}
v_max3_f32 v24, v24, {v(SA + 3)}, {v(SA + 7)}
v_max_f32 v24, v24, v25
''')
cross_rows_allreduce('v_max_f32', 24, 25)
I('ds_write_b32 v9, v24')
if args.mimic:
    round_pairs(SA, 8, 16)
I('s_waitcnt lgkmcnt(0)')
I('s_barrier')
I('ds_read_b128 v[20:23], v10')
for i in range(8):
    I(f'v_mul_f32 {v(SA + i)}, {s(sT0)}, {v(SA + i)}')
if args.mimic:
    round_pairs(SA, 8, 16)
I('s_waitcnt lgkmcnt(0)')
I('v_max3_f32 v24, v20, v21, v22')
I('v_max_f32 v24, v24, v23')
if args.mimic:
    I('v_cvt_pk_bf16_f32 v24, v24, v24')
    I(f'v_and_b32 v24, {s(sT3)}, v24')
I(f'v_mul_f32 v24, {s(sT0)}, v24')
if args.mimic:
    I('v_cvt_pk_bf16_f32 v24, v24, v24')
    I(f'v_and_b32 v24, {s(sT3)}, v24')
I(f'v_mul_f32 v24, {s(sT1)}, v24')
for i in range(8):
    I(f'v_fma_f32 {v(SA + i)}, {v(SA + i)}, {s(sT1)}, -v24')
I('ds_write_b32 v33, v24')
for i in range(8):
    I(f'v_exp_f32 {v(SA + i)}, {v(SA + i)}')
for i in range(4):
    I(f'v_cvt_pk_bf16_f32 {v(16 + i)}, {v(SA + 2 * i)}, {v(SA + 2 * i + 1)}')
I('ds_write_b128 v11, v[16:19]')
I('s_waitcnt lgkmcnt(0)')
I('s_barrier')
I('s_setprio 0')
TS(6)
for _ in range(args.nb):
    if tail:
        I(tail.pop(0))
if args.wor == 1:
    wo_rest()
I(f'''
s_lshl_b32 {s(sT0)}, s2, 10
s_add_u32 {s(sT0)}, {s(sT0)}, {W_HF}
v_add_u32 v10, {s(sT0)}, v3
s_lshl2_add_u32 {s(sT0)}, {s(sHT)}, {s(sCI)}
s_lshl2_add_u32 {s(sT0)}, {s(sT0)}, {s(sW)}
s_lshl_b32 {s(sT0)}, {s(sT0)}, 13
s_add_u32 {s(sT0)}, {s(sT0)}, {W_H3}
v_lshlrev_b32 v4, 11, v2
v_lshl_add_u32 v4, v1, 4, v4
v_add_u32 v4, {s(sT0)}, v4
s_lshl2_add_u32 {s(sT0)}, {s(sHT)}, {s(sCI)}
s_lshl_b32 {s(sT0)}, {s(sT0)}, 11
s_add_u32 {s(sT0)}, {s(sT0)}, {W_ML}
v_and_b32 v6, 7, v1
v_lshl_add_u32 v6, v2, 3, v6
v_lshrrev_b32 v7, 3, v1
v_lshl_add_u32 v6, v7, 5, v6
s_lshl_b32 {s(sT1)}, {s(sW)}, 5
v_xor_b32 v6, {s(sT1)}, v6
v_xor_b32 v7, 64, v6
v_lshl_add_u32 v6, v6, 4, {s(sT0)}
v_lshl_add_u32 v7, v7, 4, {s(sT0)}
s_lshl_b32 {s(sT0)}, {s(sW)}, 18
s_lshl_b32 {s(sT1)}, s2, 6
s_add_u32 {s(sT0)}, {s(sT0)}, {s(sT1)}
s_add_u32 {s(sT0)}, {s(sT0)}, {W_H5}
v_lshrrev_b32 v44, 2, v0
v_lshlrev_b32 v44, 14, v44
v_lshl_add_u32 v44, v35, 4, v44
v_add_u32 v44, {s(sT0)}, v44
v_and_b32 v16, 1, v2
v_lshrrev_b32 v17, 1, v2
s_lshl_b32 {s(sT0)}, {s(sW)}, 9
s_add_u32 {s(sT1)}, {s(sT0)}, {L_CL}
v_add_u32 v40, {s(sT1)}, v3
s_add_u32 {s(sT1)}, {s(sT0)}, {L_CX}
v_and_b32 v42, 7, v0
v_lshlrev_b32 v42, 5, v42
v_lshl_add_u32 v42, v16, 4, v42
v_lshl_add_u32 v42, v17, 8, v42
v_add_u32 v42, {s(sT1)}, v42
s_lshl_b32 {s(sT0)}, {s(sW)}, 7
s_add_u32 {s(sT0)}, {s(sT0)}, {L_CL}
v_lshrrev_b32 v41, 3, v0
v_lshl_add_u32 v41, v41, 4, {s(sT0)}
v_lshrrev_b32 v43, 2, v1
v_add_u32 v43, {s(sCI)}, v43
v_and_b32 v43, 3, v43
v_lshlrev_b32 v43, 4, v43
v_lshl_add_u32 v43, v2, 2, v43
v_add_u32 v43, v43, v35
v_lshlrev_b32 v43, 2, v43
v_add_u32 v43, {L_CX}, v43
v_mov_b32 v33, {s(sEP)}
v_cmp_gt_u32 {P(sM1)}, v0, 31
v_cmp_gt_u32 {P(sM2)}, 8, v1
s_and_b32 {s(sCNT)}, {s(sR)}, {args.spin}
''')
flag_wait(C_ST, 4)
while tail:
    I(tail.pop(0))
I(f'global_load_dwordx4 {v(HFG, 4)}, v10, {P(pWS)} sc1')
if args.wor == 2:
    wo_rest()
    I('s_waitcnt vmcnt(12)')
else:
    I('s_waitcnt vmcnt(0)')
a.label('L_TF_chk')
I(f's_sub_u32 {s(sCNT)}, {s(sCNT)}, 1')
I(f'v_cmp_ne_u32 vcc, {v(HFG + 2)}, v33')
a.B('s_cbranch_scc1 L_TF_go')
a.B('s_cbranch_vccz L_TF_go')
I(f'global_load_dwordx4 {v(HFG, 4)}, v10, {P(pWS)} sc1')
I('s_waitcnt vmcnt(0)')
I('s_branch L_TF_chk')
a.label('L_TF_go')
TSN(1)
row_allreduce('v_add_f32', [HFG, HFG + 1], steps=(4, 8))
I(f'''
v_permlane32_swap_b32 {v(HFG)}, {v(HFG + 1)}
v_add_f32 {v(HFG)}, {v(HFG)}, {v(HFG + 1)}
v_mov_b32 {v(HFG + 1)}, {v(HFG)}
v_permlane16_swap_b32 {v(HFG)}, {v(HFG + 1)}
v_lshlrev_b32 v16, 16, {v(B1R)}
v_add_f32 {v(HFG)}, {v(HFG)}, {v(HFG + 1)}
v_and_b32 v17, {s(sT3)}, {v(B1R)}
v_cvt_pk_bf16_f32 {v(HFG)}, {v(HFG)}, {v(HFG)}
v_cndmask_b32 v16, v16, v17, {P(sM1)}
v_and_b32 {v(HFG)}, {s(sT3)}, {v(HFG)}
v_add_f32 {v(HFG)}, {v(HFG)}, v16
v_cvt_pk_bf16_f32 {v(HFG)}, {v(HFG)}, {v(HFG)}
v_and_b32 {v(HFG)}, {s(sT3)}, {v(HFG)}
v_max_f32 {v(HFG)}, 0, {v(HFG)}
v_mul_f32 {v(HFG)}, {v(HFG)}, {v(HFG)}
v_cvt_pk_bf16_f32 {v(HFG)}, {v(HFG)}, {v(HFG)}
v_mov_b32 {v(HFG + 1)}, {v(HFG)}
v_permlane32_swap_b32 {v(HFG)}, {v(HFG + 1)}
''')
for g_ in range(4):
    for i in range(2):
        I(f'v_mov_b32 {v(HFG + 2 + i)}, {v(HFG + i)} row_newbcast:{g_} row_mask:{1 << g_}')
for i in range(2):
    for r in range(4):
        I(f'v_and_b32 {v(AT2 + 4 * i + r)}, {v(HFG + 2 + i)}, {v(MK + r)}')
for i in range(2):
    I(f'{MFMA} {v(OA, 4)}, {v(AT2 + 4 * i, 4)}, {v(W2R + 4 * i, 4)}, {"0" if i == 0 else v(OA, 4)}')
for i in range(4):
    I(f'v_and_b32 {v(OA + i)}, {s(sR)}, {v(OA + i)}')
TS(7)
flag_wait(C_ACK if args.h3 else C_ST, 4)
TS(8)
I(f's_mov_b32 {s(sCNT)}, {args.spin}')
a.label('L_T3')
I(f'global_load_dwordx4 v[20:23], v6, {P(pWS)} sc1')
I(f'global_load_dwordx4 v[24:27], v7, {P(pWS)} sc1')
for q in range(8):
    I(f'global_load_dwordx4 {v(PL + 4 * q, 4)}, v4, {P(pWS)} offset:{q * 256} sc1')
I(f's_sub_u32 {s(sCNT)}, {s(sCNT)}, 1')
I(f's_cselect_b32 {s(sT2)}, 0, -1')
I('s_waitcnt vmcnt(8)')
I('v_max_f32 v18, v20, v24')
I('v_xor_b32 v17, v23, v33')
I('v_bitop3_b32 v17, v27, v33, v17 bitop3:0xbe')
row_allreduce('v_max_f32', [18], steps=(8,))
I(f'v_and_b32 v17, {s(sT2)}, v17')
I('v_cmp_ne_u32 vcc, 0, v17')
row_allreduce('v_max_f32', [18], steps=(4,))
I(f'v_cndmask_b32 v32, 0, v22, {P(sM2)}')
a.B('s_cbranch_vccnz L_T3')
row_allreduce('v_max_f32', [18], steps=(2, 1))
cross_rows_allreduce('v_max_f32', 18, 19)
I('''
v_sub_f32 v20, v20, v18
v_sub_f32 v24, v24, v18
v_exp_f32 v20, v20
v_exp_f32 v24, v24
v_sub_u32 v32, 0, v32
v_cvt_pk_bf16_f32 v16, v20, v20
v_mul_f32 v18, v20, v21
v_fmac_f32 v18, v24, v25
''')
red = [f'v_add_f32 v18, v18, v18 row_ror:{st}' for st in (8, 4, 2, 1)]
red += ['v_mov_b32 v19, v18', 'v_permlane16_swap_b32 v19, v18\nv_add_f32 v18, v18, v19\nv_mov_b32 v19, v18',
        'v_permlane32_swap_b32 v19, v18\nv_add_f32 v18, v18, v19', 'v_rcp_f32 v18, v18']
for q in range(8):
    for r in range(4):
        I(f'v_and_b32 {v(AW + 4 * q + r)}, v16, {v(MK + r)} row_newbcast:{q}')
    I(red[q])
TS(1)
nwo = 0
for q in range(8):
    I(f's_waitcnt vmcnt({7 - q + nwo})')
    I(f'{MFMA} v[24:27], {v(AW + 4 * q, 4)}, {v(PL + 4 * q, 4)}, {"0" if q == 0 else "v[24:27]"}')
    if args.wor == 3:
        for _ in range(2 if q < 4 else 1):
            qq = 4 + nwo
            I(f'global_load_dwordx4 {v(WOq(qq), 4)}, {v(28 + (qq >> 2))}, {P(pWO)} offset:{1024 * (qq & 3)}{NT}')
            nwo += 1
    I(f'v_add3_u32 v32, {v(PL + 4 * q)}, {v(PL + 4 * q + 1)}, v32')
    I(f'v_add3_u32 v32, {v(PL + 4 * q + 2)}, {v(PL + 4 * q + 3)}, v32')
row_allreduce('v_add_u32', [32], steps=(8, 4))
I('s_mov_b32 exec_hi, 0')
I('ds_write_b128 v40, v[24:27]')
I('s_mov_b64 exec, -1')
row_allreduce('v_add_u32', [32], steps=(2, 1))
I(f'v_and_b32 v32, {s(sT2)}, v32')
I('v_cmp_ne_u32 vcc, 0, v32')
I('s_waitcnt lgkmcnt(0)')
a.B('s_cbranch_vccnz L_T3')
TS(9)
TSN(0)
I('s_barrier')
for k in range(4):
    I(f'ds_read_b128 {v(108 + 4 * k, 4)}, v41 offset:{512 * k}')
I('s_waitcnt lgkmcnt(2)')
for i in range(4):
    I(f'v_add_f32 {v(108 + i)}, {v(108 + i)}, {v(112 + i)}')
I('s_waitcnt lgkmcnt(0)')
for i in range(4):
    I(f'v_add_f32 {v(116 + i)}, {v(116 + i)}, {v(120 + i)}')
for i in range(4):
    I(f'v_add_f32 {v(20 + i)}, {v(108 + i)}, {v(116 + i)}')
for i in range(4):
    I(f'v_cvt_pk_bf16_f32 {v(20 + i)}, {v(20 + i)}, {v(20 + i)}')
for r in range(4):
    I(f'v_and_b32 {v(AW + r)}, v20, {v(MK + r)}')
for i in range(4):
    if i < 3:
        for r in range(4):
            I(f'v_and_b32 {v(AW + 4 * (i + 1) + r)}, {v(21 + i)}, {v(MK + r)}')
    I(f'{MFMA} v[24:27], {v(AW + 4 * i, 4)}, {v(WUV + 4 * i, 4)}, {"0" if i == 0 else "v[24:27]"}')
I('s_mov_b32 exec_lo, 0x00ff00ff')
I('s_mov_b32 exec_hi, 0xff00ff00')
I('ds_write_b128 v42, v[24:27]')
I('s_mov_b64 exec, -1')
I('s_waitcnt lgkmcnt(0)')
I('s_barrier')
for k in range(4):
    I(f'ds_read2st64_b32 {v(108 + 2 * k, 2)}, v43 offset0:{2 * k} offset1:{2 * k + 1}')
TS(10)
I('v_mov_b32 v22, v33')
I('v_mov_b32 v23, v33')
I('s_waitcnt lgkmcnt(0)')
for st in (4, 2, 1):
    for k in range(st):
        I(f'v_add_f32 {v(108 + k)}, {v(108 + k)}, {v(108 + k + st)}')
I('v_mul_f32 v108, v108, v18')
I('v_cvt_pk_bf16_f32 v20, v108, v108')


def wo_and(q):
    for r in range(4):
        I(f'v_and_b32 {v(AT2 + 4 * (q & 1) + r)}, v20, {v(MK + r)} row_newbcast:{q}')


wo_and(0)
for q in range(16):
    if q < 15:
        wo_and(q + 1)
    if args.wor == 3 and q >= 4:
        I(f's_waitcnt vmcnt({15 - q})')
    I(f'{MFMA} {v(OA, 4)}, {v(AT2 + 4 * (q & 1), 4)}, {v(WOq(q), 4)}, {v(OA, 4)}')
TS(11)
I(f'v_cndmask_b32 v20, {v(OA)}, {v(OA + 2)}, {P(sM1)}')
I(f'v_cndmask_b32 v21, {v(OA + 1)}, {v(OA + 3)}, {P(sM1)}')
I(f'global_store_dwordx4 v44, v[20:23], {P(pWS)} sc1')
TS(12)
I('s_cmp_lt_u32 s2, 192')
I('s_cbranch_scc1 L_T_done')
I(f'''
s_and_b32 {s(sT0)}, s2, 63
s_lshl2_add_u32 {s(sT0)}, {s(sT0)}, {s(sW)}
s_lshl_b32 {s(sT0)}, {s(sT0)}, 12
s_add_u32 {s(sT0)}, {s(sT0)}, {W_H5}
v_add_u32 v4, {s(sT0)}, v3
v_lshlrev_b32 v9, 7, v35
v_add_u32 v9, {L_CL}, v9
s_lshl_b32 {s(sT0)}, {s(sW)}, 5
v_lshl_add_u32 v8, v2, 3, {s(sT0)}
v_add_u32 v8, v8, v9
v_lshrrev_b32 v6, 2, v0
v_lshl_add_u32 v9, v6, 3, v9
v_lshlrev_b32 v108, 16, {v(XR2)}
v_and_b32 v109, {s(sT3)}, {v(XR2)}
v_lshlrev_b32 v110, 16, {v(B2R)}
v_and_b32 v111, {s(sT3)}, {v(B2R)}
v_add_f32 v108, v108, v110
v_add_f32 v109, v109, v111
s_mov_b32 {s(sCNT)}, {args.spin}
''')
a.label('L_T5_retry')
for k in range(4):
    I(f'global_load_dwordx4 {v(128 + 4 * k, 4)}, v4, {P(pWS)} offset:{1024 * k} sc1')
I(f's_sub_u32 {s(sCNT)}, {s(sCNT)}, 1')
I('s_waitcnt vmcnt(0)')
I('v_xor_b32 v17, v130, v33')
for k in range(1, 4):
    I(f'v_bitop3_b32 v17, {v(130 + 4 * k)}, v33, v17 bitop3:0xbe')
I('v_cmp_ne_u32 vcc, 0, v17')
for i in range(2):
    I(f'v_add_f32 {v(128 + i)}, {v(128 + i)}, {v(132 + i)}')
    I(f'v_add_f32 {v(136 + i)}, {v(136 + i)}, {v(140 + i)}')
a.B('s_cbranch_scc1 L_T5_go')
a.B('s_cbranch_vccnz L_T5_retry')
a.label('L_T5_go')
TS(13)
TSN(3)
for i in range(2):
    I(f'v_add_f32 {v(20 + i)}, {v(128 + i)}, {v(136 + i)}')
row_allreduce('v_add_f32', [20, 21], steps=(4, 8))
I('ds_write_b64 v8, v[20:21]')
I('s_waitcnt lgkmcnt(0)')
I('s_barrier')
I(f's_cmp_lg_u32 {s(sW)}, 0')
I('s_cbranch_scc1 L_T_done')
I('ds_read_b64 v[20:21], v9')
I('s_waitcnt lgkmcnt(0)')
row_allreduce('v_add_f32', [20, 21], steps=(4, 8))
I('''
v_permlane32_swap_b32 v20, v21
v_add_f32 v20, v20, v21
v_mov_b32 v21, v20
v_permlane16_swap_b32 v20, v21
v_add_f32 v20, v20, v21
v_mov_b32 v21, v20
v_permlane32_swap_b32 v20, v21
v_add_f32 v108, v108, v20
v_add_f32 v109, v109, v21
v_cvt_pk_bf16_f32 v20, v108, v109
s_mov_b64 exec, 15
''')
I(f'global_store_dword v12, v20, {P(pOUT)}')
I('s_cmp_lg_u32 s2, 0xe0')
I('s_cbranch_scc1 L_T_done')
I(f'v_mov_b32 v22, {W_EP}')
I('s_mov_b64 exec, 1')
I(f'global_store_dword v22, v33, {P(pWS)} sc1')
a.label('L_T_done')
TS(14)
ts_dump()
a.label('L_end')
I('s_endpgm')

a.raw('.section .rodata,"a"')
a.raw('.p2align 6')
a.raw(f'.amdhsa_kernel {NAME}_kernel')
a.raw('''  .amdhsa_next_free_vgpr 256
  .amdhsa_next_free_sgpr 102
  .amdhsa_accum_offset 256
  .amdhsa_group_segment_fixed_size 0
  .amdhsa_kernarg_size 112
  .amdhsa_user_sgpr_count 2
  .amdhsa_user_sgpr_kernarg_segment_ptr 1
  .amdhsa_system_sgpr_workgroup_id_x 1
.end_amdhsa_kernel''')
open(args.o, 'w').write(a.text())
```

```python
import sys, argparse, re
from asmlib import Asm, v, s

NAME = 'parallel_sum__compressed_kv_cla__dense_activation_squared_relu__decode'

ap = argparse.ArgumentParser()
A_ = lambda n, d, t=int: ap.add_argument('--' + n, type=t, default=d)
ap.add_argument('-o', default='out.s')
A_('ts', 0)
A_('nt', 1)
A_('d1', 2); A_('k1', 4); A_('d2', 10); A_('k2', 16); A_('d3', 10)
A_('swap', 0)
A_('qa', 24)
A_('h2', 1)
A_('h3', 1)
A_('nt1', 0)
A_('wor', 3)
A_('dyn', 4)
A_('own', 1)
A_('ns', 6)
A_('nb', 0)
A_('w1', 0)
A_('last', 12)
A_('h5', 1)
A_('np', 1)
A_('sl', 5)
A_('pre', 2)
A_('tord', 1)
A_('light', 1)
A_('pt', 0)
A_('dly', 0)
A_('dly5', 0)
A_('hint1', 0)
A_('hint2', 0)
A_('wuv', 0)
A_('ew', 1)
A_('bpos', 1)
A_('a5', 1)
A_('comb', 1)
A_('tpos', 32)
A_('ne', 0)
A_('gv', 1)
A_('pp', 3)
A_('bo', 0)
A_('clk', 0)
A_('mimic', 1)
A_('touch', 0)
A_('spin', 20000)
A_('notail', 0)
A_('tsn', 0)
A_('amp', '', str)
A_('tsmask', 0xffff, lambda x: int(x, 0))
args = ap.parse_args()
NT = ' nt' if args.nt else ''

L_QA = 131072
L_P = L_QA + 16384
L_XN = L_P + 4096
L_MX = L_XN + 1024
L_MF = L_MX + 256
L_CL = L_MF + 256
L_CX = L_CL + 2048
L_FF = L_CX + 2048
L_FL = L_FF + 2048
L_END = L_FL + 64
assert L_END <= 163840
F_F0, C_ISS, F_H2, C_QA, C_ST, C_ACK, C_ER, F_HINT, K0 = range(9)
C_L, C_M = K0 + 4, K0 + 5
W_EP = 0
W_H1 = 0x1000
W_H2 = W_H1 + 0x20000
W_ER = W_H2 + 0x10000
W_HF = W_ER + 0x10000
W_H5 = W_HF + 0x80000
W_H3 = 0x200000
W_TS = 0x600000
assert W_H5 + 0x100000 <= W_H3

pX, pCKV, pWQ, pWUK, pWUV, pWO, pW1 = 4, 6, 8, 10, 12, 14, 18
pB1, pW2, pB2, pOUT, pDBG, pWS = 20, 22, 24, 26, 28, 30
sWV = 3
sX, sY, sFC, sGA, sS, sR, sHT, sCI, sDI = range(32, 41)
sJ, sH = sX, sY
sEP, sT0, sT1, sT2, sT3, sCNT, sW = 41, 42, 43, 44, 45, 46, 47
sB = 48
sM1, sM2, sM3, sM4 = 50, 52, 54, 56
sK0, sK1, sK2 = 58, 59, 60
TSB = 64
VFL, VONE, VFT = 13, 14, 15

a = Asm()
P = lambda r: s(r, 2)
MFMA = 'v_mfma_f32_16x16x32_bf16'


def I(text):
    if args.notail:
        out = []
        for line in text.split('\n'):
            m = re.match(r'\s*global_load_dwordx4 (v\[\d+:\d+\]), v\d+, s\[(\d+):', line)
            if m and int(m.group(2)) in (pWUV, pWO, pW1, pW2):
                line = f'global_load_dwordx4 {m.group(1)}, v3, s[4:5]'
            out.append(line)
        text = '\n'.join(out)
    a.I(text)


def TS(i):
    if args.ts and (args.tsmask >> i) & 1:
        I(f'{"s_memtime" if args.clk else "s_memrealtime"} {s(TSB + 2 * i, 2)}')


def TSN(k=None):
    if args.ts and (k is None or k == args.tsn):
        I(f's_sub_u32 {s(TSB + 2 * 15)}, {args.spin}, {s(sCNT)}')


def ts_dump(n=16):
    if not args.ts:
        return
    if args.amp:
        wg, w, k = map(int, args.amp.split(','))
        lab, done = a.newlabel('L_amp'), a.newlabel('L_ampd')
        I(f's_cmp_lg_u32 s2, {wg}')
        I(f's_cbranch_scc1 {done}')
        I(f's_cmp_lg_u32 {s(sWV)}, {w}')
        I(f's_cbranch_scc1 {done}')
        I('s_memrealtime s[96:97]')
        I('s_waitcnt lgkmcnt(0)')
        I(f's_sub_u32 {s(sT0)}, {s(TSB + 2 * k)}, {s(TSB)}')
        I(f's_lshl_b32 {s(sT0)}, {s(sT0)}, 3')
        I(f's_min_u32 {s(sT0)}, {s(sT0)}, 100000')
        a.label(lab)
        I('s_memrealtime s[98:99]')
        I('s_waitcnt lgkmcnt(0)')
        I(f's_sub_u32 {s(sT1)}, s98, s96')
        I(f's_cmp_lt_u32 {s(sT1)}, {s(sT0)}')
        I(f's_cbranch_scc1 {lab}')
        a.label(done)
    I('s_waitcnt lgkmcnt(0)')
    I('s_mov_b64 exec, -1')
    I('v_mov_b32 v4, 0')
    for i in range(n):
        I(f'v_writelane_b32 v4, {s(TSB + 2 * i)}, {i}')
    I(f's_lshl_b32 {s(sT0)}, s2, 3')
    I(f's_add_u32 {s(sT0)}, {s(sT0)}, {s(sWV)}')
    I(f's_lshl_b32 {s(sT0)}, {s(sT0)}, 6')
    I(f's_add_u32 {s(sT0)}, {s(sT0)}, {W_TS}')
    I(f'v_lshl_add_u32 v5, v0, 2, {s(sT0)}')
    I('s_mov_b64 exec, 0xffff')
    I(f'global_store_dword v5, v4, {P(pWS)}')
    I('s_waitcnt vmcnt(0)')


def load_epoch():
    I(f's_load_dword {s(sEP)}, {P(pWS)}, {W_EP}')


def epoch_ready():
    I('s_waitcnt lgkmcnt(0)')
    I(f's_add_u32 {s(sEP)}, {s(sEP)}, 1')


def row_allreduce(op, regs, steps=(8, 4, 2, 1)):
    for st in steps:
        for r in regs:
            I(f'{op} {v(r)}, {v(r)}, {v(r)} row_ror:{st}')


def cross_rows_allreduce(op, r, t):
    for sw in ('v_permlane16_swap_b32', 'v_permlane32_swap_b32'):
        I(f'v_mov_b32 {v(t)}, {v(r)}')
        I(f'{sw} {v(t)}, {v(r)}')
        I(f'{op} {v(r)}, {v(r)}, {v(t)}')


def scalar_poll(offsets):
    lab, done = a.newlabel('L_sp'), a.newlabel('L_spd')
    R = [61, 62, 63, 96, 97, 98, 99, 100]
    I(f's_mov_b32 {s(sCNT)}, {args.spin}')
    a.label(lab)
    for k, o in enumerate(offsets):
        I(f's_load_dword {s(R[k])}, {P(sB)}, {o} glc')
    I(f's_sub_u32 {s(sCNT)}, {s(sCNT)}, 1')
    I(f's_cbranch_scc1 {done}')
    I('s_waitcnt lgkmcnt(0)')
    I(f's_xor_b32 {s(sT0)}, {s(R[0])}, {s(sEP)}')
    for k in range(1, len(offsets)):
        I(f's_xor_b32 {s(sT1)}, {s(R[k])}, {s(sEP)}')
        I(f's_or_b32 {s(sT0)}, {s(sT0)}, {s(sT1)}')
    I(f's_cbranch_scc1 {lab}')
    a.label(done)
    I('s_waitcnt lgkmcnt(0)')


def flag_add(idx, base=VFL):
    I('s_mov_b64 exec, 1')
    I(f'ds_add_u32 {v(base)}, {v(VONE)} offset:{4 * idx}')
    I('s_mov_b64 exec, -1')


def flag_wait(idx, n, base=VFL):
    lab, done = a.newlabel('L_fw'), a.newlabel('L_fwd')
    if args.bo and idx in (F_F0, C_ISS, F_H2, C_ST, C_ACK, K0):
        l2 = a.newlabel('L_fw')
        a.B(f's_branch {l2}')
        a.label(lab)
        I(f's_sleep {args.bo}')
        a.label(l2)
    else:
        a.label(lab)
    I(f'ds_read_b32 {v(VFT)}, {v(base)} offset:{4 * idx}')
    I(f's_sub_u32 {s(sFC)}, {s(sFC)}, 1')
    I('s_waitcnt lgkmcnt(0)')
    I(f'v_cmp_gt_u32 vcc, {n}, {v(VFT)}')
    a.B(f's_cbranch_scc1 {done}')
    a.B(f's_cbranch_vccnz {lab}')
    a.label(done)
    I(f's_max_i32 {s(sFC)}, {s(sFC)}, 0')


def build_masks(M, t0, t1):
    I(f'v_and_b32 {v(t0)}, 1, v1')
    I(f'v_lshlrev_b32 {v(t0)}, 4, {v(t0)}')
    I(f'v_mov_b32 {v(t1)}, 0xffff')
    I(f'v_lshlrev_b32 {v(t1)}, {v(t0)}, {v(t1)}')
    I(f'v_bfe_u32 {v(t0)}, v1, 1, 2')
    for r in range(4):
        I(f'v_cmp_eq_u32 vcc, {r}, {v(t0)}')
        I(f'v_cndmask_b32 {v(M + r)}, 0, {v(t1)}, vcc')


BF, ACC, PF = 128, 96, 80
AT, SEL, XP, ACC0, REC = 72, 32, 80, 88, 92


def build_sel():
    I('''
    v_and_b32 v6, 1, v1
    v_cmp_eq_u32 vcc, 1, v6
    v_mov_b32 v7, 0x0c0c0100
    v_mov_b32 v8, 0x01000c0c
    v_cndmask_b32 v7, v7, v8, vcc
    v_mov_b32 v8, 0x0c0c0302
    v_mov_b32 v9, 0x03020c0c
    v_cndmask_b32 v8, v8, v9, vcc
    v_mov_b32 v9, 0x0c0c0c0c
    v_bfe_u32 v6, v1, 1, 2
    ''')
    for r in range(4):
        I(f'v_cmp_eq_u32 vcc, {r}, v6')
        I(f'v_cndmask_b32 {v(SEL + r)}, v9, v7, vcc')
        I(f'v_cndmask_b32 {v(SEL + 4 + r)}, v9, v8, vcc')


def diag_stage(n, W):
    def perms(k):
        for r in range(4):
            I(f'v_perm_b32 {v(AT + 4 * (k & 1) + r)}, {v(XP + (k >> 1))}, {v(XP + (k >> 1))}, {v(SEL + 4 * (k & 1) + r)}')
    perms(0)
    for k in range(n):
        if k < n - 1:
            perms(k + 1)
        else:
            I(f'v_mov_b32 {v(REC + 2)}, {s(sEP)}')
            I(f'v_mov_b32 {v(REC + 3)}, {s(sEP)}')
        I(f's_waitcnt vmcnt({n - 1 - k})')
        I(f'{MFMA} {v(ACC0, 4)}, {v(AT + 4 * (k & 1), 4)}, {v(W + 4 * k, 4)}, {"0" if k == 0 else v(ACC0, 4)}')


TA = 16


def tr_addr():
    I(f'''
    v_lshrrev_b32 v4, 2, v0
    v_lshlrev_b32 v4, 8, v4
    v_and_b32 v5, 31, v0
    v_lshl_add_u32 v4, v5, 3, v4
    s_lshl_b32 {s(sT0)}, {s(sW)}, 15
    v_add_u32 v4, {s(sT0)}, v4
    ''')


CK = 44
EMB = 0x00010001
HASH = 0x9e3779b1


def pv_setup():
    for i in range(4):
        I(f's_sub_u32 {s(sT0)}, {s(sW)}, {i}')
        I(f's_and_b32 {s(sT0)}, {s(sT0)}, 3')
        I(f's_lshl_b32 {s(sT0)}, {s(sT0)}, 10')
        I(f's_add_u32 {s(sT0)}, {s(sT0)}, {L_P}')
        I(f'v_add_u32 {v(48 + i)}, {s(sT0)}, v3')
    I(f"""
    s_lshl_b32 {s(sT0)}, {s(sGA)}, 6
    s_add_u32 {s(sT0)}, {s(sT0)}, {s(sW)}
    s_lshl_b32 {s(sT0)}, {s(sT0)}, 7
    s_add_u32 {s(sT0)}, {s(sT0)}, {s(sS)}
    s_lshl_b32 {s(sT1)}, {s(sT0)}, 8
    s_add_u32 {s(sT1)}, {s(sT1)}, {W_H3}
    v_lshlrev_b32 v52, 19, v2
    v_lshl_add_u32 v52, v1, 4, v52
    v_add_u32 v52, {s(sT1)}, v52
    s_mov_b32 {s(sT2)}, 0x20000
    v_add_u32 v53, {s(sT2)}, v52
    v_add_u32 v54, {s(sT2)}, v53
    v_add_u32 v55, {s(sT2)}, v54
    s_mul_i32 {s(sK0)}, {s(sEP)}, {HASH}
    s_mov_b32 {s(sK1)}, {EMB}
    s_mov_b32 {s(sK2)}, {~EMB & 0xffffffff}
    """)


def tr_slot(i):
    I(f's_sub_u32 {s(sT0)}, {s(sW)}, {i}')
    I(f's_and_b32 {s(sT0)}, {s(sT0)}, 3')
    I(f's_lshl_b32 {s(sT1)}, {s(sT0)}, 13')
    I(f'v_lshl_add_u32 v5, {s(sT0)}, 2, {v(VFL)}')
    I(f'v_add_u32 {v(TA)}, {s(sT1)}, v4')
    for T in range(1, 8):
        I(f'v_xor_b32 {v(TA + T)}, {32 * T}, {v(TA)}')
    flag_wait(K0, i + 1, 5)
    for T in range(8):
        for tau in range(2):
            I(f'ds_read_b64_tr_b16 {v(BF + (i * 8 + T) * 4 + 2 * tau, 2)}, {v(TA + T)} offset:{tau * 4096}')


def round_pairs(base, n, tmp):
    for i in range(n // 2):
        I(f'v_cvt_pk_bf16_f32 {v(tmp + i)}, {v(base + 2 * i)}, {v(base + 2 * i + 1)}')
    for i in range(n // 2):
        I(f'v_lshlrev_b32 {v(base + 2 * i)}, 16, {v(tmp + i)}')
        I(f'v_and_b32 {v(base + 2 * i + 1)}, {s(sT3)}, {v(tmp + i)}')


hdr = open('cdna_kernels/%s.s.ref' % NAME).read().split('; Override launch geometry')[0]
a.raw(hdr.rstrip())
a.raw(f'; @launch grid=(256,1,1) block=(512,1,1) lds={L_END}')
a.raw('.amdgcn_target "amdgcn-amd-amdhsa--gfx950"')
a.raw('.text')
a.raw(f'.globl {NAME}_kernel')
a.raw('.p2align 8')
a.raw(f'.type {NAME}_kernel,@function')
a.label(f'{NAME}_kernel')
a.label('L_start')
I('s_load_dwordx16 s[4:19], s[0:1], 0')
I('s_load_dwordx8 s[20:27], s[0:1], 64')
I('s_load_dwordx4 s[28:31], s[0:1], 96')
I(f's_getpc_b64 {P(sB)}')
a.label('L_pc')
I('s_cmp_ge_u32 s2, 0x100')
I('s_cbranch_scc1 L_end')
TS(0)
I(f'''
v_lshrrev_b32 v3, 6, v0
v_lshrrev_b32 v4, 5, v0
s_lshr_b32 {s(sY)}, s2, 3
s_and_b32 {s(sT1)}, {s(sY)}, 7
s_lshl_b32 {s(sT1)}, {s(sT1)}, 11
v_lshl_add_u32 v4, v4, 7, {s(sT1)}
v_min_u32 v4, L_end-L_pc, v4
s_mov_b32 exec_lo, 1
s_mov_b32 exec_hi, 1
global_load_dword v15, v4, {P(sB)}
s_mov_b64 exec, -1
v_readfirstlane_b32 {s(sWV)}, v3
v_and_b32 v0, 63, v0
v_and_b32 v1, 15, v0
v_lshrrev_b32 v2, 4, v0
s_and_b32 {s(sX)}, s2, 7
s_lshr_b32 {s(sGA)}, {s(sY)}, 4
s_xor_b32 {s(sGA)}, {s(sGA)}, 1
s_and_b32 {s(sT0)}, {s(sY)}, 15
s_lshl4_add_u32 {s(sS)}, {s(sX)}, {s(sT0)}
s_and_b32 {s(sW)}, {s(sWV)}, 3
v_lshlrev_b32 v3, 4, v0
v_mov_b32 {v(VFL)}, {L_FL}
v_mov_b32 {v(VONE)}, 1
s_mov_b32 {s(sFC)}, 0x200000
s_cmp_ge_u32 {s(sWV)}, 4
''')
a.B('s_cbranch_scc1 L_S')
I(f'''
s_lshl_b32 {s(sT0)}, {s(sJ)}, 19
s_lshl_b32 {s(sT1)}, {s(sH)}, 8
s_add_u32 {s(sT0)}, {s(sT0)}, {s(sT1)}
s_cmp_eq_u32 {s(sWV)}, 1
''')
a.B('s_cbranch_scc1 L_F1')
I(f's_cmp_eq_u32 {s(sWV)}, 2')
a.B('s_cbranch_scc1 L_F2')
I(f's_cmp_eq_u32 {s(sWV)}, 3')
a.B('s_cbranch_scc1 L_F3')

Wq, XR = 128, 120
I(f'''
v_lshlrev_b32 v5, 17, v2
v_lshl_add_u32 v5, v1, 4, v5
v_add_u32 v5, {s(sT0)}, v5
s_movk_i32 {s(sT2)}, 0x2000
s_waitcnt lgkmcnt(0)
''')
I(f'global_load_dwordx4 {v(XR, 4)}, v3, {P(pX)}')
for k in range(16):
    I(f'global_load_dwordx4 {v(Wq + 4 * k, 4)}, v5, {P(pWQ)}{NT}')
    if k < 15:
        I(f'v_add_u32 v5, {s(sT2)}, v5')
if args.bpos == 0:
    I('s_barrier')
load_epoch()
TS(1)
build_sel()
I(f'''
v_add_u32 v10, {L_XN}, v3
s_lshl_b32 {s(sT0)}, {s(sJ)}, 7
s_add_u32 {s(sT0)}, {s(sT0)}, {L_XN}
v_lshl_add_u32 v11, v2, 5, {s(sT0)}
s_lshl_b32 {s(sT0)}, s2, 9
s_add_u32 {s(sT0)}, {s(sT0)}, {W_H1}
v_add_u32 v12, {s(sT0)}, v3
s_mov_b32 {s(sT3)}, 0xffff0000
s_mov_b32 {s(sK0)}, 0x07060501
s_mov_b32 {s(sK1)}, 0x07060502
s_mov_b32 {s(sK2)}, 0x07060503
''')
F, Dd, t0, t1, t2, t3, PK = 96, 104, 112, 113, 114, 115, 116
I('s_waitcnt vmcnt(16)')
if args.bpos == 1:
    I('s_barrier')
TS(2)
for i in range(4):
    I(f'v_lshlrev_b32 {v(F + 2 * i)}, 16, {v(XR + i)}')
    I(f'v_and_b32 {v(F + 2 * i + 1)}, {s(sT3)}, {v(XR + i)}')
I(f'''
v_add_f32 {v(t0)}, {v(F)}, {v(F + 1)}
v_add_f32 {v(t1)}, {v(F + 2)}, {v(F + 3)}
v_add_f32 {v(t2)}, {v(F + 4)}, {v(F + 5)}
v_add_f32 {v(t3)}, {v(F + 6)}, {v(F + 7)}
v_add_f32 {v(t0)}, {v(t0)}, {v(t1)}
v_add_f32 {v(t2)}, {v(t2)}, {v(t3)}
v_add_f32 {v(t0)}, {v(t0)}, {v(t2)}
''')
row_allreduce('v_add_f32', [t0])
I(f'v_add_f32 {v(t0)}, {v(t0)}, {v(t0)} row_bcast:15 row_mask:0xa')
I(f'v_add_f32 {v(t0)}, {v(t0)}, {v(t0)} row_bcast:31 row_mask:0xc')
I(f'v_mov_b32 {v(t1)}, 0x3b000000')
I(f'v_readlane_b32 {s(sT0)}, {v(t0)}, 63')
I(f'v_mul_f32 {v(t1)}, {s(sT0)}, {v(t1)}')
for i in range(8):
    I(f'v_sub_f32 {v(Dd + i)}, {v(F + i)}, {v(t1)}')
I(f'v_mul_f32 {v(t0)}, {v(Dd)}, {v(Dd)}')
I(f'v_mul_f32 {v(t2)}, {v(Dd + 1)}, {v(Dd + 1)}')
for i in range(2, 8, 2):
    I(f'v_fmac_f32 {v(t0)}, {v(Dd + i)}, {v(Dd + i)}')
    I(f'v_fmac_f32 {v(t2)}, {v(Dd + i + 1)}, {v(Dd + i + 1)}')
I(f'v_add_f32 {v(t0)}, {v(t0)}, {v(t2)}')
I(f'v_cvt_pk_bf16_f32 {v(t1)}, {v(t1)}, {v(t1)}')
I(f'v_and_b32 {v(t1)}, {s(sT3)}, {v(t1)}')
row_allreduce('v_add_f32', [t0], steps=(8,))
for i in range(0, 4):
    I(f'v_sub_f32 {v(Dd + i)}, {v(F + i)}, {v(t1)}')
row_allreduce('v_add_f32', [t0], steps=(4,))
for i in range(4, 8):
    I(f'v_sub_f32 {v(Dd + i)}, {v(F + i)}, {v(t1)}')
row_allreduce('v_add_f32', [t0], steps=(2,))
for i in range(0, 2):
    I(f'v_cvt_pk_bf16_f32 {v(PK + i)}, {v(Dd + 2 * i)}, {v(Dd + 2 * i + 1)}')
row_allreduce('v_add_f32', [t0], steps=(1,))
for i in range(2, 4):
    I(f'v_cvt_pk_bf16_f32 {v(PK + i)}, {v(Dd + 2 * i)}, {v(Dd + 2 * i + 1)}')
I(f'v_add_f32 {v(t0)}, {v(t0)}, {v(t0)} row_bcast:15 row_mask:0xa')
for i in range(0, 2):
    I(f'v_lshlrev_b32 {v(Dd + 2 * i)}, 16, {v(PK + i)}')
    I(f'v_and_b32 {v(Dd + 2 * i + 1)}, {s(sT3)}, {v(PK + i)}')
I(f'v_add_f32 {v(t0)}, {v(t0)}, {v(t0)} row_bcast:31 row_mask:0xc')
for i in range(2, 4):
    I(f'v_lshlrev_b32 {v(Dd + 2 * i)}, 16, {v(PK + i)}')
    I(f'v_and_b32 {v(Dd + 2 * i + 1)}, {s(sT3)}, {v(PK + i)}')
I(f'v_mov_b32 {v(t1)}, 0x3b000000')
I(f'v_readlane_b32 {s(sT0)}, {v(t0)}, 63')
I(f'''
v_mul_f32 {v(t1)}, {s(sT0)}, {v(t1)}
v_cvt_pk_bf16_f32 {v(t1)}, {v(t1)}, {v(t1)}
v_and_b32 {v(t1)}, {s(sT3)}, {v(t1)}
v_add_f32 {v(t1)}, 0x3727c5ac, {v(t1)}
v_cvt_pk_bf16_f32 {v(t1)}, {v(t1)}, {v(t1)}
v_and_b32 {v(t1)}, {s(sT3)}, {v(t1)}
v_sqrt_f32 {v(t1)}, {v(t1)}
v_cvt_pk_bf16_f32 {v(t1)}, {v(t1)}, {v(t1)}
v_and_b32 {v(t1)}, {s(sT3)}, {v(t1)}
v_rcp_f32 {v(t1)}, {v(t1)}
''')
for i in range(8):
    I(f'v_mul_f32 {v(Dd + i)}, {v(Dd + i)}, {v(t1)}')
for i in range(4):
    I(f'v_cvt_pk_bf16_f32 {v(PK + i)}, {v(Dd + 2 * i)}, {v(Dd + 2 * i + 1)}')
I(f'ds_write_b128 v10, {v(PK, 4)}')
I(f'ds_read_b128 {v(XP, 4)}, v11')
I(f'ds_read_b128 {v(XP + 4, 4)}, v11 offset:16')
epoch_ready()
TS(3)
diag_stage(16, Wq)
for i in range(3):
    I(f'v_perm_b32 {v(REC + i)}, {v(ACC0 + i)}, {v(ACC0 + 3)}, {s(sK0 + i)}')
I('s_mov_b32 exec_hi, 0')
I(f'global_store_dwordx4 v12, {v(REC, 4)}, {P(pWS)} sc1')
I(f'ds_write_b128 v10, {v(ACC0, 4)} offset:{L_CX - L_XN}')
TS(4)
flag_add(F_F0)
I('s_branch L_QG')

a.label('L_F1')
WK, G1, QF, DK = 128, 192, 96, 112
I(f'''
v_lshlrev_b32 v6, 1, v2
v_xor_b32 v6, v6, v1
v_lshlrev_b32 v5, 13, v2
v_lshl_add_u32 v5, v6, 4, v5
v_add_u32 v5, {s(sT0)}, v5
v_xor_b32 v6, 0x80, v5
v_add_u32 v6, 0x20000, v6
s_mov_b32 {s(sT2)}, 0x40000
s_mov_b32 {s(sT3)}, {(-28 * 8192) & 0xffffffff}
s_mov_b32 m0, {L_QA}
s_waitcnt lgkmcnt(0)
''')
load_epoch()
I('s_barrier')
for k in range(16):
    I(f'global_load_lds_dwordx4 {"v6" if k & 1 else "v5"}, {P(pWUK)}{NT}')
    if k < 15:
        I('s_add_u32 m0, m0, 0x400')
    if k < 14:
        I(f'v_add_u32 {"v6" if k & 1 else "v5"}, {s(sT3 if k & 2 else sT2)}, {"v6" if k & 1 else "v5"}')
TS(1)
I(f'''
v_and_b32 v5, 7, v1
v_lshlrev_b32 v5, 1, v5
v_xor_b32 v5, v5, v2
v_lshlrev_b32 v5, 4, v5
v_lshl_add_u32 v5, v1, 8, v5
v_add_u32 v24, {L_QA}, v5
v_xor_b32 v25, 64, v24
v_xor_b32 v26, 0x80, v24
v_xor_b32 v27, 0xc0, v24
s_lshl_b32 {s(sT0)}, {s(sH)}, 12
s_add_u32 {s(sT0)}, {s(sT0)}, {W_H1}
v_add_u32 v8, {s(sT0)}, v3
s_lshl_b32 {s(sT1)}, {s(sJ)}, 9
v_add_u32 v6, {s(sT1)}, v3
s_movk_i32 {s(sT1)}, 0xfff
v_and_b32 v16, {s(sT1)}, v6
v_add_u32 v6, 0x400, v6
v_and_b32 v17, {s(sT1)}, v6
v_add_u32 v6, 0x400, v6
v_and_b32 v18, {s(sT1)}, v6
v_add_u32 v6, 0x400, v6
v_and_b32 v19, {s(sT1)}, v6
v_add_u32 v32, {s(sT0)}, v16
v_add_u32 v33, {s(sT0)}, v17
v_add_u32 v34, {s(sT0)}, v18
v_add_u32 v35, {s(sT0)}, v19
v_add_u32 v9, {L_CX}, v3
v_and_b32 v10, 1, v2
v_lshlrev_b32 v10, 1, v10
v_lshrrev_b32 v11, 1, v2
v_add_u32 v10, v10, v11
v_lshl_add_u32 v10, v1, 2, v10
v_lshlrev_b32 v10, 2, v10
v_add_u32 v10, {L_CL}, v10
v_lshlrev_b32 v11, 4, v2
v_add_u32 v11, {L_CL}, v11
s_lshl_b32 {s(sT0)}, s2, 8
s_add_u32 {s(sT0)}, {s(sT0)}, {W_H2}
v_lshl_add_u32 v12, v2, 2, v1
v_lshl_add_u32 v12, v12, 4, {s(sT0)}
v_cmp_eq_u32 {P(sM1)}, 1, v1
v_cmp_eq_u32 {P(sM2)}, 2, v1
v_cmp_eq_u32 {P(sM3)}, 3, v1
s_mov_b32 {s(sK0)}, 0x0c04000c
s_mov_b32 {s(sK1)}, 0x0402010c
''')
epoch_ready()
I(f'v_mov_b32 v22, {s(sEP)}')
I(f'v_mov_b32 v23, {s(sEP)}')
I('s_setprio 1')
NP = args.np
for p_ in range(NP):
    I(f'v_mov_b32 {v(G1 + 16 * p_ + 3)}, v22')
    for e in range(3):
        I(f'v_mov_b32 {v(G1 + 16 * p_ + e)}, 0')


def h1_loads(p_):
    for k in range(4):
        if k == 0:
            I('s_mov_b32 exec_lo, 0')
        I(f'global_load_dwordx4 {v(G1 + 16 * p_ + 4 * k, 4)}, {v(32 + k)}, {P(pWS)} sc1')
        if k == 0:
            I('s_mov_b32 exec_lo, -1')


if args.hint1:
    assert NP == 1
    I(f's_lshl_b32 {s(sT0)}, {s(sH)}, 12')
    I(f's_add_u32 {s(sT0)}, {s(sT0)}, {W_H1 + 508}')
    I(f's_add_u32 {s(sB)}, {s(pWS)}, {s(sT0)}')
    I(f's_addc_u32 {s(sB + 1)}, {s(pWS + 1)}, 0')
    HO = [4, 5, 6, 7, 8, 9, 12]
    for k in range(7):
        I(f's_add_u32 {s(HO[k])}, {s(sJ)}, {k + 1}')
        I(f's_and_b32 {s(HO[k])}, {s(HO[k])}, 7')
        I(f's_lshl_b32 {s(HO[k])}, {s(HO[k])}, 9')
    scalar_poll([s(r) for r in HO])
else:
    I('s_waitcnt vmcnt(4)')
TS(2)
h1_loads(0)
I('s_waitcnt vmcnt(4)')
for tau in range(4):
    for t in range(4):
        I(f'ds_read_b128 {v(WK + 16 * tau + 4 * t, 4)}, {v(24 + t)} offset:{4096 * tau}')
for p_ in range(1, NP):
    if p_ > 1 and args.sl:
        I(f's_sleep {args.sl}')
    h1_loads(p_)
I(f's_mov_b32 {s(sCNT)}, {args.spin}')
a.label('L_F1_poll')
for p_ in range(NP):
    G = G1 + 16 * p_
    I(f's_sub_u32 {s(sCNT)}, {s(sCNT)}, 1')
    I(f's_waitcnt vmcnt({4 * (NP - 1)})')
    I(f'v_xor_b32 v16, {v(G + 3)}, v22')
    for k in range(1, 4):
        I(f'v_bitop3_b32 v16, {v(G + 4 * k + 3)}, v22, v16 bitop3:0xbe')
    I('v_cmp_ne_u32 vcc, 0, v16')
    a.B(f's_cbranch_scc1 L_F1_go{p_}')
    a.B(f's_cbranch_vccz L_F1_go{p_}')
    h1_loads(p_)
I('s_branch L_F1_poll')
Q4 = 40
for p_ in reversed(range(NP)):
    G = G1 + 16 * p_
    a.label(f'L_F1_go{p_}')
    for k in range(4):
        I(f'v_perm_b32 {v(G + 4 * k + 3)}, {v(G + 4 * k + 1)}, {v(G + 4 * k)}, {s(sK0)}')
    for k in range(4):
        I(f'v_perm_b32 {v(G + 4 * k + 3)}, {v(G + 4 * k + 2)}, {v(G + 4 * k + 3)}, {s(sK1)}')
    for k in range(2):
        for e in range(4):
            I(f'v_add_f32 {v(G + 4 * k + e)}, {v(G + 4 * k + e)}, {v(G + 4 * (k + 2) + e)}')
    for e in range(4):
        I(f'v_add_f32 {v(Q4 + e)}, {v(G + e)}, {v(G + 4 + e)}')
    if p_:
        I('s_branch L_F1_go')
a.label('L_F1_go')
flag_wait(F_F0, 1)
I(f'ds_read_b128 {v(Q4 + 4, 4)}, v9')
TS(3)
TSN()
I('s_waitcnt lgkmcnt(0)')
I('s_mov_b32 exec_hi, 0')
for e in range(4):
    I(f'v_add_f32 {v(Q4 + e)}, {v(Q4 + e)}, {v(Q4 + 4 + e)}')
I('s_mov_b64 exec, -1')
G1 = Q4
I(f'v_permlane32_swap_b32 {v(G1)}, {v(G1 + 2)}')
I(f'v_permlane32_swap_b32 {v(G1 + 1)}, {v(G1 + 3)}')
I(f'v_add_f32 {v(G1)}, {v(G1)}, {v(G1 + 2)}')
I(f'v_add_f32 {v(G1 + 1)}, {v(G1 + 1)}, {v(G1 + 3)}')
I(f'v_cvt_pk_bf16_f32 v16, {v(G1)}, {v(G1 + 1)}')
I('ds_write_b32 v10, v16')
for t in range(4):
    I(f'ds_read_b128 {v(QF + 4 * t, 4)}, v11 offset:{64 * t}')
for t in range(4):
    I(f's_waitcnt lgkmcnt({3 - t})')
    for tau in range(4):
        I(f'{MFMA} {v(DK + 4 * tau, 4)}, {v(WK + 16 * tau + 4 * t, 4)}, {v(QF + 4 * t, 4)}, {"0" if t == 0 else v(DK + 4 * tau, 4)}')
for tau in range(4):
    I(f'v_cvt_pk_bf16_f32 {v(24 + 2 * tau)}, {v(DK + 4 * tau)}, {v(DK + 4 * tau + 1)}')
    I(f'v_cvt_pk_bf16_f32 {v(25 + 2 * tau)}, {v(DK + 4 * tau + 2)}, {v(DK + 4 * tau + 3)}')
    if tau == 1:
        I(f'v_cndmask_b32 v20, v24, v26, {P(sM1)}')
        I(f'v_cndmask_b32 v21, v25, v27, {P(sM1)}')
    if tau == 2:
        I(f'v_cndmask_b32 v20, v20, v28, {P(sM2)}')
        I(f'v_cndmask_b32 v21, v21, v29, {P(sM2)}')
I(f'v_cndmask_b32 v20, v20, v30, {P(sM3)}')
I(f'v_cndmask_b32 v21, v21, v31, {P(sM3)}')
I('s_mov_b32 exec_lo, 0x000f000f')
I('s_mov_b32 exec_hi, 0x000f000f')
I(f'global_store_dwordx4 v12, v[20:23], {P(pWS)} sc1')
TS(4)
I('s_setprio 0')
flag_add(F_H2)
I('s_waitcnt vmcnt(0)')
flag_add(F_H2)
a.label('L_PV1')
tr_addr()
pv_setup()
for i in range(args.pre):
    tr_slot(i)
I('s_branch L_PVs')

a.label('L_F3')
W1R, W2R, HFG, B1R, FA, MK3 = 128, 160, 24, 28, 96, 40
I('v_lshlrev_b32 v11, 3, v0')
I(f'v_add_u32 v11, {L_FF}, v11')
I('s_waitcnt lgkmcnt(0)')
load_epoch()
I('s_barrier')
epoch_ready()
I('s_cmp_ge_u32 s2, 224')
I('s_cbranch_scc1 L_PV1')
build_sel()
I(f'''
s_and_b32 {s(sT3)}, s2, 15
s_mul_i32 {s(sT0)}, {s(sT3)}, {32 * 3584}
s_lshr_b32 {s(sT1)}, s2, 4
s_lshl_b32 {s(sT1)}, {s(sT1)}, 8
s_add_u32 {s(sT0)}, {s(sT0)}, {s(sT1)}
v_mul_u32_u24 v8, {8 * 3584}, v2
v_lshl_add_u32 v8, v1, 4, v8
v_add_u32 v8, {s(sT0)}, v8
s_movk_i32 {s(sT2)}, {2 * 3584}
s_lshl_b32 {s(sT3)}, {s(sT3)}, 6
s_add_u32 {s(sT0)}, {s(sT3)}, {L_XN}
v_lshl_add_u32 v10, v2, 4, {s(sT0)}
s_lshl_b32 {s(sT0)}, {s(sT1)}, 6
s_add_u32 {s(sT0)}, {s(sT0)}, {s(sT3)}
s_lshl_b32 {s(sT0)}, {s(sT0)}, 1
s_add_u32 {s(sT0)}, {s(sT0)}, {W_HF}
v_lshrrev_b32 v29, 2, v0
v_lshlrev_b32 v12, 11, v29
v_and_b32 v9, 3, v0
v_lshl_add_u32 v12, v9, 4, v12
v_add_u32 v12, {s(sT0)}, v12
v_cmp_gt_u32 {P(sM1)}, v0, 31
s_and_b32 {s(sT0)}, s2, 3
s_lshl_b32 {s(sT0)}, {s(sT0)}, 6
s_add_u32 {s(sT0)}, {s(sT0)}, {s(sT1)}
s_bfe_u32 {s(sT1)}, s2, 0x10002
s_lshl3_add_u32 {s(sT0)}, {s(sT1)}, {s(sT0)}
s_bfe_u32 {s(sT1)}, s2, 0x10003
s_lshl2_add_u32 {s(sT0)}, {s(sT1)}, {s(sT0)}
v_lshl_add_u32 v6, v9, 4, {s(sT0)}
s_lshl_b32 {s(sT0)}, s2, 11
s_add_u32 {s(sT0)}, {s(sT0)}, {W_HF}
v_lshlrev_b32 v9, 4, v9
v_lshl_add_u32 v9, v29, 7, v9
v_add_u32 v9, {s(sT0)}, v9
s_mov_b32 {s(sT3)}, 0xffff0000
''')
flag_wait(F_H2 if args.w1 else F_F0, 1)
I(f'ds_read_b128 {v(XP, 4)}, v10')
I(f'global_load_dword {v(B1R)}, v6, {P(pB1)}')
for k in range(8):
    I(f'global_load_dwordx4 {v(W1R + 4 * k, 4)}, v8, {P(pW1)} offset:{3584 * (k & 1)}{NT}')
    if k & 1 and k < 7:
        I(f'v_add_u32 v8, {s(sT2)}, v8')
I('s_waitcnt lgkmcnt(0)')
diag_stage(8, W1R)
I(f'v_cndmask_b32 {v(REC)}, {v(ACC0)}, {v(ACC0 + 2)}, {P(sM1)}')
I(f'v_cndmask_b32 {v(REC + 1)}, {v(ACC0 + 1)}, {v(ACC0 + 3)}, {P(sM1)}')
I(f'global_store_dwordx4 v12, {v(REC, 4)}, {P(pWS)} sc1')
TS(2)
I(f's_mov_b32 {s(sCNT)}, {args.spin}')
flag_wait(F_H2, 2)
a.label('L_TF')
I(f'global_load_dwordx4 {v(HFG, 4)}, v9, {P(pWS)} sc1')
I(f's_sub_u32 {s(sCNT)}, {s(sCNT)}, 1')
I('s_waitcnt vmcnt(0)')
I(f'v_cmp_ne_u32 vcc, {v(HFG + 2)}, {v(REC + 2)}')
a.B('s_cbranch_scc1 L_TF_go')
a.B('s_cbranch_vccnz L_TF')
a.label('L_TF_go')
TSN()
row_allreduce('v_add_f32', [HFG, HFG + 1], steps=(4, 8))
I(f'''
v_permlane32_swap_b32 {v(HFG)}, {v(HFG + 1)}
v_add_f32 {v(HFG)}, {v(HFG)}, {v(HFG + 1)}
v_mov_b32 {v(HFG + 1)}, {v(HFG)}
v_permlane16_swap_b32 {v(HFG)}, {v(HFG + 1)}
v_lshlrev_b32 v16, 16, {v(B1R)}
v_add_f32 {v(HFG)}, {v(HFG)}, {v(HFG + 1)}
v_and_b32 v17, {s(sT3)}, {v(B1R)}
v_cvt_pk_bf16_f32 {v(HFG)}, {v(HFG)}, {v(HFG)}
v_cndmask_b32 v16, v16, v17, {P(sM1)}
v_and_b32 {v(HFG)}, {s(sT3)}, {v(HFG)}
v_add_f32 {v(HFG)}, {v(HFG)}, v16
v_cvt_pk_bf16_f32 {v(HFG)}, {v(HFG)}, {v(HFG)}
v_and_b32 {v(HFG)}, {s(sT3)}, {v(HFG)}
v_max_f32 {v(HFG)}, 0, {v(HFG)}
v_mul_f32 {v(HFG)}, {v(HFG)}, {v(HFG)}
v_cvt_pk_bf16_f32 {v(HFG)}, {v(HFG)}, {v(HFG)}
v_mov_b32 {v(HFG + 1)}, {v(HFG)}
v_permlane32_swap_b32 {v(HFG)}, {v(HFG + 1)}
''')
for g_ in range(4):
    for i in range(2):
        I(f'v_mov_b32 {v(HFG + 2 + i)}, {v(HFG + i)} row_newbcast:{g_} row_mask:{1 << g_}')
I(f'ds_write_b64 v11, {v(HFG + 2, 2)}')
TS(4)
I('s_branch L_PV1')

a.label('L_F2')
I(f'''
v_mov_b32 v16, 0
v_mov_b32 v17, 0
v_mov_b32 v18, 0
v_mov_b32 v19, 0
ds_write_b128 {v(VFL)}, v[16:19]
ds_write_b128 {v(VFL)}, v[16:19] offset:16
ds_write_b128 {v(VFL)}, v[16:19] offset:32
ds_write_b128 {v(VFL)}, v[16:19] offset:48
''')
I('v_and_b32 v5, 3, v0')
I('v_lshlrev_b32 v5, 21, v5')
I('s_waitcnt lgkmcnt(0)')
load_epoch()
if args.touch != 2:
    I('s_barrier')
I('s_mov_b64 exec, 7')
I(f'global_load_dword v22, v5, {P(pWS)} offset:256')
I('s_mov_b64 exec, 3')
if args.touch:
    I(f'global_load_dword v24, v5, {P(pWUV)}')
    I(f'global_load_dword v25, v5, {P(pWO)}')
I('s_mov_b64 exec, 1')
I(f'global_load_dword v23, v16, {P(pOUT)}')
if args.touch:
    for k, p in enumerate((pW1, pW2, pB1, pB2)):
        I(f'global_load_dword {v(26 + k)}, v16, {P(p)}')
I('s_mov_b64 exec, -1')
if args.touch == 2:
    I('s_barrier')
epoch_ready()


a.label('L_QG')
G2, LA = 64, 56
I(f'''
s_lshr_b32 {s(sT1)}, {s(sWV)}, 1
s_lshl1_add_u32 {s(sT0)}, {s(sGA)}, {s(sT1)}
s_lshl_b32 {s(sT0)}, {s(sT0)}, 14
s_add_u32 {s(sT0)}, {s(sT0)}, {W_H2}
v_add_u32 v8, {s(sT0)}, v3
v_add_u32 v9, 0x1000, v8
v_add_u32 v10, 0x2000, v8
v_add_u32 v11, 0x3000, v8
v_lshrrev_b32 v6, 1, v0
v_lshlrev_b32 v6, 8, v6
v_lshl_add_u32 v6, v1, 3, v6
s_lshl_b32 {s(sT1)}, {s(sT1)}, 7
s_add_u32 {s(sT1)}, {s(sT1)}, {L_QA}
v_add_u32 {v(LA)}, {s(sT1)}, v6
''')
for hd in range(1, 8):
    I(f'v_xor_b32 {v(LA + hd)}, {16 * hd}, {v(LA)}')
tr_addr()
pv_setup()
I(f'v_mov_b32 v12, {s(sEP)}')
I('s_setprio 1')
if args.qa:
    flag_wait(C_ISS, 4)
flag_wait(F_H2, 1 + args.h2)
if args.hint2:
    I(f's_cmp_eq_u32 {s(sWV)}, 0')
    I('s_cbranch_scc1 L_QG_w0')
    I(f's_xor_b32 {s(sT0)}, {s(sY)}, 16')
    I(f's_lshl_b32 {s(sT0)}, {s(sT0)}, 11')
    I(f's_add_u32 {s(sT0)}, {s(sT0)}, {W_H2}')
    I(f's_add_u32 {s(sB)}, {s(pWS)}, {s(sT0)}')
    I(f's_addc_u32 {s(sB + 1)}, {s(pWS + 1)}, 0')
    scalar_poll([k * 256 + 252 for k in range(8)])
    flag_add(F_HINT)
    I('s_branch L_QG_hd')
    a.label('L_QG_w0')
    flag_wait(F_HINT, 1)
    a.label('L_QG_hd')
TS(10)


for k in range(16):
    I(f'global_load_dwordx4 {v(G2 + 4 * k, 4)}, {v(8 + (k >> 2))}, {P(pWS)} offset:{(k & 3) * 1024} sc1')
for i in range(args.pre):
    tr_slot(i)
I(f's_mov_b32 {s(sCNT)}, {args.spin}')
a.label('L_QG_chk')
I('v_mov_b32 v6, 0')
for k in range(16):
    I(f's_waitcnt vmcnt({15 - k})')
    I(f'ds_write_b64 {v(LA + (k >> 1))}, {v(G2 + 4 * k, 2)} offset:{(k & 1) * 8192}')
    I(f'v_bitop3_b32 v6, {v(G2 + 4 * k + 2)}, v12, v6 bitop3:0xbe')
I(f's_sub_u32 {s(sCNT)}, {s(sCNT)}, 1')
I('v_cmp_ne_u32 vcc, 0, v6')
a.B('s_cbranch_scc1 L_QG_go')
a.B('s_cbranch_vccz L_QG_go')
I('s_waitcnt lgkmcnt(0)')
for k in range(16):
    lab = a.newlabel('L_qr')
    I(f'v_cmp_ne_u32 vcc, {v(G2 + 4 * k + 2)}, v12')
    I(f's_cbranch_vccz {lab}')
    I('s_mov_b64 exec, vcc')
    I(f'global_load_dwordx4 {v(G2 + 4 * k, 4)}, {v(8 + (k >> 2))}, {P(pWS)} offset:{(k & 3) * 1024} sc1')
    I('s_mov_b64 exec, -1')
    a.label(lab)
I('s_waitcnt vmcnt(0)')
I('s_branch L_QG_chk')
a.label('L_QG_go')
flag_add(C_QA)
I('s_setprio 0')
TS(11)
TSN()
a.label('L_PVs')
for i in range(args.pre, 4):
    tr_slot(i)

a.label('L_PV')
TS(6)
I('s_barrier')
if args.pp:
    I(f's_setprio {args.pp}')
I('s_barrier')
for u in range(4):
    I(f'ds_read_b128 {v(PF + 4 * u, 4)}, {v(48 + u)}')
TS(7)
O = 16
cvt = lambda k: [f'v_cvt_pk_bf16_f32 {v(O + 4 * r + k)}, {v(ACC + 8 * k + r)}, {v(ACC + 8 * k + 4 + r)}' for r in range(4)]
fill = {}
for i, t_ in enumerate(cvt(0) + [f'v_and_b32 {v(O + 4 * r)}, {s(sK2)}, {v(O + 4 * r)}' for r in range(4)]):
    fill.setdefault(11 + i // 2, []).append(t_)
work = cvt(1) + [f'v_add_u32 {v(CK + r)}, {v(O + 4 * r)}, {v(O + 4 * r + 1)}' for r in range(4)]
work += [f'v_add_u32 {v(CK + r)}, {v(CK + r)}, {v(CK + r)} row_ror:{st}' for st in (8, 4, 2, 1) for r in range(4)]
for i, t_ in enumerate(work):
    fill.setdefault(19 + i // 2, []).append(t_)
i = 0
for k in range(4):
    for u in range(4):
        for T in (2 * k, 2 * k + 1):
            if k == 0 and T == 0:
                I(f's_waitcnt lgkmcnt({3 - u})')
            I(f'{MFMA} {v(ACC + 4 * T, 4)}, {v(PF + 4 * u, 4)}, {v(BF + (u * 8 + T) * 4, 4)}, {"0" if u == 0 else v(ACC + 4 * T, 4)}')
            for t_ in fill.get(i, []):
                I(t_)
            i += 1
for t_ in cvt(2):
    I(t_)
for r in range(4):
    I(f'v_sub_u32 {v(CK + r)}, {s(sK0)}, {v(CK + r)}')
for r in range(4):
    I(f'v_lshrrev_b32 {v(CK + r)}, v1, {v(CK + r)}')
for r in range(4):
    I(cvt(3)[r])
    I(f'v_and_or_b32 {v(O + 4 * r)}, {v(CK + r)}, {s(sK1)}, {v(O + 4 * r)}')
    I(f'global_store_dwordx4 {v(52 + r)}, {v(O + 4 * r, 4)}, {P(pWS)} sc1')
flag_add(C_ST)
TS(8)
I('s_waitcnt vmcnt(0)')
flag_add(C_ACK)
TS(9)
I('s_waitcnt lgkmcnt(0)')
ts_dump()
I('s_endpgm')

a.label('L_S')
AF, QB, WUV, SA, MK, WO0, QAD = 128, 96, 48, 40, 36, 64, 80
WOR, PL, AW, AT2 = 128, 176, 208, 240
XR2, B2R, OA, W2T, HH = 46, 47, 104, 88, 124
sQ, sDL = sK1, sK2
WOq = lambda q: WO0 + 4 * q if q < 4 else WOR + 4 * (q - 4)
I(f"""
s_lshl2_add_u32 {s(sT0)}, {s(sS)}, {s(sW)}
s_lshl_b32 {s(sT0)}, {s(sT0)}, 15
s_lshl_b32 {s(sT1)}, {s(sW)}, 8
s_add_u32 {s(sT0)}, {s(sT0)}, {s(sT1)}
v_lshlrev_b32 v4, 1, v2
v_xor_b32 v4, v4, v1
v_lshlrev_b32 v4, 4, v4
v_lshl_add_u32 v4, v2, 10, v4
v_add_u32 v4, {s(sT0)}, v4
v_xor_b32 v26, 0x80, v4
v_add_u32 v26, 0x1000, v26
s_mul_i32 {s(sT1)}, {s(sW)}, {32768 + 8192}
s_mov_b32 m0, {s(sT1)}
s_movk_i32 {s(sT2)}, 0x2000
s_mov_b32 {s(sQ)}, {s(sW)}
s_lshr_b32 {s(sHT)}, {s(sY)}, 3
s_lshl2_add_u32 {s(sHT)}, {s(sX)}, {s(sHT)}
s_and_b32 {s(sCI)}, {s(sY)}, 3
s_bfe_u32 {s(sDI)}, {s(sY)}, 0x10002
v_and_b32 v5, 7, v1
v_lshlrev_b32 v5, 1, v5
v_xor_b32 v5, v5, v2
v_lshlrev_b32 v5, 4, v5
v_lshl_add_u32 v5, v1, 8, v5
s_lshl_b32 {s(sT1)}, {s(sW)}, 13
v_add_u32 v5, {s(sT1)}, v5
v_lshl_add_u32 v27, {s(sW)}, 2, {v(VFL)}
""")
I(f"""
s_lshr_b32 {s(sT0)}, {s(sW)}, 1
s_lshl1_add_u32 {s(sT0)}, {s(sCI)}, {s(sT0)}
s_lshl_b32 {s(sT0)}, {s(sT0)}, 19
s_and_b32 {s(sT3)}, {s(sW)}, 1
s_lshl_b32 {s(sT3)}, {s(sT3)}, 16
s_add_u32 {s(sT0)}, {s(sT0)}, {s(sT3)}
s_lshl1_add_u32 {s(sT3)}, {s(sHT)}, {s(sDI)}
s_lshl_b32 {s(sT1)}, {s(sT3)}, 7
s_add_u32 {s(sT0)}, {s(sT0)}, {s(sT1)}
v_lshrrev_b32 v8, 3, v0
v_lshlrev_b32 v8, 13, v8
v_and_b32 v9, 7, v0
v_lshl_add_u32 v8, v9, 4, v8
v_add_u32 v8, {s(sT0)}, v8
""")
I('s_waitcnt lgkmcnt(0)')
load_epoch()
I('s_barrier')
I(f"""
s_lshl_b32 {s(sT0)}, {s(sT3)}, 16
s_lshl_b32 {s(sT1)}, {s(sW)}, 8
s_add_u32 {s(sT0)}, {s(sT0)}, {s(sT1)}
v_lshlrev_b32 v34, 12, v2
v_lshl_add_u32 v34, v1, 4, v34
v_add_u32 v34, {s(sT0)}, v34
""")
for b in range(4):
    I(f's_add_u32 {s(sT0)}, {s(sCI)}, {b}')
    I(f's_and_b32 {s(sT0)}, {s(sT0)}, 3')
    I(f's_lshl_b32 {s(sT0)}, {s(sT0)}, 14')
    I(f'v_add_u32 {v(28 + b)}, {s(sT0)}, v34')
build_masks(MK, 9, 10)
TS(1)


def s_setup():
    I(f"""
    v_lshlrev_b32 v10, 4, v1
    v_add_u32 v10, {L_MX}, v10
    s_lshl_b32 {s(sT0)}, {s(sW)}, 2
    v_add_u32 v9, {s(sT0)}, v10
    s_lshl_b32 {s(sT0)}, {s(sW)}, 10
    s_add_u32 {s(sT0)}, {s(sT0)}, {L_P}
    v_add_u32 v11, {s(sT0)}, v3
    s_lshl_b32 {s(sT0)}, {s(sGA)}, 7
    s_add_u32 {s(sT0)}, {s(sT0)}, {s(sS)}
    s_lshl_b32 {s(sT0)}, {s(sT0)}, 8
    s_add_u32 {s(sT0)}, {s(sT0)}, {W_ER}
    v_lshl_add_u32 v33, v1, 4, {s(sT0)}
    v_xor_b32 v6, v1, v2
    v_lshlrev_b32 v6, 4, v6
    v_lshl_add_u32 v6, v2, 8, v6
    """)
    for i in range(4):
        I(f's_add_u32 {s(sT0)}, {s(sW)}, {i}')
        I(f's_and_b32 {s(sT0)}, {s(sT0)}, 3')
        I(f's_lshl_b32 {s(sT0)}, {s(sT0)}, 12')
        I(f's_add_u32 {s(sT0)}, {s(sT0)}, {L_QA}')
        I(f'v_add_u32 {v(QAD + 2 * i)}, {s(sT0)}, v6')
        I(f'v_xor_b32 {v(QAD + 2 * i + 1)}, 64, {v(QAD + 2 * i)}')
    I(f"""
    s_bfe_u32 {s(sT0)}, s2, 0x20004
    s_and_b32 {s(sT1)}, s2, 3
    s_lshl2_add_u32 {s(sT0)}, {s(sT0)}, {s(sT1)}
    s_lshl_b32 {s(sT0)}, {s(sT0)}, 6
    s_bfe_u32 {s(sT1)}, s2, 0x10002
    s_lshl3_add_u32 {s(sT0)}, {s(sT1)}, {s(sT0)}
    s_bfe_u32 {s(sT1)}, s2, 0x10003
    s_lshl2_add_u32 {s(sT0)}, {s(sT1)}, {s(sT0)}
    v_and_b32 v35, 3, v0
    v_lshl_add_u32 v12, v35, 4, {s(sT0)}
    s_mov_b32 {s(sK0)}, 0x20000
    s_lshr_b32 {s(sT1)}, s2, 6
    s_lshl_b32 {s(sT1)}, {s(sT1)}, 10
    s_add_u32 {s(sT0)}, {s(sT0)}, {s(sT1)}
    s_cmp_lt_u32 s2, 224
    s_cselect_b32 {s(sR)}, -1, 0
    s_cselect_b32 {s(sT1)}, 0, 512
    s_sub_u32 {s(sT0)}, {s(sT0)}, {s(sT1)}
    s_lshl1_add_u32 {s(sT0)}, {s(sT0)}, {s(sW)}
    s_lshl_b32 {s(sT0)}, {s(sT0)}, 8
    v_lshlrev_b32 v34, 13, v2
    v_lshl_add_u32 v34, v1, 4, v34
    v_add_u32 v34, {s(sT0)}, v34
    """)


def dma_row(r):
    k = r & 7
    va = 'v26' if k & 1 else 'v4'
    I(f'global_load_lds_dwordx4 {va}, {P(pCKV)}{NT}')
    if r < 30:
        if k == 5:
            I(f's_lshl_b32 {s(sDL)}, {s(sQ)}, 8')
            I(f's_add_u32 {s(sQ)}, {s(sQ)}, 1')
            I(f's_and_b32 {s(sQ)}, {s(sQ)}, 3')
            I(f's_lshl_b32 {s(sT0)}, {s(sQ)}, 8')
            I(f's_sub_u32 {s(sDL)}, {s(sT0)}, {s(sDL)}')
            I(f's_sub_u32 {s(sDL)}, {s(sDL)}, 24576')
        I(f'v_add_u32 {va}, {s(sDL if k >= 6 else sT2)}, {va}')
    if r < 31:
        if k == 7:
            I(f's_lshl2_add_u32 {s(sT0)}, {s(sQ)}, {s(sW)}')
            I(f's_lshl_b32 m0, {s(sT0)}, 13')
        else:
            I('s_add_u32 m0, m0, 0x400')
    if r == args.qa and r:
        flag_add(C_ISS)


def stage_addr(i):
    I(f's_add_u32 {s(sT1)}, {s(sW)}, {i}')
    I(f's_and_b32 {s(sT1)}, {s(sT1)}, 3')
    I(f's_lshl_b32 {s(sT1)}, {s(sT1)}, 15')
    I(f'v_add_u32 v16, {s(sT1)}, v5')
    for t in range(1, 4):
        I(f'v_xor_b32 {v(16 + t)}, {64 * t}, v16')


def stage_reads(i):
    for t in range(4):
        for tau in range(2):
            I(f'ds_read_b128 {v(AF + 32 * i + 8 * t + 4 * tau, 4)}, {v(16 + t)} offset:{4096 * tau}')


tail = []
for i in range(4):
    tail.append(f'global_load_dwordx4 {v(WO0 + 4 * i, 4)}, v28, {P(pWO)} offset:{1024 * i}{NT}')
for i in range(4):
    tail.append(f'global_load_dwordx4 {v(WUV + 4 * i, 4)}, v8, {P(pWUV)}{NT}' + (f'\nv_add_u32 v8, {s(sK0)}, v8' if i < 3 else ''))
for i in range(2):
    tail.append(f'global_load_dwordx4 {v(W2T + 4 * i, 4)}, v34, {P(pW2)} offset:{1024 * i}{NT}')
wuv_loads = []
if args.wuv:
    assert args.tord == 1
    wuv_loads = tail[4:8]
    tail = tail[:4] + tail[8:]
elif args.tord == 1:
    tail = tail[:4] + tail[8:10] + tail[4:8]
if args.tord == 2:
    tail = tail[4:8] + tail[8:10] + tail[:4]
assert args.nt1 + args.ns + args.ne <= len(tail)
tail.append(f'global_load_dword {v(XR2)}, v12, {P(pX)}\nglobal_load_dword {v(B2R)}, v12, {P(pB2)}')

depth = lambda r: args.d1 if r < args.k1 else (args.d2 if r < args.k2 else args.d3)
for r in range(args.d1):
    dma_row(r)
s_setup()
I('s_mov_b64 vcc, -1')
stg = 0
for r in range(args.d1, 32):
    if args.tpos <= r < args.tpos + args.ne:
        I(tail.pop(0))
    if args.wuv == 2 and args.k1 <= r < args.k1 + 4:
        I(wuv_loads.pop(0))
    dma_row(r)
    d = depth(r)
    if args.dyn and r >= args.k1 and r < 31:
        lab = a.newlabel('L_dy')
        a.B(f's_cbranch_vccz {lab}')
        I(f'ds_read_b32 {v(VFT)}, {v(VFL)} offset:{4 * F_H2}')
        I(f's_waitcnt vmcnt({args.dyn}) lgkmcnt(0)')
        I(f'v_cmp_eq_u32 vcc, 0, {v(VFT)}')
        a.label(lab)
    if r + 1 > d and r < 31:
        I(f's_waitcnt vmcnt({d})')
        if r + 1 - d >= 8 * (stg + 1):
            flag_add(K0, 27)
            stage_addr(stg)
            stage_reads(stg)
            stg += 1
TS(2)
while stg < 3:
    stage_addr(stg)
    I(f's_waitcnt vmcnt({24 - 8 * stg})')
    flag_add(K0, 27)
    stage_reads(stg)
    stg += 1
for _ in range(args.nt1):
    I(tail.pop(0))
if args.qa == 32:
    flag_add(C_ISS)
stage_addr(3)
epoch_ready()
I('s_setprio 2')
flag_wait(C_QA, 2)
TS(4)
LOOK = 4


def qa_read(t):
    I(f'ds_read_b128 {v(QB + 4 * (t & 7), 4)}, {v(QAD + 2 * (t >> 2) + (t & 1))} offset:{1024 * (t & 3)}')


def wo_rest():
    for q in range(4, 16):
        I(f'global_load_dwordx4 {v(WOq(q), 4)}, {v(28 + (q >> 2))}, {P(pWO)} offset:{1024 * (q & 3)}{NT}')


def s_mfma(t):
    for tau in range(2):
        I(f'{MFMA} {v(SA + 4 * tau, 4)}, {v(AF + 8 * t + 4 * tau, 4)}, {v(QB + 4 * (t & 7), 4)}, {"0" if t == 0 else v(SA + 4 * tau, 4)}')


for t in range(LOOK):
    qa_read(t)
LAST = args.last
for t in range(12):
    qa_read(t + LOOK)
    I(f's_waitcnt lgkmcnt({LOOK + (9 if LAST <= t < LAST + LOOK else 0)})')
    s_mfma(t)
    if t + 1 == LAST:
        I(f's_waitcnt vmcnt({args.nt1})')
        stage_reads(3)
        flag_add(K0, 27)
        TS(3)
for t in range(12, 16):
    if LAST == 12:
        I(f's_waitcnt lgkmcnt({1 + 2 * (15 - t)})')
    elif t == 12:
        I('s_waitcnt lgkmcnt(3)' if LAST <= 9 else 's_waitcnt lgkmcnt(0)')
    elif LAST <= 9:
        I(f's_waitcnt lgkmcnt({15 - t})')
    s_mfma(t)
    for _ in range((args.ns + 3 - (t - 12)) // 4):
        if tail:
            I(tail.pop(0))
TS(5)
I(f'''
s_mov_b32 {s(sT3)}, 0xffff0000
s_mov_b32 {s(sT0)}, 0x3db504f3
s_mov_b32 {s(sT1)}, 0x3fb8aa3b
v_max3_f32 v24, {v(SA)}, {v(SA + 1)}, {v(SA + 2)}
v_max3_f32 v25, {v(SA + 4)}, {v(SA + 5)}, {v(SA + 6)}
v_max3_f32 v24, v24, {v(SA + 3)}, {v(SA + 7)}
v_max_f32 v24, v24, v25
''')
cross_rows_allreduce('v_max_f32', 24, 25)
I('ds_write_b32 v9, v24')
if args.mimic:
    round_pairs(SA, 8, 16)
I('s_waitcnt lgkmcnt(0)')
I('s_barrier')
I('ds_read_b128 v[20:23], v10')
for i in range(8):
    I(f'v_mul_f32 {v(SA + i)}, {s(sT0)}, {v(SA + i)}')
if args.mimic:
    round_pairs(SA, 8, 16)
I('s_waitcnt lgkmcnt(0)')
I('v_max3_f32 v24, v20, v21, v22')
I('v_max_f32 v24, v24, v23')
if args.mimic:
    I('v_cvt_pk_bf16_f32 v24, v24, v24')
    I(f'v_and_b32 v24, {s(sT3)}, v24')
I(f'v_mul_f32 v24, {s(sT0)}, v24')
if args.mimic:
    I('v_cvt_pk_bf16_f32 v24, v24, v24')
    I(f'v_and_b32 v24, {s(sT3)}, v24')
I(f'v_mul_f32 v24, {s(sT1)}, v24')
for i in range(8):
    I(f'v_fma_f32 {v(SA + i)}, {v(SA + i)}, {s(sT1)}, -v24')
for i in range(8):
    I(f'v_exp_f32 {v(SA + i)}, {v(SA + i)}')
for i in range(4):
    I(f'v_cvt_pk_bf16_f32 {v(16 + i)}, {v(SA + 2 * i)}, {v(SA + 2 * i + 1)}')
I('ds_write_b128 v11, v[16:19]')
I('s_waitcnt lgkmcnt(0)')
I('s_barrier')
TS(6)
I(f's_mov_b32 {s(sT0)}, 0x3f803f80')
I(f'v_dot2_f32_bf16 v25, v16, {s(sT0)}, 0')
for i in range(1, 4):
    I(f'v_dot2_f32_bf16 v25, {v(16 + i)}, {s(sT0)}, v25')
cross_rows_allreduce('v_add_f32', 25, 26)
I(f'ds_write_b32 v9, v25 offset:{L_MF - L_MX}')
flag_add(C_L)
I(f's_cmp_lg_u32 {s(sW)}, 0')
I('s_cbranch_scc1 L_noer')
flag_wait(C_L, 4)
I(f'ds_read_b128 v[20:23], v10 offset:{L_MF - L_MX}')
I(f'v_mov_b32 v26, {s(sEP)}')
I(f'v_mov_b32 v27, {s(sEP)}')
I('s_waitcnt lgkmcnt(0)')
I('v_add_f32 v20, v20, v21')
I('v_add_f32 v22, v22, v23')
I('v_add_f32 v25, v20, v22')
I('s_mov_b64 exec, 0xffff')
I(f'global_store_dwordx4 v33, v[24:27], {P(pWS)} sc1')
I('s_mov_b64 exec, -1')
a.label('L_noer')
I('s_setprio 0')
for _ in range(args.nb):
    if tail:
        I(tail.pop(0))
if args.wor == 1:
    wo_rest()
I(f'''
v_lshlrev_b32 v10, 3, v0
v_add_u32 v10, {L_FF}, v10
ds_read_b64 {v(HH, 2)}, v10
s_lshl2_add_u32 {s(sT0)}, {s(sHT)}, {s(sCI)}
s_lshl2_add_u32 {s(sT0)}, {s(sT0)}, {s(sW)}
s_lshl_b32 {s(sT0)}, {s(sT0)}, 13
s_add_u32 {s(sT0)}, {s(sT0)}, {W_H3}
v_lshlrev_b32 v4, 11, v2
v_lshl_add_u32 v4, v1, 4, v4
v_add_u32 v4, {s(sT0)}, v4
s_lshr_b32 {s(sT0)}, {s(sHT)}, 4
s_lshl2_add_u32 {s(sT0)}, {s(sT0)}, {s(sW)}
s_lshl_b32 {s(sT0)}, {s(sT0)}, 13
s_and_b32 {s(sT1)}, {s(sHT)}, 15
s_lshl4_add_u32 {s(sT0)}, {s(sT1)}, {s(sT0)}
s_add_u32 {s(sT0)}, {s(sT0)}, {W_ER}
v_and_b32 v5, 7, v1
v_lshl_add_u32 v5, v2, 3, v5
v_lshl_add_u32 v5, v5, 8, {s(sT0)}
v_lshlrev_b32 v6, v1, {v(VONE)}
v_add_u32 v6, -1, v6
s_mul_i32 {s(sK1)}, {s(sEP)}, {(HASH * 8) & 0xffffffff}
s_mov_b32 {s(sK2)}, {EMB}
s_lshl_b32 {s(sT0)}, {s(sW)}, 2
s_add_u32 {s(sT0)}, {s(sT0)}, {L_MX}
v_mov_b32 v7, {s(sT0)}
v_mov_b32 v45, {L_MX}
s_lshl_b32 {s(sT0)}, {s(sW)}, 18
s_lshl_b32 {s(sT1)}, s2, {6 + args.h5}
s_add_u32 {s(sT0)}, {s(sT0)}, {s(sT1)}
s_add_u32 {s(sT0)}, {s(sT0)}, {W_H5}
v_lshrrev_b32 v44, {2 + args.h5}, v0
v_lshlrev_b32 v44, {14 + args.h5}, v44
v_and_b32 v16, {7 if args.h5 else 3}, v0
v_lshl_add_u32 v44, v16, 4, v44
v_add_u32 v44, {s(sT0)}, v44
v_and_b32 v16, 1, v2
v_lshrrev_b32 v17, 1, v2
s_lshl_b32 {s(sT0)}, {s(sW)}, 9
s_add_u32 {s(sT1)}, {s(sT0)}, {L_CL}
v_add_u32 v40, {s(sT1)}, v3
s_add_u32 {s(sT1)}, {s(sT0)}, {L_CX}
v_and_b32 v42, 7, v0
v_lshlrev_b32 v42, 5, v42
v_lshl_add_u32 v42, v16, 4, v42
v_lshl_add_u32 v42, v17, 8, v42
v_add_u32 v42, {s(sT1)}, v42
s_lshl_b32 {s(sT0)}, {s(sW)}, 7
s_add_u32 {s(sT0)}, {s(sT0)}, {L_CL}
v_lshrrev_b32 v41, 3, v0
v_lshl_add_u32 v41, v41, 4, {s(sT0)}
v_lshrrev_b32 v43, 2, v1
v_add_u32 v43, {s(sCI)}, v43
v_and_b32 v43, 3, v43
v_lshlrev_b32 v43, 4, v43
v_lshl_add_u32 v43, v2, 2, v43
v_add_u32 v43, v43, v35
v_lshlrev_b32 v43, 2, v43
v_add_u32 v43, {L_CX}, v43
v_mov_b32 v33, {s(sEP)}
v_cmp_gt_u32 {P(sM1)}, v0, 31
v_cmp_gt_u32 {P(sM2)}, 8, v1
''')
late_tail = []
if args.ew == 2:
    late_tail, tail = tail, []
if tail or args.wor == 2:
    flag_wait(C_ST, 4)
while tail:
    I(tail.pop(0))
if args.wor == 2:
    wo_rest()
if args.ew < 2:
    flag_wait(C_ACK if args.ew else C_ST, 4)
else:
    I('s_waitcnt lgkmcnt(0)')
TS(8)
for i in range(2):
    for r in range(4):
        I(f'v_and_b32 {v(AT2 + 4 * i + r)}, {v(HH + i)}, {v(MK + r)}')
I('v_mov_b32 v96, 0xff800000')
I('v_mov_b32 v97, 0')
I('v_mov_b32 v98, v33')
I(f's_mov_b32 {s(sCNT)}, {args.spin}')


def pl_loads():
    for q in range(8):
        I(f'global_load_dwordx4 {v(PL + 4 * q, 4)}, v4, {P(pWS)} offset:{q * 256} sc1')


def er_load():
    I(f's_mov_b64 exec, {P(sM2)}')
    I(f'global_load_dwordx4 v[96:99], v5, {P(pWS)} sc1')
    I('s_mov_b64 exec, -1')


if args.comb:
    if args.dly:
        I(f's_sleep {args.dly}')
    if args.gv:
        I('s_waitcnt vmcnt(0)')
    TS(7)
    er_load()
    pl_loads()
    I('s_waitcnt vmcnt(8)')
    I('v_cmp_ne_u32 vcc, v98, v33')
    I('v_max_f32 v18, v96, v96 row_ror:8')
    I('s_cbranch_vccz L_TE_go')
a.label('L_TE')
er_load()
I(f's_sub_u32 {s(sCNT)}, {s(sCNT)}, 1')
I('s_waitcnt vmcnt(0)')
I('v_cmp_ne_u32 vcc, v98, v33')
I('v_max_f32 v18, v96, v96 row_ror:8')
a.B('s_cbranch_scc1 L_TE_go')
a.B('s_cbranch_vccnz L_TE')
a.label('L_TE_go')
TSN(1)
if not args.comb:
    flag_add(C_ER)
row_allreduce('v_max_f32', [18], steps=(4, 2, 1))
cross_rows_allreduce('v_max_f32', 18, 19)
I('ds_write_b32 v7, v18')
flag_add(C_M)
if not args.comb:
    if late_tail:
        flag_wait(C_ST, 4)
        for t_ in late_tail:
            I(t_)
    flag_wait(C_ER, 4)
    if args.h3:
        flag_wait(C_ACK, 4)
    TS(7)
    pl_loads()
flag_wait(C_M, 4)
I('ds_read_b128 v[100:103], v45')
I('s_waitcnt lgkmcnt(0)')
I('''
v_max3_f32 v18, v100, v101, v102
v_max_f32 v18, v18, v103
v_sub_f32 v17, v96, v18
v_exp_f32 v17, v17
v_cvt_pk_bf16_f32 v16, v17, v17
v_mul_f32 v17, v17, v97
''')
red = [f'v_add_f32 v17, v17, v17 row_ror:{st}' for st in (8, 4, 2, 1)]
red += ['v_mov_b32 v19, v17', 'v_permlane16_swap_b32 v19, v17\nv_add_f32 v17, v17, v19\nv_mov_b32 v19, v17',
        'v_permlane32_swap_b32 v19, v17\nv_add_f32 v17, v17, v19', 'ds_write_b32 v7, v17 offset:16']
for q in range(8):
    for r in range(4):
        I(f'v_and_b32 {v(AW + 4 * q + r)}, v16, {v(MK + r)} row_newbcast:{q}')
    I(red[q])
I(f's_mov_b32 {s(sCNT)}, {args.spin}')
I('s_waitcnt vmcnt(8)')
for i in range(2):
    I(f'{MFMA} {v(OA, 4)}, {v(AT2 + 4 * i, 4)}, {v(W2T + 4 * i, 4)}, {"0" if i == 0 else v(OA, 4)}')
TS(1)


def pl_consume(extra):
    global nwo, nuv
    nwo = nuv = 0
    for q in range(8):
        I(f's_waitcnt vmcnt({7 - q + nwo + nuv})')
        I(f'{MFMA} v[24:27], {v(AW + 4 * q, 4)}, {v(PL + 4 * q, 4)}, {"0" if q == 0 else "v[24:27]"}')
        if extra and args.wuv == 1 and q < 2:
            for t_ in wuv_loads[2 * q:2 * q + 2]:
                I(t_)
                nuv += 1
        elif extra and args.wor == 3:
            for _ in range(2 if (q < 4 or args.wuv == 1) else 1):
                qq = 4 + nwo
                I(f'global_load_dwordx4 {v(WOq(qq), 4)}, {v(28 + (qq >> 2))}, {P(pWO)} offset:{1024 * (qq & 3)}{NT}')
                nwo += 1
        I(f'v_and_b32 v19, {s(sK2)}, {v(PL + 4 * q)}')
        I(f'v_add3_u32 v32, {v(PL + 4 * q)}, {v(PL + 4 * q + 1)}, {"0" if q == 0 else "v32"}')
        I('v_mad_u32_u24 v32, v19, v6, v32')


pl_consume(True)
NWO = nwo
a.label('L_T3_chk')
row_allreduce('v_add_u32', [32], steps=(8, 4))
I('s_mov_b32 exec_hi, 0')
I('ds_write_b128 v40, v[24:27]')
I('s_mov_b64 exec, -1')
row_allreduce('v_add_u32', [32], steps=(2, 1))
I(f's_sub_u32 {s(sCNT)}, {s(sCNT)}, 1')
I(f'v_cmp_ne_u32 vcc, {s(sK1)}, v32')
I('s_waitcnt lgkmcnt(0)')
a.B('s_cbranch_scc1 L_T3_go')
a.B('s_cbranch_vccz L_T3_go')
pl_loads()
pl_consume(False)
I('s_branch L_T3_chk')
a.label('L_T3_go')
nwo = NWO
TS(9)
TSN(0)
I('s_barrier')
for k in range(4):
    I(f'ds_read_b128 {v(108 + 4 * k, 4)}, v41 offset:{512 * k}')
I('ds_read_b128 v[100:103], v45 offset:16')
I('s_waitcnt lgkmcnt(3)')
for i in range(4):
    I(f'v_add_f32 {v(108 + i)}, {v(108 + i)}, {v(112 + i)}')
I('s_waitcnt lgkmcnt(1)')
for i in range(4):
    I(f'v_add_f32 {v(116 + i)}, {v(116 + i)}, {v(120 + i)}')
for i in range(4):
    I(f'v_add_f32 {v(20 + i)}, {v(108 + i)}, {v(116 + i)}')
if args.wuv == 1:
    I(f's_waitcnt vmcnt({nwo})')
for i in range(4):
    I(f'v_cvt_pk_bf16_f32 {v(20 + i)}, {v(20 + i)}, {v(20 + i)}')
for r in range(4):
    I(f'v_and_b32 {v(AW + r)}, v20, {v(MK + r)}')
for i in range(4):
    if i < 3:
        for r in range(4):
            I(f'v_and_b32 {v(AW + 4 * (i + 1) + r)}, {v(21 + i)}, {v(MK + r)}')
    I(f'{MFMA} v[24:27], {v(AW + 4 * i, 4)}, {v(WUV + 4 * i, 4)}, {"0" if i == 0 else "v[24:27]"}')
I('s_waitcnt lgkmcnt(0)')
I('v_add_f32 v18, v100, v101')
I('v_add_f32 v19, v102, v103')
I('v_add_f32 v18, v18, v19')
I('v_rcp_f32 v18, v18')
I('s_mov_b32 exec_lo, 0x00ff00ff')
I('s_mov_b32 exec_hi, 0xff00ff00')
I('ds_write_b128 v42, v[24:27]')
I('s_mov_b64 exec, -1')
I('s_waitcnt lgkmcnt(0)')
I('s_barrier')
for k in range(4):
    I(f'ds_read2st64_b32 {v(108 + 2 * k, 2)}, v43 offset0:{2 * k} offset1:{2 * k + 1}')
TS(10)
I('v_mov_b32 v22, v33')
I('v_mov_b32 v23, v33')
for i in range(4):
    I(f'v_and_b32 {v(OA + i)}, {s(sR)}, {v(OA + i)}')
I('s_waitcnt lgkmcnt(0)')
for st in (4, 2, 1):
    for k in range(st):
        I(f'v_add_f32 {v(108 + k)}, {v(108 + k)}, {v(108 + k + st)}')
I('v_mul_f32 v108, v108, v18')
I('v_cvt_pk_bf16_f32 v20, v108, v108')


def wo_and(q):
    for r in range(4):
        I(f'v_and_b32 {v(AT2 + 4 * (q & 1) + r)}, v20, {v(MK + r)} row_newbcast:{q}')


wo_and(0)
for q in range(16):
    if q < 15:
        wo_and(q + 1)
    if args.wor == 3 and q >= 4:
        I(f's_waitcnt vmcnt({15 - q})')
    I(f'{MFMA} {v(OA, 4)}, {v(AT2 + 4 * (q & 1), 4)}, {v(WOq(q), 4)}, {v(OA, 4)}')
TS(11)
I(f'v_cndmask_b32 v20, {v(OA)}, {v(OA + 2)}, {P(sM1)}')
I(f'v_cndmask_b32 v21, {v(OA + 1)}, {v(OA + 3)}, {P(sM1)}')
I(f'global_store_dwordx4 v44, v[20:23], {P(pWS)} sc1')
TS(12)
I('s_cmp_lt_u32 s2, 192')
I('s_cbranch_scc1 L_T_done')
I(f'''
s_bfe_u32 {s(sT0)}, s2, {0x50001 if args.h5 else 0x60000}
s_lshl2_add_u32 {s(sT0)}, {s(sT0)}, {s(sW)}
s_lshl_b32 {s(sT0)}, {s(sT0)}, {12 + args.h5}
s_and_b32 {s(sT1)}, s2, {args.h5}
s_lshl_b32 {s(sT1)}, {s(sT1)}, 6
s_add_u32 {s(sT0)}, {s(sT0)}, {s(sT1)}
s_add_u32 {s(sT0)}, {s(sT0)}, {W_H5}
v_lshrrev_b32 v4, 2, v0
v_lshlrev_b32 v4, {6 + args.h5}, v4
v_lshl_add_u32 v4, v35, 4, v4
v_add_u32 v4, {s(sT0)}, v4
v_add_u32 v5, {2048 << args.h5}, v4
v_lshlrev_b32 v9, 7, v35
v_add_u32 v9, {L_CL}, v9
s_lshl_b32 {s(sT0)}, {s(sW)}, 5
v_lshl_add_u32 v8, v2, 3, {s(sT0)}
v_add_u32 v8, v8, v9
v_lshrrev_b32 v6, 2, v0
v_lshl_add_u32 v9, v6, 3, v9
v_lshlrev_b32 v108, 16, {v(XR2)}
v_and_b32 v109, {s(sT3)}, {v(XR2)}
v_lshlrev_b32 v110, 16, {v(B2R)}
v_and_b32 v111, {s(sT3)}, {v(B2R)}
v_add_f32 v108, v108, v110
v_add_f32 v109, v109, v111
s_mov_b32 {s(sCNT)}, {args.spin}
''')
if args.a5:
    I('s_waitcnt vmcnt(0)')
a.label('L_T5_retry')
for k in range(4):
    I(f'global_load_dwordx4 {v(128 + 4 * k, 4)}, {v(4 + (k >> 1))}, {P(pWS)} offset:{(1024 << args.h5) * (k & 1)} sc1')
I(f's_sub_u32 {s(sCNT)}, {s(sCNT)}, 1')
I('s_waitcnt vmcnt(0)')
I('v_xor_b32 v17, v130, v33')
for k in range(1, 4):
    I(f'v_bitop3_b32 v17, {v(130 + 4 * k)}, v33, v17 bitop3:0xbe')
I('v_cmp_ne_u32 vcc, 0, v17')
for i in range(2):
    I(f'v_add_f32 {v(128 + i)}, {v(128 + i)}, {v(132 + i)}')
    I(f'v_add_f32 {v(136 + i)}, {v(136 + i)}, {v(140 + i)}')
a.B('s_cbranch_scc1 L_T5_go')
a.B('s_cbranch_vccnz L_T5_retry')
a.label('L_T5_go')
TS(13)
TSN(3)
for i in range(2):
    I(f'v_add_f32 {v(20 + i)}, {v(128 + i)}, {v(136 + i)}')
row_allreduce('v_add_f32', [20, 21], steps=(4, 8))
I('ds_write_b64 v8, v[20:21]')
I('s_waitcnt lgkmcnt(0)')
I('s_barrier')
I(f's_cmp_lg_u32 {s(sW)}, 0')
I('s_cbranch_scc1 L_T_done')
I('ds_read_b64 v[20:21], v9')
I('s_waitcnt lgkmcnt(0)')
row_allreduce('v_add_f32', [20, 21], steps=(4, 8))
I('''
v_permlane32_swap_b32 v20, v21
v_add_f32 v20, v20, v21
v_mov_b32 v21, v20
v_permlane16_swap_b32 v20, v21
v_add_f32 v20, v20, v21
v_mov_b32 v21, v20
v_permlane32_swap_b32 v20, v21
v_add_f32 v108, v108, v20
v_add_f32 v109, v109, v21
v_cvt_pk_bf16_f32 v20, v108, v109
s_mov_b64 exec, 15
''')
I(f'global_store_dword v12, v20, {P(pOUT)}')
I('s_cmp_lg_u32 s2, 0xe0')
I('s_cbranch_scc1 L_T_done')
I(f'v_mov_b32 v22, {W_EP}')
I('s_mov_b64 exec, 1')
I(f'global_store_dword v22, v33, {P(pWS)} sc1')
a.label('L_T_done')
TS(14)
ts_dump()
a.label('L_end')
I('s_endpgm')

a.raw('.section .rodata,"a"')
a.raw('.p2align 6')
a.raw(f'.amdhsa_kernel {NAME}_kernel')
a.raw('''  .amdhsa_next_free_vgpr 256
  .amdhsa_next_free_sgpr 102
  .amdhsa_accum_offset 256
  .amdhsa_group_segment_fixed_size 0
  .amdhsa_kernarg_size 112
  .amdhsa_user_sgpr_count 2
  .amdhsa_user_sgpr_kernarg_segment_ptr 1
  .amdhsa_system_sgpr_workgroup_id_x 1
.end_amdhsa_kernel''')
open(args.o, 'w').write(a.text())
```

```python
import sys, argparse, re
from asmlib import Asm, v, s

NAME = 'parallel_sum__compressed_kv_cla__dense_activation_squared_relu__decode'

ap = argparse.ArgumentParser()
A_ = lambda n, d, t=int: ap.add_argument('--' + n, type=t, default=d)
ap.add_argument('-o', default='out.s')
A_('ts', 0)
A_('nt', 1)
A_('d1', 2); A_('k1', 4); A_('d2', 10); A_('k2', 16); A_('d3', 10)
A_('swap', 0)
A_('qa', 24)
A_('h2', 1)
A_('h3', 1)
A_('nt1', 0)
A_('wor', 3)
A_('dyn', 4)
A_('own', 1)
A_('ns', 6)
A_('nb', 0)
A_('w1', 0)
A_('last', 12)
A_('h5', 1)
A_('np', 1)
A_('sl', 5)
A_('pre', 2)
A_('tord', 1)
A_('light', 1)
A_('pt', 0)
A_('dly', 0)
A_('dly5', 0)
A_('hint1', 0)
A_('hint2', 0)
A_('wuv', 0)
A_('ew', 1)
A_('bpos', 1)
A_('a5', 1)
A_('comb', 1)
A_('tpos', 32)
A_('ne', 0)
A_('gv', 1)
A_('pp', 3)
A_('bo', 0)
A_('clk', 0)
A_('wpre', 0)
A_('nts', 0)
A_('nto', 1)
A_('mimic', 1)
A_('touch', 0)
A_('spin', 20000)
A_('notail', 0)
A_('tsn', 0)
A_('amp', '', str)
A_('tsmask', 0xffff, lambda x: int(x, 0))
args = ap.parse_args()
NT = ' nt' if args.nt else ''
NTS = ' nt' if args.nts else ''

L_QA = 131072
L_P = L_QA + 16384
L_XN = L_P + 4096
L_MX = L_XN + 1024
L_MF = L_MX + 256
L_CL = L_MF + 256
L_CX = L_CL + 2048
L_FF = L_CX + 2048
L_LS = L_FF + 512
L_FL = L_LS + 1024
L_END = L_FL + 64
assert L_END <= 163840
F_F0, C_ISS, F_H2, C_QA, C_ST, C_ACK, C_ER, F_HINT, K0 = range(9)
C_L, C_M = K0 + 4, K0 + 5
W_EP = 0
W_H1 = 0x1000
W_H2 = W_H1 + 0x20000
W_HF = W_H2 + 0x10000
W_H5 = W_HF + 0x80000
W_H3 = 0x200000
W_TS = 0x600000
assert W_H5 + 0x100000 <= W_H3

pX, pCKV, pWQ, pWUK, pWUV, pWO, pW1 = 4, 6, 8, 10, 12, 14, 18
pB1, pW2, pB2, pOUT, pDBG, pWS = 20, 22, 24, 26, 28, 30
sWV = 3
sX, sY, sFC, sGA, sS, sR, sHT, sCI, sDI = range(32, 41)
sJ, sH = sX, sY
sEP, sT0, sT1, sT2, sT3, sCNT, sW = 41, 42, 43, 44, 45, 46, 47
sB = 48
sM1, sM2, sM3, sM4 = 50, 52, 54, 56
sK0, sK1, sK2 = 58, 59, 60
TSB = 64
VFL, VONE, VFT = 13, 14, 15

a = Asm()
P = lambda r: s(r, 2)
MFMA = 'v_mfma_f32_16x16x32_bf16'


def I(text):
    if args.notail:
        out = []
        for line in text.split('\n'):
            m = re.match(r'\s*global_load_dwordx4 (v\[\d+:\d+\]), v\d+, s\[(\d+):', line)
            if m and int(m.group(2)) in (pWUV, pWO, pW1, pW2):
                line = f'global_load_dwordx4 {m.group(1)}, v3, s[4:5]'
            out.append(line)
        text = '\n'.join(out)
    a.I(text)


def TS(i):
    if args.ts and (args.tsmask >> i) & 1:
        I(f'{"s_memtime" if args.clk else "s_memrealtime"} {s(TSB + 2 * i, 2)}')


def TSN(k=None):
    if args.ts and (k is None or k == args.tsn):
        I(f's_sub_u32 {s(TSB + 2 * 15)}, {args.spin}, {s(sCNT)}')


def ts_dump(n=16):
    if not args.ts:
        return
    if args.amp:
        wg, w, k = map(int, args.amp.split(','))
        lab, done = a.newlabel('L_amp'), a.newlabel('L_ampd')
        I(f's_cmp_lg_u32 s2, {wg}')
        I(f's_cbranch_scc1 {done}')
        I(f's_cmp_lg_u32 {s(sWV)}, {w}')
        I(f's_cbranch_scc1 {done}')
        I('s_memrealtime s[96:97]')
        I('s_waitcnt lgkmcnt(0)')
        I(f's_sub_u32 {s(sT0)}, {s(TSB + 2 * k)}, {s(TSB)}')
        I(f's_lshl_b32 {s(sT0)}, {s(sT0)}, 3')
        I(f's_min_u32 {s(sT0)}, {s(sT0)}, 100000')
        a.label(lab)
        I('s_memrealtime s[98:99]')
        I('s_waitcnt lgkmcnt(0)')
        I(f's_sub_u32 {s(sT1)}, s98, s96')
        I(f's_cmp_lt_u32 {s(sT1)}, {s(sT0)}')
        I(f's_cbranch_scc1 {lab}')
        a.label(done)
    I('s_waitcnt lgkmcnt(0)')
    I('s_mov_b64 exec, -1')
    I('v_mov_b32 v4, 0')
    for i in range(n):
        I(f'v_writelane_b32 v4, {s(TSB + 2 * i)}, {i}')
    I(f's_lshl_b32 {s(sT0)}, s2, 3')
    I(f's_add_u32 {s(sT0)}, {s(sT0)}, {s(sWV)}')
    I(f's_lshl_b32 {s(sT0)}, {s(sT0)}, 6')
    I(f's_add_u32 {s(sT0)}, {s(sT0)}, {W_TS}')
    I(f'v_lshl_add_u32 v5, v0, 2, {s(sT0)}')
    I('s_mov_b64 exec, 0xffff')
    I(f'global_store_dword v5, v4, {P(pWS)}')
    I('s_waitcnt vmcnt(0)')


def load_epoch():
    I(f's_load_dword {s(sEP)}, {P(pWS)}, {W_EP}')


def epoch_ready():
    I('s_waitcnt lgkmcnt(0)')
    I(f's_add_u32 {s(sEP)}, {s(sEP)}, 1')


def row_allreduce(op, regs, steps=(8, 4, 2, 1)):
    for st in steps:
        for r in regs:
            I(f'{op} {v(r)}, {v(r)}, {v(r)} row_ror:{st}')


def cross_rows_allreduce(op, r, t):
    for sw in ('v_permlane16_swap_b32', 'v_permlane32_swap_b32'):
        I(f'v_mov_b32 {v(t)}, {v(r)}')
        I(f'{sw} {v(t)}, {v(r)}')
        I(f'{op} {v(r)}, {v(r)}, {v(t)}')


def scalar_poll(offsets):
    lab, done = a.newlabel('L_sp'), a.newlabel('L_spd')
    R = [61, 62, 63, 96, 97, 98, 99, 100]
    I(f's_mov_b32 {s(sCNT)}, {args.spin}')
    a.label(lab)
    for k, o in enumerate(offsets):
        I(f's_load_dword {s(R[k])}, {P(sB)}, {o} glc')
    I(f's_sub_u32 {s(sCNT)}, {s(sCNT)}, 1')
    I(f's_cbranch_scc1 {done}')
    I('s_waitcnt lgkmcnt(0)')
    I(f's_xor_b32 {s(sT0)}, {s(R[0])}, {s(sEP)}')
    for k in range(1, len(offsets)):
        I(f's_xor_b32 {s(sT1)}, {s(R[k])}, {s(sEP)}')
        I(f's_or_b32 {s(sT0)}, {s(sT0)}, {s(sT1)}')
    I(f's_cbranch_scc1 {lab}')
    a.label(done)
    I('s_waitcnt lgkmcnt(0)')


def flag_add(idx, base=VFL):
    I('s_mov_b64 exec, 1')
    I(f'ds_add_u32 {v(base)}, {v(VONE)} offset:{4 * idx}')
    I('s_mov_b64 exec, -1')


def flag_wait(idx, n, base=VFL):
    lab, done = a.newlabel('L_fw'), a.newlabel('L_fwd')
    if args.bo and idx in (F_F0, C_ISS, F_H2, C_ST, C_ACK, K0):
        l2 = a.newlabel('L_fw')
        a.B(f's_branch {l2}')
        a.label(lab)
        I(f's_sleep {args.bo}')
        a.label(l2)
    else:
        a.label(lab)
    I(f'ds_read_b32 {v(VFT)}, {v(base)} offset:{4 * idx}')
    I(f's_sub_u32 {s(sFC)}, {s(sFC)}, 1')
    I('s_waitcnt lgkmcnt(0)')
    I(f'v_cmp_gt_u32 vcc, {n}, {v(VFT)}')
    a.B(f's_cbranch_scc1 {done}')
    a.B(f's_cbranch_vccnz {lab}')
    a.label(done)
    I(f's_max_i32 {s(sFC)}, {s(sFC)}, 0')


def build_masks(M, t0, t1):
    I(f'v_and_b32 {v(t0)}, 1, v1')
    I(f'v_lshlrev_b32 {v(t0)}, 4, {v(t0)}')
    I(f'v_mov_b32 {v(t1)}, 0xffff')
    I(f'v_lshlrev_b32 {v(t1)}, {v(t0)}, {v(t1)}')
    I(f'v_bfe_u32 {v(t0)}, v1, 1, 2')
    for r in range(4):
        I(f'v_cmp_eq_u32 vcc, {r}, {v(t0)}')
        I(f'v_cndmask_b32 {v(M + r)}, 0, {v(t1)}, vcc')


BF, ACC, PF = 128, 96, 80
AT, SEL, XP, ACC0, REC = 72, 32, 80, 88, 92


def build_sel():
    I('''
    v_and_b32 v6, 1, v1
    v_cmp_eq_u32 vcc, 1, v6
    v_mov_b32 v7, 0x0c0c0100
    v_mov_b32 v8, 0x01000c0c
    v_cndmask_b32 v7, v7, v8, vcc
    v_mov_b32 v8, 0x0c0c0302
    v_mov_b32 v9, 0x03020c0c
    v_cndmask_b32 v8, v8, v9, vcc
    v_mov_b32 v9, 0x0c0c0c0c
    v_bfe_u32 v6, v1, 1, 2
    ''')
    for r in range(4):
        I(f'v_cmp_eq_u32 vcc, {r}, v6')
        I(f'v_cndmask_b32 {v(SEL + r)}, v9, v7, vcc')
        I(f'v_cndmask_b32 {v(SEL + 4 + r)}, v9, v8, vcc')


def diag_stage(n, W):
    def perms(k):
        for r in range(4):
            I(f'v_perm_b32 {v(AT + 4 * (k & 1) + r)}, {v(XP + (k >> 1))}, {v(XP + (k >> 1))}, {v(SEL + 4 * (k & 1) + r)}')
    perms(0)
    for k in range(n):
        if k < n - 1:
            perms(k + 1)
        else:
            I(f'v_mov_b32 {v(REC + 2)}, {s(sEP)}')
            I(f'v_mov_b32 {v(REC + 3)}, {s(sEP)}')
        I(f's_waitcnt vmcnt({n - 1 - k})')
        I(f'{MFMA} {v(ACC0, 4)}, {v(AT + 4 * (k & 1), 4)}, {v(W + 4 * k, 4)}, {"0" if k == 0 else v(ACC0, 4)}')


TA = 16


def tr_addr():
    I(f'''
    v_lshrrev_b32 v4, 2, v0
    v_lshlrev_b32 v4, 8, v4
    v_and_b32 v5, 31, v0
    v_lshl_add_u32 v4, v5, 3, v4
    s_lshl_b32 {s(sT0)}, {s(sW)}, 15
    v_add_u32 v4, {s(sT0)}, v4
    ''')


CK = 44
EMB = 0x00010001
HASH = 0x9e3779b1


def pv_setup():
    for i in range(4):
        I(f's_sub_u32 {s(sT0)}, {s(sW)}, {i}')
        I(f's_and_b32 {s(sT0)}, {s(sT0)}, 3')
        I(f's_lshl_b32 {s(sT0)}, {s(sT0)}, 10')
        I(f's_add_u32 {s(sT0)}, {s(sT0)}, {L_P}')
        I(f'v_add_u32 {v(48 + i)}, {s(sT0)}, v3')
    I(f"""
    s_lshl_b32 {s(sT0)}, {s(sGA)}, 6
    s_add_u32 {s(sT0)}, {s(sT0)}, {s(sW)}
    s_lshl_b32 {s(sT0)}, {s(sT0)}, 7
    s_add_u32 {s(sT0)}, {s(sT0)}, {s(sS)}
    s_lshl_b32 {s(sT1)}, {s(sT0)}, 8
    s_add_u32 {s(sT1)}, {s(sT1)}, {W_H3}
    v_lshlrev_b32 v52, 19, v2
    v_lshl_add_u32 v52, v1, 4, v52
    v_add_u32 v52, {s(sT1)}, v52
    s_mov_b32 {s(sT2)}, 0x20000
    v_add_u32 v53, {s(sT2)}, v52
    v_add_u32 v54, {s(sT2)}, v53
    v_add_u32 v55, {s(sT2)}, v54
    v_lshlrev_b32 v42, 4, v2
    v_lshl_add_u32 v43, v1, 6, v42
    v_add_u32 v43, {L_LS}, v43
    v_add_u32 v42, {L_MF}, v42
    s_mul_i32 {s(sK0)}, {s(sEP)}, {HASH}
    s_mov_b32 {s(sK1)}, {EMB}
    s_mov_b32 {s(sK2)}, {~EMB & 0xffffffff}
    """)


def tr_slot(i):
    I(f's_sub_u32 {s(sT0)}, {s(sW)}, {i}')
    I(f's_and_b32 {s(sT0)}, {s(sT0)}, 3')
    I(f's_lshl_b32 {s(sT1)}, {s(sT0)}, 13')
    I(f'v_lshl_add_u32 v5, {s(sT0)}, 2, {v(VFL)}')
    I(f'v_add_u32 {v(TA)}, {s(sT1)}, v4')
    for T in range(1, 8):
        I(f'v_xor_b32 {v(TA + T)}, {32 * T}, {v(TA)}')
    flag_wait(K0, i + 1, 5)
    for T in range(8):
        for tau in range(2):
            I(f'ds_read_b64_tr_b16 {v(BF + (i * 8 + T) * 4 + 2 * tau, 2)}, {v(TA + T)} offset:{tau * 4096}')


def round_pairs(base, n, tmp):
    for i in range(n // 2):
        I(f'v_cvt_pk_bf16_f32 {v(tmp + i)}, {v(base + 2 * i)}, {v(base + 2 * i + 1)}')
    for i in range(n // 2):
        I(f'v_lshlrev_b32 {v(base + 2 * i)}, 16, {v(tmp + i)}')
        I(f'v_and_b32 {v(base + 2 * i + 1)}, {s(sT3)}, {v(tmp + i)}')


hdr = open('cdna_kernels/%s.s.ref' % NAME).read().split('; Override launch geometry')[0]
a.raw(hdr.rstrip())
a.raw(f'; @launch grid=(256,1,1) block=(512,1,1) lds={L_END}')
a.raw('.amdgcn_target "amdgcn-amd-amdhsa--gfx950"')
a.raw('.text')
a.raw(f'.globl {NAME}_kernel')
a.raw('.p2align 8')
a.raw(f'.type {NAME}_kernel,@function')
a.label(f'{NAME}_kernel')
a.label('L_start')
I('s_load_dwordx16 s[4:19], s[0:1], 0')
I('s_load_dwordx8 s[20:27], s[0:1], 64')
I('s_load_dwordx4 s[28:31], s[0:1], 96')
I(f's_getpc_b64 {P(sB)}')
a.label('L_pc')
I('s_cmp_ge_u32 s2, 0x100')
I('s_cbranch_scc1 L_end')
TS(0)
I(f'''
v_lshrrev_b32 v3, 6, v0
v_lshrrev_b32 v4, 5, v0
s_lshr_b32 {s(sY)}, s2, 3
s_and_b32 {s(sT1)}, {s(sY)}, 7
s_lshl_b32 {s(sT1)}, {s(sT1)}, 11
v_lshl_add_u32 v4, v4, 7, {s(sT1)}
v_min_u32 v4, L_end-L_pc, v4
s_mov_b32 exec_lo, 1
s_mov_b32 exec_hi, 1
global_load_dword v15, v4, {P(sB)}
s_mov_b64 exec, -1
v_readfirstlane_b32 {s(sWV)}, v3
v_and_b32 v0, 63, v0
v_and_b32 v1, 15, v0
v_lshrrev_b32 v2, 4, v0
s_and_b32 {s(sX)}, s2, 7
s_lshr_b32 {s(sGA)}, {s(sY)}, 4
s_xor_b32 {s(sGA)}, {s(sGA)}, 1
s_and_b32 {s(sT0)}, {s(sY)}, 15
s_lshl4_add_u32 {s(sS)}, {s(sX)}, {s(sT0)}
s_and_b32 {s(sW)}, {s(sWV)}, 3
v_lshlrev_b32 v3, 4, v0
v_mov_b32 {v(VFL)}, {L_FL}
v_mov_b32 {v(VONE)}, 1
s_mov_b32 {s(sFC)}, 0x200000
s_cmp_ge_u32 {s(sWV)}, 4
''')
a.B('s_cbranch_scc1 L_S')
I(f'''
s_lshl_b32 {s(sT0)}, {s(sJ)}, 19
s_lshl_b32 {s(sT1)}, {s(sH)}, 8
s_add_u32 {s(sT0)}, {s(sT0)}, {s(sT1)}
s_cmp_eq_u32 {s(sWV)}, 1
''')
a.B('s_cbranch_scc1 L_F1')
I(f's_cmp_eq_u32 {s(sWV)}, 2')
a.B('s_cbranch_scc1 L_F2')
I(f's_cmp_eq_u32 {s(sWV)}, 3')
a.B('s_cbranch_scc1 L_F3')

Wq, XR = 128, 120
I(f'''
v_lshlrev_b32 v5, 17, v2
v_lshl_add_u32 v5, v1, 4, v5
v_add_u32 v5, {s(sT0)}, v5
s_movk_i32 {s(sT2)}, 0x2000
s_waitcnt lgkmcnt(0)
''')
I(f'global_load_dwordx4 {v(XR, 4)}, v3, {P(pX)}')
for k in range(16):
    I(f'global_load_dwordx4 {v(Wq + 4 * k, 4)}, v5, {P(pWQ)}{NT}')
    if k < 15:
        I(f'v_add_u32 v5, {s(sT2)}, v5')
if args.bpos == 0:
    I('s_barrier')
load_epoch()
TS(1)
build_sel()
I(f'''
v_add_u32 v10, {L_XN}, v3
s_lshl_b32 {s(sT0)}, {s(sJ)}, 7
s_add_u32 {s(sT0)}, {s(sT0)}, {L_XN}
v_lshl_add_u32 v11, v2, 5, {s(sT0)}
s_lshl_b32 {s(sT0)}, s2, 9
s_add_u32 {s(sT0)}, {s(sT0)}, {W_H1}
v_add_u32 v12, {s(sT0)}, v3
s_mov_b32 {s(sT3)}, 0xffff0000
s_mov_b32 {s(sK0)}, 0x07060501
s_mov_b32 {s(sK1)}, 0x07060502
s_mov_b32 {s(sK2)}, 0x07060503
''')
F, Dd, t0, t1, t2, t3, PK = 96, 104, 112, 113, 114, 115, 116
I('s_waitcnt vmcnt(16)')
if args.bpos == 1:
    I('s_barrier')
TS(2)
for i in range(4):
    I(f'v_lshlrev_b32 {v(F + 2 * i)}, 16, {v(XR + i)}')
    I(f'v_and_b32 {v(F + 2 * i + 1)}, {s(sT3)}, {v(XR + i)}')
I(f'''
v_add_f32 {v(t0)}, {v(F)}, {v(F + 1)}
v_add_f32 {v(t1)}, {v(F + 2)}, {v(F + 3)}
v_add_f32 {v(t2)}, {v(F + 4)}, {v(F + 5)}
v_add_f32 {v(t3)}, {v(F + 6)}, {v(F + 7)}
v_add_f32 {v(t0)}, {v(t0)}, {v(t1)}
v_add_f32 {v(t2)}, {v(t2)}, {v(t3)}
v_add_f32 {v(t0)}, {v(t0)}, {v(t2)}
''')
row_allreduce('v_add_f32', [t0])
I(f'v_add_f32 {v(t0)}, {v(t0)}, {v(t0)} row_bcast:15 row_mask:0xa')
I(f'v_add_f32 {v(t0)}, {v(t0)}, {v(t0)} row_bcast:31 row_mask:0xc')
I(f'v_mov_b32 {v(t1)}, 0x3b000000')
I(f'v_readlane_b32 {s(sT0)}, {v(t0)}, 63')
I(f'v_mul_f32 {v(t1)}, {s(sT0)}, {v(t1)}')
for i in range(8):
    I(f'v_sub_f32 {v(Dd + i)}, {v(F + i)}, {v(t1)}')
I(f'v_mul_f32 {v(t0)}, {v(Dd)}, {v(Dd)}')
I(f'v_mul_f32 {v(t2)}, {v(Dd + 1)}, {v(Dd + 1)}')
for i in range(2, 8, 2):
    I(f'v_fmac_f32 {v(t0)}, {v(Dd + i)}, {v(Dd + i)}')
    I(f'v_fmac_f32 {v(t2)}, {v(Dd + i + 1)}, {v(Dd + i + 1)}')
I(f'v_add_f32 {v(t0)}, {v(t0)}, {v(t2)}')
I(f'v_cvt_pk_bf16_f32 {v(t1)}, {v(t1)}, {v(t1)}')
I(f'v_and_b32 {v(t1)}, {s(sT3)}, {v(t1)}')
row_allreduce('v_add_f32', [t0], steps=(8,))
for i in range(0, 4):
    I(f'v_sub_f32 {v(Dd + i)}, {v(F + i)}, {v(t1)}')
row_allreduce('v_add_f32', [t0], steps=(4,))
for i in range(4, 8):
    I(f'v_sub_f32 {v(Dd + i)}, {v(F + i)}, {v(t1)}')
row_allreduce('v_add_f32', [t0], steps=(2,))
for i in range(0, 2):
    I(f'v_cvt_pk_bf16_f32 {v(PK + i)}, {v(Dd + 2 * i)}, {v(Dd + 2 * i + 1)}')
row_allreduce('v_add_f32', [t0], steps=(1,))
for i in range(2, 4):
    I(f'v_cvt_pk_bf16_f32 {v(PK + i)}, {v(Dd + 2 * i)}, {v(Dd + 2 * i + 1)}')
I(f'v_add_f32 {v(t0)}, {v(t0)}, {v(t0)} row_bcast:15 row_mask:0xa')
for i in range(0, 2):
    I(f'v_lshlrev_b32 {v(Dd + 2 * i)}, 16, {v(PK + i)}')
    I(f'v_and_b32 {v(Dd + 2 * i + 1)}, {s(sT3)}, {v(PK + i)}')
I(f'v_add_f32 {v(t0)}, {v(t0)}, {v(t0)} row_bcast:31 row_mask:0xc')
for i in range(2, 4):
    I(f'v_lshlrev_b32 {v(Dd + 2 * i)}, 16, {v(PK + i)}')
    I(f'v_and_b32 {v(Dd + 2 * i + 1)}, {s(sT3)}, {v(PK + i)}')
I(f'v_mov_b32 {v(t1)}, 0x3b000000')
I(f'v_readlane_b32 {s(sT0)}, {v(t0)}, 63')
I(f'''
v_mul_f32 {v(t1)}, {s(sT0)}, {v(t1)}
v_cvt_pk_bf16_f32 {v(t1)}, {v(t1)}, {v(t1)}
v_and_b32 {v(t1)}, {s(sT3)}, {v(t1)}
v_add_f32 {v(t1)}, 0x3727c5ac, {v(t1)}
v_cvt_pk_bf16_f32 {v(t1)}, {v(t1)}, {v(t1)}
v_and_b32 {v(t1)}, {s(sT3)}, {v(t1)}
v_sqrt_f32 {v(t1)}, {v(t1)}
v_cvt_pk_bf16_f32 {v(t1)}, {v(t1)}, {v(t1)}
v_and_b32 {v(t1)}, {s(sT3)}, {v(t1)}
v_rcp_f32 {v(t1)}, {v(t1)}
''')
for i in range(8):
    I(f'v_mul_f32 {v(Dd + i)}, {v(Dd + i)}, {v(t1)}')
for i in range(4):
    I(f'v_cvt_pk_bf16_f32 {v(PK + i)}, {v(Dd + 2 * i)}, {v(Dd + 2 * i + 1)}')
I(f'ds_write_b128 v10, {v(PK, 4)}')
I(f'ds_read_b128 {v(XP, 4)}, v11')
I(f'ds_read_b128 {v(XP + 4, 4)}, v11 offset:16')
epoch_ready()
TS(3)
diag_stage(16, Wq)
for i in range(3):
    I(f'v_perm_b32 {v(REC + i)}, {v(ACC0 + i)}, {v(ACC0 + 3)}, {s(sK0 + i)}')
I('s_mov_b32 exec_hi, 0')
I(f'global_store_dwordx4 v12, {v(REC, 4)}, {P(pWS)} sc1')
I(f'ds_write_b128 v10, {v(ACC0, 4)} offset:{L_CX - L_XN}')
TS(4)
flag_add(F_F0)
I('s_branch L_QG')

a.label('L_F1')
WK, G1, QF, DK = 128, 192, 96, 112
I(f'''
v_lshlrev_b32 v6, 1, v2
v_xor_b32 v6, v6, v1
v_lshlrev_b32 v5, 13, v2
v_lshl_add_u32 v5, v6, 4, v5
v_add_u32 v5, {s(sT0)}, v5
v_xor_b32 v6, 0x80, v5
v_add_u32 v6, 0x20000, v6
s_mov_b32 {s(sT2)}, 0x40000
s_mov_b32 {s(sT3)}, {(-28 * 8192) & 0xffffffff}
s_mov_b32 m0, {L_QA}
s_waitcnt lgkmcnt(0)
''')
load_epoch()
I('s_barrier')
for k in range(16):
    I(f'global_load_lds_dwordx4 {"v6" if k & 1 else "v5"}, {P(pWUK)}{NT}')
    if k < 15:
        I('s_add_u32 m0, m0, 0x400')
    if k < 14:
        I(f'v_add_u32 {"v6" if k & 1 else "v5"}, {s(sT3 if k & 2 else sT2)}, {"v6" if k & 1 else "v5"}')
TS(1)
I(f'''
v_and_b32 v5, 7, v1
v_lshlrev_b32 v5, 1, v5
v_xor_b32 v5, v5, v2
v_lshlrev_b32 v5, 4, v5
v_lshl_add_u32 v5, v1, 8, v5
v_add_u32 v24, {L_QA}, v5
v_xor_b32 v25, 64, v24
v_xor_b32 v26, 0x80, v24
v_xor_b32 v27, 0xc0, v24
s_lshl_b32 {s(sT0)}, {s(sH)}, 12
s_add_u32 {s(sT0)}, {s(sT0)}, {W_H1}
v_add_u32 v8, {s(sT0)}, v3
s_lshl_b32 {s(sT1)}, {s(sJ)}, 9
v_add_u32 v6, {s(sT1)}, v3
s_movk_i32 {s(sT1)}, 0xfff
v_and_b32 v16, {s(sT1)}, v6
v_add_u32 v6, 0x400, v6
v_and_b32 v17, {s(sT1)}, v6
v_add_u32 v6, 0x400, v6
v_and_b32 v18, {s(sT1)}, v6
v_add_u32 v6, 0x400, v6
v_and_b32 v19, {s(sT1)}, v6
v_add_u32 v32, {s(sT0)}, v16
v_add_u32 v33, {s(sT0)}, v17
v_add_u32 v34, {s(sT0)}, v18
v_add_u32 v35, {s(sT0)}, v19
v_add_u32 v9, {L_CX}, v3
v_and_b32 v10, 1, v2
v_lshlrev_b32 v10, 1, v10
v_lshrrev_b32 v11, 1, v2
v_add_u32 v10, v10, v11
v_lshl_add_u32 v10, v1, 2, v10
v_lshlrev_b32 v10, 2, v10
v_add_u32 v10, {L_CL}, v10
v_lshlrev_b32 v11, 4, v2
v_add_u32 v11, {L_CL}, v11
s_lshl_b32 {s(sT0)}, s2, 8
s_add_u32 {s(sT0)}, {s(sT0)}, {W_H2}
v_lshl_add_u32 v12, v2, 2, v1
v_lshl_add_u32 v12, v12, 4, {s(sT0)}
v_cmp_eq_u32 {P(sM1)}, 1, v1
v_cmp_eq_u32 {P(sM2)}, 2, v1
v_cmp_eq_u32 {P(sM3)}, 3, v1
s_mov_b32 {s(sK0)}, 0x0c04000c
s_mov_b32 {s(sK1)}, 0x0402010c
''')
epoch_ready()
I(f'v_mov_b32 v22, {s(sEP)}')
I(f'v_mov_b32 v23, {s(sEP)}')
I('s_setprio 1')
NP = args.np
for p_ in range(NP):
    I(f'v_mov_b32 {v(G1 + 16 * p_ + 3)}, v22')
    for e in range(3):
        I(f'v_mov_b32 {v(G1 + 16 * p_ + e)}, 0')


def h1_loads(p_):
    for k in range(4):
        if k == 0:
            I('s_mov_b32 exec_lo, 0')
        I(f'global_load_dwordx4 {v(G1 + 16 * p_ + 4 * k, 4)}, {v(32 + k)}, {P(pWS)} sc1')
        if k == 0:
            I('s_mov_b32 exec_lo, -1')


if args.hint1:
    assert NP == 1
    I(f's_lshl_b32 {s(sT0)}, {s(sH)}, 12')
    I(f's_add_u32 {s(sT0)}, {s(sT0)}, {W_H1 + 508}')
    I(f's_add_u32 {s(sB)}, {s(pWS)}, {s(sT0)}')
    I(f's_addc_u32 {s(sB + 1)}, {s(pWS + 1)}, 0')
    HO = [4, 5, 6, 7, 8, 9, 12]
    for k in range(7):
        I(f's_add_u32 {s(HO[k])}, {s(sJ)}, {k + 1}')
        I(f's_and_b32 {s(HO[k])}, {s(HO[k])}, 7')
        I(f's_lshl_b32 {s(HO[k])}, {s(HO[k])}, 9')
    scalar_poll([s(r) for r in HO])
else:
    I('s_waitcnt vmcnt(4)')
TS(2)
h1_loads(0)
I('s_waitcnt vmcnt(4)')
for tau in range(4):
    for t in range(4):
        I(f'ds_read_b128 {v(WK + 16 * tau + 4 * t, 4)}, {v(24 + t)} offset:{4096 * tau}')
for p_ in range(1, NP):
    if p_ > 1 and args.sl:
        I(f's_sleep {args.sl}')
    h1_loads(p_)
I(f's_mov_b32 {s(sCNT)}, {args.spin}')
a.label('L_F1_poll')
for p_ in range(NP):
    G = G1 + 16 * p_
    I(f's_sub_u32 {s(sCNT)}, {s(sCNT)}, 1')
    I(f's_waitcnt vmcnt({4 * (NP - 1)})')
    I(f'v_xor_b32 v16, {v(G + 3)}, v22')
    for k in range(1, 4):
        I(f'v_bitop3_b32 v16, {v(G + 4 * k + 3)}, v22, v16 bitop3:0xbe')
    I('v_cmp_ne_u32 vcc, 0, v16')
    a.B(f's_cbranch_scc1 L_F1_go{p_}')
    a.B(f's_cbranch_vccz L_F1_go{p_}')
    h1_loads(p_)
I('s_branch L_F1_poll')
Q4 = 40
for p_ in reversed(range(NP)):
    G = G1 + 16 * p_
    a.label(f'L_F1_go{p_}')
    for k in range(4):
        I(f'v_perm_b32 {v(G + 4 * k + 3)}, {v(G + 4 * k + 1)}, {v(G + 4 * k)}, {s(sK0)}')
    for k in range(4):
        I(f'v_perm_b32 {v(G + 4 * k + 3)}, {v(G + 4 * k + 2)}, {v(G + 4 * k + 3)}, {s(sK1)}')
    for k in range(2):
        for e in range(4):
            I(f'v_add_f32 {v(G + 4 * k + e)}, {v(G + 4 * k + e)}, {v(G + 4 * (k + 2) + e)}')
    for e in range(4):
        I(f'v_add_f32 {v(Q4 + e)}, {v(G + e)}, {v(G + 4 + e)}')
    if p_:
        I('s_branch L_F1_go')
a.label('L_F1_go')
flag_wait(F_F0, 1)
I(f'ds_read_b128 {v(Q4 + 4, 4)}, v9')
TS(3)
TSN()
I('s_waitcnt lgkmcnt(0)')
I('s_mov_b32 exec_hi, 0')
for e in range(4):
    I(f'v_add_f32 {v(Q4 + e)}, {v(Q4 + e)}, {v(Q4 + 4 + e)}')
I('s_mov_b64 exec, -1')
G1 = Q4
I(f'v_permlane32_swap_b32 {v(G1)}, {v(G1 + 2)}')
I(f'v_permlane32_swap_b32 {v(G1 + 1)}, {v(G1 + 3)}')
I(f'v_add_f32 {v(G1)}, {v(G1)}, {v(G1 + 2)}')
I(f'v_add_f32 {v(G1 + 1)}, {v(G1 + 1)}, {v(G1 + 3)}')
I(f'v_cvt_pk_bf16_f32 v16, {v(G1)}, {v(G1 + 1)}')
I('ds_write_b32 v10, v16')
for t in range(4):
    I(f'ds_read_b128 {v(QF + 4 * t, 4)}, v11 offset:{64 * t}')
for t in range(4):
    I(f's_waitcnt lgkmcnt({3 - t})')
    for tau in range(4):
        I(f'{MFMA} {v(DK + 4 * tau, 4)}, {v(WK + 16 * tau + 4 * t, 4)}, {v(QF + 4 * t, 4)}, {"0" if t == 0 else v(DK + 4 * tau, 4)}')
for tau in range(4):
    I(f'v_cvt_pk_bf16_f32 {v(24 + 2 * tau)}, {v(DK + 4 * tau)}, {v(DK + 4 * tau + 1)}')
    I(f'v_cvt_pk_bf16_f32 {v(25 + 2 * tau)}, {v(DK + 4 * tau + 2)}, {v(DK + 4 * tau + 3)}')
    if tau == 1:
        I(f'v_cndmask_b32 v20, v24, v26, {P(sM1)}')
        I(f'v_cndmask_b32 v21, v25, v27, {P(sM1)}')
    if tau == 2:
        I(f'v_cndmask_b32 v20, v20, v28, {P(sM2)}')
        I(f'v_cndmask_b32 v21, v21, v29, {P(sM2)}')
I(f'v_cndmask_b32 v20, v20, v30, {P(sM3)}')
I(f'v_cndmask_b32 v21, v21, v31, {P(sM3)}')
I('s_mov_b32 exec_lo, 0x000f000f')
I('s_mov_b32 exec_hi, 0x000f000f')
I(f'global_store_dwordx4 v12, v[20:23], {P(pWS)} sc1')
TS(4)
I('s_setprio 0')
flag_add(F_H2)
I('s_waitcnt vmcnt(0)')
flag_add(F_H2)
a.label('L_PV1')
tr_addr()
pv_setup()
for i in range(args.pre):
    tr_slot(i)
I('s_branch L_PVs')

a.label('L_F3')
W1R, W2R, HFG, B1R, FA, MK3 = 128, 160, 24, 28, 96, 40
I('v_lshlrev_b32 v11, 3, v0')
I(f'v_add_u32 v11, {L_FF}, v11')
I('s_waitcnt lgkmcnt(0)')
load_epoch()
I('s_barrier')
epoch_ready()
I('s_cmp_ge_u32 s2, 224')
I('s_cbranch_scc1 L_PV1')
build_sel()
I(f'''
s_and_b32 {s(sT3)}, s2, 15
s_mul_i32 {s(sT0)}, {s(sT3)}, {32 * 3584}
s_lshr_b32 {s(sT1)}, s2, 4
s_lshl_b32 {s(sT1)}, {s(sT1)}, 8
s_add_u32 {s(sT0)}, {s(sT0)}, {s(sT1)}
v_mul_u32_u24 v8, {8 * 3584}, v2
v_lshl_add_u32 v8, v1, 4, v8
v_add_u32 v8, {s(sT0)}, v8
s_movk_i32 {s(sT2)}, {2 * 3584}
s_lshl_b32 {s(sT3)}, {s(sT3)}, 6
s_add_u32 {s(sT0)}, {s(sT3)}, {L_XN}
v_lshl_add_u32 v10, v2, 4, {s(sT0)}
s_lshl_b32 {s(sT0)}, {s(sT1)}, 6
s_add_u32 {s(sT0)}, {s(sT0)}, {s(sT3)}
s_lshl_b32 {s(sT0)}, {s(sT0)}, 1
s_add_u32 {s(sT0)}, {s(sT0)}, {W_HF}
v_lshrrev_b32 v29, 2, v0
v_lshlrev_b32 v12, 11, v29
v_and_b32 v9, 3, v0
v_lshl_add_u32 v12, v9, 4, v12
v_add_u32 v12, {s(sT0)}, v12
v_cmp_gt_u32 {P(sM1)}, v0, 31
s_and_b32 {s(sT0)}, s2, 3
s_lshl_b32 {s(sT0)}, {s(sT0)}, 6
s_add_u32 {s(sT0)}, {s(sT0)}, {s(sT1)}
s_bfe_u32 {s(sT1)}, s2, 0x10002
s_lshl3_add_u32 {s(sT0)}, {s(sT1)}, {s(sT0)}
s_bfe_u32 {s(sT1)}, s2, 0x10003
s_lshl2_add_u32 {s(sT0)}, {s(sT1)}, {s(sT0)}
v_lshl_add_u32 v6, v9, 4, {s(sT0)}
s_lshl_b32 {s(sT0)}, s2, 11
s_add_u32 {s(sT0)}, {s(sT0)}, {W_HF}
v_lshlrev_b32 v9, 4, v9
v_lshl_add_u32 v9, v29, 7, v9
v_add_u32 v9, {s(sT0)}, v9
s_mov_b32 {s(sT3)}, 0xffff0000
''')
flag_wait(F_H2 if args.w1 else F_F0, 1)
I(f'ds_read_b128 {v(XP, 4)}, v10')
I(f'global_load_dword {v(B1R)}, v6, {P(pB1)}')
for k in range(8):
    I(f'global_load_dwordx4 {v(W1R + 4 * k, 4)}, v8, {P(pW1)} offset:{3584 * (k & 1)}{NT}')
    if k & 1 and k < 7:
        I(f'v_add_u32 v8, {s(sT2)}, v8')
I('s_waitcnt lgkmcnt(0)')
diag_stage(8, W1R)
I(f'v_cndmask_b32 {v(REC)}, {v(ACC0)}, {v(ACC0 + 2)}, {P(sM1)}')
I(f'v_cndmask_b32 {v(REC + 1)}, {v(ACC0 + 1)}, {v(ACC0 + 3)}, {P(sM1)}')
I(f'global_store_dwordx4 v12, {v(REC, 4)}, {P(pWS)} sc1')
TS(2)
I(f's_mov_b32 {s(sCNT)}, {args.spin}')
flag_wait(F_H2, 2)
a.label('L_TF')
I(f'global_load_dwordx4 {v(HFG, 4)}, v9, {P(pWS)} sc1')
I(f's_sub_u32 {s(sCNT)}, {s(sCNT)}, 1')
I('s_waitcnt vmcnt(0)')
I(f'v_cmp_ne_u32 vcc, {v(HFG + 2)}, {v(REC + 2)}')
a.B('s_cbranch_scc1 L_TF_go')
a.B('s_cbranch_vccnz L_TF')
a.label('L_TF_go')
TSN()
row_allreduce('v_add_f32', [HFG, HFG + 1], steps=(4, 8))
I(f'''
v_permlane32_swap_b32 {v(HFG)}, {v(HFG + 1)}
v_add_f32 {v(HFG)}, {v(HFG)}, {v(HFG + 1)}
v_mov_b32 {v(HFG + 1)}, {v(HFG)}
v_permlane16_swap_b32 {v(HFG)}, {v(HFG + 1)}
v_lshlrev_b32 v16, 16, {v(B1R)}
v_add_f32 {v(HFG)}, {v(HFG)}, {v(HFG + 1)}
v_and_b32 v17, {s(sT3)}, {v(B1R)}
v_cvt_pk_bf16_f32 {v(HFG)}, {v(HFG)}, {v(HFG)}
v_cndmask_b32 v16, v16, v17, {P(sM1)}
v_and_b32 {v(HFG)}, {s(sT3)}, {v(HFG)}
v_add_f32 {v(HFG)}, {v(HFG)}, v16
v_cvt_pk_bf16_f32 {v(HFG)}, {v(HFG)}, {v(HFG)}
v_and_b32 {v(HFG)}, {s(sT3)}, {v(HFG)}
v_max_f32 {v(HFG)}, 0, {v(HFG)}
v_mul_f32 {v(HFG)}, {v(HFG)}, {v(HFG)}
v_cvt_pk_bf16_f32 {v(HFG)}, {v(HFG)}, {v(HFG)}
v_mov_b32 {v(HFG + 1)}, {v(HFG)}
v_permlane32_swap_b32 {v(HFG)}, {v(HFG + 1)}
''')
for g_ in range(4):
    for i in range(2):
        I(f'v_mov_b32 {v(HFG + 2 + i)}, {v(HFG + i)} row_newbcast:{g_} row_mask:{1 << g_}')
I(f'ds_write_b64 v11, {v(HFG + 2, 2)}')
TS(4)
I('s_branch L_PV1')

a.label('L_F2')
I(f'''
v_mov_b32 v16, 0
v_mov_b32 v17, 0
v_mov_b32 v18, 0
v_mov_b32 v19, 0
ds_write_b128 {v(VFL)}, v[16:19]
ds_write_b128 {v(VFL)}, v[16:19] offset:16
ds_write_b128 {v(VFL)}, v[16:19] offset:32
ds_write_b128 {v(VFL)}, v[16:19] offset:48
''')
I('v_and_b32 v5, 3, v0')
I('v_lshlrev_b32 v5, 21, v5')
I('s_waitcnt lgkmcnt(0)')
load_epoch()
if args.touch != 2:
    I('s_barrier')
I('s_mov_b64 exec, 7')
I(f'global_load_dword v22, v5, {P(pWS)} offset:256')
I('s_mov_b64 exec, 3')
if args.touch:
    I(f'global_load_dword v24, v5, {P(pWUV)}')
    I(f'global_load_dword v25, v5, {P(pWO)}')
I('s_mov_b64 exec, 1')
I(f'global_load_dword v23, v16, {P(pOUT)}')
if args.touch:
    for k, p in enumerate((pW1, pW2, pB1, pB2)):
        I(f'global_load_dword {v(26 + k)}, v16, {P(p)}')
I('s_mov_b64 exec, -1')
if args.touch == 2:
    I('s_barrier')
epoch_ready()


a.label('L_QG')
G2, LA = 64, 56
I(f'''
s_lshr_b32 {s(sT1)}, {s(sWV)}, 1
s_lshl1_add_u32 {s(sT0)}, {s(sGA)}, {s(sT1)}
s_lshl_b32 {s(sT0)}, {s(sT0)}, 14
s_add_u32 {s(sT0)}, {s(sT0)}, {W_H2}
v_add_u32 v8, {s(sT0)}, v3
v_add_u32 v9, 0x1000, v8
v_add_u32 v10, 0x2000, v8
v_add_u32 v11, 0x3000, v8
v_lshrrev_b32 v6, 1, v0
v_lshlrev_b32 v6, 8, v6
v_lshl_add_u32 v6, v1, 3, v6
s_lshl_b32 {s(sT1)}, {s(sT1)}, 7
s_add_u32 {s(sT1)}, {s(sT1)}, {L_QA}
v_add_u32 {v(LA)}, {s(sT1)}, v6
''')
for hd in range(1, 8):
    I(f'v_xor_b32 {v(LA + hd)}, {16 * hd}, {v(LA)}')
tr_addr()
pv_setup()
I(f'v_mov_b32 v12, {s(sEP)}')
I('s_setprio 1')
if args.qa:
    flag_wait(C_ISS, 4)
flag_wait(F_H2, 1 + args.h2)
if args.hint2:
    I(f's_cmp_eq_u32 {s(sWV)}, 0')
    I('s_cbranch_scc1 L_QG_w0')
    I(f's_xor_b32 {s(sT0)}, {s(sY)}, 16')
    I(f's_lshl_b32 {s(sT0)}, {s(sT0)}, 11')
    I(f's_add_u32 {s(sT0)}, {s(sT0)}, {W_H2}')
    I(f's_add_u32 {s(sB)}, {s(pWS)}, {s(sT0)}')
    I(f's_addc_u32 {s(sB + 1)}, {s(pWS + 1)}, 0')
    scalar_poll([k * 256 + 252 for k in range(8)])
    flag_add(F_HINT)
    I('s_branch L_QG_hd')
    a.label('L_QG_w0')
    flag_wait(F_HINT, 1)
    a.label('L_QG_hd')
TS(10)


for k in range(16):
    I(f'global_load_dwordx4 {v(G2 + 4 * k, 4)}, {v(8 + (k >> 2))}, {P(pWS)} offset:{(k & 3) * 1024} sc1')
for i in range(args.pre):
    tr_slot(i)
I(f's_mov_b32 {s(sCNT)}, {args.spin}')
a.label('L_QG_chk')
I('v_mov_b32 v6, 0')
for k in range(16):
    I(f's_waitcnt vmcnt({15 - k})')
    I(f'ds_write_b64 {v(LA + (k >> 1))}, {v(G2 + 4 * k, 2)} offset:{(k & 1) * 8192}')
    I(f'v_bitop3_b32 v6, {v(G2 + 4 * k + 2)}, v12, v6 bitop3:0xbe')
I(f's_sub_u32 {s(sCNT)}, {s(sCNT)}, 1')
I('v_cmp_ne_u32 vcc, 0, v6')
a.B('s_cbranch_scc1 L_QG_go')
a.B('s_cbranch_vccz L_QG_go')
I('s_waitcnt lgkmcnt(0)')
for k in range(16):
    lab = a.newlabel('L_qr')
    I(f'v_cmp_ne_u32 vcc, {v(G2 + 4 * k + 2)}, v12')
    I(f's_cbranch_vccz {lab}')
    I('s_mov_b64 exec, vcc')
    I(f'global_load_dwordx4 {v(G2 + 4 * k, 4)}, {v(8 + (k >> 2))}, {P(pWS)} offset:{(k & 3) * 1024} sc1')
    I('s_mov_b64 exec, -1')
    a.label(lab)
I('s_waitcnt vmcnt(0)')
I('s_branch L_QG_chk')
a.label('L_QG_go')
flag_add(C_QA)
I('s_setprio 0')
TS(11)
TSN()
a.label('L_PVs')
for i in range(args.pre, 4):
    tr_slot(i)

a.label('L_PV')
TS(6)
I('s_barrier')
if args.pp:
    I(f's_setprio {args.pp}')
I('s_barrier')
for u in range(4):
    I(f'ds_read_b128 {v(PF + 4 * u, 4)}, {v(48 + u)}')
LW, MW = 32, 36
I(f'ds_read_b128 {v(LW, 4)}, v43')
I(f'ds_read_b128 {v(MW, 4)}, v42')
TS(7)
O = 16
cvt = lambda k: [f'v_cvt_pk_bf16_f32 {v(O + 4 * r + k)}, {v(ACC + 8 * k + r)}, {v(ACC + 8 * k + 4 + r)}' for r in range(4)]
R4 = range(4)
fill = {}


def place(first, ops):
    for i, t_ in enumerate(ops):
        fill.setdefault(first + i // 2, []).append(t_)


w0 = [f'v_add_f32 {v(LW + r)}, {v(LW + r)}, {v(LW + r)} row_ror:{st}' for st in (8, 4, 2, 1) for r in R4]
w0[0] = 's_waitcnt lgkmcnt(0)\n' + w0[0]
w1 = [f'v_cvt_f16_f32 {v(LW + r)}, {v(LW + r)}' for r in R4]
w1 += [f'v_and_or_b32 {v(LW + r)}, {v(LW + r)}, {s(sT0)}, {v(MW + r)}' for r in R4]
w1 += [f'v_lshrrev_b32 {v(LW + r)}, v1, {v(LW + r)}' for r in R4]
w2 = cvt(0) + [f'v_and_b32 {v(O + 4 * r)}, {s(sK2)}, {v(O + 4 * r)}' for r in R4]
w3 = cvt(1) + [f'v_bfi_b32 {v(O + 4 * r + 1)}, {s(sK1)}, {v(LW + r)}, {v(O + 4 * r + 1)}' for r in R4]
w3 += [f'v_add_u32 {v(CK + r)}, {v(O + 4 * r)}, {v(O + 4 * r + 1)}' for r in R4]
w3 += [f'v_add_u32 {v(CK + r)}, {v(CK + r)}, {v(CK + r)} row_ror:{st}' for st in (8, 4, 2, 1) for r in R4]
allw = w0 + w2 + w1 + w3
place(2, allw[:60])
I(f's_mov_b32 {s(sT0)}, 0xffff')
i = 0
for k in range(4):
    for u in range(4):
        for T in (2 * k, 2 * k + 1):
            if k == 0 and T == 0 and u < 2:
                I(f's_waitcnt lgkmcnt({5 - u})')
            I(f'{MFMA} {v(ACC + 4 * T, 4)}, {v(PF + 4 * u, 4)}, {v(BF + (u * 8 + T) * 4, 4)}, {"0" if u == 0 else v(ACC + 4 * T, 4)}')
            for t_ in fill.get(i, []):
                I(t_)
            i += 1
for t_ in allw[60:] + cvt(2):
    I(t_)
for r in range(4):
    I(f'v_sub_u32 {v(CK + r)}, {s(sK0)}, {v(CK + r)}')
    I(cvt(3)[r])
    I(f'v_lshrrev_b32 {v(CK + r)}, v1, {v(CK + r)}')
    I(f'v_and_or_b32 {v(O + 4 * r)}, {v(CK + r)}, {s(sK1)}, {v(O + 4 * r)}')
    I(f'global_store_dwordx4 {v(52 + r)}, {v(O + 4 * r, 4)}, {P(pWS)} sc1')
flag_add(C_ST)
TS(8)
I('s_waitcnt vmcnt(0)')
flag_add(C_ACK)
TS(9)
I('s_waitcnt lgkmcnt(0)')
ts_dump()
I('s_endpgm')

a.label('L_S')
AF, QB, WUV, SA, MK, WO0, QAD = 128, 96, 48, 40, 36, 64, 80
WOR, PL, AW, AT2 = 128, 176, 208, 240
XR2, B2R, OA, W2T, HH = 46, 47, 104, 88, 124
sQ, sDL = sK1, sK2
WOq = lambda q: WO0 + 4 * q if q < 4 else WOR + 4 * (q - 4)
I(f"""
s_lshl2_add_u32 {s(sT0)}, {s(sS)}, {s(sW)}
s_lshl_b32 {s(sT0)}, {s(sT0)}, 15
s_lshl_b32 {s(sT1)}, {s(sW)}, 8
s_add_u32 {s(sT0)}, {s(sT0)}, {s(sT1)}
v_lshlrev_b32 v4, 1, v2
v_xor_b32 v4, v4, v1
v_lshlrev_b32 v4, 4, v4
v_lshl_add_u32 v4, v2, 10, v4
v_add_u32 v4, {s(sT0)}, v4
v_xor_b32 v26, 0x80, v4
v_add_u32 v26, 0x1000, v26
s_mul_i32 {s(sT1)}, {s(sW)}, {32768 + 8192}
s_mov_b32 m0, {s(sT1)}
s_movk_i32 {s(sT2)}, 0x2000
s_mov_b32 {s(sQ)}, {s(sW)}
s_lshr_b32 {s(sHT)}, {s(sY)}, 3
s_lshl2_add_u32 {s(sHT)}, {s(sX)}, {s(sHT)}
s_and_b32 {s(sCI)}, {s(sY)}, 3
s_bfe_u32 {s(sDI)}, {s(sY)}, 0x10002
v_and_b32 v5, 7, v1
v_lshlrev_b32 v5, 1, v5
v_xor_b32 v5, v5, v2
v_lshlrev_b32 v5, 4, v5
v_lshl_add_u32 v5, v1, 8, v5
s_lshl_b32 {s(sT1)}, {s(sW)}, 13
v_add_u32 v5, {s(sT1)}, v5
v_lshl_add_u32 v27, {s(sW)}, 2, {v(VFL)}
""")
I(f"""
s_lshr_b32 {s(sT0)}, {s(sW)}, 1
s_lshl1_add_u32 {s(sT0)}, {s(sCI)}, {s(sT0)}
s_lshl_b32 {s(sT0)}, {s(sT0)}, 19
s_and_b32 {s(sT3)}, {s(sW)}, 1
s_lshl_b32 {s(sT3)}, {s(sT3)}, 16
s_add_u32 {s(sT0)}, {s(sT0)}, {s(sT3)}
s_lshl1_add_u32 {s(sT3)}, {s(sHT)}, {s(sDI)}
s_lshl_b32 {s(sT1)}, {s(sT3)}, 7
s_add_u32 {s(sT0)}, {s(sT0)}, {s(sT1)}
v_lshrrev_b32 v8, 3, v0
v_lshlrev_b32 v8, 13, v8
v_and_b32 v9, 7, v0
v_lshl_add_u32 v8, v9, 4, v8
v_add_u32 v8, {s(sT0)}, v8
""")
I('s_waitcnt lgkmcnt(0)')
load_epoch()
I('s_barrier')
I(f"""
s_lshl_b32 {s(sT0)}, {s(sT3)}, 16
s_lshl_b32 {s(sT1)}, {s(sW)}, 8
s_add_u32 {s(sT0)}, {s(sT0)}, {s(sT1)}
v_lshlrev_b32 v34, 12, v2
v_lshl_add_u32 v34, v1, 4, v34
v_add_u32 v34, {s(sT0)}, v34
""")
for b in range(4):
    I(f's_add_u32 {s(sT0)}, {s(sCI)}, {b}')
    I(f's_and_b32 {s(sT0)}, {s(sT0)}, 3')
    I(f's_lshl_b32 {s(sT0)}, {s(sT0)}, 14')
    I(f'v_add_u32 {v(28 + b)}, {s(sT0)}, v34')
build_masks(MK, 9, 10)
TS(1)


def s_setup():
    I(f"""
    v_lshlrev_b32 v10, 4, v1
    v_add_u32 v10, {L_MX}, v10
    s_lshl_b32 {s(sT0)}, {s(sW)}, 2
    v_add_u32 v9, {s(sT0)}, v10
    s_lshl_b32 {s(sT0)}, {s(sW)}, 10
    s_add_u32 {s(sT0)}, {s(sT0)}, {L_P}
    v_add_u32 v11, {s(sT0)}, v3
    v_lshlrev_b32 v33, 2, v1
    v_add_u32 v33, {L_MF}, v33
    s_lshl_b32 {s(sT0)}, {s(sW)}, 8
    s_add_u32 {s(sT0)}, {s(sT0)}, {L_LS}
    v_lshl_add_u32 v32, v0, 2, {s(sT0)}
    v_xor_b32 v6, v1, v2
    v_lshlrev_b32 v6, 4, v6
    v_lshl_add_u32 v6, v2, 8, v6
    """)
    for i in range(4):
        I(f's_add_u32 {s(sT0)}, {s(sW)}, {i}')
        I(f's_and_b32 {s(sT0)}, {s(sT0)}, 3')
        I(f's_lshl_b32 {s(sT0)}, {s(sT0)}, 12')
        I(f's_add_u32 {s(sT0)}, {s(sT0)}, {L_QA}')
        I(f'v_add_u32 {v(QAD + 2 * i)}, {s(sT0)}, v6')
        I(f'v_xor_b32 {v(QAD + 2 * i + 1)}, 64, {v(QAD + 2 * i)}')
    I(f"""
    s_bfe_u32 {s(sT0)}, s2, 0x20004
    s_and_b32 {s(sT1)}, s2, 3
    s_lshl2_add_u32 {s(sT0)}, {s(sT0)}, {s(sT1)}
    s_lshl_b32 {s(sT0)}, {s(sT0)}, 6
    s_bfe_u32 {s(sT1)}, s2, 0x10002
    s_lshl3_add_u32 {s(sT0)}, {s(sT1)}, {s(sT0)}
    s_bfe_u32 {s(sT1)}, s2, 0x10003
    s_lshl2_add_u32 {s(sT0)}, {s(sT1)}, {s(sT0)}
    v_and_b32 v35, 3, v0
    v_lshl_add_u32 v12, v35, 4, {s(sT0)}
    s_mov_b32 {s(sK0)}, 0x20000
    s_lshr_b32 {s(sT1)}, s2, 6
    s_lshl_b32 {s(sT1)}, {s(sT1)}, 10
    s_add_u32 {s(sT0)}, {s(sT0)}, {s(sT1)}
    s_cmp_lt_u32 s2, 224
    s_cselect_b32 {s(sR)}, -1, 0
    s_cselect_b32 {s(sT1)}, 0, 512
    s_sub_u32 {s(sT0)}, {s(sT0)}, {s(sT1)}
    s_lshl1_add_u32 {s(sT0)}, {s(sT0)}, {s(sW)}
    s_lshl_b32 {s(sT0)}, {s(sT0)}, 8
    v_lshlrev_b32 v34, 13, v2
    v_lshl_add_u32 v34, v1, 4, v34
    v_add_u32 v34, {s(sT0)}, v34
    """)


def dma_row(r):
    k = r & 7
    va = 'v26' if k & 1 else 'v4'
    I(f'global_load_lds_dwordx4 {va}, {P(pCKV)}{NT}')
    if r < 30:
        if k == 5:
            I(f's_lshl_b32 {s(sDL)}, {s(sQ)}, 8')
            I(f's_add_u32 {s(sQ)}, {s(sQ)}, 1')
            I(f's_and_b32 {s(sQ)}, {s(sQ)}, 3')
            I(f's_lshl_b32 {s(sT0)}, {s(sQ)}, 8')
            I(f's_sub_u32 {s(sDL)}, {s(sT0)}, {s(sDL)}')
            I(f's_sub_u32 {s(sDL)}, {s(sDL)}, 24576')
        I(f'v_add_u32 {va}, {s(sDL if k >= 6 else sT2)}, {va}')
    if r < 31:
        if k == 7:
            I(f's_lshl2_add_u32 {s(sT0)}, {s(sQ)}, {s(sW)}')
            I(f's_lshl_b32 m0, {s(sT0)}, 13')
        else:
            I('s_add_u32 m0, m0, 0x400')
    if r == args.qa and r:
        flag_add(C_ISS)


def stage_addr(i):
    I(f's_add_u32 {s(sT1)}, {s(sW)}, {i}')
    I(f's_and_b32 {s(sT1)}, {s(sT1)}, 3')
    I(f's_lshl_b32 {s(sT1)}, {s(sT1)}, 15')
    I(f'v_add_u32 v16, {s(sT1)}, v5')
    for t in range(1, 4):
        I(f'v_xor_b32 {v(16 + t)}, {64 * t}, v16')


def stage_reads(i):
    for t in range(4):
        for tau in range(2):
            I(f'ds_read_b128 {v(AF + 32 * i + 8 * t + 4 * tau, 4)}, {v(16 + t)} offset:{4096 * tau}')


tail = []
for i in range(4):
    tail.append(f'global_load_dwordx4 {v(WO0 + 4 * i, 4)}, v28, {P(pWO)} offset:{1024 * i}{NT if args.nto else ""}')
for i in range(4):
    tail.append(f'global_load_dwordx4 {v(WUV + 4 * i, 4)}, v8, {P(pWUV)}{NT}' + (f'\nv_add_u32 v8, {s(sK0)}, v8' if i < 3 else ''))
for i in range(2):
    tail.append(f'global_load_dwordx4 {v(W2T + 4 * i, 4)}, v34, {P(pW2)} offset:{1024 * i}{NT}')
wuv_loads = []
if args.wuv:
    assert args.tord == 1
    wuv_loads = tail[4:8]
    tail = tail[:4] + tail[8:]
elif args.tord == 1:
    tail = tail[:4] + tail[8:10] + tail[4:8]
if args.tord == 2:
    tail = tail[4:8] + tail[8:10] + tail[:4]
assert args.nt1 + args.ns + args.ne <= len(tail)

depth = lambda r: args.d1 if r < args.k1 else (args.d2 if r < args.k2 else args.d3)
for r in range(args.d1):
    dma_row(r)
s_setup()
I(f'global_load_dword v6, v12, {P(pX)}')
I(f'global_load_dword v7, v12, {P(pB2)}')
I('s_mov_b64 vcc, -1')
stg = 0
for r in range(args.d1, 32):
    if args.tpos <= r < args.tpos + args.ne:
        I(tail.pop(0))
    if args.wuv == 2 and args.k1 <= r < args.k1 + 4:
        I(wuv_loads.pop(0))
    dma_row(r)
    d = depth(r)
    if args.dyn and r >= args.k1 and r < 31:
        lab = a.newlabel('L_dy')
        a.B(f's_cbranch_vccz {lab}')
        I(f'ds_read_b32 {v(VFT)}, {v(VFL)} offset:{4 * F_H2}')
        I(f's_waitcnt vmcnt({args.dyn}) lgkmcnt(0)')
        I(f'v_cmp_eq_u32 vcc, 0, {v(VFT)}')
        a.label(lab)
    if r + 1 > d and r < 31:
        I(f's_waitcnt vmcnt({d})')
        if r + 1 - d >= 8 * (stg + 1):
            flag_add(K0, 27)
            stage_addr(stg)
            stage_reads(stg)
            stg += 1
TS(2)
while stg < 3:
    stage_addr(stg)
    I(f's_waitcnt vmcnt({24 - 8 * stg})')
    flag_add(K0, 27)
    stage_reads(stg)
    stg += 1
for _ in range(args.nt1):
    I(tail.pop(0))
if args.qa == 32:
    flag_add(C_ISS)
stage_addr(3)
epoch_ready()
I('s_setprio 2')
flag_wait(C_QA, 2)
TS(4)
LOOK = 4


def qa_read(t):
    I(f'ds_read_b128 {v(QB + 4 * (t & 7), 4)}, {v(QAD + 2 * (t >> 2) + (t & 1))} offset:{1024 * (t & 3)}')


def wo_rest():
    for q in range(4, 16):
        I(f'global_load_dwordx4 {v(WOq(q), 4)}, {v(28 + (q >> 2))}, {P(pWO)} offset:{1024 * (q & 3)}{NTS}')


def s_mfma(t):
    for tau in range(2):
        I(f'{MFMA} {v(SA + 4 * tau, 4)}, {v(AF + 8 * t + 4 * tau, 4)}, {v(QB + 4 * (t & 7), 4)}, {"0" if t == 0 else v(SA + 4 * tau, 4)}')


for t in range(LOOK):
    qa_read(t)
LAST = args.last
for t in range(12):
    qa_read(t + LOOK)
    I(f's_waitcnt lgkmcnt({LOOK + (9 if LAST <= t < LAST + LOOK else 0)})')
    s_mfma(t)
    if t + 1 == LAST:
        I(f's_waitcnt vmcnt({args.nt1})')
        stage_reads(3)
        flag_add(K0, 27)
        TS(3)
for t in range(12, 16):
    if LAST == 12:
        I(f's_waitcnt lgkmcnt({1 + 2 * (15 - t)})')
    elif t == 12:
        I('s_waitcnt lgkmcnt(3)' if LAST <= 9 else 's_waitcnt lgkmcnt(0)')
    elif LAST <= 9:
        I(f's_waitcnt lgkmcnt({15 - t})')
    s_mfma(t)
    for _ in range((args.ns + 3 - (t - 12)) // 4):
        if tail:
            I(tail.pop(0))
TS(5)
I(f'''
s_mov_b32 {s(sT3)}, 0xffff0000
s_mov_b32 {s(sT0)}, 0x3db504f3
s_mov_b32 {s(sT1)}, 0x3fb8aa3b
v_max3_f32 v24, {v(SA)}, {v(SA + 1)}, {v(SA + 2)}
v_max3_f32 v25, {v(SA + 4)}, {v(SA + 5)}, {v(SA + 6)}
v_max3_f32 v24, v24, {v(SA + 3)}, {v(SA + 7)}
v_max_f32 v24, v24, v25
''')
cross_rows_allreduce('v_max_f32', 24, 25)
I('ds_write_b32 v9, v24')
if args.mimic:
    round_pairs(SA, 8, 16)
I('s_waitcnt lgkmcnt(0)')
I('s_barrier')
I('ds_read_b128 v[20:23], v10')
for i in range(8):
    I(f'v_mul_f32 {v(SA + i)}, {s(sT0)}, {v(SA + i)}')
if args.mimic:
    round_pairs(SA, 8, 16)
I('s_waitcnt lgkmcnt(0)')
I('v_max3_f32 v24, v20, v21, v22')
I('v_max_f32 v24, v24, v23')
if args.mimic:
    I('v_cvt_pk_bf16_f32 v24, v24, v24')
    I(f'v_and_b32 v24, {s(sT3)}, v24')
I(f'v_mul_f32 v24, {s(sT0)}, v24')
assert args.mimic
I('v_cvt_pk_bf16_f32 v24, v24, v24')
I(f'v_and_b32 v25, {s(sT3)}, v24')
I(f'v_mul_f32 v24, {s(sT1)}, v25')
I('ds_write_b32 v33, v25')
for i in range(8):
    I(f'v_fma_f32 {v(SA + i)}, {v(SA + i)}, {s(sT1)}, -v24')
for i in range(8):
    I(f'v_exp_f32 {v(SA + i)}, {v(SA + i)}')
for i in range(4):
    I(f'v_cvt_pk_bf16_f32 {v(16 + i)}, {v(SA + 2 * i)}, {v(SA + 2 * i + 1)}')
I('ds_write_b128 v11, v[16:19]')
I(f's_mov_b32 {s(sT0)}, 0x3f803f80')
I(f'v_dot2_f32_bf16 v25, v16, {s(sT0)}, 0')
for i in range(1, 4):
    I(f'v_dot2_f32_bf16 v25, {v(16 + i)}, {s(sT0)}, v25')
I('ds_write_b32 v32, v25')
I('s_waitcnt lgkmcnt(0)')
I('s_barrier')
I('s_setprio 0')
TS(6)
I(f'v_mov_b32 {v(XR2)}, v6')
I(f'v_mov_b32 {v(B2R)}, v7')
for _ in range(args.nb):
    if tail:
        I(tail.pop(0))
if args.wor == 1:
    wo_rest()
I(f'''
v_lshlrev_b32 v10, 3, v0
v_add_u32 v10, {L_FF}, v10
ds_read_b64 {v(HH, 2)}, v10
s_lshl2_add_u32 {s(sT0)}, {s(sHT)}, {s(sCI)}
s_lshl2_add_u32 {s(sT0)}, {s(sT0)}, {s(sW)}
s_lshl_b32 {s(sT0)}, {s(sT0)}, 13
s_add_u32 {s(sT0)}, {s(sT0)}, {W_H3}
v_lshlrev_b32 v4, 11, v2
v_lshl_add_u32 v4, v1, 4, v4
v_add_u32 v4, {s(sT0)}, v4
s_mul_i32 {s(sK1)}, {s(sEP)}, {(HASH * 8) & 0xffffffff}
s_mov_b32 {s(sK2)}, {EMB}
s_lshl_b32 {s(sT0)}, {s(sW)}, 2
s_add_u32 {s(sT0)}, {s(sT0)}, {L_MX}
v_mov_b32 v7, {s(sT0)}
v_mov_b32 v45, {L_MX}
s_lshl_b32 {s(sT0)}, {s(sW)}, 18
s_lshl_b32 {s(sT1)}, s2, {6 + args.h5}
s_add_u32 {s(sT0)}, {s(sT0)}, {s(sT1)}
s_add_u32 {s(sT0)}, {s(sT0)}, {W_H5}
v_lshrrev_b32 v44, {2 + args.h5}, v0
v_lshlrev_b32 v44, {14 + args.h5}, v44
v_and_b32 v16, {7 if args.h5 else 3}, v0
v_lshl_add_u32 v44, v16, 4, v44
v_add_u32 v44, {s(sT0)}, v44
v_and_b32 v16, 1, v2
v_lshrrev_b32 v17, 1, v2
s_lshl_b32 {s(sT0)}, {s(sW)}, 9
s_add_u32 {s(sT1)}, {s(sT0)}, {L_CL}
v_add_u32 v40, {s(sT1)}, v3
s_add_u32 {s(sT1)}, {s(sT0)}, {L_CX}
v_and_b32 v42, 7, v0
v_lshlrev_b32 v42, 5, v42
v_lshl_add_u32 v42, v16, 4, v42
v_lshl_add_u32 v42, v17, 8, v42
v_add_u32 v42, {s(sT1)}, v42
s_lshl_b32 {s(sT0)}, {s(sW)}, 7
s_add_u32 {s(sT0)}, {s(sT0)}, {L_CL}
v_lshrrev_b32 v41, 3, v0
v_lshl_add_u32 v41, v41, 4, {s(sT0)}
v_lshrrev_b32 v43, 2, v1
v_add_u32 v43, {s(sCI)}, v43
v_and_b32 v43, 3, v43
v_lshlrev_b32 v43, 4, v43
v_lshl_add_u32 v43, v2, 2, v43
v_add_u32 v43, v43, v35
v_lshlrev_b32 v43, 2, v43
v_add_u32 v43, {L_CX}, v43
v_mov_b32 v33, {s(sEP)}
v_cmp_gt_u32 {P(sM1)}, v0, 31
v_and_b32 v16, 1, v0
v_cmp_eq_u32 {P(sM2)}, 1, v16
''')
if tail or args.wor == 2:
    flag_wait(C_ST, 4)
while tail:
    I(tail.pop(0))
if args.wor == 2:
    wo_rest()
flag_wait(C_ACK if args.ew else C_ST, 4)
for i in range(2):
    for r in range(4):
        I(f'v_and_b32 {v(AT2 + 4 * i + r)}, {v(HH + i)}, {v(MK + r)}')
for q in range(4, 4 + args.wpre):
    I(f'global_load_dwordx4 {v(WOq(q), 4)}, {v(28 + (q >> 2))}, {P(pWO)} offset:{1024 * (q & 3)}{NTS}')
if args.dly:
    I(f's_sleep {args.dly}')
if args.gv:
    I(f's_waitcnt vmcnt({args.gv - 1})')
TS(8)
U = 96
nwo = 0


def gather(first):
    global nwo
    for q in range(8):
        I(f'global_load_dwordx4 {v(PL + 4 * q, 4)}, v4, {P(pWS)} offset:{q * 256} sc1')
    if first:
        I('s_waitcnt vmcnt(8)')
        for i in range(2):
            I(f'{MFMA} {v(OA, 4)}, {v(AT2 + 4 * i, 4)}, {v(W2T + 4 * i, 4)}, {"0" if i == 0 else v(OA, 4)}')
    n_ = 0
    for q in range(8):
        d0, d1 = v(PL + 4 * q), v(PL + 4 * q + 1)
        I(f's_waitcnt vmcnt({7 - q + n_})')
        if first and args.wor == 3:
            for _ in range(2 if q < 4 else 1):
                qq = 4 + n_ + args.wpre
                if qq > 15:
                    continue
                I(f'global_load_dwordx4 {v(WOq(qq), 4)}, {v(28 + (qq >> 2))}, {P(pWO)} offset:{1024 * (qq & 3)}{NTS}')
                n_ += 1
        I(f'v_and_b32 v19, {s(sK2)}, {d0}')
        I(f'v_and_b32 {v(U + q)}, {s(sK2)}, {d1}')
        I(f'v_xor_b32 {d0}, v19, {d0}')
        I(f'v_lshl_add_u32 v19, v19, v1, {d1}')
        I(f'v_xor_b32 {d1}, {v(U + q)}, {d1}')
        I(f'v_lshlrev_b32 {v(U + q)}, v1, {v(U + q)}')
        I(f'v_add3_u32 v32, {d0}, v19, {"0" if q == 0 else "v32"}')
    if first:
        nwo = n_


gather(True)
I(f's_mov_b32 {s(sCNT)}, {args.spin}')
a.label('L_T3_chk')
for k in range(4):
    I(f'v_or_b32 {v(20 + k)}, {v(U + k)}, {v(U + k)} row_ror:8 bank_mask:0x3')
I('v_add_u32 v32, v32, v32 row_ror:8')
for k in range(4):
    I(f'v_or_b32 {v(20 + k)}, {v(U + 4 + k)}, {v(U + 4 + k)} row_ror:8 bank_mask:0xc')
I('v_add_u32 v32, v32, v32 row_ror:4')
for k in range(2):
    I(f'v_or_b32 {v(24 + k)}, {v(20 + k)}, {v(20 + k)} row_shl:4 bank_mask:0x5')
for k in range(2):
    I(f'v_or_b32 {v(24 + k)}, {v(22 + k)}, {v(22 + k)} row_shr:4 bank_mask:0xa')
I('v_add_u32 v32, v32, v32 row_ror:2')
for k in range(2):
    I(f'v_or_b32 {v(24 + k)}, {v(24 + k)}, {v(24 + k)} quad_perm:[1,0,3,2]')
I('v_add_u32 v32, v32, v32 row_ror:1')
for k in range(2):
    I(f'v_or_b32 {v(24 + k)}, {v(24 + k)}, {v(24 + k)} quad_perm:[2,3,0,1]')
I(f'v_cmp_ne_u32 vcc, {s(sK1)}, v32')
I(f's_sub_u32 {s(sCNT)}, {s(sCNT)}, 1')
I(f'v_cndmask_b32 v5, v24, v25, {P(sM2)}')
a.B('s_cbranch_vccz L_T3_go')
a.B('s_cbranch_scc1 L_T3_go')
I('s_mov_b64 exec, vcc')
gather(False)
I('s_branch L_T3_chk')
a.label('L_T3_go')
I('s_mov_b64 exec, -1')
TS(7)
I(f's_mov_b32 {s(sT1)}, 0x3fb8aa3b')
I(f'v_and_b32 v6, {s(sT3)}, v5')
I('v_cvt_f32_f16 v21, v5')
I(f'v_mul_f32 v6, {s(sT1)}, v6')
I('v_mul_f32 v21, 0.5, v21')
I('v_max_f32 v18, v6, v6 row_ror:8')
row_allreduce('v_max_f32', [18], steps=(4, 1))
cross_rows_allreduce('v_max_f32', 18, 19)
I('''
v_sub_f32 v17, v6, v18
v_exp_f32 v17, v17
v_cvt_pk_bf16_f32 v16, v17, v17
v_mul_f32 v17, v17, v21
''')
TS(1)
red = [f'v_add_f32 v17, v17, v17 row_ror:{st}' for st in (8, 4, 2, 1)]
red += ['v_mov_b32 v19, v17', 'v_permlane16_swap_b32 v19, v17\nv_add_f32 v17, v17, v19\nv_mov_b32 v19, v17',
        'v_permlane32_swap_b32 v19, v17\nv_add_f32 v17, v17, v19', 'ds_write2_b32 v7, v18, v17 offset0:0 offset1:4']
QL = lambda q: 8 * (q >> 2) + 4 * ((q >> 1) & 1) + (q & 1)


def w_and(q):
    for r in range(4):
        I(f'v_and_b32 {v(AW + 4 * (q & 1) + r)}, v16, {v(MK + r)} row_newbcast:{QL(q)}')


w_and(0)
for q in range(8):
    if q < 7:
        w_and(q + 1)
    I(f'{MFMA} v[24:27], {v(AW + 4 * (q & 1), 4)}, {v(PL + 4 * q, 4)}, {"0" if q == 0 else "v[24:27]"}')
    if q < 4:
        I(red[q])
for t_ in red[4:]:
    I(t_)
I('s_mov_b32 exec_hi, 0')
I('ds_write_b128 v40, v[24:27]')
I('s_mov_b64 exec, -1')
I('s_waitcnt lgkmcnt(0)')
TS(9)
TSN(0)
I('s_barrier')
I('ds_read_b128 v[96:99], v45')
for k in range(4):
    I(f'ds_read_b128 {v(108 + 4 * k, 4)}, v41 offset:{512 * k}')
I('ds_read_b128 v[100:103], v45 offset:16')
I('s_waitcnt lgkmcnt(5)')
I('v_max3_f32 v18, v96, v97, v98')
I('v_max_f32 v18, v18, v99')
for i in range(4):
    I(f'v_sub_f32 {v(96 + i)}, {v(96 + i)}, v18')
for i in range(4):
    I(f'v_exp_f32 {v(96 + i)}, {v(96 + i)}')
I('s_waitcnt lgkmcnt(1)')
for i in range(4):
    I(f'v_mul_f32 {v(20 + i)}, v96, {v(108 + i)}')
for k in range(1, 4):
    for i in range(4):
        I(f'v_fmac_f32 {v(20 + i)}, {v(96 + k)}, {v(108 + 4 * k + i)}')
for i in range(4):
    I(f'v_cvt_pk_bf16_f32 {v(20 + i)}, {v(20 + i)}, {v(20 + i)}')
for r in range(4):
    I(f'v_and_b32 {v(AW + r)}, v20, {v(MK + r)}')
for i in range(4):
    if i < 3:
        for r in range(4):
            I(f'v_and_b32 {v(AW + 4 * (i + 1) + r)}, {v(21 + i)}, {v(MK + r)}')
    I(f'{MFMA} v[24:27], {v(AW + 4 * i, 4)}, {v(WUV + 4 * i, 4)}, {"0" if i == 0 else "v[24:27]"}')
I('s_waitcnt lgkmcnt(0)')
I('v_mul_f32 v18, v96, v100')
for k in range(1, 4):
    I(f'v_fmac_f32 v18, {v(96 + k)}, {v(100 + k)}')
I('v_rcp_f32 v18, v18')
I('s_mov_b32 exec_lo, 0x00ff00ff')
I('s_mov_b32 exec_hi, 0xff00ff00')
I('ds_write_b128 v42, v[24:27]')
I('s_mov_b64 exec, -1')
I('s_waitcnt lgkmcnt(0)')
I('s_barrier')
for k in range(4):
    I(f'ds_read2st64_b32 {v(108 + 2 * k, 2)}, v43 offset0:{2 * k} offset1:{2 * k + 1}')
TS(10)
I('v_mov_b32 v22, v33')
I('v_mov_b32 v23, v33')
for i in range(4):
    I(f'v_and_b32 {v(OA + i)}, {s(sR)}, {v(OA + i)}')
I('s_waitcnt lgkmcnt(0)')
for st in (4, 2, 1):
    for k in range(st):
        I(f'v_add_f32 {v(108 + k)}, {v(108 + k)}, {v(108 + k + st)}')
I('v_mul_f32 v108, v108, v18')
I('v_cvt_pk_bf16_f32 v20, v108, v108')


def wo_and(q):
    for r in range(4):
        I(f'v_and_b32 {v(AT2 + 4 * (q & 1) + r)}, v20, {v(MK + r)} row_newbcast:{q}')


wo_and(0)
for q in range(16):
    if q < 15:
        wo_and(q + 1)
    if args.wor == 3 and q >= 4:
        I(f's_waitcnt vmcnt({15 - q})')
    I(f'{MFMA} {v(OA, 4)}, {v(AT2 + 4 * (q & 1), 4)}, {v(WOq(q), 4)}, {v(OA, 4)}')
TS(11)
I(f'v_cndmask_b32 v20, {v(OA)}, {v(OA + 2)}, {P(sM1)}')
I(f'v_cndmask_b32 v21, {v(OA + 1)}, {v(OA + 3)}, {P(sM1)}')
I(f'global_store_dwordx4 v44, v[20:23], {P(pWS)} sc1')
TS(12)
I('s_cmp_lt_u32 s2, 192')
I('s_cbranch_scc1 L_T_done')
I(f'''
s_bfe_u32 {s(sT0)}, s2, {0x50001 if args.h5 else 0x60000}
s_lshl2_add_u32 {s(sT0)}, {s(sT0)}, {s(sW)}
s_lshl_b32 {s(sT0)}, {s(sT0)}, {12 + args.h5}
s_and_b32 {s(sT1)}, s2, {args.h5}
s_lshl_b32 {s(sT1)}, {s(sT1)}, 6
s_add_u32 {s(sT0)}, {s(sT0)}, {s(sT1)}
s_add_u32 {s(sT0)}, {s(sT0)}, {W_H5}
v_lshrrev_b32 v4, 2, v0
v_lshlrev_b32 v4, {6 + args.h5}, v4
v_lshl_add_u32 v4, v35, 4, v4
v_add_u32 v4, {s(sT0)}, v4
v_add_u32 v5, {2048 << args.h5}, v4
v_lshlrev_b32 v9, 7, v35
v_add_u32 v9, {L_CL}, v9
s_lshl_b32 {s(sT0)}, {s(sW)}, 5
v_lshl_add_u32 v8, v2, 3, {s(sT0)}
v_add_u32 v8, v8, v9
v_lshrrev_b32 v6, 2, v0
v_lshl_add_u32 v9, v6, 3, v9
v_lshlrev_b32 v108, 16, {v(XR2)}
v_and_b32 v109, {s(sT3)}, {v(XR2)}
v_lshlrev_b32 v110, 16, {v(B2R)}
v_and_b32 v111, {s(sT3)}, {v(B2R)}
v_add_f32 v108, v108, v110
v_add_f32 v109, v109, v111
s_mov_b32 {s(sCNT)}, {args.spin}
''')
if args.a5:
    I('s_waitcnt vmcnt(0)')
a.label('L_T5_retry')
for k in range(4):
    I(f'global_load_dwordx4 {v(128 + 4 * k, 4)}, {v(4 + (k >> 1))}, {P(pWS)} offset:{(1024 << args.h5) * (k & 1)} sc1')
I(f's_sub_u32 {s(sCNT)}, {s(sCNT)}, 1')
I('s_waitcnt vmcnt(0)')
I('v_xor_b32 v17, v130, v33')
for k in range(1, 4):
    I(f'v_bitop3_b32 v17, {v(130 + 4 * k)}, v33, v17 bitop3:0xbe')
I('v_cmp_ne_u32 vcc, 0, v17')
for i in range(2):
    I(f'v_add_f32 {v(128 + i)}, {v(128 + i)}, {v(132 + i)}')
    I(f'v_add_f32 {v(136 + i)}, {v(136 + i)}, {v(140 + i)}')
a.B('s_cbranch_scc1 L_T5_go')
a.B('s_cbranch_vccnz L_T5_retry')
a.label('L_T5_go')
TS(13)
TSN(3)
for i in range(2):
    I(f'v_add_f32 {v(20 + i)}, {v(128 + i)}, {v(136 + i)}')
row_allreduce('v_add_f32', [20, 21], steps=(4, 8))
I('ds_write_b64 v8, v[20:21]')
I('s_waitcnt lgkmcnt(0)')
I('s_barrier')
I(f's_cmp_lg_u32 {s(sW)}, 0')
I('s_cbranch_scc1 L_T_done')
I('ds_read_b64 v[20:21], v9')
I('s_waitcnt lgkmcnt(0)')
row_allreduce('v_add_f32', [20, 21], steps=(4, 8))
I('''
v_permlane32_swap_b32 v20, v21
v_add_f32 v20, v20, v21
v_mov_b32 v21, v20
v_permlane16_swap_b32 v20, v21
v_add_f32 v20, v20, v21
v_mov_b32 v21, v20
v_permlane32_swap_b32 v20, v21
v_add_f32 v108, v108, v20
v_add_f32 v109, v109, v21
v_cvt_pk_bf16_f32 v20, v108, v109
s_mov_b64 exec, 15
''')
I(f'global_store_dword v12, v20, {P(pOUT)}')
I('s_cmp_lg_u32 s2, 0xe0')
I('s_cbranch_scc1 L_T_done')
I(f'v_mov_b32 v22, {W_EP}')
I('s_mov_b64 exec, 1')
I(f'global_store_dword v22, v33, {P(pWS)} sc1')
a.label('L_T_done')
TS(14)
ts_dump()
a.label('L_end')
I('s_endpgm')

a.raw('.section .rodata,"a"')
a.raw('.p2align 6')
a.raw(f'.amdhsa_kernel {NAME}_kernel')
a.raw('''  .amdhsa_next_free_vgpr 256
  .amdhsa_next_free_sgpr 102
  .amdhsa_accum_offset 256
  .amdhsa_group_segment_fixed_size 0
  .amdhsa_kernarg_size 112
  .amdhsa_user_sgpr_count 2
  .amdhsa_user_sgpr_kernarg_segment_ptr 1
  .amdhsa_system_sgpr_workgroup_id_x 1
.end_amdhsa_kernel''')
open(args.o, 'w').write(a.text())
```

```python
import sys, argparse, re
from asmlib import Asm, v, s

NAME = 'parallel_sum__compressed_kv_cla__dense_activation_squared_relu__decode'

ap = argparse.ArgumentParser()
A_ = lambda n, d, t=int: ap.add_argument('--' + n, type=t, default=d)
ap.add_argument('-o', default='out.s')
A_('ts', 0)
A_('nt', 1)
A_('d1', 2); A_('k1', 4); A_('d2', 10); A_('k2', 16); A_('d3', 10)
A_('swap', 0)
A_('qa', 24)
A_('h2', 1)
A_('h3', 1)
A_('nt1', 0)
A_('wor', 3)
A_('dyn', 3)
A_('own', 1)
A_('ns', 6)
A_('nb', 0)
A_('w1', 0)
A_('last', 12)
A_('h5', 1)
A_('np', 1)
A_('sl', 5)
A_('pre', 2)
A_('tord', 1)
A_('light', 1)
A_('pt', 0)
A_('dly', 0)
A_('dly5', 0)
A_('hint1', 0)
A_('hint2', 0)
A_('wuv', 0)
A_('ew', 1)
A_('bpos', 1)
A_('a5', 1)
A_('comb', 1)
A_('tpos', 32)
A_('ne', 0)
A_('gv', 1)
A_('pp', 3)
A_('bo', 0)
A_('clk', 0)
A_('wpre', 0)
A_('nts', 0)
A_('nto', 0)
A_('ntm', 0x3f, lambda x: int(x, 0))
A_('mimic', 1)
A_('touch', 0)
A_('spin', 20000)
A_('notail', 0)
A_('tsn', 0)
A_('amp', '', str)
A_('tsmask', 0xffff, lambda x: int(x, 0))
args = ap.parse_args()
NT = ' nt' if args.nt else ''
NTS = ' nt' if args.nts else ''

L_QA = 131072
L_P = L_QA + 16384
L_XN = L_P + 4096
L_MX = L_XN + 1024
L_MF = L_MX + 256
L_CL = L_MF + 256
L_CX = L_CL + 2048
L_FF = L_CX + 2048
L_LS = L_FF + 512
L_FL = L_LS + 1024
L_END = L_FL + 64
assert L_END <= 163840
F_F0, C_ISS, F_H2, C_QA, C_ST, C_ACK, C_ER, F_HINT, K0 = range(9)
C_L, C_M = K0 + 4, K0 + 5
W_EP = 0
W_H1 = 0x1000
W_H2 = W_H1 + 0x20000
W_HF = W_H2 + 0x10000
W_H5 = W_HF + 0x80000
W_H3 = 0x200000
W_TS = 0x600000
assert W_H5 + 0x100000 <= W_H3

pX, pCKV, pWQ, pWUK, pWUV, pWO, pW1 = 4, 6, 8, 10, 12, 14, 18
pB1, pW2, pB2, pOUT, pDBG, pWS = 20, 22, 24, 26, 28, 30
sWV = 3
sX, sY, sFC, sGA, sS, sR, sHT, sCI, sDI = range(32, 41)
sJ, sH = sX, sY
sEP, sT0, sT1, sT2, sT3, sCNT, sW = 41, 42, 43, 44, 45, 46, 47
sB = 48
sM1, sM2, sM3, sM4 = 50, 52, 54, 56
sK0, sK1, sK2 = 58, 59, 60
TSB = 64
VFL, VONE, VFT = 13, 14, 15

a = Asm()
P = lambda r: s(r, 2)
MFMA = 'v_mfma_f32_16x16x32_bf16'


def I(text):
    for bit, p_ in ((1, pWQ), (2, pWUK), (4, pCKV), (8, pWUV), (16, pW1), (32, pW2)):
        if not args.ntm & bit:
            text = re.sub(r'(global_load\S* .*s\[%d:%d\].*) nt' % (p_, p_ + 1), r'\1', text)
    if args.notail:
        out = []
        for line in text.split('\n'):
            m = re.match(r'\s*global_load_dwordx4 (v\[\d+:\d+\]), v\d+, s\[(\d+):', line)
            if m and int(m.group(2)) in (pWUV, pWO, pW1, pW2):
                line = f'global_load_dwordx4 {m.group(1)}, v3, s[4:5]'
            out.append(line)
        text = '\n'.join(out)
    a.I(text)


def TS(i):
    if args.ts and (args.tsmask >> i) & 1:
        I(f'{"s_memtime" if args.clk else "s_memrealtime"} {s(TSB + 2 * i, 2)}')


def TSN(k=None):
    if args.ts and (k is None or k == args.tsn):
        I(f's_sub_u32 {s(TSB + 2 * 15)}, {args.spin}, {s(sCNT)}')


def ts_dump(n=16):
    if not args.ts:
        return
    if args.amp:
        wg, w, k = map(int, args.amp.split(','))
        lab, done = a.newlabel('L_amp'), a.newlabel('L_ampd')
        I(f's_cmp_lg_u32 s2, {wg}')
        I(f's_cbranch_scc1 {done}')
        I(f's_cmp_lg_u32 {s(sWV)}, {w}')
        I(f's_cbranch_scc1 {done}')
        I('s_memrealtime s[96:97]')
        I('s_waitcnt lgkmcnt(0)')
        I(f's_sub_u32 {s(sT0)}, {s(TSB + 2 * k)}, {s(TSB)}')
        I(f's_lshl_b32 {s(sT0)}, {s(sT0)}, 3')
        I(f's_min_u32 {s(sT0)}, {s(sT0)}, 100000')
        a.label(lab)
        I('s_memrealtime s[98:99]')
        I('s_waitcnt lgkmcnt(0)')
        I(f's_sub_u32 {s(sT1)}, s98, s96')
        I(f's_cmp_lt_u32 {s(sT1)}, {s(sT0)}')
        I(f's_cbranch_scc1 {lab}')
        a.label(done)
    I('s_waitcnt lgkmcnt(0)')
    I('s_mov_b64 exec, -1')
    I('v_mov_b32 v4, 0')
    for i in range(n):
        I(f'v_writelane_b32 v4, {s(TSB + 2 * i)}, {i}')
    I(f's_lshl_b32 {s(sT0)}, s2, 3')
    I(f's_add_u32 {s(sT0)}, {s(sT0)}, {s(sWV)}')
    I(f's_lshl_b32 {s(sT0)}, {s(sT0)}, 6')
    I(f's_add_u32 {s(sT0)}, {s(sT0)}, {W_TS}')
    I(f'v_lshl_add_u32 v5, v0, 2, {s(sT0)}')
    I('s_mov_b64 exec, 0xffff')
    I(f'global_store_dword v5, v4, {P(pWS)}')
    I('s_waitcnt vmcnt(0)')


def load_epoch():
    I(f's_load_dword {s(sEP)}, {P(pWS)}, {W_EP}')


def epoch_ready():
    I('s_waitcnt lgkmcnt(0)')
    I(f's_add_u32 {s(sEP)}, {s(sEP)}, 1')


def row_allreduce(op, regs, steps=(8, 4, 2, 1)):
    for st in steps:
        for r in regs:
            I(f'{op} {v(r)}, {v(r)}, {v(r)} row_ror:{st}')


def cross_rows_allreduce(op, r, t):
    for sw in ('v_permlane16_swap_b32', 'v_permlane32_swap_b32'):
        I(f'v_mov_b32 {v(t)}, {v(r)}')
        I(f'{sw} {v(t)}, {v(r)}')
        I(f'{op} {v(r)}, {v(r)}, {v(t)}')


def scalar_poll(offsets):
    lab, done = a.newlabel('L_sp'), a.newlabel('L_spd')
    R = [61, 62, 63, 96, 97, 98, 99, 100]
    I(f's_mov_b32 {s(sCNT)}, {args.spin}')
    a.label(lab)
    for k, o in enumerate(offsets):
        I(f's_load_dword {s(R[k])}, {P(sB)}, {o} glc')
    I(f's_sub_u32 {s(sCNT)}, {s(sCNT)}, 1')
    I(f's_cbranch_scc1 {done}')
    I('s_waitcnt lgkmcnt(0)')
    I(f's_xor_b32 {s(sT0)}, {s(R[0])}, {s(sEP)}')
    for k in range(1, len(offsets)):
        I(f's_xor_b32 {s(sT1)}, {s(R[k])}, {s(sEP)}')
        I(f's_or_b32 {s(sT0)}, {s(sT0)}, {s(sT1)}')
    I(f's_cbranch_scc1 {lab}')
    a.label(done)
    I('s_waitcnt lgkmcnt(0)')


def flag_add(idx, base=VFL):
    I('s_mov_b64 exec, 1')
    I(f'ds_add_u32 {v(base)}, {v(VONE)} offset:{4 * idx}')
    I('s_mov_b64 exec, -1')


def flag_wait(idx, n, base=VFL):
    lab, done = a.newlabel('L_fw'), a.newlabel('L_fwd')
    if args.bo and idx in (F_F0, C_ISS, F_H2, C_ST, C_ACK, K0):
        l2 = a.newlabel('L_fw')
        a.B(f's_branch {l2}')
        a.label(lab)
        I(f's_sleep {args.bo}')
        a.label(l2)
    else:
        a.label(lab)
    I(f'ds_read_b32 {v(VFT)}, {v(base)} offset:{4 * idx}')
    I(f's_sub_u32 {s(sFC)}, {s(sFC)}, 1')
    I('s_waitcnt lgkmcnt(0)')
    I(f'v_cmp_gt_u32 vcc, {n}, {v(VFT)}')
    a.B(f's_cbranch_scc1 {done}')
    a.B(f's_cbranch_vccnz {lab}')
    a.label(done)
    I(f's_max_i32 {s(sFC)}, {s(sFC)}, 0')


def build_masks(M, t0, t1):
    I(f'v_and_b32 {v(t0)}, 1, v1')
    I(f'v_lshlrev_b32 {v(t0)}, 4, {v(t0)}')
    I(f'v_mov_b32 {v(t1)}, 0xffff')
    I(f'v_lshlrev_b32 {v(t1)}, {v(t0)}, {v(t1)}')
    I(f'v_bfe_u32 {v(t0)}, v1, 1, 2')
    for r in range(4):
        I(f'v_cmp_eq_u32 vcc, {r}, {v(t0)}')
        I(f'v_cndmask_b32 {v(M + r)}, 0, {v(t1)}, vcc')


BF, ACC, PF = 128, 96, 80
AT, SEL, XP, ACC0, REC = 72, 32, 80, 88, 92


def build_sel():
    I('''
    v_and_b32 v6, 1, v1
    v_cmp_eq_u32 vcc, 1, v6
    v_mov_b32 v7, 0x0c0c0100
    v_mov_b32 v8, 0x01000c0c
    v_cndmask_b32 v7, v7, v8, vcc
    v_mov_b32 v8, 0x0c0c0302
    v_mov_b32 v9, 0x03020c0c
    v_cndmask_b32 v8, v8, v9, vcc
    v_mov_b32 v9, 0x0c0c0c0c
    v_bfe_u32 v6, v1, 1, 2
    ''')
    for r in range(4):
        I(f'v_cmp_eq_u32 vcc, {r}, v6')
        I(f'v_cndmask_b32 {v(SEL + r)}, v9, v7, vcc')
        I(f'v_cndmask_b32 {v(SEL + 4 + r)}, v9, v8, vcc')


def diag_stage(n, W):
    def perms(k):
        for r in range(4):
            I(f'v_perm_b32 {v(AT + 4 * (k & 1) + r)}, {v(XP + (k >> 1))}, {v(XP + (k >> 1))}, {v(SEL + 4 * (k & 1) + r)}')
    perms(0)
    for k in range(n):
        if k < n - 1:
            perms(k + 1)
        else:
            I(f'v_mov_b32 {v(REC + 2)}, {s(sEP)}')
            I(f'v_mov_b32 {v(REC + 3)}, {s(sEP)}')
        I(f's_waitcnt vmcnt({n - 1 - k})')
        I(f'{MFMA} {v(ACC0, 4)}, {v(AT + 4 * (k & 1), 4)}, {v(W + 4 * k, 4)}, {"0" if k == 0 else v(ACC0, 4)}')


TA = 16


def tr_addr():
    I(f'''
    v_lshrrev_b32 v4, 2, v0
    v_lshlrev_b32 v4, 8, v4
    v_and_b32 v5, 31, v0
    v_lshl_add_u32 v4, v5, 3, v4
    s_lshl_b32 {s(sT0)}, {s(sW)}, 15
    v_add_u32 v4, {s(sT0)}, v4
    ''')


CK = 44
EMB = 0x00010001
HASH = 0x9e3779b1


def pv_setup():
    for i in range(4):
        I(f's_sub_u32 {s(sT0)}, {s(sW)}, {i}')
        I(f's_and_b32 {s(sT0)}, {s(sT0)}, 3')
        I(f's_lshl_b32 {s(sT0)}, {s(sT0)}, 10')
        I(f's_add_u32 {s(sT0)}, {s(sT0)}, {L_P}')
        I(f'v_add_u32 {v(48 + i)}, {s(sT0)}, v3')
    I(f"""
    s_lshl_b32 {s(sT0)}, {s(sGA)}, 6
    s_add_u32 {s(sT0)}, {s(sT0)}, {s(sW)}
    s_lshl_b32 {s(sT0)}, {s(sT0)}, 7
    s_add_u32 {s(sT0)}, {s(sT0)}, {s(sS)}
    s_lshl_b32 {s(sT1)}, {s(sT0)}, 8
    s_add_u32 {s(sT1)}, {s(sT1)}, {W_H3}
    v_lshlrev_b32 v52, 19, v2
    v_lshl_add_u32 v52, v1, 4, v52
    v_add_u32 v52, {s(sT1)}, v52
    s_mov_b32 {s(sT2)}, 0x20000
    v_add_u32 v53, {s(sT2)}, v52
    v_add_u32 v54, {s(sT2)}, v53
    v_add_u32 v55, {s(sT2)}, v54
    v_lshlrev_b32 v42, 4, v2
    v_lshl_add_u32 v43, v1, 6, v42
    v_add_u32 v43, {L_LS}, v43
    v_add_u32 v42, {L_MF}, v42
    s_mul_i32 {s(sK0)}, {s(sEP)}, {HASH}
    s_mov_b32 {s(sK1)}, {EMB}
    s_mov_b32 {s(sK2)}, {~EMB & 0xffffffff}
    """)


def tr_slot(i):
    I(f's_sub_u32 {s(sT0)}, {s(sW)}, {i}')
    I(f's_and_b32 {s(sT0)}, {s(sT0)}, 3')
    I(f's_lshl_b32 {s(sT1)}, {s(sT0)}, 13')
    I(f'v_lshl_add_u32 v5, {s(sT0)}, 2, {v(VFL)}')
    I(f'v_add_u32 {v(TA)}, {s(sT1)}, v4')
    for T in range(1, 8):
        I(f'v_xor_b32 {v(TA + T)}, {32 * T}, {v(TA)}')
    flag_wait(K0, i + 1, 5)
    for T in range(8):
        for tau in range(2):
            I(f'ds_read_b64_tr_b16 {v(BF + (i * 8 + T) * 4 + 2 * tau, 2)}, {v(TA + T)} offset:{tau * 4096}')


def round_pairs(base, n, tmp):
    for i in range(n // 2):
        I(f'v_cvt_pk_bf16_f32 {v(tmp + i)}, {v(base + 2 * i)}, {v(base + 2 * i + 1)}')
    for i in range(n // 2):
        I(f'v_lshlrev_b32 {v(base + 2 * i)}, 16, {v(tmp + i)}')
        I(f'v_and_b32 {v(base + 2 * i + 1)}, {s(sT3)}, {v(tmp + i)}')


hdr = open('cdna_kernels/%s.s.ref' % NAME).read().split('; Override launch geometry')[0]
a.raw(hdr.rstrip())
a.raw(f'; @launch grid=(256,1,1) block=(512,1,1) lds={L_END}')
a.raw('.amdgcn_target "amdgcn-amd-amdhsa--gfx950"')
a.raw('.text')
a.raw(f'.globl {NAME}_kernel')
a.raw('.p2align 8')
a.raw(f'.type {NAME}_kernel,@function')
a.label(f'{NAME}_kernel')
a.label('L_start')
I('s_load_dwordx16 s[4:19], s[0:1], 0')
I('s_load_dwordx8 s[20:27], s[0:1], 64')
I('s_load_dwordx4 s[28:31], s[0:1], 96')
I(f's_getpc_b64 {P(sB)}')
a.label('L_pc')
I('s_cmp_ge_u32 s2, 0x100')
I('s_cbranch_scc1 L_end')
TS(0)
I(f'''
v_lshrrev_b32 v3, 6, v0
v_lshrrev_b32 v4, 5, v0
s_lshr_b32 {s(sY)}, s2, 3
s_and_b32 {s(sT1)}, {s(sY)}, 7
s_lshl_b32 {s(sT1)}, {s(sT1)}, 11
v_lshl_add_u32 v4, v4, 7, {s(sT1)}
v_min_u32 v4, L_end-L_pc, v4
s_mov_b32 exec_lo, 1
s_mov_b32 exec_hi, 1
global_load_dword v15, v4, {P(sB)}
s_mov_b64 exec, -1
v_readfirstlane_b32 {s(sWV)}, v3
v_and_b32 v0, 63, v0
v_and_b32 v1, 15, v0
v_lshrrev_b32 v2, 4, v0
s_and_b32 {s(sX)}, s2, 7
s_lshr_b32 {s(sGA)}, {s(sY)}, 4
s_xor_b32 {s(sGA)}, {s(sGA)}, 1
s_and_b32 {s(sT0)}, {s(sY)}, 15
s_lshl4_add_u32 {s(sS)}, {s(sX)}, {s(sT0)}
s_and_b32 {s(sW)}, {s(sWV)}, 3
v_lshlrev_b32 v3, 4, v0
v_mov_b32 {v(VFL)}, {L_FL}
v_mov_b32 {v(VONE)}, 1
s_mov_b32 {s(sFC)}, 0x200000
s_cmp_ge_u32 {s(sWV)}, 4
''')
a.B('s_cbranch_scc1 L_S')
I(f'''
s_lshl_b32 {s(sT0)}, {s(sJ)}, 19
s_lshl_b32 {s(sT1)}, {s(sH)}, 8
s_add_u32 {s(sT0)}, {s(sT0)}, {s(sT1)}
s_cmp_eq_u32 {s(sWV)}, 1
''')
a.B('s_cbranch_scc1 L_F1')
I(f's_cmp_eq_u32 {s(sWV)}, 2')
a.B('s_cbranch_scc1 L_F2')
I(f's_cmp_eq_u32 {s(sWV)}, 3')
a.B('s_cbranch_scc1 L_F3')

Wq, XR = 128, 120
I(f'''
v_lshlrev_b32 v5, 17, v2
v_lshl_add_u32 v5, v1, 4, v5
v_add_u32 v5, {s(sT0)}, v5
s_movk_i32 {s(sT2)}, 0x2000
s_waitcnt lgkmcnt(0)
''')
I(f'global_load_dwordx4 {v(XR, 4)}, v3, {P(pX)}')
for k in range(16):
    I(f'global_load_dwordx4 {v(Wq + 4 * k, 4)}, v5, {P(pWQ)}{NT}')
    if k < 15:
        I(f'v_add_u32 v5, {s(sT2)}, v5')
if args.bpos == 0:
    I('s_barrier')
load_epoch()
TS(1)
build_sel()
I(f'''
v_add_u32 v10, {L_XN}, v3
s_lshl_b32 {s(sT0)}, {s(sJ)}, 7
s_add_u32 {s(sT0)}, {s(sT0)}, {L_XN}
v_lshl_add_u32 v11, v2, 5, {s(sT0)}
s_lshl_b32 {s(sT0)}, s2, 9
s_add_u32 {s(sT0)}, {s(sT0)}, {W_H1}
v_add_u32 v12, {s(sT0)}, v3
s_mov_b32 {s(sT3)}, 0xffff0000
s_mov_b32 {s(sK0)}, 0x07060501
s_mov_b32 {s(sK1)}, 0x07060502
s_mov_b32 {s(sK2)}, 0x07060503
''')
F, Dd, t0, t1, t2, t3, PK = 96, 104, 112, 113, 114, 115, 116
I('s_waitcnt vmcnt(16)')
if args.bpos == 1:
    I('s_barrier')
TS(2)
for i in range(4):
    I(f'v_lshlrev_b32 {v(F + 2 * i)}, 16, {v(XR + i)}')
    I(f'v_and_b32 {v(F + 2 * i + 1)}, {s(sT3)}, {v(XR + i)}')
I(f'''
v_add_f32 {v(t0)}, {v(F)}, {v(F + 1)}
v_add_f32 {v(t1)}, {v(F + 2)}, {v(F + 3)}
v_add_f32 {v(t2)}, {v(F + 4)}, {v(F + 5)}
v_add_f32 {v(t3)}, {v(F + 6)}, {v(F + 7)}
v_add_f32 {v(t0)}, {v(t0)}, {v(t1)}
v_add_f32 {v(t2)}, {v(t2)}, {v(t3)}
v_add_f32 {v(t0)}, {v(t0)}, {v(t2)}
''')
row_allreduce('v_add_f32', [t0])
I(f'v_add_f32 {v(t0)}, {v(t0)}, {v(t0)} row_bcast:15 row_mask:0xa')
I(f'v_add_f32 {v(t0)}, {v(t0)}, {v(t0)} row_bcast:31 row_mask:0xc')
I(f'v_mov_b32 {v(t1)}, 0x3b000000')
I(f'v_readlane_b32 {s(sT0)}, {v(t0)}, 63')
I(f'v_mul_f32 {v(t1)}, {s(sT0)}, {v(t1)}')
for i in range(8):
    I(f'v_sub_f32 {v(Dd + i)}, {v(F + i)}, {v(t1)}')
I(f'v_mul_f32 {v(t0)}, {v(Dd)}, {v(Dd)}')
I(f'v_mul_f32 {v(t2)}, {v(Dd + 1)}, {v(Dd + 1)}')
for i in range(2, 8, 2):
    I(f'v_fmac_f32 {v(t0)}, {v(Dd + i)}, {v(Dd + i)}')
    I(f'v_fmac_f32 {v(t2)}, {v(Dd + i + 1)}, {v(Dd + i + 1)}')
I(f'v_add_f32 {v(t0)}, {v(t0)}, {v(t2)}')
I(f'v_cvt_pk_bf16_f32 {v(t1)}, {v(t1)}, {v(t1)}')
I(f'v_and_b32 {v(t1)}, {s(sT3)}, {v(t1)}')
row_allreduce('v_add_f32', [t0], steps=(8,))
for i in range(0, 4):
    I(f'v_sub_f32 {v(Dd + i)}, {v(F + i)}, {v(t1)}')
row_allreduce('v_add_f32', [t0], steps=(4,))
for i in range(4, 8):
    I(f'v_sub_f32 {v(Dd + i)}, {v(F + i)}, {v(t1)}')
row_allreduce('v_add_f32', [t0], steps=(2,))
for i in range(0, 2):
    I(f'v_cvt_pk_bf16_f32 {v(PK + i)}, {v(Dd + 2 * i)}, {v(Dd + 2 * i + 1)}')
row_allreduce('v_add_f32', [t0], steps=(1,))
for i in range(2, 4):
    I(f'v_cvt_pk_bf16_f32 {v(PK + i)}, {v(Dd + 2 * i)}, {v(Dd + 2 * i + 1)}')
I(f'v_add_f32 {v(t0)}, {v(t0)}, {v(t0)} row_bcast:15 row_mask:0xa')
for i in range(0, 2):
    I(f'v_lshlrev_b32 {v(Dd + 2 * i)}, 16, {v(PK + i)}')
    I(f'v_and_b32 {v(Dd + 2 * i + 1)}, {s(sT3)}, {v(PK + i)}')
I(f'v_add_f32 {v(t0)}, {v(t0)}, {v(t0)} row_bcast:31 row_mask:0xc')
for i in range(2, 4):
    I(f'v_lshlrev_b32 {v(Dd + 2 * i)}, 16, {v(PK + i)}')
    I(f'v_and_b32 {v(Dd + 2 * i + 1)}, {s(sT3)}, {v(PK + i)}')
I(f'v_mov_b32 {v(t1)}, 0x3b000000')
I(f'v_readlane_b32 {s(sT0)}, {v(t0)}, 63')
I(f'''
v_mul_f32 {v(t1)}, {s(sT0)}, {v(t1)}
v_cvt_pk_bf16_f32 {v(t1)}, {v(t1)}, {v(t1)}
v_and_b32 {v(t1)}, {s(sT3)}, {v(t1)}
v_add_f32 {v(t1)}, 0x3727c5ac, {v(t1)}
v_cvt_pk_bf16_f32 {v(t1)}, {v(t1)}, {v(t1)}
v_and_b32 {v(t1)}, {s(sT3)}, {v(t1)}
v_sqrt_f32 {v(t1)}, {v(t1)}
v_cvt_pk_bf16_f32 {v(t1)}, {v(t1)}, {v(t1)}
v_and_b32 {v(t1)}, {s(sT3)}, {v(t1)}
v_rcp_f32 {v(t1)}, {v(t1)}
''')
for i in range(8):
    I(f'v_mul_f32 {v(Dd + i)}, {v(Dd + i)}, {v(t1)}')
for i in range(4):
    I(f'v_cvt_pk_bf16_f32 {v(PK + i)}, {v(Dd + 2 * i)}, {v(Dd + 2 * i + 1)}')
I(f'ds_write_b128 v10, {v(PK, 4)}')
I(f'ds_read_b128 {v(XP, 4)}, v11')
I(f'ds_read_b128 {v(XP + 4, 4)}, v11 offset:16')
epoch_ready()
TS(3)
diag_stage(16, Wq)
for i in range(3):
    I(f'v_perm_b32 {v(REC + i)}, {v(ACC0 + i)}, {v(ACC0 + 3)}, {s(sK0 + i)}')
I('s_mov_b32 exec_hi, 0')
I(f'global_store_dwordx4 v12, {v(REC, 4)}, {P(pWS)} sc1')
I(f'ds_write_b128 v10, {v(ACC0, 4)} offset:{L_CX - L_XN}')
TS(4)
flag_add(F_F0)
I('s_branch L_QG')

a.label('L_F1')
WK, G1, QF, DK = 128, 192, 96, 112
I(f'''
v_lshlrev_b32 v6, 1, v2
v_xor_b32 v6, v6, v1
v_lshlrev_b32 v5, 13, v2
v_lshl_add_u32 v5, v6, 4, v5
v_add_u32 v5, {s(sT0)}, v5
v_xor_b32 v6, 0x80, v5
v_add_u32 v6, 0x20000, v6
s_mov_b32 {s(sT2)}, 0x40000
s_mov_b32 {s(sT3)}, {(-28 * 8192) & 0xffffffff}
s_mov_b32 m0, {L_QA}
s_waitcnt lgkmcnt(0)
''')
load_epoch()
I('s_barrier')
for k in range(16):
    I(f'global_load_lds_dwordx4 {"v6" if k & 1 else "v5"}, {P(pWUK)}{NT}')
    if k < 15:
        I('s_add_u32 m0, m0, 0x400')
    if k < 14:
        I(f'v_add_u32 {"v6" if k & 1 else "v5"}, {s(sT3 if k & 2 else sT2)}, {"v6" if k & 1 else "v5"}')
TS(1)
I(f'''
v_and_b32 v5, 7, v1
v_lshlrev_b32 v5, 1, v5
v_xor_b32 v5, v5, v2
v_lshlrev_b32 v5, 4, v5
v_lshl_add_u32 v5, v1, 8, v5
v_add_u32 v24, {L_QA}, v5
v_xor_b32 v25, 64, v24
v_xor_b32 v26, 0x80, v24
v_xor_b32 v27, 0xc0, v24
s_lshl_b32 {s(sT0)}, {s(sH)}, 12
s_add_u32 {s(sT0)}, {s(sT0)}, {W_H1}
v_add_u32 v8, {s(sT0)}, v3
s_lshl_b32 {s(sT1)}, {s(sJ)}, 9
v_add_u32 v6, {s(sT1)}, v3
s_movk_i32 {s(sT1)}, 0xfff
v_and_b32 v16, {s(sT1)}, v6
v_add_u32 v6, 0x400, v6
v_and_b32 v17, {s(sT1)}, v6
v_add_u32 v6, 0x400, v6
v_and_b32 v18, {s(sT1)}, v6
v_add_u32 v6, 0x400, v6
v_and_b32 v19, {s(sT1)}, v6
v_add_u32 v32, {s(sT0)}, v16
v_add_u32 v33, {s(sT0)}, v17
v_add_u32 v34, {s(sT0)}, v18
v_add_u32 v35, {s(sT0)}, v19
v_add_u32 v9, {L_CX}, v3
v_and_b32 v10, 1, v2
v_lshlrev_b32 v10, 1, v10
v_lshrrev_b32 v11, 1, v2
v_add_u32 v10, v10, v11
v_lshl_add_u32 v10, v1, 2, v10
v_lshlrev_b32 v10, 2, v10
v_add_u32 v10, {L_CL}, v10
v_lshlrev_b32 v11, 4, v2
v_add_u32 v11, {L_CL}, v11
s_lshl_b32 {s(sT0)}, s2, 8
s_add_u32 {s(sT0)}, {s(sT0)}, {W_H2}
v_lshl_add_u32 v12, v2, 2, v1
v_lshl_add_u32 v12, v12, 4, {s(sT0)}
v_cmp_eq_u32 {P(sM1)}, 1, v1
v_cmp_eq_u32 {P(sM2)}, 2, v1
v_cmp_eq_u32 {P(sM3)}, 3, v1
s_mov_b32 {s(sK0)}, 0x0c04000c
s_mov_b32 {s(sK1)}, 0x0402010c
''')
epoch_ready()
I(f'v_mov_b32 v22, {s(sEP)}')
I(f'v_mov_b32 v23, {s(sEP)}')
I('s_setprio 1')
NP = args.np
for p_ in range(NP):
    I(f'v_mov_b32 {v(G1 + 16 * p_ + 3)}, v22')
    for e in range(3):
        I(f'v_mov_b32 {v(G1 + 16 * p_ + e)}, 0')


def h1_loads(p_):
    for k in range(4):
        if k == 0:
            I('s_mov_b32 exec_lo, 0')
        I(f'global_load_dwordx4 {v(G1 + 16 * p_ + 4 * k, 4)}, {v(32 + k)}, {P(pWS)} sc1')
        if k == 0:
            I('s_mov_b32 exec_lo, -1')


if args.hint1:
    assert NP == 1
    I(f's_lshl_b32 {s(sT0)}, {s(sH)}, 12')
    I(f's_add_u32 {s(sT0)}, {s(sT0)}, {W_H1 + 508}')
    I(f's_add_u32 {s(sB)}, {s(pWS)}, {s(sT0)}')
    I(f's_addc_u32 {s(sB + 1)}, {s(pWS + 1)}, 0')
    HO = [4, 5, 6, 7, 8, 9, 12]
    for k in range(7):
        I(f's_add_u32 {s(HO[k])}, {s(sJ)}, {k + 1}')
        I(f's_and_b32 {s(HO[k])}, {s(HO[k])}, 7')
        I(f's_lshl_b32 {s(HO[k])}, {s(HO[k])}, 9')
    scalar_poll([s(r) for r in HO])
else:
    I('s_waitcnt vmcnt(4)')
TS(2)
h1_loads(0)
I('s_waitcnt vmcnt(4)')
for tau in range(4):
    for t in range(4):
        I(f'ds_read_b128 {v(WK + 16 * tau + 4 * t, 4)}, {v(24 + t)} offset:{4096 * tau}')
for p_ in range(1, NP):
    if p_ > 1 and args.sl:
        I(f's_sleep {args.sl}')
    h1_loads(p_)
I(f's_mov_b32 {s(sCNT)}, {args.spin}')
a.label('L_F1_poll')
for p_ in range(NP):
    G = G1 + 16 * p_
    I(f's_sub_u32 {s(sCNT)}, {s(sCNT)}, 1')
    I(f's_waitcnt vmcnt({4 * (NP - 1)})')
    I(f'v_xor_b32 v16, {v(G + 3)}, v22')
    for k in range(1, 4):
        I(f'v_bitop3_b32 v16, {v(G + 4 * k + 3)}, v22, v16 bitop3:0xbe')
    I('v_cmp_ne_u32 vcc, 0, v16')
    a.B(f's_cbranch_scc1 L_F1_go{p_}')
    a.B(f's_cbranch_vccz L_F1_go{p_}')
    h1_loads(p_)
I('s_branch L_F1_poll')
Q4 = 40
for p_ in reversed(range(NP)):
    G = G1 + 16 * p_
    a.label(f'L_F1_go{p_}')
    for k in range(4):
        I(f'v_perm_b32 {v(G + 4 * k + 3)}, {v(G + 4 * k + 1)}, {v(G + 4 * k)}, {s(sK0)}')
    for k in range(4):
        I(f'v_perm_b32 {v(G + 4 * k + 3)}, {v(G + 4 * k + 2)}, {v(G + 4 * k + 3)}, {s(sK1)}')
    for k in range(2):
        for e in range(4):
            I(f'v_add_f32 {v(G + 4 * k + e)}, {v(G + 4 * k + e)}, {v(G + 4 * (k + 2) + e)}')
    for e in range(4):
        I(f'v_add_f32 {v(Q4 + e)}, {v(G + e)}, {v(G + 4 + e)}')
    if p_:
        I('s_branch L_F1_go')
a.label('L_F1_go')
flag_wait(F_F0, 1)
I(f'ds_read_b128 {v(Q4 + 4, 4)}, v9')
TS(3)
TSN()
I('s_waitcnt lgkmcnt(0)')
I('s_mov_b32 exec_hi, 0')
for e in range(4):
    I(f'v_add_f32 {v(Q4 + e)}, {v(Q4 + e)}, {v(Q4 + 4 + e)}')
I('s_mov_b64 exec, -1')
G1 = Q4
I(f'v_permlane32_swap_b32 {v(G1)}, {v(G1 + 2)}')
I(f'v_permlane32_swap_b32 {v(G1 + 1)}, {v(G1 + 3)}')
I(f'v_add_f32 {v(G1)}, {v(G1)}, {v(G1 + 2)}')
I(f'v_add_f32 {v(G1 + 1)}, {v(G1 + 1)}, {v(G1 + 3)}')
I(f'v_cvt_pk_bf16_f32 v16, {v(G1)}, {v(G1 + 1)}')
I('ds_write_b32 v10, v16')
for t in range(4):
    I(f'ds_read_b128 {v(QF + 4 * t, 4)}, v11 offset:{64 * t}')
for t in range(4):
    I(f's_waitcnt lgkmcnt({3 - t})')
    for tau in range(4):
        I(f'{MFMA} {v(DK + 4 * tau, 4)}, {v(WK + 16 * tau + 4 * t, 4)}, {v(QF + 4 * t, 4)}, {"0" if t == 0 else v(DK + 4 * tau, 4)}')
for tau in range(4):
    I(f'v_cvt_pk_bf16_f32 {v(24 + 2 * tau)}, {v(DK + 4 * tau)}, {v(DK + 4 * tau + 1)}')
    I(f'v_cvt_pk_bf16_f32 {v(25 + 2 * tau)}, {v(DK + 4 * tau + 2)}, {v(DK + 4 * tau + 3)}')
    if tau == 1:
        I(f'v_cndmask_b32 v20, v24, v26, {P(sM1)}')
        I(f'v_cndmask_b32 v21, v25, v27, {P(sM1)}')
    if tau == 2:
        I(f'v_cndmask_b32 v20, v20, v28, {P(sM2)}')
        I(f'v_cndmask_b32 v21, v21, v29, {P(sM2)}')
I(f'v_cndmask_b32 v20, v20, v30, {P(sM3)}')
I(f'v_cndmask_b32 v21, v21, v31, {P(sM3)}')
I('s_mov_b32 exec_lo, 0x000f000f')
I('s_mov_b32 exec_hi, 0x000f000f')
I(f'global_store_dwordx4 v12, v[20:23], {P(pWS)} sc1')
TS(4)
I('s_setprio 0')
flag_add(F_H2)
I('s_waitcnt vmcnt(0)')
flag_add(F_H2)
a.label('L_PV1')
tr_addr()
pv_setup()
for i in range(args.pre):
    tr_slot(i)
I('s_branch L_PVs')

a.label('L_F3')
W1R, W2R, HFG, B1R, FA, MK3 = 128, 160, 24, 28, 96, 40
I('v_lshlrev_b32 v11, 3, v0')
I(f'v_add_u32 v11, {L_FF}, v11')
I('s_waitcnt lgkmcnt(0)')
load_epoch()
I('s_barrier')
epoch_ready()
I('s_cmp_ge_u32 s2, 224')
I('s_cbranch_scc1 L_PV1')
build_sel()
I(f'''
s_and_b32 {s(sT3)}, s2, 15
s_mul_i32 {s(sT0)}, {s(sT3)}, {32 * 3584}
s_lshr_b32 {s(sT1)}, s2, 4
s_lshl_b32 {s(sT1)}, {s(sT1)}, 8
s_add_u32 {s(sT0)}, {s(sT0)}, {s(sT1)}
v_mul_u32_u24 v8, {8 * 3584}, v2
v_lshl_add_u32 v8, v1, 4, v8
v_add_u32 v8, {s(sT0)}, v8
s_movk_i32 {s(sT2)}, {2 * 3584}
s_lshl_b32 {s(sT3)}, {s(sT3)}, 6
s_add_u32 {s(sT0)}, {s(sT3)}, {L_XN}
v_lshl_add_u32 v10, v2, 4, {s(sT0)}
s_lshl_b32 {s(sT0)}, {s(sT1)}, 6
s_add_u32 {s(sT0)}, {s(sT0)}, {s(sT3)}
s_lshl_b32 {s(sT0)}, {s(sT0)}, 1
s_add_u32 {s(sT0)}, {s(sT0)}, {W_HF}
v_lshrrev_b32 v29, 2, v0
v_lshlrev_b32 v12, 11, v29
v_and_b32 v9, 3, v0
v_lshl_add_u32 v12, v9, 4, v12
v_add_u32 v12, {s(sT0)}, v12
v_cmp_gt_u32 {P(sM1)}, v0, 31
s_and_b32 {s(sT0)}, s2, 3
s_lshl_b32 {s(sT0)}, {s(sT0)}, 6
s_add_u32 {s(sT0)}, {s(sT0)}, {s(sT1)}
s_bfe_u32 {s(sT1)}, s2, 0x10002
s_lshl3_add_u32 {s(sT0)}, {s(sT1)}, {s(sT0)}
s_bfe_u32 {s(sT1)}, s2, 0x10003
s_lshl2_add_u32 {s(sT0)}, {s(sT1)}, {s(sT0)}
v_lshl_add_u32 v6, v9, 4, {s(sT0)}
s_lshl_b32 {s(sT0)}, s2, 11
s_add_u32 {s(sT0)}, {s(sT0)}, {W_HF}
v_lshlrev_b32 v9, 4, v9
v_lshl_add_u32 v9, v29, 7, v9
v_add_u32 v9, {s(sT0)}, v9
s_mov_b32 {s(sT3)}, 0xffff0000
''')
flag_wait(F_H2 if args.w1 else F_F0, 1)
I(f'ds_read_b128 {v(XP, 4)}, v10')
I(f'global_load_dword {v(B1R)}, v6, {P(pB1)}')
for k in range(8):
    I(f'global_load_dwordx4 {v(W1R + 4 * k, 4)}, v8, {P(pW1)} offset:{3584 * (k & 1)}{NT}')
    if k & 1 and k < 7:
        I(f'v_add_u32 v8, {s(sT2)}, v8')
I('s_waitcnt lgkmcnt(0)')
diag_stage(8, W1R)
I(f'v_cndmask_b32 {v(REC)}, {v(ACC0)}, {v(ACC0 + 2)}, {P(sM1)}')
I(f'v_cndmask_b32 {v(REC + 1)}, {v(ACC0 + 1)}, {v(ACC0 + 3)}, {P(sM1)}')
I(f'global_store_dwordx4 v12, {v(REC, 4)}, {P(pWS)} sc1')
TS(2)
I(f's_mov_b32 {s(sCNT)}, {args.spin}')
flag_wait(F_H2, 2)
a.label('L_TF')
I(f'global_load_dwordx4 {v(HFG, 4)}, v9, {P(pWS)} sc1')
I(f's_sub_u32 {s(sCNT)}, {s(sCNT)}, 1')
I('s_waitcnt vmcnt(0)')
I(f'v_cmp_ne_u32 vcc, {v(HFG + 2)}, {v(REC + 2)}')
a.B('s_cbranch_scc1 L_TF_go')
a.B('s_cbranch_vccnz L_TF')
a.label('L_TF_go')
TSN()
row_allreduce('v_add_f32', [HFG, HFG + 1], steps=(4, 8))
I(f'''
v_permlane32_swap_b32 {v(HFG)}, {v(HFG + 1)}
v_add_f32 {v(HFG)}, {v(HFG)}, {v(HFG + 1)}
v_mov_b32 {v(HFG + 1)}, {v(HFG)}
v_permlane16_swap_b32 {v(HFG)}, {v(HFG + 1)}
v_lshlrev_b32 v16, 16, {v(B1R)}
v_add_f32 {v(HFG)}, {v(HFG)}, {v(HFG + 1)}
v_and_b32 v17, {s(sT3)}, {v(B1R)}
v_cvt_pk_bf16_f32 {v(HFG)}, {v(HFG)}, {v(HFG)}
v_cndmask_b32 v16, v16, v17, {P(sM1)}
v_and_b32 {v(HFG)}, {s(sT3)}, {v(HFG)}
v_add_f32 {v(HFG)}, {v(HFG)}, v16
v_cvt_pk_bf16_f32 {v(HFG)}, {v(HFG)}, {v(HFG)}
v_and_b32 {v(HFG)}, {s(sT3)}, {v(HFG)}
v_max_f32 {v(HFG)}, 0, {v(HFG)}
v_mul_f32 {v(HFG)}, {v(HFG)}, {v(HFG)}
v_cvt_pk_bf16_f32 {v(HFG)}, {v(HFG)}, {v(HFG)}
v_mov_b32 {v(HFG + 1)}, {v(HFG)}
v_permlane32_swap_b32 {v(HFG)}, {v(HFG + 1)}
''')
for g_ in range(4):
    for i in range(2):
        I(f'v_mov_b32 {v(HFG + 2 + i)}, {v(HFG + i)} row_newbcast:{g_} row_mask:{1 << g_}')
I(f'ds_write_b64 v11, {v(HFG + 2, 2)}')
TS(4)
I('s_branch L_PV1')

a.label('L_F2')
I(f'''
v_mov_b32 v16, 0
v_mov_b32 v17, 0
v_mov_b32 v18, 0
v_mov_b32 v19, 0
ds_write_b128 {v(VFL)}, v[16:19]
ds_write_b128 {v(VFL)}, v[16:19] offset:16
ds_write_b128 {v(VFL)}, v[16:19] offset:32
ds_write_b128 {v(VFL)}, v[16:19] offset:48
''')
I('v_and_b32 v5, 3, v0')
I('v_lshlrev_b32 v5, 21, v5')
I('s_waitcnt lgkmcnt(0)')
load_epoch()
if args.touch != 2:
    I('s_barrier')
I('s_mov_b64 exec, 7')
I(f'global_load_dword v22, v5, {P(pWS)} offset:256')
I('s_mov_b64 exec, 3')
if args.touch:
    I(f'global_load_dword v24, v5, {P(pWUV)}')
    I(f'global_load_dword v25, v5, {P(pWO)}')
I('s_mov_b64 exec, 1')
I(f'global_load_dword v23, v16, {P(pOUT)}')
if args.touch:
    for k, p in enumerate((pW1, pW2, pB1, pB2)):
        I(f'global_load_dword {v(26 + k)}, v16, {P(p)}')
I('s_mov_b64 exec, -1')
if args.touch == 2:
    I('s_barrier')
epoch_ready()


a.label('L_QG')
G2, LA = 64, 56
I(f'''
s_lshr_b32 {s(sT1)}, {s(sWV)}, 1
s_lshl1_add_u32 {s(sT0)}, {s(sGA)}, {s(sT1)}
s_lshl_b32 {s(sT0)}, {s(sT0)}, 14
s_add_u32 {s(sT0)}, {s(sT0)}, {W_H2}
v_add_u32 v8, {s(sT0)}, v3
v_add_u32 v9, 0x1000, v8
v_add_u32 v10, 0x2000, v8
v_add_u32 v11, 0x3000, v8
v_lshrrev_b32 v6, 1, v0
v_lshlrev_b32 v6, 8, v6
v_lshl_add_u32 v6, v1, 3, v6
s_lshl_b32 {s(sT1)}, {s(sT1)}, 7
s_add_u32 {s(sT1)}, {s(sT1)}, {L_QA}
v_add_u32 {v(LA)}, {s(sT1)}, v6
''')
for hd in range(1, 8):
    I(f'v_xor_b32 {v(LA + hd)}, {16 * hd}, {v(LA)}')
tr_addr()
pv_setup()
I(f'v_mov_b32 v12, {s(sEP)}')
I('s_setprio 1')
if args.qa:
    flag_wait(C_ISS, 4)
flag_wait(F_H2, 1 + args.h2)
if args.hint2:
    I(f's_cmp_eq_u32 {s(sWV)}, 0')
    I('s_cbranch_scc1 L_QG_w0')
    I(f's_xor_b32 {s(sT0)}, {s(sY)}, 16')
    I(f's_lshl_b32 {s(sT0)}, {s(sT0)}, 11')
    I(f's_add_u32 {s(sT0)}, {s(sT0)}, {W_H2}')
    I(f's_add_u32 {s(sB)}, {s(pWS)}, {s(sT0)}')
    I(f's_addc_u32 {s(sB + 1)}, {s(pWS + 1)}, 0')
    scalar_poll([k * 256 + 252 for k in range(8)])
    flag_add(F_HINT)
    I('s_branch L_QG_hd')
    a.label('L_QG_w0')
    flag_wait(F_HINT, 1)
    a.label('L_QG_hd')
TS(10)


for k in range(16):
    I(f'global_load_dwordx4 {v(G2 + 4 * k, 4)}, {v(8 + (k >> 2))}, {P(pWS)} offset:{(k & 3) * 1024} sc1')
for i in range(args.pre):
    tr_slot(i)
I(f's_mov_b32 {s(sCNT)}, {args.spin}')
a.label('L_QG_chk')
I('v_mov_b32 v6, 0')
for k in range(16):
    I(f's_waitcnt vmcnt({15 - k})')
    I(f'ds_write_b64 {v(LA + (k >> 1))}, {v(G2 + 4 * k, 2)} offset:{(k & 1) * 8192}')
    I(f'v_bitop3_b32 v6, {v(G2 + 4 * k + 2)}, v12, v6 bitop3:0xbe')
I(f's_sub_u32 {s(sCNT)}, {s(sCNT)}, 1')
I('v_cmp_ne_u32 vcc, 0, v6')
a.B('s_cbranch_scc1 L_QG_go')
a.B('s_cbranch_vccz L_QG_go')
I('s_waitcnt lgkmcnt(0)')
for k in range(16):
    lab = a.newlabel('L_qr')
    I(f'v_cmp_ne_u32 vcc, {v(G2 + 4 * k + 2)}, v12')
    I(f's_cbranch_vccz {lab}')
    I('s_mov_b64 exec, vcc')
    I(f'global_load_dwordx4 {v(G2 + 4 * k, 4)}, {v(8 + (k >> 2))}, {P(pWS)} offset:{(k & 3) * 1024} sc1')
    I('s_mov_b64 exec, -1')
    a.label(lab)
I('s_waitcnt vmcnt(0)')
I('s_branch L_QG_chk')
a.label('L_QG_go')
flag_add(C_QA)
I('s_setprio 0')
TS(11)
TSN()
a.label('L_PVs')
for i in range(args.pre, 4):
    tr_slot(i)

a.label('L_PV')
TS(6)
I('s_barrier')
if args.pp:
    I(f's_setprio {args.pp}')
I('s_barrier')
for u in range(4):
    I(f'ds_read_b128 {v(PF + 4 * u, 4)}, {v(48 + u)}')
LW, MW = 32, 36
I(f'ds_read_b128 {v(LW, 4)}, v43')
I(f'ds_read_b128 {v(MW, 4)}, v42')
TS(7)
O = 16
cvt = lambda k: [f'v_cvt_pk_bf16_f32 {v(O + 4 * r + k)}, {v(ACC + 8 * k + r)}, {v(ACC + 8 * k + 4 + r)}' for r in range(4)]
R4 = range(4)
fill = {}


def place(first, ops):
    for i, t_ in enumerate(ops):
        fill.setdefault(first + i // 2, []).append(t_)


w0 = [f'v_add_f32 {v(LW + r)}, {v(LW + r)}, {v(LW + r)} row_ror:{st}' for st in (8, 4, 2, 1) for r in R4]
w0[0] = 's_waitcnt lgkmcnt(0)\n' + w0[0]
w1 = [f'v_cvt_f16_f32 {v(LW + r)}, {v(LW + r)}' for r in R4]
w1 += [f'v_and_or_b32 {v(LW + r)}, {v(LW + r)}, {s(sT0)}, {v(MW + r)}' for r in R4]
w1 += [f'v_lshrrev_b32 {v(LW + r)}, v1, {v(LW + r)}' for r in R4]
w2 = cvt(0) + [f'v_and_b32 {v(O + 4 * r)}, {s(sK2)}, {v(O + 4 * r)}' for r in R4]
w3 = cvt(1) + [f'v_bfi_b32 {v(O + 4 * r + 1)}, {s(sK1)}, {v(LW + r)}, {v(O + 4 * r + 1)}' for r in R4]
w3 += [f'v_add_u32 {v(CK + r)}, {v(O + 4 * r)}, {v(O + 4 * r + 1)}' for r in R4]
w3 += [f'v_add_u32 {v(CK + r)}, {v(CK + r)}, {v(CK + r)} row_ror:{st}' for st in (8, 4, 2, 1) for r in R4]
allw = w0 + w2 + w1 + w3
place(2, allw[:60])
I(f's_mov_b32 {s(sT0)}, 0xffff')
i = 0
for k in range(4):
    for u in range(4):
        for T in (2 * k, 2 * k + 1):
            if k == 0 and T == 0 and u < 2:
                I(f's_waitcnt lgkmcnt({5 - u})')
            I(f'{MFMA} {v(ACC + 4 * T, 4)}, {v(PF + 4 * u, 4)}, {v(BF + (u * 8 + T) * 4, 4)}, {"0" if u == 0 else v(ACC + 4 * T, 4)}')
            for t_ in fill.get(i, []):
                I(t_)
            i += 1
for t_ in allw[60:] + cvt(2):
    I(t_)
for r in range(4):
    I(f'v_sub_u32 {v(CK + r)}, {s(sK0)}, {v(CK + r)}')
    I(cvt(3)[r])
    I(f'v_lshrrev_b32 {v(CK + r)}, v1, {v(CK + r)}')
    I(f'v_and_or_b32 {v(O + 4 * r)}, {v(CK + r)}, {s(sK1)}, {v(O + 4 * r)}')
    I(f'global_store_dwordx4 {v(52 + r)}, {v(O + 4 * r, 4)}, {P(pWS)} sc1')
flag_add(C_ST)
TS(8)
I('s_waitcnt vmcnt(0)')
flag_add(C_ACK)
TS(9)
I('s_waitcnt lgkmcnt(0)')
ts_dump()
I('s_endpgm')

a.label('L_S')
AF, QB, WUV, SA, MK, WO0, QAD = 128, 96, 48, 40, 36, 64, 80
WOR, PL, AW, AT2 = 128, 176, 208, 240
XR2, B2R, OA, W2T, HH = 46, 47, 104, 88, 124
sQ, sDL = sK1, sK2
WOq = lambda q: WO0 + 4 * q if q < 4 else WOR + 4 * (q - 4)
I(f"""
s_lshl2_add_u32 {s(sT0)}, {s(sS)}, {s(sW)}
s_lshl_b32 {s(sT0)}, {s(sT0)}, 15
s_lshl_b32 {s(sT1)}, {s(sW)}, 8
s_add_u32 {s(sT0)}, {s(sT0)}, {s(sT1)}
v_lshlrev_b32 v4, 1, v2
v_xor_b32 v4, v4, v1
v_lshlrev_b32 v4, 4, v4
v_lshl_add_u32 v4, v2, 10, v4
v_add_u32 v4, {s(sT0)}, v4
v_xor_b32 v26, 0x80, v4
v_add_u32 v26, 0x1000, v26
s_mul_i32 {s(sT1)}, {s(sW)}, {32768 + 8192}
s_mov_b32 m0, {s(sT1)}
s_movk_i32 {s(sT2)}, 0x2000
s_mov_b32 {s(sQ)}, {s(sW)}
s_lshr_b32 {s(sHT)}, {s(sY)}, 3
s_lshl2_add_u32 {s(sHT)}, {s(sX)}, {s(sHT)}
s_and_b32 {s(sCI)}, {s(sY)}, 3
s_bfe_u32 {s(sDI)}, {s(sY)}, 0x10002
v_and_b32 v5, 7, v1
v_lshlrev_b32 v5, 1, v5
v_xor_b32 v5, v5, v2
v_lshlrev_b32 v5, 4, v5
v_lshl_add_u32 v5, v1, 8, v5
s_lshl_b32 {s(sT1)}, {s(sW)}, 13
v_add_u32 v5, {s(sT1)}, v5
v_lshl_add_u32 v27, {s(sW)}, 2, {v(VFL)}
""")
I(f"""
s_lshr_b32 {s(sT0)}, {s(sW)}, 1
s_lshl1_add_u32 {s(sT0)}, {s(sCI)}, {s(sT0)}
s_lshl_b32 {s(sT0)}, {s(sT0)}, 19
s_and_b32 {s(sT3)}, {s(sW)}, 1
s_lshl_b32 {s(sT3)}, {s(sT3)}, 16
s_add_u32 {s(sT0)}, {s(sT0)}, {s(sT3)}
s_lshl1_add_u32 {s(sT3)}, {s(sHT)}, {s(sDI)}
s_lshl_b32 {s(sT1)}, {s(sT3)}, 7
s_add_u32 {s(sT0)}, {s(sT0)}, {s(sT1)}
v_lshrrev_b32 v8, 3, v0
v_lshlrev_b32 v8, 13, v8
v_and_b32 v9, 7, v0
v_lshl_add_u32 v8, v9, 4, v8
v_add_u32 v8, {s(sT0)}, v8
""")
I('s_waitcnt lgkmcnt(0)')
load_epoch()
I('s_barrier')
I(f"""
s_lshl_b32 {s(sT0)}, {s(sT3)}, 16
s_lshl_b32 {s(sT1)}, {s(sW)}, 8
s_add_u32 {s(sT0)}, {s(sT0)}, {s(sT1)}
v_lshlrev_b32 v34, 12, v2
v_lshl_add_u32 v34, v1, 4, v34
v_add_u32 v34, {s(sT0)}, v34
""")
for b in range(4):
    I(f's_add_u32 {s(sT0)}, {s(sCI)}, {b}')
    I(f's_and_b32 {s(sT0)}, {s(sT0)}, 3')
    I(f's_lshl_b32 {s(sT0)}, {s(sT0)}, 14')
    I(f'v_add_u32 {v(28 + b)}, {s(sT0)}, v34')
build_masks(MK, 9, 10)
TS(1)


def s_setup():
    I(f"""
    v_lshlrev_b32 v10, 4, v1
    v_add_u32 v10, {L_MX}, v10
    s_lshl_b32 {s(sT0)}, {s(sW)}, 2
    v_add_u32 v9, {s(sT0)}, v10
    s_lshl_b32 {s(sT0)}, {s(sW)}, 10
    s_add_u32 {s(sT0)}, {s(sT0)}, {L_P}
    v_add_u32 v11, {s(sT0)}, v3
    v_lshlrev_b32 v33, 2, v1
    v_add_u32 v33, {L_MF}, v33
    s_lshl_b32 {s(sT0)}, {s(sW)}, 8
    s_add_u32 {s(sT0)}, {s(sT0)}, {L_LS}
    v_lshl_add_u32 v32, v0, 2, {s(sT0)}
    v_xor_b32 v6, v1, v2
    v_lshlrev_b32 v6, 4, v6
    v_lshl_add_u32 v6, v2, 8, v6
    """)
    for i in range(4):
        I(f's_add_u32 {s(sT0)}, {s(sW)}, {i}')
        I(f's_and_b32 {s(sT0)}, {s(sT0)}, 3')
        I(f's_lshl_b32 {s(sT0)}, {s(sT0)}, 12')
        I(f's_add_u32 {s(sT0)}, {s(sT0)}, {L_QA}')
        I(f'v_add_u32 {v(QAD + 2 * i)}, {s(sT0)}, v6')
        I(f'v_xor_b32 {v(QAD + 2 * i + 1)}, 64, {v(QAD + 2 * i)}')
    I(f"""
    s_bfe_u32 {s(sT0)}, s2, 0x20004
    s_and_b32 {s(sT1)}, s2, 3
    s_lshl2_add_u32 {s(sT0)}, {s(sT0)}, {s(sT1)}
    s_lshl_b32 {s(sT0)}, {s(sT0)}, 6
    s_bfe_u32 {s(sT1)}, s2, 0x10002
    s_lshl3_add_u32 {s(sT0)}, {s(sT1)}, {s(sT0)}
    s_bfe_u32 {s(sT1)}, s2, 0x10003
    s_lshl2_add_u32 {s(sT0)}, {s(sT1)}, {s(sT0)}
    v_and_b32 v35, 3, v0
    v_lshl_add_u32 v12, v35, 4, {s(sT0)}
    s_mov_b32 {s(sK0)}, 0x20000
    s_lshr_b32 {s(sT1)}, s2, 6
    s_lshl_b32 {s(sT1)}, {s(sT1)}, 10
    s_add_u32 {s(sT0)}, {s(sT0)}, {s(sT1)}
    s_cmp_lt_u32 s2, 224
    s_cselect_b32 {s(sR)}, -1, 0
    s_cselect_b32 {s(sT1)}, 0, 512
    s_sub_u32 {s(sT0)}, {s(sT0)}, {s(sT1)}
    s_lshl1_add_u32 {s(sT0)}, {s(sT0)}, {s(sW)}
    s_lshl_b32 {s(sT0)}, {s(sT0)}, 8
    v_lshlrev_b32 v34, 13, v2
    v_lshl_add_u32 v34, v1, 4, v34
    v_add_u32 v34, {s(sT0)}, v34
    """)


def dma_row(r):
    k = r & 7
    va = 'v26' if k & 1 else 'v4'
    I(f'global_load_lds_dwordx4 {va}, {P(pCKV)}{NT}')
    if r < 30:
        if k == 5:
            I(f's_lshl_b32 {s(sDL)}, {s(sQ)}, 8')
            I(f's_add_u32 {s(sQ)}, {s(sQ)}, 1')
            I(f's_and_b32 {s(sQ)}, {s(sQ)}, 3')
            I(f's_lshl_b32 {s(sT0)}, {s(sQ)}, 8')
            I(f's_sub_u32 {s(sDL)}, {s(sT0)}, {s(sDL)}')
            I(f's_sub_u32 {s(sDL)}, {s(sDL)}, 24576')
        I(f'v_add_u32 {va}, {s(sDL if k >= 6 else sT2)}, {va}')
    if r < 31:
        if k == 7:
            I(f's_lshl2_add_u32 {s(sT0)}, {s(sQ)}, {s(sW)}')
            I(f's_lshl_b32 m0, {s(sT0)}, 13')
        else:
            I('s_add_u32 m0, m0, 0x400')
    if r == args.qa and r:
        flag_add(C_ISS)


def stage_addr(i):
    I(f's_add_u32 {s(sT1)}, {s(sW)}, {i}')
    I(f's_and_b32 {s(sT1)}, {s(sT1)}, 3')
    I(f's_lshl_b32 {s(sT1)}, {s(sT1)}, 15')
    I(f'v_add_u32 v16, {s(sT1)}, v5')
    for t in range(1, 4):
        I(f'v_xor_b32 {v(16 + t)}, {64 * t}, v16')


def stage_reads(i):
    for t in range(4):
        for tau in range(2):
            I(f'ds_read_b128 {v(AF + 32 * i + 8 * t + 4 * tau, 4)}, {v(16 + t)} offset:{4096 * tau}')


tail = []
for i in range(4):
    tail.append(f'global_load_dwordx4 {v(WO0 + 4 * i, 4)}, v28, {P(pWO)} offset:{1024 * i}{NT if args.nto else ""}')
for i in range(4):
    tail.append(f'global_load_dwordx4 {v(WUV + 4 * i, 4)}, v8, {P(pWUV)}{NT}' + (f'\nv_add_u32 v8, {s(sK0)}, v8' if i < 3 else ''))
for i in range(2):
    tail.append(f'global_load_dwordx4 {v(W2T + 4 * i, 4)}, v34, {P(pW2)} offset:{1024 * i}{NT}')
wuv_loads = []
if args.wuv:
    assert args.tord == 1
    wuv_loads = tail[4:8]
    tail = tail[:4] + tail[8:]
elif args.tord == 1:
    tail = tail[:4] + tail[8:10] + tail[4:8]
if args.tord == 2:
    tail = tail[4:8] + tail[8:10] + tail[:4]
assert args.nt1 + args.ns + args.ne <= len(tail)

depth = lambda r: args.d1 if r < args.k1 else (args.d2 if r < args.k2 else args.d3)
for r in range(args.d1):
    dma_row(r)
s_setup()
I(f'global_load_dword v6, v12, {P(pX)}')
I(f'global_load_dword v7, v12, {P(pB2)}')
I('s_mov_b64 vcc, -1')
stg = 0
for r in range(args.d1, 32):
    if args.tpos <= r < args.tpos + args.ne:
        I(tail.pop(0))
    if args.wuv == 2 and args.k1 <= r < args.k1 + 4:
        I(wuv_loads.pop(0))
    dma_row(r)
    d = depth(r)
    if args.dyn and r >= args.k1 and r < 31:
        lab = a.newlabel('L_dy')
        a.B(f's_cbranch_vccz {lab}')
        I(f'ds_read_b32 {v(VFT)}, {v(VFL)} offset:{4 * F_H2}')
        I(f's_waitcnt vmcnt({args.dyn}) lgkmcnt(0)')
        I(f'v_cmp_eq_u32 vcc, 0, {v(VFT)}')
        a.label(lab)
    if r + 1 > d and r < 31:
        I(f's_waitcnt vmcnt({d})')
        if r + 1 - d >= 8 * (stg + 1):
            flag_add(K0, 27)
            stage_addr(stg)
            stage_reads(stg)
            stg += 1
TS(2)
while stg < 3:
    stage_addr(stg)
    I(f's_waitcnt vmcnt({24 - 8 * stg})')
    flag_add(K0, 27)
    stage_reads(stg)
    stg += 1
for _ in range(args.nt1):
    I(tail.pop(0))
if args.qa == 32:
    flag_add(C_ISS)
stage_addr(3)
epoch_ready()
I('s_setprio 2')
flag_wait(C_QA, 2)
TS(4)
LOOK = 4


def qa_read(t):
    I(f'ds_read_b128 {v(QB + 4 * (t & 7), 4)}, {v(QAD + 2 * (t >> 2) + (t & 1))} offset:{1024 * (t & 3)}')


def wo_rest():
    for q in range(4, 16):
        I(f'global_load_dwordx4 {v(WOq(q), 4)}, {v(28 + (q >> 2))}, {P(pWO)} offset:{1024 * (q & 3)}{NTS}')


def s_mfma(t):
    for tau in range(2):
        I(f'{MFMA} {v(SA + 4 * tau, 4)}, {v(AF + 8 * t + 4 * tau, 4)}, {v(QB + 4 * (t & 7), 4)}, {"0" if t == 0 else v(SA + 4 * tau, 4)}')


for t in range(LOOK):
    qa_read(t)
LAST = args.last
for t in range(12):
    qa_read(t + LOOK)
    I(f's_waitcnt lgkmcnt({LOOK + (9 if LAST <= t < LAST + LOOK else 0)})')
    s_mfma(t)
    if t + 1 == LAST:
        I(f's_waitcnt vmcnt({args.nt1})')
        stage_reads(3)
        flag_add(K0, 27)
        TS(3)
for t in range(12, 16):
    if LAST == 12:
        I(f's_waitcnt lgkmcnt({1 + 2 * (15 - t)})')
    elif t == 12:
        I('s_waitcnt lgkmcnt(3)' if LAST <= 9 else 's_waitcnt lgkmcnt(0)')
    elif LAST <= 9:
        I(f's_waitcnt lgkmcnt({15 - t})')
    s_mfma(t)
    for _ in range((args.ns + 3 - (t - 12)) // 4):
        if tail:
            I(tail.pop(0))
TS(5)
I(f'''
s_mov_b32 {s(sT3)}, 0xffff0000
s_mov_b32 {s(sT0)}, 0x3db504f3
s_mov_b32 {s(sT1)}, 0x3fb8aa3b
v_max3_f32 v24, {v(SA)}, {v(SA + 1)}, {v(SA + 2)}
v_max3_f32 v25, {v(SA + 4)}, {v(SA + 5)}, {v(SA + 6)}
v_max3_f32 v24, v24, {v(SA + 3)}, {v(SA + 7)}
v_max_f32 v24, v24, v25
''')
cross_rows_allreduce('v_max_f32', 24, 25)
I('ds_write_b32 v9, v24')
if args.mimic:
    round_pairs(SA, 8, 16)
I('s_waitcnt lgkmcnt(0)')
I('s_barrier')
I('ds_read_b128 v[20:23], v10')
for i in range(8):
    I(f'v_mul_f32 {v(SA + i)}, {s(sT0)}, {v(SA + i)}')
if args.mimic:
    round_pairs(SA, 8, 16)
I('s_waitcnt lgkmcnt(0)')
I('v_max3_f32 v24, v20, v21, v22')
I('v_max_f32 v24, v24, v23')
if args.mimic:
    I('v_cvt_pk_bf16_f32 v24, v24, v24')
    I(f'v_and_b32 v24, {s(sT3)}, v24')
I(f'v_mul_f32 v24, {s(sT0)}, v24')
assert args.mimic
I('v_cvt_pk_bf16_f32 v24, v24, v24')
I(f'v_and_b32 v25, {s(sT3)}, v24')
I(f'v_mul_f32 v24, {s(sT1)}, v25')
I('ds_write_b32 v33, v25')
for i in range(8):
    I(f'v_fma_f32 {v(SA + i)}, {v(SA + i)}, {s(sT1)}, -v24')
for i in range(8):
    I(f'v_exp_f32 {v(SA + i)}, {v(SA + i)}')
for i in range(4):
    I(f'v_cvt_pk_bf16_f32 {v(16 + i)}, {v(SA + 2 * i)}, {v(SA + 2 * i + 1)}')
I('ds_write_b128 v11, v[16:19]')
I(f's_mov_b32 {s(sT0)}, 0x3f803f80')
I(f'v_dot2_f32_bf16 v25, v16, {s(sT0)}, 0')
for i in range(1, 4):
    I(f'v_dot2_f32_bf16 v25, {v(16 + i)}, {s(sT0)}, v25')
I('ds_write_b32 v32, v25')
I('s_waitcnt lgkmcnt(0)')
I('s_barrier')
I('s_setprio 0')
TS(6)
I(f'v_mov_b32 {v(XR2)}, v6')
I(f'v_mov_b32 {v(B2R)}, v7')
for _ in range(args.nb):
    if tail:
        I(tail.pop(0))
if args.wor == 1:
    wo_rest()
I(f'''
v_lshlrev_b32 v10, 3, v0
v_add_u32 v10, {L_FF}, v10
ds_read_b64 {v(HH, 2)}, v10
s_lshl2_add_u32 {s(sT0)}, {s(sHT)}, {s(sCI)}
s_lshl2_add_u32 {s(sT0)}, {s(sT0)}, {s(sW)}
s_lshl_b32 {s(sT0)}, {s(sT0)}, 13
s_add_u32 {s(sT0)}, {s(sT0)}, {W_H3}
v_lshlrev_b32 v4, 11, v2
v_lshl_add_u32 v4, v1, 4, v4
v_add_u32 v4, {s(sT0)}, v4
s_mul_i32 {s(sK1)}, {s(sEP)}, {(HASH * 8) & 0xffffffff}
s_mov_b32 {s(sK2)}, {EMB}
s_lshl_b32 {s(sT0)}, {s(sW)}, 2
s_add_u32 {s(sT0)}, {s(sT0)}, {L_MX}
v_mov_b32 v7, {s(sT0)}
v_mov_b32 v45, {L_MX}
s_lshl_b32 {s(sT0)}, {s(sW)}, 18
s_lshl_b32 {s(sT1)}, s2, {6 + args.h5}
s_add_u32 {s(sT0)}, {s(sT0)}, {s(sT1)}
s_add_u32 {s(sT0)}, {s(sT0)}, {W_H5}
v_lshrrev_b32 v44, {2 + args.h5}, v0
v_lshlrev_b32 v44, {14 + args.h5}, v44
v_and_b32 v16, {7 if args.h5 else 3}, v0
v_lshl_add_u32 v44, v16, 4, v44
v_add_u32 v44, {s(sT0)}, v44
v_and_b32 v16, 1, v2
v_lshrrev_b32 v17, 1, v2
s_lshl_b32 {s(sT0)}, {s(sW)}, 9
s_add_u32 {s(sT1)}, {s(sT0)}, {L_CL}
v_add_u32 v40, {s(sT1)}, v3
s_add_u32 {s(sT1)}, {s(sT0)}, {L_CX}
v_and_b32 v42, 7, v0
v_lshlrev_b32 v42, 5, v42
v_lshl_add_u32 v42, v16, 4, v42
v_lshl_add_u32 v42, v17, 8, v42
v_add_u32 v42, {s(sT1)}, v42
s_lshl_b32 {s(sT0)}, {s(sW)}, 7
s_add_u32 {s(sT0)}, {s(sT0)}, {L_CL}
v_lshrrev_b32 v41, 3, v0
v_lshl_add_u32 v41, v41, 4, {s(sT0)}
v_lshrrev_b32 v43, 2, v1
v_add_u32 v43, {s(sCI)}, v43
v_and_b32 v43, 3, v43
v_lshlrev_b32 v43, 4, v43
v_lshl_add_u32 v43, v2, 2, v43
v_add_u32 v43, v43, v35
v_lshlrev_b32 v43, 2, v43
v_add_u32 v43, {L_CX}, v43
v_mov_b32 v33, {s(sEP)}
v_cmp_gt_u32 {P(sM1)}, v0, 31
v_and_b32 v16, 1, v0
v_cmp_eq_u32 {P(sM2)}, 1, v16
''')
if tail or args.wor == 2:
    flag_wait(C_ST, 4)
while tail:
    I(tail.pop(0))
if args.wor == 2:
    wo_rest()
flag_wait(C_ACK if args.ew else C_ST, 4)
for i in range(2):
    for r in range(4):
        I(f'v_and_b32 {v(AT2 + 4 * i + r)}, {v(HH + i)}, {v(MK + r)}')
for q in range(4, 4 + args.wpre):
    I(f'global_load_dwordx4 {v(WOq(q), 4)}, {v(28 + (q >> 2))}, {P(pWO)} offset:{1024 * (q & 3)}{NTS}')
if args.dly:
    I(f's_sleep {args.dly}')
if args.gv:
    I(f's_waitcnt vmcnt({args.gv - 1})')
TS(8)
U = 96
nwo = 0


def gather(first):
    global nwo
    for q in range(8):
        I(f'global_load_dwordx4 {v(PL + 4 * q, 4)}, v4, {P(pWS)} offset:{q * 256} sc1')
    if first:
        I('s_waitcnt vmcnt(8)')
        for i in range(2):
            I(f'{MFMA} {v(OA, 4)}, {v(AT2 + 4 * i, 4)}, {v(W2T + 4 * i, 4)}, {"0" if i == 0 else v(OA, 4)}')
    n_ = 0
    for q in range(8):
        d0, d1 = v(PL + 4 * q), v(PL + 4 * q + 1)
        I(f's_waitcnt vmcnt({7 - q + n_})')
        if first and args.wor == 3:
            for _ in range(2 if q < 4 else 1):
                qq = 4 + n_ + args.wpre
                if qq > 15:
                    continue
                I(f'global_load_dwordx4 {v(WOq(qq), 4)}, {v(28 + (qq >> 2))}, {P(pWO)} offset:{1024 * (qq & 3)}{NTS}')
                n_ += 1
        I(f'v_and_b32 v19, {s(sK2)}, {d0}')
        I(f'v_and_b32 {v(U + q)}, {s(sK2)}, {d1}')
        I(f'v_xor_b32 {d0}, v19, {d0}')
        I(f'v_lshl_add_u32 v19, v19, v1, {d1}')
        I(f'v_xor_b32 {d1}, {v(U + q)}, {d1}')
        I(f'v_lshlrev_b32 {v(U + q)}, v1, {v(U + q)}')
        I(f'v_add3_u32 v32, {d0}, v19, {"0" if q == 0 else "v32"}')
    if first:
        nwo = n_


gather(True)
I(f's_mov_b32 {s(sCNT)}, {args.spin}')
a.label('L_T3_chk')
for k in range(4):
    I(f'v_or_b32 {v(20 + k)}, {v(U + k)}, {v(U + k)} row_ror:8 bank_mask:0x3')
I('v_add_u32 v32, v32, v32 row_ror:8')
for k in range(4):
    I(f'v_or_b32 {v(20 + k)}, {v(U + 4 + k)}, {v(U + 4 + k)} row_ror:8 bank_mask:0xc')
I('v_add_u32 v32, v32, v32 row_ror:4')
for k in range(2):
    I(f'v_or_b32 {v(24 + k)}, {v(20 + k)}, {v(20 + k)} row_shl:4 bank_mask:0x5')
for k in range(2):
    I(f'v_or_b32 {v(24 + k)}, {v(22 + k)}, {v(22 + k)} row_shr:4 bank_mask:0xa')
I('v_add_u32 v32, v32, v32 row_ror:2')
for k in range(2):
    I(f'v_or_b32 {v(24 + k)}, {v(24 + k)}, {v(24 + k)} quad_perm:[1,0,3,2]')
I('v_add_u32 v32, v32, v32 row_ror:1')
for k in range(2):
    I(f'v_or_b32 {v(24 + k)}, {v(24 + k)}, {v(24 + k)} quad_perm:[2,3,0,1]')
I(f'v_cmp_ne_u32 vcc, {s(sK1)}, v32')
I(f's_sub_u32 {s(sCNT)}, {s(sCNT)}, 1')
I(f'v_cndmask_b32 v5, v24, v25, {P(sM2)}')
a.B('s_cbranch_vccz L_T3_go')
a.B('s_cbranch_scc1 L_T3_go')
I('s_mov_b64 exec, vcc')
gather(False)
I('s_branch L_T3_chk')
a.label('L_T3_go')
I('s_mov_b64 exec, -1')
TS(7)
I(f's_mov_b32 {s(sT1)}, 0x3fb8aa3b')
I(f'v_and_b32 v6, {s(sT3)}, v5')
I('v_cvt_f32_f16 v21, v5')
I(f'v_mul_f32 v6, {s(sT1)}, v6')
I('v_mul_f32 v21, 0.5, v21')
I('v_max_f32 v18, v6, v6 row_ror:8')
row_allreduce('v_max_f32', [18], steps=(4, 1))
cross_rows_allreduce('v_max_f32', 18, 19)
I('''
v_sub_f32 v17, v6, v18
v_exp_f32 v17, v17
v_cvt_pk_bf16_f32 v16, v17, v17
v_mul_f32 v17, v17, v21
''')
TS(1)
red = [f'v_add_f32 v17, v17, v17 row_ror:{st}' for st in (8, 4, 2, 1)]
red += ['v_mov_b32 v19, v17', 'v_permlane16_swap_b32 v19, v17\nv_add_f32 v17, v17, v19\nv_mov_b32 v19, v17',
        'v_permlane32_swap_b32 v19, v17\nv_add_f32 v17, v17, v19', 'ds_write2_b32 v7, v18, v17 offset0:0 offset1:4']
QL = lambda q: 8 * (q >> 2) + 4 * ((q >> 1) & 1) + (q & 1)


def w_and(q):
    for r in range(4):
        I(f'v_and_b32 {v(AW + 4 * (q & 1) + r)}, v16, {v(MK + r)} row_newbcast:{QL(q)}')


w_and(0)
for q in range(8):
    if q < 7:
        w_and(q + 1)
    I(f'{MFMA} v[24:27], {v(AW + 4 * (q & 1), 4)}, {v(PL + 4 * q, 4)}, {"0" if q == 0 else "v[24:27]"}')
    if q < 4:
        I(red[q])
for t_ in red[4:]:
    I(t_)
I('s_mov_b32 exec_hi, 0')
I('ds_write_b128 v40, v[24:27]')
I('s_mov_b64 exec, -1')
I('s_waitcnt lgkmcnt(0)')
TS(9)
TSN(0)
I('s_barrier')
I('ds_read_b128 v[96:99], v45')
for k in range(4):
    I(f'ds_read_b128 {v(108 + 4 * k, 4)}, v41 offset:{512 * k}')
I('ds_read_b128 v[100:103], v45 offset:16')
I('s_waitcnt lgkmcnt(5)')
I('v_max3_f32 v18, v96, v97, v98')
I('v_max_f32 v18, v18, v99')
for i in range(4):
    I(f'v_sub_f32 {v(96 + i)}, {v(96 + i)}, v18')
for i in range(4):
    I(f'v_exp_f32 {v(96 + i)}, {v(96 + i)}')
I('s_waitcnt lgkmcnt(1)')
for i in range(4):
    I(f'v_mul_f32 {v(20 + i)}, v96, {v(108 + i)}')
for k in range(1, 4):
    for i in range(4):
        I(f'v_fmac_f32 {v(20 + i)}, {v(96 + k)}, {v(108 + 4 * k + i)}')
for i in range(4):
    I(f'v_cvt_pk_bf16_f32 {v(20 + i)}, {v(20 + i)}, {v(20 + i)}')
for r in range(4):
    I(f'v_and_b32 {v(AW + r)}, v20, {v(MK + r)}')
for i in range(4):
    if i < 3:
        for r in range(4):
            I(f'v_and_b32 {v(AW + 4 * (i + 1) + r)}, {v(21 + i)}, {v(MK + r)}')
    I(f'{MFMA} v[24:27], {v(AW + 4 * i, 4)}, {v(WUV + 4 * i, 4)}, {"0" if i == 0 else "v[24:27]"}')
I('s_waitcnt lgkmcnt(0)')
I('v_mul_f32 v18, v96, v100')
for k in range(1, 4):
    I(f'v_fmac_f32 v18, {v(96 + k)}, {v(100 + k)}')
I('v_rcp_f32 v18, v18')
I('s_mov_b32 exec_lo, 0x00ff00ff')
I('s_mov_b32 exec_hi, 0xff00ff00')
I('ds_write_b128 v42, v[24:27]')
I('s_mov_b64 exec, -1')
I('s_waitcnt lgkmcnt(0)')
I('s_barrier')
for k in range(4):
    I(f'ds_read2st64_b32 {v(108 + 2 * k, 2)}, v43 offset0:{2 * k} offset1:{2 * k + 1}')
TS(10)
I('v_mov_b32 v22, v33')
I('v_mov_b32 v23, v33')
for i in range(4):
    I(f'v_and_b32 {v(OA + i)}, {s(sR)}, {v(OA + i)}')
I('s_waitcnt lgkmcnt(0)')
for st in (4, 2, 1):
    for k in range(st):
        I(f'v_add_f32 {v(108 + k)}, {v(108 + k)}, {v(108 + k + st)}')
I('v_mul_f32 v108, v108, v18')
I('v_cvt_pk_bf16_f32 v20, v108, v108')


def wo_and(q):
    for r in range(4):
        I(f'v_and_b32 {v(AT2 + 4 * (q & 1) + r)}, v20, {v(MK + r)} row_newbcast:{q}')


wo_and(0)
for q in range(16):
    if q < 15:
        wo_and(q + 1)
    if args.wor == 3 and q >= 4:
        I(f's_waitcnt vmcnt({15 - q})')
    I(f'{MFMA} {v(OA, 4)}, {v(AT2 + 4 * (q & 1), 4)}, {v(WOq(q), 4)}, {v(OA, 4)}')
TS(11)
I(f'v_cndmask_b32 v20, {v(OA)}, {v(OA + 2)}, {P(sM1)}')
I(f'v_cndmask_b32 v21, {v(OA + 1)}, {v(OA + 3)}, {P(sM1)}')
I(f'global_store_dwordx4 v44, v[20:23], {P(pWS)} sc1')
TS(12)
I('s_cmp_lt_u32 s2, 192')
I('s_cbranch_scc1 L_T_done')
I(f'''
s_bfe_u32 {s(sT0)}, s2, {0x50001 if args.h5 else 0x60000}
s_lshl2_add_u32 {s(sT0)}, {s(sT0)}, {s(sW)}
s_lshl_b32 {s(sT0)}, {s(sT0)}, {12 + args.h5}
s_and_b32 {s(sT1)}, s2, {args.h5}
s_lshl_b32 {s(sT1)}, {s(sT1)}, 6
s_add_u32 {s(sT0)}, {s(sT0)}, {s(sT1)}
s_add_u32 {s(sT0)}, {s(sT0)}, {W_H5}
v_lshrrev_b32 v4, 2, v0
v_lshlrev_b32 v4, {6 + args.h5}, v4
v_lshl_add_u32 v4, v35, 4, v4
v_add_u32 v4, {s(sT0)}, v4
v_add_u32 v5, {2048 << args.h5}, v4
v_lshlrev_b32 v9, 7, v35
v_add_u32 v9, {L_CL}, v9
s_lshl_b32 {s(sT0)}, {s(sW)}, 5
v_lshl_add_u32 v8, v2, 3, {s(sT0)}
v_add_u32 v8, v8, v9
v_lshrrev_b32 v6, 2, v0
v_lshl_add_u32 v9, v6, 3, v9
v_lshlrev_b32 v108, 16, {v(XR2)}
v_and_b32 v109, {s(sT3)}, {v(XR2)}
v_lshlrev_b32 v110, 16, {v(B2R)}
v_and_b32 v111, {s(sT3)}, {v(B2R)}
v_add_f32 v108, v108, v110
v_add_f32 v109, v109, v111
s_mov_b32 {s(sCNT)}, {args.spin}
''')
if args.a5:
    I('s_waitcnt vmcnt(0)')
a.label('L_T5_retry')
for k in range(4):
    I(f'global_load_dwordx4 {v(128 + 4 * k, 4)}, {v(4 + (k >> 1))}, {P(pWS)} offset:{(1024 << args.h5) * (k & 1)} sc1')
I(f's_sub_u32 {s(sCNT)}, {s(sCNT)}, 1')
I('s_waitcnt vmcnt(0)')
I('v_xor_b32 v17, v130, v33')
for k in range(1, 4):
    I(f'v_bitop3_b32 v17, {v(130 + 4 * k)}, v33, v17 bitop3:0xbe')
I('v_cmp_ne_u32 vcc, 0, v17')
for i in range(2):
    I(f'v_add_f32 {v(128 + i)}, {v(128 + i)}, {v(132 + i)}')
    I(f'v_add_f32 {v(136 + i)}, {v(136 + i)}, {v(140 + i)}')
a.B('s_cbranch_scc1 L_T5_go')
a.B('s_cbranch_vccnz L_T5_retry')
a.label('L_T5_go')
TS(13)
TSN(3)
for i in range(2):
    I(f'v_add_f32 {v(20 + i)}, {v(128 + i)}, {v(136 + i)}')
row_allreduce('v_add_f32', [20, 21], steps=(4, 8))
I('ds_write_b64 v8, v[20:21]')
I('s_waitcnt lgkmcnt(0)')
I('s_barrier')
I(f's_cmp_lg_u32 {s(sW)}, 0')
I('s_cbranch_scc1 L_T_done')
I('ds_read_b64 v[20:21], v9')
I('s_waitcnt lgkmcnt(0)')
row_allreduce('v_add_f32', [20, 21], steps=(4, 8))
I('''
v_permlane32_swap_b32 v20, v21
v_add_f32 v20, v20, v21
v_mov_b32 v21, v20
v_permlane16_swap_b32 v20, v21
v_add_f32 v20, v20, v21
v_mov_b32 v21, v20
v_permlane32_swap_b32 v20, v21
v_add_f32 v108, v108, v20
v_add_f32 v109, v109, v21
v_cvt_pk_bf16_f32 v20, v108, v109
s_mov_b64 exec, 15
''')
I(f'global_store_dword v12, v20, {P(pOUT)}')
I('s_cmp_lg_u32 s2, 0xe0')
I('s_cbranch_scc1 L_T_done')
I(f'v_mov_b32 v22, {W_EP}')
I('s_mov_b64 exec, 1')
I(f'global_store_dword v22, v33, {P(pWS)} sc1')
a.label('L_T_done')
TS(14)
ts_dump()
a.label('L_end')
I('s_endpgm')

a.raw('.section .rodata,"a"')
a.raw('.p2align 6')
a.raw(f'.amdhsa_kernel {NAME}_kernel')
a.raw('''  .amdhsa_next_free_vgpr 256
  .amdhsa_next_free_sgpr 102
  .amdhsa_accum_offset 256
  .amdhsa_group_segment_fixed_size 0
  .amdhsa_kernarg_size 112
  .amdhsa_user_sgpr_count 2
  .amdhsa_user_sgpr_kernarg_segment_ptr 1
  .amdhsa_system_sgpr_workgroup_id_x 1
.end_amdhsa_kernel''')
open(args.o, 'w').write(a.text())
```

```python
import sys, argparse, re
from asmlib import Asm, v, s

NAME = 'parallel_sum__compressed_kv_cla__dense_activation_squared_relu__decode'

ap = argparse.ArgumentParser()
A_ = lambda n, d, t=int: ap.add_argument('--' + n, type=t, default=d)
ap.add_argument('-o', default='out.s')
A_('ts', 0)
A_('nt', 1)
A_('d1', 2); A_('k1', 4); A_('d2', 10); A_('k2', 16); A_('d3', 10)
A_('swap', 0)
A_('qa', 24)
A_('h2', 1)
A_('h3', 1)
A_('nt1', 0)
A_('wor', 3)
A_('dyn', 3)
A_('own', 1)
A_('ns', 6)
A_('nb', 0)
A_('w1', 0)
A_('last', 12)
A_('h5', 1)
A_('np', 1)
A_('sl', 5)
A_('pre', 2)
A_('tord', 1)
A_('light', 1)
A_('pt', 0)
A_('dly', 0)
A_('dly5', 0)
A_('hint1', 0)
A_('hint2', 0)
A_('wuv', 0)
A_('ew', 1)
A_('bpos', 1)
A_('a5', 1)
A_('comb', 1)
A_('tpos', 32)
A_('ne', 0)
A_('gv', 1)
A_('pp', 3)
A_('bo', 0)
A_('clk', 0)
A_('wpre', 0)
A_('nts', 0)
A_('nto', 0)
A_('ntm', 0x3f, lambda x: int(x, 0))
A_('xc', 0)
A_('mimic', 1)
A_('touch', 0)
A_('spin', 20000)
A_('notail', 0)
A_('tsn', 0)
A_('amp', '', str)
A_('tsmask', 0xffff, lambda x: int(x, 0))
args = ap.parse_args()
NT = ' nt' if args.nt else ''
NTS = ' nt' if args.nts else ''

L_QA = 131072
L_P = L_QA + 16384
L_XN = L_P + 4096
L_MX = L_XN + 1024
L_MF = L_MX + 256
L_CL = L_MF + 256
L_CX = L_CL + 2048
L_FF = L_CX + 2048
L_LS = L_FF + 512
L_FL = L_LS + 1024
L_END = L_FL + 64
assert L_END <= 163840
F_F0, C_ISS, F_H2, C_QA, C_ST, C_ACK, C_ER, F_HINT, K0 = range(9)
C_L, C_M = K0 + 4, K0 + 5
W_EP = 0
W_H1 = 0x1000
W_H2 = W_H1 + 0x20000
W_HF = W_H2 + 0x10000
W_H5 = W_HF + 0x80000
W_H3 = 0x200000
W_TS = 0x600000
assert W_H5 + 0x100000 <= W_H3

pX, pCKV, pWQ, pWUK, pWUV, pWO, pW1 = 4, 6, 8, 10, 12, 14, 18
pB1, pW2, pB2, pOUT, pDBG, pWS = 20, 22, 24, 26, 28, 30
sWV = 3
sX, sY, sFC, sGA, sS, sR, sHT, sCI, sDI = range(32, 41)
sJ, sH = sX, sY
sEP, sT0, sT1, sT2, sT3, sCNT, sW = 41, 42, 43, 44, 45, 46, 47
sB = 48
sM1, sM2, sM3, sM4 = 50, 52, 54, 56
sK0, sK1, sK2 = 58, 59, 60
TSB = 64
VFL, VONE, VFT = 13, 14, 15

a = Asm()
P = lambda r: s(r, 2)
MFMA = 'v_mfma_f32_16x16x32_bf16'


def I(text):
    for bit, p_ in ((1, pWQ), (2, pWUK), (4, pCKV), (8, pWUV), (16, pW1), (32, pW2)):
        if not args.ntm & bit:
            text = re.sub(r'(global_load\S* .*s\[%d:%d\].*) nt' % (p_, p_ + 1), r'\1', text)
    if args.notail:
        out = []
        for line in text.split('\n'):
            m = re.match(r'\s*global_load_dwordx4 (v\[\d+:\d+\]), v\d+, s\[(\d+):', line)
            if m and int(m.group(2)) in (pWUV, pWO, pW1, pW2):
                line = f'global_load_dwordx4 {m.group(1)}, v3, s[4:5]'
            out.append(line)
        text = '\n'.join(out)
    a.I(text)


def TS(i):
    if args.ts and (args.tsmask >> i) & 1:
        I(f'{"s_memtime" if args.clk else "s_memrealtime"} {s(TSB + 2 * i, 2)}')


def TSN(k=None):
    if args.ts and (k is None or k == args.tsn):
        I(f's_sub_u32 {s(TSB + 2 * 15)}, {args.spin}, {s(sCNT)}')


def ts_dump(n=16):
    if not args.ts:
        return
    if args.xc:
        I(f's_getreg_b32 {s(TSB + 30)}, hwreg(HW_REG_XCC_ID)')
        I(f's_add_u32 {s(TSB + 30)}, {s(TSB + 30)}, {s(sEP)}')
        lab, done = a.newlabel('L_xc'), a.newlabel('L_xcd')
        I('s_cmp_lg_u32 s2, 224')
        I(f's_cbranch_scc1 {done}')
        I(f's_cmp_lg_u32 {s(sWV)}, 4')
        I(f's_cbranch_scc1 {done}')
        I('s_mov_b64 exec, -1')
        I(f'v_mov_b32 v4, {W_TS + args.xc * 512 + 60}')
        I(f'global_load_dword v5, v4, {P(pWS)} sc1')
        I('s_memrealtime s[96:97]')
        I('s_waitcnt vmcnt(0) lgkmcnt(0)')
        I(f'v_readfirstlane_b32 {s(sT0)}, v5')
        I(f's_cmp_eq_u32 {s(sT0)}, {s(TSB + 30)}')
        I(f's_cbranch_scc1 {done}')
        a.label(lab)
        I('s_memrealtime s[98:99]')
        I('s_waitcnt lgkmcnt(0)')
        I(f's_sub_u32 {s(sT1)}, s98, s96')
        I(f's_cmp_lt_u32 {s(sT1)}, 5000')
        I(f's_cbranch_scc1 {lab}')
        a.label(done)
    if args.amp:
        wg, w, k = map(int, args.amp.split(','))
        lab, done = a.newlabel('L_amp'), a.newlabel('L_ampd')
        I(f's_cmp_lg_u32 s2, {wg}')
        I(f's_cbranch_scc1 {done}')
        I(f's_cmp_lg_u32 {s(sWV)}, {w}')
        I(f's_cbranch_scc1 {done}')
        I('s_memrealtime s[96:97]')
        I('s_waitcnt lgkmcnt(0)')
        I(f's_sub_u32 {s(sT0)}, {s(TSB + 2 * k)}, {s(TSB)}')
        I(f's_lshl_b32 {s(sT0)}, {s(sT0)}, 3')
        I(f's_min_u32 {s(sT0)}, {s(sT0)}, 100000')
        a.label(lab)
        I('s_memrealtime s[98:99]')
        I('s_waitcnt lgkmcnt(0)')
        I(f's_sub_u32 {s(sT1)}, s98, s96')
        I(f's_cmp_lt_u32 {s(sT1)}, {s(sT0)}')
        I(f's_cbranch_scc1 {lab}')
        a.label(done)
    I('s_waitcnt lgkmcnt(0)')
    I('s_mov_b64 exec, -1')
    I('v_mov_b32 v4, 0')
    for i in range(n):
        I(f'v_writelane_b32 v4, {s(TSB + 2 * i)}, {i}')
    I(f's_lshl_b32 {s(sT0)}, s2, 3')
    I(f's_add_u32 {s(sT0)}, {s(sT0)}, {s(sWV)}')
    I(f's_lshl_b32 {s(sT0)}, {s(sT0)}, 6')
    I(f's_add_u32 {s(sT0)}, {s(sT0)}, {W_TS}')
    I(f'v_lshl_add_u32 v5, v0, 2, {s(sT0)}')
    I('s_mov_b64 exec, 0xffff')
    I(f'global_store_dword v5, v4, {P(pWS)}')
    I('s_waitcnt vmcnt(0)')


def load_epoch():
    I(f's_load_dword {s(sEP)}, {P(pWS)}, {W_EP}')


def epoch_ready():
    I('s_waitcnt lgkmcnt(0)')
    I(f's_add_u32 {s(sEP)}, {s(sEP)}, 1')


def row_allreduce(op, regs, steps=(8, 4, 2, 1)):
    for st in steps:
        for r in regs:
            I(f'{op} {v(r)}, {v(r)}, {v(r)} row_ror:{st}')


def cross_rows_allreduce(op, r, t):
    for sw in ('v_permlane16_swap_b32', 'v_permlane32_swap_b32'):
        I(f'v_mov_b32 {v(t)}, {v(r)}')
        I(f'{sw} {v(t)}, {v(r)}')
        I(f'{op} {v(r)}, {v(r)}, {v(t)}')


def scalar_poll(offsets):
    lab, done = a.newlabel('L_sp'), a.newlabel('L_spd')
    R = [61, 62, 63, 96, 97, 98, 99, 100]
    I(f's_mov_b32 {s(sCNT)}, {args.spin}')
    a.label(lab)
    for k, o in enumerate(offsets):
        I(f's_load_dword {s(R[k])}, {P(sB)}, {o} glc')
    I(f's_sub_u32 {s(sCNT)}, {s(sCNT)}, 1')
    I(f's_cbranch_scc1 {done}')
    I('s_waitcnt lgkmcnt(0)')
    I(f's_xor_b32 {s(sT0)}, {s(R[0])}, {s(sEP)}')
    for k in range(1, len(offsets)):
        I(f's_xor_b32 {s(sT1)}, {s(R[k])}, {s(sEP)}')
        I(f's_or_b32 {s(sT0)}, {s(sT0)}, {s(sT1)}')
    I(f's_cbranch_scc1 {lab}')
    a.label(done)
    I('s_waitcnt lgkmcnt(0)')


def flag_add(idx, base=VFL):
    I('s_mov_b64 exec, 1')
    I(f'ds_add_u32 {v(base)}, {v(VONE)} offset:{4 * idx}')
    I('s_mov_b64 exec, -1')


def flag_wait(idx, n, base=VFL):
    lab, done = a.newlabel('L_fw'), a.newlabel('L_fwd')
    if args.bo and idx in (F_F0, C_ISS, F_H2, C_ST, C_ACK, K0):
        l2 = a.newlabel('L_fw')
        a.B(f's_branch {l2}')
        a.label(lab)
        I(f's_sleep {args.bo}')
        a.label(l2)
    else:
        a.label(lab)
    I(f'ds_read_b32 {v(VFT)}, {v(base)} offset:{4 * idx}')
    I(f's_sub_u32 {s(sFC)}, {s(sFC)}, 1')
    I('s_waitcnt lgkmcnt(0)')
    I(f'v_cmp_gt_u32 vcc, {n}, {v(VFT)}')
    a.B(f's_cbranch_scc1 {done}')
    a.B(f's_cbranch_vccnz {lab}')
    a.label(done)
    I(f's_max_i32 {s(sFC)}, {s(sFC)}, 0')


def build_masks(M, t0, t1):
    I(f'v_and_b32 {v(t0)}, 1, v1')
    I(f'v_lshlrev_b32 {v(t0)}, 4, {v(t0)}')
    I(f'v_mov_b32 {v(t1)}, 0xffff')
    I(f'v_lshlrev_b32 {v(t1)}, {v(t0)}, {v(t1)}')
    I(f'v_bfe_u32 {v(t0)}, v1, 1, 2')
    for r in range(4):
        I(f'v_cmp_eq_u32 vcc, {r}, {v(t0)}')
        I(f'v_cndmask_b32 {v(M + r)}, 0, {v(t1)}, vcc')


BF, ACC, PF = 128, 96, 80
AT, SEL, XP, ACC0, REC = 72, 32, 80, 88, 92


def build_sel():
    I('''
    v_and_b32 v6, 1, v1
    v_cmp_eq_u32 vcc, 1, v6
    v_mov_b32 v7, 0x0c0c0100
    v_mov_b32 v8, 0x01000c0c
    v_cndmask_b32 v7, v7, v8, vcc
    v_mov_b32 v8, 0x0c0c0302
    v_mov_b32 v9, 0x03020c0c
    v_cndmask_b32 v8, v8, v9, vcc
    v_mov_b32 v9, 0x0c0c0c0c
    v_bfe_u32 v6, v1, 1, 2
    ''')
    for r in range(4):
        I(f'v_cmp_eq_u32 vcc, {r}, v6')
        I(f'v_cndmask_b32 {v(SEL + r)}, v9, v7, vcc')
        I(f'v_cndmask_b32 {v(SEL + 4 + r)}, v9, v8, vcc')


def diag_stage(n, W):
    def perms(k):
        for r in range(4):
            I(f'v_perm_b32 {v(AT + 4 * (k & 1) + r)}, {v(XP + (k >> 1))}, {v(XP + (k >> 1))}, {v(SEL + 4 * (k & 1) + r)}')
    perms(0)
    for k in range(n):
        if k < n - 1:
            perms(k + 1)
        else:
            I(f'v_mov_b32 {v(REC + 2)}, {s(sEP)}')
            I(f'v_mov_b32 {v(REC + 3)}, {s(sEP)}')
        I(f's_waitcnt vmcnt({n - 1 - k})')
        I(f'{MFMA} {v(ACC0, 4)}, {v(AT + 4 * (k & 1), 4)}, {v(W + 4 * k, 4)}, {"0" if k == 0 else v(ACC0, 4)}')


TA = 16


def tr_addr():
    I(f'''
    v_lshrrev_b32 v4, 2, v0
    v_lshlrev_b32 v4, 8, v4
    v_and_b32 v5, 31, v0
    v_lshl_add_u32 v4, v5, 3, v4
    s_lshl_b32 {s(sT0)}, {s(sW)}, 15
    v_add_u32 v4, {s(sT0)}, v4
    ''')


CK = 44
EMB = 0x00010001
HASH = 0x9e3779b1


def pv_setup():
    for i in range(4):
        I(f's_sub_u32 {s(sT0)}, {s(sW)}, {i}')
        I(f's_and_b32 {s(sT0)}, {s(sT0)}, 3')
        I(f's_lshl_b32 {s(sT0)}, {s(sT0)}, 10')
        I(f's_add_u32 {s(sT0)}, {s(sT0)}, {L_P}')
        I(f'v_add_u32 {v(48 + i)}, {s(sT0)}, v3')
    I(f"""
    s_lshl_b32 {s(sT0)}, {s(sGA)}, 6
    s_add_u32 {s(sT0)}, {s(sT0)}, {s(sW)}
    s_lshl_b32 {s(sT0)}, {s(sT0)}, 7
    s_add_u32 {s(sT0)}, {s(sT0)}, {s(sS)}
    s_lshl_b32 {s(sT1)}, {s(sT0)}, 8
    s_add_u32 {s(sT1)}, {s(sT1)}, {W_H3}
    v_lshlrev_b32 v52, 19, v2
    v_lshl_add_u32 v52, v1, 4, v52
    v_add_u32 v52, {s(sT1)}, v52
    s_mov_b32 {s(sT2)}, 0x20000
    v_add_u32 v53, {s(sT2)}, v52
    v_add_u32 v54, {s(sT2)}, v53
    v_add_u32 v55, {s(sT2)}, v54
    v_lshlrev_b32 v42, 4, v2
    v_lshl_add_u32 v43, v1, 6, v42
    v_add_u32 v43, {L_LS}, v43
    v_add_u32 v42, {L_MF}, v42
    s_mul_i32 {s(sK0)}, {s(sEP)}, {HASH}
    s_mov_b32 {s(sK1)}, {EMB}
    s_mov_b32 {s(sK2)}, {~EMB & 0xffffffff}
    """)


def tr_slot(i):
    I(f's_sub_u32 {s(sT0)}, {s(sW)}, {i}')
    I(f's_and_b32 {s(sT0)}, {s(sT0)}, 3')
    I(f's_lshl_b32 {s(sT1)}, {s(sT0)}, 13')
    I(f'v_lshl_add_u32 v5, {s(sT0)}, 2, {v(VFL)}')
    I(f'v_add_u32 {v(TA)}, {s(sT1)}, v4')
    for T in range(1, 8):
        I(f'v_xor_b32 {v(TA + T)}, {32 * T}, {v(TA)}')
    flag_wait(K0, i + 1, 5)
    for T in range(8):
        for tau in range(2):
            I(f'ds_read_b64_tr_b16 {v(BF + (i * 8 + T) * 4 + 2 * tau, 2)}, {v(TA + T)} offset:{tau * 4096}')


def round_pairs(base, n, tmp):
    for i in range(n // 2):
        I(f'v_cvt_pk_bf16_f32 {v(tmp + i)}, {v(base + 2 * i)}, {v(base + 2 * i + 1)}')
    for i in range(n // 2):
        I(f'v_lshlrev_b32 {v(base + 2 * i)}, 16, {v(tmp + i)}')
        I(f'v_and_b32 {v(base + 2 * i + 1)}, {s(sT3)}, {v(tmp + i)}')


hdr = open('cdna_kernels/%s.s.ref' % NAME).read().split('; Override launch geometry')[0]
a.raw(hdr.rstrip())
a.raw(f'; @launch grid=(256,1,1) block=(512,1,1) lds={L_END}')
a.raw('.amdgcn_target "amdgcn-amd-amdhsa--gfx950"')
a.raw('.text')
a.raw(f'.globl {NAME}_kernel')
a.raw('.p2align 8')
a.raw(f'.type {NAME}_kernel,@function')
a.label(f'{NAME}_kernel')
a.label('L_start')
I('s_load_dwordx16 s[4:19], s[0:1], 0')
I('s_load_dwordx8 s[20:27], s[0:1], 64')
I('s_load_dwordx4 s[28:31], s[0:1], 96')
I(f's_getpc_b64 {P(sB)}')
a.label('L_pc')
I('s_cmp_ge_u32 s2, 0x100')
I('s_cbranch_scc1 L_end')
TS(0)
I(f'''
v_lshrrev_b32 v3, 6, v0
v_lshrrev_b32 v4, 5, v0
s_lshr_b32 {s(sY)}, s2, 3
s_and_b32 {s(sT1)}, {s(sY)}, 7
s_lshl_b32 {s(sT1)}, {s(sT1)}, 11
v_lshl_add_u32 v4, v4, 7, {s(sT1)}
v_min_u32 v4, L_end-L_pc, v4
s_mov_b32 exec_lo, 1
s_mov_b32 exec_hi, 1
global_load_dword v15, v4, {P(sB)}
s_mov_b64 exec, -1
v_readfirstlane_b32 {s(sWV)}, v3
v_and_b32 v0, 63, v0
v_and_b32 v1, 15, v0
v_lshrrev_b32 v2, 4, v0
s_and_b32 {s(sX)}, s2, 7
s_lshr_b32 {s(sGA)}, {s(sY)}, 4
s_xor_b32 {s(sGA)}, {s(sGA)}, 1
s_and_b32 {s(sT0)}, {s(sY)}, 15
s_lshl4_add_u32 {s(sS)}, {s(sX)}, {s(sT0)}
s_and_b32 {s(sW)}, {s(sWV)}, 3
v_lshlrev_b32 v3, 4, v0
v_mov_b32 {v(VFL)}, {L_FL}
v_mov_b32 {v(VONE)}, 1
s_mov_b32 {s(sFC)}, 0x200000
s_cmp_ge_u32 {s(sWV)}, 4
''')
a.B('s_cbranch_scc1 L_S')
I(f'''
s_lshl_b32 {s(sT0)}, {s(sJ)}, 19
s_lshl_b32 {s(sT1)}, {s(sH)}, 8
s_add_u32 {s(sT0)}, {s(sT0)}, {s(sT1)}
s_cmp_eq_u32 {s(sWV)}, 1
''')
a.B('s_cbranch_scc1 L_F1')
I(f's_cmp_eq_u32 {s(sWV)}, 2')
a.B('s_cbranch_scc1 L_F2')
I(f's_cmp_eq_u32 {s(sWV)}, 3')
a.B('s_cbranch_scc1 L_F3')

Wq, XR = 128, 120
I(f'''
v_lshlrev_b32 v5, 17, v2
v_lshl_add_u32 v5, v1, 4, v5
v_add_u32 v5, {s(sT0)}, v5
s_movk_i32 {s(sT2)}, 0x2000
s_waitcnt lgkmcnt(0)
''')
I(f'global_load_dwordx4 {v(XR, 4)}, v3, {P(pX)}')
for k in range(16):
    I(f'global_load_dwordx4 {v(Wq + 4 * k, 4)}, v5, {P(pWQ)}{NT}')
    if k < 15:
        I(f'v_add_u32 v5, {s(sT2)}, v5')
if args.bpos == 0:
    I('s_barrier')
load_epoch()
TS(1)
build_sel()
I(f'''
v_add_u32 v10, {L_XN}, v3
s_lshl_b32 {s(sT0)}, {s(sJ)}, 7
s_add_u32 {s(sT0)}, {s(sT0)}, {L_XN}
v_lshl_add_u32 v11, v2, 5, {s(sT0)}
s_lshl_b32 {s(sT0)}, s2, 9
s_add_u32 {s(sT0)}, {s(sT0)}, {W_H1}
v_add_u32 v12, {s(sT0)}, v3
s_mov_b32 {s(sT3)}, 0xffff0000
s_mov_b32 {s(sK0)}, 0x07060501
s_mov_b32 {s(sK1)}, 0x07060502
s_mov_b32 {s(sK2)}, 0x07060503
''')
F, Dd, t0, t1, t2, t3, PK = 96, 104, 112, 113, 114, 115, 116
I('s_waitcnt vmcnt(16)')
if args.bpos == 1:
    I('s_barrier')
TS(2)
for i in range(4):
    I(f'v_lshlrev_b32 {v(F + 2 * i)}, 16, {v(XR + i)}')
    I(f'v_and_b32 {v(F + 2 * i + 1)}, {s(sT3)}, {v(XR + i)}')
I(f'''
v_add_f32 {v(t0)}, {v(F)}, {v(F + 1)}
v_add_f32 {v(t1)}, {v(F + 2)}, {v(F + 3)}
v_add_f32 {v(t2)}, {v(F + 4)}, {v(F + 5)}
v_add_f32 {v(t3)}, {v(F + 6)}, {v(F + 7)}
v_add_f32 {v(t0)}, {v(t0)}, {v(t1)}
v_add_f32 {v(t2)}, {v(t2)}, {v(t3)}
v_add_f32 {v(t0)}, {v(t0)}, {v(t2)}
''')
row_allreduce('v_add_f32', [t0])
I(f'v_add_f32 {v(t0)}, {v(t0)}, {v(t0)} row_bcast:15 row_mask:0xa')
I(f'v_add_f32 {v(t0)}, {v(t0)}, {v(t0)} row_bcast:31 row_mask:0xc')
I(f'v_mov_b32 {v(t1)}, 0x3b000000')
I(f'v_readlane_b32 {s(sT0)}, {v(t0)}, 63')
I(f'v_mul_f32 {v(t1)}, {s(sT0)}, {v(t1)}')
for i in range(8):
    I(f'v_sub_f32 {v(Dd + i)}, {v(F + i)}, {v(t1)}')
I(f'v_mul_f32 {v(t0)}, {v(Dd)}, {v(Dd)}')
I(f'v_mul_f32 {v(t2)}, {v(Dd + 1)}, {v(Dd + 1)}')
for i in range(2, 8, 2):
    I(f'v_fmac_f32 {v(t0)}, {v(Dd + i)}, {v(Dd + i)}')
    I(f'v_fmac_f32 {v(t2)}, {v(Dd + i + 1)}, {v(Dd + i + 1)}')
I(f'v_add_f32 {v(t0)}, {v(t0)}, {v(t2)}')
I(f'v_cvt_pk_bf16_f32 {v(t1)}, {v(t1)}, {v(t1)}')
I(f'v_and_b32 {v(t1)}, {s(sT3)}, {v(t1)}')
row_allreduce('v_add_f32', [t0], steps=(8,))
for i in range(0, 4):
    I(f'v_sub_f32 {v(Dd + i)}, {v(F + i)}, {v(t1)}')
row_allreduce('v_add_f32', [t0], steps=(4,))
for i in range(4, 8):
    I(f'v_sub_f32 {v(Dd + i)}, {v(F + i)}, {v(t1)}')
row_allreduce('v_add_f32', [t0], steps=(2,))
for i in range(0, 2):
    I(f'v_cvt_pk_bf16_f32 {v(PK + i)}, {v(Dd + 2 * i)}, {v(Dd + 2 * i + 1)}')
row_allreduce('v_add_f32', [t0], steps=(1,))
for i in range(2, 4):
    I(f'v_cvt_pk_bf16_f32 {v(PK + i)}, {v(Dd + 2 * i)}, {v(Dd + 2 * i + 1)}')
I(f'v_add_f32 {v(t0)}, {v(t0)}, {v(t0)} row_bcast:15 row_mask:0xa')
for i in range(0, 2):
    I(f'v_lshlrev_b32 {v(Dd + 2 * i)}, 16, {v(PK + i)}')
    I(f'v_and_b32 {v(Dd + 2 * i + 1)}, {s(sT3)}, {v(PK + i)}')
I(f'v_add_f32 {v(t0)}, {v(t0)}, {v(t0)} row_bcast:31 row_mask:0xc')
for i in range(2, 4):
    I(f'v_lshlrev_b32 {v(Dd + 2 * i)}, 16, {v(PK + i)}')
    I(f'v_and_b32 {v(Dd + 2 * i + 1)}, {s(sT3)}, {v(PK + i)}')
I(f'v_mov_b32 {v(t1)}, 0x3b000000')
I(f'v_readlane_b32 {s(sT0)}, {v(t0)}, 63')
I(f'''
v_mul_f32 {v(t1)}, {s(sT0)}, {v(t1)}
v_cvt_pk_bf16_f32 {v(t1)}, {v(t1)}, {v(t1)}
v_and_b32 {v(t1)}, {s(sT3)}, {v(t1)}
v_add_f32 {v(t1)}, 0x3727c5ac, {v(t1)}
v_cvt_pk_bf16_f32 {v(t1)}, {v(t1)}, {v(t1)}
v_and_b32 {v(t1)}, {s(sT3)}, {v(t1)}
v_sqrt_f32 {v(t1)}, {v(t1)}
v_cvt_pk_bf16_f32 {v(t1)}, {v(t1)}, {v(t1)}
v_and_b32 {v(t1)}, {s(sT3)}, {v(t1)}
v_rcp_f32 {v(t1)}, {v(t1)}
''')
for i in range(8):
    I(f'v_mul_f32 {v(Dd + i)}, {v(Dd + i)}, {v(t1)}')
for i in range(4):
    I(f'v_cvt_pk_bf16_f32 {v(PK + i)}, {v(Dd + 2 * i)}, {v(Dd + 2 * i + 1)}')
I(f'ds_write_b128 v10, {v(PK, 4)}')
I(f'ds_read_b128 {v(XP, 4)}, v11')
I(f'ds_read_b128 {v(XP + 4, 4)}, v11 offset:16')
epoch_ready()
TS(3)
diag_stage(16, Wq)
for i in range(3):
    I(f'v_perm_b32 {v(REC + i)}, {v(ACC0 + i)}, {v(ACC0 + 3)}, {s(sK0 + i)}')
I('s_mov_b32 exec_hi, 0')
I(f'global_store_dwordx4 v12, {v(REC, 4)}, {P(pWS)} sc1')
I(f'ds_write_b128 v10, {v(ACC0, 4)} offset:{L_CX - L_XN}')
TS(4)
flag_add(F_F0)
I('s_branch L_QG')

a.label('L_F1')
WK, G1, QF, DK = 128, 192, 96, 112
I(f'''
v_lshlrev_b32 v6, 1, v2
v_xor_b32 v6, v6, v1
v_lshlrev_b32 v5, 13, v2
v_lshl_add_u32 v5, v6, 4, v5
v_add_u32 v5, {s(sT0)}, v5
v_xor_b32 v6, 0x80, v5
v_add_u32 v6, 0x20000, v6
s_mov_b32 {s(sT2)}, 0x40000
s_mov_b32 {s(sT3)}, {(-28 * 8192) & 0xffffffff}
s_mov_b32 m0, {L_QA}
s_waitcnt lgkmcnt(0)
''')
load_epoch()
I('s_barrier')
for k in range(16):
    I(f'global_load_lds_dwordx4 {"v6" if k & 1 else "v5"}, {P(pWUK)}{NT}')
    if k < 15:
        I('s_add_u32 m0, m0, 0x400')
    if k < 14:
        I(f'v_add_u32 {"v6" if k & 1 else "v5"}, {s(sT3 if k & 2 else sT2)}, {"v6" if k & 1 else "v5"}')
TS(1)
I(f'''
v_and_b32 v5, 7, v1
v_lshlrev_b32 v5, 1, v5
v_xor_b32 v5, v5, v2
v_lshlrev_b32 v5, 4, v5
v_lshl_add_u32 v5, v1, 8, v5
v_add_u32 v24, {L_QA}, v5
v_xor_b32 v25, 64, v24
v_xor_b32 v26, 0x80, v24
v_xor_b32 v27, 0xc0, v24
s_lshl_b32 {s(sT0)}, {s(sH)}, 12
s_add_u32 {s(sT0)}, {s(sT0)}, {W_H1}
v_add_u32 v8, {s(sT0)}, v3
s_lshl_b32 {s(sT1)}, {s(sJ)}, 9
v_add_u32 v6, {s(sT1)}, v3
s_movk_i32 {s(sT1)}, 0xfff
v_and_b32 v16, {s(sT1)}, v6
v_add_u32 v6, 0x400, v6
v_and_b32 v17, {s(sT1)}, v6
v_add_u32 v6, 0x400, v6
v_and_b32 v18, {s(sT1)}, v6
v_add_u32 v6, 0x400, v6
v_and_b32 v19, {s(sT1)}, v6
v_add_u32 v32, {s(sT0)}, v16
v_add_u32 v33, {s(sT0)}, v17
v_add_u32 v34, {s(sT0)}, v18
v_add_u32 v35, {s(sT0)}, v19
v_add_u32 v9, {L_CX}, v3
v_and_b32 v10, 1, v2
v_lshlrev_b32 v10, 1, v10
v_lshrrev_b32 v11, 1, v2
v_add_u32 v10, v10, v11
v_lshl_add_u32 v10, v1, 2, v10
v_lshlrev_b32 v10, 2, v10
v_add_u32 v10, {L_CL}, v10
v_lshlrev_b32 v11, 4, v2
v_add_u32 v11, {L_CL}, v11
s_lshl_b32 {s(sT0)}, s2, 8
s_add_u32 {s(sT0)}, {s(sT0)}, {W_H2}
v_lshl_add_u32 v12, v2, 2, v1
v_lshl_add_u32 v12, v12, 4, {s(sT0)}
v_cmp_eq_u32 {P(sM1)}, 1, v1
v_cmp_eq_u32 {P(sM2)}, 2, v1
v_cmp_eq_u32 {P(sM3)}, 3, v1
s_mov_b32 {s(sK0)}, 0x0c04000c
s_mov_b32 {s(sK1)}, 0x0402010c
''')
epoch_ready()
I(f'v_mov_b32 v22, {s(sEP)}')
I(f'v_mov_b32 v23, {s(sEP)}')
I('s_setprio 1')
NP = args.np
for p_ in range(NP):
    I(f'v_mov_b32 {v(G1 + 16 * p_ + 3)}, v22')
    for e in range(3):
        I(f'v_mov_b32 {v(G1 + 16 * p_ + e)}, 0')


def h1_loads(p_):
    for k in range(4):
        if k == 0:
            I('s_mov_b32 exec_lo, 0')
        I(f'global_load_dwordx4 {v(G1 + 16 * p_ + 4 * k, 4)}, {v(32 + k)}, {P(pWS)} sc1')
        if k == 0:
            I('s_mov_b32 exec_lo, -1')


if args.hint1:
    assert NP == 1
    I(f's_lshl_b32 {s(sT0)}, {s(sH)}, 12')
    I(f's_add_u32 {s(sT0)}, {s(sT0)}, {W_H1 + 508}')
    I(f's_add_u32 {s(sB)}, {s(pWS)}, {s(sT0)}')
    I(f's_addc_u32 {s(sB + 1)}, {s(pWS + 1)}, 0')
    HO = [4, 5, 6, 7, 8, 9, 12]
    for k in range(7):
        I(f's_add_u32 {s(HO[k])}, {s(sJ)}, {k + 1}')
        I(f's_and_b32 {s(HO[k])}, {s(HO[k])}, 7')
        I(f's_lshl_b32 {s(HO[k])}, {s(HO[k])}, 9')
    scalar_poll([s(r) for r in HO])
else:
    I('s_waitcnt vmcnt(4)')
TS(2)
h1_loads(0)
I('s_waitcnt vmcnt(4)')
for tau in range(4):
    for t in range(4):
        I(f'ds_read_b128 {v(WK + 16 * tau + 4 * t, 4)}, {v(24 + t)} offset:{4096 * tau}')
for p_ in range(1, NP):
    if p_ > 1 and args.sl:
        I(f's_sleep {args.sl}')
    h1_loads(p_)
I(f's_mov_b32 {s(sCNT)}, {args.spin}')
a.label('L_F1_poll')
for p_ in range(NP):
    G = G1 + 16 * p_
    I(f's_sub_u32 {s(sCNT)}, {s(sCNT)}, 1')
    I(f's_waitcnt vmcnt({4 * (NP - 1)})')
    I(f'v_xor_b32 v16, {v(G + 3)}, v22')
    for k in range(1, 4):
        I(f'v_bitop3_b32 v16, {v(G + 4 * k + 3)}, v22, v16 bitop3:0xbe')
    I('v_cmp_ne_u32 vcc, 0, v16')
    a.B(f's_cbranch_scc1 L_F1_go{p_}')
    a.B(f's_cbranch_vccz L_F1_go{p_}')
    h1_loads(p_)
I('s_branch L_F1_poll')
Q4 = 40
for p_ in reversed(range(NP)):
    G = G1 + 16 * p_
    a.label(f'L_F1_go{p_}')
    for k in range(4):
        I(f'v_perm_b32 {v(G + 4 * k + 3)}, {v(G + 4 * k + 1)}, {v(G + 4 * k)}, {s(sK0)}')
    for k in range(4):
        I(f'v_perm_b32 {v(G + 4 * k + 3)}, {v(G + 4 * k + 2)}, {v(G + 4 * k + 3)}, {s(sK1)}')
    for k in range(2):
        for e in range(4):
            I(f'v_add_f32 {v(G + 4 * k + e)}, {v(G + 4 * k + e)}, {v(G + 4 * (k + 2) + e)}')
    for e in range(4):
        I(f'v_add_f32 {v(Q4 + e)}, {v(G + e)}, {v(G + 4 + e)}')
    if p_:
        I('s_branch L_F1_go')
a.label('L_F1_go')
flag_wait(F_F0, 1)
I(f'ds_read_b128 {v(Q4 + 4, 4)}, v9')
TS(3)
TSN()
I('s_waitcnt lgkmcnt(0)')
I('s_mov_b32 exec_hi, 0')
for e in range(4):
    I(f'v_add_f32 {v(Q4 + e)}, {v(Q4 + e)}, {v(Q4 + 4 + e)}')
I('s_mov_b64 exec, -1')
G1 = Q4
I(f'v_permlane32_swap_b32 {v(G1)}, {v(G1 + 2)}')
I(f'v_permlane32_swap_b32 {v(G1 + 1)}, {v(G1 + 3)}')
I(f'v_add_f32 {v(G1)}, {v(G1)}, {v(G1 + 2)}')
I(f'v_add_f32 {v(G1 + 1)}, {v(G1 + 1)}, {v(G1 + 3)}')
I(f'v_cvt_pk_bf16_f32 v16, {v(G1)}, {v(G1 + 1)}')
I('ds_write_b32 v10, v16')
for t in range(4):
    I(f'ds_read_b128 {v(QF + 4 * t, 4)}, v11 offset:{64 * t}')
for t in range(4):
    I(f's_waitcnt lgkmcnt({3 - t})')
    for tau in range(4):
        I(f'{MFMA} {v(DK + 4 * tau, 4)}, {v(WK + 16 * tau + 4 * t, 4)}, {v(QF + 4 * t, 4)}, {"0" if t == 0 else v(DK + 4 * tau, 4)}')
for tau in range(4):
    I(f'v_cvt_pk_bf16_f32 {v(24 + 2 * tau)}, {v(DK + 4 * tau)}, {v(DK + 4 * tau + 1)}')
    I(f'v_cvt_pk_bf16_f32 {v(25 + 2 * tau)}, {v(DK + 4 * tau + 2)}, {v(DK + 4 * tau + 3)}')
    if tau == 1:
        I(f'v_cndmask_b32 v20, v24, v26, {P(sM1)}')
        I(f'v_cndmask_b32 v21, v25, v27, {P(sM1)}')
    if tau == 2:
        I(f'v_cndmask_b32 v20, v20, v28, {P(sM2)}')
        I(f'v_cndmask_b32 v21, v21, v29, {P(sM2)}')
I(f'v_cndmask_b32 v20, v20, v30, {P(sM3)}')
I(f'v_cndmask_b32 v21, v21, v31, {P(sM3)}')
I('s_mov_b32 exec_lo, 0x000f000f')
I('s_mov_b32 exec_hi, 0x000f000f')
I(f'global_store_dwordx4 v12, v[20:23], {P(pWS)} sc1')
TS(4)
I('s_setprio 0')
flag_add(F_H2)
I('s_waitcnt vmcnt(0)')
flag_add(F_H2)
a.label('L_PV1')
tr_addr()
pv_setup()
for i in range(args.pre):
    tr_slot(i)
I('s_branch L_PVs')

a.label('L_F3')
W1R, W2R, HFG, B1R, FA, MK3 = 128, 160, 24, 28, 96, 40
I('v_lshlrev_b32 v11, 3, v0')
I(f'v_add_u32 v11, {L_FF}, v11')
I('s_waitcnt lgkmcnt(0)')
load_epoch()
I('s_barrier')
epoch_ready()
I('s_cmp_ge_u32 s2, 224')
I('s_cbranch_scc1 L_PV1')
build_sel()
I(f'''
s_and_b32 {s(sT3)}, s2, 15
s_mul_i32 {s(sT0)}, {s(sT3)}, {32 * 3584}
s_lshr_b32 {s(sT1)}, s2, 4
s_lshl_b32 {s(sT1)}, {s(sT1)}, 8
s_add_u32 {s(sT0)}, {s(sT0)}, {s(sT1)}
v_mul_u32_u24 v8, {8 * 3584}, v2
v_lshl_add_u32 v8, v1, 4, v8
v_add_u32 v8, {s(sT0)}, v8
s_movk_i32 {s(sT2)}, {2 * 3584}
s_lshl_b32 {s(sT3)}, {s(sT3)}, 6
s_add_u32 {s(sT0)}, {s(sT3)}, {L_XN}
v_lshl_add_u32 v10, v2, 4, {s(sT0)}
s_lshl_b32 {s(sT0)}, {s(sT1)}, 6
s_add_u32 {s(sT0)}, {s(sT0)}, {s(sT3)}
s_lshl_b32 {s(sT0)}, {s(sT0)}, 1
s_add_u32 {s(sT0)}, {s(sT0)}, {W_HF}
v_lshrrev_b32 v29, 2, v0
v_lshlrev_b32 v12, 11, v29
v_and_b32 v9, 3, v0
v_lshl_add_u32 v12, v9, 4, v12
v_add_u32 v12, {s(sT0)}, v12
v_cmp_gt_u32 {P(sM1)}, v0, 31
s_and_b32 {s(sT0)}, s2, 3
s_lshl_b32 {s(sT0)}, {s(sT0)}, 6
s_add_u32 {s(sT0)}, {s(sT0)}, {s(sT1)}
s_bfe_u32 {s(sT1)}, s2, 0x10002
s_lshl3_add_u32 {s(sT0)}, {s(sT1)}, {s(sT0)}
s_bfe_u32 {s(sT1)}, s2, 0x10003
s_lshl2_add_u32 {s(sT0)}, {s(sT1)}, {s(sT0)}
v_lshl_add_u32 v6, v9, 4, {s(sT0)}
s_lshl_b32 {s(sT0)}, s2, 11
s_add_u32 {s(sT0)}, {s(sT0)}, {W_HF}
v_lshlrev_b32 v9, 4, v9
v_lshl_add_u32 v9, v29, 7, v9
v_add_u32 v9, {s(sT0)}, v9
s_mov_b32 {s(sT3)}, 0xffff0000
''')
flag_wait(F_H2 if args.w1 else F_F0, 1)
I(f'ds_read_b128 {v(XP, 4)}, v10')
I(f'global_load_dword {v(B1R)}, v6, {P(pB1)}')
for k in range(8):
    I(f'global_load_dwordx4 {v(W1R + 4 * k, 4)}, v8, {P(pW1)} offset:{3584 * (k & 1)}{NT}')
    if k & 1 and k < 7:
        I(f'v_add_u32 v8, {s(sT2)}, v8')
I('s_waitcnt lgkmcnt(0)')
diag_stage(8, W1R)
I(f'v_cndmask_b32 {v(REC)}, {v(ACC0)}, {v(ACC0 + 2)}, {P(sM1)}')
I(f'v_cndmask_b32 {v(REC + 1)}, {v(ACC0 + 1)}, {v(ACC0 + 3)}, {P(sM1)}')
I(f'global_store_dwordx4 v12, {v(REC, 4)}, {P(pWS)} sc1')
TS(2)
I(f's_mov_b32 {s(sCNT)}, {args.spin}')
flag_wait(F_H2, 2)
a.label('L_TF')
I(f'global_load_dwordx4 {v(HFG, 4)}, v9, {P(pWS)} sc1')
I(f's_sub_u32 {s(sCNT)}, {s(sCNT)}, 1')
I('s_waitcnt vmcnt(0)')
I(f'v_cmp_ne_u32 vcc, {v(HFG + 2)}, {v(REC + 2)}')
a.B('s_cbranch_scc1 L_TF_go')
a.B('s_cbranch_vccnz L_TF')
a.label('L_TF_go')
TSN()
row_allreduce('v_add_f32', [HFG, HFG + 1], steps=(4, 8))
I(f'''
v_permlane32_swap_b32 {v(HFG)}, {v(HFG + 1)}
v_add_f32 {v(HFG)}, {v(HFG)}, {v(HFG + 1)}
v_mov_b32 {v(HFG + 1)}, {v(HFG)}
v_permlane16_swap_b32 {v(HFG)}, {v(HFG + 1)}
v_lshlrev_b32 v16, 16, {v(B1R)}
v_add_f32 {v(HFG)}, {v(HFG)}, {v(HFG + 1)}
v_and_b32 v17, {s(sT3)}, {v(B1R)}
v_cvt_pk_bf16_f32 {v(HFG)}, {v(HFG)}, {v(HFG)}
v_cndmask_b32 v16, v16, v17, {P(sM1)}
v_and_b32 {v(HFG)}, {s(sT3)}, {v(HFG)}
v_add_f32 {v(HFG)}, {v(HFG)}, v16
v_cvt_pk_bf16_f32 {v(HFG)}, {v(HFG)}, {v(HFG)}
v_and_b32 {v(HFG)}, {s(sT3)}, {v(HFG)}
v_max_f32 {v(HFG)}, 0, {v(HFG)}
v_mul_f32 {v(HFG)}, {v(HFG)}, {v(HFG)}
v_cvt_pk_bf16_f32 {v(HFG)}, {v(HFG)}, {v(HFG)}
v_mov_b32 {v(HFG + 1)}, {v(HFG)}
v_permlane32_swap_b32 {v(HFG)}, {v(HFG + 1)}
''')
for g_ in range(4):
    for i in range(2):
        I(f'v_mov_b32 {v(HFG + 2 + i)}, {v(HFG + i)} row_newbcast:{g_} row_mask:{1 << g_}')
I(f'ds_write_b64 v11, {v(HFG + 2, 2)}')
TS(4)
I('s_branch L_PV1')

a.label('L_F2')
I(f'''
v_mov_b32 v16, 0
v_mov_b32 v17, 0
v_mov_b32 v18, 0
v_mov_b32 v19, 0
ds_write_b128 {v(VFL)}, v[16:19]
ds_write_b128 {v(VFL)}, v[16:19] offset:16
ds_write_b128 {v(VFL)}, v[16:19] offset:32
ds_write_b128 {v(VFL)}, v[16:19] offset:48
''')
I('v_and_b32 v5, 3, v0')
I('v_lshlrev_b32 v5, 21, v5')
I('s_waitcnt lgkmcnt(0)')
load_epoch()
if args.touch != 2:
    I('s_barrier')
I('s_mov_b64 exec, 7')
I(f'global_load_dword v22, v5, {P(pWS)} offset:256')
I('s_mov_b64 exec, 3')
if args.touch:
    I(f'global_load_dword v24, v5, {P(pWUV)}')
    I(f'global_load_dword v25, v5, {P(pWO)}')
I('s_mov_b64 exec, 1')
I(f'global_load_dword v23, v16, {P(pOUT)}')
if args.touch:
    for k, p in enumerate((pW1, pW2, pB1, pB2)):
        I(f'global_load_dword {v(26 + k)}, v16, {P(p)}')
I('s_mov_b64 exec, -1')
if args.touch == 2:
    I('s_barrier')
epoch_ready()


a.label('L_QG')
G2, LA = 64, 56
I(f'''
s_lshr_b32 {s(sT1)}, {s(sWV)}, 1
s_lshl1_add_u32 {s(sT0)}, {s(sGA)}, {s(sT1)}
s_lshl_b32 {s(sT0)}, {s(sT0)}, 14
s_add_u32 {s(sT0)}, {s(sT0)}, {W_H2}
v_add_u32 v8, {s(sT0)}, v3
v_add_u32 v9, 0x1000, v8
v_add_u32 v10, 0x2000, v8
v_add_u32 v11, 0x3000, v8
v_lshrrev_b32 v6, 1, v0
v_lshlrev_b32 v6, 8, v6
v_lshl_add_u32 v6, v1, 3, v6
s_lshl_b32 {s(sT1)}, {s(sT1)}, 7
s_add_u32 {s(sT1)}, {s(sT1)}, {L_QA}
v_add_u32 {v(LA)}, {s(sT1)}, v6
''')
for hd in range(1, 8):
    I(f'v_xor_b32 {v(LA + hd)}, {16 * hd}, {v(LA)}')
tr_addr()
pv_setup()
I(f'v_mov_b32 v12, {s(sEP)}')
I('s_setprio 1')
if args.qa:
    flag_wait(C_ISS, 4)
flag_wait(F_H2, 1 + args.h2)
if args.hint2:
    I(f's_cmp_eq_u32 {s(sWV)}, 0')
    I('s_cbranch_scc1 L_QG_w0')
    I(f's_xor_b32 {s(sT0)}, {s(sY)}, 16')
    I(f's_lshl_b32 {s(sT0)}, {s(sT0)}, 11')
    I(f's_add_u32 {s(sT0)}, {s(sT0)}, {W_H2}')
    I(f's_add_u32 {s(sB)}, {s(pWS)}, {s(sT0)}')
    I(f's_addc_u32 {s(sB + 1)}, {s(pWS + 1)}, 0')
    scalar_poll([k * 256 + 252 for k in range(8)])
    flag_add(F_HINT)
    I('s_branch L_QG_hd')
    a.label('L_QG_w0')
    flag_wait(F_HINT, 1)
    a.label('L_QG_hd')
TS(10)


for k in range(16):
    I(f'global_load_dwordx4 {v(G2 + 4 * k, 4)}, {v(8 + (k >> 2))}, {P(pWS)} offset:{(k & 3) * 1024} sc1')
for i in range(args.pre):
    tr_slot(i)
I(f's_mov_b32 {s(sCNT)}, {args.spin}')
a.label('L_QG_chk')
I('v_mov_b32 v6, 0')
for k in range(16):
    I(f's_waitcnt vmcnt({15 - k})')
    I(f'ds_write_b64 {v(LA + (k >> 1))}, {v(G2 + 4 * k, 2)} offset:{(k & 1) * 8192}')
    I(f'v_bitop3_b32 v6, {v(G2 + 4 * k + 2)}, v12, v6 bitop3:0xbe')
I(f's_sub_u32 {s(sCNT)}, {s(sCNT)}, 1')
I('v_cmp_ne_u32 vcc, 0, v6')
a.B('s_cbranch_scc1 L_QG_go')
a.B('s_cbranch_vccz L_QG_go')
I('s_waitcnt lgkmcnt(0)')
for k in range(16):
    lab = a.newlabel('L_qr')
    I(f'v_cmp_ne_u32 vcc, {v(G2 + 4 * k + 2)}, v12')
    I(f's_cbranch_vccz {lab}')
    I('s_mov_b64 exec, vcc')
    I(f'global_load_dwordx4 {v(G2 + 4 * k, 4)}, {v(8 + (k >> 2))}, {P(pWS)} offset:{(k & 3) * 1024} sc1')
    I('s_mov_b64 exec, -1')
    a.label(lab)
I('s_waitcnt vmcnt(0)')
I('s_branch L_QG_chk')
a.label('L_QG_go')
flag_add(C_QA)
I('s_setprio 0')
TS(11)
TSN()
a.label('L_PVs')
for i in range(args.pre, 4):
    tr_slot(i)

a.label('L_PV')
TS(6)
I('s_barrier')
if args.pp:
    I(f's_setprio {args.pp}')
I('s_barrier')
for u in range(4):
    I(f'ds_read_b128 {v(PF + 4 * u, 4)}, {v(48 + u)}')
LW, MW = 32, 36
I(f'ds_read_b128 {v(LW, 4)}, v43')
I(f'ds_read_b128 {v(MW, 4)}, v42')
TS(7)
O = 16
cvt = lambda k: [f'v_cvt_pk_bf16_f32 {v(O + 4 * r + k)}, {v(ACC + 8 * k + r)}, {v(ACC + 8 * k + 4 + r)}' for r in range(4)]
R4 = range(4)
fill = {}


def place(first, ops):
    for i, t_ in enumerate(ops):
        fill.setdefault(first + i // 2, []).append(t_)


w0 = [f'v_add_f32 {v(LW + r)}, {v(LW + r)}, {v(LW + r)} row_ror:{st}' for st in (8, 4, 2, 1) for r in R4]
w0[0] = 's_waitcnt lgkmcnt(0)\n' + w0[0]
w1 = [f'v_cvt_f16_f32 {v(LW + r)}, {v(LW + r)}' for r in R4]
w1 += [f'v_and_or_b32 {v(LW + r)}, {v(LW + r)}, {s(sT0)}, {v(MW + r)}' for r in R4]
w1 += [f'v_lshrrev_b32 {v(LW + r)}, v1, {v(LW + r)}' for r in R4]
w2 = cvt(0) + [f'v_and_b32 {v(O + 4 * r)}, {s(sK2)}, {v(O + 4 * r)}' for r in R4]
w3 = cvt(1) + [f'v_bfi_b32 {v(O + 4 * r + 1)}, {s(sK1)}, {v(LW + r)}, {v(O + 4 * r + 1)}' for r in R4]
w3 += [f'v_add_u32 {v(CK + r)}, {v(O + 4 * r)}, {v(O + 4 * r + 1)}' for r in R4]
w3 += [f'v_add_u32 {v(CK + r)}, {v(CK + r)}, {v(CK + r)} row_ror:{st}' for st in (8, 4, 2, 1) for r in R4]
allw = w0 + w2 + w1 + w3
place(2, allw[:60])
I(f's_mov_b32 {s(sT0)}, 0xffff')
i = 0
for k in range(4):
    for u in range(4):
        for T in (2 * k, 2 * k + 1):
            if k == 0 and T == 0 and u < 2:
                I(f's_waitcnt lgkmcnt({5 - u})')
            I(f'{MFMA} {v(ACC + 4 * T, 4)}, {v(PF + 4 * u, 4)}, {v(BF + (u * 8 + T) * 4, 4)}, {"0" if u == 0 else v(ACC + 4 * T, 4)}')
            for t_ in fill.get(i, []):
                I(t_)
            i += 1
for t_ in allw[60:] + cvt(2):
    I(t_)
for r in range(4):
    I(f'v_sub_u32 {v(CK + r)}, {s(sK0)}, {v(CK + r)}')
    I(cvt(3)[r])
    I(f'v_lshrrev_b32 {v(CK + r)}, v1, {v(CK + r)}')
    I(f'v_and_or_b32 {v(O + 4 * r)}, {v(CK + r)}, {s(sK1)}, {v(O + 4 * r)}')
    I(f'global_store_dwordx4 {v(52 + r)}, {v(O + 4 * r, 4)}, {P(pWS)} sc1')
flag_add(C_ST)
TS(8)
I('s_waitcnt vmcnt(0)')
flag_add(C_ACK)
TS(9)
I('s_waitcnt lgkmcnt(0)')
ts_dump()
I('s_endpgm')

a.label('L_S')
AF, QB, WUV, SA, MK, WO0, QAD = 128, 96, 48, 40, 36, 64, 80
WOR, PL, AW, AT2 = 128, 176, 208, 240
XR2, B2R, OA, W2T, HH = 46, 47, 104, 88, 124
sQ, sDL = sK1, sK2
WOq = lambda q: WO0 + 4 * q if q < 4 else WOR + 4 * (q - 4)
I(f"""
s_lshl2_add_u32 {s(sT0)}, {s(sS)}, {s(sW)}
s_lshl_b32 {s(sT0)}, {s(sT0)}, 15
s_lshl_b32 {s(sT1)}, {s(sW)}, 8
s_add_u32 {s(sT0)}, {s(sT0)}, {s(sT1)}
v_lshlrev_b32 v4, 1, v2
v_xor_b32 v4, v4, v1
v_lshlrev_b32 v4, 4, v4
v_lshl_add_u32 v4, v2, 10, v4
v_add_u32 v4, {s(sT0)}, v4
v_xor_b32 v26, 0x80, v4
v_add_u32 v26, 0x1000, v26
s_mul_i32 {s(sT1)}, {s(sW)}, {32768 + 8192}
s_mov_b32 m0, {s(sT1)}
s_movk_i32 {s(sT2)}, 0x2000
s_mov_b32 {s(sQ)}, {s(sW)}
s_lshr_b32 {s(sHT)}, {s(sY)}, 3
s_lshl2_add_u32 {s(sHT)}, {s(sX)}, {s(sHT)}
s_and_b32 {s(sCI)}, {s(sY)}, 3
s_bfe_u32 {s(sDI)}, {s(sY)}, 0x10002
v_and_b32 v5, 7, v1
v_lshlrev_b32 v5, 1, v5
v_xor_b32 v5, v5, v2
v_lshlrev_b32 v5, 4, v5
v_lshl_add_u32 v5, v1, 8, v5
s_lshl_b32 {s(sT1)}, {s(sW)}, 13
v_add_u32 v5, {s(sT1)}, v5
v_lshl_add_u32 v27, {s(sW)}, 2, {v(VFL)}
""")
I(f"""
s_lshr_b32 {s(sT0)}, {s(sW)}, 1
s_lshl1_add_u32 {s(sT0)}, {s(sCI)}, {s(sT0)}
s_lshl_b32 {s(sT0)}, {s(sT0)}, 19
s_and_b32 {s(sT3)}, {s(sW)}, 1
s_lshl_b32 {s(sT3)}, {s(sT3)}, 16
s_add_u32 {s(sT0)}, {s(sT0)}, {s(sT3)}
s_lshl1_add_u32 {s(sT3)}, {s(sHT)}, {s(sDI)}
s_lshl_b32 {s(sT1)}, {s(sT3)}, 7
s_add_u32 {s(sT0)}, {s(sT0)}, {s(sT1)}
v_lshrrev_b32 v8, 3, v0
v_lshlrev_b32 v8, 13, v8
v_and_b32 v9, 7, v0
v_lshl_add_u32 v8, v9, 4, v8
v_add_u32 v8, {s(sT0)}, v8
""")
I('s_waitcnt lgkmcnt(0)')
load_epoch()
I('s_barrier')
I(f"""
s_lshl_b32 {s(sT0)}, {s(sT3)}, 16
s_lshl_b32 {s(sT1)}, {s(sW)}, 8
s_add_u32 {s(sT0)}, {s(sT0)}, {s(sT1)}
v_lshlrev_b32 v34, 12, v2
v_lshl_add_u32 v34, v1, 4, v34
v_add_u32 v34, {s(sT0)}, v34
""")
for b in range(4):
    I(f's_add_u32 {s(sT0)}, {s(sCI)}, {b}')
    I(f's_and_b32 {s(sT0)}, {s(sT0)}, 3')
    I(f's_lshl_b32 {s(sT0)}, {s(sT0)}, 14')
    I(f'v_add_u32 {v(28 + b)}, {s(sT0)}, v34')
build_masks(MK, 9, 10)
TS(1)


def s_setup():
    I(f"""
    v_lshlrev_b32 v10, 4, v1
    v_add_u32 v10, {L_MX}, v10
    s_lshl_b32 {s(sT0)}, {s(sW)}, 2
    v_add_u32 v9, {s(sT0)}, v10
    s_lshl_b32 {s(sT0)}, {s(sW)}, 10
    s_add_u32 {s(sT0)}, {s(sT0)}, {L_P}
    v_add_u32 v11, {s(sT0)}, v3
    v_lshlrev_b32 v33, 2, v1
    v_add_u32 v33, {L_MF}, v33
    s_lshl_b32 {s(sT0)}, {s(sW)}, 8
    s_add_u32 {s(sT0)}, {s(sT0)}, {L_LS}
    v_lshl_add_u32 v32, v0, 2, {s(sT0)}
    v_xor_b32 v6, v1, v2
    v_lshlrev_b32 v6, 4, v6
    v_lshl_add_u32 v6, v2, 8, v6
    """)
    for i in range(4):
        I(f's_add_u32 {s(sT0)}, {s(sW)}, {i}')
        I(f's_and_b32 {s(sT0)}, {s(sT0)}, 3')
        I(f's_lshl_b32 {s(sT0)}, {s(sT0)}, 12')
        I(f's_add_u32 {s(sT0)}, {s(sT0)}, {L_QA}')
        I(f'v_add_u32 {v(QAD + 2 * i)}, {s(sT0)}, v6')
        I(f'v_xor_b32 {v(QAD + 2 * i + 1)}, 64, {v(QAD + 2 * i)}')
    I(f"""
    s_bfe_u32 {s(sT0)}, s2, 0x20004
    s_and_b32 {s(sT1)}, s2, 3
    s_lshl2_add_u32 {s(sT0)}, {s(sT0)}, {s(sT1)}
    s_lshl_b32 {s(sT0)}, {s(sT0)}, 6
    s_bfe_u32 {s(sT1)}, s2, 0x10002
    s_lshl3_add_u32 {s(sT0)}, {s(sT1)}, {s(sT0)}
    s_bfe_u32 {s(sT1)}, s2, 0x10003
    s_lshl2_add_u32 {s(sT0)}, {s(sT1)}, {s(sT0)}
    v_and_b32 v35, 3, v0
    v_lshl_add_u32 v12, v35, 4, {s(sT0)}
    s_mov_b32 {s(sK0)}, 0x20000
    s_lshr_b32 {s(sT1)}, s2, 6
    s_lshl_b32 {s(sT1)}, {s(sT1)}, 10
    s_add_u32 {s(sT0)}, {s(sT0)}, {s(sT1)}
    s_cmp_lt_u32 s2, 224
    s_cselect_b32 {s(sR)}, -1, 0
    s_cselect_b32 {s(sT1)}, 0, 512
    s_sub_u32 {s(sT0)}, {s(sT0)}, {s(sT1)}
    s_lshl1_add_u32 {s(sT0)}, {s(sT0)}, {s(sW)}
    s_lshl_b32 {s(sT0)}, {s(sT0)}, 8
    v_lshlrev_b32 v34, 13, v2
    v_lshl_add_u32 v34, v1, 4, v34
    v_add_u32 v34, {s(sT0)}, v34
    """)


def dma_row(r):
    k = r & 7
    va = 'v26' if k & 1 else 'v4'
    I(f'global_load_lds_dwordx4 {va}, {P(pCKV)}{NT}')
    if r < 30:
        if k == 5:
            I(f's_lshl_b32 {s(sDL)}, {s(sQ)}, 8')
            I(f's_add_u32 {s(sQ)}, {s(sQ)}, 1')
            I(f's_and_b32 {s(sQ)}, {s(sQ)}, 3')
            I(f's_lshl_b32 {s(sT0)}, {s(sQ)}, 8')
            I(f's_sub_u32 {s(sDL)}, {s(sT0)}, {s(sDL)}')
            I(f's_sub_u32 {s(sDL)}, {s(sDL)}, 24576')
        I(f'v_add_u32 {va}, {s(sDL if k >= 6 else sT2)}, {va}')
    if r < 31:
        if k == 7:
            I(f's_lshl2_add_u32 {s(sT0)}, {s(sQ)}, {s(sW)}')
            I(f's_lshl_b32 m0, {s(sT0)}, 13')
        else:
            I('s_add_u32 m0, m0, 0x400')
    if r == args.qa and r:
        flag_add(C_ISS)


def stage_addr(i):
    I(f's_add_u32 {s(sT1)}, {s(sW)}, {i}')
    I(f's_and_b32 {s(sT1)}, {s(sT1)}, 3')
    I(f's_lshl_b32 {s(sT1)}, {s(sT1)}, 15')
    I(f'v_add_u32 v16, {s(sT1)}, v5')
    for t in range(1, 4):
        I(f'v_xor_b32 {v(16 + t)}, {64 * t}, v16')


def stage_reads(i):
    for t in range(4):
        for tau in range(2):
            I(f'ds_read_b128 {v(AF + 32 * i + 8 * t + 4 * tau, 4)}, {v(16 + t)} offset:{4096 * tau}')


tail = []
for i in range(4):
    tail.append(f'global_load_dwordx4 {v(WO0 + 4 * i, 4)}, v28, {P(pWO)} offset:{1024 * i}{NT if args.nto else ""}')
for i in range(4):
    tail.append(f'global_load_dwordx4 {v(WUV + 4 * i, 4)}, v8, {P(pWUV)}{NT}' + (f'\nv_add_u32 v8, {s(sK0)}, v8' if i < 3 else ''))
for i in range(2):
    tail.append(f'global_load_dwordx4 {v(W2T + 4 * i, 4)}, v34, {P(pW2)} offset:{1024 * i}{NT}')
wuv_loads = []
if args.wuv:
    assert args.tord == 1
    wuv_loads = tail[4:8]
    tail = tail[:4] + tail[8:]
elif args.tord == 1:
    tail = tail[:4] + tail[8:10] + tail[4:8]
if args.tord == 2:
    tail = tail[4:8] + tail[8:10] + tail[:4]
assert args.nt1 + args.ns + args.ne <= len(tail)

depth = lambda r: args.d1 if r < args.k1 else (args.d2 if r < args.k2 else args.d3)
for r in range(args.d1):
    dma_row(r)
s_setup()
I(f'global_load_dword v6, v12, {P(pX)}')
I(f'global_load_dword v7, v12, {P(pB2)}')
I('s_mov_b64 vcc, -1')
stg = 0
for r in range(args.d1, 32):
    if args.tpos <= r < args.tpos + args.ne:
        I(tail.pop(0))
    if args.wuv == 2 and args.k1 <= r < args.k1 + 4:
        I(wuv_loads.pop(0))
    dma_row(r)
    d = depth(r)
    if args.dyn and r >= args.k1 and r < 31:
        lab = a.newlabel('L_dy')
        a.B(f's_cbranch_vccz {lab}')
        I(f'ds_read_b32 {v(VFT)}, {v(VFL)} offset:{4 * F_H2}')
        I(f's_waitcnt vmcnt({args.dyn}) lgkmcnt(0)')
        I(f'v_cmp_eq_u32 vcc, 0, {v(VFT)}')
        a.label(lab)
    if r + 1 > d and r < 31:
        I(f's_waitcnt vmcnt({d})')
        if r + 1 - d >= 8 * (stg + 1):
            flag_add(K0, 27)
            stage_addr(stg)
            stage_reads(stg)
            stg += 1
TS(2)
while stg < 3:
    stage_addr(stg)
    I(f's_waitcnt vmcnt({24 - 8 * stg})')
    flag_add(K0, 27)
    stage_reads(stg)
    stg += 1
for _ in range(args.nt1):
    I(tail.pop(0))
if args.qa == 32:
    flag_add(C_ISS)
stage_addr(3)
epoch_ready()
I('s_setprio 2')
flag_wait(C_QA, 2)
TS(4)
LOOK = 4


def qa_read(t):
    I(f'ds_read_b128 {v(QB + 4 * (t & 7), 4)}, {v(QAD + 2 * (t >> 2) + (t & 1))} offset:{1024 * (t & 3)}')


def wo_rest():
    for q in range(4, 16):
        I(f'global_load_dwordx4 {v(WOq(q), 4)}, {v(28 + (q >> 2))}, {P(pWO)} offset:{1024 * (q & 3)}{NTS}')


def s_mfma(t):
    for tau in range(2):
        I(f'{MFMA} {v(SA + 4 * tau, 4)}, {v(AF + 8 * t + 4 * tau, 4)}, {v(QB + 4 * (t & 7), 4)}, {"0" if t == 0 else v(SA + 4 * tau, 4)}')


for t in range(LOOK):
    qa_read(t)
LAST = args.last
for t in range(12):
    qa_read(t + LOOK)
    I(f's_waitcnt lgkmcnt({LOOK + (9 if LAST <= t < LAST + LOOK else 0)})')
    s_mfma(t)
    if t + 1 == LAST:
        I(f's_waitcnt vmcnt({args.nt1})')
        stage_reads(3)
        flag_add(K0, 27)
        TS(3)
for t in range(12, 16):
    if LAST == 12:
        I(f's_waitcnt lgkmcnt({1 + 2 * (15 - t)})')
    elif t == 12:
        I('s_waitcnt lgkmcnt(3)' if LAST <= 9 else 's_waitcnt lgkmcnt(0)')
    elif LAST <= 9:
        I(f's_waitcnt lgkmcnt({15 - t})')
    s_mfma(t)
    for _ in range((args.ns + 3 - (t - 12)) // 4):
        if tail:
            I(tail.pop(0))
TS(5)
I(f'''
s_mov_b32 {s(sT3)}, 0xffff0000
s_mov_b32 {s(sT0)}, 0x3db504f3
s_mov_b32 {s(sT1)}, 0x3fb8aa3b
v_max3_f32 v24, {v(SA)}, {v(SA + 1)}, {v(SA + 2)}
v_max3_f32 v25, {v(SA + 4)}, {v(SA + 5)}, {v(SA + 6)}
v_max3_f32 v24, v24, {v(SA + 3)}, {v(SA + 7)}
v_max_f32 v24, v24, v25
''')
cross_rows_allreduce('v_max_f32', 24, 25)
I('ds_write_b32 v9, v24')
if args.mimic:
    round_pairs(SA, 8, 16)
I('s_waitcnt lgkmcnt(0)')
I('s_barrier')
I('ds_read_b128 v[20:23], v10')
for i in range(8):
    I(f'v_mul_f32 {v(SA + i)}, {s(sT0)}, {v(SA + i)}')
if args.mimic:
    round_pairs(SA, 8, 16)
I('s_waitcnt lgkmcnt(0)')
I('v_max3_f32 v24, v20, v21, v22')
I('v_max_f32 v24, v24, v23')
if args.mimic:
    I('v_cvt_pk_bf16_f32 v24, v24, v24')
    I(f'v_and_b32 v24, {s(sT3)}, v24')
I(f'v_mul_f32 v24, {s(sT0)}, v24')
assert args.mimic
I('v_cvt_pk_bf16_f32 v24, v24, v24')
I(f'v_and_b32 v25, {s(sT3)}, v24')
I(f'v_mul_f32 v24, {s(sT1)}, v25')
I('ds_write_b32 v33, v25')
for i in range(8):
    I(f'v_fma_f32 {v(SA + i)}, {v(SA + i)}, {s(sT1)}, -v24')
for i in range(8):
    I(f'v_exp_f32 {v(SA + i)}, {v(SA + i)}')
for i in range(4):
    I(f'v_cvt_pk_bf16_f32 {v(16 + i)}, {v(SA + 2 * i)}, {v(SA + 2 * i + 1)}')
I('ds_write_b128 v11, v[16:19]')
I(f's_mov_b32 {s(sT0)}, 0x3f803f80')
I(f'v_dot2_f32_bf16 v25, v16, {s(sT0)}, 0')
for i in range(1, 4):
    I(f'v_dot2_f32_bf16 v25, {v(16 + i)}, {s(sT0)}, v25')
I('ds_write_b32 v32, v25')
I('s_waitcnt lgkmcnt(0)')
I('s_barrier')
I('s_setprio 0')
TS(6)
I(f'v_mov_b32 {v(XR2)}, v6')
I(f'v_mov_b32 {v(B2R)}, v7')
for _ in range(args.nb):
    if tail:
        I(tail.pop(0))
if args.wor == 1:
    wo_rest()
I(f'''
v_lshlrev_b32 v10, 3, v0
v_add_u32 v10, {L_FF}, v10
ds_read_b64 {v(HH, 2)}, v10
s_lshl2_add_u32 {s(sT0)}, {s(sHT)}, {s(sCI)}
s_lshl2_add_u32 {s(sT0)}, {s(sT0)}, {s(sW)}
s_lshl_b32 {s(sT0)}, {s(sT0)}, 13
s_add_u32 {s(sT0)}, {s(sT0)}, {W_H3}
v_lshlrev_b32 v4, 11, v2
v_lshl_add_u32 v4, v1, 4, v4
v_add_u32 v4, {s(sT0)}, v4
s_mul_i32 {s(sK1)}, {s(sEP)}, {(HASH * 8) & 0xffffffff}
s_mov_b32 {s(sK2)}, {EMB}
s_lshl_b32 {s(sT0)}, {s(sW)}, 2
s_add_u32 {s(sT0)}, {s(sT0)}, {L_MX}
v_mov_b32 v7, {s(sT0)}
v_mov_b32 v45, {L_MX}
s_lshl_b32 {s(sT0)}, {s(sW)}, 18
s_lshl_b32 {s(sT1)}, s2, {6 + args.h5}
s_add_u32 {s(sT0)}, {s(sT0)}, {s(sT1)}
s_add_u32 {s(sT0)}, {s(sT0)}, {W_H5}
v_lshrrev_b32 v44, {2 + args.h5}, v0
v_lshlrev_b32 v44, {14 + args.h5}, v44
v_and_b32 v16, {7 if args.h5 else 3}, v0
v_lshl_add_u32 v44, v16, 4, v44
v_add_u32 v44, {s(sT0)}, v44
v_and_b32 v16, 1, v2
v_lshrrev_b32 v17, 1, v2
s_lshl_b32 {s(sT0)}, {s(sW)}, 9
s_add_u32 {s(sT1)}, {s(sT0)}, {L_CL}
v_add_u32 v40, {s(sT1)}, v3
s_add_u32 {s(sT1)}, {s(sT0)}, {L_CX}
v_and_b32 v42, 7, v0
v_lshlrev_b32 v42, 5, v42
v_lshl_add_u32 v42, v16, 4, v42
v_lshl_add_u32 v42, v17, 8, v42
v_add_u32 v42, {s(sT1)}, v42
s_lshl_b32 {s(sT0)}, {s(sW)}, 7
s_add_u32 {s(sT0)}, {s(sT0)}, {L_CL}
v_lshrrev_b32 v41, 3, v0
v_lshl_add_u32 v41, v41, 4, {s(sT0)}
v_lshrrev_b32 v43, 2, v1
v_add_u32 v43, {s(sCI)}, v43
v_and_b32 v43, 3, v43
v_lshlrev_b32 v43, 4, v43
v_lshl_add_u32 v43, v2, 2, v43
v_add_u32 v43, v43, v35
v_lshlrev_b32 v43, 2, v43
v_add_u32 v43, {L_CX}, v43
v_mov_b32 v33, {s(sEP)}
v_cmp_gt_u32 {P(sM1)}, v0, 31
v_and_b32 v16, 1, v0
v_cmp_eq_u32 {P(sM2)}, 1, v16
''')
if tail or args.wor == 2:
    flag_wait(C_ST, 4)
while tail:
    I(tail.pop(0))
if args.wor == 2:
    wo_rest()
flag_wait(C_ACK if args.ew else C_ST, 4)
for i in range(2):
    for r in range(4):
        I(f'v_and_b32 {v(AT2 + 4 * i + r)}, {v(HH + i)}, {v(MK + r)}')
for q in range(4, 4 + args.wpre):
    I(f'global_load_dwordx4 {v(WOq(q), 4)}, {v(28 + (q >> 2))}, {P(pWO)} offset:{1024 * (q & 3)}{NTS}')
if args.dly:
    I(f's_sleep {args.dly}')
if args.gv:
    I(f's_waitcnt vmcnt({args.gv - 1})')
TS(8)
U = 96
nwo = 0


def gather(first):
    global nwo
    for q in range(8):
        I(f'global_load_dwordx4 {v(PL + 4 * q, 4)}, v4, {P(pWS)} offset:{q * 256} sc1')
    if first:
        I('s_waitcnt vmcnt(8)')
        for i in range(2):
            I(f'{MFMA} {v(OA, 4)}, {v(AT2 + 4 * i, 4)}, {v(W2T + 4 * i, 4)}, {"0" if i == 0 else v(OA, 4)}')
    n_ = 0
    for q in range(8):
        d0, d1 = v(PL + 4 * q), v(PL + 4 * q + 1)
        I(f's_waitcnt vmcnt({7 - q + n_})')
        if first and args.wor == 3:
            for _ in range(2 if q < 4 else 1):
                qq = 4 + n_ + args.wpre
                if qq > 15:
                    continue
                I(f'global_load_dwordx4 {v(WOq(qq), 4)}, {v(28 + (qq >> 2))}, {P(pWO)} offset:{1024 * (qq & 3)}{NTS}')
                n_ += 1
        I(f'v_and_b32 v19, {s(sK2)}, {d0}')
        I(f'v_and_b32 {v(U + q)}, {s(sK2)}, {d1}')
        I(f'v_xor_b32 {d0}, v19, {d0}')
        I(f'v_lshl_add_u32 v19, v19, v1, {d1}')
        I(f'v_xor_b32 {d1}, {v(U + q)}, {d1}')
        I(f'v_lshlrev_b32 {v(U + q)}, v1, {v(U + q)}')
        I(f'v_add3_u32 v32, {d0}, v19, {"0" if q == 0 else "v32"}')
    if first:
        nwo = n_


gather(True)
I(f's_mov_b32 {s(sCNT)}, {args.spin}')
a.label('L_T3_chk')
for k in range(4):
    I(f'v_or_b32 {v(20 + k)}, {v(U + k)}, {v(U + k)} row_ror:8 bank_mask:0x3')
I('v_add_u32 v32, v32, v32 row_ror:8')
for k in range(4):
    I(f'v_or_b32 {v(20 + k)}, {v(U + 4 + k)}, {v(U + 4 + k)} row_ror:8 bank_mask:0xc')
I('v_add_u32 v32, v32, v32 row_ror:4')
for k in range(2):
    I(f'v_or_b32 {v(24 + k)}, {v(20 + k)}, {v(20 + k)} row_shl:4 bank_mask:0x5')
for k in range(2):
    I(f'v_or_b32 {v(24 + k)}, {v(22 + k)}, {v(22 + k)} row_shr:4 bank_mask:0xa')
I('v_add_u32 v32, v32, v32 row_ror:2')
for k in range(2):
    I(f'v_or_b32 {v(24 + k)}, {v(24 + k)}, {v(24 + k)} quad_perm:[1,0,3,2]')
I('v_add_u32 v32, v32, v32 row_ror:1')
for k in range(2):
    I(f'v_or_b32 {v(24 + k)}, {v(24 + k)}, {v(24 + k)} quad_perm:[2,3,0,1]')
I(f'v_cmp_ne_u32 vcc, {s(sK1)}, v32')
I(f's_sub_u32 {s(sCNT)}, {s(sCNT)}, 1')
I(f'v_cndmask_b32 v5, v24, v25, {P(sM2)}')
a.B('s_cbranch_vccz L_T3_go')
a.B('s_cbranch_scc1 L_T3_go')
I('s_mov_b64 exec, vcc')
gather(False)
I('s_branch L_T3_chk')
a.label('L_T3_go')
I('s_mov_b64 exec, -1')
TS(7)
I(f's_mov_b32 {s(sT1)}, 0x3fb8aa3b')
I(f'v_and_b32 v6, {s(sT3)}, v5')
I('v_cvt_f32_f16 v21, v5')
I(f'v_mul_f32 v6, {s(sT1)}, v6')
I('v_mul_f32 v21, 0.5, v21')
I('v_max_f32 v18, v6, v6 row_ror:8')
row_allreduce('v_max_f32', [18], steps=(4, 1))
cross_rows_allreduce('v_max_f32', 18, 19)
I('''
v_sub_f32 v17, v6, v18
v_exp_f32 v17, v17
v_cvt_pk_bf16_f32 v16, v17, v17
v_mul_f32 v17, v17, v21
''')
TS(1)
red = [f'v_add_f32 v17, v17, v17 row_ror:{st}' for st in (8, 4, 2, 1)]
red += ['v_mov_b32 v19, v17', 'v_permlane16_swap_b32 v19, v17\nv_add_f32 v17, v17, v19\nv_mov_b32 v19, v17',
        'v_permlane32_swap_b32 v19, v17\nv_add_f32 v17, v17, v19', 'ds_write2_b32 v7, v18, v17 offset0:0 offset1:4']
QL = lambda q: 8 * (q >> 2) + 4 * ((q >> 1) & 1) + (q & 1)


def w_and(q):
    for r in range(4):
        I(f'v_and_b32 {v(AW + 4 * (q & 1) + r)}, v16, {v(MK + r)} row_newbcast:{QL(q)}')


w_and(0)
for q in range(8):
    if q < 7:
        w_and(q + 1)
    I(f'{MFMA} v[24:27], {v(AW + 4 * (q & 1), 4)}, {v(PL + 4 * q, 4)}, {"0" if q == 0 else "v[24:27]"}')
    if q < 4:
        I(red[q])
for t_ in red[4:]:
    I(t_)
I('s_mov_b32 exec_hi, 0')
I('ds_write_b128 v40, v[24:27]')
I('s_mov_b64 exec, -1')
I('s_waitcnt lgkmcnt(0)')
TS(9)
TSN(0)
I('s_barrier')
I('ds_read_b128 v[96:99], v45')
for k in range(4):
    I(f'ds_read_b128 {v(108 + 4 * k, 4)}, v41 offset:{512 * k}')
I('ds_read_b128 v[100:103], v45 offset:16')
I('s_waitcnt lgkmcnt(5)')
I('v_max3_f32 v18, v96, v97, v98')
I('v_max_f32 v18, v18, v99')
for i in range(4):
    I(f'v_sub_f32 {v(96 + i)}, {v(96 + i)}, v18')
for i in range(4):
    I(f'v_exp_f32 {v(96 + i)}, {v(96 + i)}')
I('s_waitcnt lgkmcnt(1)')
for i in range(4):
    I(f'v_mul_f32 {v(20 + i)}, v96, {v(108 + i)}')
for k in range(1, 4):
    for i in range(4):
        I(f'v_fmac_f32 {v(20 + i)}, {v(96 + k)}, {v(108 + 4 * k + i)}')
for i in range(4):
    I(f'v_cvt_pk_bf16_f32 {v(20 + i)}, {v(20 + i)}, {v(20 + i)}')
for r in range(4):
    I(f'v_and_b32 {v(AW + r)}, v20, {v(MK + r)}')
for i in range(4):
    if i < 3:
        for r in range(4):
            I(f'v_and_b32 {v(AW + 4 * (i + 1) + r)}, {v(21 + i)}, {v(MK + r)}')
    I(f'{MFMA} v[24:27], {v(AW + 4 * i, 4)}, {v(WUV + 4 * i, 4)}, {"0" if i == 0 else "v[24:27]"}')
I('s_waitcnt lgkmcnt(0)')
I('v_mul_f32 v18, v96, v100')
for k in range(1, 4):
    I(f'v_fmac_f32 v18, {v(96 + k)}, {v(100 + k)}')
I('v_rcp_f32 v18, v18')
I('s_mov_b32 exec_lo, 0x00ff00ff')
I('s_mov_b32 exec_hi, 0xff00ff00')
I('ds_write_b128 v42, v[24:27]')
I('s_mov_b64 exec, -1')
I('s_waitcnt lgkmcnt(0)')
I('s_barrier')
for k in range(4):
    I(f'ds_read2st64_b32 {v(108 + 2 * k, 2)}, v43 offset0:{2 * k} offset1:{2 * k + 1}')
TS(10)
I('v_mov_b32 v22, v33')
I('v_mov_b32 v23, v33')
for i in range(4):
    I(f'v_and_b32 {v(OA + i)}, {s(sR)}, {v(OA + i)}')
I('s_waitcnt lgkmcnt(0)')
for st in (4, 2, 1):
    for k in range(st):
        I(f'v_add_f32 {v(108 + k)}, {v(108 + k)}, {v(108 + k + st)}')
I('v_mul_f32 v108, v108, v18')
I('v_cvt_pk_bf16_f32 v20, v108, v108')


def wo_and(q):
    for r in range(4):
        I(f'v_and_b32 {v(AT2 + 4 * (q & 1) + r)}, v20, {v(MK + r)} row_newbcast:{q}')


wo_and(0)
for q in range(16):
    if q < 15:
        wo_and(q + 1)
    if args.wor == 3 and q >= 4:
        I(f's_waitcnt vmcnt({15 - q})')
    I(f'{MFMA} {v(OA, 4)}, {v(AT2 + 4 * (q & 1), 4)}, {v(WOq(q), 4)}, {v(OA, 4)}')
TS(11)
I(f'v_cndmask_b32 v20, {v(OA)}, {v(OA + 2)}, {P(sM1)}')
I(f'v_cndmask_b32 v21, {v(OA + 1)}, {v(OA + 3)}, {P(sM1)}')
I(f'global_store_dwordx4 v44, v[20:23], {P(pWS)} sc1')
TS(12)
I('s_cmp_lt_u32 s2, 192')
I('s_cbranch_scc1 L_T_done')
I(f'''
s_bfe_u32 {s(sT0)}, s2, {0x50001 if args.h5 else 0x60000}
s_lshl2_add_u32 {s(sT0)}, {s(sT0)}, {s(sW)}
s_lshl_b32 {s(sT0)}, {s(sT0)}, {12 + args.h5}
s_and_b32 {s(sT1)}, s2, {args.h5}
s_lshl_b32 {s(sT1)}, {s(sT1)}, 6
s_add_u32 {s(sT0)}, {s(sT0)}, {s(sT1)}
s_add_u32 {s(sT0)}, {s(sT0)}, {W_H5}
v_lshrrev_b32 v4, 2, v0
v_lshlrev_b32 v4, {6 + args.h5}, v4
v_lshl_add_u32 v4, v35, 4, v4
v_add_u32 v4, {s(sT0)}, v4
v_add_u32 v5, {2048 << args.h5}, v4
v_lshlrev_b32 v9, 7, v35
v_add_u32 v9, {L_CL}, v9
s_lshl_b32 {s(sT0)}, {s(sW)}, 5
v_lshl_add_u32 v8, v2, 3, {s(sT0)}
v_add_u32 v8, v8, v9
v_lshrrev_b32 v6, 2, v0
v_lshl_add_u32 v9, v6, 3, v9
v_lshlrev_b32 v108, 16, {v(XR2)}
v_and_b32 v109, {s(sT3)}, {v(XR2)}
v_lshlrev_b32 v110, 16, {v(B2R)}
v_and_b32 v111, {s(sT3)}, {v(B2R)}
v_add_f32 v108, v108, v110
v_add_f32 v109, v109, v111
s_mov_b32 {s(sCNT)}, {args.spin}
''')
if args.a5:
    I('s_waitcnt vmcnt(0)')
a.label('L_T5_retry')
for k in range(4):
    I(f'global_load_dwordx4 {v(128 + 4 * k, 4)}, {v(4 + (k >> 1))}, {P(pWS)} offset:{(1024 << args.h5) * (k & 1)} sc1')
I(f's_sub_u32 {s(sCNT)}, {s(sCNT)}, 1')
I('s_waitcnt vmcnt(0)')
I('v_xor_b32 v17, v130, v33')
for k in range(1, 4):
    I(f'v_bitop3_b32 v17, {v(130 + 4 * k)}, v33, v17 bitop3:0xbe')
I('v_cmp_ne_u32 vcc, 0, v17')
for i in range(2):
    I(f'v_add_f32 {v(128 + i)}, {v(128 + i)}, {v(132 + i)}')
    I(f'v_add_f32 {v(136 + i)}, {v(136 + i)}, {v(140 + i)}')
a.B('s_cbranch_scc1 L_T5_go')
a.B('s_cbranch_vccnz L_T5_retry')
a.label('L_T5_go')
TS(13)
TSN(3)
for i in range(2):
    I(f'v_add_f32 {v(20 + i)}, {v(128 + i)}, {v(136 + i)}')
row_allreduce('v_add_f32', [20, 21], steps=(4, 8))
I('ds_write_b64 v8, v[20:21]')
I('s_waitcnt lgkmcnt(0)')
I('s_barrier')
I(f's_cmp_lg_u32 {s(sW)}, 0')
I('s_cbranch_scc1 L_T_done')
I('ds_read_b64 v[20:21], v9')
I('s_waitcnt lgkmcnt(0)')
row_allreduce('v_add_f32', [20, 21], steps=(4, 8))
I('''
v_permlane32_swap_b32 v20, v21
v_add_f32 v20, v20, v21
v_mov_b32 v21, v20
v_permlane16_swap_b32 v20, v21
v_add_f32 v20, v20, v21
v_mov_b32 v21, v20
v_permlane32_swap_b32 v20, v21
v_add_f32 v108, v108, v20
v_add_f32 v109, v109, v21
v_cvt_pk_bf16_f32 v20, v108, v109
s_mov_b64 exec, 15
''')
I(f'global_store_dword v12, v20, {P(pOUT)}')
I('s_cmp_lg_u32 s2, 0xe0')
I('s_cbranch_scc1 L_T_done')
I(f'v_mov_b32 v22, {W_EP}')
I('s_mov_b64 exec, 1')
I(f'global_store_dword v22, v33, {P(pWS)} sc1')
a.label('L_T_done')
TS(14)
ts_dump()
a.label('L_end')
I('s_endpgm')

a.raw('.section .rodata,"a"')
a.raw('.p2align 6')
a.raw(f'.amdhsa_kernel {NAME}_kernel')
a.raw('''  .amdhsa_next_free_vgpr 256
  .amdhsa_next_free_sgpr 102
  .amdhsa_accum_offset 256
  .amdhsa_group_segment_fixed_size 0
  .amdhsa_kernarg_size 112
  .amdhsa_user_sgpr_count 2
  .amdhsa_user_sgpr_kernarg_segment_ptr 1
  .amdhsa_system_sgpr_workgroup_id_x 1
.end_amdhsa_kernel''')
open(args.o, 'w').write(a.text())
```

```python
import sys, argparse, re
from asmlib import Asm, v, s

NAME = 'parallel_sum__compressed_kv_cla__dense_activation_squared_relu__decode'

ap = argparse.ArgumentParser()
A_ = lambda n, d, t=int: ap.add_argument('--' + n, type=t, default=d)
ap.add_argument('-o', default='out.s')
A_('ts', 0)
A_('nt', 1)
A_('d1', 2); A_('k1', 4); A_('d2', 10); A_('k2', 16); A_('d3', 10)
A_('swap', 0)
A_('qa', 16)
A_('h2', 1)
A_('h3', 1)
A_('nt1', 0)
A_('wor', 3)
A_('dyn', 3)
A_('own', 1)
A_('ns', 6)
A_('nb', 0)
A_('w1', 0)
A_('last', 11)
A_('h5', 1)
A_('np', 3)
A_('sl', 5)
A_('pre', 1)
A_('tord', 1)
A_('light', 1)
A_('pt', 0)
A_('dly', 0)
A_('dly5', 0)
A_('hint1', 0)
A_('hint2', 0)
A_('wuv', 0)
A_('ew', 1)
A_('bpos', 1)
A_('a5', 1)
A_('comb', 1)
A_('tpos', 32)
A_('ne', 0)
A_('gv', 1)
A_('pp', 3)
A_('bo', 0)
A_('clk', 0)
A_('wpre', 0)
A_('nts', 0)
A_('nto', 0)
A_('ntm', 0x3f, lambda x: int(x, 0))
A_('xc', 0)
A_('kmap', 0)
A_('p2', 7)
A_('ffn', 0)
A_('dsmax', 1)
A_('mimic', 1)
A_('touch', 0)
A_('spin', 20000)
A_('notail', 0)
A_('tsn', 0)
A_('amp', '', str)
A_('tsmask', 0xffff, lambda x: int(x, 0))
args = ap.parse_args()
NT = ' nt' if args.nt else ''
NTS = ' nt' if args.nts else ''

L_QA = 131072
L_P = L_QA + 16384
L_XN = L_P + 4096
L_MX = L_XN + 1024
L_MF = L_MX + 256
L_MA = L_MF + 128
L_CL = L_MF + 256
L_CX = L_CL + 2048
L_FF = L_CX + 2048
L_LS = L_FF + 512
L_FL = L_LS + 1024
L_END = L_FL + 64
assert L_END <= 163840
F_F0, C_ISS, F_H2, C_QA, C_ST, C_ACK, C_ER, F_HINT, K0 = range(9)
C_L, C_M = K0 + 4, K0 + 5
W_EP = 0
W_H1 = 0x1000
W_H2 = W_H1 + 0x20000
W_HF = W_H2 + 0x10000
W_H5 = W_HF + 0x80000
W_H3 = 0x200000
W_TS = 0x600000
assert W_H5 + 0x100000 <= W_H3

pX, pCKV, pWQ, pWUK, pWUV, pWO, pW1 = 4, 6, 8, 10, 12, 14, 18
pB1, pW2, pB2, pOUT, pDBG, pWS = 20, 22, 24, 26, 28, 30
sWV = 3
sX, sY, sFC, sGA, sS, sR, sHT, sCI, sDI = range(32, 41)
sJ, sH = sX, sY
sEP, sT0, sT1, sT2, sT3, sCNT, sW = 41, 42, 43, 44, 45, 46, 47
sB = 48
sM1, sM2, sM3, sM4 = 50, 52, 54, 56
sK0, sK1, sK2 = 58, 59, 60
TSB = 64
VFL, VONE, VFT = 13, 14, 15

a = Asm()
P = lambda r: s(r, 2)
MFMA = 'v_mfma_f32_16x16x32_bf16'


def I(text):
    for bit, p_ in ((1, pWQ), (2, pWUK), (4, pCKV), (8, pWUV), (16, pW1), (32, pW2)):
        if not args.ntm & bit:
            text = re.sub(r'(global_load\S* .*s\[%d:%d\].*) nt' % (p_, p_ + 1), r'\1', text)
    if args.notail:
        out = []
        for line in text.split('\n'):
            m = re.match(r'\s*global_load_dwordx4 (v\[\d+:\d+\]), v\d+, s\[(\d+):', line)
            if m and int(m.group(2)) in (pWUV, pWO, pW1, pW2):
                line = f'global_load_dwordx4 {m.group(1)}, v3, s[4:5]'
            out.append(line)
        text = '\n'.join(out)
    a.I(text)


def TS(i):
    if args.ts and (args.tsmask >> i) & 1:
        I(f'{"s_memtime" if args.clk else "s_memrealtime"} {s(TSB + 2 * i, 2)}')


def TSN(k=None):
    if args.ts and (k is None or k == args.tsn):
        I(f's_sub_u32 {s(TSB + 2 * 15)}, {args.spin}, {s(sCNT)}')


def ts_dump(n=16):
    if not args.ts:
        return
    if args.xc:
        I(f's_getreg_b32 {s(TSB + 30)}, hwreg(HW_REG_XCC_ID)')
        I(f's_add_u32 {s(TSB + 30)}, {s(TSB + 30)}, {s(sEP)}')
        lab, done = a.newlabel('L_xc'), a.newlabel('L_xcd')
        I('s_cmp_lg_u32 s2, 224')
        I(f's_cbranch_scc1 {done}')
        I(f's_cmp_lg_u32 {s(sWV)}, 4')
        I(f's_cbranch_scc1 {done}')
        I('s_mov_b64 exec, -1')
        I(f'v_mov_b32 v4, {W_TS + args.xc * 512 + 60}')
        I(f'global_load_dword v5, v4, {P(pWS)} sc1')
        I('s_memrealtime s[96:97]')
        I('s_waitcnt vmcnt(0) lgkmcnt(0)')
        I(f'v_readfirstlane_b32 {s(sT0)}, v5')
        I(f's_cmp_eq_u32 {s(sT0)}, {s(TSB + 30)}')
        I(f's_cbranch_scc1 {done}')
        a.label(lab)
        I('s_memrealtime s[98:99]')
        I('s_waitcnt lgkmcnt(0)')
        I(f's_sub_u32 {s(sT1)}, s98, s96')
        I(f's_cmp_lt_u32 {s(sT1)}, 5000')
        I(f's_cbranch_scc1 {lab}')
        a.label(done)
    if args.amp:
        wg, w, k = map(int, args.amp.split(','))
        lab, done = a.newlabel('L_amp'), a.newlabel('L_ampd')
        I(f's_cmp_lg_u32 s2, {wg}')
        I(f's_cbranch_scc1 {done}')
        I(f's_cmp_lg_u32 {s(sWV)}, {w}')
        I(f's_cbranch_scc1 {done}')
        I('s_memrealtime s[96:97]')
        I('s_waitcnt lgkmcnt(0)')
        I(f's_sub_u32 {s(sT0)}, {s(TSB + 2 * k)}, {s(TSB)}')
        I(f's_lshl_b32 {s(sT0)}, {s(sT0)}, 3')
        I(f's_min_u32 {s(sT0)}, {s(sT0)}, 100000')
        a.label(lab)
        I('s_memrealtime s[98:99]')
        I('s_waitcnt lgkmcnt(0)')
        I(f's_sub_u32 {s(sT1)}, s98, s96')
        I(f's_cmp_lt_u32 {s(sT1)}, {s(sT0)}')
        I(f's_cbranch_scc1 {lab}')
        a.label(done)
    I('s_waitcnt lgkmcnt(0)')
    I('s_mov_b64 exec, -1')
    I('v_mov_b32 v4, 0')
    for i in range(n):
        I(f'v_writelane_b32 v4, {s(TSB + 2 * i)}, {i}')
    I(f's_lshl_b32 {s(sT0)}, s2, 3')
    I(f's_add_u32 {s(sT0)}, {s(sT0)}, {s(sWV)}')
    I(f's_lshl_b32 {s(sT0)}, {s(sT0)}, 6')
    I(f's_add_u32 {s(sT0)}, {s(sT0)}, {W_TS}')
    I(f'v_lshl_add_u32 v5, v0, 2, {s(sT0)}')
    I('s_mov_b64 exec, 0xffff')
    I(f'global_store_dword v5, v4, {P(pWS)}')
    I('s_waitcnt vmcnt(0)')


def load_epoch():
    I(f's_load_dword {s(sEP)}, {P(pWS)}, {W_EP}')


def epoch_ready():
    I('s_waitcnt lgkmcnt(0)')
    I(f's_add_u32 {s(sEP)}, {s(sEP)}, 1')


def row_allreduce(op, regs, steps=(8, 4, 2, 1)):
    for st in steps:
        for r in regs:
            I(f'{op} {v(r)}, {v(r)}, {v(r)} row_ror:{st}')


def cross_rows_allreduce(op, r, t):
    for sw in ('v_permlane16_swap_b32', 'v_permlane32_swap_b32'):
        I(f'v_mov_b32 {v(t)}, {v(r)}')
        I(f'{sw} {v(t)}, {v(r)}')
        I(f'{op} {v(r)}, {v(r)}, {v(t)}')


def scalar_poll(offsets):
    lab, done = a.newlabel('L_sp'), a.newlabel('L_spd')
    R = [61, 62, 63, 96, 97, 98, 99, 100]
    I(f's_mov_b32 {s(sCNT)}, {args.spin}')
    a.label(lab)
    for k, o in enumerate(offsets):
        I(f's_load_dword {s(R[k])}, {P(sB)}, {o} glc')
    I(f's_sub_u32 {s(sCNT)}, {s(sCNT)}, 1')
    I(f's_cbranch_scc1 {done}')
    I('s_waitcnt lgkmcnt(0)')
    I(f's_xor_b32 {s(sT0)}, {s(R[0])}, {s(sEP)}')
    for k in range(1, len(offsets)):
        I(f's_xor_b32 {s(sT1)}, {s(R[k])}, {s(sEP)}')
        I(f's_or_b32 {s(sT0)}, {s(sT0)}, {s(sT1)}')
    I(f's_cbranch_scc1 {lab}')
    a.label(done)
    I('s_waitcnt lgkmcnt(0)')


def flag_add(idx, base=VFL):
    I('s_mov_b64 exec, 1')
    I(f'ds_add_u32 {v(base)}, {v(VONE)} offset:{4 * idx}')
    I('s_mov_b64 exec, -1')


def flag_wait(idx, n, base=VFL):
    lab, done = a.newlabel('L_fw'), a.newlabel('L_fwd')
    if args.bo and idx in (F_F0, C_ISS, F_H2, C_ST, C_ACK, K0):
        l2 = a.newlabel('L_fw')
        a.B(f's_branch {l2}')
        a.label(lab)
        I(f's_sleep {args.bo}')
        a.label(l2)
    else:
        a.label(lab)
    I(f'ds_read_b32 {v(VFT)}, {v(base)} offset:{4 * idx}')
    I(f's_sub_u32 {s(sFC)}, {s(sFC)}, 1')
    I('s_waitcnt lgkmcnt(0)')
    I(f'v_cmp_gt_u32 vcc, {n}, {v(VFT)}')
    a.B(f's_cbranch_scc1 {done}')
    a.B(f's_cbranch_vccnz {lab}')
    a.label(done)
    I(f's_max_i32 {s(sFC)}, {s(sFC)}, 0')


def build_masks(M, t0, t1):
    I(f'v_and_b32 {v(t0)}, 1, v1')
    I(f'v_lshlrev_b32 {v(t0)}, 4, {v(t0)}')
    I(f'v_mov_b32 {v(t1)}, 0xffff')
    I(f'v_lshlrev_b32 {v(t1)}, {v(t0)}, {v(t1)}')
    I(f'v_bfe_u32 {v(t0)}, v1, 1, 2')
    for r in range(4):
        I(f'v_cmp_eq_u32 vcc, {r}, {v(t0)}')
        I(f'v_cndmask_b32 {v(M + r)}, 0, {v(t1)}, vcc')


BF, ACC, PF = 128, 96, 80
AT, SEL, XP, ACC0, REC = 72, 32, 80, 88, 92


def build_sel(t=6):
    J = lambda x: I(re.sub(r'\bv([6-9])\b', lambda m: 'v%d' % (int(m.group(1)) - 6 + t), x))
    J('''
    v_and_b32 v6, 1, v1
    v_cmp_eq_u32 vcc, 1, v6
    v_mov_b32 v7, 0x0c0c0100
    v_mov_b32 v8, 0x01000c0c
    v_cndmask_b32 v7, v7, v8, vcc
    v_mov_b32 v8, 0x0c0c0302
    v_mov_b32 v9, 0x03020c0c
    v_cndmask_b32 v8, v8, v9, vcc
    v_mov_b32 v9, 0x0c0c0c0c
    v_bfe_u32 v6, v1, 1, 2
    ''')
    for r in range(4):
        J(f'v_cmp_eq_u32 vcc, {r}, v6')
        J(f'v_cndmask_b32 {v(SEL + r)}, v9, v7, vcc')
        J(f'v_cndmask_b32 {v(SEL + 4 + r)}, v9, v8, vcc')


def diag_stage(n, W, younger=0):
    def perms(k):
        for r in range(4):
            I(f'v_perm_b32 {v(AT + 4 * (k & 1) + r)}, {v(XP + (k >> 1))}, {v(XP + (k >> 1))}, {v(SEL + 4 * (k & 1) + r)}')
    perms(0)
    for k in range(n):
        if k < n - 1:
            perms(k + 1)
        else:
            I(f'v_mov_b32 {v(REC + 2)}, {s(sEP)}')
            I(f'v_mov_b32 {v(REC + 3)}, {s(sEP)}')
        I(f's_waitcnt vmcnt({n - 1 - k + younger})')
        I(f'{MFMA} {v(ACC0, 4)}, {v(AT + 4 * (k & 1), 4)}, {v(W(k), 4)}, {"0" if k == 0 else v(ACC0, 4)}')


TA = 16


def tr_addr():
    I(f'''
    v_lshrrev_b32 v4, 2, v0
    v_lshlrev_b32 v4, 8, v4
    v_and_b32 v5, 31, v0
    v_lshl_add_u32 v4, v5, 3, v4
    s_lshl_b32 {s(sT0)}, {s(sW)}, 15
    v_add_u32 v4, {s(sT0)}, v4
    ''')


CK = 44
EMB = 0x00010001
HASH = 0x9e3779b1
OCT = ('quad_perm:[1,0,3,2]', 'quad_perm:[2,3,0,1]', 'row_half_mirror')


def pv_setup():
    for i in range(4):
        I(f's_sub_u32 {s(sT0)}, {s(sW)}, {i}')
        I(f's_and_b32 {s(sT0)}, {s(sT0)}, 3')
        I(f's_lshl_b32 {s(sT0)}, {s(sT0)}, 10')
        I(f's_add_u32 {s(sT0)}, {s(sT0)}, {L_P}')
        I(f'v_add_u32 {v(48 + i)}, {s(sT0)}, v3')
    I(f"""
    s_lshl_b32 {s(sT0)}, {s(sGA)}, 6
    s_add_u32 {s(sT0)}, {s(sT0)}, {s(sW)}
    s_lshl_b32 {s(sT0)}, {s(sT0)}, 7
    s_add_u32 {s(sT0)}, {s(sT0)}, {s(sS)}
    s_lshl_b32 {s(sT1)}, {s(sT0)}, 8
    s_add_u32 {s(sT1)}, {s(sT1)}, {W_H3}
    v_lshlrev_b32 v52, 19, v2
    v_lshl_add_u32 v52, v1, 4, v52
    v_add_u32 v52, {s(sT1)}, v52
    s_mov_b32 {s(sT2)}, 0x20000
    v_add_u32 v53, {s(sT2)}, v52
    v_add_u32 v54, {s(sT2)}, v53
    v_add_u32 v55, {s(sT2)}, v54
    v_lshlrev_b32 v42, 4, v2
    v_lshl_add_u32 v43, v1, 6, v42
    v_add_u32 v43, {L_LS}, v43
    v_add_u32 v42, {L_MF}, v42
    s_mul_i32 {s(sK0)}, {s(sEP)}, {HASH}
    s_mov_b32 {s(sK1)}, {EMB}
    s_mov_b32 {s(sK2)}, {~EMB & 0xffffffff}
    """)


def tr_slot(i):
    I(f's_sub_u32 {s(sT0)}, {s(sW)}, {i}')
    I(f's_and_b32 {s(sT0)}, {s(sT0)}, 3')
    I(f's_lshl_b32 {s(sT1)}, {s(sT0)}, 13')
    I(f'v_lshl_add_u32 v5, {s(sT0)}, 2, {v(VFL)}')
    I(f'v_add_u32 {v(TA)}, {s(sT1)}, v4')
    for T in range(1, 8):
        I(f'v_xor_b32 {v(TA + T)}, {32 * T}, {v(TA)}')
    flag_wait(K0, i + 1, 5)
    for T in range(8):
        for tau in range(2):
            I(f'ds_read_b64_tr_b16 {v(BF + (i * 8 + T) * 4 + 2 * tau, 2)}, {v(TA + T)} offset:{tau * 4096}')


def round_pairs(base, n, tmp):
    for i in range(n // 2):
        I(f'v_cvt_pk_bf16_f32 {v(tmp + i)}, {v(base + 2 * i)}, {v(base + 2 * i + 1)}')
    for i in range(n // 2):
        I(f'v_lshlrev_b32 {v(base + 2 * i)}, 16, {v(tmp + i)}')
        I(f'v_and_b32 {v(base + 2 * i + 1)}, {s(sT3)}, {v(tmp + i)}')


hdr = open('cdna_kernels/%s.s.ref' % NAME).read().split('; Override launch geometry')[0]
a.raw(hdr.rstrip())
a.raw(f'; @launch grid=(256,1,1) block=(512,1,1) lds={L_END}')
a.raw('.amdgcn_target "amdgcn-amd-amdhsa--gfx950"')
a.raw('.text')
a.raw(f'.globl {NAME}_kernel')
a.raw('.p2align 8')
a.raw(f'.type {NAME}_kernel,@function')
a.label(f'{NAME}_kernel')
a.label('L_start')
I('s_load_dwordx16 s[4:19], s[0:1], 0')
I('s_load_dwordx8 s[20:27], s[0:1], 64')
I('s_load_dwordx4 s[28:31], s[0:1], 96')
I(f's_getpc_b64 {P(sB)}')
a.label('L_pc')
I('s_cmp_ge_u32 s2, 0x100')
I('s_cbranch_scc1 L_end')
TS(0)
I(f'''
v_lshrrev_b32 v3, 6, v0
v_lshrrev_b32 v4, 5, v0
s_lshr_b32 {s(sY)}, s2, 3
s_and_b32 {s(sT1)}, {s(sY)}, 15
s_lshl_b32 {s(sT1)}, {s(sT1)}, 11
v_lshl_add_u32 v4, v4, 7, {s(sT1)}
v_min_u32 v4, L_end-L_pc, v4
s_mov_b32 exec_lo, 1
s_mov_b32 exec_hi, 1
global_load_dword v15, v4, {P(sB)}
s_mov_b64 exec, -1
v_readfirstlane_b32 {s(sWV)}, v3
v_and_b32 v0, 63, v0
v_and_b32 v1, 15, v0
v_lshrrev_b32 v2, 4, v0
s_and_b32 {s(sX)}, s2, 7
s_lshr_b32 {s(sGA)}, {s(sY)}, 4
s_xor_b32 {s(sGA)}, {s(sGA)}, 1
s_and_b32 {s(sT0)}, {s(sY)}, 15
s_lshl4_add_u32 {s(sS)}, {s(sX)}, {s(sT0)}
s_and_b32 {s(sW)}, {s(sWV)}, 3
v_lshlrev_b32 v3, 4, v0
v_mov_b32 {v(VFL)}, {L_FL}
v_mov_b32 {v(VONE)}, 1
s_mov_b32 {s(sFC)}, 0x200000
s_cmp_ge_u32 {s(sWV)}, 4
''')
a.B('s_cbranch_scc1 L_S')
I(f'''
s_lshl_b32 {s(sT0)}, {s(sJ)}, 19
s_lshl_b32 {s(sT1)}, {s(sH)}, 8
s_add_u32 {s(sT0)}, {s(sT0)}, {s(sT1)}
s_cmp_eq_u32 {s(sWV)}, 1
''')
a.B('s_cbranch_scc1 L_F1')
I(f's_cmp_eq_u32 {s(sWV)}, 2')
a.B('s_cbranch_scc1 L_F2')
I(f's_cmp_eq_u32 {s(sWV)}, 3')
a.B('s_cbranch_scc1 L_F3')

Wq, XR = 128, 120
I(f'''
v_lshlrev_b32 v5, 17, v2
v_lshl_add_u32 v5, v1, 4, v5
v_add_u32 v5, {s(sT0)}, v5
s_movk_i32 {s(sT2)}, 0x2000
s_waitcnt lgkmcnt(0)
''')
I(f'global_load_dwordx4 {v(XR, 4)}, v3, {P(pX)}')
for k in range(16):
    I(f'global_load_dwordx4 {v(Wq + 4 * k, 4)}, v5, {P(pWQ)}{NT}')
    if k < 15:
        I(f'v_add_u32 v5, {s(sT2)}, v5')
if args.bpos == 0:
    I('s_barrier')
load_epoch()
TS(1)
build_sel()
I(f'''
v_add_u32 v10, {L_XN}, v3
s_lshl_b32 {s(sT0)}, {s(sJ)}, 7
s_add_u32 {s(sT0)}, {s(sT0)}, {L_XN}
v_lshl_add_u32 v11, v2, 5, {s(sT0)}
s_lshl_b32 {s(sT0)}, s2, 9
s_add_u32 {s(sT0)}, {s(sT0)}, {W_H1}
v_add_u32 v12, {s(sT0)}, v3
s_mov_b32 {s(sT3)}, 0xffff0000
s_mov_b32 {s(sK0)}, 0x07060501
s_mov_b32 {s(sK1)}, 0x07060502
s_mov_b32 {s(sK2)}, 0x07060503
''')
F, Dd, t0, t1, t2, t3, PK = 96, 104, 112, 113, 114, 115, 116
I('s_waitcnt vmcnt(16)')
if args.bpos == 1:
    I('s_barrier')
TS(2)
for i in range(4):
    I(f'v_lshlrev_b32 {v(F + 2 * i)}, 16, {v(XR + i)}')
    I(f'v_and_b32 {v(F + 2 * i + 1)}, {s(sT3)}, {v(XR + i)}')
I(f'''
v_add_f32 {v(t0)}, {v(F)}, {v(F + 1)}
v_add_f32 {v(t1)}, {v(F + 2)}, {v(F + 3)}
v_add_f32 {v(t2)}, {v(F + 4)}, {v(F + 5)}
v_add_f32 {v(t3)}, {v(F + 6)}, {v(F + 7)}
v_add_f32 {v(t0)}, {v(t0)}, {v(t1)}
v_add_f32 {v(t2)}, {v(t2)}, {v(t3)}
v_add_f32 {v(t0)}, {v(t0)}, {v(t2)}
''')
row_allreduce('v_add_f32', [t0])
I(f'v_add_f32 {v(t0)}, {v(t0)}, {v(t0)} row_bcast:15 row_mask:0xa')
I(f'v_add_f32 {v(t0)}, {v(t0)}, {v(t0)} row_bcast:31 row_mask:0xc')
I(f'v_mov_b32 {v(t1)}, 0x3b000000')
I(f'v_readlane_b32 {s(sT0)}, {v(t0)}, 63')
I(f'v_mul_f32 {v(t1)}, {s(sT0)}, {v(t1)}')
for i in range(8):
    I(f'v_sub_f32 {v(Dd + i)}, {v(F + i)}, {v(t1)}')
I(f'v_mul_f32 {v(t0)}, {v(Dd)}, {v(Dd)}')
I(f'v_mul_f32 {v(t2)}, {v(Dd + 1)}, {v(Dd + 1)}')
for i in range(2, 8, 2):
    I(f'v_fmac_f32 {v(t0)}, {v(Dd + i)}, {v(Dd + i)}')
    I(f'v_fmac_f32 {v(t2)}, {v(Dd + i + 1)}, {v(Dd + i + 1)}')
I(f'v_add_f32 {v(t0)}, {v(t0)}, {v(t2)}')
I(f'v_cvt_pk_bf16_f32 {v(t1)}, {v(t1)}, {v(t1)}')
I(f'v_and_b32 {v(t1)}, {s(sT3)}, {v(t1)}')
row_allreduce('v_add_f32', [t0], steps=(8,))
for i in range(0, 4):
    I(f'v_sub_f32 {v(Dd + i)}, {v(F + i)}, {v(t1)}')
row_allreduce('v_add_f32', [t0], steps=(4,))
for i in range(4, 8):
    I(f'v_sub_f32 {v(Dd + i)}, {v(F + i)}, {v(t1)}')
row_allreduce('v_add_f32', [t0], steps=(2,))
for i in range(0, 2):
    I(f'v_cvt_pk_bf16_f32 {v(PK + i)}, {v(Dd + 2 * i)}, {v(Dd + 2 * i + 1)}')
row_allreduce('v_add_f32', [t0], steps=(1,))
for i in range(2, 4):
    I(f'v_cvt_pk_bf16_f32 {v(PK + i)}, {v(Dd + 2 * i)}, {v(Dd + 2 * i + 1)}')
I(f'v_add_f32 {v(t0)}, {v(t0)}, {v(t0)} row_bcast:15 row_mask:0xa')
for i in range(0, 2):
    I(f'v_lshlrev_b32 {v(Dd + 2 * i)}, 16, {v(PK + i)}')
    I(f'v_and_b32 {v(Dd + 2 * i + 1)}, {s(sT3)}, {v(PK + i)}')
I(f'v_add_f32 {v(t0)}, {v(t0)}, {v(t0)} row_bcast:31 row_mask:0xc')
for i in range(2, 4):
    I(f'v_lshlrev_b32 {v(Dd + 2 * i)}, 16, {v(PK + i)}')
    I(f'v_and_b32 {v(Dd + 2 * i + 1)}, {s(sT3)}, {v(PK + i)}')
I(f'v_mov_b32 {v(t1)}, 0x3b000000')
I(f'v_readlane_b32 {s(sT0)}, {v(t0)}, 63')
I(f'''
v_mul_f32 {v(t1)}, {s(sT0)}, {v(t1)}
v_cvt_pk_bf16_f32 {v(t1)}, {v(t1)}, {v(t1)}
v_and_b32 {v(t1)}, {s(sT3)}, {v(t1)}
v_add_f32 {v(t1)}, 0x3727c5ac, {v(t1)}
v_cvt_pk_bf16_f32 {v(t1)}, {v(t1)}, {v(t1)}
v_and_b32 {v(t1)}, {s(sT3)}, {v(t1)}
v_sqrt_f32 {v(t1)}, {v(t1)}
v_cvt_pk_bf16_f32 {v(t1)}, {v(t1)}, {v(t1)}
v_and_b32 {v(t1)}, {s(sT3)}, {v(t1)}
v_rcp_f32 {v(t1)}, {v(t1)}
''')
for i in range(8):
    I(f'v_mul_f32 {v(Dd + i)}, {v(Dd + i)}, {v(t1)}')
for i in range(4):
    I(f'v_cvt_pk_bf16_f32 {v(PK + i)}, {v(Dd + 2 * i)}, {v(Dd + 2 * i + 1)}')
I(f'ds_write_b128 v10, {v(PK, 4)}')
I(f'ds_read_b128 {v(XP, 4)}, v11')
I(f'ds_read_b128 {v(XP + 4, 4)}, v11 offset:16')
epoch_ready()
TS(3)
diag_stage(16, lambda k: Wq + 4 * k)
for i in range(3):
    I(f'v_perm_b32 {v(REC + i)}, {v(ACC0 + i)}, {v(ACC0 + 3)}, {s(sK0 + i)}')
I('s_mov_b32 exec_hi, 0')
I(f'global_store_dwordx4 v12, {v(REC, 4)}, {P(pWS)} sc1')
I(f'ds_write_b128 v10, {v(ACC0, 4)} offset:{L_CX - L_XN}')
TS(4)
flag_add(F_F0)
I('s_branch L_QG')

a.label('L_F1')
WK, G1, QF, DK = 128, 192, 96, 112
I(f'''
v_lshlrev_b32 v6, 1, v2
v_xor_b32 v6, v6, v1
v_lshlrev_b32 v5, 13, v2
v_lshl_add_u32 v5, v6, 4, v5
v_add_u32 v5, {s(sT0)}, v5
v_xor_b32 v6, 0x80, v5
v_add_u32 v6, 0x20000, v6
s_mov_b32 {s(sT2)}, 0x40000
s_mov_b32 {s(sT3)}, {(-28 * 8192) & 0xffffffff}
s_mov_b32 m0, {L_QA}
s_waitcnt lgkmcnt(0)
''')
load_epoch()
I('s_barrier')
for k in range(16):
    I(f'global_load_lds_dwordx4 {"v6" if k & 1 else "v5"}, {P(pWUK)}{NT}')
    if k < 15:
        I('s_add_u32 m0, m0, 0x400')
    if k < 14:
        I(f'v_add_u32 {"v6" if k & 1 else "v5"}, {s(sT3 if k & 2 else sT2)}, {"v6" if k & 1 else "v5"}')
TS(1)
I(f'''
v_and_b32 v5, 7, v1
v_lshlrev_b32 v5, 1, v5
v_xor_b32 v5, v5, v2
v_lshlrev_b32 v5, 4, v5
v_lshl_add_u32 v5, v1, 8, v5
v_add_u32 v24, {L_QA}, v5
v_xor_b32 v25, 64, v24
v_xor_b32 v26, 0x80, v24
v_xor_b32 v27, 0xc0, v24
s_lshl_b32 {s(sT0)}, {s(sH)}, 12
s_add_u32 {s(sT0)}, {s(sT0)}, {W_H1}
v_add_u32 v8, {s(sT0)}, v3
s_lshl_b32 {s(sT1)}, {s(sJ)}, 9
v_add_u32 v6, {s(sT1)}, v3
s_movk_i32 {s(sT1)}, 0xfff
v_and_b32 v16, {s(sT1)}, v6
v_add_u32 v6, 0x400, v6
v_and_b32 v17, {s(sT1)}, v6
v_add_u32 v6, 0x400, v6
v_and_b32 v18, {s(sT1)}, v6
v_add_u32 v6, 0x400, v6
v_and_b32 v19, {s(sT1)}, v6
v_add_u32 v32, {s(sT0)}, v16
v_add_u32 v33, {s(sT0)}, v17
v_add_u32 v34, {s(sT0)}, v18
v_add_u32 v35, {s(sT0)}, v19
v_add_u32 v9, {L_CX}, v3
v_and_b32 v10, 1, v2
v_lshlrev_b32 v10, 1, v10
v_lshrrev_b32 v11, 1, v2
v_add_u32 v10, v10, v11
v_lshl_add_u32 v10, v1, 2, v10
v_lshlrev_b32 v10, 2, v10
v_add_u32 v10, {L_CL}, v10
v_lshlrev_b32 v11, 4, v2
v_add_u32 v11, {L_CL}, v11
s_lshl_b32 {s(sT0)}, s2, 7
s_add_u32 {s(sT0)}, {s(sT0)}, {W_H2}
v_lshl_add_u32 v36, v2, 1, v1
v_lshl_add_u32 v12, v36, 4, {s(sT0)}
v_add_u32 v37, 8, v36
v_cmp_eq_u32 {P(sM1)}, 1, v1
s_mov_b32 {s(sM2)}, {EMB}
s_mov_b32 {s(sM2 + 1)}, {~EMB & 0xffffffff}
s_mov_b32 {s(sK0)}, 0x0c04000c
s_mov_b32 {s(sK1)}, 0x0402010c
s_mov_b32 {s(sK2)}, 0x07060302
s_mov_b32 {s(sM3 + 1)}, 0x10000
''')
epoch_ready()
I(f'v_mov_b32 v22, {s(sEP)}')
I(f's_mul_i32 {s(sM3)}, {s(sEP)}, {HASH}')
I('s_setprio 1')
NP = args.np
for p_ in range(NP):
    I(f'v_mov_b32 {v(G1 + 16 * p_ + 3)}, v22')
    for e in range(3):
        I(f'v_mov_b32 {v(G1 + 16 * p_ + e)}, 0')


def h1_loads(p_):
    for k in range(4):
        if k == 0:
            I('s_mov_b32 exec_lo, 0')
        I(f'global_load_dwordx4 {v(G1 + 16 * p_ + 4 * k, 4)}, {v(32 + k)}, {P(pWS)} sc1')
        if k == 0:
            I('s_mov_b32 exec_lo, -1')


if args.hint1:
    assert NP == 1
    I(f's_lshl_b32 {s(sT0)}, {s(sH)}, 12')
    I(f's_add_u32 {s(sT0)}, {s(sT0)}, {W_H1 + 508}')
    I(f's_add_u32 {s(sB)}, {s(pWS)}, {s(sT0)}')
    I(f's_addc_u32 {s(sB + 1)}, {s(pWS + 1)}, 0')
    HO = [4, 5, 6, 7, 8, 9, 12]
    for k in range(7):
        I(f's_add_u32 {s(HO[k])}, {s(sJ)}, {k + 1}')
        I(f's_and_b32 {s(HO[k])}, {s(HO[k])}, 7')
        I(f's_lshl_b32 {s(HO[k])}, {s(HO[k])}, 9')
    scalar_poll([s(r) for r in HO])
else:
    I('s_waitcnt vmcnt(4)')
TS(2)
h1_loads(0)
I('s_waitcnt vmcnt(4)')
for tau in range(4):
    for t in range(4):
        I(f'ds_read_b128 {v(WK + 16 * tau + 4 * t, 4)}, {v(24 + t)} offset:{4096 * tau}')
for p_ in range(1, NP):
    if p_ > 1 and args.sl:
        I(f's_sleep {args.sl}')
    h1_loads(p_)
I(f's_mov_b32 {s(sCNT)}, {args.spin}')
a.label('L_F1_poll')
for p_ in range(NP):
    G = G1 + 16 * p_
    I(f's_sub_u32 {s(sCNT)}, {s(sCNT)}, 1')
    I(f's_waitcnt vmcnt({4 * (NP - 1)})')
    I(f'v_xor_b32 v16, {v(G + 3)}, v22')
    for k in range(1, 4):
        I(f'v_bitop3_b32 v16, {v(G + 4 * k + 3)}, v22, v16 bitop3:0xbe')
    I('v_cmp_ne_u32 vcc, 0, v16')
    a.B(f's_cbranch_scc1 L_F1_go{p_}')
    a.B(f's_cbranch_vccz L_F1_go{p_}')
    h1_loads(p_)
I('s_branch L_F1_poll')
Q4 = 40
for p_ in reversed(range(NP)):
    G = G1 + 16 * p_
    a.label(f'L_F1_go{p_}')
    for k in range(4):
        I(f'v_perm_b32 {v(G + 4 * k + 3)}, {v(G + 4 * k + 1)}, {v(G + 4 * k)}, {s(sK0)}')
    for k in range(4):
        I(f'v_perm_b32 {v(G + 4 * k + 3)}, {v(G + 4 * k + 2)}, {v(G + 4 * k + 3)}, {s(sK1)}')
    for k in range(2):
        for e in range(4):
            I(f'v_add_f32 {v(G + 4 * k + e)}, {v(G + 4 * k + e)}, {v(G + 4 * (k + 2) + e)}')
    for e in range(4):
        I(f'v_add_f32 {v(Q4 + e)}, {v(G + e)}, {v(G + 4 + e)}')
    if p_:
        I('s_branch L_F1_go')
a.label('L_F1_go')
flag_wait(F_F0, 1)
I(f'ds_read_b128 {v(Q4 + 4, 4)}, v9')
TS(3)
TSN()
I('s_waitcnt lgkmcnt(0)')
I('s_mov_b32 exec_hi, 0')
for e in range(4):
    I(f'v_add_f32 {v(Q4 + e)}, {v(Q4 + e)}, {v(Q4 + 4 + e)}')
I('s_mov_b64 exec, -1')
G1 = Q4
I(f'v_permlane32_swap_b32 {v(G1)}, {v(G1 + 2)}')
I(f'v_permlane32_swap_b32 {v(G1 + 1)}, {v(G1 + 3)}')
I(f'v_add_f32 {v(G1)}, {v(G1)}, {v(G1 + 2)}')
I(f'v_add_f32 {v(G1 + 1)}, {v(G1 + 1)}, {v(G1 + 3)}')
I(f'v_cvt_pk_bf16_f32 v16, {v(G1)}, {v(G1 + 1)}')
I('ds_write_b32 v10, v16')
for t in range(4):
    I(f'ds_read_b128 {v(QF + 4 * t, 4)}, v11 offset:{64 * t}')
for half in ((0, 2), (1, 3)):
    for t in range(4):
        if half[0] == 0:
            I(f's_waitcnt lgkmcnt({3 - t})')
        for tau in half:
            I(f'{MFMA} {v(DK + 4 * tau, 4)}, {v(WK + 16 * tau + 4 * t, 4)}, {v(QF + 4 * t, 4)}, {"0" if t == 0 else v(DK + 4 * tau, 4)}')
        if half[0] == 1 and t == 1:
            for tau in (0, 2):
                for r in range(4):
                    I(f'v_add_u32 {v(DK + 4 * tau + r)}, {s(sM3 + 1)}, {v(DK + 4 * tau + r)}')
        if half[0] == 1 and t == 2:
            for tau in (0, 2):
                for r in range(2):
                    I(f'v_perm_b32 {v(24 + 2 * tau + r)}, {v(DK + 4 * tau + 2 * r + 1)}, {v(DK + 4 * tau + 2 * r)}, {s(sK2)}')
for r in (24, 25, 28, 29):
    I(f'v_and_b32 {v(r)}, {s(sM2 + 1)}, {v(r)}')
I('v_add3_u32 v16, v24, v25, v28')
I('v_add_u32 v16, v16, v29')
I('v_mov_b32 v17, v16')
I(f'v_cndmask_b32 v20, v24, v28, {P(sM1)}')
I(f'v_cndmask_b32 v21, v25, v29, {P(sM1)}')
I('v_permlane16_swap_b32 v17, v16')
I('v_add_u32 v16, v16, v17')
I('v_mov_b32 v17, v16')
for tau in (1, 3):
    I(f'v_cvt_pk_bf16_f32 {v(24 + 2 * tau)}, {v(DK + 4 * tau)}, {v(DK + 4 * tau + 1)}')
I('v_permlane32_swap_b32 v17, v16')
for tau in (1, 3):
    I(f'v_cvt_pk_bf16_f32 {v(25 + 2 * tau)}, {v(DK + 4 * tau + 2)}, {v(DK + 4 * tau + 3)}')
I('v_add_u32 v16, v16, v17')
I(f'v_sub_u32 v16, {s(sM3)}, v16')
I(f'v_cndmask_b32 v22, v26, v30, {P(sM1)}')
I('v_lshrrev_b32 v17, v36, v16')
I('v_lshrrev_b32 v16, v37, v16')
I(f'v_cndmask_b32 v23, v27, v31, {P(sM1)}')
I(f'v_and_or_b32 v20, v17, {s(sM2)}, v20')
I(f'v_and_or_b32 v21, v16, {s(sM2)}, v21')
I('s_mov_b32 exec_lo, 0x00030003')
I('s_mov_b32 exec_hi, 0x00030003')
I(f'global_store_dwordx4 v12, v[20:23], {P(pWS)} sc1')
TS(4)
I('s_setprio 0')
flag_add(F_H2)
I('s_waitcnt vmcnt(0)')
flag_add(F_H2)
a.label('L_PV1')
tr_addr()
pv_setup()
for i in range(args.pre):
    tr_slot(i)
I('s_branch L_PVs')

a.label('L_F3')
HFG, B1R = 24, 28
W1T = lambda k: 56 + 4 * k if k < 6 else 8 if k == 6 else 4
I('s_waitcnt lgkmcnt(0)')
load_epoch()
I('s_barrier')
epoch_ready()


def ffn_w1(dst):
    I(f"""
    s_and_b32 {s(sT3)}, s2, 15
    s_mul_i32 {s(sT0)}, {s(sT3)}, {32 * 3584}
    s_lshr_b32 {s(sT1)}, s2, 4
    s_lshl_b32 {s(sT1)}, {s(sT1)}, 8
    s_add_u32 {s(sT0)}, {s(sT0)}, {s(sT1)}
    v_mul_u32_u24 v12, {8 * 3584}, v2
    v_lshl_add_u32 v12, v1, 4, v12
    v_add_u32 v12, {s(sT0)}, v12
    s_movk_i32 {s(sT2)}, {2 * 3584}
    """)
    for k in range(8):
        I(f'global_load_dwordx4 {v(dst(k), 4)}, v12, {P(pW1)} offset:{3584 * (k & 1)}{NT}')
        if k & 1 and k < 7:
            I(f'v_add_u32 v12, {s(sT2)}, v12')


def ffn_rest(dst, younger):
    global AT, SEL
    AT, SEL = 128, 136
    I(f"""
    s_and_b32 {s(sT3)}, s2, 15
    s_lshr_b32 {s(sT1)}, s2, 4
    s_lshl_b32 {s(sT1)}, {s(sT1)}, 8
    s_lshl_b32 {s(sT3)}, {s(sT3)}, 6
    s_add_u32 {s(sT0)}, {s(sT3)}, {L_XN}
    v_lshl_add_u32 v144, v2, 4, {s(sT0)}
    ds_read_b128 {v(XP, 4)}, v144
    s_lshl_b32 {s(sT0)}, {s(sT1)}, 6
    s_add_u32 {s(sT0)}, {s(sT0)}, {s(sT3)}
    s_lshl_b32 {s(sT0)}, {s(sT0)}, 1
    s_add_u32 {s(sT0)}, {s(sT0)}, {W_HF}
    v_lshrrev_b32 v145, 2, v0
    v_lshlrev_b32 v146, 11, v145
    v_and_b32 v147, 3, v0
    v_lshl_add_u32 v146, v147, 4, v146
    v_add_u32 v146, {s(sT0)}, v146
    v_cmp_gt_u32 {P(sM1)}, v0, 31
    s_and_b32 {s(sT0)}, s2, 3
    s_lshl_b32 {s(sT0)}, {s(sT0)}, 6
    s_add_u32 {s(sT0)}, {s(sT0)}, {s(sT1)}
    s_bfe_u32 {s(sT1)}, s2, 0x10002
    s_lshl3_add_u32 {s(sT0)}, {s(sT1)}, {s(sT0)}
    s_bfe_u32 {s(sT1)}, s2, 0x10003
    s_lshl2_add_u32 {s(sT0)}, {s(sT1)}, {s(sT0)}
    v_lshl_add_u32 v148, v147, 4, {s(sT0)}
    s_lshl_b32 {s(sT0)}, s2, 11
    s_add_u32 {s(sT0)}, {s(sT0)}, {W_HF}
    v_lshlrev_b32 v147, 4, v147
    v_lshl_add_u32 v147, v145, 7, v147
    v_add_u32 v147, {s(sT0)}, v147
    v_lshlrev_b32 v149, 3, v0
    v_add_u32 v149, {L_FF}, v149
    s_mov_b32 {s(sT3)}, 0xffff0000
    """)
    build_sel(150)
    I('s_waitcnt lgkmcnt(0)')
    diag_stage(8, dst, younger)
    I(f'v_cndmask_b32 {v(REC)}, {v(ACC0)}, {v(ACC0 + 2)}, {P(sM1)}')
    I(f'v_cndmask_b32 {v(REC + 1)}, {v(ACC0 + 1)}, {v(ACC0 + 3)}, {P(sM1)}')
    I(f'global_store_dwordx4 v146, {v(REC, 4)}, {P(pWS)} sc1')
    I(f'global_load_dword {v(B1R)}, v148, {P(pB1)}')
    TS(2)
    I(f's_mov_b32 {s(sCNT)}, {args.spin}')
    if args.ffn:
        I('s_waitcnt vmcnt(2)')
        flag_add(C_ACK)
        I('s_waitcnt vmcnt(0)')
    else:
        flag_wait(F_H2, 2)
    a.label('L_TF')
    I(f'global_load_dwordx4 {v(HFG, 4)}, v147, {P(pWS)} sc1')
    I(f's_sub_u32 {s(sCNT)}, {s(sCNT)}, 1')
    I('s_waitcnt vmcnt(0)')
    I(f'v_cmp_ne_u32 vcc, {v(HFG + 2)}, {v(REC + 2)}')
    a.B('s_cbranch_scc1 L_TF_go')
    a.B('s_cbranch_vccnz L_TF')
    a.label('L_TF_go')
    TSN()
    row_allreduce('v_add_f32', [HFG, HFG + 1], steps=(4, 8))
    I(f'''
    v_permlane32_swap_b32 {v(HFG)}, {v(HFG + 1)}
    v_add_f32 {v(HFG)}, {v(HFG)}, {v(HFG + 1)}
    v_mov_b32 {v(HFG + 1)}, {v(HFG)}
    v_permlane16_swap_b32 {v(HFG)}, {v(HFG + 1)}
    v_lshlrev_b32 v16, 16, {v(B1R)}
    v_add_f32 {v(HFG)}, {v(HFG)}, {v(HFG + 1)}
    v_and_b32 v17, {s(sT3)}, {v(B1R)}
    v_cvt_pk_bf16_f32 {v(HFG)}, {v(HFG)}, {v(HFG)}
    v_cndmask_b32 v16, v16, v17, {P(sM1)}
    v_and_b32 {v(HFG)}, {s(sT3)}, {v(HFG)}
    v_add_f32 {v(HFG)}, {v(HFG)}, v16
    v_cvt_pk_bf16_f32 {v(HFG)}, {v(HFG)}, {v(HFG)}
    v_and_b32 {v(HFG)}, {s(sT3)}, {v(HFG)}
    v_max_f32 {v(HFG)}, 0, {v(HFG)}
    v_mul_f32 {v(HFG)}, {v(HFG)}, {v(HFG)}
    v_cvt_pk_bf16_f32 {v(HFG)}, {v(HFG)}, {v(HFG)}
    v_mov_b32 {v(HFG + 1)}, {v(HFG)}
    v_permlane32_swap_b32 {v(HFG)}, {v(HFG + 1)}
    ''')
    for g_ in range(4):
        for i in range(2):
            I(f'v_mov_b32 {v(HFG + 2 + i)}, {v(HFG + i)} row_newbcast:{g_} row_mask:{1 << g_}')
    I(f'ds_write_b64 v149, {v(HFG + 2, 2)}')
    TS(4)


if not args.ffn:
    I('s_cmp_ge_u32 s2, 224')
    I('s_cbranch_scc1 L_PV1')
    flag_wait(F_F0, 1)
    ffn_w1(W1T)
    ffn_rest(W1T, 0)
I('s_branch L_PV1')

a.label('L_F2')
I(f'''
v_mov_b32 v16, 0
v_mov_b32 v17, 0
v_mov_b32 v18, 0
v_mov_b32 v19, 0
ds_write_b128 {v(VFL)}, v[16:19]
ds_write_b128 {v(VFL)}, v[16:19] offset:16
ds_write_b128 {v(VFL)}, v[16:19] offset:32
ds_write_b128 {v(VFL)}, v[16:19] offset:48
v_lshlrev_b32 v20, 2, v1
v_add_u32 v20, {L_MA}, v20
v_mov_b32 v21, 0xff800000
ds_write_b32 v20, v21
''')
I('v_and_b32 v5, 3, v0')
I('v_lshlrev_b32 v5, 21, v5')
I('s_waitcnt lgkmcnt(0)')
load_epoch()
if args.touch != 2:
    I('s_barrier')
I('s_mov_b64 exec, 7')
I(f'global_load_dword v22, v5, {P(pWS)} offset:256')
I('s_mov_b64 exec, 3')
if args.touch:
    I(f'global_load_dword v24, v5, {P(pWUV)}')
    I(f'global_load_dword v25, v5, {P(pWO)}')
I('s_mov_b64 exec, 1')
I(f'global_load_dword v23, v16, {P(pOUT)}')
if args.touch:
    for k, p in enumerate((pW1, pW2, pB1, pB2)):
        I(f'global_load_dword {v(26 + k)}, v16, {P(p)}')
I('s_mov_b64 exec, -1')
if args.touch == 2:
    I('s_barrier')
epoch_ready()


a.label('L_QG')
G2, LA = 64, 56
I(f'''
s_lshr_b32 {s(sT1)}, {s(sWV)}, 1
s_lshl1_add_u32 {s(sT0)}, {s(sGA)}, {s(sT1)}
s_lshl_b32 {s(sT0)}, {s(sT0)}, 13
s_add_u32 {s(sT0)}, {s(sT0)}, {W_H2}
v_add_u32 v8, {s(sT0)}, v3
v_add_u32 v9, 0x1000, v8
v_and_b32 v10, 7, v0
v_add_u32 v11, 8, v10
v_lshlrev_b32 v6, 4, v10
v_lshl_add_u32 v6, v0, 8, v6
s_lshl_b32 {s(sT1)}, {s(sT1)}, 7
s_add_u32 {s(sT1)}, {s(sT1)}, {L_QA}
v_add_u32 {v(LA)}, {s(sT1)}, v6
s_mul_i32 {s(sM3)}, {s(sEP)}, {(HASH * 8) & 0xffffffff}
''')
for hd in range(1, 8):
    I(f'v_xor_b32 {v(LA + hd)}, {16 * hd}, {v(LA)}')
tr_addr()
pv_setup()
I('s_setprio 1')
if args.qa:
    flag_wait(C_ISS, 4)
flag_wait(F_H2, 1 + args.h2)
assert not args.hint2
if args.hint2:
    I(f's_cmp_eq_u32 {s(sWV)}, 0')
    I('s_cbranch_scc1 L_QG_w0')
    I(f's_xor_b32 {s(sT0)}, {s(sY)}, 16')
    I(f's_lshl_b32 {s(sT0)}, {s(sT0)}, 11')
    I(f's_add_u32 {s(sT0)}, {s(sT0)}, {W_H2}')
    I(f's_add_u32 {s(sB)}, {s(pWS)}, {s(sT0)}')
    I(f's_addc_u32 {s(sB + 1)}, {s(pWS + 1)}, 0')
    scalar_poll([k * 256 + 252 for k in range(8)])
    flag_add(F_HINT)
    I('s_branch L_QG_hd')
    a.label('L_QG_w0')
    flag_wait(F_HINT, 1)
    a.label('L_QG_hd')
TS(10)


def qa_loads():
    for k in range(8):
        I(f'global_load_dwordx4 {v(G2 + 4 * k, 4)}, {v(8 + (k >> 2))}, {P(pWS)} offset:{(k & 3) * 1024} sc1')


qa_loads()
for i in range(args.pre):
    tr_slot(i)
I(f's_mov_b32 {s(sCNT)}, {args.spin}')
a.label('L_QG_chk')
for k in range(8):
    d0, d1 = v(G2 + 4 * k), v(G2 + 4 * k + 1)
    I(f's_waitcnt vmcnt({7 - k})')
    I(f'v_and_b32 v6, {s(sK1)}, {d0}')
    I(f'v_and_b32 v7, {s(sK1)}, {d1}')
    I(f'v_xor_b32 {d0}, v6, {d0}')
    I(f'v_xor_b32 {d1}, v7, {d1}')
    I(f'ds_write_b128 {v(LA + k)}, {v(G2 + 4 * k, 4)}')
    I(f'v_lshl_add_u32 v24, v6, v10, {"0" if k == 0 else "v24"}')
    I('v_lshl_add_u32 v24, v7, v11, v24')
    I(f'v_add3_u32 v24, {d0}, {d1}, v24')
for st in OCT:
    I(f'v_add_u32 v24, v24, v24 {st}')
I(f's_sub_u32 {s(sCNT)}, {s(sCNT)}, 1')
I(f'v_cmp_ne_u32 vcc, {s(sM3)}, v24')
a.B('s_cbranch_scc1 L_QG_go')
a.B('s_cbranch_vccz L_QG_go')
I('s_waitcnt lgkmcnt(0)')
I('s_mov_b64 exec, vcc')
qa_loads()
I('s_branch L_QG_chk')
a.label('L_QG_go')
flag_add(C_QA)
I('s_setprio 0')
TS(11)
TSN()
a.label('L_PVs')
for i in range(args.pre, 4):
    tr_slot(i)

a.label('L_PV')
if args.ffn:
    I(f's_cmp_eq_u32 {s(sWV)}, 3')
    I(f's_cselect_b32 {s(sR)}, s2, 224')
    I(f's_cmp_ge_u32 {s(sR)}, 224')
    I('s_cbranch_scc1 L_PV_now1')
    ffn_w1(W1T)
    a.label('L_PV_now1')
TS(6)
I('s_barrier')
if args.pp:
    I(f's_setprio {args.pp}')
I('s_barrier')
for u in range(4):
    I(f'ds_read_b128 {v(PF + 4 * u, 4)}, {v(48 + u)}')
LW, MW = 32, 36
I(f'ds_read_b128 {v(LW, 4)}, v43')
I(f'ds_read_b128 {v(MW, 4)}, v42')
TS(7)
O = 16
cvt = lambda k: [f'v_cvt_pk_bf16_f32 {v(O + 4 * r + k)}, {v(ACC + 8 * k + r)}, {v(ACC + 8 * k + 4 + r)}' for r in range(4)]
R4 = range(4)
fill = {}


def place(first, ops):
    for i, t_ in enumerate(ops):
        fill.setdefault(first + i // 2, []).append(t_)


w0 = [f'v_add_f32 {v(LW + r)}, {v(LW + r)}, {v(LW + r)} row_ror:{st}' for st in (8, 4, 2, 1) for r in R4]
w0[0] = 's_waitcnt lgkmcnt(0)\n' + w0[0]
w1 = [f'v_cvt_f16_f32 {v(LW + r)}, {v(LW + r)}' for r in R4]
w1 += [f'v_and_or_b32 {v(LW + r)}, {v(LW + r)}, {s(sT0)}, {v(MW + r)}' for r in R4]
w1 += [f'v_lshrrev_b32 {v(LW + r)}, v1, {v(LW + r)}' for r in R4]
w2 = cvt(0) + [f'v_and_b32 {v(O + 4 * r)}, {s(sK2)}, {v(O + 4 * r)}' for r in R4]
w3 = cvt(1) + [f'v_bfi_b32 {v(O + 4 * r + 1)}, {s(sK1)}, {v(LW + r)}, {v(O + 4 * r + 1)}' for r in R4]
w3 += [f'v_add_u32 {v(CK + r)}, {v(O + 4 * r)}, {v(O + 4 * r + 1)}' for r in R4]
w3 += [f'v_add_u32 {v(CK + r)}, {v(CK + r)}, {v(CK + r)} row_ror:{st}' for st in (8, 4, 2, 1) for r in R4]
allw = w0 + w2 + w1 + w3
place(2, allw[:60])
I(f's_mov_b32 {s(sT0)}, 0xffff')
i = 0
for k in range(4):
    for u in range(4):
        for T in (2 * k, 2 * k + 1):
            if k == 0 and T == 0 and u < 2:
                I(f's_waitcnt lgkmcnt({5 - u})')
            I(f'{MFMA} {v(ACC + 4 * T, 4)}, {v(PF + 4 * u, 4)}, {v(BF + (u * 8 + T) * 4, 4)}, {"0" if u == 0 else v(ACC + 4 * T, 4)}')
            for t_ in fill.get(i, []):
                I(t_)
            i += 1
for t_ in allw[60:] + cvt(2):
    I(t_)
for r in range(4):
    I(f'v_sub_u32 {v(CK + r)}, {s(sK0)}, {v(CK + r)}')
    I(cvt(3)[r])
    I(f'v_lshrrev_b32 {v(CK + r)}, v1, {v(CK + r)}')
    I(f'v_and_or_b32 {v(O + 4 * r)}, {v(CK + r)}, {s(sK1)}, {v(O + 4 * r)}')
    I(f'global_store_dwordx4 {v(52 + r)}, {v(O + 4 * r, 4)}, {P(pWS)} sc1')
flag_add(C_ST)
TS(8)
if args.ffn:
    I('s_setprio 0')
    I(f's_cmp_ge_u32 {s(sR)}, 224')
    I('s_cbranch_scc1 L_PV_noffn')
    ffn_rest(W1T, 4)
    I('s_branch L_PV_end')
    a.label('L_PV_noffn')
I('s_waitcnt vmcnt(0)')
flag_add(C_ACK)
TS(9)
a.label('L_PV_end')
I('s_waitcnt lgkmcnt(0)')
ts_dump()
I('s_endpgm')

a.label('L_S')
AF, QB, WUV, SA, MK, WO0, QAD = 128, 96, 48, 40, 36, 64, 80
WOR, PL, AW, AT2 = 128, 176, 208, 240
XR2, B2R, OA, W2T, HH = 46, 47, 104, 88, 124
sQ, sDL = sK1, sK2
WOq = lambda q: WO0 + 4 * q if q < 4 else WOR + 4 * (q - 4)
KS = {0: 12, 1: 16, 2: 19}[args.kmap]
if args.kmap == 0:
    I(f's_lshl_b32 {s(sT0)}, {s(sS)}, 17')
elif args.kmap == 1:
    I(f's_and_b32 {s(sT0)}, {s(sS)}, 15')
    I(f's_lshl_b32 {s(sT0)}, {s(sT0)}, 12')
    I(f's_lshl_b32 {s(sT1)}, {s(sX)}, 21')
    I(f's_add_u32 {s(sT0)}, {s(sT0)}, {s(sT1)}')
else:
    I(f's_lshl_b32 {s(sT0)}, {s(sS)}, 12')
I(f"""
s_lshl_b32 {s(sT1)}, {s(sW)}, {KS + 3}
s_add_u32 {s(sT0)}, {s(sT0)}, {s(sT1)}
s_lshl_b32 {s(sT1)}, {s(sW)}, 8
s_add_u32 {s(sT0)}, {s(sT0)}, {s(sT1)}
v_lshlrev_b32 v4, 1, v2
v_xor_b32 v4, v4, v1
v_lshlrev_b32 v4, 4, v4
v_lshl_add_u32 v4, v2, 10, v4
v_add_u32 v4, {s(sT0)}, v4
v_xor_b32 v26, 0x80, v4
v_add_u32 v26, {1 << KS}, v26
s_mul_i32 {s(sT1)}, {s(sW)}, {32768 + 8192}
s_mov_b32 m0, {s(sT1)}
s_mov_b32 {s(sT2)}, {2 << KS}
s_mov_b32 {s(sQ)}, {s(sW)}
s_lshr_b32 {s(sHT)}, {s(sY)}, 3
s_lshl2_add_u32 {s(sHT)}, {s(sX)}, {s(sHT)}
s_and_b32 {s(sCI)}, {s(sY)}, 3
s_bfe_u32 {s(sDI)}, {s(sY)}, 0x10002
v_and_b32 v5, 7, v1
v_lshlrev_b32 v5, 1, v5
v_xor_b32 v5, v5, v2
v_lshlrev_b32 v5, 4, v5
v_lshl_add_u32 v5, v1, 8, v5
s_lshl_b32 {s(sT1)}, {s(sW)}, 13
v_add_u32 v5, {s(sT1)}, v5
v_lshl_add_u32 v27, {s(sW)}, 2, {v(VFL)}
""")
I(f"""
s_lshr_b32 {s(sT0)}, {s(sW)}, 1
s_lshl1_add_u32 {s(sT0)}, {s(sCI)}, {s(sT0)}
s_lshl_b32 {s(sT0)}, {s(sT0)}, 19
s_and_b32 {s(sT3)}, {s(sW)}, 1
s_lshl_b32 {s(sT3)}, {s(sT3)}, 16
s_add_u32 {s(sT0)}, {s(sT0)}, {s(sT3)}
s_lshl1_add_u32 {s(sT3)}, {s(sHT)}, {s(sDI)}
s_lshl_b32 {s(sT1)}, {s(sT3)}, 7
s_add_u32 {s(sT0)}, {s(sT0)}, {s(sT1)}
v_lshrrev_b32 v8, 3, v0
v_lshlrev_b32 v8, 13, v8
v_and_b32 v9, 7, v0
v_lshl_add_u32 v8, v9, 4, v8
v_add_u32 v8, {s(sT0)}, v8
""")
I('s_waitcnt lgkmcnt(0)')
load_epoch()
I('s_barrier')
I(f"""
s_lshl_b32 {s(sT0)}, {s(sT3)}, 16
s_lshl_b32 {s(sT1)}, {s(sW)}, 8
s_add_u32 {s(sT0)}, {s(sT0)}, {s(sT1)}
v_lshlrev_b32 v34, 12, v2
v_lshl_add_u32 v34, v1, 4, v34
v_add_u32 v34, {s(sT0)}, v34
""")
for b in range(4):
    I(f's_add_u32 {s(sT0)}, {s(sCI)}, {b}')
    I(f's_and_b32 {s(sT0)}, {s(sT0)}, 3')
    I(f's_lshl_b32 {s(sT0)}, {s(sT0)}, 14')
    I(f'v_add_u32 {v(28 + b)}, {s(sT0)}, v34')
build_masks(MK, 9, 10)
TS(1)


def s_setup():
    I(f"""
    v_lshlrev_b32 v10, 4, v1
    v_add_u32 v10, {L_MX}, v10
    s_lshl_b32 {s(sT0)}, {s(sW)}, 2
    v_add_u32 v9, {s(sT0)}, v10
    s_lshl_b32 {s(sT0)}, {s(sW)}, 10
    s_add_u32 {s(sT0)}, {s(sT0)}, {L_P}
    v_add_u32 v11, {s(sT0)}, v3
    v_lshlrev_b32 v33, 2, v1
    v_add_u32 v33, {L_MF}, v33
    s_lshl_b32 {s(sT0)}, {s(sW)}, 8
    s_add_u32 {s(sT0)}, {s(sT0)}, {L_LS}
    v_lshl_add_u32 v32, v0, 2, {s(sT0)}
    v_xor_b32 v6, v1, v2
    v_lshlrev_b32 v6, 4, v6
    v_lshl_add_u32 v6, v2, 8, v6
    """)
    for i in range(4):
        I(f's_add_u32 {s(sT0)}, {s(sW)}, {i}')
        I(f's_and_b32 {s(sT0)}, {s(sT0)}, 3')
        I(f's_lshl_b32 {s(sT0)}, {s(sT0)}, 12')
        I(f's_add_u32 {s(sT0)}, {s(sT0)}, {L_QA}')
        I(f'v_add_u32 {v(QAD + 2 * i)}, {s(sT0)}, v6')
        I(f'v_xor_b32 {v(QAD + 2 * i + 1)}, 64, {v(QAD + 2 * i)}')
    I(f"""
    s_bfe_u32 {s(sT0)}, s2, 0x20004
    s_and_b32 {s(sT1)}, s2, 3
    s_lshl2_add_u32 {s(sT0)}, {s(sT0)}, {s(sT1)}
    s_lshl_b32 {s(sT0)}, {s(sT0)}, 6
    s_bfe_u32 {s(sT1)}, s2, 0x10002
    s_lshl3_add_u32 {s(sT0)}, {s(sT1)}, {s(sT0)}
    s_bfe_u32 {s(sT1)}, s2, 0x10003
    s_lshl2_add_u32 {s(sT0)}, {s(sT1)}, {s(sT0)}
    v_and_b32 v35, 3, v0
    v_lshl_add_u32 v12, v35, 4, {s(sT0)}
    s_mov_b32 {s(sK0)}, 0x20000
    s_lshr_b32 {s(sT1)}, s2, 6
    s_lshl_b32 {s(sT1)}, {s(sT1)}, 10
    s_add_u32 {s(sT0)}, {s(sT0)}, {s(sT1)}
    s_cmp_lt_u32 s2, 224
    s_cselect_b32 {s(sR)}, -1, 0
    s_cselect_b32 {s(sT1)}, 0, 512
    s_sub_u32 {s(sT0)}, {s(sT0)}, {s(sT1)}
    s_lshl1_add_u32 {s(sT0)}, {s(sT0)}, {s(sW)}
    s_lshl_b32 {s(sT0)}, {s(sT0)}, 8
    v_lshlrev_b32 v34, 13, v2
    v_lshl_add_u32 v34, v1, 4, v34
    v_add_u32 v34, {s(sT0)}, v34
    """)


def dma_row(r):
    k = r & 7
    va = 'v26' if k & 1 else 'v4'
    I(f'global_load_lds_dwordx4 {va}, {P(pCKV)}{NT}')
    if r < 30:
        if k == 5:
            I(f's_lshl_b32 {s(sDL)}, {s(sQ)}, 8')
            I(f's_add_u32 {s(sQ)}, {s(sQ)}, 1')
            I(f's_and_b32 {s(sQ)}, {s(sQ)}, 3')
            I(f's_lshl_b32 {s(sT0)}, {s(sQ)}, 8')
            I(f's_sub_u32 {s(sDL)}, {s(sT0)}, {s(sDL)}')
            I(f's_sub_u32 {s(sDL)}, {s(sDL)}, {6 << KS}')
        I(f'v_add_u32 {va}, {s(sDL if k >= 6 else sT2)}, {va}')
    if r < 31:
        if k == 7:
            I(f's_lshl2_add_u32 {s(sT0)}, {s(sQ)}, {s(sW)}')
            I(f's_lshl_b32 m0, {s(sT0)}, 13')
        else:
            I('s_add_u32 m0, m0, 0x400')
    if r == args.qa and r:
        flag_add(C_ISS)


def stage_addr(i):
    I(f's_add_u32 {s(sT1)}, {s(sW)}, {i}')
    I(f's_and_b32 {s(sT1)}, {s(sT1)}, 3')
    I(f's_lshl_b32 {s(sT1)}, {s(sT1)}, 15')
    I(f'v_add_u32 v16, {s(sT1)}, v5')
    for t in range(1, 4):
        I(f'v_xor_b32 {v(16 + t)}, {64 * t}, v16')


def stage_reads(i):
    for t in range(4):
        for tau in range(2):
            I(f'ds_read_b128 {v(AF + 32 * i + 8 * t + 4 * tau, 4)}, {v(16 + t)} offset:{4096 * tau}')


tail = []
for i in range(4):
    tail.append(f'global_load_dwordx4 {v(WO0 + 4 * i, 4)}, v28, {P(pWO)} offset:{1024 * i}{NT if args.nto else ""}')
for i in range(4):
    tail.append(f'global_load_dwordx4 {v(WUV + 4 * i, 4)}, v8, {P(pWUV)}{NT}' + (f'\nv_add_u32 v8, {s(sK0)}, v8' if i < 3 else ''))
for i in range(2):
    tail.append(f'global_load_dwordx4 {v(W2T + 4 * i, 4)}, v34, {P(pW2)} offset:{1024 * i}{NT}')
w2_loads = []
if args.ffn:
    w2_loads = tail[8:10]
    tail = tail[:8]
    args.ns = min(args.ns, 4) if args.ns == 6 else args.ns
wuv_loads = []
if args.wuv:
    assert args.tord == 1
    wuv_loads = tail[4:8]
    tail = tail[:4] + tail[8:]
elif args.tord == 1:
    tail = tail[:4] + tail[8:10] + tail[4:8]
if args.tord == 2:
    tail = tail[4:8] + tail[8:10] + tail[:4]
assert args.nt1 + args.ns + args.ne <= len(tail)

depth = lambda r: args.d1 if r < args.k1 else (args.d2 if r < args.k2 else args.d3)
for r in range(args.d1):
    dma_row(r)
s_setup()
I(f'global_load_dword v6, v12, {P(pX)}')
I(f'global_load_dword v7, v12, {P(pB2)}')
I('s_mov_b64 vcc, -1')
stg = 0
for r in range(args.d1, 32):
    if args.tpos <= r < args.tpos + args.ne:
        I(tail.pop(0))
    if args.wuv == 2 and args.k1 <= r < args.k1 + 4:
        I(wuv_loads.pop(0))
    dma_row(r)
    d = depth(r)
    if args.dyn and r >= args.k1 and r < 31:
        lab = a.newlabel('L_dy')
        a.B(f's_cbranch_vccz {lab}')
        I(f'ds_read_b32 {v(VFT)}, {v(VFL)} offset:{4 * F_H2}')
        I(f's_waitcnt vmcnt({args.dyn}) lgkmcnt(0)')
        I(f'v_cmp_eq_u32 vcc, 0, {v(VFT)}')
        a.label(lab)
    if r + 1 > d and r < 31:
        I(f's_waitcnt vmcnt({d})')
        if r + 1 - d >= 8 * (stg + 1):
            flag_add(K0, 27)
            stage_addr(stg)
            stage_reads(stg)
            stg += 1
TS(2)
while stg < (3 if args.p2 < 0 else 2):
    stage_addr(stg)
    I(f's_waitcnt vmcnt({24 - 8 * stg})')
    flag_add(K0, 27)
    stage_reads(stg)
    stg += 1
for _ in range(args.nt1):
    I(tail.pop(0))
if args.qa == 32:
    flag_add(C_ISS)
stage_addr(3 if args.p2 < 0 else 2)
assert args.p2 < 0 or (stg == 2 and args.p2 <= 8 and args.p2 <= args.last)
epoch_ready()
I('s_setprio 2')
flag_wait(C_QA, 2)
TS(4)
LOOK = 4


def qa_read(t):
    I(f'ds_read_b128 {v(QB + 4 * (t & 7), 4)}, {v(QAD + 2 * (t >> 2) + (t & 1))} offset:{1024 * (t & 3)}')


def wo_rest():
    for q in range(4, 16):
        I(f'global_load_dwordx4 {v(WOq(q), 4)}, {v(28 + (q >> 2))}, {P(pWO)} offset:{1024 * (q & 3)}{NTS}')


def s_mfma(t):
    for tau in range(2):
        I(f'{MFMA} {v(SA + 4 * tau, 4)}, {v(AF + 8 * t + 4 * tau, 4)}, {v(QB + 4 * (t & 7), 4)}, {"0" if t == 0 else v(SA + 4 * tau, 4)}')


ldsq = []


def pickup(i):
    I(f's_waitcnt vmcnt({8 * (3 - i) + args.nt1})')
    stage_reads(i)
    flag_add(K0, 27)
    ldsq.extend([('A', 4 * i + t) for t in range(4) for _ in range(2)] + [('F', i)])
    if i == 2:
        stage_addr(3)
    else:
        TS(3)


waited = -1
for t in range(LOOK):
    qa_read(t)
    ldsq.append(('Q', t))
for t in range(16):
    if t == args.p2:
        pickup(2)
    if t == args.last:
        pickup(3)
    if t + LOOK < 16:
        qa_read(t + LOOK)
        ldsq.append(('Q', t + LOOK))
    need_ = max(i for i, o in enumerate(ldsq) if o in (('Q', t), ('A', t)))
    if need_ > waited:
        younger = min(15, len(ldsq) - 1 - need_)
        I(f's_waitcnt lgkmcnt({younger})')
        waited = len(ldsq) - 1 - younger
    s_mfma(t)
    if t >= 12:
        for _ in range((args.ns + 3 - (t - 12)) // 4):
            if tail:
                I(tail.pop(0))
TS(5)
I(f'''
s_mov_b32 {s(sT3)}, 0xffff0000
s_mov_b32 {s(sT0)}, 0x3db504f3
s_mov_b32 {s(sT1)}, 0x3fb8aa3b
v_max3_f32 v24, {v(SA)}, {v(SA + 1)}, {v(SA + 2)}
v_max3_f32 v25, {v(SA + 4)}, {v(SA + 5)}, {v(SA + 6)}
v_max3_f32 v24, v24, {v(SA + 3)}, {v(SA + 7)}
v_max_f32 v24, v24, v25
''')
if args.dsmax:
    I(f'ds_max_f32 v33, v24 offset:{L_MA - L_MF}')
else:
    cross_rows_allreduce('v_max_f32', 24, 25)
    I('ds_write_b32 v9, v24')
if args.mimic:
    round_pairs(SA, 8, 16)
I('s_waitcnt lgkmcnt(0)')
I('s_barrier')
I(f'ds_read_b32 v24, v33 offset:{L_MA - L_MF}' if args.dsmax else 'ds_read_b128 v[20:23], v10')
for i in range(8):
    I(f'v_mul_f32 {v(SA + i)}, {s(sT0)}, {v(SA + i)}')
if args.mimic:
    round_pairs(SA, 8, 16)
I('s_waitcnt lgkmcnt(0)')
if not args.dsmax:
    I('v_max3_f32 v24, v20, v21, v22')
    I('v_max_f32 v24, v24, v23')
if args.mimic:
    I('v_cvt_pk_bf16_f32 v24, v24, v24')
    I(f'v_and_b32 v24, {s(sT3)}, v24')
I(f'v_mul_f32 v24, {s(sT0)}, v24')
assert args.mimic
I('v_cvt_pk_bf16_f32 v24, v24, v24')
I(f'v_and_b32 v25, {s(sT3)}, v24')
I(f'v_mul_f32 v24, {s(sT1)}, v25')
I('ds_write_b32 v33, v25')
for i in range(8):
    I(f'v_fma_f32 {v(SA + i)}, {v(SA + i)}, {s(sT1)}, -v24')
for i in range(8):
    I(f'v_exp_f32 {v(SA + i)}, {v(SA + i)}')
for i in range(4):
    I(f'v_cvt_pk_bf16_f32 {v(16 + i)}, {v(SA + 2 * i)}, {v(SA + 2 * i + 1)}')
I('ds_write_b128 v11, v[16:19]')
I(f's_mov_b32 {s(sT0)}, 0x3f803f80')
I(f'v_dot2_f32_bf16 v25, v16, {s(sT0)}, 0')
for i in range(1, 4):
    I(f'v_dot2_f32_bf16 v25, {v(16 + i)}, {s(sT0)}, v25')
I('ds_write_b32 v32, v25')
I('s_waitcnt lgkmcnt(0)')
I('s_barrier')
I('s_setprio 0')
TS(6)
I(f'v_mov_b32 {v(XR2)}, v6')
I(f'v_mov_b32 {v(B2R)}, v7')
for _ in range(args.nb):
    if tail:
        I(tail.pop(0))
if args.wor == 1:
    wo_rest()
I(f'''
v_lshlrev_b32 v10, 3, v0
v_add_u32 v10, {L_FF}, v10
s_lshl2_add_u32 {s(sT0)}, {s(sHT)}, {s(sCI)}
s_lshl2_add_u32 {s(sT0)}, {s(sT0)}, {s(sW)}
s_lshl_b32 {s(sT0)}, {s(sT0)}, 13
s_add_u32 {s(sT0)}, {s(sT0)}, {W_H3}
v_lshlrev_b32 v4, 11, v2
v_lshl_add_u32 v4, v1, 4, v4
v_add_u32 v4, {s(sT0)}, v4
s_mul_i32 {s(sK1)}, {s(sEP)}, {(HASH * 8) & 0xffffffff}
s_mov_b32 {s(sK2)}, {EMB}
s_lshl_b32 {s(sT0)}, {s(sW)}, 2
s_add_u32 {s(sT0)}, {s(sT0)}, {L_MX}
v_mov_b32 v7, {s(sT0)}
v_mov_b32 v45, {L_MX}
s_lshl_b32 {s(sT0)}, {s(sW)}, 18
s_lshl_b32 {s(sT1)}, s2, {6 + args.h5}
s_add_u32 {s(sT0)}, {s(sT0)}, {s(sT1)}
s_add_u32 {s(sT0)}, {s(sT0)}, {W_H5}
v_lshrrev_b32 v44, {2 + args.h5}, v0
v_lshlrev_b32 v44, {14 + args.h5}, v44
v_and_b32 v16, {7 if args.h5 else 3}, v0
v_lshl_add_u32 v44, v16, 4, v44
v_add_u32 v44, {s(sT0)}, v44
v_and_b32 v16, 1, v2
v_lshrrev_b32 v17, 1, v2
s_lshl_b32 {s(sT0)}, {s(sW)}, 9
s_add_u32 {s(sT1)}, {s(sT0)}, {L_CL}
v_add_u32 v40, {s(sT1)}, v3
s_add_u32 {s(sT1)}, {s(sT0)}, {L_CX}
v_and_b32 v42, 7, v0
v_lshlrev_b32 v42, 5, v42
v_lshl_add_u32 v42, v16, 4, v42
v_lshl_add_u32 v42, v17, 8, v42
v_add_u32 v42, {s(sT1)}, v42
s_lshl_b32 {s(sT0)}, {s(sW)}, 7
s_add_u32 {s(sT0)}, {s(sT0)}, {L_CL}
v_lshrrev_b32 v41, 3, v0
v_lshl_add_u32 v41, v41, 4, {s(sT0)}
v_lshl_add_u32 v41, v35, 2, v41
v_bfe_u32 v9, v0, 2, 1
v_lshl_add_u32 v41, v9, 10, v41
v_lshl_add_u32 v9, v9, 3, v45
v_lshrrev_b32 v43, 2, v1
v_add_u32 v43, {s(sCI)}, v43
v_and_b32 v43, 3, v43
v_lshlrev_b32 v43, 4, v43
v_lshl_add_u32 v43, v2, 2, v43
v_add_u32 v43, v43, v35
v_lshlrev_b32 v43, 2, v43
v_add_u32 v43, {L_CX}, v43
v_mov_b32 v33, {s(sEP)}
v_cmp_gt_u32 {P(sM1)}, v0, 31
v_and_b32 v16, 1, v0
v_cmp_eq_u32 {P(sM2)}, 1, v16
''')
if tail or args.wor == 2:
    flag_wait(C_ST, 4)
while tail:
    I(tail.pop(0))
if args.wor == 2:
    wo_rest()
flag_wait(C_ACK if args.ew else C_ST, 4)
for q in range(4, 4 + args.wpre):
    I(f'global_load_dwordx4 {v(WOq(q), 4)}, {v(28 + (q >> 2))}, {P(pWO)} offset:{1024 * (q & 3)}{NTS}')
if args.dly:
    I(f's_sleep {args.dly}')
if args.gv:
    I(f's_waitcnt vmcnt({args.gv - 1})')
TS(8)
U = 96
nwo = 0


def gather(first):
    global nwo
    for q in range(8):
        I(f'global_load_dwordx4 {v(PL + 4 * q, 4)}, v4, {P(pWS)} offset:{q * 256} sc1')
    n2 = len(w2_loads) if first else 0
    if first:
        for t_ in w2_loads:
            I(t_)
    n_ = 0
    for q in range(8):
        d0, d1 = v(PL + 4 * q), v(PL + 4 * q + 1)
        I(f's_waitcnt vmcnt({7 - q + n_ + n2})')
        if first and args.wor == 3:
            for _ in range(2 if q < 4 else 1):
                qq = 4 + n_ + args.wpre
                if qq > 15:
                    continue
                I(f'global_load_dwordx4 {v(WOq(qq), 4)}, {v(28 + (qq >> 2))}, {P(pWO)} offset:{1024 * (qq & 3)}{NTS}')
                n_ += 1
        I(f'v_and_b32 v19, {s(sK2)}, {d0}')
        I(f'v_and_b32 {v(U + q)}, {s(sK2)}, {d1}')
        I(f'v_xor_b32 {d0}, v19, {d0}')
        I(f'v_lshl_add_u32 v19, v19, v1, {d1}')
        I(f'v_xor_b32 {d1}, {v(U + q)}, {d1}')
        I(f'v_lshlrev_b32 {v(U + q)}, v1, {v(U + q)}')
        I(f'v_add3_u32 v32, {d0}, v19, {"0" if q == 0 else "v32"}')
    if first:
        nwo = n_


gather(True)
I(f's_mov_b32 {s(sCNT)}, {args.spin}')
a.label('L_T3_chk')
for k in range(4):
    I(f'v_or_b32 {v(20 + k)}, {v(U + k)}, {v(U + k)} row_ror:8 bank_mask:0x3')
I('v_add_u32 v32, v32, v32 row_ror:8')
for k in range(4):
    I(f'v_or_b32 {v(20 + k)}, {v(U + 4 + k)}, {v(U + 4 + k)} row_ror:8 bank_mask:0xc')
I('v_add_u32 v32, v32, v32 row_ror:4')
for k in range(2):
    I(f'v_or_b32 {v(24 + k)}, {v(20 + k)}, {v(20 + k)} row_shl:4 bank_mask:0x5')
for k in range(2):
    I(f'v_or_b32 {v(24 + k)}, {v(22 + k)}, {v(22 + k)} row_shr:4 bank_mask:0xa')
I('v_add_u32 v32, v32, v32 row_ror:2')
for k in range(2):
    I(f'v_or_b32 {v(24 + k)}, {v(24 + k)}, {v(24 + k)} quad_perm:[1,0,3,2]')
I('v_add_u32 v32, v32, v32 row_ror:1')
for k in range(2):
    I(f'v_or_b32 {v(24 + k)}, {v(24 + k)}, {v(24 + k)} quad_perm:[2,3,0,1]')
I(f'v_cmp_ne_u32 vcc, {s(sK1)}, v32')
I(f's_sub_u32 {s(sCNT)}, {s(sCNT)}, 1')
I(f'v_cndmask_b32 v5, v24, v25, {P(sM2)}')
a.B('s_cbranch_vccz L_T3_go')
a.B('s_cbranch_scc1 L_T3_go')
I('s_mov_b64 exec, vcc')
gather(False)
I('s_branch L_T3_chk')
a.label('L_T3_go')
I('s_mov_b64 exec, -1')
TS(7)
I(f's_mov_b32 {s(sT1)}, 0x3fb8aa3b')
I(f'v_and_b32 v6, {s(sT3)}, v5')
I('v_cvt_f32_f16 v21, v5')
I(f'v_mul_f32 v6, {s(sT1)}, v6')
I('v_mul_f32 v21, 0.5, v21')
I('v_max_f32 v18, v6, v6 row_ror:8')
row_allreduce('v_max_f32', [18], steps=(4, 1))
cross_rows_allreduce('v_max_f32', 18, 19)
I('''
v_sub_f32 v17, v6, v18
v_exp_f32 v17, v17
v_cvt_pk_bf16_f32 v16, v17, v17
v_mul_f32 v17, v17, v21
''')
TS(1)
red = [f'v_add_f32 v17, v17, v17 row_ror:{st}' for st in (8, 4, 2, 1)]
red += ['v_mov_b32 v19, v17', 'v_permlane16_swap_b32 v19, v17\nv_add_f32 v17, v17, v19\nv_mov_b32 v19, v17',
        'v_permlane32_swap_b32 v19, v17\nv_add_f32 v17, v17, v19', 'ds_write2_b32 v7, v18, v17 offset0:0 offset1:4']
QL = lambda q: 8 * (q >> 2) + 4 * ((q >> 1) & 1) + (q & 1)


def w_and(q):
    for r in range(4):
        I(f'v_and_b32 {v(AW + 4 * (q & 1) + r)}, v16, {v(MK + r)} row_newbcast:{QL(q)}')


w_and(0)
for q in range(8):
    if q < 7:
        w_and(q + 1)
    I(f'{MFMA} v[24:27], {v(AW + 4 * (q & 1), 4)}, {v(PL + 4 * q, 4)}, {"0" if q == 0 else "v[24:27]"}')
    if q < 4:
        I(red[q])
for t_ in red[4:]:
    I(t_)
I('s_mov_b32 exec_hi, 0')
I('ds_write_b128 v40, v[24:27]')
I('s_mov_b64 exec, -1')
I('s_waitcnt lgkmcnt(0)')
TS(9)
TSN(0)
I('s_barrier')
I('ds_read_b128 v[96:99], v45')
I('ds_read_b64 v[100:101], v9')
I('ds_read2st64_b32 v[108:109], v41 offset0:0 offset1:2')
I('ds_read_b64 v[102:103], v9 offset:16')
I(f'ds_read_b64 {v(HH, 2)}, v10')
I('''
s_waitcnt lgkmcnt(4)
v_max3_f32 v18, v96, v97, v98
v_max_f32 v18, v18, v99
s_waitcnt lgkmcnt(2)
v_sub_f32 v100, v100, v18
v_sub_f32 v101, v101, v18
v_exp_f32 v100, v100
v_exp_f32 v101, v101
v_mul_f32 v20, v100, v108
v_fmac_f32 v20, v101, v109
s_waitcnt lgkmcnt(0)
v_mul_f32 v18, v100, v102
v_add_f32 v21, v20, v20 row_shl:4 bank_mask:0x5
v_fmac_f32 v18, v101, v103
v_add_f32 v21, v20, v20 row_shr:4 bank_mask:0xa
v_cvt_pk_bf16_f32 v20, v21, v21
v_add_f32 v18, v18, v18 row_half_mirror
''')
QP = lambda i: f'quad_perm:[{i},{i},{i},{i}]'
for r in range(4):
    I(f'v_and_b32 {v(AW + r)}, v20, {v(MK + r)} {QP(0)}')
for i in range(4):
    if i < 3:
        for r in range(4):
            I(f'v_and_b32 {v(AW + 4 * (i + 1) + r)}, v20, {v(MK + r)} {QP(i + 1)}')
    else:
        I('v_rcp_f32 v18, v18')
    I(f'{MFMA} v[24:27], {v(AW + 4 * i, 4)}, {v(WUV + 4 * i, 4)}, {"0" if i == 0 else "v[24:27]"}')
for i in range(2):
    I(f'v_and_b32 {v(HH + i)}, {s(sR)}, {v(HH + i)}')
for r in range(4):
    I(f'v_and_b32 {v(AW + 16 + r)}, {v(HH)}, {v(MK + r)}')
I('s_mov_b32 exec_lo, 0x00ff00ff')
I('s_mov_b32 exec_hi, 0xff00ff00')
I('ds_write_b128 v42, v[24:27]')
I('s_mov_b64 exec, -1')
for r in range(4):
    I(f'v_and_b32 {v(AW + 20 + r)}, {v(HH + 1)}, {v(MK + r)}')
I('s_waitcnt lgkmcnt(0)')
I('s_barrier')
for k in range(4):
    I(f'ds_read2st64_b32 {v(108 + 2 * k, 2)}, v43 offset0:{2 * k} offset1:{2 * k + 1}')
TS(10)
I(f's_waitcnt vmcnt({nwo})')
for i in range(2):
    I(f'{MFMA} {v(OA, 4)}, {v(AW + 16 + 4 * i, 4)}, {v(W2T + 4 * i, 4)}, {"0" if i == 0 else v(OA, 4)}')
I('v_mov_b32 v22, v33')
I('v_mov_b32 v23, v33')
I('''
s_waitcnt lgkmcnt(2)
v_add_f32 v108, v108, v109
v_add_f32 v110, v110, v111
s_waitcnt lgkmcnt(0)
v_add_f32 v112, v112, v113
v_add_f32 v114, v114, v115
v_add_f32 v108, v108, v110
v_add_f32 v112, v112, v114
v_add_f32 v108, v108, v112
''')
I('v_mul_f32 v108, v108, v18')
I('v_cvt_pk_bf16_f32 v20, v108, v108')


def wo_and(q):
    for r in range(4):
        I(f'v_and_b32 {v(AT2 + 4 * (q & 1) + r)}, v20, {v(MK + r)} row_newbcast:{q}')


wo_and(0)
for q in range(16):
    if q < 15:
        wo_and(q + 1)
    if args.wor == 3 and q >= 4:
        I(f's_waitcnt vmcnt({15 - q})')
    I(f'{MFMA} {v(OA, 4)}, {v(AT2 + 4 * (q & 1), 4)}, {v(WOq(q), 4)}, {v(OA, 4)}')
TS(11)
I(f'v_cndmask_b32 v20, {v(OA)}, {v(OA + 2)}, {P(sM1)}')
I(f'v_cndmask_b32 v21, {v(OA + 1)}, {v(OA + 3)}, {P(sM1)}')
I(f'global_store_dwordx4 v44, v[20:23], {P(pWS)} sc1')
TS(12)
I('s_cmp_lt_u32 s2, 192')
I('s_cbranch_scc1 L_T_done')
I(f'''
s_bfe_u32 {s(sT0)}, s2, {0x50001 if args.h5 else 0x60000}
s_lshl2_add_u32 {s(sT0)}, {s(sT0)}, {s(sW)}
s_lshl_b32 {s(sT0)}, {s(sT0)}, {12 + args.h5}
s_and_b32 {s(sT1)}, s2, {args.h5}
s_lshl_b32 {s(sT1)}, {s(sT1)}, 6
s_add_u32 {s(sT0)}, {s(sT0)}, {s(sT1)}
s_add_u32 {s(sT0)}, {s(sT0)}, {W_H5}
v_lshrrev_b32 v4, 2, v0
v_lshlrev_b32 v4, {6 + args.h5}, v4
v_lshl_add_u32 v4, v35, 4, v4
v_add_u32 v4, {s(sT0)}, v4
v_add_u32 v5, {2048 << args.h5}, v4
v_lshrrev_b32 v6, 1, v2
v_lshl_add_u32 v8, v6, 2, v35
v_lshlrev_b32 v8, 5, v8
v_and_b32 v6, 1, v2
v_lshl_add_u32 v8, v6, 2, v8
s_lshl_b32 {s(sT0)}, {s(sW)}, 3
s_add_u32 {s(sT0)}, {s(sT0)}, {L_CL}
v_add_u32 v8, {s(sT0)}, v8
v_and_b32 v9, 7, v0
v_lshlrev_b32 v9, 5, v9
v_add_u32 v9, {L_CL}, v9
v_lshlrev_b32 v108, 16, {v(XR2)}
v_and_b32 v109, {s(sT3)}, {v(XR2)}
v_lshlrev_b32 v110, 16, {v(B2R)}
v_and_b32 v111, {s(sT3)}, {v(B2R)}
v_add_f32 v108, v108, v110
v_add_f32 v109, v109, v111
v_mov_b32 v108, v109 quad_perm:[0,1,2,3] bank_mask:0xa
s_mov_b32 {s(sCNT)}, {args.spin}
''')
if args.a5:
    I('s_waitcnt vmcnt(0)')
a.label('L_T5_retry')
for k in range(4):
    I(f'global_load_dwordx4 {v(128 + 4 * k, 4)}, {v(4 + (k >> 1))}, {P(pWS)} offset:{(1024 << args.h5) * (k & 1)} sc1')
I(f's_sub_u32 {s(sCNT)}, {s(sCNT)}, 1')
I('s_waitcnt vmcnt(0)')
I('v_xor_b32 v17, v130, v33')
for k in range(1, 4):
    I(f'v_bitop3_b32 v17, {v(130 + 4 * k)}, v33, v17 bitop3:0xbe')
I('v_cmp_ne_u32 vcc, 0, v17')
for i in range(2):
    I(f'v_add_f32 {v(128 + i)}, {v(128 + i)}, {v(132 + i)}')
    I(f'v_add_f32 {v(136 + i)}, {v(136 + i)}, {v(140 + i)}')
a.B('s_cbranch_scc1 L_T5_go')
a.B('s_cbranch_vccnz L_T5_retry')
a.label('L_T5_go')
TS(13)
TSN(3)
for i in range(2):
    I(f'v_add_f32 {v(20 + i)}, {v(128 + i)}, {v(136 + i)}')
I('''
v_permlane32_swap_b32 v20, v21
v_add_f32 v20, v20, v21
v_add_f32 v20, v20, v20 row_ror:4
v_add_f32 v20, v20, v20 row_ror:8
ds_write_b32 v8, v20
s_waitcnt lgkmcnt(0)
s_barrier
''')
I(f's_cmp_lg_u32 {s(sW)}, 0')
I('s_cbranch_scc1 L_T_done')
I('''
ds_read_b128 v[128:131], v9
ds_read_b128 v[132:135], v9 offset:16
s_waitcnt lgkmcnt(1)
v_add_f32 v128, v128, v129
v_add_f32 v130, v130, v131
v_add_f32 v108, v108, v128
v_add_f32 v108, v108, v130
s_waitcnt lgkmcnt(0)
v_add_f32 v132, v132, v133
v_add_f32 v134, v134, v135
v_add_f32 v108, v108, v132
v_add_f32 v108, v108, v134
v_mov_b32 v109, v108 row_shl:4
v_cvt_pk_bf16_f32 v20, v108, v109
s_mov_b64 exec, 15
''')
I(f'global_store_dword v12, v20, {P(pOUT)}')
I('s_cmp_lg_u32 s2, 0xe0')
I('s_cbranch_scc1 L_T_done')
I(f'v_mov_b32 v22, {W_EP}')
I('s_mov_b64 exec, 1')
I(f'global_store_dword v22, v33, {P(pWS)} sc1')
a.label('L_T_done')
TS(14)
ts_dump()
a.label('L_end')
I('s_endpgm')

a.raw('.section .rodata,"a"')
a.raw('.p2align 6')
a.raw(f'.amdhsa_kernel {NAME}_kernel')
a.raw('''  .amdhsa_next_free_vgpr 256
  .amdhsa_next_free_sgpr 102
  .amdhsa_accum_offset 256
  .amdhsa_group_segment_fixed_size 0
  .amdhsa_kernarg_size 112
  .amdhsa_user_sgpr_count 2
  .amdhsa_user_sgpr_kernarg_segment_ptr 1
  .amdhsa_system_sgpr_workgroup_id_x 1
.end_amdhsa_kernel''')
open(args.o, 'w').write(a.text())
```

```python
import sys, argparse, re
from asmlib import Asm, v, s

NAME = 'parallel_sum__compressed_kv_cla__dense_activation_squared_relu__decode'

ap = argparse.ArgumentParser()
A_ = lambda n, d, t=int: ap.add_argument('--' + n, type=t, default=d)
ap.add_argument('-o', default='out.s')
A_('ts', 0)
A_('nt', 1)
A_('d1', 2); A_('k1', 4); A_('d2', 10); A_('k2', 16); A_('d3', 10)
A_('swap', 0)
A_('qa', 16)
A_('h2', 1)
A_('h3', 1)
A_('nt1', 0)
A_('wor', 3)
A_('dyn', 3)
A_('own', 1)
A_('ns', 6)
A_('nb', 0)
A_('w1', 0)
A_('last', 11)
A_('h5', 1)
A_('np', 2)
A_('sl', 5)
A_('pre', 1)
A_('tord', 1)
A_('light', 1)
A_('pt', 0)
A_('dly', 0)
A_('dly5', 0)
A_('hint1', 0)
A_('hint2', 0)
A_('wuv', 0)
A_('ew', 1)
A_('bpos', 1)
A_('a5', 1)
A_('comb', 1)
A_('tpos', 32)
A_('ne', 0)
A_('gv', 1)
A_('pp', 3)
A_('bo', 0)
A_('clk', 0)
A_('wpre', 0)
A_('nts', 0)
A_('nto', 0)
A_('ntm', 0x3f, lambda x: int(x, 0))
A_('xc', 0)
A_('kmap', 0)
A_('p2', 7)
A_('ffn', 0)
A_('dsmax', 1)
A_('pfu', 0)
A_('lf', 'sc1', str)
A_('sf', 'sc1', str)
A_('lfa', 'sc1', str)
A_('of', '', str)
A_('m5', 1)
A_('bm3', 1)
A_('top', 0)
A_('warm', 3)
A_('mimic', 1)
A_('touch', 0)
A_('spin', 20000)
A_('notail', 0)
A_('tsn', 0)
A_('amp', '', str)
A_('tsmask', 0xffff, lambda x: int(x, 0))
args = ap.parse_args()
NT = ' nt' if args.nt else ''
NTS = ' nt' if args.nts else ''

L_QA = 131072
L_P = L_QA + 16384
L_XN = L_P + 4096
L_MX = L_XN + 1024
L_MF = L_MX + 256
L_MA = L_MF + 128
L_CL = L_MF + 256
L_CX = L_CL + 2048
L_FF = L_CX + 2048
L_LS = L_FF + 512
L_FL = L_LS + 1024
L_END = L_FL + 64
assert L_END <= 163840
F_F0, C_ISS, F_H2, C_QA, C_ST, C_ACK, C_ER, F_HINT, K0 = range(9)
C_L, C_M = K0 + 4, K0 + 5
W_EP = 0
W_H1 = 0x1000
W_H2 = W_H1 + 0x20000
W_HF = W_H2 + 0x10000
W_H5 = W_HF + 0x80000
W_H3 = 0x200000
W_TS = 0x600000
assert W_H5 + 0x100000 <= W_H3

pX, pCKV, pWQ, pWUK, pWUV, pWO, pW1 = 4, 6, 8, 10, 12, 14, 18
pB1, pW2, pB2, pOUT, pDBG, pWS = 20, 22, 24, 26, 28, 30
sWV = 3
sX, sY, sFC, sGA, sS, sR, sHT, sCI, sDI = range(32, 41)
sJ, sH = sX, sY
sEP, sT0, sT1, sT2, sT3, sCNT, sW = 41, 42, 43, 44, 45, 46, 47
sB = 48
sM1, sM2, sM3, sM4 = 50, 52, 54, 56
sK0, sK1, sK2 = 58, 59, 60
TSB = 64
VFL, VONE, VFT = 13, 14, 15

a = Asm()
P = lambda r: s(r, 2)
MFMA = 'v_mfma_f32_16x16x32_bf16'


def I(text):
    if args.lfa != 'sc1':
        text = re.sub(r'(global_load\S* .*) sc1$', r'\1 ' + args.lfa.replace('+', ' '), text, flags=re.M)
    for bit, p_ in ((1, pWQ), (2, pWUK), (4, pCKV), (8, pWUV), (16, pW1), (32, pW2)):
        if not args.ntm & bit:
            text = re.sub(r'(global_load\S* .*s\[%d:%d\].*) nt' % (p_, p_ + 1), r'\1', text)
    if args.notail:
        out = []
        for line in text.split('\n'):
            m = re.match(r'\s*global_load_dwordx4 (v\[\d+:\d+\]), v\d+, s\[(\d+):', line)
            if m and int(m.group(2)) in (pWUV, pWO, pW1, pW2):
                line = f'global_load_dwordx4 {m.group(1)}, v3, s[4:5]'
            out.append(line)
        text = '\n'.join(out)
    a.I(text)


def TS(i):
    if args.ts and (args.tsmask >> i) & 1:
        I(f'{"s_memtime" if args.clk else "s_memrealtime"} {s(TSB + 2 * i, 2)}')


def TSN(k=None):
    if args.ts and (k is None or k == args.tsn):
        I(f's_sub_u32 {s(TSB + 2 * 15)}, {args.spin}, {s(sCNT)}')


def ts_dump(n=16):
    if not args.ts:
        return
    if args.xc:
        I(f's_getreg_b32 {s(TSB + 30)}, hwreg(HW_REG_XCC_ID)')
        I(f's_add_u32 {s(TSB + 30)}, {s(TSB + 30)}, {s(sEP)}')
        lab, done = a.newlabel('L_xc'), a.newlabel('L_xcd')
        I('s_cmp_lg_u32 s2, 224')
        I(f's_cbranch_scc1 {done}')
        I(f's_cmp_lg_u32 {s(sWV)}, 4')
        I(f's_cbranch_scc1 {done}')
        I('s_mov_b64 exec, -1')
        I(f'v_mov_b32 v4, {W_TS + args.xc * 512 + 60}')
        I(f'global_load_dword v5, v4, {P(pWS)} sc1')
        I('s_memrealtime s[96:97]')
        I('s_waitcnt vmcnt(0) lgkmcnt(0)')
        I(f'v_readfirstlane_b32 {s(sT0)}, v5')
        I(f's_cmp_eq_u32 {s(sT0)}, {s(TSB + 30)}')
        I(f's_cbranch_scc1 {done}')
        a.label(lab)
        I('s_memrealtime s[98:99]')
        I('s_waitcnt lgkmcnt(0)')
        I(f's_sub_u32 {s(sT1)}, s98, s96')
        I(f's_cmp_lt_u32 {s(sT1)}, 5000')
        I(f's_cbranch_scc1 {lab}')
        a.label(done)
    if args.amp:
        wg, w, k = map(int, args.amp.split(','))
        lab, done = a.newlabel('L_amp'), a.newlabel('L_ampd')
        I(f's_cmp_lg_u32 s2, {wg}')
        I(f's_cbranch_scc1 {done}')
        I(f's_cmp_lg_u32 {s(sWV)}, {w}')
        I(f's_cbranch_scc1 {done}')
        I('s_memrealtime s[96:97]')
        I('s_waitcnt lgkmcnt(0)')
        I(f's_sub_u32 {s(sT0)}, {s(TSB + 2 * k)}, {s(TSB)}')
        I(f's_lshl_b32 {s(sT0)}, {s(sT0)}, 3')
        I(f's_min_u32 {s(sT0)}, {s(sT0)}, 100000')
        a.label(lab)
        I('s_memrealtime s[98:99]')
        I('s_waitcnt lgkmcnt(0)')
        I(f's_sub_u32 {s(sT1)}, s98, s96')
        I(f's_cmp_lt_u32 {s(sT1)}, {s(sT0)}')
        I(f's_cbranch_scc1 {lab}')
        a.label(done)
    I('s_waitcnt lgkmcnt(0)')
    I('s_mov_b64 exec, -1')
    I('v_mov_b32 v4, 0')
    for i in range(n):
        I(f'v_writelane_b32 v4, {s(TSB + 2 * i)}, {i}')
    I(f's_lshl_b32 {s(sT0)}, s2, 3')
    I(f's_add_u32 {s(sT0)}, {s(sT0)}, {s(sWV)}')
    I(f's_lshl_b32 {s(sT0)}, {s(sT0)}, 6')
    I(f's_add_u32 {s(sT0)}, {s(sT0)}, {W_TS}')
    I(f'v_lshl_add_u32 v5, v0, 2, {s(sT0)}')
    I('s_mov_b64 exec, 0xffff')
    I(f'global_store_dword v5, v4, {P(pWS)}')
    I('s_waitcnt vmcnt(0)')


def load_epoch():
    I(f's_load_dword {s(sEP)}, {P(pWS)}, {W_EP}')


def epoch_ready():
    I('s_waitcnt lgkmcnt(0)')
    I(f's_add_u32 {s(sEP)}, {s(sEP)}, 1')


def row_allreduce(op, regs, steps=(8, 4, 2, 1)):
    for st in steps:
        for r in regs:
            I(f'{op} {v(r)}, {v(r)}, {v(r)} row_ror:{st}')


def cross_rows_allreduce(op, r, t):
    for sw in ('v_permlane16_swap_b32', 'v_permlane32_swap_b32'):
        I(f'v_mov_b32 {v(t)}, {v(r)}')
        I(f'{sw} {v(t)}, {v(r)}')
        I(f'{op} {v(r)}, {v(r)}, {v(t)}')


def scalar_poll(offsets):
    lab, done = a.newlabel('L_sp'), a.newlabel('L_spd')
    R = [61, 62, 63, 96, 97, 98, 99, 100]
    I(f's_mov_b32 {s(sCNT)}, {args.spin}')
    a.label(lab)
    for k, o in enumerate(offsets):
        I(f's_load_dword {s(R[k])}, {P(sB)}, {o} glc')
    I(f's_sub_u32 {s(sCNT)}, {s(sCNT)}, 1')
    I(f's_cbranch_scc1 {done}')
    I('s_waitcnt lgkmcnt(0)')
    I(f's_xor_b32 {s(sT0)}, {s(R[0])}, {s(sEP)}')
    for k in range(1, len(offsets)):
        I(f's_xor_b32 {s(sT1)}, {s(R[k])}, {s(sEP)}')
        I(f's_or_b32 {s(sT0)}, {s(sT0)}, {s(sT1)}')
    I(f's_cbranch_scc1 {lab}')
    a.label(done)
    I('s_waitcnt lgkmcnt(0)')


def flag_add(idx, base=VFL):
    I('s_mov_b64 exec, 1')
    I(f'ds_add_u32 {v(base)}, {v(VONE)} offset:{4 * idx}')
    I('s_mov_b64 exec, -1')


def flag_wait(idx, n, base=VFL):
    lab, done = a.newlabel('L_fw'), a.newlabel('L_fwd')
    if args.bo and idx in (F_F0, C_ISS, F_H2, C_ST, C_ACK, K0):
        l2 = a.newlabel('L_fw')
        a.B(f's_branch {l2}')
        a.label(lab)
        I(f's_sleep {args.bo}')
        a.label(l2)
    else:
        a.label(lab)
    I(f'ds_read_b32 {v(VFT)}, {v(base)} offset:{4 * idx}')
    I(f's_sub_u32 {s(sFC)}, {s(sFC)}, 1')
    I('s_waitcnt lgkmcnt(0)')
    I(f'v_cmp_gt_u32 vcc, {n}, {v(VFT)}')
    a.B(f's_cbranch_scc1 {done}')
    a.B(f's_cbranch_vccnz {lab}')
    a.label(done)
    I(f's_max_i32 {s(sFC)}, {s(sFC)}, 0')


def build_masks(M, t0, t1):
    I(f'v_and_b32 {v(t0)}, 1, v1')
    I(f'v_lshlrev_b32 {v(t0)}, 4, {v(t0)}')
    I(f'v_mov_b32 {v(t1)}, 0xffff')
    I(f'v_lshlrev_b32 {v(t1)}, {v(t0)}, {v(t1)}')
    I(f'v_bfe_u32 {v(t0)}, v1, 1, 2')
    for r in range(4):
        I(f'v_cmp_eq_u32 vcc, {r}, {v(t0)}')
        I(f'v_cndmask_b32 {v(M + r)}, 0, {v(t1)}, vcc')


BF, ACC, PF = 128, 96, 80
AT, SEL, XP, ACC0, REC = 72, 32, 80, 88, 92


def build_sel(t=6):
    J = lambda x: I(re.sub(r'\bv([6-9])\b', lambda m: 'v%d' % (int(m.group(1)) - 6 + t), x))
    J('''
    v_and_b32 v6, 1, v1
    v_cmp_eq_u32 vcc, 1, v6
    v_mov_b32 v7, 0x0c0c0100
    v_mov_b32 v8, 0x01000c0c
    v_cndmask_b32 v7, v7, v8, vcc
    v_mov_b32 v8, 0x0c0c0302
    v_mov_b32 v9, 0x03020c0c
    v_cndmask_b32 v8, v8, v9, vcc
    v_mov_b32 v9, 0x0c0c0c0c
    v_bfe_u32 v6, v1, 1, 2
    ''')
    for r in range(4):
        J(f'v_cmp_eq_u32 vcc, {r}, v6')
        J(f'v_cndmask_b32 {v(SEL + r)}, v9, v7, vcc')
        J(f'v_cndmask_b32 {v(SEL + 4 + r)}, v9, v8, vcc')


def diag_stage(n, W, younger=0):
    def perms(k):
        for r in range(4):
            I(f'v_perm_b32 {v(AT + 4 * (k & 1) + r)}, {v(XP + (k >> 1))}, {v(XP + (k >> 1))}, {v(SEL + 4 * (k & 1) + r)}')
    perms(0)
    for k in range(n):
        if k < n - 1:
            perms(k + 1)
        else:
            I(f'v_mov_b32 {v(REC + 2)}, {s(sEP)}')
            I(f'v_mov_b32 {v(REC + 3)}, {s(sEP)}')
        I(f's_waitcnt vmcnt({n - 1 - k + younger})')
        I(f'{MFMA} {v(ACC0, 4)}, {v(AT + 4 * (k & 1), 4)}, {v(W(k), 4)}, {"0" if k == 0 else v(ACC0, 4)}')


TA = 16


def tr_addr():
    I(f'''
    v_lshrrev_b32 v4, 2, v0
    v_lshlrev_b32 v4, 8, v4
    v_and_b32 v5, 31, v0
    v_lshl_add_u32 v4, v5, 3, v4
    s_lshl_b32 {s(sT0)}, {s(sW)}, 15
    v_add_u32 v4, {s(sT0)}, v4
    ''')


CK = 44
EMB = 0x00010001
HASH = 0x9e3779b1
OCT = ('quad_perm:[1,0,3,2]', 'quad_perm:[2,3,0,1]', 'row_half_mirror')


def pv_setup():
    for i in range(4):
        I(f's_sub_u32 {s(sT0)}, {s(sW)}, {i}')
        I(f's_and_b32 {s(sT0)}, {s(sT0)}, 3')
        I(f's_lshl_b32 {s(sT0)}, {s(sT0)}, 10')
        I(f's_add_u32 {s(sT0)}, {s(sT0)}, {L_P}')
        I(f'v_add_u32 {v(48 + i)}, {s(sT0)}, v3')
    I(f"""
    s_lshl_b32 {s(sT0)}, {s(sGA)}, 6
    s_add_u32 {s(sT0)}, {s(sT0)}, {s(sW)}
    s_lshl_b32 {s(sT0)}, {s(sT0)}, 7
    s_add_u32 {s(sT0)}, {s(sT0)}, {s(sS)}
    s_lshl_b32 {s(sT1)}, {s(sT0)}, 8
    s_add_u32 {s(sT1)}, {s(sT1)}, {W_H3}
    v_lshlrev_b32 v52, 19, v2
    v_lshl_add_u32 v52, v1, 4, v52
    v_add_u32 v52, {s(sT1)}, v52
    s_mov_b32 {s(sT2)}, 0x20000
    v_add_u32 v53, {s(sT2)}, v52
    v_add_u32 v54, {s(sT2)}, v53
    v_add_u32 v55, {s(sT2)}, v54
    v_lshlrev_b32 v42, 4, v2
    v_lshl_add_u32 v43, v1, 6, v42
    v_add_u32 v43, {L_LS}, v43
    v_add_u32 v42, {L_MF}, v42
    s_mul_i32 {s(sK0)}, {s(sEP)}, {HASH}
    s_mov_b32 {s(sK1)}, {EMB}
    s_mov_b32 {s(sK2)}, {~EMB & 0xffffffff}
    """)


def tr_slot(i):
    I(f's_sub_u32 {s(sT0)}, {s(sW)}, {i}')
    I(f's_and_b32 {s(sT0)}, {s(sT0)}, 3')
    I(f's_lshl_b32 {s(sT1)}, {s(sT0)}, 13')
    I(f'v_lshl_add_u32 v5, {s(sT0)}, 2, {v(VFL)}')
    I(f'v_add_u32 {v(TA)}, {s(sT1)}, v4')
    for T in range(1, 8):
        I(f'v_xor_b32 {v(TA + T)}, {32 * T}, {v(TA)}')
    if i == 3 and args.bm3:
        assert not args.ffn
        TS(6)
        I('s_barrier')
    else:
        flag_wait(K0, i + 1, 5)
    for T in range(8):
        for tau in range(2):
            I(f'ds_read_b64_tr_b16 {v(BF + (i * 8 + T) * 4 + 2 * tau, 2)}, {v(TA + T)} offset:{tau * 4096}')


def round_pairs(base, n, tmp):
    for i in range(n // 2):
        I(f'v_cvt_pk_bf16_f32 {v(tmp + i)}, {v(base + 2 * i)}, {v(base + 2 * i + 1)}')
    for i in range(n // 2):
        I(f'v_lshlrev_b32 {v(base + 2 * i)}, 16, {v(tmp + i)}')
        I(f'v_and_b32 {v(base + 2 * i + 1)}, {s(sT3)}, {v(tmp + i)}')


hdr = open('cdna_kernels/%s.s.ref' % NAME).read().split('; Override launch geometry')[0]
a.raw(hdr.rstrip())
a.raw(f'; @launch grid=(256,1,1) block=(512,1,1) lds={L_END}')
a.raw('.amdgcn_target "amdgcn-amd-amdhsa--gfx950"')
a.raw('.text')
a.raw(f'.globl {NAME}_kernel')
a.raw('.p2align 8')
a.raw(f'.type {NAME}_kernel,@function')
a.label(f'{NAME}_kernel')
a.label('L_start')
I('s_load_dwordx16 s[4:19], s[0:1], 0')
I(f's_getpc_b64 {P(sB)}')
a.label('L_pc')
I('s_cmpk_ge_u32 s2, 0x100')
I('s_cbranch_scc1 L_end')
TS(0)
if args.top:
    I(f'''
    v_cmp_gt_u32 vcc, 64, v0
    s_and_b32 {s(sX)}, s2, 7
    s_lshr_b32 {s(sY)}, s2, 3
    v_lshl_add_u32 v6, {s(sX)}, 6, v0
    v_lshl_add_u32 v6, v6, 5, {s(sY)}
    v_lshlrev_b32 v5, 4, v0
    v_lshlrev_b32 v6, 8, v6
    ''')
    a.B('s_cbranch_vccz L_top')
    I(f'''
    s_waitcnt lgkmcnt(0)
    global_load_dwordx4 v[120:123], v5, {P(pX)}
    ''')
    if args.top == 1:
        I(f'global_load_dword v41, v6, {P(pWQ)}{NT}')
        I(f'global_load_dword v41, v6, {P(pWQ)} offset:128{NT}')
    a.label('L_top')
I('s_load_dwordx8 s[20:27], s[0:1], 64')
I('s_load_dwordx4 s[28:31], s[0:1], 96')
I(f'''
v_lshrrev_b32 v3, 6, v0
v_lshrrev_b32 v4, 5, v0
s_lshr_b32 {s(sY)}, s2, 3
s_and_b32 {s(sT1)}, {s(sY)}, 15
s_lshl_b32 {s(sT1)}, {s(sT1)}, 11
v_lshl_add_u32 v4, v4, 7, {s(sT1)}
v_min_u32 v4, L_end-L_pc, v4
s_mov_b32 exec_lo, 1
s_mov_b32 exec_hi, 1
global_load_dword v15, v4, {P(sB)}
s_mov_b64 exec, -1
v_readfirstlane_b32 {s(sWV)}, v3
v_and_b32 v0, 63, v0
v_and_b32 v1, 15, v0
v_lshrrev_b32 v2, 4, v0
s_and_b32 {s(sX)}, s2, 7
s_lshr_b32 {s(sGA)}, {s(sY)}, 4
s_xor_b32 {s(sGA)}, {s(sGA)}, 1
s_and_b32 {s(sT0)}, {s(sY)}, 15
s_lshl4_add_u32 {s(sS)}, {s(sX)}, {s(sT0)}
s_and_b32 {s(sW)}, {s(sWV)}, 3
v_lshlrev_b32 v3, 4, v0
v_mov_b32 {v(VFL)}, {L_FL}
v_mov_b32 {v(VONE)}, 1
s_mov_b32 {s(sFC)}, 0x200000
s_cmp_ge_u32 {s(sWV)}, 4
''')
a.B('s_cbranch_scc1 L_S')
I(f'''
s_lshl_b32 {s(sT0)}, {s(sJ)}, 19
s_lshl_b32 {s(sT1)}, {s(sH)}, 8
s_add_u32 {s(sT0)}, {s(sT0)}, {s(sT1)}
s_cmp_eq_u32 {s(sWV)}, 1
''')
a.B('s_cbranch_scc1 L_F1')
I(f's_cmp_eq_u32 {s(sWV)}, 2')
a.B('s_cbranch_scc1 L_F2')
I(f's_cmp_eq_u32 {s(sWV)}, 3')
a.B('s_cbranch_scc1 L_F3')

Wq, XR = 128, 120
I(f'''
v_lshlrev_b32 v5, 17, v2
v_lshl_add_u32 v5, v1, 4, v5
v_add_u32 v5, {s(sT0)}, v5
s_movk_i32 {s(sT2)}, 0x2000
''')
if not args.top:
    I('s_waitcnt lgkmcnt(0)')
    I(f'global_load_dwordx4 {v(XR, 4)}, v3, {P(pX)}')
for k in range(16):
    I(f'global_load_dwordx4 {v(Wq + 4 * k, 4)}, v5, {P(pWQ)}{NT}')
    if k < 15:
        I(f'v_add_u32 v5, {s(sT2)}, v5')
if args.bpos == 0:
    I('s_barrier')
I('s_waitcnt lgkmcnt(0)')
load_epoch()
TS(1)
build_sel()
I(f'''
v_add_u32 v10, {L_XN}, v3
s_lshl_b32 {s(sT0)}, {s(sJ)}, 7
s_add_u32 {s(sT0)}, {s(sT0)}, {L_XN}
v_lshl_add_u32 v11, v2, 5, {s(sT0)}
s_lshl_b32 {s(sT0)}, s2, 9
s_add_u32 {s(sT0)}, {s(sT0)}, {W_H1}
v_add_u32 v12, {s(sT0)}, v3
s_mov_b32 {s(sT3)}, 0xffff0000
s_mov_b32 {s(sK0)}, 0x07060501
s_mov_b32 {s(sK1)}, 0x07060502
s_mov_b32 {s(sK2)}, 0x07060503
''')
F, Dd, t0, t1, t2, t3, PK = 96, 104, 112, 113, 114, 115, 116
I(f's_waitcnt vmcnt({(16, 19, 17)[args.top]})')
if args.bpos == 1:
    I('s_barrier')
TS(2)
for i in range(4):
    I(f'v_lshlrev_b32 {v(F + 2 * i)}, 16, {v(XR + i)}')
    I(f'v_and_b32 {v(F + 2 * i + 1)}, {s(sT3)}, {v(XR + i)}')
I(f'''
v_add_f32 {v(t0)}, {v(F)}, {v(F + 1)}
v_add_f32 {v(t1)}, {v(F + 2)}, {v(F + 3)}
v_add_f32 {v(t2)}, {v(F + 4)}, {v(F + 5)}
v_add_f32 {v(t3)}, {v(F + 6)}, {v(F + 7)}
v_add_f32 {v(t0)}, {v(t0)}, {v(t1)}
v_add_f32 {v(t2)}, {v(t2)}, {v(t3)}
v_add_f32 {v(t0)}, {v(t0)}, {v(t2)}
''')
row_allreduce('v_add_f32', [t0])
I(f'v_add_f32 {v(t0)}, {v(t0)}, {v(t0)} row_bcast:15 row_mask:0xa')
I(f'v_add_f32 {v(t0)}, {v(t0)}, {v(t0)} row_bcast:31 row_mask:0xc')
I(f'v_mov_b32 {v(t1)}, 0x3b000000')
I(f'v_readlane_b32 {s(sT0)}, {v(t0)}, 63')
I(f'v_mul_f32 {v(t1)}, {s(sT0)}, {v(t1)}')
for i in range(8):
    I(f'v_sub_f32 {v(Dd + i)}, {v(F + i)}, {v(t1)}')
I(f'v_mul_f32 {v(t0)}, {v(Dd)}, {v(Dd)}')
I(f'v_mul_f32 {v(t2)}, {v(Dd + 1)}, {v(Dd + 1)}')
for i in range(2, 8, 2):
    I(f'v_fmac_f32 {v(t0)}, {v(Dd + i)}, {v(Dd + i)}')
    I(f'v_fmac_f32 {v(t2)}, {v(Dd + i + 1)}, {v(Dd + i + 1)}')
I(f'v_add_f32 {v(t0)}, {v(t0)}, {v(t2)}')
I(f'v_cvt_pk_bf16_f32 {v(t1)}, {v(t1)}, {v(t1)}')
I(f'v_and_b32 {v(t1)}, {s(sT3)}, {v(t1)}')
row_allreduce('v_add_f32', [t0], steps=(8,))
for i in range(0, 4):
    I(f'v_sub_f32 {v(Dd + i)}, {v(F + i)}, {v(t1)}')
row_allreduce('v_add_f32', [t0], steps=(4,))
for i in range(4, 8):
    I(f'v_sub_f32 {v(Dd + i)}, {v(F + i)}, {v(t1)}')
row_allreduce('v_add_f32', [t0], steps=(2,))
for i in range(0, 2):
    I(f'v_cvt_pk_bf16_f32 {v(PK + i)}, {v(Dd + 2 * i)}, {v(Dd + 2 * i + 1)}')
row_allreduce('v_add_f32', [t0], steps=(1,))
for i in range(2, 4):
    I(f'v_cvt_pk_bf16_f32 {v(PK + i)}, {v(Dd + 2 * i)}, {v(Dd + 2 * i + 1)}')
I(f'v_add_f32 {v(t0)}, {v(t0)}, {v(t0)} row_bcast:15 row_mask:0xa')
for i in range(0, 2):
    I(f'v_lshlrev_b32 {v(Dd + 2 * i)}, 16, {v(PK + i)}')
    I(f'v_and_b32 {v(Dd + 2 * i + 1)}, {s(sT3)}, {v(PK + i)}')
I(f'v_add_f32 {v(t0)}, {v(t0)}, {v(t0)} row_bcast:31 row_mask:0xc')
for i in range(2, 4):
    I(f'v_lshlrev_b32 {v(Dd + 2 * i)}, 16, {v(PK + i)}')
    I(f'v_and_b32 {v(Dd + 2 * i + 1)}, {s(sT3)}, {v(PK + i)}')
I(f'v_mov_b32 {v(t1)}, 0x3b000000')
I(f'v_readlane_b32 {s(sT0)}, {v(t0)}, 63')
I(f'''
v_mul_f32 {v(t1)}, {s(sT0)}, {v(t1)}
v_cvt_pk_bf16_f32 {v(t1)}, {v(t1)}, {v(t1)}
v_and_b32 {v(t1)}, {s(sT3)}, {v(t1)}
v_add_f32 {v(t1)}, 0x3727c5ac, {v(t1)}
v_cvt_pk_bf16_f32 {v(t1)}, {v(t1)}, {v(t1)}
v_and_b32 {v(t1)}, {s(sT3)}, {v(t1)}
v_sqrt_f32 {v(t1)}, {v(t1)}
v_cvt_pk_bf16_f32 {v(t1)}, {v(t1)}, {v(t1)}
v_and_b32 {v(t1)}, {s(sT3)}, {v(t1)}
v_rcp_f32 {v(t1)}, {v(t1)}
''')
for i in range(8):
    I(f'v_mul_f32 {v(Dd + i)}, {v(Dd + i)}, {v(t1)}')
for i in range(4):
    I(f'v_cvt_pk_bf16_f32 {v(PK + i)}, {v(Dd + 2 * i)}, {v(Dd + 2 * i + 1)}')
I(f'ds_write_b128 v10, {v(PK, 4)}')
I(f'ds_read_b128 {v(XP, 4)}, v11')
I(f'ds_read_b128 {v(XP + 4, 4)}, v11 offset:16')
epoch_ready()
TS(3)
diag_stage(16, lambda k: Wq + 4 * k)
for i in range(3):
    I(f'v_perm_b32 {v(REC + i)}, {v(ACC0 + i)}, {v(ACC0 + 3)}, {s(sK0 + i)}')
I('s_mov_b32 exec_hi, 0')
I(f'global_store_dwordx4 v12, {v(REC, 4)}, {P(pWS)} sc1')
I(f'ds_write_b128 v10, {v(ACC0, 4)} offset:{L_CX - L_XN}')
TS(4)
flag_add(F_F0)
I('s_branch L_QG')

a.label('L_F1')
WK, G1, QF, DK = 128, 192, 96, 112
I(f'''
v_lshlrev_b32 v6, 1, v2
v_xor_b32 v6, v6, v1
v_lshlrev_b32 v5, 13, v2
v_lshl_add_u32 v5, v6, 4, v5
v_add_u32 v5, {s(sT0)}, v5
v_xor_b32 v6, 0x80, v5
v_add_u32 v6, 0x20000, v6
s_mov_b32 {s(sT2)}, 0x40000
s_mov_b32 {s(sT3)}, {(-28 * 8192) & 0xffffffff}
s_mov_b32 m0, {L_QA}
s_waitcnt lgkmcnt(0)
''')
load_epoch()
I('s_barrier')
for k in range(16):
    I(f'global_load_lds_dwordx4 {"v6" if k & 1 else "v5"}, {P(pWUK)}{NT}')
    if k < 15:
        I('s_add_u32 m0, m0, 0x400')
    if k < 14:
        I(f'v_add_u32 {"v6" if k & 1 else "v5"}, {s(sT3 if k & 2 else sT2)}, {"v6" if k & 1 else "v5"}')
TS(1)
I(f'''
v_and_b32 v5, 7, v1
v_lshlrev_b32 v5, 1, v5
v_xor_b32 v5, v5, v2
v_lshlrev_b32 v5, 4, v5
v_lshl_add_u32 v5, v1, 8, v5
v_add_u32 v24, {L_QA}, v5
v_xor_b32 v25, 64, v24
v_xor_b32 v26, 0x80, v24
v_xor_b32 v27, 0xc0, v24
s_lshl_b32 {s(sT0)}, {s(sH)}, 12
s_add_u32 {s(sT0)}, {s(sT0)}, {W_H1}
v_add_u32 v8, {s(sT0)}, v3
s_lshl_b32 {s(sT1)}, {s(sJ)}, 9
v_add_u32 v6, {s(sT1)}, v3
s_movk_i32 {s(sT1)}, 0xfff
v_and_b32 v16, {s(sT1)}, v6
v_add_u32 v6, 0x400, v6
v_and_b32 v17, {s(sT1)}, v6
v_add_u32 v6, 0x400, v6
v_and_b32 v18, {s(sT1)}, v6
v_add_u32 v6, 0x400, v6
v_and_b32 v19, {s(sT1)}, v6
v_add_u32 v32, {s(sT0)}, v16
v_add_u32 v33, {s(sT0)}, v17
v_add_u32 v34, {s(sT0)}, v18
v_add_u32 v35, {s(sT0)}, v19
v_add_u32 v9, {L_CX}, v3
v_and_b32 v10, 1, v2
v_lshlrev_b32 v10, 1, v10
v_lshrrev_b32 v11, 1, v2
v_add_u32 v10, v10, v11
v_lshl_add_u32 v10, v1, 2, v10
v_lshlrev_b32 v10, 2, v10
v_add_u32 v10, {L_CL}, v10
v_lshlrev_b32 v11, 4, v2
v_add_u32 v11, {L_CL}, v11
s_lshl_b32 {s(sT0)}, s2, 7
s_add_u32 {s(sT0)}, {s(sT0)}, {W_H2}
v_lshl_add_u32 v36, v2, 1, v1
v_lshl_add_u32 v12, v36, 4, {s(sT0)}
v_add_u32 v37, 8, v36
v_cmp_eq_u32 {P(sM1)}, 1, v1
s_mov_b32 {s(sM2)}, {EMB}
s_mov_b32 {s(sM2 + 1)}, {~EMB & 0xffffffff}
s_mov_b32 {s(sK0)}, 0x0c04000c
s_mov_b32 {s(sK1)}, 0x0402010c
s_mov_b32 {s(sK2)}, 0x07060302
s_mov_b32 {s(sM3 + 1)}, 0x10000
''')
epoch_ready()
I(f'v_mov_b32 v22, {s(sEP)}')
I(f's_mul_i32 {s(sM3)}, {s(sEP)}, {HASH}')
I('s_setprio 1')
NP = args.np
for p_ in range(NP):
    I(f'v_mov_b32 {v(G1 + 16 * p_ + 3)}, v22')
    for e in range(3):
        I(f'v_mov_b32 {v(G1 + 16 * p_ + e)}, 0')


def h1_loads(p_):
    for k in range(4):
        if k == 0:
            I('s_mov_b32 exec_lo, 0')
        I(f'global_load_dwordx4 {v(G1 + 16 * p_ + 4 * k, 4)}, {v(32 + k)}, {P(pWS)} sc1')
        if k == 0:
            I('s_mov_b32 exec_lo, -1')


if args.hint1:
    assert NP == 1
    I(f's_lshl_b32 {s(sT0)}, {s(sH)}, 12')
    I(f's_add_u32 {s(sT0)}, {s(sT0)}, {W_H1 + 508}')
    I(f's_add_u32 {s(sB)}, {s(pWS)}, {s(sT0)}')
    I(f's_addc_u32 {s(sB + 1)}, {s(pWS + 1)}, 0')
    HO = [4, 5, 6, 7, 8, 9, 12]
    for k in range(7):
        I(f's_add_u32 {s(HO[k])}, {s(sJ)}, {k + 1}')
        I(f's_and_b32 {s(HO[k])}, {s(HO[k])}, 7')
        I(f's_lshl_b32 {s(HO[k])}, {s(HO[k])}, 9')
    scalar_poll([s(r) for r in HO])
else:
    I('s_waitcnt vmcnt(4)')
TS(2)
h1_loads(0)
I('s_waitcnt vmcnt(4)')
for tau in range(4):
    for t in range(4):
        I(f'ds_read_b128 {v(WK + 16 * tau + 4 * t, 4)}, {v(24 + t)} offset:{4096 * tau}')
for p_ in range(1, NP):
    if p_ > 1 and args.sl:
        I(f's_sleep {args.sl}')
    h1_loads(p_)
Q4 = 40
for e in range(4):
    I(f'v_mov_b32 {v(Q4 + 4 + e)}, 0')
flag_wait(F_F0, 1)
I('s_mov_b32 exec_hi, 0')
I(f'ds_read_b128 {v(Q4 + 4, 4)}, v9')
I('s_mov_b64 exec, -1')
I(f's_mov_b32 {s(sCNT)}, {args.spin}')
I('s_waitcnt lgkmcnt(0)')
a.label('L_F1_poll')
for p_ in range(NP):
    G = G1 + 16 * p_
    I(f's_sub_u32 {s(sCNT)}, {s(sCNT)}, 1')
    I(f's_waitcnt vmcnt({4 * (NP - 1)})')
    I(f'v_xor_b32 v16, {v(G + 3)}, v22')
    for k in range(1, 4):
        I(f'v_bitop3_b32 v16, {v(G + 4 * k + 3)}, v22, v16 bitop3:0xbe')
    I('v_cmp_ne_u32 vcc, 0, v16')
    a.B(f's_cbranch_scc1 L_F1_go{p_}')
    a.B(f's_cbranch_vccz L_F1_go{p_}')
    h1_loads(p_)
I('s_branch L_F1_poll')
for p_ in reversed(range(NP)):
    G = G1 + 16 * p_
    a.label(f'L_F1_go{p_}')
    for k in range(4):
        I(f'v_perm_b32 {v(G + 4 * k + 3)}, {v(G + 4 * k + 1)}, {v(G + 4 * k)}, {s(sK0)}')
    for k in range(4):
        I(f'v_perm_b32 {v(G + 4 * k + 3)}, {v(G + 4 * k + 2)}, {v(G + 4 * k + 3)}, {s(sK1)}')
    for e in (0, 2):
        I(f'v_pk_add_f32 {v(Q4 + 4 + e, 2)}, {v(Q4 + 4 + e, 2)}, {v(G + e, 2)}')
        I(f'v_pk_add_f32 {v(G + 4 + e, 2)}, {v(G + 4 + e, 2)}, {v(G + 8 + e, 2)}')
    for e in (0, 2):
        I(f'v_pk_add_f32 {v(Q4 + 4 + e, 2)}, {v(Q4 + 4 + e, 2)}, {v(G + 12 + e, 2)}')
    for e in (0, 2):
        I(f'v_pk_add_f32 {v(Q4 + e, 2)}, {v(Q4 + 4 + e, 2)}, {v(G + 4 + e, 2)}')
    if p_:
        I('s_branch L_F1_go')
a.label('L_F1_go')
TS(3)
TSN()
G1 = Q4
I(f'v_permlane32_swap_b32 {v(G1)}, {v(G1 + 2)}')
I(f'v_permlane32_swap_b32 {v(G1 + 1)}, {v(G1 + 3)}')
I(f'v_add_f32 {v(G1)}, {v(G1)}, {v(G1 + 2)}')
I(f'v_add_f32 {v(G1 + 1)}, {v(G1 + 1)}, {v(G1 + 3)}')
I(f'v_cvt_pk_bf16_f32 v16, {v(G1)}, {v(G1 + 1)}')
I('ds_write_b32 v10, v16')
for t in range(4):
    I(f'ds_read_b128 {v(QF + 4 * t, 4)}, v11 offset:{64 * t}')
for half in ((0, 2), (1, 3)):
    for t in range(4):
        if half[0] == 0:
            I(f's_waitcnt lgkmcnt({3 - t})')
        for tau in half:
            I(f'{MFMA} {v(DK + 4 * tau, 4)}, {v(WK + 16 * tau + 4 * t, 4)}, {v(QF + 4 * t, 4)}, {"0" if t == 0 else v(DK + 4 * tau, 4)}')
        if half[0] == 1 and t == 1:
            for tau in (0, 2):
                for r in range(4):
                    I(f'v_add_u32 {v(DK + 4 * tau + r)}, {s(sM3 + 1)}, {v(DK + 4 * tau + r)}')
        if half[0] == 1 and t == 2:
            for tau in (0, 2):
                for r in range(2):
                    I(f'v_perm_b32 {v(24 + 2 * tau + r)}, {v(DK + 4 * tau + 2 * r + 1)}, {v(DK + 4 * tau + 2 * r)}, {s(sK2)}')
for r in (24, 25, 28, 29):
    I(f'v_and_b32 {v(r)}, {s(sM2 + 1)}, {v(r)}')
I('v_add3_u32 v16, v24, v25, v28')
I('v_add_u32 v16, v16, v29')
I('v_mov_b32 v17, v16')
I(f'v_cndmask_b32 v20, v24, v28, {P(sM1)}')
I(f'v_cndmask_b32 v21, v25, v29, {P(sM1)}')
I('v_permlane16_swap_b32 v17, v16')
I('v_add_u32 v16, v16, v17')
I('v_mov_b32 v17, v16')
for tau in (1, 3):
    I(f'v_cvt_pk_bf16_f32 {v(24 + 2 * tau)}, {v(DK + 4 * tau)}, {v(DK + 4 * tau + 1)}')
I('v_permlane32_swap_b32 v17, v16')
for tau in (1, 3):
    I(f'v_cvt_pk_bf16_f32 {v(25 + 2 * tau)}, {v(DK + 4 * tau + 2)}, {v(DK + 4 * tau + 3)}')
I('v_add_u32 v16, v16, v17')
I(f'v_sub_u32 v16, {s(sM3)}, v16')
I(f'v_cndmask_b32 v22, v26, v30, {P(sM1)}')
I('v_lshrrev_b32 v17, v36, v16')
I('v_lshrrev_b32 v16, v37, v16')
I(f'v_cndmask_b32 v23, v27, v31, {P(sM1)}')
I(f'v_and_or_b32 v20, v17, {s(sM2)}, v20')
I(f'v_and_or_b32 v21, v16, {s(sM2)}, v21')
I('s_mov_b32 exec_lo, 0x00030003')
I('s_mov_b32 exec_hi, 0x00030003')
I(f'global_store_dwordx4 v12, v[20:23], {P(pWS)} sc1')
TS(4)
I('s_setprio 0')
flag_add(F_H2)
I('s_waitcnt vmcnt(0)')
flag_add(F_H2)
a.label('L_PV1')
tr_addr()
pv_setup()
for i in range(args.pre):
    tr_slot(i)
I('s_branch L_PVs')

a.label('L_F3')
HFG, B1R = 24, 28
W1T = lambda k: 56 + 4 * k if k < 6 else 8 if k == 6 else 4
I('s_waitcnt lgkmcnt(0)')
load_epoch()
I('s_barrier')
epoch_ready()


def ffn_w1(dst):
    I(f"""
    s_and_b32 {s(sT3)}, s2, 15
    s_mul_i32 {s(sT0)}, {s(sT3)}, {32 * 3584}
    s_lshr_b32 {s(sT1)}, s2, 4
    s_lshl_b32 {s(sT1)}, {s(sT1)}, 8
    s_add_u32 {s(sT0)}, {s(sT0)}, {s(sT1)}
    v_mul_u32_u24 v12, {8 * 3584}, v2
    v_lshl_add_u32 v12, v1, 4, v12
    v_add_u32 v12, {s(sT0)}, v12
    s_movk_i32 {s(sT2)}, {2 * 3584}
    """)
    for k in range(8):
        I(f'global_load_dwordx4 {v(dst(k), 4)}, v12, {P(pW1)} offset:{3584 * (k & 1)}{NT}')
        if k & 1 and k < 7:
            I(f'v_add_u32 v12, {s(sT2)}, v12')


def ffn_rest(dst, younger):
    global AT, SEL
    AT, SEL = 128, 136
    I(f"""
    s_and_b32 {s(sT3)}, s2, 15
    s_lshr_b32 {s(sT1)}, s2, 4
    s_lshl_b32 {s(sT1)}, {s(sT1)}, 8
    s_lshl_b32 {s(sT3)}, {s(sT3)}, 6
    s_add_u32 {s(sT0)}, {s(sT3)}, {L_XN}
    v_lshl_add_u32 v144, v2, 4, {s(sT0)}
    ds_read_b128 {v(XP, 4)}, v144
    s_lshl_b32 {s(sT0)}, {s(sT1)}, 6
    s_add_u32 {s(sT0)}, {s(sT0)}, {s(sT3)}
    s_lshl_b32 {s(sT0)}, {s(sT0)}, 1
    s_add_u32 {s(sT0)}, {s(sT0)}, {W_HF}
    v_lshrrev_b32 v145, 2, v0
    v_lshlrev_b32 v146, 11, v145
    v_and_b32 v147, 3, v0
    v_lshl_add_u32 v146, v147, 4, v146
    v_add_u32 v146, {s(sT0)}, v146
    v_cmp_gt_u32 {P(sM1)}, v0, 31
    s_and_b32 {s(sT0)}, s2, 3
    s_lshl_b32 {s(sT0)}, {s(sT0)}, 6
    s_add_u32 {s(sT0)}, {s(sT0)}, {s(sT1)}
    s_bfe_u32 {s(sT1)}, s2, 0x10002
    s_lshl3_add_u32 {s(sT0)}, {s(sT1)}, {s(sT0)}
    s_bfe_u32 {s(sT1)}, s2, 0x10003
    s_lshl2_add_u32 {s(sT0)}, {s(sT1)}, {s(sT0)}
    v_lshl_add_u32 v148, v147, 4, {s(sT0)}
    s_lshl_b32 {s(sT0)}, s2, 11
    s_add_u32 {s(sT0)}, {s(sT0)}, {W_HF}
    v_lshlrev_b32 v147, 4, v147
    v_lshl_add_u32 v147, v145, 7, v147
    v_add_u32 v147, {s(sT0)}, v147
    v_lshlrev_b32 v149, 3, v0
    v_add_u32 v149, {L_FF}, v149
    s_mov_b32 {s(sT3)}, 0xffff0000
    """)
    build_sel(150)
    I('s_waitcnt lgkmcnt(0)')
    diag_stage(8, dst, younger)
    I(f'v_cndmask_b32 {v(REC)}, {v(ACC0)}, {v(ACC0 + 2)}, {P(sM1)}')
    I(f'v_cndmask_b32 {v(REC + 1)}, {v(ACC0 + 1)}, {v(ACC0 + 3)}, {P(sM1)}')
    I(f'global_store_dwordx4 v146, {v(REC, 4)}, {P(pWS)} sc1')
    I(f'global_load_dword {v(B1R)}, v148, {P(pB1)}')
    TS(2)
    I(f's_mov_b32 {s(sCNT)}, {args.spin}')
    if args.ffn:
        I('s_waitcnt vmcnt(2)')
        flag_add(C_ACK)
        I('s_waitcnt vmcnt(0)')
    else:
        flag_wait(F_H2, 2)
    a.label('L_TF')
    I(f'global_load_dwordx4 {v(HFG, 4)}, v147, {P(pWS)} sc1')
    I(f's_sub_u32 {s(sCNT)}, {s(sCNT)}, 1')
    I('s_waitcnt vmcnt(0)')
    I(f'v_cmp_ne_u32 vcc, {v(HFG + 2)}, {v(REC + 2)}')
    a.B('s_cbranch_scc1 L_TF_go')
    a.B('s_cbranch_vccnz L_TF')
    a.label('L_TF_go')
    TSN()
    row_allreduce('v_add_f32', [HFG, HFG + 1], steps=(4, 8))
    I(f'''
    v_permlane32_swap_b32 {v(HFG)}, {v(HFG + 1)}
    v_add_f32 {v(HFG)}, {v(HFG)}, {v(HFG + 1)}
    v_mov_b32 {v(HFG + 1)}, {v(HFG)}
    v_permlane16_swap_b32 {v(HFG)}, {v(HFG + 1)}
    v_lshlrev_b32 v16, 16, {v(B1R)}
    v_add_f32 {v(HFG)}, {v(HFG)}, {v(HFG + 1)}
    v_and_b32 v17, {s(sT3)}, {v(B1R)}
    v_cvt_pk_bf16_f32 {v(HFG)}, {v(HFG)}, {v(HFG)}
    v_cndmask_b32 v16, v16, v17, {P(sM1)}
    v_and_b32 {v(HFG)}, {s(sT3)}, {v(HFG)}
    v_add_f32 {v(HFG)}, {v(HFG)}, v16
    v_cvt_pk_bf16_f32 {v(HFG)}, {v(HFG)}, {v(HFG)}
    v_and_b32 {v(HFG)}, {s(sT3)}, {v(HFG)}
    v_max_f32 {v(HFG)}, 0, {v(HFG)}
    v_mul_f32 {v(HFG)}, {v(HFG)}, {v(HFG)}
    v_cvt_pk_bf16_f32 {v(HFG)}, {v(HFG)}, {v(HFG)}
    v_mov_b32 {v(HFG + 1)}, {v(HFG)}
    v_permlane32_swap_b32 {v(HFG)}, {v(HFG + 1)}
    ''')
    for g_ in range(4):
        for i in range(2):
            I(f'v_mov_b32 {v(HFG + 2 + i)}, {v(HFG + i)} row_newbcast:{g_} row_mask:{1 << g_}')
    I(f'ds_write_b64 v149, {v(HFG + 2, 2)}')
    TS(4)


if not args.ffn:
    I('s_cmp_ge_u32 s2, 224')
    I('s_cbranch_scc1 L_PV1')
    flag_wait(F_F0, 1)
    ffn_w1(W1T)
    ffn_rest(W1T, 0)
I('s_branch L_PV1')

a.label('L_F2')
I(f'''
v_mov_b32 v16, 0
v_mov_b32 v17, 0
v_mov_b32 v18, 0
v_mov_b32 v19, 0
ds_write_b128 {v(VFL)}, v[16:19]
ds_write_b128 {v(VFL)}, v[16:19] offset:16
ds_write_b128 {v(VFL)}, v[16:19] offset:32
ds_write_b128 {v(VFL)}, v[16:19] offset:48
v_lshlrev_b32 v20, 2, v1
v_add_u32 v20, {L_MA}, v20
v_mov_b32 v21, 0xff800000
ds_write_b32 v20, v21
''')
I('v_and_b32 v5, 3, v0')
I('v_lshlrev_b32 v5, 21, v5')
I('s_waitcnt lgkmcnt(0)')
load_epoch()
if args.touch != 2:
    I('s_barrier')
I('s_mov_b64 exec, 7')
I(f'global_load_dword v22, v5, {P(pWS)} offset:256')
I('s_mov_b64 exec, 3')
if args.touch:
    I(f'global_load_dword v24, v5, {P(pWUV)}')
    I(f'global_load_dword v25, v5, {P(pWO)}')
I('s_mov_b64 exec, 1')
I(f'global_load_dword v23, v16, {P(pOUT)}')
if args.touch:
    for k, p in enumerate((pW1, pW2, pB1, pB2)):
        I(f'global_load_dword {v(26 + k)}, v16, {P(p)}')
I('s_mov_b64 exec, -1')
if args.touch == 2:
    I('s_barrier')
epoch_ready()
if args.warm & 2:
    flag_wait(F_F0, 1)
    I('s_mov_b64 exec, 0')
    I('s_branch L_PVC')
    a.label('L_PVC_back')
    I('s_mov_b64 exec, -1')


a.label('L_QG')
G2, LA = 64, 56
I(f'''
s_lshr_b32 {s(sT1)}, {s(sWV)}, 1
s_lshl1_add_u32 {s(sT0)}, {s(sGA)}, {s(sT1)}
s_lshl_b32 {s(sT0)}, {s(sT0)}, 13
s_add_u32 {s(sT0)}, {s(sT0)}, {W_H2}
v_add_u32 v8, {s(sT0)}, v3
v_add_u32 v9, 0x1000, v8
v_and_b32 v10, 7, v0
v_add_u32 v11, 8, v10
v_lshlrev_b32 v6, 4, v10
v_lshl_add_u32 v6, v0, 8, v6
s_lshl_b32 {s(sT1)}, {s(sT1)}, 7
s_add_u32 {s(sT1)}, {s(sT1)}, {L_QA}
v_add_u32 {v(LA)}, {s(sT1)}, v6
s_mul_i32 {s(sM3)}, {s(sEP)}, {(HASH * 8) & 0xffffffff}
''')
for hd in range(1, 8):
    I(f'v_xor_b32 {v(LA + hd)}, {16 * hd}, {v(LA)}')
tr_addr()
pv_setup()
I('s_setprio 1')
if args.qa:
    flag_wait(C_ISS, 4)
flag_wait(F_H2, 1 + args.h2)
assert not args.hint2
if args.hint2:
    I(f's_cmp_eq_u32 {s(sWV)}, 0')
    I('s_cbranch_scc1 L_QG_w0')
    I(f's_xor_b32 {s(sT0)}, {s(sY)}, 16')
    I(f's_lshl_b32 {s(sT0)}, {s(sT0)}, 11')
    I(f's_add_u32 {s(sT0)}, {s(sT0)}, {W_H2}')
    I(f's_add_u32 {s(sB)}, {s(pWS)}, {s(sT0)}')
    I(f's_addc_u32 {s(sB + 1)}, {s(pWS + 1)}, 0')
    scalar_poll([k * 256 + 252 for k in range(8)])
    flag_add(F_HINT)
    I('s_branch L_QG_hd')
    a.label('L_QG_w0')
    flag_wait(F_HINT, 1)
    a.label('L_QG_hd')
TS(10)


def qa_loads():
    for k in range(8):
        I(f'global_load_dwordx4 {v(G2 + 4 * k, 4)}, {v(8 + (k >> 2))}, {P(pWS)} offset:{(k & 3) * 1024} sc1')


qa_loads()
for i in range(args.pre):
    tr_slot(i)
I(f's_mov_b32 {s(sCNT)}, {args.spin}')
a.label('L_QG_chk')
for k in range(8):
    d0, d1 = v(G2 + 4 * k), v(G2 + 4 * k + 1)
    I(f's_waitcnt vmcnt({7 - k})')
    I(f'v_and_b32 v6, {s(sK1)}, {d0}')
    I(f'v_and_b32 v7, {s(sK1)}, {d1}')
    I(f'v_xor_b32 {d0}, v6, {d0}')
    I(f'v_xor_b32 {d1}, v7, {d1}')
    I(f'ds_write_b128 {v(LA + k)}, {v(G2 + 4 * k, 4)}')
    I(f'v_lshl_add_u32 v24, v6, v10, {"0" if k == 0 else "v24"}')
    I('v_lshl_add_u32 v24, v7, v11, v24')
    I(f'v_add3_u32 v24, {d0}, {d1}, v24')
for st in OCT:
    I(f'v_add_u32 v24, v24, v24 {st}')
I(f's_sub_u32 {s(sCNT)}, {s(sCNT)}, 1')
I(f'v_cmp_ne_u32 vcc, {s(sM3)}, v24')
a.B('s_cbranch_scc1 L_QG_go')
a.B('s_cbranch_vccz L_QG_go')
I('s_waitcnt lgkmcnt(0)')
I('s_mov_b64 exec, vcc')
qa_loads()
I('s_branch L_QG_chk')
a.label('L_QG_go')
flag_add(C_QA)
I('s_setprio 0')
TS(11)
TSN()
a.label('L_PVs')
for i in range(args.pre, 4):
    tr_slot(i)

a.label('L_PV')
if args.ffn:
    I(f's_cmp_eq_u32 {s(sWV)}, 3')
    I(f's_cselect_b32 {s(sR)}, s2, 224')
    I(f's_cmp_ge_u32 {s(sR)}, 224')
    I('s_cbranch_scc1 L_PV_now1')
    ffn_w1(W1T)
    a.label('L_PV_now1')
if not args.bm3:
    TS(6)
    I('s_barrier')
if args.pp:
    I(f's_setprio {args.pp}')
I('s_barrier')
a.label('L_PVC')
for u in range(4):
    I(f'ds_read_b128 {v(PF + 4 * u, 4)}, {v(48 + u)}')
LW, MW = 32, 36
I(f'ds_read_b128 {v(LW, 4)}, v43')
I(f'ds_read_b128 {v(MW, 4)}, v42')
TS(7)
O = 16
cvt = lambda k: [f'v_cvt_pk_bf16_f32 {v(O + 4 * r + k)}, {v(ACC + 8 * k + r)}, {v(ACC + 8 * k + 4 + r)}' for r in range(4)]
R4 = range(4)
fill = {}


def place(first, ops):
    for i, t_ in enumerate(ops):
        fill.setdefault(first + i // 2, []).append(t_)


w0 = [f'v_add_f32 {v(LW + r)}, {v(LW + r)}, {v(LW + r)} row_ror:{st}' for st in (8, 4, 2, 1) for r in R4]
w0[0] = 's_waitcnt lgkmcnt(0)\n' + w0[0]
w1 = [f'v_cvt_f16_f32 {v(LW + r)}, {v(LW + r)}' for r in R4]
w1 += [f'v_and_or_b32 {v(LW + r)}, {v(LW + r)}, {s(sT0)}, {v(MW + r)}' for r in R4]
w1 += [f'v_lshrrev_b32 {v(LW + r)}, v1, {v(LW + r)}' for r in R4]
w2 = cvt(0) + [f'v_and_b32 {v(O + 4 * r)}, {s(sK2)}, {v(O + 4 * r)}' for r in R4]
w3 = cvt(1) + [f'v_bfi_b32 {v(O + 4 * r + 1)}, {s(sK1)}, {v(LW + r)}, {v(O + 4 * r + 1)}' for r in R4]
w3 += [f'v_add_u32 {v(CK + r)}, {v(O + 4 * r)}, {v(O + 4 * r + 1)}' for r in R4]
w3 += [f'v_add_u32 {v(CK + r)}, {v(CK + r)}, {v(CK + r)} row_ror:{st}' for st in (8, 4, 2, 1) for r in R4]
allw = w0 + w2 + w1 + w3
place(2, allw[:60])
I(f's_mov_b32 {s(sT0)}, 0xffff')
i = 0
for k in range(4):
    for u in range(4):
        for T in (2 * k, 2 * k + 1):
            if k == 0 and T == 0 and u < 2:
                I(f's_waitcnt lgkmcnt({5 - u})')
            I(f'{MFMA} {v(ACC + 4 * T, 4)}, {v(PF + 4 * u, 4)}, {v(BF + (u * 8 + T) * 4, 4)}, {"0" if u == 0 else v(ACC + 4 * T, 4)}')
            for t_ in fill.get(i, []):
                I(t_)
            i += 1
for t_ in allw[60:] + cvt(2):
    I(t_)
for r in range(4):
    I(f'v_sub_u32 {v(CK + r)}, {s(sK0)}, {v(CK + r)}')
    I(cvt(3)[r])
    I(f'v_lshrrev_b32 {v(CK + r)}, v1, {v(CK + r)}')
    I(f'v_and_or_b32 {v(O + 4 * r)}, {v(CK + r)}, {s(sK1)}, {v(O + 4 * r)}')
    if args.warm & 2 and r == 0:
        a.B('s_cbranch_execz L_PVC_back')
    I(f'global_store_dwordx4 {v(52 + r)}, {v(O + 4 * r, 4)}, {P(pWS)} {args.sf.replace("+", " ")}')
flag_add(C_ST)
TS(8)
if args.ffn:
    I('s_setprio 0')
    I(f's_cmp_ge_u32 {s(sR)}, 224')
    I('s_cbranch_scc1 L_PV_noffn')
    ffn_rest(W1T, 4)
    I('s_branch L_PV_end')
    a.label('L_PV_noffn')
I('s_waitcnt vmcnt(0)')
flag_add(C_ACK)
TS(9)
a.label('L_PV_end')
I('s_waitcnt lgkmcnt(0)')
ts_dump()
I('s_endpgm')

a.label('L_S')
AF, QB, WUV, SA, MK, WO0, QAD = 128, 96, 48, 40, 36, 64, 80
WOR, PL, AW, AT2 = 128, 176, 208, 240
XR2, B2R, OA, W2T, HH = 46, 47, 104, 88, 124
sQ, sDL = sK1, sK2
WOq = lambda q: WO0 + 4 * q if q < 4 else WOR + 4 * (q - 4)
KS = {0: 12, 1: 16, 2: 19}[args.kmap]
if args.kmap == 0:
    I(f's_lshl_b32 {s(sT0)}, {s(sS)}, 17')
elif args.kmap == 1:
    I(f's_and_b32 {s(sT0)}, {s(sS)}, 15')
    I(f's_lshl_b32 {s(sT0)}, {s(sT0)}, 12')
    I(f's_lshl_b32 {s(sT1)}, {s(sX)}, 21')
    I(f's_add_u32 {s(sT0)}, {s(sT0)}, {s(sT1)}')
else:
    I(f's_lshl_b32 {s(sT0)}, {s(sS)}, 12')
I(f"""
s_lshl_b32 {s(sT1)}, {s(sW)}, {KS + 3}
s_add_u32 {s(sT0)}, {s(sT0)}, {s(sT1)}
s_lshl_b32 {s(sT1)}, {s(sW)}, 8
s_add_u32 {s(sT0)}, {s(sT0)}, {s(sT1)}
v_lshlrev_b32 v4, 1, v2
v_xor_b32 v4, v4, v1
v_lshlrev_b32 v4, 4, v4
v_lshl_add_u32 v4, v2, 10, v4
v_add_u32 v4, {s(sT0)}, v4
v_xor_b32 v26, 0x80, v4
v_add_u32 v26, {1 << KS}, v26
s_mul_i32 {s(sT1)}, {s(sW)}, {32768 + 8192}
s_mov_b32 m0, {s(sT1)}
s_mov_b32 {s(sT2)}, {2 << KS}
s_mov_b32 {s(sQ)}, {s(sW)}
s_lshr_b32 {s(sHT)}, {s(sY)}, 3
s_lshl2_add_u32 {s(sHT)}, {s(sX)}, {s(sHT)}
s_and_b32 {s(sCI)}, {s(sY)}, 3
s_bfe_u32 {s(sDI)}, {s(sY)}, 0x10002
v_and_b32 v5, 7, v1
v_lshlrev_b32 v5, 1, v5
v_xor_b32 v5, v5, v2
v_lshlrev_b32 v5, 4, v5
v_lshl_add_u32 v5, v1, 8, v5
s_lshl_b32 {s(sT1)}, {s(sW)}, 13
v_add_u32 v5, {s(sT1)}, v5
v_lshl_add_u32 v27, {s(sW)}, 2, {v(VFL)}
""")
I(f"""
s_lshr_b32 {s(sT0)}, {s(sW)}, 1
s_lshl1_add_u32 {s(sT0)}, {s(sCI)}, {s(sT0)}
s_lshl_b32 {s(sT0)}, {s(sT0)}, 19
s_and_b32 {s(sT3)}, {s(sW)}, 1
s_lshl_b32 {s(sT3)}, {s(sT3)}, 16
s_add_u32 {s(sT0)}, {s(sT0)}, {s(sT3)}
s_lshl1_add_u32 {s(sT3)}, {s(sHT)}, {s(sDI)}
s_lshl_b32 {s(sT1)}, {s(sT3)}, 7
s_add_u32 {s(sT0)}, {s(sT0)}, {s(sT1)}
v_lshrrev_b32 v8, 3, v0
v_lshlrev_b32 v8, 13, v8
v_and_b32 v9, 7, v0
v_lshl_add_u32 v8, v9, 4, v8
v_add_u32 v8, {s(sT0)}, v8
""")
I('s_waitcnt lgkmcnt(0)')
load_epoch()
I('s_barrier')
I(f"""
s_lshl_b32 {s(sT0)}, {s(sT3)}, 16
s_lshl_b32 {s(sT1)}, {s(sW)}, 8
s_add_u32 {s(sT0)}, {s(sT0)}, {s(sT1)}
v_lshlrev_b32 v34, 12, v2
v_lshl_add_u32 v34, v1, 4, v34
v_add_u32 v34, {s(sT0)}, v34
""")
for b in range(4):
    I(f's_add_u32 {s(sT0)}, {s(sCI)}, {b}')
    I(f's_and_b32 {s(sT0)}, {s(sT0)}, 3')
    I(f's_lshl_b32 {s(sT0)}, {s(sT0)}, 14')
    I(f'v_add_u32 {v(28 + b)}, {s(sT0)}, v34')
build_masks(MK, 9, 10)
TS(1)


def s_setup():
    I(f"""
    v_lshlrev_b32 v10, 4, v1
    v_add_u32 v10, {L_MX}, v10
    s_lshl_b32 {s(sT0)}, {s(sW)}, 2
    v_add_u32 v9, {s(sT0)}, v10
    s_lshl_b32 {s(sT0)}, {s(sW)}, 10
    s_add_u32 {s(sT0)}, {s(sT0)}, {L_P}
    v_add_u32 v11, {s(sT0)}, v3
    v_lshlrev_b32 v33, 2, v1
    v_add_u32 v33, {L_MF}, v33
    s_lshl_b32 {s(sT0)}, {s(sW)}, 8
    s_add_u32 {s(sT0)}, {s(sT0)}, {L_LS}
    v_lshl_add_u32 v32, v0, 2, {s(sT0)}
    v_xor_b32 v6, v1, v2
    v_lshlrev_b32 v6, 4, v6
    v_lshl_add_u32 v6, v2, 8, v6
    """)
    for i in range(4):
        I(f's_add_u32 {s(sT0)}, {s(sW)}, {i}')
        I(f's_and_b32 {s(sT0)}, {s(sT0)}, 3')
        I(f's_lshl_b32 {s(sT0)}, {s(sT0)}, 12')
        I(f's_add_u32 {s(sT0)}, {s(sT0)}, {L_QA}')
        I(f'v_add_u32 {v(QAD + 2 * i)}, {s(sT0)}, v6')
        I(f'v_xor_b32 {v(QAD + 2 * i + 1)}, 64, {v(QAD + 2 * i)}')
    I(f"""
    s_bfe_u32 {s(sT0)}, s2, 0x20004
    s_and_b32 {s(sT1)}, s2, 3
    s_lshl2_add_u32 {s(sT0)}, {s(sT0)}, {s(sT1)}
    s_lshl_b32 {s(sT0)}, {s(sT0)}, 6
    s_bfe_u32 {s(sT1)}, s2, 0x10002
    s_lshl3_add_u32 {s(sT0)}, {s(sT1)}, {s(sT0)}
    s_bfe_u32 {s(sT1)}, s2, 0x10003
    s_lshl2_add_u32 {s(sT0)}, {s(sT1)}, {s(sT0)}
    v_and_b32 v35, 3, v0
    v_lshl_add_u32 v12, v35, 4, {s(sT0)}
    s_mov_b32 {s(sK0)}, 0x20000
    s_lshr_b32 {s(sT1)}, s2, 6
    s_lshl_b32 {s(sT1)}, {s(sT1)}, 10
    s_add_u32 {s(sT0)}, {s(sT0)}, {s(sT1)}
    s_cmp_lt_u32 s2, 224
    s_cselect_b32 {s(sR)}, -1, 0
    s_cselect_b32 {s(sT1)}, 0, 512
    s_sub_u32 {s(sT0)}, {s(sT0)}, {s(sT1)}
    s_lshl1_add_u32 {s(sT0)}, {s(sT0)}, {s(sW)}
    s_lshl_b32 {s(sT0)}, {s(sT0)}, 8
    v_lshlrev_b32 v34, 13, v2
    v_lshl_add_u32 v34, v1, 4, v34
    v_add_u32 v34, {s(sT0)}, v34
    """)


def dma_row(r):
    k = r & 7
    va = 'v26' if k & 1 else 'v4'
    I(f'global_load_lds_dwordx4 {va}, {P(pCKV)}{NT}')
    if r < 30:
        if k == 5:
            I(f's_lshl_b32 {s(sDL)}, {s(sQ)}, 8')
            I(f's_add_u32 {s(sQ)}, {s(sQ)}, 1')
            I(f's_and_b32 {s(sQ)}, {s(sQ)}, 3')
            I(f's_lshl_b32 {s(sT0)}, {s(sQ)}, 8')
            I(f's_sub_u32 {s(sDL)}, {s(sT0)}, {s(sDL)}')
            I(f's_sub_u32 {s(sDL)}, {s(sDL)}, {6 << KS}')
        I(f'v_add_u32 {va}, {s(sDL if k >= 6 else sT2)}, {va}')
    if r < 31:
        if k == 7:
            I(f's_lshl2_add_u32 {s(sT0)}, {s(sQ)}, {s(sW)}')
            I(f's_lshl_b32 m0, {s(sT0)}, 13')
        else:
            I('s_add_u32 m0, m0, 0x400')
    if r == args.qa and r:
        flag_add(C_ISS)


def stage_addr(i):
    I(f's_add_u32 {s(sT1)}, {s(sW)}, {i}')
    I(f's_and_b32 {s(sT1)}, {s(sT1)}, 3')
    I(f's_lshl_b32 {s(sT1)}, {s(sT1)}, 15')
    I(f'v_add_u32 v16, {s(sT1)}, v5')
    for t in range(1, 4):
        I(f'v_xor_b32 {v(16 + t)}, {64 * t}, v16')


def stage_reads(i):
    for t in range(4):
        for tau in range(2):
            I(f'ds_read_b128 {v(AF + 32 * i + 8 * t + 4 * tau, 4)}, {v(16 + t)} offset:{4096 * tau}')


tail = []
for i in range(4):
    tail.append(f'global_load_dwordx4 {v(WO0 + 4 * i, 4)}, v28, {P(pWO)} offset:{1024 * i}{NT if args.nto else ""}')
for i in range(4):
    tail.append(f'global_load_dwordx4 {v(WUV + 4 * i, 4)}, v8, {P(pWUV)}{NT}' + (f'\nv_add_u32 v8, {s(sK0)}, v8' if i < 3 else ''))
for i in range(2):
    tail.append(f'global_load_dwordx4 {v(W2T + 4 * i, 4)}, v34, {P(pW2)} offset:{1024 * i}{NT}')
w2_loads = []
if args.ffn:
    w2_loads = tail[8:10]
    tail = tail[:8]
    args.ns = min(args.ns, 4) if args.ns == 6 else args.ns
wuv_loads = []
if args.wuv:
    assert args.tord == 1
    wuv_loads = tail[4:8]
    tail = tail[:4] + tail[8:]
elif args.tord == 1:
    tail = tail[:4] + tail[8:10] + tail[4:8]
if args.tord == 2:
    tail = tail[4:8] + tail[8:10] + tail[:4]
assert args.nt1 + args.ns + args.ne <= len(tail)

depth = lambda r: args.d1 if r < args.k1 else (args.d2 if r < args.k2 else args.d3)
for r in range(args.d1):
    dma_row(r)
s_setup()
I(f'global_load_dword v6, v12, {P(pX)}')
I(f'global_load_dword v7, v12, {P(pB2)}')
if args.warm & 1:
    I('s_mov_b64 exec, 0')
    I('s_branch L_SM_nb')
    a.label('L_SM_back')
    I('s_mov_b64 exec, -1')
I('s_mov_b64 vcc, -1')
stg = 0
for r in range(args.d1, 32):
    if args.tpos <= r < args.tpos + args.ne:
        I(tail.pop(0))
    if args.wuv == 2 and args.k1 <= r < args.k1 + 4:
        I(wuv_loads.pop(0))
    dma_row(r)
    d = depth(r)
    if args.dyn and r >= args.k1 and r < 31:
        lab = a.newlabel('L_dy')
        a.B(f's_cbranch_vccz {lab}')
        I(f'ds_read_b32 {v(VFT)}, {v(VFL)} offset:{4 * F_H2}')
        I(f's_waitcnt vmcnt({args.dyn}) lgkmcnt(0)')
        I(f'v_cmp_eq_u32 vcc, 0, {v(VFT)}')
        a.label(lab)
    if r + 1 > d and r < 31:
        I(f's_waitcnt vmcnt({d})')
        if r + 1 - d >= 8 * (stg + 1):
            flag_add(K0, 27)
            stage_addr(stg)
            stage_reads(stg)
            stg += 1
TS(2)
while stg < (3 if args.p2 < 0 else 2):
    stage_addr(stg)
    I(f's_waitcnt vmcnt({24 - 8 * stg})')
    flag_add(K0, 27)
    stage_reads(stg)
    stg += 1
for _ in range(args.nt1):
    I(tail.pop(0))
if args.qa == 32:
    flag_add(C_ISS)
stage_addr(3 if args.p2 < 0 else 2)
assert args.p2 < 0 or (stg == 2 and args.p2 <= 8 and args.p2 <= args.last)
epoch_ready()
I('s_setprio 2')
flag_wait(C_QA, 2)
TS(4)
LOOK = 4


def qa_read(t):
    I(f'ds_read_b128 {v(QB + 4 * (t & 7), 4)}, {v(QAD + 2 * (t >> 2) + (t & 1))} offset:{1024 * (t & 3)}')


def wo_rest():
    for q in range(4, 16):
        I(f'global_load_dwordx4 {v(WOq(q), 4)}, {v(28 + (q >> 2))}, {P(pWO)} offset:{1024 * (q & 3)}{NTS}')


def s_mfma(t):
    for tau in range(2):
        I(f'{MFMA} {v(SA + 4 * tau, 4)}, {v(AF + 8 * t + 4 * tau, 4)}, {v(QB + 4 * (t & 7), 4)}, {"0" if t == 0 else v(SA + 4 * tau, 4)}')


ldsq = []


def pickup(i):
    I(f's_waitcnt vmcnt({8 * (3 - i) + args.nt1})')
    stage_reads(i)
    ldsq.extend([('A', 4 * i + t) for t in range(4) for _ in range(2)])
    if i < 3 or not args.bm3:
        flag_add(K0, 27)
        ldsq.append(('F', i))
    if i == 2:
        stage_addr(3)
    else:
        TS(3)


waited = -1
for t in range(LOOK):
    qa_read(t)
    ldsq.append(('Q', t))
for t in range(16):
    if t == args.p2:
        pickup(2)
    if t == args.last:
        pickup(3)
    if t + LOOK < 16:
        qa_read(t + LOOK)
        ldsq.append(('Q', t + LOOK))
    need_ = max(i for i, o in enumerate(ldsq) if o in (('Q', t), ('A', t)))
    if need_ > waited:
        younger = min(15, len(ldsq) - 1 - need_)
        I(f's_waitcnt lgkmcnt({younger})')
        waited = len(ldsq) - 1 - younger
    s_mfma(t)
    if t >= 12:
        for _ in range((args.ns + 3 - (t - 12)) // 4):
            if tail:
                I(tail.pop(0))
TS(5)
a.label('L_SM')
I(f'''
s_mov_b32 {s(sT3)}, 0xffff0000
s_mov_b32 {s(sT0)}, 0x3db504f3
s_mov_b32 {s(sT1)}, 0x3fb8aa3b
v_max3_f32 v24, {v(SA)}, {v(SA + 1)}, {v(SA + 2)}
v_max3_f32 v25, {v(SA + 4)}, {v(SA + 5)}, {v(SA + 6)}
v_max3_f32 v24, v24, {v(SA + 3)}, {v(SA + 7)}
v_max_f32 v24, v24, v25
''')
if args.dsmax:
    I(f'ds_max_f32 v33, v24 offset:{L_MA - L_MF}')
else:
    cross_rows_allreduce('v_max_f32', 24, 25)
    I('ds_write_b32 v9, v24')
if args.mimic:
    round_pairs(SA, 8, 16)
I('s_waitcnt lgkmcnt(0)')
I('s_barrier')
a.label('L_SM_nb')
I(f'ds_read_b32 v24, v33 offset:{L_MA - L_MF}' if args.dsmax else 'ds_read_b128 v[20:23], v10')
for i in range(8):
    I(f'v_mul_f32 {v(SA + i)}, {s(sT0)}, {v(SA + i)}')
if args.mimic:
    round_pairs(SA, 8, 16)
I('s_waitcnt lgkmcnt(0)')
if not args.dsmax:
    I('v_max3_f32 v24, v20, v21, v22')
    I('v_max_f32 v24, v24, v23')
if args.mimic:
    I('v_cvt_pk_bf16_f32 v24, v24, v24')
    I(f'v_and_b32 v24, {s(sT3)}, v24')
I(f'v_mul_f32 v24, {s(sT0)}, v24')
assert args.mimic
I('v_cvt_pk_bf16_f32 v24, v24, v24')
I(f'v_and_b32 v25, {s(sT3)}, v24')
I(f'v_mul_f32 v24, {s(sT1)}, v25')
I('ds_write_b32 v33, v25')
for i in range(8):
    I(f'v_fma_f32 {v(SA + i)}, {v(SA + i)}, {s(sT1)}, -v24')
for i in range(8):
    I(f'v_exp_f32 {v(SA + i)}, {v(SA + i)}')
for i in range(4):
    I(f'v_cvt_pk_bf16_f32 {v(16 + i)}, {v(SA + 2 * i)}, {v(SA + 2 * i + 1)}')
I('ds_write_b128 v11, v[16:19]')
I(f's_mov_b32 {s(sT0)}, 0x3f803f80')
I(f'v_dot2_f32_bf16 v25, v16, {s(sT0)}, 0')
for i in range(1, 4):
    I(f'v_dot2_f32_bf16 v25, {v(16 + i)}, {s(sT0)}, v25')
I('ds_write_b32 v32, v25')
if args.warm & 1:
    a.B('s_cbranch_execz L_SM_back')
I('s_waitcnt lgkmcnt(0)')
I('s_barrier')
I('s_setprio 0')
TS(6)
I(f'v_mov_b32 {v(XR2)}, v6')
I(f'v_mov_b32 {v(B2R)}, v7')
for _ in range(args.nb):
    if tail:
        I(tail.pop(0))
if args.wor == 1:
    wo_rest()
I(f'''
v_lshlrev_b32 v10, 3, v0
v_add_u32 v10, {L_FF}, v10
s_lshl2_add_u32 {s(sT0)}, {s(sHT)}, {s(sCI)}
s_lshl2_add_u32 {s(sT0)}, {s(sT0)}, {s(sW)}
s_lshl_b32 {s(sT0)}, {s(sT0)}, 13
s_add_u32 {s(sT0)}, {s(sT0)}, {W_H3}
v_lshlrev_b32 v4, 11, v2
v_lshl_add_u32 v4, v1, 4, v4
v_add_u32 v4, {s(sT0)}, v4
s_mul_i32 {s(sK1)}, {s(sEP)}, {(HASH * 8) & 0xffffffff}
s_mov_b32 {s(sK2)}, {EMB}
s_lshl_b32 {s(sT0)}, {s(sW)}, 2
s_add_u32 {s(sT0)}, {s(sT0)}, {L_MX}
v_mov_b32 v7, {s(sT0)}
v_mov_b32 v45, {L_MX}
s_lshl_b32 {s(sT0)}, {s(sW)}, 18
s_lshl_b32 {s(sT1)}, s2, {6 + args.h5}
s_add_u32 {s(sT0)}, {s(sT0)}, {s(sT1)}
s_add_u32 {s(sT0)}, {s(sT0)}, {W_H5}
v_lshrrev_b32 v44, {2 + args.h5}, v0
v_lshlrev_b32 v44, {14 + args.h5}, v44
v_and_b32 v16, {7 if args.h5 else 3}, v0
v_lshl_add_u32 v44, v16, 4, v44
v_add_u32 v44, {s(sT0)}, v44
v_and_b32 v16, 1, v2
v_lshrrev_b32 v17, 1, v2
s_lshl_b32 {s(sT0)}, {s(sW)}, 9
s_add_u32 {s(sT1)}, {s(sT0)}, {L_CL}
v_add_u32 v40, {s(sT1)}, v3
s_add_u32 {s(sT1)}, {s(sT0)}, {L_CX}
v_and_b32 v42, 7, v0
v_lshlrev_b32 v42, 5, v42
v_lshl_add_u32 v42, v16, 4, v42
v_lshl_add_u32 v42, v17, 8, v42
v_add_u32 v42, {s(sT1)}, v42
s_lshl_b32 {s(sT0)}, {s(sW)}, 7
s_add_u32 {s(sT0)}, {s(sT0)}, {L_CL}
v_lshrrev_b32 v41, 3, v0
v_lshl_add_u32 v41, v41, 4, {s(sT0)}
v_lshl_add_u32 v41, v35, 2, v41
v_bfe_u32 v9, v0, 2, 1
v_lshl_add_u32 v41, v9, 10, v41
v_lshl_add_u32 v9, v9, 3, v45
v_lshrrev_b32 v43, 2, v1
v_add_u32 v43, {s(sCI)}, v43
v_and_b32 v43, 3, v43
v_lshlrev_b32 v43, 4, v43
v_lshl_add_u32 v43, v2, 2, v43
v_add_u32 v43, v43, v35
v_lshlrev_b32 v43, 2, v43
v_add_u32 v43, {L_CX}, v43
v_mov_b32 v33, {s(sEP)}
v_cmp_gt_u32 {P(sM1)}, v0, 31
v_and_b32 v16, 1, v0
v_cmp_eq_u32 {P(sM2)}, 1, v16
''')
if args.pfu:
    I(f'''
    s_lshl2_add_u32 {s(sT0)}, {s(sCI)}, {s(sW)}
    s_lshl_b32 {s(sT0)}, {s(sT0)}, 18
    s_xor_b32 {s(sT1)}, {s(sDI)}, 1
    s_lshl1_add_u32 {s(sT1)}, {s(sHT)}, {s(sT1)}
    s_lshl_b32 {s(sT1)}, {s(sT1)}, 7
    s_add_u32 {s(sT0)}, {s(sT0)}, {s(sT1)}
    v_lshl_add_u32 v11, v0, 13, {s(sT0)}
    ''')
    pf = f's_mov_b32 exec_hi, 0\nglobal_load_dword v126, v11, {P(pWUV)}{NT}\ns_mov_b64 exec, -1'
    tail = tail + [pf] if args.pfu == 1 else [pf] + tail
if tail or args.wor == 2:
    flag_wait(C_ST, 4)
while tail:
    I(tail.pop(0))
if args.wor == 2:
    wo_rest()
flag_wait(C_ACK if args.ew else C_ST, 4)
for q in range(4, 4 + args.wpre):
    I(f'global_load_dwordx4 {v(WOq(q), 4)}, {v(28 + (q >> 2))}, {P(pWO)} offset:{1024 * (q & 3)}{NTS}')
if args.dly:
    I(f's_sleep {args.dly}')
if args.gv:
    I(f's_waitcnt vmcnt({args.gv - 1})')
TS(8)
U = 96
nwo = 0


def gather(first):
    global nwo
    for q in range(8):
        I(f'global_load_dwordx4 {v(PL + 4 * q, 4)}, v4, {P(pWS)} offset:{q * 256} {args.lf.replace("+", " ")} ')
    n2 = len(w2_loads) if first else 0
    if first:
        for t_ in w2_loads:
            I(t_)
    n_ = 0
    for q in range(8):
        d0, d1 = v(PL + 4 * q), v(PL + 4 * q + 1)
        I(f's_waitcnt vmcnt({7 - q + n_ + n2})')
        if first and args.wor == 3:
            for _ in range(2 if q < 4 else 1):
                qq = 4 + n_ + args.wpre
                if qq > 15:
                    continue
                I(f'global_load_dwordx4 {v(WOq(qq), 4)}, {v(28 + (qq >> 2))}, {P(pWO)} offset:{1024 * (qq & 3)}{NTS}')
                n_ += 1
        I(f'v_and_b32 v19, {s(sK2)}, {d0}')
        I(f'v_and_b32 {v(U + q)}, {s(sK2)}, {d1}')
        I(f'v_xor_b32 {d0}, v19, {d0}')
        I(f'v_lshl_add_u32 v19, v19, v1, {d1}')
        I(f'v_xor_b32 {d1}, {v(U + q)}, {d1}')
        I(f'v_lshlrev_b32 {v(U + q)}, v1, {v(U + q)}')
        I(f'v_add3_u32 v32, {d0}, v19, {"0" if q == 0 else "v32"}')
    if first:
        nwo = n_


gather(True)
I(f's_mov_b32 {s(sCNT)}, {args.spin}')
a.label('L_T3_chk')
for k in range(4):
    I(f'v_or_b32 {v(20 + k)}, {v(U + k)}, {v(U + k)} row_ror:8 bank_mask:0x3')
I('v_add_u32 v32, v32, v32 row_ror:8')
for k in range(4):
    I(f'v_or_b32 {v(20 + k)}, {v(U + 4 + k)}, {v(U + 4 + k)} row_ror:8 bank_mask:0xc')
I('v_add_u32 v32, v32, v32 row_ror:4')
for k in range(2):
    I(f'v_or_b32 {v(24 + k)}, {v(20 + k)}, {v(20 + k)} row_shl:4 bank_mask:0x5')
for k in range(2):
    I(f'v_or_b32 {v(24 + k)}, {v(22 + k)}, {v(22 + k)} row_shr:4 bank_mask:0xa')
I('v_add_u32 v32, v32, v32 row_ror:2')
for k in range(2):
    I(f'v_or_b32 {v(24 + k)}, {v(24 + k)}, {v(24 + k)} quad_perm:[1,0,3,2]')
I('v_add_u32 v32, v32, v32 row_ror:1')
for k in range(2):
    I(f'v_or_b32 {v(24 + k)}, {v(24 + k)}, {v(24 + k)} quad_perm:[2,3,0,1]')
I(f'v_cmp_ne_u32 vcc, {s(sK1)}, v32')
I(f's_sub_u32 {s(sCNT)}, {s(sCNT)}, 1')
I(f'v_cndmask_b32 v5, v24, v25, {P(sM2)}')
a.B('s_cbranch_vccz L_T3_go')
a.B('s_cbranch_scc1 L_T3_go')
I('s_mov_b64 exec, vcc')
gather(False)
I('s_branch L_T3_chk')
a.label('L_T3_go')
I('s_mov_b64 exec, -1')
TS(7)
I(f's_mov_b32 {s(sT1)}, 0x3fb8aa3b')
I(f'v_and_b32 v6, {s(sT3)}, v5')
I('v_cvt_f32_f16 v21, v5')
I(f'v_mul_f32 v6, {s(sT1)}, v6')
I('v_mul_f32 v21, 0.5, v21')
I('v_max_f32 v18, v6, v6 row_ror:8')
row_allreduce('v_max_f32', [18], steps=(4, 1))
cross_rows_allreduce('v_max_f32', 18, 19)
I('''
v_sub_f32 v17, v6, v18
v_exp_f32 v17, v17
v_cvt_pk_bf16_f32 v16, v17, v17
v_mul_f32 v17, v17, v21
''')
TS(1)
red = [f'v_add_f32 v17, v17, v17 row_ror:{st}' for st in (8, 4, 2, 1)]
red += ['v_mov_b32 v19, v17', 'v_permlane16_swap_b32 v19, v17\nv_add_f32 v17, v17, v19\nv_mov_b32 v19, v17',
        'v_permlane32_swap_b32 v19, v17\nv_add_f32 v17, v17, v19', 'ds_write2_b32 v7, v18, v17 offset0:0 offset1:4']
QL = lambda q: 8 * (q >> 2) + 4 * ((q >> 1) & 1) + (q & 1)


def w_and(q):
    for r in range(4):
        I(f'v_and_b32 {v(AW + 4 * (q & 1) + r)}, v16, {v(MK + r)} row_newbcast:{QL(q)}')


w_and(0)
for q in range(8):
    if q < 7:
        w_and(q + 1)
    I(f'{MFMA} v[24:27], {v(AW + 4 * (q & 1), 4)}, {v(PL + 4 * q, 4)}, {"0" if q == 0 else "v[24:27]"}')
    if q < 4:
        I(red[q])
for t_ in red[4:]:
    I(t_)
I('s_mov_b32 exec_hi, 0')
I('ds_write_b128 v40, v[24:27]')
I('s_mov_b64 exec, -1')
I('s_waitcnt lgkmcnt(0)')
TS(9)
TSN(0)
I('s_barrier')
I('ds_read_b128 v[96:99], v45')
I('ds_read_b64 v[100:101], v9')
I('ds_read2st64_b32 v[108:109], v41 offset0:0 offset1:2')
I('ds_read_b64 v[102:103], v9 offset:16')
I(f'ds_read_b64 {v(HH, 2)}, v10')
I('''
s_waitcnt lgkmcnt(4)
v_max3_f32 v18, v96, v97, v98
v_max_f32 v18, v18, v99
s_waitcnt lgkmcnt(2)
v_sub_f32 v100, v100, v18
v_sub_f32 v101, v101, v18
v_exp_f32 v100, v100
v_exp_f32 v101, v101
v_mul_f32 v20, v100, v108
v_fmac_f32 v20, v101, v109
s_waitcnt lgkmcnt(0)
v_mul_f32 v18, v100, v102
v_add_f32 v21, v20, v20 row_shl:4 bank_mask:0x5
v_fmac_f32 v18, v101, v103
v_add_f32 v21, v20, v20 row_shr:4 bank_mask:0xa
v_cvt_pk_bf16_f32 v20, v21, v21
v_add_f32 v18, v18, v18 row_half_mirror
''')
QP = lambda i: f'quad_perm:[{i},{i},{i},{i}]'
for r in range(4):
    I(f'v_and_b32 {v(AW + r)}, v20, {v(MK + r)} {QP(0)}')
for i in range(4):
    if i < 3:
        for r in range(4):
            I(f'v_and_b32 {v(AW + 4 * (i + 1) + r)}, v20, {v(MK + r)} {QP(i + 1)}')
    else:
        I('v_rcp_f32 v18, v18')
    I(f'{MFMA} v[24:27], {v(AW + 4 * i, 4)}, {v(WUV + 4 * i, 4)}, {"0" if i == 0 else "v[24:27]"}')
for i in range(2):
    I(f'v_and_b32 {v(HH + i)}, {s(sR)}, {v(HH + i)}')
for r in range(4):
    I(f'v_and_b32 {v(AW + 16 + r)}, {v(HH)}, {v(MK + r)}')
I('s_mov_b32 exec_lo, 0x00ff00ff')
I('s_mov_b32 exec_hi, 0xff00ff00')
I('ds_write_b128 v42, v[24:27]')
I('s_mov_b64 exec, -1')
for r in range(4):
    I(f'v_and_b32 {v(AW + 20 + r)}, {v(HH + 1)}, {v(MK + r)}')
I('s_waitcnt lgkmcnt(0)')
I('s_barrier')
for k in range(4):
    I(f'ds_read2st64_b32 {v(108 + 2 * k, 2)}, v43 offset0:{2 * k} offset1:{2 * k + 1}')
TS(10)
I(f's_waitcnt vmcnt({nwo})')
for i in range(2):
    I(f'{MFMA} {v(OA, 4)}, {v(AW + 16 + 4 * i, 4)}, {v(W2T + 4 * i, 4)}, {"0" if i == 0 else v(OA, 4)}')
I('v_mov_b32 v22, v33')
I('v_mov_b32 v23, v33')
I('''
s_waitcnt lgkmcnt(2)
v_add_f32 v108, v108, v109
v_add_f32 v110, v110, v111
s_waitcnt lgkmcnt(0)
v_add_f32 v112, v112, v113
v_add_f32 v114, v114, v115
v_add_f32 v108, v108, v110
v_add_f32 v112, v112, v114
v_add_f32 v108, v108, v112
''')
I('v_mul_f32 v108, v108, v18')
I('v_cvt_pk_bf16_f32 v20, v108, v108')


def wo_and(q):
    for r in range(4):
        I(f'v_and_b32 {v(AT2 + 4 * (q & 1) + r)}, v20, {v(MK + r)} row_newbcast:{q}')


wo_and(0)
for q in range(16):
    if q < 15:
        wo_and(q + 1)
    if args.wor == 3 and q >= 4:
        I(f's_waitcnt vmcnt({15 - q})')
    I(f'{MFMA} {v(OA, 4)}, {v(AT2 + 4 * (q & 1), 4)}, {v(WOq(q), 4)}, {v(OA, 4)}')
TS(11)
I(f'v_cndmask_b32 v20, {v(OA)}, {v(OA + 2)}, {P(sM1)}')
I(f'v_cndmask_b32 v21, {v(OA + 1)}, {v(OA + 3)}, {P(sM1)}')
I(f'global_store_dwordx4 v44, v[20:23], {P(pWS)} sc1')
TS(12)
I('s_cmp_lt_u32 s2, 192')
I('s_cbranch_scc1 L_T_done')
I(f'''
s_bfe_u32 {s(sT0)}, s2, {0x50001 if args.h5 else 0x60000}
s_lshl2_add_u32 {s(sT0)}, {s(sT0)}, {s(sW)}
s_lshl_b32 {s(sT0)}, {s(sT0)}, {12 + args.h5}
s_and_b32 {s(sT1)}, s2, {args.h5}
s_lshl_b32 {s(sT1)}, {s(sT1)}, 6
s_add_u32 {s(sT0)}, {s(sT0)}, {s(sT1)}
s_add_u32 {s(sT0)}, {s(sT0)}, {W_H5}
v_lshrrev_b32 v4, 2, v0
v_lshlrev_b32 v4, {6 + args.h5}, v4
v_lshl_add_u32 v4, v35, 4, v4
v_add_u32 v4, {s(sT0)}, v4
v_add_u32 v5, {2048 << args.h5}, v4
v_lshrrev_b32 v6, 1, v2
v_lshl_add_u32 v8, v6, 2, v35
v_lshlrev_b32 v8, 5, v8
v_and_b32 v6, 1, v2
v_lshl_add_u32 v8, v6, 2, v8
s_lshl_b32 {s(sT0)}, {s(sW)}, 3
s_add_u32 {s(sT0)}, {s(sT0)}, {L_CL}
v_add_u32 v8, {s(sT0)}, v8
v_and_b32 v9, 7, v0
v_lshlrev_b32 v9, 5, v9
v_add_u32 v9, {L_CL}, v9
v_lshlrev_b32 v108, 16, {v(XR2)}
v_and_b32 v109, {s(sT3)}, {v(XR2)}
v_lshlrev_b32 v110, 16, {v(B2R)}
v_and_b32 v111, {s(sT3)}, {v(B2R)}
v_add_f32 v108, v108, v110
v_add_f32 v109, v109, v111
v_mov_b32 v108, v109 quad_perm:[0,1,2,3] bank_mask:0xa
s_mov_b32 {s(sCNT)}, {args.spin}
''')
if args.a5:
    I('s_waitcnt vmcnt(0)')
f5 = lambda k: f'global_load_dwordx4 {v(128 + 4 * k, 4)}, {v(4 + (k >> 1))}, {P(pWS)} offset:{(1024 << args.h5) * (k & 1)} sc1'
a.label('L_T5_retry')
for k in range(4):
    I(f5(k))
a.label('L_T5_chk')
I(f's_sub_u32 {s(sCNT)}, {s(sCNT)}, 1')
I('s_waitcnt vmcnt(2)')
I('v_xor_b32 v17, v130, v33')
I('v_add_f32 v20, v128, v132')
I('v_bitop3_b32 v17, v134, v33, v17 bitop3:0xbe')
I('v_add_f32 v21, v129, v133')
I('s_waitcnt vmcnt(0)')
I('v_bitop3_b32 v17, v138, v33, v17 bitop3:0xbe')
I('v_add_f32 v24, v136, v140')
I('v_bitop3_b32 v17, v142, v33, v17 bitop3:0xbe')
I('v_add_f32 v25, v137, v141')
I('v_cmp_ne_u32 vcc, 0, v17')
I('v_add_f32 v20, v20, v24')
I('v_add_f32 v21, v21, v25')
a.B('s_cbranch_scc1 L_T5_go')
if args.m5:
    a.B('s_cbranch_vccz L_T5_go')
    for k in range(4):
        lab = a.newlabel('L_r5')
        I(f'v_cmp_ne_u32 vcc, {v(130 + 4 * k)}, v33')
        I('s_nop 0')
        a.B(f's_cbranch_vccz {lab}')
        I('s_mov_b64 exec, vcc')
        I(f5(k))
        I('s_mov_b64 exec, -1')
        a.label(lab)
    I('s_waitcnt vmcnt(0)')
    I('s_branch L_T5_chk')
else:
    a.B('s_cbranch_vccnz L_T5_retry')
a.label('L_T5_go')
TS(13)
TSN(3)
I('''
v_permlane32_swap_b32 v20, v21
v_add_f32 v20, v20, v21
v_add_f32 v20, v20, v20 row_ror:4
v_add_f32 v20, v20, v20 row_ror:8
ds_write_b32 v8, v20
s_waitcnt lgkmcnt(0)
s_barrier
''')
I(f's_cmp_lg_u32 {s(sW)}, 0')
I('s_cbranch_scc1 L_T_done')
I('''
ds_read_b128 v[128:131], v9
ds_read_b128 v[132:135], v9 offset:16
s_waitcnt lgkmcnt(1)
v_add_f32 v128, v128, v129
v_add_f32 v130, v130, v131
v_add_f32 v108, v108, v128
v_add_f32 v108, v108, v130
s_waitcnt lgkmcnt(0)
v_add_f32 v132, v132, v133
v_add_f32 v134, v134, v135
v_add_f32 v108, v108, v132
v_add_f32 v108, v108, v134
v_mov_b32 v109, v108 row_shl:4
v_cvt_pk_bf16_f32 v20, v108, v109
s_mov_b64 exec, 15
''')
I(f'global_store_dword v12, v20, {P(pOUT)} {args.of.replace("+", " ")}')
I('s_cmp_lg_u32 s2, 0xe0')
I('s_cbranch_scc1 L_T_done')
I(f'v_mov_b32 v22, {W_EP}')
I('s_mov_b64 exec, 1')
I(f'global_store_dword v22, v33, {P(pWS)} sc1')
a.label('L_T_done')
TS(14)
ts_dump()
a.label('L_end')
I('s_endpgm')

a.raw('.section .rodata,"a"')
a.raw('.p2align 6')
a.raw(f'.amdhsa_kernel {NAME}_kernel')
a.raw('''  .amdhsa_next_free_vgpr 256
  .amdhsa_next_free_sgpr 102
  .amdhsa_accum_offset 256
  .amdhsa_group_segment_fixed_size 0
  .amdhsa_kernarg_size 112
  .amdhsa_user_sgpr_count 2
  .amdhsa_user_sgpr_kernarg_segment_ptr 1
  .amdhsa_system_sgpr_workgroup_id_x 1
.end_amdhsa_kernel''')
open(args.o, 'w').write(a.text())
```

```python
import sys, argparse, re
from asmlib import Asm, v, s

NAME = 'parallel_sum__compressed_kv_cla__dense_activation_squared_relu__decode'

ap = argparse.ArgumentParser()
A_ = lambda n, d, t=int: ap.add_argument('--' + n, type=t, default=d)
ap.add_argument('-o', default='out.s')
A_('ts', 0)
A_('nt', 1)
A_('d1', 2); A_('k1', 4); A_('d2', 10); A_('k2', 16); A_('d3', 10)
A_('swap', 0)
A_('qa', 16)
A_('h2', 1)
A_('h3', 1)
A_('nt1', 0)
A_('wor', 3)
A_('dyn', 3)
A_('own', 1)
A_('ns', 6)
A_('nb', 0)
A_('w1', 0)
A_('last', 11)
A_('h5', 1)
A_('np', 2)
A_('sl', 5)
A_('pre', 1)
A_('tord', 1)
A_('light', 1)
A_('pt', 0)
A_('dly', 0)
A_('dly5', 0)
A_('hint1', 0)
A_('hint2', 0)
A_('wuv', 0)
A_('ew', 1)
A_('bpos', 1)
A_('a5', 1)
A_('comb', 1)
A_('tpos', 32)
A_('ne', 0)
A_('gv', 1)
A_('pp', 3)
A_('bo', 0)
A_('clk', 0)
A_('wpre', 0)
A_('nts', 0)
A_('nto', 0)
A_('ntm', 0x3f, lambda x: int(x, 0))
A_('xc', 0)
A_('kmap', 0)
A_('p2', 7)
A_('ffn', 0)
A_('dsmax', 1)
A_('pfu', 0)
A_('lf', 'sc1', str)
A_('sf', 'sc1', str)
A_('lfa', 'sc1', str)
A_('of', '', str)
A_('m5', 1)
A_('bm3', 1)
A_('top', 0)
A_('warm', 3)
A_('pert', '', str)
A_('ef', '', str)
A_('mimic', 1)
A_('touch', 0)
A_('spin', 20000)
A_('notail', 0)
A_('tsn', 0)
A_('amp', '', str)
A_('tsmask', 0xffff, lambda x: int(x, 0))
args = ap.parse_args()
NT = ' nt' if args.nt else ''
NTS = ' nt' if args.nts else ''

L_QA = 131072
L_P = L_QA + 16384
L_XN = L_P + 4096
L_MX = L_XN + 1024
L_MF = L_MX + 256
L_MA = L_MF + 128
L_CL = L_MF + 256
L_CX = L_CL + 2048
L_FF = L_CX + 2048
L_LS = L_FF + 512
L_FL = L_LS + 1024
L_END = L_FL + 64
assert L_END <= 163840
F_F0, C_ISS, F_H2, C_QA, C_ST, C_ACK, C_ER, F_HINT, K0 = range(9)
C_L, C_M = K0 + 4, K0 + 5
W_EP = 0
W_H1 = 0x1000
W_H2 = W_H1 + 0x20000
W_HF = W_H2 + 0x10000
W_H5 = W_HF + 0x80000
W_H3 = 0x200000
W_TS = 0x600000
assert W_H5 + 0x100000 <= W_H3

pX, pCKV, pWQ, pWUK, pWUV, pWO, pW1 = 4, 6, 8, 10, 12, 14, 18
pB1, pW2, pB2, pOUT, pDBG, pWS = 20, 22, 24, 26, 28, 30
sWV = 3
sX, sY, sFC, sGA, sS, sR, sHT, sCI, sDI = range(32, 41)
sJ, sH = sX, sY
sEP, sT0, sT1, sT2, sT3, sCNT, sW = 41, 42, 43, 44, 45, 46, 47
sB = 48
sM1, sM2, sM3, sM4 = 50, 52, 54, 56
sK0, sK1, sK2 = 58, 59, 60
TSB = 64
VFL, VONE, VFT = 13, 14, 15

a = Asm()
P = lambda r: s(r, 2)
MFMA = 'v_mfma_f32_16x16x32_bf16'


def I(text):
    if args.lfa != 'sc1':
        text = re.sub(r'(global_load\S* .*) sc1$', r'\1 ' + args.lfa.replace('+', ' '), text, flags=re.M)
    for bit, p_ in ((1, pWQ), (2, pWUK), (4, pCKV), (8, pWUV), (16, pW1), (32, pW2)):
        if not args.ntm & bit:
            text = re.sub(r'(global_load\S* .*s\[%d:%d\].*) nt' % (p_, p_ + 1), r'\1', text)
    if args.notail:
        out = []
        for line in text.split('\n'):
            m = re.match(r'\s*global_load_dwordx4 (v\[\d+:\d+\]), v\d+, s\[(\d+):', line)
            if m and int(m.group(2)) in (pWUV, pWO, pW1, pW2):
                line = f'global_load_dwordx4 {m.group(1)}, v3, s[4:5]'
            out.append(line)
        text = '\n'.join(out)
    a.I(text)


def TS(i):
    if args.ts and (args.tsmask >> i) & 1:
        I(f'{"s_memtime" if args.clk else "s_memrealtime"} {s(TSB + 2 * i, 2)}')


def TSN(k=None):
    if args.ts and (k is None or k == args.tsn):
        I(f's_sub_u32 {s(TSB + 2 * 15)}, {args.spin}, {s(sCNT)}')


def ts_dump(n=16):
    if not args.ts:
        return
    if args.xc:
        I(f's_getreg_b32 {s(TSB + 30)}, hwreg(HW_REG_XCC_ID)')
        I(f's_add_u32 {s(TSB + 30)}, {s(TSB + 30)}, {s(sEP)}')
        lab, done = a.newlabel('L_xc'), a.newlabel('L_xcd')
        I('s_cmp_lg_u32 s2, 224')
        I(f's_cbranch_scc1 {done}')
        I(f's_cmp_lg_u32 {s(sWV)}, 4')
        I(f's_cbranch_scc1 {done}')
        I('s_mov_b64 exec, -1')
        I(f'v_mov_b32 v4, {W_TS + args.xc * 512 + 60}')
        I(f'global_load_dword v5, v4, {P(pWS)} sc1')
        I('s_memrealtime s[96:97]')
        I('s_waitcnt vmcnt(0) lgkmcnt(0)')
        I(f'v_readfirstlane_b32 {s(sT0)}, v5')
        I(f's_cmp_eq_u32 {s(sT0)}, {s(TSB + 30)}')
        I(f's_cbranch_scc1 {done}')
        a.label(lab)
        I('s_memrealtime s[98:99]')
        I('s_waitcnt lgkmcnt(0)')
        I(f's_sub_u32 {s(sT1)}, s98, s96')
        I(f's_cmp_lt_u32 {s(sT1)}, 5000')
        I(f's_cbranch_scc1 {lab}')
        a.label(done)
    if args.amp:
        wg, w, k = map(int, args.amp.split(','))
        lab, done = a.newlabel('L_amp'), a.newlabel('L_ampd')
        I(f's_cmp_lg_u32 s2, {wg}')
        I(f's_cbranch_scc1 {done}')
        I(f's_cmp_lg_u32 {s(sWV)}, {w}')
        I(f's_cbranch_scc1 {done}')
        I('s_memrealtime s[96:97]')
        I('s_waitcnt lgkmcnt(0)')
        I(f's_sub_u32 {s(sT0)}, {s(TSB + 2 * k)}, {s(TSB)}')
        I(f's_lshl_b32 {s(sT0)}, {s(sT0)}, 3')
        I(f's_min_u32 {s(sT0)}, {s(sT0)}, 100000')
        a.label(lab)
        I('s_memrealtime s[98:99]')
        I('s_waitcnt lgkmcnt(0)')
        I(f's_sub_u32 {s(sT1)}, s98, s96')
        I(f's_cmp_lt_u32 {s(sT1)}, {s(sT0)}')
        I(f's_cbranch_scc1 {lab}')
        a.label(done)
    I('s_waitcnt lgkmcnt(0)')
    I('s_mov_b64 exec, -1')
    I('v_mov_b32 v4, 0')
    for i in range(n):
        I(f'v_writelane_b32 v4, {s(TSB + 2 * i)}, {i}')
    I(f's_lshl_b32 {s(sT0)}, s2, 3')
    I(f's_add_u32 {s(sT0)}, {s(sT0)}, {s(sWV)}')
    I(f's_lshl_b32 {s(sT0)}, {s(sT0)}, 6')
    I(f's_add_u32 {s(sT0)}, {s(sT0)}, {W_TS}')
    I(f'v_lshl_add_u32 v5, v0, 2, {s(sT0)}')
    I('s_mov_b64 exec, 0xffff')
    I(f'global_store_dword v5, v4, {P(pWS)}')
    I('s_waitcnt vmcnt(0)')


def load_epoch():
    I(f's_load_dword {s(sEP)}, {P(pWS)}, {W_EP}')


def epoch_ready():
    I('s_waitcnt lgkmcnt(0)')
    I(f's_add_u32 {s(sEP)}, {s(sEP)}, 1')


def row_allreduce(op, regs, steps=(8, 4, 2, 1)):
    for st in steps:
        for r in regs:
            I(f'{op} {v(r)}, {v(r)}, {v(r)} row_ror:{st}')


def cross_rows_allreduce(op, r, t):
    for sw in ('v_permlane16_swap_b32', 'v_permlane32_swap_b32'):
        I(f'v_mov_b32 {v(t)}, {v(r)}')
        I(f'{sw} {v(t)}, {v(r)}')
        I(f'{op} {v(r)}, {v(r)}, {v(t)}')


def scalar_poll(offsets):
    lab, done = a.newlabel('L_sp'), a.newlabel('L_spd')
    R = [61, 62, 63, 96, 97, 98, 99, 100]
    I(f's_mov_b32 {s(sCNT)}, {args.spin}')
    a.label(lab)
    for k, o in enumerate(offsets):
        I(f's_load_dword {s(R[k])}, {P(sB)}, {o} glc')
    I(f's_sub_u32 {s(sCNT)}, {s(sCNT)}, 1')
    I(f's_cbranch_scc1 {done}')
    I('s_waitcnt lgkmcnt(0)')
    I(f's_xor_b32 {s(sT0)}, {s(R[0])}, {s(sEP)}')
    for k in range(1, len(offsets)):
        I(f's_xor_b32 {s(sT1)}, {s(R[k])}, {s(sEP)}')
        I(f's_or_b32 {s(sT0)}, {s(sT0)}, {s(sT1)}')
    I(f's_cbranch_scc1 {lab}')
    a.label(done)
    I('s_waitcnt lgkmcnt(0)')


def flag_add(idx, base=VFL):
    I('s_mov_b64 exec, 1')
    I(f'ds_add_u32 {v(base)}, {v(VONE)} offset:{4 * idx}')
    I('s_mov_b64 exec, -1')


def flag_wait(idx, n, base=VFL):
    lab, done = a.newlabel('L_fw'), a.newlabel('L_fwd')
    if args.bo and idx in (F_F0, C_ISS, F_H2, C_ST, C_ACK, K0):
        l2 = a.newlabel('L_fw')
        a.B(f's_branch {l2}')
        a.label(lab)
        I(f's_sleep {args.bo}')
        a.label(l2)
    else:
        a.label(lab)
    I(f'ds_read_b32 {v(VFT)}, {v(base)} offset:{4 * idx}')
    I(f's_sub_u32 {s(sFC)}, {s(sFC)}, 1')
    I('s_waitcnt lgkmcnt(0)')
    I(f'v_cmp_gt_u32 vcc, {n}, {v(VFT)}')
    a.B(f's_cbranch_scc1 {done}')
    a.B(f's_cbranch_vccnz {lab}')
    a.label(done)
    I(f's_max_i32 {s(sFC)}, {s(sFC)}, 0')


def build_masks(M, t0, t1):
    I(f'v_and_b32 {v(t0)}, 1, v1')
    I(f'v_lshlrev_b32 {v(t0)}, 4, {v(t0)}')
    I(f'v_mov_b32 {v(t1)}, 0xffff')
    I(f'v_lshlrev_b32 {v(t1)}, {v(t0)}, {v(t1)}')
    I(f'v_bfe_u32 {v(t0)}, v1, 1, 2')
    for r in range(4):
        I(f'v_cmp_eq_u32 vcc, {r}, {v(t0)}')
        I(f'v_cndmask_b32 {v(M + r)}, 0, {v(t1)}, vcc')


BF, ACC, PF = 128, 96, 80
AT, SEL, XP, ACC0, REC = 72, 32, 80, 88, 92


def build_sel(t=6):
    J = lambda x: I(re.sub(r'\bv([6-9])\b', lambda m: 'v%d' % (int(m.group(1)) - 6 + t), x))
    J('''
    v_and_b32 v6, 1, v1
    v_cmp_eq_u32 vcc, 1, v6
    v_mov_b32 v7, 0x0c0c0100
    v_mov_b32 v8, 0x01000c0c
    v_cndmask_b32 v7, v7, v8, vcc
    v_mov_b32 v8, 0x0c0c0302
    v_mov_b32 v9, 0x03020c0c
    v_cndmask_b32 v8, v8, v9, vcc
    v_mov_b32 v9, 0x0c0c0c0c
    v_bfe_u32 v6, v1, 1, 2
    ''')
    for r in range(4):
        J(f'v_cmp_eq_u32 vcc, {r}, v6')
        J(f'v_cndmask_b32 {v(SEL + r)}, v9, v7, vcc')
        J(f'v_cndmask_b32 {v(SEL + 4 + r)}, v9, v8, vcc')


def diag_stage(n, W, younger=0):
    def perms(k):
        for r in range(4):
            I(f'v_perm_b32 {v(AT + 4 * (k & 1) + r)}, {v(XP + (k >> 1))}, {v(XP + (k >> 1))}, {v(SEL + 4 * (k & 1) + r)}')
    perms(0)
    for k in range(n):
        if k < n - 1:
            perms(k + 1)
        else:
            I(f'v_mov_b32 {v(REC + 2)}, {s(sEP)}')
            I(f'v_mov_b32 {v(REC + 3)}, {s(sEP)}')
        I(f's_waitcnt vmcnt({n - 1 - k + younger})')
        I(f'{MFMA} {v(ACC0, 4)}, {v(AT + 4 * (k & 1), 4)}, {v(W(k), 4)}, {"0" if k == 0 else v(ACC0, 4)}')


TA = 16


def tr_addr():
    I(f'''
    v_lshrrev_b32 v4, 2, v0
    v_lshlrev_b32 v4, 8, v4
    v_and_b32 v5, 31, v0
    v_lshl_add_u32 v4, v5, 3, v4
    s_lshl_b32 {s(sT0)}, {s(sW)}, 15
    v_add_u32 v4, {s(sT0)}, v4
    ''')


CK = 44
EMB = 0x00010001
HASH = 0x9e3779b1
OCT = ('quad_perm:[1,0,3,2]', 'quad_perm:[2,3,0,1]', 'row_half_mirror')


def pv_setup():
    for i in range(4):
        I(f's_sub_u32 {s(sT0)}, {s(sW)}, {i}')
        I(f's_and_b32 {s(sT0)}, {s(sT0)}, 3')
        I(f's_lshl_b32 {s(sT0)}, {s(sT0)}, 10')
        I(f's_add_u32 {s(sT0)}, {s(sT0)}, {L_P}')
        I(f'v_add_u32 {v(48 + i)}, {s(sT0)}, v3')
    I(f"""
    s_lshl_b32 {s(sT0)}, {s(sGA)}, 6
    s_add_u32 {s(sT0)}, {s(sT0)}, {s(sW)}
    s_lshl_b32 {s(sT0)}, {s(sT0)}, 7
    s_add_u32 {s(sT0)}, {s(sT0)}, {s(sS)}
    s_lshl_b32 {s(sT1)}, {s(sT0)}, 8
    s_add_u32 {s(sT1)}, {s(sT1)}, {W_H3}
    v_lshlrev_b32 v52, 19, v2
    v_lshl_add_u32 v52, v1, 4, v52
    v_add_u32 v52, {s(sT1)}, v52
    s_mov_b32 {s(sT2)}, 0x20000
    v_add_u32 v53, {s(sT2)}, v52
    v_add_u32 v54, {s(sT2)}, v53
    v_add_u32 v55, {s(sT2)}, v54
    v_lshlrev_b32 v42, 4, v2
    v_lshl_add_u32 v43, v1, 6, v42
    v_add_u32 v43, {L_LS}, v43
    v_add_u32 v42, {L_MF}, v42
    s_mul_i32 {s(sK0)}, {s(sEP)}, {HASH}
    s_mov_b32 {s(sK1)}, {EMB}
    s_mov_b32 {s(sK2)}, {~EMB & 0xffffffff}
    """)


def tr_slot(i):
    I(f's_sub_u32 {s(sT0)}, {s(sW)}, {i}')
    I(f's_and_b32 {s(sT0)}, {s(sT0)}, 3')
    I(f's_lshl_b32 {s(sT1)}, {s(sT0)}, 13')
    I(f'v_lshl_add_u32 v5, {s(sT0)}, 2, {v(VFL)}')
    I(f'v_add_u32 {v(TA)}, {s(sT1)}, v4')
    for T in range(1, 8):
        I(f'v_xor_b32 {v(TA + T)}, {32 * T}, {v(TA)}')
    if i == 3 and args.bm3:
        assert not args.ffn
        TS(6)
        I('s_barrier')
    else:
        flag_wait(K0, i + 1, 5)
    for T in range(8):
        for tau in range(2):
            I(f'ds_read_b64_tr_b16 {v(BF + (i * 8 + T) * 4 + 2 * tau, 2)}, {v(TA + T)} offset:{tau * 4096}')


def round_pairs(base, n, tmp):
    for i in range(n // 2):
        I(f'v_cvt_pk_bf16_f32 {v(tmp + i)}, {v(base + 2 * i)}, {v(base + 2 * i + 1)}')
    for i in range(n // 2):
        I(f'v_lshlrev_b32 {v(base + 2 * i)}, 16, {v(tmp + i)}')
        I(f'v_and_b32 {v(base + 2 * i + 1)}, {s(sT3)}, {v(tmp + i)}')


hdr = open('cdna_kernels/%s.s.ref' % NAME).read().split('; Override launch geometry')[0]
a.raw(hdr.rstrip())
a.raw(f'; @launch grid=(256,1,1) block=(512,1,1) lds={L_END}')
a.raw('.amdgcn_target "amdgcn-amd-amdhsa--gfx950"')
a.raw('.text')
a.raw(f'.globl {NAME}_kernel')
a.raw('.p2align 8')
a.raw(f'.type {NAME}_kernel,@function')
a.label(f'{NAME}_kernel')
a.label('L_start')
I('s_load_dwordx16 s[4:19], s[0:1], 0')
I(f's_getpc_b64 {P(sB)}')
a.label('L_pc')
I('s_cmpk_ge_u32 s2, 0x100')
I('s_cbranch_scc1 L_end')
TS(0)
if args.top:
    I(f'''
    v_cmp_gt_u32 vcc, 64, v0
    s_and_b32 {s(sX)}, s2, 7
    s_lshr_b32 {s(sY)}, s2, 3
    v_lshl_add_u32 v6, {s(sX)}, 6, v0
    v_lshl_add_u32 v6, v6, 5, {s(sY)}
    v_lshlrev_b32 v5, 4, v0
    v_lshlrev_b32 v6, 8, v6
    ''')
    a.B('s_cbranch_vccz L_top')
    I(f'''
    s_waitcnt lgkmcnt(0)
    global_load_dwordx4 v[120:123], v5, {P(pX)}
    ''')
    if args.top == 1:
        I(f'global_load_dword v41, v6, {P(pWQ)}{NT}')
        I(f'global_load_dword v41, v6, {P(pWQ)} offset:128{NT}')
    a.label('L_top')
I('s_load_dwordx8 s[20:27], s[0:1], 64')
I('s_load_dwordx4 s[28:31], s[0:1], 96')
I(f'''
v_lshrrev_b32 v3, 6, v0
v_lshrrev_b32 v4, 5, v0
s_lshr_b32 {s(sY)}, s2, 3
s_and_b32 {s(sT1)}, {s(sY)}, 15
s_lshl_b32 {s(sT1)}, {s(sT1)}, 11
v_lshl_add_u32 v4, v4, 7, {s(sT1)}
v_min_u32 v4, L_end-L_pc, v4
s_mov_b32 exec_lo, 1
s_mov_b32 exec_hi, 1
global_load_dword v15, v4, {P(sB)}
s_mov_b64 exec, -1
v_readfirstlane_b32 {s(sWV)}, v3
v_and_b32 v0, 63, v0
v_and_b32 v1, 15, v0
v_lshrrev_b32 v2, 4, v0
s_and_b32 {s(sX)}, s2, 7
s_lshr_b32 {s(sGA)}, {s(sY)}, 4
s_xor_b32 {s(sGA)}, {s(sGA)}, 1
s_and_b32 {s(sT0)}, {s(sY)}, 15
s_lshl4_add_u32 {s(sS)}, {s(sX)}, {s(sT0)}
s_and_b32 {s(sW)}, {s(sWV)}, 3
v_lshlrev_b32 v3, 4, v0
v_mov_b32 {v(VFL)}, {L_FL}
v_mov_b32 {v(VONE)}, 1
s_mov_b32 {s(sFC)}, 0x200000
s_cmp_ge_u32 {s(sWV)}, 4
''')
a.B('s_cbranch_scc1 L_S')
I(f'''
s_lshl_b32 {s(sT0)}, {s(sJ)}, 19
s_lshl_b32 {s(sT1)}, {s(sH)}, 8
s_add_u32 {s(sT0)}, {s(sT0)}, {s(sT1)}
s_cmp_eq_u32 {s(sWV)}, 1
''')
a.B('s_cbranch_scc1 L_F1')
I(f's_cmp_eq_u32 {s(sWV)}, 2')
a.B('s_cbranch_scc1 L_F2')
I(f's_cmp_eq_u32 {s(sWV)}, 3')
a.B('s_cbranch_scc1 L_F3')

Wq, XR = 128, 120
I(f'''
v_lshlrev_b32 v5, 17, v2
v_lshl_add_u32 v5, v1, 4, v5
v_add_u32 v5, {s(sT0)}, v5
s_movk_i32 {s(sT2)}, 0x2000
''')
if not args.top:
    I('s_waitcnt lgkmcnt(0)')
    I(f'global_load_dwordx4 {v(XR, 4)}, v3, {P(pX)}')
for k in range(16):
    I(f'global_load_dwordx4 {v(Wq + 4 * k, 4)}, v5, {P(pWQ)}{NT}')
    if k < 15:
        I(f'v_add_u32 v5, {s(sT2)}, v5')
if args.bpos == 0:
    I('s_barrier')
I('s_waitcnt lgkmcnt(0)')
load_epoch()
TS(1)
build_sel()
I(f'''
v_add_u32 v10, {L_XN}, v3
s_lshl_b32 {s(sT0)}, {s(sJ)}, 7
s_add_u32 {s(sT0)}, {s(sT0)}, {L_XN}
v_lshl_add_u32 v11, v2, 5, {s(sT0)}
s_lshl_b32 {s(sT0)}, s2, 9
s_add_u32 {s(sT0)}, {s(sT0)}, {W_H1}
v_add_u32 v12, {s(sT0)}, v3
s_mov_b32 {s(sT3)}, 0xffff0000
s_mov_b32 {s(sK0)}, 0x07060501
s_mov_b32 {s(sK1)}, 0x07060502
s_mov_b32 {s(sK2)}, 0x07060503
''')
F, Dd, t0, t1, t2, t3, PK = 96, 104, 112, 113, 114, 115, 116
I(f's_waitcnt vmcnt({(16, 19, 17)[args.top]})')
if args.bpos == 1:
    I('s_barrier')
TS(2)
for i in range(4):
    I(f'v_lshlrev_b32 {v(F + 2 * i)}, 16, {v(XR + i)}')
    I(f'v_and_b32 {v(F + 2 * i + 1)}, {s(sT3)}, {v(XR + i)}')
I(f'''
v_add_f32 {v(t0)}, {v(F)}, {v(F + 1)}
v_add_f32 {v(t1)}, {v(F + 2)}, {v(F + 3)}
v_add_f32 {v(t2)}, {v(F + 4)}, {v(F + 5)}
v_add_f32 {v(t3)}, {v(F + 6)}, {v(F + 7)}
v_add_f32 {v(t0)}, {v(t0)}, {v(t1)}
v_add_f32 {v(t2)}, {v(t2)}, {v(t3)}
v_add_f32 {v(t0)}, {v(t0)}, {v(t2)}
''')
row_allreduce('v_add_f32', [t0])
I(f'v_add_f32 {v(t0)}, {v(t0)}, {v(t0)} row_bcast:15 row_mask:0xa')
I(f'v_add_f32 {v(t0)}, {v(t0)}, {v(t0)} row_bcast:31 row_mask:0xc')
I(f'v_mov_b32 {v(t1)}, 0x3b000000')
I(f'v_readlane_b32 {s(sT0)}, {v(t0)}, 63')
I(f'v_mul_f32 {v(t1)}, {s(sT0)}, {v(t1)}')
for i in range(8):
    I(f'v_sub_f32 {v(Dd + i)}, {v(F + i)}, {v(t1)}')
I(f'v_mul_f32 {v(t0)}, {v(Dd)}, {v(Dd)}')
I(f'v_mul_f32 {v(t2)}, {v(Dd + 1)}, {v(Dd + 1)}')
for i in range(2, 8, 2):
    I(f'v_fmac_f32 {v(t0)}, {v(Dd + i)}, {v(Dd + i)}')
    I(f'v_fmac_f32 {v(t2)}, {v(Dd + i + 1)}, {v(Dd + i + 1)}')
I(f'v_add_f32 {v(t0)}, {v(t0)}, {v(t2)}')
I(f'v_cvt_pk_bf16_f32 {v(t1)}, {v(t1)}, {v(t1)}')
I(f'v_and_b32 {v(t1)}, {s(sT3)}, {v(t1)}')
row_allreduce('v_add_f32', [t0], steps=(8,))
for i in range(0, 4):
    I(f'v_sub_f32 {v(Dd + i)}, {v(F + i)}, {v(t1)}')
row_allreduce('v_add_f32', [t0], steps=(4,))
for i in range(4, 8):
    I(f'v_sub_f32 {v(Dd + i)}, {v(F + i)}, {v(t1)}')
row_allreduce('v_add_f32', [t0], steps=(2,))
for i in range(0, 2):
    I(f'v_cvt_pk_bf16_f32 {v(PK + i)}, {v(Dd + 2 * i)}, {v(Dd + 2 * i + 1)}')
row_allreduce('v_add_f32', [t0], steps=(1,))
for i in range(2, 4):
    I(f'v_cvt_pk_bf16_f32 {v(PK + i)}, {v(Dd + 2 * i)}, {v(Dd + 2 * i + 1)}')
I(f'v_add_f32 {v(t0)}, {v(t0)}, {v(t0)} row_bcast:15 row_mask:0xa')
for i in range(0, 2):
    I(f'v_lshlrev_b32 {v(Dd + 2 * i)}, 16, {v(PK + i)}')
    I(f'v_and_b32 {v(Dd + 2 * i + 1)}, {s(sT3)}, {v(PK + i)}')
I(f'v_add_f32 {v(t0)}, {v(t0)}, {v(t0)} row_bcast:31 row_mask:0xc')
for i in range(2, 4):
    I(f'v_lshlrev_b32 {v(Dd + 2 * i)}, 16, {v(PK + i)}')
    I(f'v_and_b32 {v(Dd + 2 * i + 1)}, {s(sT3)}, {v(PK + i)}')
I(f'v_mov_b32 {v(t1)}, 0x3b000000')
I(f'v_readlane_b32 {s(sT0)}, {v(t0)}, 63')
I(f'''
v_mul_f32 {v(t1)}, {s(sT0)}, {v(t1)}
v_cvt_pk_bf16_f32 {v(t1)}, {v(t1)}, {v(t1)}
v_and_b32 {v(t1)}, {s(sT3)}, {v(t1)}
v_add_f32 {v(t1)}, 0x3727c5ac, {v(t1)}
v_cvt_pk_bf16_f32 {v(t1)}, {v(t1)}, {v(t1)}
v_and_b32 {v(t1)}, {s(sT3)}, {v(t1)}
v_sqrt_f32 {v(t1)}, {v(t1)}
v_cvt_pk_bf16_f32 {v(t1)}, {v(t1)}, {v(t1)}
v_and_b32 {v(t1)}, {s(sT3)}, {v(t1)}
v_rcp_f32 {v(t1)}, {v(t1)}
''')
for i in range(8):
    I(f'v_mul_f32 {v(Dd + i)}, {v(Dd + i)}, {v(t1)}')
for i in range(4):
    I(f'v_cvt_pk_bf16_f32 {v(PK + i)}, {v(Dd + 2 * i)}, {v(Dd + 2 * i + 1)}')
I(f'ds_write_b128 v10, {v(PK, 4)}')
I(f'ds_read_b128 {v(XP, 4)}, v11')
I(f'ds_read_b128 {v(XP + 4, 4)}, v11 offset:16')
epoch_ready()
TS(3)
diag_stage(16, lambda k: Wq + 4 * k)
for i in range(3):
    I(f'v_perm_b32 {v(REC + i)}, {v(ACC0 + i)}, {v(ACC0 + 3)}, {s(sK0 + i)}')
I('s_mov_b32 exec_hi, 0')
I(f'global_store_dwordx4 v12, {v(REC, 4)}, {P(pWS)} sc1')
I(f'ds_write_b128 v10, {v(ACC0, 4)} offset:{L_CX - L_XN}')
TS(4)
flag_add(F_F0)
I('s_branch L_QG')

a.label('L_F1')
WK, G1, QF, DK = 128, 192, 96, 112
I(f'''
v_lshlrev_b32 v6, 1, v2
v_xor_b32 v6, v6, v1
v_lshlrev_b32 v5, 13, v2
v_lshl_add_u32 v5, v6, 4, v5
v_add_u32 v5, {s(sT0)}, v5
v_xor_b32 v6, 0x80, v5
v_add_u32 v6, 0x20000, v6
s_mov_b32 {s(sT2)}, 0x40000
s_mov_b32 {s(sT3)}, {(-28 * 8192) & 0xffffffff}
s_mov_b32 m0, {L_QA}
s_waitcnt lgkmcnt(0)
''')
load_epoch()
I('s_barrier')
for k in range(16):
    I(f'global_load_lds_dwordx4 {"v6" if k & 1 else "v5"}, {P(pWUK)}{NT}')
    if k < 15:
        I('s_add_u32 m0, m0, 0x400')
    if k < 14:
        I(f'v_add_u32 {"v6" if k & 1 else "v5"}, {s(sT3 if k & 2 else sT2)}, {"v6" if k & 1 else "v5"}')
TS(1)
I(f'''
v_and_b32 v5, 7, v1
v_lshlrev_b32 v5, 1, v5
v_xor_b32 v5, v5, v2
v_lshlrev_b32 v5, 4, v5
v_lshl_add_u32 v5, v1, 8, v5
v_add_u32 v24, {L_QA}, v5
v_xor_b32 v25, 64, v24
v_xor_b32 v26, 0x80, v24
v_xor_b32 v27, 0xc0, v24
s_lshl_b32 {s(sT0)}, {s(sH)}, 12
s_add_u32 {s(sT0)}, {s(sT0)}, {W_H1}
v_add_u32 v8, {s(sT0)}, v3
s_lshl_b32 {s(sT1)}, {s(sJ)}, 9
v_add_u32 v6, {s(sT1)}, v3
s_movk_i32 {s(sT1)}, 0xfff
v_and_b32 v16, {s(sT1)}, v6
v_add_u32 v6, 0x400, v6
v_and_b32 v17, {s(sT1)}, v6
v_add_u32 v6, 0x400, v6
v_and_b32 v18, {s(sT1)}, v6
v_add_u32 v6, 0x400, v6
v_and_b32 v19, {s(sT1)}, v6
v_add_u32 v32, {s(sT0)}, v16
v_add_u32 v33, {s(sT0)}, v17
v_add_u32 v34, {s(sT0)}, v18
v_add_u32 v35, {s(sT0)}, v19
v_add_u32 v9, {L_CX}, v3
v_and_b32 v10, 1, v2
v_lshlrev_b32 v10, 1, v10
v_lshrrev_b32 v11, 1, v2
v_add_u32 v10, v10, v11
v_lshl_add_u32 v10, v1, 2, v10
v_lshlrev_b32 v10, 2, v10
v_add_u32 v10, {L_CL}, v10
v_lshlrev_b32 v11, 4, v2
v_add_u32 v11, {L_CL}, v11
s_lshl_b32 {s(sT0)}, s2, 7
s_add_u32 {s(sT0)}, {s(sT0)}, {W_H2}
v_lshl_add_u32 v36, v2, 1, v1
v_lshl_add_u32 v12, v36, 4, {s(sT0)}
v_add_u32 v37, 8, v36
v_cmp_eq_u32 {P(sM1)}, 1, v1
s_mov_b32 {s(sM2)}, {EMB}
s_mov_b32 {s(sM2 + 1)}, {~EMB & 0xffffffff}
s_mov_b32 {s(sK0)}, 0x0c04000c
s_mov_b32 {s(sK1)}, 0x0402010c
s_mov_b32 {s(sK2)}, 0x07060302
s_mov_b32 {s(sM3 + 1)}, 0x10000
''')
epoch_ready()
I(f'v_mov_b32 v22, {s(sEP)}')
I(f's_mul_i32 {s(sM3)}, {s(sEP)}, {HASH}')
I('s_setprio 1')
NP = args.np
for p_ in range(NP):
    I(f'v_mov_b32 {v(G1 + 16 * p_ + 3)}, v22')
    for e in range(3):
        I(f'v_mov_b32 {v(G1 + 16 * p_ + e)}, 0')


def h1_loads(p_):
    for k in range(4):
        if k == 0:
            I('s_mov_b32 exec_lo, 0')
        I(f'global_load_dwordx4 {v(G1 + 16 * p_ + 4 * k, 4)}, {v(32 + k)}, {P(pWS)} sc1')
        if k == 0:
            I('s_mov_b32 exec_lo, -1')


if args.hint1:
    assert NP == 1
    I(f's_lshl_b32 {s(sT0)}, {s(sH)}, 12')
    I(f's_add_u32 {s(sT0)}, {s(sT0)}, {W_H1 + 508}')
    I(f's_add_u32 {s(sB)}, {s(pWS)}, {s(sT0)}')
    I(f's_addc_u32 {s(sB + 1)}, {s(pWS + 1)}, 0')
    HO = [4, 5, 6, 7, 8, 9, 12]
    for k in range(7):
        I(f's_add_u32 {s(HO[k])}, {s(sJ)}, {k + 1}')
        I(f's_and_b32 {s(HO[k])}, {s(HO[k])}, 7')
        I(f's_lshl_b32 {s(HO[k])}, {s(HO[k])}, 9')
    scalar_poll([s(r) for r in HO])
else:
    I('s_waitcnt vmcnt(4)')
TS(2)
h1_loads(0)
I('s_waitcnt vmcnt(4)')
for tau in range(4):
    for t in range(4):
        I(f'ds_read_b128 {v(WK + 16 * tau + 4 * t, 4)}, {v(24 + t)} offset:{4096 * tau}')
for p_ in range(1, NP):
    if p_ > 1 and args.sl:
        I(f's_sleep {args.sl}')
    h1_loads(p_)
Q4 = 40
for e in range(4):
    I(f'v_mov_b32 {v(Q4 + 4 + e)}, 0')
flag_wait(F_F0, 1)
I('s_mov_b32 exec_hi, 0')
I(f'ds_read_b128 {v(Q4 + 4, 4)}, v9')
I('s_mov_b64 exec, -1')
I(f's_mov_b32 {s(sCNT)}, {args.spin}')
I('s_waitcnt lgkmcnt(0)')
a.label('L_F1_poll')
for p_ in range(NP):
    G = G1 + 16 * p_
    I(f's_sub_u32 {s(sCNT)}, {s(sCNT)}, 1')
    I(f's_waitcnt vmcnt({4 * (NP - 1)})')
    I(f'v_xor_b32 v16, {v(G + 3)}, v22')
    for k in range(1, 4):
        I(f'v_bitop3_b32 v16, {v(G + 4 * k + 3)}, v22, v16 bitop3:0xbe')
    I('v_cmp_ne_u32 vcc, 0, v16')
    a.B(f's_cbranch_scc1 L_F1_go{p_}')
    a.B(f's_cbranch_vccz L_F1_go{p_}')
    h1_loads(p_)
I('s_branch L_F1_poll')
for p_ in reversed(range(NP)):
    G = G1 + 16 * p_
    a.label(f'L_F1_go{p_}')
    for k in range(4):
        I(f'v_perm_b32 {v(G + 4 * k + 3)}, {v(G + 4 * k + 1)}, {v(G + 4 * k)}, {s(sK0)}')
    for k in range(4):
        I(f'v_perm_b32 {v(G + 4 * k + 3)}, {v(G + 4 * k + 2)}, {v(G + 4 * k + 3)}, {s(sK1)}')
    for e in (0, 2):
        I(f'v_pk_add_f32 {v(Q4 + 4 + e, 2)}, {v(Q4 + 4 + e, 2)}, {v(G + e, 2)}')
        I(f'v_pk_add_f32 {v(G + 4 + e, 2)}, {v(G + 4 + e, 2)}, {v(G + 8 + e, 2)}')
    for e in (0, 2):
        I(f'v_pk_add_f32 {v(Q4 + 4 + e, 2)}, {v(Q4 + 4 + e, 2)}, {v(G + 12 + e, 2)}')
    for e in (0, 2):
        I(f'v_pk_add_f32 {v(Q4 + e, 2)}, {v(Q4 + 4 + e, 2)}, {v(G + 4 + e, 2)}')
    if p_:
        I('s_branch L_F1_go')
a.label('L_F1_go')
TS(3)
TSN()
G1 = Q4
I(f'v_permlane32_swap_b32 {v(G1)}, {v(G1 + 2)}')
I(f'v_permlane32_swap_b32 {v(G1 + 1)}, {v(G1 + 3)}')
I(f'v_add_f32 {v(G1)}, {v(G1)}, {v(G1 + 2)}')
I(f'v_add_f32 {v(G1 + 1)}, {v(G1 + 1)}, {v(G1 + 3)}')
I(f'v_cvt_pk_bf16_f32 v16, {v(G1)}, {v(G1 + 1)}')
I('ds_write_b32 v10, v16')
for t in range(4):
    I(f'ds_read_b128 {v(QF + 4 * t, 4)}, v11 offset:{64 * t}')
for half in ((0, 2), (1, 3)):
    for t in range(4):
        if half[0] == 0:
            I(f's_waitcnt lgkmcnt({3 - t})')
        for tau in half:
            I(f'{MFMA} {v(DK + 4 * tau, 4)}, {v(WK + 16 * tau + 4 * t, 4)}, {v(QF + 4 * t, 4)}, {"0" if t == 0 else v(DK + 4 * tau, 4)}')
        if half[0] == 1 and t == 1:
            for tau in (0, 2):
                for r in range(4):
                    I(f'v_add_u32 {v(DK + 4 * tau + r)}, {s(sM3 + 1)}, {v(DK + 4 * tau + r)}')
        if half[0] == 1 and t == 2:
            for tau in (0, 2):
                for r in range(2):
                    I(f'v_perm_b32 {v(24 + 2 * tau + r)}, {v(DK + 4 * tau + 2 * r + 1)}, {v(DK + 4 * tau + 2 * r)}, {s(sK2)}')
for r in (24, 25, 28, 29):
    I(f'v_and_b32 {v(r)}, {s(sM2 + 1)}, {v(r)}')
I('v_add3_u32 v16, v24, v25, v28')
I('v_add_u32 v16, v16, v29')
I('v_mov_b32 v17, v16')
I(f'v_cndmask_b32 v20, v24, v28, {P(sM1)}')
I(f'v_cndmask_b32 v21, v25, v29, {P(sM1)}')
I('v_permlane16_swap_b32 v17, v16')
I('v_add_u32 v16, v16, v17')
I('v_mov_b32 v17, v16')
for tau in (1, 3):
    I(f'v_cvt_pk_bf16_f32 {v(24 + 2 * tau)}, {v(DK + 4 * tau)}, {v(DK + 4 * tau + 1)}')
I('v_permlane32_swap_b32 v17, v16')
for tau in (1, 3):
    I(f'v_cvt_pk_bf16_f32 {v(25 + 2 * tau)}, {v(DK + 4 * tau + 2)}, {v(DK + 4 * tau + 3)}')
I('v_add_u32 v16, v16, v17')
I(f'v_sub_u32 v16, {s(sM3)}, v16')
I(f'v_cndmask_b32 v22, v26, v30, {P(sM1)}')
I('v_lshrrev_b32 v17, v36, v16')
I('v_lshrrev_b32 v16, v37, v16')
I(f'v_cndmask_b32 v23, v27, v31, {P(sM1)}')
I(f'v_and_or_b32 v20, v17, {s(sM2)}, v20')
I(f'v_and_or_b32 v21, v16, {s(sM2)}, v21')
I('s_mov_b32 exec_lo, 0x00030003')
I('s_mov_b32 exec_hi, 0x00030003')
I(f'global_store_dwordx4 v12, v[20:23], {P(pWS)} sc1')
TS(4)
I('s_setprio 0')
flag_add(F_H2)
I('s_waitcnt vmcnt(0)')
flag_add(F_H2)
a.label('L_PV1')
tr_addr()
pv_setup()
for i in range(args.pre):
    tr_slot(i)
I('s_branch L_PVs')

a.label('L_F3')
HFG, B1R = 24, 28
W1T = lambda k: 56 + 4 * k if k < 6 else 8 if k == 6 else 4
I('s_waitcnt lgkmcnt(0)')
load_epoch()
I('s_barrier')
epoch_ready()


def ffn_w1(dst):
    I(f"""
    s_and_b32 {s(sT3)}, s2, 15
    s_mul_i32 {s(sT0)}, {s(sT3)}, {32 * 3584}
    s_lshr_b32 {s(sT1)}, s2, 4
    s_lshl_b32 {s(sT1)}, {s(sT1)}, 8
    s_add_u32 {s(sT0)}, {s(sT0)}, {s(sT1)}
    v_mul_u32_u24 v12, {8 * 3584}, v2
    v_lshl_add_u32 v12, v1, 4, v12
    v_add_u32 v12, {s(sT0)}, v12
    s_movk_i32 {s(sT2)}, {2 * 3584}
    """)
    for k in range(8):
        I(f'global_load_dwordx4 {v(dst(k), 4)}, v12, {P(pW1)} offset:{3584 * (k & 1)}{NT}')
        if k & 1 and k < 7:
            I(f'v_add_u32 v12, {s(sT2)}, v12')


def ffn_rest(dst, younger):
    global AT, SEL
    AT, SEL = 128, 136
    I(f"""
    s_and_b32 {s(sT3)}, s2, 15
    s_lshr_b32 {s(sT1)}, s2, 4
    s_lshl_b32 {s(sT1)}, {s(sT1)}, 8
    s_lshl_b32 {s(sT3)}, {s(sT3)}, 6
    s_add_u32 {s(sT0)}, {s(sT3)}, {L_XN}
    v_lshl_add_u32 v144, v2, 4, {s(sT0)}
    ds_read_b128 {v(XP, 4)}, v144
    s_lshl_b32 {s(sT0)}, {s(sT1)}, 6
    s_add_u32 {s(sT0)}, {s(sT0)}, {s(sT3)}
    s_lshl_b32 {s(sT0)}, {s(sT0)}, 1
    s_add_u32 {s(sT0)}, {s(sT0)}, {W_HF}
    v_lshrrev_b32 v145, 2, v0
    v_lshlrev_b32 v146, 11, v145
    v_and_b32 v147, 3, v0
    v_lshl_add_u32 v146, v147, 4, v146
    v_add_u32 v146, {s(sT0)}, v146
    v_cmp_gt_u32 {P(sM1)}, v0, 31
    s_and_b32 {s(sT0)}, s2, 3
    s_lshl_b32 {s(sT0)}, {s(sT0)}, 6
    s_add_u32 {s(sT0)}, {s(sT0)}, {s(sT1)}
    s_bfe_u32 {s(sT1)}, s2, 0x10002
    s_lshl3_add_u32 {s(sT0)}, {s(sT1)}, {s(sT0)}
    s_bfe_u32 {s(sT1)}, s2, 0x10003
    s_lshl2_add_u32 {s(sT0)}, {s(sT1)}, {s(sT0)}
    v_lshl_add_u32 v148, v147, 4, {s(sT0)}
    s_lshl_b32 {s(sT0)}, s2, 11
    s_add_u32 {s(sT0)}, {s(sT0)}, {W_HF}
    v_lshlrev_b32 v147, 4, v147
    v_lshl_add_u32 v147, v145, 7, v147
    v_add_u32 v147, {s(sT0)}, v147
    v_lshlrev_b32 v149, 3, v0
    v_add_u32 v149, {L_FF}, v149
    s_mov_b32 {s(sT3)}, 0xffff0000
    """)
    build_sel(150)
    I('s_waitcnt lgkmcnt(0)')
    diag_stage(8, dst, younger)
    I(f'v_cndmask_b32 {v(REC)}, {v(ACC0)}, {v(ACC0 + 2)}, {P(sM1)}')
    I(f'v_cndmask_b32 {v(REC + 1)}, {v(ACC0 + 1)}, {v(ACC0 + 3)}, {P(sM1)}')
    I(f'global_store_dwordx4 v146, {v(REC, 4)}, {P(pWS)} sc1')
    I(f'global_load_dword {v(B1R)}, v148, {P(pB1)}')
    TS(2)
    I(f's_mov_b32 {s(sCNT)}, {args.spin}')
    if args.ffn:
        I('s_waitcnt vmcnt(2)')
        flag_add(C_ACK)
        I('s_waitcnt vmcnt(0)')
    else:
        flag_wait(F_H2, 2)
    a.label('L_TF')
    I(f'global_load_dwordx4 {v(HFG, 4)}, v147, {P(pWS)} sc1')
    I(f's_sub_u32 {s(sCNT)}, {s(sCNT)}, 1')
    I('s_waitcnt vmcnt(0)')
    I(f'v_cmp_ne_u32 vcc, {v(HFG + 2)}, {v(REC + 2)}')
    a.B('s_cbranch_scc1 L_TF_go')
    a.B('s_cbranch_vccnz L_TF')
    a.label('L_TF_go')
    TSN()
    row_allreduce('v_add_f32', [HFG, HFG + 1], steps=(4, 8))
    I(f'''
    v_permlane32_swap_b32 {v(HFG)}, {v(HFG + 1)}
    v_add_f32 {v(HFG)}, {v(HFG)}, {v(HFG + 1)}
    v_mov_b32 {v(HFG + 1)}, {v(HFG)}
    v_permlane16_swap_b32 {v(HFG)}, {v(HFG + 1)}
    v_lshlrev_b32 v16, 16, {v(B1R)}
    v_add_f32 {v(HFG)}, {v(HFG)}, {v(HFG + 1)}
    v_and_b32 v17, {s(sT3)}, {v(B1R)}
    v_cvt_pk_bf16_f32 {v(HFG)}, {v(HFG)}, {v(HFG)}
    v_cndmask_b32 v16, v16, v17, {P(sM1)}
    v_and_b32 {v(HFG)}, {s(sT3)}, {v(HFG)}
    v_add_f32 {v(HFG)}, {v(HFG)}, v16
    v_cvt_pk_bf16_f32 {v(HFG)}, {v(HFG)}, {v(HFG)}
    v_and_b32 {v(HFG)}, {s(sT3)}, {v(HFG)}
    v_max_f32 {v(HFG)}, 0, {v(HFG)}
    v_mul_f32 {v(HFG)}, {v(HFG)}, {v(HFG)}
    v_cvt_pk_bf16_f32 {v(HFG)}, {v(HFG)}, {v(HFG)}
    v_mov_b32 {v(HFG + 1)}, {v(HFG)}
    v_permlane32_swap_b32 {v(HFG)}, {v(HFG + 1)}
    ''')
    for g_ in range(4):
        for i in range(2):
            I(f'v_mov_b32 {v(HFG + 2 + i)}, {v(HFG + i)} row_newbcast:{g_} row_mask:{1 << g_}')
    I(f'ds_write_b64 v149, {v(HFG + 2, 2)}')
    TS(4)


if not args.ffn:
    I('s_cmp_ge_u32 s2, 224')
    I('s_cbranch_scc1 L_PV1')
    flag_wait(F_F0, 1)
    ffn_w1(W1T)
    ffn_rest(W1T, 0)
I('s_branch L_PV1')

a.label('L_F2')
I(f'''
v_mov_b32 v16, 0
v_mov_b32 v17, 0
v_mov_b32 v18, 0
v_mov_b32 v19, 0
ds_write_b128 {v(VFL)}, v[16:19]
ds_write_b128 {v(VFL)}, v[16:19] offset:16
ds_write_b128 {v(VFL)}, v[16:19] offset:32
ds_write_b128 {v(VFL)}, v[16:19] offset:48
v_lshlrev_b32 v20, 2, v1
v_add_u32 v20, {L_MA}, v20
v_mov_b32 v21, 0xff800000
ds_write_b32 v20, v21
''')
I('v_and_b32 v5, 3, v0')
I('v_lshlrev_b32 v5, 21, v5')
I('s_waitcnt lgkmcnt(0)')
load_epoch()
if args.touch != 2:
    I('s_barrier')
I('s_mov_b64 exec, 7')
I(f'global_load_dword v22, v5, {P(pWS)} offset:256')
I('s_mov_b64 exec, 3')
if args.touch:
    I(f'global_load_dword v24, v5, {P(pWUV)}')
    I(f'global_load_dword v25, v5, {P(pWO)}')
I('s_mov_b64 exec, 1')
I(f'global_load_dword v23, v16, {P(pOUT)}')
if args.touch:
    for k, p in enumerate((pW1, pW2, pB1, pB2)):
        I(f'global_load_dword {v(26 + k)}, v16, {P(p)}')
I('s_mov_b64 exec, -1')
if args.touch == 2:
    I('s_barrier')
epoch_ready()
if args.warm & 2:
    flag_wait(F_F0, 1)
    I('s_mov_b64 exec, 0')
    I('s_branch L_PVC')
    a.label('L_PVC_back')
    I('s_mov_b64 exec, -1')


a.label('L_QG')
G2, LA = 64, 56
I(f'''
s_lshr_b32 {s(sT1)}, {s(sWV)}, 1
s_lshl1_add_u32 {s(sT0)}, {s(sGA)}, {s(sT1)}
s_lshl_b32 {s(sT0)}, {s(sT0)}, 13
s_add_u32 {s(sT0)}, {s(sT0)}, {W_H2}
v_add_u32 v8, {s(sT0)}, v3
v_add_u32 v9, 0x1000, v8
v_and_b32 v10, 7, v0
v_add_u32 v11, 8, v10
v_lshlrev_b32 v6, 4, v10
v_lshl_add_u32 v6, v0, 8, v6
s_lshl_b32 {s(sT1)}, {s(sT1)}, 7
s_add_u32 {s(sT1)}, {s(sT1)}, {L_QA}
v_add_u32 {v(LA)}, {s(sT1)}, v6
s_mul_i32 {s(sM3)}, {s(sEP)}, {(HASH * 8) & 0xffffffff}
''')
for hd in range(1, 8):
    I(f'v_xor_b32 {v(LA + hd)}, {16 * hd}, {v(LA)}')
tr_addr()
pv_setup()
I('s_setprio 1')
if args.qa:
    flag_wait(C_ISS, 4)
flag_wait(F_H2, 1 + args.h2)
assert not args.hint2
if args.hint2:
    I(f's_cmp_eq_u32 {s(sWV)}, 0')
    I('s_cbranch_scc1 L_QG_w0')
    I(f's_xor_b32 {s(sT0)}, {s(sY)}, 16')
    I(f's_lshl_b32 {s(sT0)}, {s(sT0)}, 11')
    I(f's_add_u32 {s(sT0)}, {s(sT0)}, {W_H2}')
    I(f's_add_u32 {s(sB)}, {s(pWS)}, {s(sT0)}')
    I(f's_addc_u32 {s(sB + 1)}, {s(pWS + 1)}, 0')
    scalar_poll([k * 256 + 252 for k in range(8)])
    flag_add(F_HINT)
    I('s_branch L_QG_hd')
    a.label('L_QG_w0')
    flag_wait(F_HINT, 1)
    a.label('L_QG_hd')
TS(10)


def qa_loads():
    for k in range(8):
        I(f'global_load_dwordx4 {v(G2 + 4 * k, 4)}, {v(8 + (k >> 2))}, {P(pWS)} offset:{(k & 3) * 1024} sc1')


qa_loads()
for i in range(args.pre):
    tr_slot(i)
I(f's_mov_b32 {s(sCNT)}, {args.spin}')
a.label('L_QG_chk')
for k in range(8):
    d0, d1 = v(G2 + 4 * k), v(G2 + 4 * k + 1)
    I(f's_waitcnt vmcnt({7 - k})')
    I(f'v_and_b32 v6, {s(sK1)}, {d0}')
    I(f'v_and_b32 v7, {s(sK1)}, {d1}')
    I(f'v_xor_b32 {d0}, v6, {d0}')
    I(f'v_xor_b32 {d1}, v7, {d1}')
    I(f'ds_write_b128 {v(LA + k)}, {v(G2 + 4 * k, 4)}')
    I(f'v_lshl_add_u32 v24, v6, v10, {"0" if k == 0 else "v24"}')
    I('v_lshl_add_u32 v24, v7, v11, v24')
    I(f'v_add3_u32 v24, {d0}, {d1}, v24')
for st in OCT:
    I(f'v_add_u32 v24, v24, v24 {st}')
I(f's_sub_u32 {s(sCNT)}, {s(sCNT)}, 1')
I(f'v_cmp_ne_u32 vcc, {s(sM3)}, v24')
a.B('s_cbranch_scc1 L_QG_go')
a.B('s_cbranch_vccz L_QG_go')
I('s_waitcnt lgkmcnt(0)')
I('s_mov_b64 exec, vcc')
qa_loads()
I('s_branch L_QG_chk')
a.label('L_QG_go')
flag_add(C_QA)
I('s_setprio 0')
TS(11)
TSN()
a.label('L_PVs')
for i in range(args.pre, 4):
    tr_slot(i)

a.label('L_PV')
if args.ffn:
    I(f's_cmp_eq_u32 {s(sWV)}, 3')
    I(f's_cselect_b32 {s(sR)}, s2, 224')
    I(f's_cmp_ge_u32 {s(sR)}, 224')
    I('s_cbranch_scc1 L_PV_now1')
    ffn_w1(W1T)
    a.label('L_PV_now1')
if not args.bm3:
    TS(6)
    I('s_barrier')
if args.pp:
    I(f's_setprio {args.pp}')
I('s_barrier')
a.label('L_PVC')
for u in range(4):
    I(f'ds_read_b128 {v(PF + 4 * u, 4)}, {v(48 + u)}')
LW, MW = 32, 36
I(f'ds_read_b128 {v(LW, 4)}, v43')
I(f'ds_read_b128 {v(MW, 4)}, v42')
TS(7)
O = 16
cvt = lambda k: [f'v_cvt_pk_bf16_f32 {v(O + 4 * r + k)}, {v(ACC + 8 * k + r)}, {v(ACC + 8 * k + 4 + r)}' for r in range(4)]
R4 = range(4)
fill = {}


def place(first, ops):
    for i, t_ in enumerate(ops):
        fill.setdefault(first + i // 2, []).append(t_)


w0 = [f'v_add_f32 {v(LW + r)}, {v(LW + r)}, {v(LW + r)} row_ror:{st}' for st in (8, 4, 2, 1) for r in R4]
w0[0] = 's_waitcnt lgkmcnt(0)\n' + w0[0]
w1 = [f'v_cvt_f16_f32 {v(LW + r)}, {v(LW + r)}' for r in R4]
w1 += [f'v_and_or_b32 {v(LW + r)}, {v(LW + r)}, {s(sT0)}, {v(MW + r)}' for r in R4]
w1 += [f'v_lshrrev_b32 {v(LW + r)}, v1, {v(LW + r)}' for r in R4]
w2 = cvt(0) + [f'v_and_b32 {v(O + 4 * r)}, {s(sK2)}, {v(O + 4 * r)}' for r in R4]
w3 = cvt(1) + [f'v_bfi_b32 {v(O + 4 * r + 1)}, {s(sK1)}, {v(LW + r)}, {v(O + 4 * r + 1)}' for r in R4]
w3 += [f'v_add_u32 {v(CK + r)}, {v(O + 4 * r)}, {v(O + 4 * r + 1)}' for r in R4]
w3 += [f'v_add_u32 {v(CK + r)}, {v(CK + r)}, {v(CK + r)} row_ror:{st}' for st in (8, 4, 2, 1) for r in R4]
allw = w0 + w2 + w1 + w3
place(2, allw[:60])
I(f's_mov_b32 {s(sT0)}, 0xffff')
i = 0
for k in range(4):
    for u in range(4):
        for T in (2 * k, 2 * k + 1):
            if k == 0 and T == 0 and u < 2:
                I(f's_waitcnt lgkmcnt({5 - u})')
            I(f'{MFMA} {v(ACC + 4 * T, 4)}, {v(PF + 4 * u, 4)}, {v(BF + (u * 8 + T) * 4, 4)}, {"0" if u == 0 else v(ACC + 4 * T, 4)}')
            for t_ in fill.get(i, []):
                I(t_)
            i += 1
for t_ in allw[60:] + cvt(2):
    I(t_)
for r in range(4):
    I(f'v_sub_u32 {v(CK + r)}, {s(sK0)}, {v(CK + r)}')
    I(cvt(3)[r])
    I(f'v_lshrrev_b32 {v(CK + r)}, v1, {v(CK + r)}')
    I(f'v_and_or_b32 {v(O + 4 * r)}, {v(CK + r)}, {s(sK1)}, {v(O + 4 * r)}')
    if args.warm & 2 and r == 0:
        a.B('s_cbranch_execz L_PVC_back')
    I(f'global_store_dwordx4 {v(52 + r)}, {v(O + 4 * r, 4)}, {P(pWS)} {args.sf.replace("+", " ")}')
flag_add(C_ST)
TS(8)
if args.ffn:
    I('s_setprio 0')
    I(f's_cmp_ge_u32 {s(sR)}, 224')
    I('s_cbranch_scc1 L_PV_noffn')
    ffn_rest(W1T, 4)
    I('s_branch L_PV_end')
    a.label('L_PV_noffn')
I('s_waitcnt vmcnt(0)')
flag_add(C_ACK)
TS(9)
a.label('L_PV_end')
I('s_waitcnt lgkmcnt(0)')
ts_dump()
I('s_endpgm')

a.label('L_S')
AF, QB, WUV, SA, MK, WO0, QAD = 128, 96, 48, 40, 36, 64, 80
WOR, PL, AW, AT2 = 128, 176, 208, 240
XR2, B2R, OA, W2T, HH = 46, 47, 104, 88, 124
sQ, sDL = sK1, sK2
WOq = lambda q: WO0 + 4 * q if q < 4 else WOR + 4 * (q - 4)
KS = {0: 12, 1: 16, 2: 19}[args.kmap]
if args.kmap == 0:
    I(f's_lshl_b32 {s(sT0)}, {s(sS)}, 17')
elif args.kmap == 1:
    I(f's_and_b32 {s(sT0)}, {s(sS)}, 15')
    I(f's_lshl_b32 {s(sT0)}, {s(sT0)}, 12')
    I(f's_lshl_b32 {s(sT1)}, {s(sX)}, 21')
    I(f's_add_u32 {s(sT0)}, {s(sT0)}, {s(sT1)}')
else:
    I(f's_lshl_b32 {s(sT0)}, {s(sS)}, 12')
I(f"""
s_lshl_b32 {s(sT1)}, {s(sW)}, {KS + 3}
s_add_u32 {s(sT0)}, {s(sT0)}, {s(sT1)}
s_lshl_b32 {s(sT1)}, {s(sW)}, 8
s_add_u32 {s(sT0)}, {s(sT0)}, {s(sT1)}
v_lshlrev_b32 v4, 1, v2
v_xor_b32 v4, v4, v1
v_lshlrev_b32 v4, 4, v4
v_lshl_add_u32 v4, v2, 10, v4
v_add_u32 v4, {s(sT0)}, v4
v_xor_b32 v26, 0x80, v4
v_add_u32 v26, {1 << KS}, v26
s_mul_i32 {s(sT1)}, {s(sW)}, {32768 + 8192}
s_mov_b32 m0, {s(sT1)}
s_mov_b32 {s(sT2)}, {2 << KS}
s_mov_b32 {s(sQ)}, {s(sW)}
s_lshr_b32 {s(sHT)}, {s(sY)}, 3
s_lshl2_add_u32 {s(sHT)}, {s(sX)}, {s(sHT)}
s_and_b32 {s(sCI)}, {s(sY)}, 3
s_bfe_u32 {s(sDI)}, {s(sY)}, 0x10002
v_and_b32 v5, 7, v1
v_lshlrev_b32 v5, 1, v5
v_xor_b32 v5, v5, v2
v_lshlrev_b32 v5, 4, v5
v_lshl_add_u32 v5, v1, 8, v5
s_lshl_b32 {s(sT1)}, {s(sW)}, 13
v_add_u32 v5, {s(sT1)}, v5
v_lshl_add_u32 v27, {s(sW)}, 2, {v(VFL)}
""")
I(f"""
s_lshr_b32 {s(sT0)}, {s(sW)}, 1
s_lshl1_add_u32 {s(sT0)}, {s(sCI)}, {s(sT0)}
s_lshl_b32 {s(sT0)}, {s(sT0)}, 19
s_and_b32 {s(sT3)}, {s(sW)}, 1
s_lshl_b32 {s(sT3)}, {s(sT3)}, 16
s_add_u32 {s(sT0)}, {s(sT0)}, {s(sT3)}
s_lshl1_add_u32 {s(sT3)}, {s(sHT)}, {s(sDI)}
s_lshl_b32 {s(sT1)}, {s(sT3)}, 7
s_add_u32 {s(sT0)}, {s(sT0)}, {s(sT1)}
v_lshrrev_b32 v8, 3, v0
v_lshlrev_b32 v8, 13, v8
v_and_b32 v9, 7, v0
v_lshl_add_u32 v8, v9, 4, v8
v_add_u32 v8, {s(sT0)}, v8
""")
I('s_waitcnt lgkmcnt(0)')
load_epoch()
I('s_barrier')
I(f"""
s_lshl_b32 {s(sT0)}, {s(sT3)}, 16
s_lshl_b32 {s(sT1)}, {s(sW)}, 8
s_add_u32 {s(sT0)}, {s(sT0)}, {s(sT1)}
v_lshlrev_b32 v34, 12, v2
v_lshl_add_u32 v34, v1, 4, v34
v_add_u32 v34, {s(sT0)}, v34
""")
for b in range(4):
    I(f's_add_u32 {s(sT0)}, {s(sCI)}, {b}')
    I(f's_and_b32 {s(sT0)}, {s(sT0)}, 3')
    I(f's_lshl_b32 {s(sT0)}, {s(sT0)}, 14')
    I(f'v_add_u32 {v(28 + b)}, {s(sT0)}, v34')
build_masks(MK, 9, 10)
TS(1)


def s_setup():
    I(f"""
    v_lshlrev_b32 v10, 4, v1
    v_add_u32 v10, {L_MX}, v10
    s_lshl_b32 {s(sT0)}, {s(sW)}, 2
    v_add_u32 v9, {s(sT0)}, v10
    s_lshl_b32 {s(sT0)}, {s(sW)}, 10
    s_add_u32 {s(sT0)}, {s(sT0)}, {L_P}
    v_add_u32 v11, {s(sT0)}, v3
    v_lshlrev_b32 v33, 2, v1
    v_add_u32 v33, {L_MF}, v33
    s_lshl_b32 {s(sT0)}, {s(sW)}, 8
    s_add_u32 {s(sT0)}, {s(sT0)}, {L_LS}
    v_lshl_add_u32 v32, v0, 2, {s(sT0)}
    v_xor_b32 v6, v1, v2
    v_lshlrev_b32 v6, 4, v6
    v_lshl_add_u32 v6, v2, 8, v6
    """)
    for i in range(4):
        I(f's_add_u32 {s(sT0)}, {s(sW)}, {i}')
        I(f's_and_b32 {s(sT0)}, {s(sT0)}, 3')
        I(f's_lshl_b32 {s(sT0)}, {s(sT0)}, 12')
        I(f's_add_u32 {s(sT0)}, {s(sT0)}, {L_QA}')
        I(f'v_add_u32 {v(QAD + 2 * i)}, {s(sT0)}, v6')
        I(f'v_xor_b32 {v(QAD + 2 * i + 1)}, 64, {v(QAD + 2 * i)}')
    I(f"""
    s_bfe_u32 {s(sT0)}, s2, 0x20004
    s_and_b32 {s(sT1)}, s2, 3
    s_lshl2_add_u32 {s(sT0)}, {s(sT0)}, {s(sT1)}
    s_lshl_b32 {s(sT0)}, {s(sT0)}, 6
    s_bfe_u32 {s(sT1)}, s2, 0x10002
    s_lshl3_add_u32 {s(sT0)}, {s(sT1)}, {s(sT0)}
    s_bfe_u32 {s(sT1)}, s2, 0x10003
    s_lshl2_add_u32 {s(sT0)}, {s(sT1)}, {s(sT0)}
    v_and_b32 v35, 3, v0
    v_lshl_add_u32 v12, v35, 4, {s(sT0)}
    s_mov_b32 {s(sK0)}, 0x20000
    s_lshr_b32 {s(sT1)}, s2, 6
    s_lshl_b32 {s(sT1)}, {s(sT1)}, 10
    s_add_u32 {s(sT0)}, {s(sT0)}, {s(sT1)}
    s_cmp_lt_u32 s2, 224
    s_cselect_b32 {s(sR)}, -1, 0
    s_cselect_b32 {s(sT1)}, 0, 512
    s_sub_u32 {s(sT0)}, {s(sT0)}, {s(sT1)}
    s_lshl1_add_u32 {s(sT0)}, {s(sT0)}, {s(sW)}
    s_lshl_b32 {s(sT0)}, {s(sT0)}, 8
    v_lshlrev_b32 v34, 13, v2
    v_lshl_add_u32 v34, v1, 4, v34
    v_add_u32 v34, {s(sT0)}, v34
    """)


def dma_row(r):
    k = r & 7
    va = 'v26' if k & 1 else 'v4'
    I(f'global_load_lds_dwordx4 {va}, {P(pCKV)}{NT}')
    if r < 30:
        if k == 5:
            I(f's_lshl_b32 {s(sDL)}, {s(sQ)}, 8')
            I(f's_add_u32 {s(sQ)}, {s(sQ)}, 1')
            I(f's_and_b32 {s(sQ)}, {s(sQ)}, 3')
            I(f's_lshl_b32 {s(sT0)}, {s(sQ)}, 8')
            I(f's_sub_u32 {s(sDL)}, {s(sT0)}, {s(sDL)}')
            I(f's_sub_u32 {s(sDL)}, {s(sDL)}, {6 << KS}')
        I(f'v_add_u32 {va}, {s(sDL if k >= 6 else sT2)}, {va}')
    if r < 31:
        if k == 7:
            I(f's_lshl2_add_u32 {s(sT0)}, {s(sQ)}, {s(sW)}')
            I(f's_lshl_b32 m0, {s(sT0)}, 13')
        else:
            I('s_add_u32 m0, m0, 0x400')
    if r == args.qa and r:
        flag_add(C_ISS)


def stage_addr(i):
    I(f's_add_u32 {s(sT1)}, {s(sW)}, {i}')
    I(f's_and_b32 {s(sT1)}, {s(sT1)}, 3')
    I(f's_lshl_b32 {s(sT1)}, {s(sT1)}, 15')
    I(f'v_add_u32 v16, {s(sT1)}, v5')
    for t in range(1, 4):
        I(f'v_xor_b32 {v(16 + t)}, {64 * t}, v16')


def stage_reads(i):
    for t in range(4):
        for tau in range(2):
            I(f'ds_read_b128 {v(AF + 32 * i + 8 * t + 4 * tau, 4)}, {v(16 + t)} offset:{4096 * tau}')


tail = []
for i in range(4):
    tail.append(f'global_load_dwordx4 {v(WO0 + 4 * i, 4)}, v28, {P(pWO)} offset:{1024 * i}{NT if args.nto else ""}')
for i in range(4):
    tail.append(f'global_load_dwordx4 {v(WUV + 4 * i, 4)}, v8, {P(pWUV)}{NT}' + (f'\nv_add_u32 v8, {s(sK0)}, v8' if i < 3 else ''))
for i in range(2):
    tail.append(f'global_load_dwordx4 {v(W2T + 4 * i, 4)}, v34, {P(pW2)} offset:{1024 * i}{NT}')
w2_loads = []
if args.ffn:
    w2_loads = tail[8:10]
    tail = tail[:8]
    args.ns = min(args.ns, 4) if args.ns == 6 else args.ns
wuv_loads = []
if args.wuv:
    assert args.tord == 1
    wuv_loads = tail[4:8]
    tail = tail[:4] + tail[8:]
elif args.tord == 1:
    tail = tail[:4] + tail[8:10] + tail[4:8]
if args.tord == 2:
    tail = tail[4:8] + tail[8:10] + tail[:4]
assert args.nt1 + args.ns + args.ne <= len(tail)

depth = lambda r: args.d1 if r < args.k1 else (args.d2 if r < args.k2 else args.d3)
for r in range(args.d1):
    dma_row(r)
s_setup()
I(f'global_load_dword v6, v12, {P(pX)}')
I(f'global_load_dword v7, v12, {P(pB2)}')
if args.warm & 1:
    I('s_mov_b64 exec, 0')
    I('s_branch L_SM_nb')
    a.label('L_SM_back')
    I('s_mov_b64 exec, -1')
I('s_mov_b64 vcc, -1')
stg = 0
for r in range(args.d1, 32):
    if args.tpos <= r < args.tpos + args.ne:
        I(tail.pop(0))
    if args.wuv == 2 and args.k1 <= r < args.k1 + 4:
        I(wuv_loads.pop(0))
    dma_row(r)
    d = depth(r)
    if args.dyn and r >= args.k1 and r < 31:
        lab = a.newlabel('L_dy')
        a.B(f's_cbranch_vccz {lab}')
        I(f'ds_read_b32 {v(VFT)}, {v(VFL)} offset:{4 * F_H2}')
        I(f's_waitcnt vmcnt({args.dyn}) lgkmcnt(0)')
        I(f'v_cmp_eq_u32 vcc, 0, {v(VFT)}')
        a.label(lab)
    if r + 1 > d and r < 31:
        I(f's_waitcnt vmcnt({d})')
        if r + 1 - d >= 8 * (stg + 1):
            flag_add(K0, 27)
            stage_addr(stg)
            stage_reads(stg)
            stg += 1
TS(2)
while stg < (3 if args.p2 < 0 else 2):
    stage_addr(stg)
    I(f's_waitcnt vmcnt({24 - 8 * stg})')
    flag_add(K0, 27)
    stage_reads(stg)
    stg += 1
for _ in range(args.nt1):
    I(tail.pop(0))
if args.qa == 32:
    flag_add(C_ISS)
stage_addr(3 if args.p2 < 0 else 2)
assert args.p2 < 0 or (stg == 2 and args.p2 <= 8 and args.p2 <= args.last)
epoch_ready()
I('s_setprio 2')
flag_wait(C_QA, 2)
TS(4)
LOOK = 4


def qa_read(t):
    I(f'ds_read_b128 {v(QB + 4 * (t & 7), 4)}, {v(QAD + 2 * (t >> 2) + (t & 1))} offset:{1024 * (t & 3)}')


def wo_rest():
    for q in range(4, 16):
        I(f'global_load_dwordx4 {v(WOq(q), 4)}, {v(28 + (q >> 2))}, {P(pWO)} offset:{1024 * (q & 3)}{NTS}')


def s_mfma(t):
    for tau in range(2):
        I(f'{MFMA} {v(SA + 4 * tau, 4)}, {v(AF + 8 * t + 4 * tau, 4)}, {v(QB + 4 * (t & 7), 4)}, {"0" if t == 0 else v(SA + 4 * tau, 4)}')


ldsq = []


def pickup(i):
    I(f's_waitcnt vmcnt({8 * (3 - i) + args.nt1})')
    stage_reads(i)
    ldsq.extend([('A', 4 * i + t) for t in range(4) for _ in range(2)])
    if i < 3 or not args.bm3:
        flag_add(K0, 27)
        ldsq.append(('F', i))
    if i == 2:
        stage_addr(3)
    else:
        TS(3)


waited = -1
for t in range(LOOK):
    qa_read(t)
    ldsq.append(('Q', t))
for t in range(16):
    if t == args.p2:
        pickup(2)
    if t == args.last:
        pickup(3)
    if t + LOOK < 16:
        qa_read(t + LOOK)
        ldsq.append(('Q', t + LOOK))
    need_ = max(i for i, o in enumerate(ldsq) if o in (('Q', t), ('A', t)))
    if need_ > waited:
        younger = min(15, len(ldsq) - 1 - need_)
        I(f's_waitcnt lgkmcnt({younger})')
        waited = len(ldsq) - 1 - younger
    s_mfma(t)
    if t >= 12:
        for _ in range((args.ns + 3 - (t - 12)) // 4):
            if tail:
                I(tail.pop(0))
TS(5)
a.label('L_SM')
I(f'''
s_mov_b32 {s(sT3)}, 0xffff0000
s_mov_b32 {s(sT0)}, 0x3db504f3
s_mov_b32 {s(sT1)}, 0x3fb8aa3b
v_max3_f32 v24, {v(SA)}, {v(SA + 1)}, {v(SA + 2)}
v_max3_f32 v25, {v(SA + 4)}, {v(SA + 5)}, {v(SA + 6)}
v_max3_f32 v24, v24, {v(SA + 3)}, {v(SA + 7)}
v_max_f32 v24, v24, v25
''')
if args.dsmax:
    I(f'ds_max_f32 v33, v24 offset:{L_MA - L_MF}')
else:
    cross_rows_allreduce('v_max_f32', 24, 25)
    I('ds_write_b32 v9, v24')
if args.mimic:
    round_pairs(SA, 8, 16)
I('s_waitcnt lgkmcnt(0)')
I('s_barrier')
a.label('L_SM_nb')
I(f'ds_read_b32 v24, v33 offset:{L_MA - L_MF}' if args.dsmax else 'ds_read_b128 v[20:23], v10')
for i in range(8):
    I(f'v_mul_f32 {v(SA + i)}, {s(sT0)}, {v(SA + i)}')
if args.mimic:
    round_pairs(SA, 8, 16)
I('s_waitcnt lgkmcnt(0)')
if not args.dsmax:
    I('v_max3_f32 v24, v20, v21, v22')
    I('v_max_f32 v24, v24, v23')
if args.mimic:
    I('v_cvt_pk_bf16_f32 v24, v24, v24')
    I(f'v_and_b32 v24, {s(sT3)}, v24')
I(f'v_mul_f32 v24, {s(sT0)}, v24')
assert args.mimic
I('v_cvt_pk_bf16_f32 v24, v24, v24')
I(f'v_and_b32 v25, {s(sT3)}, v24')
I(f'v_mul_f32 v24, {s(sT1)}, v25')
I('ds_write_b32 v33, v25')
for i in range(8):
    I(f'v_fma_f32 {v(SA + i)}, {v(SA + i)}, {s(sT1)}, -v24')
for i in range(8):
    I(f'v_exp_f32 {v(SA + i)}, {v(SA + i)}')
for i in range(4):
    I(f'v_cvt_pk_bf16_f32 {v(16 + i)}, {v(SA + 2 * i)}, {v(SA + 2 * i + 1)}')
I('ds_write_b128 v11, v[16:19]')
I(f's_mov_b32 {s(sT0)}, 0x3f803f80')
I(f'v_dot2_f32_bf16 v25, v16, {s(sT0)}, 0')
for i in range(1, 4):
    I(f'v_dot2_f32_bf16 v25, {v(16 + i)}, {s(sT0)}, v25')
I('ds_write_b32 v32, v25')
if args.warm & 1:
    a.B('s_cbranch_execz L_SM_back')
I('s_waitcnt lgkmcnt(0)')
I('s_barrier')
I('s_setprio 0')
TS(6)
I(f'v_mov_b32 {v(XR2)}, v6')
I(f'v_mov_b32 {v(B2R)}, v7')
for _ in range(args.nb):
    if tail:
        I(tail.pop(0))
if args.wor == 1:
    wo_rest()
I(f'''
v_lshlrev_b32 v10, 3, v0
v_add_u32 v10, {L_FF}, v10
s_lshl2_add_u32 {s(sT0)}, {s(sHT)}, {s(sCI)}
s_lshl2_add_u32 {s(sT0)}, {s(sT0)}, {s(sW)}
s_lshl_b32 {s(sT0)}, {s(sT0)}, 13
s_add_u32 {s(sT0)}, {s(sT0)}, {W_H3}
v_lshlrev_b32 v4, 11, v2
v_lshl_add_u32 v4, v1, 4, v4
v_add_u32 v4, {s(sT0)}, v4
s_mul_i32 {s(sK1)}, {s(sEP)}, {(HASH * 8) & 0xffffffff}
s_mov_b32 {s(sK2)}, {EMB}
s_lshl_b32 {s(sT0)}, {s(sW)}, 2
s_add_u32 {s(sT0)}, {s(sT0)}, {L_MX}
v_mov_b32 v7, {s(sT0)}
v_mov_b32 v45, {L_MX}
s_lshl_b32 {s(sT0)}, {s(sW)}, 18
s_lshl_b32 {s(sT1)}, s2, {6 + args.h5}
s_add_u32 {s(sT0)}, {s(sT0)}, {s(sT1)}
s_add_u32 {s(sT0)}, {s(sT0)}, {W_H5}
v_lshrrev_b32 v44, {2 + args.h5}, v0
v_lshlrev_b32 v44, {14 + args.h5}, v44
v_and_b32 v16, {7 if args.h5 else 3}, v0
v_lshl_add_u32 v44, v16, 4, v44
v_add_u32 v44, {s(sT0)}, v44
v_and_b32 v16, 1, v2
v_lshrrev_b32 v17, 1, v2
s_lshl_b32 {s(sT0)}, {s(sW)}, 9
s_add_u32 {s(sT1)}, {s(sT0)}, {L_CL}
v_add_u32 v40, {s(sT1)}, v3
s_add_u32 {s(sT1)}, {s(sT0)}, {L_CX}
v_and_b32 v42, 7, v0
v_lshlrev_b32 v42, 5, v42
v_lshl_add_u32 v42, v16, 4, v42
v_lshl_add_u32 v42, v17, 8, v42
v_add_u32 v42, {s(sT1)}, v42
s_lshl_b32 {s(sT0)}, {s(sW)}, 7
s_add_u32 {s(sT0)}, {s(sT0)}, {L_CL}
v_lshrrev_b32 v41, 3, v0
v_lshl_add_u32 v41, v41, 4, {s(sT0)}
v_lshl_add_u32 v41, v35, 2, v41
v_bfe_u32 v9, v0, 2, 1
v_lshl_add_u32 v41, v9, 10, v41
v_lshl_add_u32 v9, v9, 3, v45
v_lshrrev_b32 v43, 2, v1
v_add_u32 v43, {s(sCI)}, v43
v_and_b32 v43, 3, v43
v_lshlrev_b32 v43, 4, v43
v_lshl_add_u32 v43, v2, 2, v43
v_add_u32 v43, v43, v35
v_lshlrev_b32 v43, 2, v43
v_add_u32 v43, {L_CX}, v43
v_mov_b32 v33, {s(sEP)}
v_cmp_gt_u32 {P(sM1)}, v0, 31
v_and_b32 v16, 1, v0
v_cmp_eq_u32 {P(sM2)}, 1, v16
''')
if args.pfu:
    I(f'''
    s_lshl2_add_u32 {s(sT0)}, {s(sCI)}, {s(sW)}
    s_lshl_b32 {s(sT0)}, {s(sT0)}, 18
    s_xor_b32 {s(sT1)}, {s(sDI)}, 1
    s_lshl1_add_u32 {s(sT1)}, {s(sHT)}, {s(sT1)}
    s_lshl_b32 {s(sT1)}, {s(sT1)}, 7
    s_add_u32 {s(sT0)}, {s(sT0)}, {s(sT1)}
    v_lshl_add_u32 v11, v0, 13, {s(sT0)}
    ''')
    pf = f's_mov_b32 exec_hi, 0\nglobal_load_dword v126, v11, {P(pWUV)}{NT}\ns_mov_b64 exec, -1'
    tail = tail + [pf] if args.pfu == 1 else [pf] + tail
if tail or args.wor == 2:
    flag_wait(C_ST, 4)
while tail:
    I(tail.pop(0))
if args.wor == 2:
    wo_rest()
flag_wait(C_ACK if args.ew else C_ST, 4)
for q in range(4, 4 + args.wpre):
    I(f'global_load_dwordx4 {v(WOq(q), 4)}, {v(28 + (q >> 2))}, {P(pWO)} offset:{1024 * (q & 3)}{NTS}')
if args.dly:
    I(f's_sleep {args.dly}')
if args.gv:
    I(f's_waitcnt vmcnt({args.gv - 1})')
TS(8)
U = 96
nwo = 0


def gather(first):
    global nwo
    for q in range(8):
        I(f'global_load_dwordx4 {v(PL + 4 * q, 4)}, v4, {P(pWS)} offset:{q * 256} {args.lf.replace("+", " ")} ')
    n2 = len(w2_loads) if first else 0
    if first:
        for t_ in w2_loads:
            I(t_)
    n_ = 0
    for q in range(8):
        d0, d1 = v(PL + 4 * q), v(PL + 4 * q + 1)
        I(f's_waitcnt vmcnt({7 - q + n_ + n2})')
        if first and args.wor == 3:
            for _ in range(2 if q < 4 else 1):
                qq = 4 + n_ + args.wpre
                if qq > 15:
                    continue
                I(f'global_load_dwordx4 {v(WOq(qq), 4)}, {v(28 + (qq >> 2))}, {P(pWO)} offset:{1024 * (qq & 3)}{NTS}')
                n_ += 1
        I(f'v_and_b32 v19, {s(sK2)}, {d0}')
        I(f'v_and_b32 {v(U + q)}, {s(sK2)}, {d1}')
        I(f'v_xor_b32 {d0}, v19, {d0}')
        I(f'v_lshl_add_u32 v19, v19, v1, {d1}')
        I(f'v_xor_b32 {d1}, {v(U + q)}, {d1}')
        I(f'v_lshlrev_b32 {v(U + q)}, v1, {v(U + q)}')
        I(f'v_add3_u32 v32, {d0}, v19, {"0" if q == 0 else "v32"}')
    if first:
        nwo = n_


gather(True)
I(f's_mov_b32 {s(sCNT)}, {args.spin}')
a.label('L_T3_chk')
for k in range(4):
    I(f'v_or_b32 {v(20 + k)}, {v(U + k)}, {v(U + k)} row_ror:8 bank_mask:0x3')
I('v_add_u32 v32, v32, v32 row_ror:8')
for k in range(4):
    I(f'v_or_b32 {v(20 + k)}, {v(U + 4 + k)}, {v(U + 4 + k)} row_ror:8 bank_mask:0xc')
I('v_add_u32 v32, v32, v32 row_ror:4')
for k in range(2):
    I(f'v_or_b32 {v(24 + k)}, {v(20 + k)}, {v(20 + k)} row_shl:4 bank_mask:0x5')
for k in range(2):
    I(f'v_or_b32 {v(24 + k)}, {v(22 + k)}, {v(22 + k)} row_shr:4 bank_mask:0xa')
I('v_add_u32 v32, v32, v32 row_ror:2')
for k in range(2):
    I(f'v_or_b32 {v(24 + k)}, {v(24 + k)}, {v(24 + k)} quad_perm:[1,0,3,2]')
I('v_add_u32 v32, v32, v32 row_ror:1')
for k in range(2):
    I(f'v_or_b32 {v(24 + k)}, {v(24 + k)}, {v(24 + k)} quad_perm:[2,3,0,1]')
I(f'v_cmp_ne_u32 vcc, {s(sK1)}, v32')
I(f's_sub_u32 {s(sCNT)}, {s(sCNT)}, 1')
I(f'v_cndmask_b32 v5, v24, v25, {P(sM2)}')
a.B('s_cbranch_vccz L_T3_go')
a.B('s_cbranch_scc1 L_T3_go')
I('s_mov_b64 exec, vcc')
gather(False)
I('s_branch L_T3_chk')
a.label('L_T3_go')
I('s_mov_b64 exec, -1')
TS(7)
I(f's_mov_b32 {s(sT1)}, 0x3fb8aa3b')
I(f'v_and_b32 v6, {s(sT3)}, v5')
I('v_cvt_f32_f16 v21, v5')
I(f'v_mul_f32 v6, {s(sT1)}, v6')
I('v_mul_f32 v21, 0.5, v21')
I('v_max_f32 v18, v6, v6 row_ror:8')
row_allreduce('v_max_f32', [18], steps=(4, 1))
cross_rows_allreduce('v_max_f32', 18, 19)
I('''
v_sub_f32 v17, v6, v18
v_exp_f32 v17, v17
v_cvt_pk_bf16_f32 v16, v17, v17
v_mul_f32 v17, v17, v21
''')
TS(1)
red = [f'v_add_f32 v17, v17, v17 row_ror:{st}' for st in (8, 4, 2, 1)]
red += ['v_mov_b32 v19, v17', 'v_permlane16_swap_b32 v19, v17\nv_add_f32 v17, v17, v19\nv_mov_b32 v19, v17',
        'v_permlane32_swap_b32 v19, v17\nv_add_f32 v17, v17, v19', 'ds_write2_b32 v7, v18, v17 offset0:0 offset1:4']
QL = lambda q: 8 * (q >> 2) + 4 * ((q >> 1) & 1) + (q & 1)


def w_and(q):
    for r in range(4):
        I(f'v_and_b32 {v(AW + 4 * (q & 1) + r)}, v16, {v(MK + r)} row_newbcast:{QL(q)}')


w_and(0)
for q in range(8):
    if q < 7:
        w_and(q + 1)
    I(f'{MFMA} v[24:27], {v(AW + 4 * (q & 1), 4)}, {v(PL + 4 * q, 4)}, {"0" if q == 0 else "v[24:27]"}')
    if q < 4:
        I(red[q])
for t_ in red[4:]:
    I(t_)
I('s_mov_b32 exec_hi, 0')
I('ds_write_b128 v40, v[24:27]')
I('s_mov_b64 exec, -1')
I('s_waitcnt lgkmcnt(0)')
TS(9)
TSN(0)
I('s_barrier')
I('ds_read_b128 v[96:99], v45')
I('ds_read_b64 v[100:101], v9')
I('ds_read2st64_b32 v[108:109], v41 offset0:0 offset1:2')
I('ds_read_b64 v[102:103], v9 offset:16')
I(f'ds_read_b64 {v(HH, 2)}, v10')
I('''
s_waitcnt lgkmcnt(4)
v_max3_f32 v18, v96, v97, v98
v_max_f32 v18, v18, v99
s_waitcnt lgkmcnt(2)
v_sub_f32 v100, v100, v18
v_sub_f32 v101, v101, v18
v_exp_f32 v100, v100
v_exp_f32 v101, v101
v_mul_f32 v20, v100, v108
v_fmac_f32 v20, v101, v109
s_waitcnt lgkmcnt(0)
v_mul_f32 v18, v100, v102
v_add_f32 v21, v20, v20 row_shl:4 bank_mask:0x5
v_fmac_f32 v18, v101, v103
v_add_f32 v21, v20, v20 row_shr:4 bank_mask:0xa
v_cvt_pk_bf16_f32 v20, v21, v21
v_add_f32 v18, v18, v18 row_half_mirror
''')
QP = lambda i: f'quad_perm:[{i},{i},{i},{i}]'
for r in range(4):
    I(f'v_and_b32 {v(AW + r)}, v20, {v(MK + r)} {QP(0)}')
for i in range(4):
    if i < 3:
        for r in range(4):
            I(f'v_and_b32 {v(AW + 4 * (i + 1) + r)}, v20, {v(MK + r)} {QP(i + 1)}')
    else:
        I('v_rcp_f32 v18, v18')
    I(f'{MFMA} v[24:27], {v(AW + 4 * i, 4)}, {v(WUV + 4 * i, 4)}, {"0" if i == 0 else "v[24:27]"}')
for i in range(2):
    I(f'v_and_b32 {v(HH + i)}, {s(sR)}, {v(HH + i)}')
for r in range(4):
    I(f'v_and_b32 {v(AW + 16 + r)}, {v(HH)}, {v(MK + r)}')
I('s_mov_b32 exec_lo, 0x00ff00ff')
I('s_mov_b32 exec_hi, 0xff00ff00')
I('ds_write_b128 v42, v[24:27]')
I('s_mov_b64 exec, -1')
for r in range(4):
    I(f'v_and_b32 {v(AW + 20 + r)}, {v(HH + 1)}, {v(MK + r)}')
I('s_waitcnt lgkmcnt(0)')
I('s_barrier')
for k in range(4):
    I(f'ds_read2st64_b32 {v(108 + 2 * k, 2)}, v43 offset0:{2 * k} offset1:{2 * k + 1}')
TS(10)
I(f's_waitcnt vmcnt({nwo})')
for i in range(2):
    I(f'{MFMA} {v(OA, 4)}, {v(AW + 16 + 4 * i, 4)}, {v(W2T + 4 * i, 4)}, {"0" if i == 0 else v(OA, 4)}')
I('v_mov_b32 v22, v33')
I('v_mov_b32 v23, v33')
I('''
s_waitcnt lgkmcnt(2)
v_add_f32 v108, v108, v109
v_add_f32 v110, v110, v111
s_waitcnt lgkmcnt(0)
v_add_f32 v112, v112, v113
v_add_f32 v114, v114, v115
v_add_f32 v108, v108, v110
v_add_f32 v112, v112, v114
v_add_f32 v108, v108, v112
''')
I('v_mul_f32 v108, v108, v18')
I('v_cvt_pk_bf16_f32 v20, v108, v108')


def wo_and(q):
    for r in range(4):
        I(f'v_and_b32 {v(AT2 + 4 * (q & 1) + r)}, v20, {v(MK + r)} row_newbcast:{q}')


wo_and(0)
for q in range(16):
    if q < 15:
        wo_and(q + 1)
    if args.wor == 3 and q >= 4:
        I(f's_waitcnt vmcnt({15 - q})')
    I(f'{MFMA} {v(OA, 4)}, {v(AT2 + 4 * (q & 1), 4)}, {v(WOq(q), 4)}, {v(OA, 4)}')
TS(11)
I(f'v_cndmask_b32 v20, {v(OA)}, {v(OA + 2)}, {P(sM1)}')
I(f'v_cndmask_b32 v21, {v(OA + 1)}, {v(OA + 3)}, {P(sM1)}')
I(f'global_store_dwordx4 v44, v[20:23], {P(pWS)} sc1')
TS(12)
I('s_cmp_lt_u32 s2, 192')
I('s_cbranch_scc1 L_T_done')
I(f'''
s_bfe_u32 {s(sT0)}, s2, {0x50001 if args.h5 else 0x60000}
s_lshl2_add_u32 {s(sT0)}, {s(sT0)}, {s(sW)}
s_lshl_b32 {s(sT0)}, {s(sT0)}, {12 + args.h5}
s_and_b32 {s(sT1)}, s2, {args.h5}
s_lshl_b32 {s(sT1)}, {s(sT1)}, 6
s_add_u32 {s(sT0)}, {s(sT0)}, {s(sT1)}
s_add_u32 {s(sT0)}, {s(sT0)}, {W_H5}
v_lshrrev_b32 v4, 2, v0
v_lshlrev_b32 v4, {6 + args.h5}, v4
v_lshl_add_u32 v4, v35, 4, v4
v_add_u32 v4, {s(sT0)}, v4
v_add_u32 v5, {2048 << args.h5}, v4
v_lshrrev_b32 v6, 1, v2
v_lshl_add_u32 v8, v6, 2, v35
v_lshlrev_b32 v8, 5, v8
v_and_b32 v6, 1, v2
v_lshl_add_u32 v8, v6, 2, v8
s_lshl_b32 {s(sT0)}, {s(sW)}, 3
s_add_u32 {s(sT0)}, {s(sT0)}, {L_CL}
v_add_u32 v8, {s(sT0)}, v8
v_and_b32 v9, 7, v0
v_lshlrev_b32 v9, 5, v9
v_add_u32 v9, {L_CL}, v9
v_lshlrev_b32 v108, 16, {v(XR2)}
v_and_b32 v109, {s(sT3)}, {v(XR2)}
v_lshlrev_b32 v110, 16, {v(B2R)}
v_and_b32 v111, {s(sT3)}, {v(B2R)}
v_add_f32 v108, v108, v110
v_add_f32 v109, v109, v111
v_mov_b32 v108, v109 quad_perm:[0,1,2,3] bank_mask:0xa
s_mov_b32 {s(sCNT)}, {args.spin}
''')
if args.a5:
    I('s_waitcnt vmcnt(0)')
f5 = lambda k: f'global_load_dwordx4 {v(128 + 4 * k, 4)}, {v(4 + (k >> 1))}, {P(pWS)} offset:{(1024 << args.h5) * (k & 1)} sc1'
a.label('L_T5_retry')
for k in range(4):
    I(f5(k))
a.label('L_T5_chk')
I(f's_sub_u32 {s(sCNT)}, {s(sCNT)}, 1')
I('s_waitcnt vmcnt(2)')
I('v_xor_b32 v17, v130, v33')
I('v_add_f32 v20, v128, v132')
I('v_bitop3_b32 v17, v134, v33, v17 bitop3:0xbe')
I('v_add_f32 v21, v129, v133')
I('s_waitcnt vmcnt(0)')
I('v_bitop3_b32 v17, v138, v33, v17 bitop3:0xbe')
I('v_add_f32 v24, v136, v140')
I('v_bitop3_b32 v17, v142, v33, v17 bitop3:0xbe')
I('v_add_f32 v25, v137, v141')
I('v_cmp_ne_u32 vcc, 0, v17')
I('v_add_f32 v20, v20, v24')
I('v_add_f32 v21, v21, v25')
a.B('s_cbranch_scc1 L_T5_go')
if args.m5:
    a.B('s_cbranch_vccz L_T5_go')
    for k in range(4):
        lab = a.newlabel('L_r5')
        I(f'v_cmp_ne_u32 vcc, {v(130 + 4 * k)}, v33')
        I('s_nop 0')
        a.B(f's_cbranch_vccz {lab}')
        I('s_mov_b64 exec, vcc')
        I(f5(k))
        I('s_mov_b64 exec, -1')
        a.label(lab)
    I('s_waitcnt vmcnt(0)')
    I('s_branch L_T5_chk')
else:
    a.B('s_cbranch_vccnz L_T5_retry')
a.label('L_T5_go')
TS(13)
TSN(3)
I('''
v_permlane32_swap_b32 v20, v21
v_add_f32 v20, v20, v21
v_add_f32 v20, v20, v20 row_ror:4
v_add_f32 v20, v20, v20 row_ror:8
ds_write_b32 v8, v20
s_waitcnt lgkmcnt(0)
s_barrier
''')
I(f's_cmp_lg_u32 {s(sW)}, 0')
I('s_cbranch_scc1 L_T_done')
I('''
ds_read_b128 v[128:131], v9
ds_read_b128 v[132:135], v9 offset:16
s_waitcnt lgkmcnt(1)
v_add_f32 v128, v128, v129
v_add_f32 v130, v130, v131
v_add_f32 v108, v108, v128
v_add_f32 v108, v108, v130
s_waitcnt lgkmcnt(0)
v_add_f32 v132, v132, v133
v_add_f32 v134, v134, v135
v_add_f32 v108, v108, v132
v_add_f32 v108, v108, v134
''')
if args.pert:
    import struct
    kind, val = args.pert.split(',')
    bits = struct.unpack('<I', struct.pack('<f', float(val)))[0]
    if kind == 'm':
        I(f'v_mul_f32 v108, {bits}, v108')
    elif kind == 'a':
        I(f'v_add_f32 v108, {bits}, v108')
    else:
        I('s_cmp_lg_u32 s2, 200')
        I('s_cbranch_scc1 L_nop')
        I('s_mov_b64 exec, 1')
        I(f'v_add_f32 v108, {bits}, v108')
        I('s_mov_b64 exec, -1')
        a.label('L_nop')
        I('s_nop 1')
I('''
v_mov_b32 v109, v108 row_shl:4
v_cvt_pk_bf16_f32 v20, v108, v109
s_mov_b64 exec, 15
''')
I(f'global_store_dword v12, v20, {P(pOUT)} {args.of.replace("+", " ")}')
I('s_cmp_lg_u32 s2, 0xe0')
I('s_cbranch_scc1 L_T_done')
I(f'v_mov_b32 v22, {W_EP}')
I('s_mov_b64 exec, 1')
I(f'global_store_dword v22, v33, {P(pWS)} {args.ef}')
a.label('L_T_done')
TS(14)
ts_dump()
a.label('L_end')
I('s_endpgm')

a.raw('.section .rodata,"a"')
a.raw('.p2align 6')
a.raw(f'.amdhsa_kernel {NAME}_kernel')
a.raw('''  .amdhsa_next_free_vgpr 256
  .amdhsa_next_free_sgpr 102
  .amdhsa_accum_offset 256
  .amdhsa_group_segment_fixed_size 0
  .amdhsa_kernarg_size 112
  .amdhsa_user_sgpr_count 2
  .amdhsa_user_sgpr_kernarg_segment_ptr 1
  .amdhsa_system_sgpr_workgroup_id_x 1
.end_amdhsa_kernel''')
open(args.o, 'w').write(a.text())
```

```python
import sys, argparse, re
from asmlib import Asm, v, s

NAME = 'parallel_sum__compressed_kv_cla__dense_activation_squared_relu__decode'

ap = argparse.ArgumentParser()
A_ = lambda n, d, t=int: ap.add_argument('--' + n, type=t, default=d)
ap.add_argument('-o', default='out.s')
A_('ts', 0)
A_('nt', 1)
A_('d1', 2); A_('k1', 4); A_('d2', 10); A_('k2', 16); A_('d3', 10)
A_('swap', 0)
A_('qa', 18)
A_('h2', 1)
A_('h3', 1)
A_('nt1', 0)
A_('wor', 3)
A_('dyn', 3)
A_('own', 1)
A_('ns', 6)
A_('nb', 0)
A_('w1', 0)
A_('last', 12)
A_('h5', 1)
A_('np', 2)
A_('sl', 5)
A_('pre', 2)
A_('tord', 1)
A_('light', 1)
A_('pt', 0)
A_('dly', 0)
A_('dly5', 0)
A_('hint1', 0)
A_('hint2', 0)
A_('wuv', 0)
A_('ew', 1)
A_('bpos', 1)
A_('a5', 1)
A_('comb', 1)
A_('tpos', 32)
A_('ne', 0)
A_('gv', 2)
A_('pp', 3)
A_('bo', 0)
A_('clk', 0)
A_('wpre', 0)
A_('nts', 0)
A_('nto', 0)
A_('ntm', 0x3f, lambda x: int(x, 0))
A_('xc', 0)
A_('kmap', 0)
A_('p2', 8)
A_('ffn', 0)
A_('dsmax', 1)
A_('pfu', 0)
A_('lf', 'sc1', str)
A_('sf', 'sc1', str)
A_('lfa', 'sc1', str)
A_('of', '', str)
A_('m5', 1)
A_('bm3', 1)
A_('top', 0)
A_('warm', 3)
A_('pert', '', str)
A_('ef', 'sc1', str)
A_('hr', 0)
A_('fr', 0)
A_('wsoff', 0, lambda x: int(x, 0))
A_('ee', 0)
A_('nopt', 1)
A_('probe', 0)
A_('spf', 0)
A_('spw', 0)
A_('spx', 60)
A_('mimic', 1)
A_('touch', 0)
A_('spin', 20000)
A_('notail', 0)
A_('tsn', 0)
A_('amp', '', str)
A_('tsmask', 0xffff, lambda x: int(x, 0))
args = ap.parse_args()
NT = ' nt' if args.nt else ''
NTS = ' nt' if args.nts else ''

L_QA = 131072
L_P = L_QA + 16384
L_XN = L_P + 4096
L_MX = L_XN + 1024
L_MF = L_MX + 256
L_MA = L_MF + 128
L_CL = L_MF + 256
L_CX = L_CL + 2048
L_FF = L_CX + 2048
L_LS = L_FF + 512
L_FL = L_LS + 1024
L_END = L_FL + 64
assert L_END <= 163840
F_F0, C_ISS, F_H2, C_QA, C_ST, C_ACK, C_ER, F_HINT, K0 = range(9)
C_L, C_M = K0 + 4, K0 + 5
W_EP = 0
W_H1 = 0x1000 + args.wsoff
W_H2 = W_H1 + 0x20000
W_HF = W_H2 + 0x10000
W_H5 = W_HF + 0x80000
W_H3 = 0x200000 + args.wsoff
W_TS = 0x600000
assert W_H5 + 0x100000 <= W_H3

pX, pCKV, pWQ, pWUK, pWUV, pWO, pW1 = 4, 6, 8, 10, 12, 14, 18
pB1, pW2, pB2, pOUT, pDBG, pWS = 20, 22, 24, 26, 28, 30
sWV = 3
sX, sY, sFC, sGA, sS, sR, sHT, sCI, sDI = range(32, 41)
sJ, sH = sX, sY
sEP, sT0, sT1, sT2, sT3, sCNT, sW = 41, 42, 43, 44, 45, 46, 47
sB = 48
sM1, sM2, sM3, sM4 = 50, 52, 54, 56
sK0, sK1, sK2 = 58, 59, 60
TSB = 64
VFL, VONE, VFT = 13, 14, 15

a = Asm()
P = lambda r: s(r, 2)
MFMA = 'v_mfma_f32_16x16x32_bf16'


def I(text):
    if args.lfa != 'sc1':
        text = re.sub(r'(global_load\S* .*) sc1$', r'\1 ' + args.lfa.replace('+', ' '), text, flags=re.M)
    for bit, p_ in ((1, pWQ), (2, pWUK), (4, pCKV), (8, pWUV), (16, pW1), (32, pW2)):
        if not args.ntm & bit:
            text = re.sub(r'(global_load\S* .*s\[%d:%d\].*) nt' % (p_, p_ + 1), r'\1', text)
    if args.notail:
        out = []
        for line in text.split('\n'):
            m = re.match(r'\s*global_load_dwordx4 (v\[\d+:\d+\]), v\d+, s\[(\d+):', line)
            if m and int(m.group(2)) in (pWUV, pWO, pW1, pW2):
                line = f'global_load_dwordx4 {m.group(1)}, v3, s[4:5]'
            out.append(line)
        text = '\n'.join(out)
    a.I(text)


def TS(i):
    if args.ts and (args.tsmask >> i) & 1:
        I(f'{"s_memtime" if args.clk else "s_memrealtime"} {s(TSB + 2 * i, 2)}')


def TSN(k=None):
    if args.ts and (k is None or k == args.tsn):
        I(f's_sub_u32 {s(TSB + 2 * 15)}, {args.spin}, {s(sCNT)}')


def ts_dump(n=16):
    if not args.ts:
        return
    if args.xc:
        I(f's_getreg_b32 {s(TSB + 30)}, hwreg(HW_REG_XCC_ID)')
        I(f's_add_u32 {s(TSB + 30)}, {s(TSB + 30)}, {s(sEP)}')
        lab, done = a.newlabel('L_xc'), a.newlabel('L_xcd')
        I('s_cmp_lg_u32 s2, 224')
        I(f's_cbranch_scc1 {done}')
        I(f's_cmp_lg_u32 {s(sWV)}, 4')
        I(f's_cbranch_scc1 {done}')
        I('s_mov_b64 exec, -1')
        I(f'v_mov_b32 v4, {W_TS + args.xc * 512 + 60}')
        I(f'global_load_dword v5, v4, {P(pWS)} sc1')
        I('s_memrealtime s[96:97]')
        I('s_waitcnt vmcnt(0) lgkmcnt(0)')
        I(f'v_readfirstlane_b32 {s(sT0)}, v5')
        I(f's_cmp_eq_u32 {s(sT0)}, {s(TSB + 30)}')
        I(f's_cbranch_scc1 {done}')
        a.label(lab)
        I('s_memrealtime s[98:99]')
        I('s_waitcnt lgkmcnt(0)')
        I(f's_sub_u32 {s(sT1)}, s98, s96')
        I(f's_cmp_lt_u32 {s(sT1)}, 5000')
        I(f's_cbranch_scc1 {lab}')
        a.label(done)
    if args.amp:
        wg, w, k = map(int, args.amp.split(','))
        lab, done = a.newlabel('L_amp'), a.newlabel('L_ampd')
        I(f's_cmp_lg_u32 s2, {wg}')
        I(f's_cbranch_scc1 {done}')
        I(f's_cmp_lg_u32 {s(sWV)}, {w}')
        I(f's_cbranch_scc1 {done}')
        I('s_memrealtime s[96:97]')
        I('s_waitcnt lgkmcnt(0)')
        I(f's_sub_u32 {s(sT0)}, {s(TSB + 2 * k)}, {s(TSB)}')
        I(f's_lshl_b32 {s(sT0)}, {s(sT0)}, 3')
        I(f's_min_u32 {s(sT0)}, {s(sT0)}, 100000')
        a.label(lab)
        I('s_memrealtime s[98:99]')
        I('s_waitcnt lgkmcnt(0)')
        I(f's_sub_u32 {s(sT1)}, s98, s96')
        I(f's_cmp_lt_u32 {s(sT1)}, {s(sT0)}')
        I(f's_cbranch_scc1 {lab}')
        a.label(done)
    I('s_waitcnt lgkmcnt(0)')
    I('s_mov_b64 exec, -1')
    I('v_mov_b32 v4, 0')
    for i in range(n):
        I(f'v_writelane_b32 v4, {s(TSB + 2 * i)}, {i}')
    I(f's_lshl_b32 {s(sT0)}, s2, 3')
    I(f's_add_u32 {s(sT0)}, {s(sT0)}, {s(sWV)}')
    I(f's_lshl_b32 {s(sT0)}, {s(sT0)}, 6')
    I(f's_add_u32 {s(sT0)}, {s(sT0)}, {W_TS}')
    I(f'v_lshl_add_u32 v5, v0, 2, {s(sT0)}')
    I('s_mov_b64 exec, 0xffff')
    I(f'global_store_dword v5, v4, {P(pWS)}')
    I('s_waitcnt vmcnt(0)')


def load_epoch():
    I(f's_load_dword {s(sEP)}, {P(pWS)}, {W_EP}')


def epoch_ready():
    I('s_waitcnt lgkmcnt(0)')
    I(f's_add_u32 {s(sEP)}, {s(sEP)}, 1')


def row_allreduce(op, regs, steps=(8, 4, 2, 1)):
    for st in steps:
        for r in regs:
            I(f'{op} {v(r)}, {v(r)}, {v(r)} row_ror:{st}')


def cross_rows_allreduce(op, r, t):
    for sw in ('v_permlane16_swap_b32', 'v_permlane32_swap_b32'):
        I(f'v_mov_b32 {v(t)}, {v(r)}')
        I(f'{sw} {v(t)}, {v(r)}')
        I(f'{op} {v(r)}, {v(r)}, {v(t)}')


def scalar_poll(offsets):
    lab, done = a.newlabel('L_sp'), a.newlabel('L_spd')
    R = [61, 62, 63, 96, 97, 98, 99, 100]
    I(f's_mov_b32 {s(sCNT)}, {args.spin}')
    a.label(lab)
    for k, o in enumerate(offsets):
        I(f's_load_dword {s(R[k])}, {P(sB)}, {o} glc')
    I(f's_sub_u32 {s(sCNT)}, {s(sCNT)}, 1')
    I(f's_cbranch_scc1 {done}')
    I('s_waitcnt lgkmcnt(0)')
    I(f's_xor_b32 {s(sT0)}, {s(R[0])}, {s(sEP)}')
    for k in range(1, len(offsets)):
        I(f's_xor_b32 {s(sT1)}, {s(R[k])}, {s(sEP)}')
        I(f's_or_b32 {s(sT0)}, {s(sT0)}, {s(sT1)}')
    I(f's_cbranch_scc1 {lab}')
    a.label(done)
    I('s_waitcnt lgkmcnt(0)')


def flag_add(idx, base=VFL):
    I('s_mov_b64 exec, 1')
    I(f'ds_add_u32 {v(base)}, {v(VONE)} offset:{4 * idx}')
    I('s_mov_b64 exec, -1')


def flag_wait(idx, n, base=VFL):
    lab, done = a.newlabel('L_fw'), a.newlabel('L_fwd')
    if args.bo and idx in (F_F0, C_ISS, F_H2, C_ST, C_ACK, K0):
        l2 = a.newlabel('L_fw')
        a.B(f's_branch {l2}')
        a.label(lab)
        I(f's_sleep {args.bo}')
        a.label(l2)
    else:
        a.label(lab)
    I(f'ds_read_b32 {v(VFT)}, {v(base)} offset:{4 * idx}')
    I(f's_sub_u32 {s(sFC)}, {s(sFC)}, 1')
    I('s_waitcnt lgkmcnt(0)')
    I(f'v_cmp_gt_u32 vcc, {n}, {v(VFT)}')
    a.B(f's_cbranch_scc1 {done}')
    a.B(f's_cbranch_vccnz {lab}')
    a.label(done)
    I(f's_max_i32 {s(sFC)}, {s(sFC)}, 0')


def build_masks(M, t0, t1):
    I(f'v_and_b32 {v(t0)}, 1, v1')
    I(f'v_lshlrev_b32 {v(t0)}, 4, {v(t0)}')
    I(f'v_mov_b32 {v(t1)}, 0xffff')
    I(f'v_lshlrev_b32 {v(t1)}, {v(t0)}, {v(t1)}')
    I(f'v_bfe_u32 {v(t0)}, v1, 1, 2')
    for r in range(4):
        I(f'v_cmp_eq_u32 vcc, {r}, {v(t0)}')
        I(f'v_cndmask_b32 {v(M + r)}, 0, {v(t1)}, vcc')


BF, ACC, PF = 128, 96, 80
AT, SEL, XP, ACC0, REC = 72, 32, 80, 88, 92


def build_sel(t=6):
    J = lambda x: I(re.sub(r'\bv([6-9])\b', lambda m: 'v%d' % (int(m.group(1)) - 6 + t), x))
    J('''
    v_and_b32 v6, 1, v1
    v_cmp_eq_u32 vcc, 1, v6
    v_mov_b32 v7, 0x0c0c0100
    v_mov_b32 v8, 0x01000c0c
    v_cndmask_b32 v7, v7, v8, vcc
    v_mov_b32 v8, 0x0c0c0302
    v_mov_b32 v9, 0x03020c0c
    v_cndmask_b32 v8, v8, v9, vcc
    v_mov_b32 v9, 0x0c0c0c0c
    v_bfe_u32 v6, v1, 1, 2
    ''')
    for r in range(4):
        J(f'v_cmp_eq_u32 vcc, {r}, v6')
        J(f'v_cndmask_b32 {v(SEL + r)}, v9, v7, vcc')
        J(f'v_cndmask_b32 {v(SEL + 4 + r)}, v9, v8, vcc')


def diag_stage(n, W, younger=0):
    def perms(k):
        for r in range(4):
            I(f'v_perm_b32 {v(AT + 4 * (k & 1) + r)}, {v(XP + (k >> 1))}, {v(XP + (k >> 1))}, {v(SEL + 4 * (k & 1) + r)}')
    perms(0)
    for k in range(n):
        if k < n - 1:
            perms(k + 1)
        else:
            I(f'v_mov_b32 {v(REC + 2)}, {s(sEP)}')
            I(f'v_mov_b32 {v(REC + 3)}, {s(sEP)}')
        I(f's_waitcnt vmcnt({n - 1 - k + younger})')
        I(f'{MFMA} {v(ACC0, 4)}, {v(AT + 4 * (k & 1), 4)}, {v(W(k), 4)}, {"0" if k == 0 else v(ACC0, 4)}')


TA = 16


def tr_addr():
    I(f'''
    v_lshrrev_b32 v4, 2, v0
    v_lshlrev_b32 v4, 8, v4
    v_and_b32 v5, 31, v0
    v_lshl_add_u32 v4, v5, 3, v4
    s_lshl_b32 {s(sT0)}, {s(sW)}, 15
    v_add_u32 v4, {s(sT0)}, v4
    ''')


CK = 44
EMB = 0x00010001
HASH = 0x9e3779b1
OCT = ('quad_perm:[1,0,3,2]', 'quad_perm:[2,3,0,1]', 'row_half_mirror')


def pv_setup():
    for i in range(4):
        I(f's_sub_u32 {s(sT0)}, {s(sW)}, {i}')
        I(f's_and_b32 {s(sT0)}, {s(sT0)}, 3')
        I(f's_lshl_b32 {s(sT0)}, {s(sT0)}, 10')
        I(f's_add_u32 {s(sT0)}, {s(sT0)}, {L_P}')
        I(f'v_add_u32 {v(48 + i)}, {s(sT0)}, v3')
    I(f"""
    s_lshl_b32 {s(sT0)}, {s(sGA)}, 6
    s_add_u32 {s(sT0)}, {s(sT0)}, {s(sW)}
    s_lshl_b32 {s(sT0)}, {s(sT0)}, 7
    s_add_u32 {s(sT0)}, {s(sT0)}, {s(sS)}
    s_lshl_b32 {s(sT1)}, {s(sT0)}, 8
    s_add_u32 {s(sT1)}, {s(sT1)}, {W_H3}
    v_lshlrev_b32 v52, 19, v2
    v_lshl_add_u32 v52, v1, 4, v52
    v_add_u32 v52, {s(sT1)}, v52
    s_mov_b32 {s(sT2)}, 0x20000
    v_add_u32 v53, {s(sT2)}, v52
    v_add_u32 v54, {s(sT2)}, v53
    v_add_u32 v55, {s(sT2)}, v54
    v_lshlrev_b32 v42, 4, v2
    v_lshl_add_u32 v43, v1, 6, v42
    v_add_u32 v43, {L_LS}, v43
    v_add_u32 v42, {L_MF}, v42
    s_mul_i32 {s(sK0)}, {s(sEP)}, {HASH}
    s_mov_b32 {s(sK1)}, {EMB}
    s_mov_b32 {s(sK2)}, {~EMB & 0xffffffff}
    """)


def tr_slot(i):
    I(f's_sub_u32 {s(sT0)}, {s(sW)}, {i}')
    I(f's_and_b32 {s(sT0)}, {s(sT0)}, 3')
    I(f's_lshl_b32 {s(sT1)}, {s(sT0)}, 13')
    I(f'v_lshl_add_u32 v5, {s(sT0)}, 2, {v(VFL)}')
    I(f'v_add_u32 {v(TA)}, {s(sT1)}, v4')
    for T in range(1, 8):
        I(f'v_xor_b32 {v(TA + T)}, {32 * T}, {v(TA)}')
    if i == 3 and args.bm3:
        assert not args.ffn
        TS(6)
        I('s_barrier')
    else:
        flag_wait(K0, i + 1, 5)
    for T in range(8):
        for tau in range(2):
            I(f'ds_read_b64_tr_b16 {v(BF + (i * 8 + T) * 4 + 2 * tau, 2)}, {v(TA + T)} offset:{tau * 4096}')


def round_pairs(base, n, tmp):
    for i in range(n // 2):
        I(f'v_cvt_pk_bf16_f32 {v(tmp + i)}, {v(base + 2 * i)}, {v(base + 2 * i + 1)}')
    for i in range(n // 2):
        I(f'v_lshlrev_b32 {v(base + 2 * i)}, 16, {v(tmp + i)}')
        I(f'v_and_b32 {v(base + 2 * i + 1)}, {s(sT3)}, {v(tmp + i)}')


hdr = open('cdna_kernels/%s.s.ref' % NAME).read().split('; Override launch geometry')[0]
a.raw(hdr.rstrip())
a.raw(f'; @launch grid=(256,1,1) block=(512,1,1) lds={L_END}')
a.raw(""";
; carries the launch tag (ws[0] + 1, advanced at the end) or a share of a check word derived from it; all spins are bounded.""")
a.raw('.amdgcn_target "amdgcn-amd-amdhsa--gfx950"')
a.raw('.text')
a.raw(f'.globl {NAME}_kernel')
a.raw('.p2align 8')
a.raw(f'.type {NAME}_kernel,@function')
a.label(f'{NAME}_kernel')
a.label('L_start')
I('s_load_dwordx16 s[4:19], s[0:1], 0')
I(f's_getpc_b64 {P(sB)}')
a.label('L_pc')
I('s_cmpk_ge_u32 s2, 0x100')
I('s_cbranch_scc1 L_end')
TS(0)
if args.top:
    I(f'''
    v_cmp_gt_u32 vcc, 64, v0
    s_and_b32 {s(sX)}, s2, 7
    s_lshr_b32 {s(sY)}, s2, 3
    v_lshl_add_u32 v6, {s(sX)}, 6, v0
    v_lshl_add_u32 v6, v6, 5, {s(sY)}
    v_lshlrev_b32 v5, 4, v0
    v_lshlrev_b32 v6, 8, v6
    ''')
    a.B('s_cbranch_vccz L_top')
    I(f'''
    s_waitcnt lgkmcnt(0)
    global_load_dwordx4 v[120:123], v5, {P(pX)}
    ''')
    if args.top == 1:
        I(f'global_load_dword v41, v6, {P(pWQ)}{NT}')
        I(f'global_load_dword v41, v6, {P(pWQ)} offset:128{NT}')
    a.label('L_top')
I('s_load_dwordx8 s[20:27], s[0:1], 64')
I('s_load_dwordx4 s[28:31], s[0:1], 96')
I(f'''
v_lshrrev_b32 v3, 6, v0
v_lshrrev_b32 v4, 5, v0
s_lshr_b32 {s(sY)}, s2, 3
s_and_b32 {s(sT1)}, {s(sY)}, 15
s_lshl_b32 {s(sT1)}, {s(sT1)}, 11
v_lshl_add_u32 v4, v4, 7, {s(sT1)}
v_min_u32 v4, L_end-L_pc, v4
s_mov_b32 exec_lo, 1
s_mov_b32 exec_hi, 1
global_load_dword v15, v4, {P(sB)}
s_mov_b64 exec, -1
v_readfirstlane_b32 {s(sWV)}, v3
v_and_b32 v0, 63, v0
v_and_b32 v1, 15, v0
v_lshrrev_b32 v2, 4, v0
s_and_b32 {s(sX)}, s2, 7
s_lshr_b32 {s(sGA)}, {s(sY)}, 4
s_xor_b32 {s(sGA)}, {s(sGA)}, 1
s_and_b32 {s(sT0)}, {s(sY)}, 15
s_lshl4_add_u32 {s(sS)}, {s(sX)}, {s(sT0)}
s_and_b32 {s(sW)}, {s(sWV)}, 3
v_lshlrev_b32 v3, 4, v0
v_mov_b32 {v(VFL)}, {L_FL}
v_mov_b32 {v(VONE)}, 1
s_mov_b32 {s(sFC)}, 0x200000
s_cmp_ge_u32 {s(sWV)}, 4
''')
a.B('s_cbranch_scc1 L_S')
I(f'''
s_lshl_b32 {s(sT0)}, {s(sJ)}, 19
s_lshl_b32 {s(sT1)}, {s(sH)}, 8
s_add_u32 {s(sT0)}, {s(sT0)}, {s(sT1)}
s_cmp_eq_u32 {s(sWV)}, 1
''')
a.B('s_cbranch_scc1 L_F1')
I(f's_cmp_eq_u32 {s(sWV)}, 2')
a.B('s_cbranch_scc1 L_F2')
I(f's_cmp_eq_u32 {s(sWV)}, 3')
a.B('s_cbranch_scc1 L_F3')

Wq, XR = 128, 120
I(f'''
v_lshlrev_b32 v5, 17, v2
v_lshl_add_u32 v5, v1, 4, v5
v_add_u32 v5, {s(sT0)}, v5
s_movk_i32 {s(sT2)}, 0x2000
''')
if not args.top:
    I('s_waitcnt lgkmcnt(0)')
    I(f'global_load_dwordx4 {v(XR, 4)}, v3, {P(pX)}')
for k in range(16):
    I(f'global_load_dwordx4 {v(Wq + 4 * k, 4)}, v5, {P(pWQ)}{NT}')
    if k < 15:
        I(f'v_add_u32 v5, {s(sT2)}, v5')
if args.bpos == 0:
    I('s_barrier')
I('s_waitcnt lgkmcnt(0)')
load_epoch()
TS(1)
build_sel()
I(f'''
v_add_u32 v10, {L_XN}, v3
s_lshl_b32 {s(sT0)}, {s(sJ)}, 7
s_add_u32 {s(sT0)}, {s(sT0)}, {L_XN}
v_lshl_add_u32 v11, v2, 5, {s(sT0)}
s_lshl_b32 {s(sT0)}, s2, 9
s_add_u32 {s(sT0)}, {s(sT0)}, {W_H1}
v_add_u32 v12, {s(sT0)}, v3
s_mov_b32 {s(sT3)}, 0xffff0000
s_mov_b32 {s(sK0)}, 0x07060501
s_mov_b32 {s(sK1)}, 0x07060502
s_mov_b32 {s(sK2)}, 0x07060503
''')
F, Dd, t0, t1, t2, t3, PK = 96, 104, 112, 113, 114, 115, 116
I(f's_waitcnt vmcnt({(16, 19, 17)[args.top]})')
if args.bpos == 1:
    I('s_barrier')
TS(2)
for i in range(4):
    I(f'v_lshlrev_b32 {v(F + 2 * i)}, 16, {v(XR + i)}')
    I(f'v_and_b32 {v(F + 2 * i + 1)}, {s(sT3)}, {v(XR + i)}')
I(f'''
v_add_f32 {v(t0)}, {v(F)}, {v(F + 1)}
v_add_f32 {v(t1)}, {v(F + 2)}, {v(F + 3)}
v_add_f32 {v(t2)}, {v(F + 4)}, {v(F + 5)}
v_add_f32 {v(t3)}, {v(F + 6)}, {v(F + 7)}
v_add_f32 {v(t0)}, {v(t0)}, {v(t1)}
v_add_f32 {v(t2)}, {v(t2)}, {v(t3)}
v_add_f32 {v(t0)}, {v(t0)}, {v(t2)}
''')
row_allreduce('v_add_f32', [t0])
I(f'v_add_f32 {v(t0)}, {v(t0)}, {v(t0)} row_bcast:15 row_mask:0xa')
I(f'v_add_f32 {v(t0)}, {v(t0)}, {v(t0)} row_bcast:31 row_mask:0xc')
I(f'v_mov_b32 {v(t1)}, 0x3b000000')
I(f'v_readlane_b32 {s(sT0)}, {v(t0)}, 63')
I(f'v_mul_f32 {v(t1)}, {s(sT0)}, {v(t1)}')
for i in range(8):
    I(f'v_sub_f32 {v(Dd + i)}, {v(F + i)}, {v(t1)}')
if args.bpos == 2:
    I('s_barrier')
I(f'v_mul_f32 {v(t0)}, {v(Dd)}, {v(Dd)}')
I(f'v_mul_f32 {v(t2)}, {v(Dd + 1)}, {v(Dd + 1)}')
for i in range(2, 8, 2):
    I(f'v_fmac_f32 {v(t0)}, {v(Dd + i)}, {v(Dd + i)}')
    I(f'v_fmac_f32 {v(t2)}, {v(Dd + i + 1)}, {v(Dd + i + 1)}')
I(f'v_add_f32 {v(t0)}, {v(t0)}, {v(t2)}')
I(f'v_cvt_pk_bf16_f32 {v(t1)}, {v(t1)}, {v(t1)}')
I(f'v_and_b32 {v(t1)}, {s(sT3)}, {v(t1)}')
row_allreduce('v_add_f32', [t0], steps=(8,))
for i in range(0, 4):
    I(f'v_sub_f32 {v(Dd + i)}, {v(F + i)}, {v(t1)}')
row_allreduce('v_add_f32', [t0], steps=(4,))
for i in range(4, 8):
    I(f'v_sub_f32 {v(Dd + i)}, {v(F + i)}, {v(t1)}')
row_allreduce('v_add_f32', [t0], steps=(2,))
for i in range(0, 2):
    I(f'v_cvt_pk_bf16_f32 {v(PK + i)}, {v(Dd + 2 * i)}, {v(Dd + 2 * i + 1)}')
row_allreduce('v_add_f32', [t0], steps=(1,))
for i in range(2, 4):
    I(f'v_cvt_pk_bf16_f32 {v(PK + i)}, {v(Dd + 2 * i)}, {v(Dd + 2 * i + 1)}')
I(f'v_add_f32 {v(t0)}, {v(t0)}, {v(t0)} row_bcast:15 row_mask:0xa')
for i in range(0, 2):
    I(f'v_lshlrev_b32 {v(Dd + 2 * i)}, 16, {v(PK + i)}')
    I(f'v_and_b32 {v(Dd + 2 * i + 1)}, {s(sT3)}, {v(PK + i)}')
I(f'v_add_f32 {v(t0)}, {v(t0)}, {v(t0)} row_bcast:31 row_mask:0xc')
for i in range(2, 4):
    I(f'v_lshlrev_b32 {v(Dd + 2 * i)}, 16, {v(PK + i)}')
    I(f'v_and_b32 {v(Dd + 2 * i + 1)}, {s(sT3)}, {v(PK + i)}')
I(f'v_mov_b32 {v(t1)}, 0x3b000000')
I(f'v_readlane_b32 {s(sT0)}, {v(t0)}, 63')
I(f'''
v_mul_f32 {v(t1)}, {s(sT0)}, {v(t1)}
v_cvt_pk_bf16_f32 {v(t1)}, {v(t1)}, {v(t1)}
v_and_b32 {v(t1)}, {s(sT3)}, {v(t1)}
v_add_f32 {v(t1)}, 0x3727c5ac, {v(t1)}
v_cvt_pk_bf16_f32 {v(t1)}, {v(t1)}, {v(t1)}
v_and_b32 {v(t1)}, {s(sT3)}, {v(t1)}
v_sqrt_f32 {v(t1)}, {v(t1)}
v_cvt_pk_bf16_f32 {v(t1)}, {v(t1)}, {v(t1)}
v_and_b32 {v(t1)}, {s(sT3)}, {v(t1)}
v_rcp_f32 {v(t1)}, {v(t1)}
''')
for i in range(8):
    I(f'v_mul_f32 {v(Dd + i)}, {v(Dd + i)}, {v(t1)}')
for i in range(4):
    I(f'v_cvt_pk_bf16_f32 {v(PK + i)}, {v(Dd + 2 * i)}, {v(Dd + 2 * i + 1)}')
I(f'ds_write_b128 v10, {v(PK, 4)}')
I(f'ds_read_b128 {v(XP, 4)}, v11')
I(f'ds_read_b128 {v(XP + 4, 4)}, v11 offset:16')
if args.bpos == 3:
    I('s_barrier')
epoch_ready()
TS(3)
diag_stage(16, lambda k: Wq + 4 * k)
for i in range(3):
    I(f'v_perm_b32 {v(REC + i)}, {v(ACC0 + i)}, {v(ACC0 + 3)}, {s(sK0 + i)}')
I('s_mov_b32 exec_hi, 0')
I(f'global_store_dwordx4 v12, {v(REC, 4)}, {P(pWS)} sc1')
I(f'ds_write_b128 v10, {v(ACC0, 4)} offset:{L_CX - L_XN}')
TS(4)
flag_add(F_F0)
I('s_branch L_QG')

a.label('L_F1')
WK, G1, QF, DK = 128, 192, 96, 112
I(f'''
v_lshlrev_b32 v6, 1, v2
v_xor_b32 v6, v6, v1
v_lshlrev_b32 v5, 16, v2
v_lshl_add_u32 v5, v6, 4, v5
v_add_u32 v5, {s(sT0)}, v5
v_xor_b32 v6, 0x80, v5
v_add_u32 v6, 0x40000, v6
s_mov_b32 {s(sT2)}, 0x8000
s_mov_b32 {s(sT3)}, {(-3 * 8192) & 0xffffffff}
s_mov_b32 m0, {L_QA}
s_waitcnt lgkmcnt(0)
''')
load_epoch()
I('s_barrier')
for k in range(16):
    I(f'global_load_lds_dwordx4 {"v6" if k & 1 else "v5"}, {P(pWUK)}{NT}')
    if k < 15:
        I('s_add_u32 m0, m0, 0x400')
    if k < 14:
        I(f'v_add_u32 {"v6" if k & 1 else "v5"}, {s(sT3 if k & 2 else sT2)}, {"v6" if k & 1 else "v5"}')
TS(1)
I(f'''
v_and_b32 v5, 7, v1
v_lshlrev_b32 v5, 1, v5
v_xor_b32 v5, v5, v2
v_lshlrev_b32 v5, 4, v5
v_lshl_add_u32 v5, v1, 8, v5
v_add_u32 v24, {L_QA}, v5
v_xor_b32 v25, 64, v24
v_xor_b32 v26, 0x80, v24
v_xor_b32 v27, 0xc0, v24
s_lshl_b32 {s(sT0)}, {s(sH)}, 12
s_add_u32 {s(sT0)}, {s(sT0)}, {W_H1}
v_add_u32 v8, {s(sT0)}, v3
s_lshl_b32 {s(sT1)}, {s(sJ)}, 9
v_add_u32 v6, {s(sT1)}, v3
s_movk_i32 {s(sT1)}, 0xfff
v_and_b32 v16, {s(sT1)}, v6
v_add_u32 v6, 0x400, v6
v_and_b32 v17, {s(sT1)}, v6
v_add_u32 v6, 0x400, v6
v_and_b32 v18, {s(sT1)}, v6
v_add_u32 v6, 0x400, v6
v_and_b32 v19, {s(sT1)}, v6
v_add_u32 v32, {s(sT0)}, v16
v_add_u32 v33, {s(sT0)}, v17
v_add_u32 v34, {s(sT0)}, v18
v_add_u32 v35, {s(sT0)}, v19
v_add_u32 v9, {L_CX}, v3
v_and_b32 v10, 1, v2
v_lshlrev_b32 v10, 1, v10
v_lshrrev_b32 v11, 1, v2
v_add_u32 v10, v10, v11
v_lshl_add_u32 v10, v1, 2, v10
v_lshlrev_b32 v10, 2, v10
v_add_u32 v10, {L_CL}, v10
v_lshlrev_b32 v11, 4, v2
v_add_u32 v11, {L_CL}, v11
s_lshl_b32 {s(sT0)}, s2, 7
s_add_u32 {s(sT0)}, {s(sT0)}, {W_H2}
v_add_u32 v12, {s(sT0)}, v3
v_add_u32 v37, 8, v1
s_mov_b32 {s(sM2)}, {EMB}
s_mov_b32 {s(sM2 + 1)}, {~EMB & 0xffffffff}
s_mov_b32 {s(sK0)}, 0x0c04000c
s_mov_b32 {s(sK1)}, 0x0402010c
s_mov_b32 {s(sK2)}, 0x07060302
s_mov_b32 {s(sM3 + 1)}, 0x10000
''')
epoch_ready()
I(f'v_mov_b32 v22, {s(sEP)}')
I(f's_mul_i32 {s(sM3)}, {s(sEP)}, {HASH}')
I('s_setprio 1')
NP = args.np
for p_ in range(NP):
    I(f'v_mov_b32 {v(G1 + 16 * p_ + 3)}, v22')
    for e in range(3):
        I(f'v_mov_b32 {v(G1 + 16 * p_ + e)}, 0')


def h1_loads(p_):
    for k in range(4):
        if k == 0:
            I('s_mov_b32 exec_lo, 0')
        I(f'global_load_dwordx4 {v(G1 + 16 * p_ + 4 * k, 4)}, {v(32 + k)}, {P(pWS)} sc1')
        if k == 0:
            I('s_mov_b32 exec_lo, -1')


if args.hint1:
    assert NP == 1
    I(f's_lshl_b32 {s(sT0)}, {s(sH)}, 12')
    I(f's_add_u32 {s(sT0)}, {s(sT0)}, {W_H1 + 508}')
    I(f's_add_u32 {s(sB)}, {s(pWS)}, {s(sT0)}')
    I(f's_addc_u32 {s(sB + 1)}, {s(pWS + 1)}, 0')
    HO = [4, 5, 6, 7, 8, 9, 12]
    for k in range(7):
        I(f's_add_u32 {s(HO[k])}, {s(sJ)}, {k + 1}')
        I(f's_and_b32 {s(HO[k])}, {s(HO[k])}, 7')
        I(f's_lshl_b32 {s(HO[k])}, {s(HO[k])}, 9')
    scalar_poll([s(r) for r in HO])
elif args.hr:
    flag_wait(C_ER, 4)
else:
    I('s_waitcnt vmcnt(4)')
TS(2)
h1_loads(0)
I('s_waitcnt vmcnt(4)')
for tau in range(4):
    for t in range(4):
        I(f'ds_read_b128 {v(WK + 16 * tau + 4 * t, 4)}, {v(24 + t)} offset:{4096 * tau}')
for p_ in range(1, NP):
    if p_ > 1 and args.sl:
        I(f's_sleep {args.sl}')
    h1_loads(p_)
Q4 = 40
for e in range(4):
    I(f'v_mov_b32 {v(Q4 + 4 + e)}, 0')
flag_wait(F_F0, 1)
I('s_mov_b32 exec_hi, 0')
I(f'ds_read_b128 {v(Q4 + 4, 4)}, v9')
I('s_mov_b64 exec, -1')
I(f's_mov_b32 {s(sCNT)}, {args.spin}')
I('s_waitcnt lgkmcnt(0)')
a.label('L_F1_poll')
for p_ in range(NP):
    G = G1 + 16 * p_
    I(f's_sub_u32 {s(sCNT)}, {s(sCNT)}, 1')
    I(f's_waitcnt vmcnt({4 * (NP - 1)})')
    I(f'v_xor_b32 v16, {v(G + 3)}, v22')
    for k in range(1, 4):
        I(f'v_bitop3_b32 v16, {v(G + 4 * k + 3)}, v22, v16 bitop3:0xbe')
    I('v_cmp_ne_u32 vcc, 0, v16')
    a.B(f's_cbranch_scc1 L_F1_go{p_}')
    a.B(f's_cbranch_vccz L_F1_go{p_}')
    h1_loads(p_)
I('s_branch L_F1_poll')
for p_ in reversed(range(NP)):
    G = G1 + 16 * p_
    a.label(f'L_F1_go{p_}')
    for k in range(4):
        I(f'v_perm_b32 {v(G + 4 * k + 3)}, {v(G + 4 * k + 1)}, {v(G + 4 * k)}, {s(sK0)}')
    for k in range(4):
        I(f'v_perm_b32 {v(G + 4 * k + 3)}, {v(G + 4 * k + 2)}, {v(G + 4 * k + 3)}, {s(sK1)}')
    for e in (0, 2):
        I(f'v_pk_add_f32 {v(Q4 + 4 + e, 2)}, {v(Q4 + 4 + e, 2)}, {v(G + e, 2)}')
        I(f'v_pk_add_f32 {v(G + 4 + e, 2)}, {v(G + 4 + e, 2)}, {v(G + 8 + e, 2)}')
    for e in (0, 2):
        I(f'v_pk_add_f32 {v(Q4 + 4 + e, 2)}, {v(Q4 + 4 + e, 2)}, {v(G + 12 + e, 2)}')
    for e in (0, 2):
        I(f'v_pk_add_f32 {v(Q4 + e, 2)}, {v(Q4 + 4 + e, 2)}, {v(G + 4 + e, 2)}')
    if p_:
        I('s_branch L_F1_go')
a.label('L_F1_go')
TS(3)
TSN()
G1 = Q4
I(f'v_permlane32_swap_b32 {v(G1)}, {v(G1 + 2)}')
I(f'v_permlane32_swap_b32 {v(G1 + 1)}, {v(G1 + 3)}')
I(f'v_add_f32 {v(G1)}, {v(G1)}, {v(G1 + 2)}')
I(f'v_add_f32 {v(G1 + 1)}, {v(G1 + 1)}, {v(G1 + 3)}')
I(f'v_cvt_pk_bf16_f32 v16, {v(G1)}, {v(G1 + 1)}')
I('ds_write_b32 v10, v16')
for t in range(4):
    I(f'ds_read_b128 {v(QF + 4 * t, 4)}, v11 offset:{64 * t}')
for half in ((0, 1), (2, 3)):
    for t in range(4):
        if half[0] == 0:
            I(f's_waitcnt lgkmcnt({3 - t})')
        for tau in half:
            I(f'{MFMA} {v(DK + 4 * tau, 4)}, {v(QF + 4 * t, 4)}, {v(WK + 16 * tau + 4 * t, 4)}, {"0" if t == 0 else v(DK + 4 * tau, 4)}')


def q_pack(k):
    lo, hi = DK + 8 * k, DK + 8 * k + 4
    I(f'v_cvt_pk_bf16_f32 {v(24 + k)}, {v(lo)}, {v(hi)}')
    I(f'v_add_u32 {v(lo)}, {s(sM3 + 1)}, {v(lo)}')
    I(f'v_add_u32 {v(hi)}, {s(sM3 + 1)}, {v(hi)}')
    I(f'v_perm_b32 {v(20 + k)}, {v(hi)}, {v(lo)}, {s(sK2)}')
    I(f'v_and_b32 {v(20 + k)}, {s(sM2 + 1)}, {v(20 + k)}')


q_pack(0)
I('v_mov_b32 v22, v24 row_ror:8')
q_pack(1)
I('v_add_u32 v16, v20, v21')
I('v_mov_b32 v23, v25 row_ror:8')
for st in OCT:
    I(f'v_add_u32 v16, v16, v16 {st}')
I(f'v_sub_u32 v16, {s(sM3)}, v16')
I('v_lshrrev_b32 v17, v1, v16')
I('v_lshrrev_b32 v16, v37, v16')
I(f'v_and_or_b32 v20, v17, {s(sM2)}, v20')
I(f'v_and_or_b32 v21, v16, {s(sM2)}, v21')
I('s_mov_b64 exec, 0xff')
I(f'global_store_dwordx4 v12, v[20:23], {P(pWS)} sc1')
TS(4)
I('s_setprio 0')
flag_add(F_H2)
I('s_waitcnt vmcnt(0)')
flag_add(F_H2)
a.label('L_PV1')
tr_addr()
pv_setup()


def scalar_prefetch():
    I(f'''
    s_lshr_b32 {s(sHT)}, {s(sY)}, 3
    s_lshl2_add_u32 {s(sHT)}, {s(sX)}, {s(sHT)}
    s_bfe_u32 {s(sDI)}, {s(sY)}, 0x10002
    s_lshl1_add_u32 {s(sHT)}, {s(sHT)}, {s(sDI)}
    s_and_b32 {s(sCI)}, {s(sY)}, 3
    s_lshr_b32 {s(sT1)}, {s(sWV)}, 1
    s_lshl1_add_u32 {s(sCI)}, {s(sCI)}, {s(sT1)}
    ''')
    for bit, ptr, sh_ci, sh_ht, step in ((1, pWUV, 19, 7, 8192), (2, pWO, 13, 16, 128)):
        if not args.spf & bit:
            continue
        lab = a.newlabel('L_spf')
        I(f's_lshl_b32 {s(sT0)}, {s(sCI)}, {sh_ci}')
        I(f's_lshl_b32 {s(sT1)}, {s(sHT)}, {sh_ht}')
        I(f's_add_u32 {s(sT0)}, {s(sT0)}, {s(sT1)}')
        I(f's_add_u32 {s(sB)}, {s(ptr)}, {s(sT0)}')
        I(f's_addc_u32 {s(sB + 1)}, {s(ptr + 1)}, 0')
        I(f's_mov_b32 {s(sCNT)}, 8')
        a.label(lab)
        for k in range(8):
            I(f's_load_dword{"x2 s[62:63]" if args.spx else " s62"}, {P(sB)}, {k * step + args.spx}')
        I(f's_add_u32 {s(sB)}, {s(sB)}, {8 * step}')
        I(f's_addc_u32 {s(sB + 1)}, {s(sB + 1)}, 0')
        I(f's_sub_u32 {s(sCNT)}, {s(sCNT)}, 1')
        I(f's_cmp_lg_u32 {s(sCNT)}, 0')
        I(f's_cbranch_scc1 {lab}')
    TS(12)


for i in range(args.pre):
    if args.spf and i == args.spw:
        scalar_prefetch()
    tr_slot(i)
I('s_branch L_PVs')

a.label('L_F3')
HFG, B1R = 24, 28
W1T = lambda k: 56 + 4 * k if k < 6 else 8 if k == 6 else 4
I('s_waitcnt lgkmcnt(0)')
load_epoch()
if args.ee:
    I('s_waitcnt lgkmcnt(0)')
I('s_barrier')
epoch_ready()


def ffn_w1(dst):
    I(f"""
    s_and_b32 {s(sT3)}, s2, 15
    s_mul_i32 {s(sT0)}, {s(sT3)}, {32 * 3584}
    s_lshr_b32 {s(sT1)}, s2, 4
    s_lshl_b32 {s(sT1)}, {s(sT1)}, 8
    s_add_u32 {s(sT0)}, {s(sT0)}, {s(sT1)}
    v_mul_u32_u24 v12, {8 * 3584}, v2
    v_lshl_add_u32 v12, v1, 4, v12
    v_add_u32 v12, {s(sT0)}, v12
    s_movk_i32 {s(sT2)}, {2 * 3584}
    """)
    for k in range(8):
        I(f'global_load_dwordx4 {v(dst(k), 4)}, v12, {P(pW1)} offset:{3584 * (k & 1)}{NT}')
        if k & 1 and k < 7:
            I(f'v_add_u32 v12, {s(sT2)}, v12')


def ffn_rest(dst, younger):
    global AT, SEL
    AT, SEL = 128, 136
    I(f"""
    s_and_b32 {s(sT3)}, s2, 15
    s_lshr_b32 {s(sT1)}, s2, 4
    s_lshl_b32 {s(sT1)}, {s(sT1)}, 8
    s_lshl_b32 {s(sT3)}, {s(sT3)}, 6
    s_add_u32 {s(sT0)}, {s(sT3)}, {L_XN}
    v_lshl_add_u32 v144, v2, 4, {s(sT0)}
    ds_read_b128 {v(XP, 4)}, v144
    s_lshl_b32 {s(sT0)}, {s(sT1)}, 6
    s_add_u32 {s(sT0)}, {s(sT0)}, {s(sT3)}
    s_lshl_b32 {s(sT0)}, {s(sT0)}, 1
    s_add_u32 {s(sT0)}, {s(sT0)}, {W_HF}
    v_lshrrev_b32 v145, 2, v0
    v_lshlrev_b32 v146, 11, v145
    v_and_b32 v147, 3, v0
    v_lshl_add_u32 v146, v147, 4, v146
    v_add_u32 v146, {s(sT0)}, v146
    v_cmp_gt_u32 {P(sM1)}, v0, 31
    s_and_b32 {s(sT0)}, s2, 3
    s_lshl_b32 {s(sT0)}, {s(sT0)}, 6
    s_add_u32 {s(sT0)}, {s(sT0)}, {s(sT1)}
    s_bfe_u32 {s(sT1)}, s2, 0x10002
    s_lshl3_add_u32 {s(sT0)}, {s(sT1)}, {s(sT0)}
    s_bfe_u32 {s(sT1)}, s2, 0x10003
    s_lshl2_add_u32 {s(sT0)}, {s(sT1)}, {s(sT0)}
    v_lshl_add_u32 v148, v147, 4, {s(sT0)}
    s_lshl_b32 {s(sT0)}, s2, 11
    s_add_u32 {s(sT0)}, {s(sT0)}, {W_HF}
    v_lshlrev_b32 v147, 4, v147
    v_lshl_add_u32 v147, v145, 7, v147
    v_add_u32 v147, {s(sT0)}, v147
    v_lshlrev_b32 v149, 3, v0
    v_add_u32 v149, {L_FF}, v149
    s_mov_b32 {s(sT3)}, 0xffff0000
    """)
    build_sel(150)
    I('s_waitcnt lgkmcnt(0)')
    diag_stage(8, dst, younger)
    I(f'v_cndmask_b32 {v(REC)}, {v(ACC0)}, {v(ACC0 + 2)}, {P(sM1)}')
    I(f'v_cndmask_b32 {v(REC + 1)}, {v(ACC0 + 1)}, {v(ACC0 + 3)}, {P(sM1)}')
    I(f'global_store_dwordx4 v146, {v(REC, 4)}, {P(pWS)} sc1')
    I(f'global_load_dword {v(B1R)}, v148, {P(pB1)}')
    TS(2)
    I(f's_mov_b32 {s(sCNT)}, {args.spin}')
    if args.ffn:
        I('s_waitcnt vmcnt(2)')
        flag_add(C_ACK)
        I('s_waitcnt vmcnt(0)')
    else:
        flag_wait(*((C_ISS, 4) if args.fr else (F_H2, 2)))
    a.label('L_TF')
    I(f'global_load_dwordx4 {v(HFG, 4)}, v147, {P(pWS)} sc1')
    I(f's_sub_u32 {s(sCNT)}, {s(sCNT)}, 1')
    I('s_waitcnt vmcnt(0)')
    I(f'v_cmp_ne_u32 vcc, {v(HFG + 2)}, {v(REC + 2)}')
    a.B('s_cbranch_scc1 L_TF_go')
    a.B('s_cbranch_vccnz L_TF')
    a.label('L_TF_go')
    TSN()
    row_allreduce('v_add_f32', [HFG, HFG + 1], steps=(4, 8))
    I(f'''
    v_permlane32_swap_b32 {v(HFG)}, {v(HFG + 1)}
    v_add_f32 {v(HFG)}, {v(HFG)}, {v(HFG + 1)}
    v_mov_b32 {v(HFG + 1)}, {v(HFG)}
    v_permlane16_swap_b32 {v(HFG)}, {v(HFG + 1)}
    v_lshlrev_b32 v16, 16, {v(B1R)}
    v_add_f32 {v(HFG)}, {v(HFG)}, {v(HFG + 1)}
    v_and_b32 v17, {s(sT3)}, {v(B1R)}
    v_cvt_pk_bf16_f32 {v(HFG)}, {v(HFG)}, {v(HFG)}
    v_cndmask_b32 v16, v16, v17, {P(sM1)}
    v_and_b32 {v(HFG)}, {s(sT3)}, {v(HFG)}
    v_add_f32 {v(HFG)}, {v(HFG)}, v16
    v_cvt_pk_bf16_f32 {v(HFG)}, {v(HFG)}, {v(HFG)}
    v_and_b32 {v(HFG)}, {s(sT3)}, {v(HFG)}
    v_max_f32 {v(HFG)}, 0, {v(HFG)}
    v_mul_f32 {v(HFG)}, {v(HFG)}, {v(HFG)}
    v_cvt_pk_bf16_f32 {v(HFG)}, {v(HFG)}, {v(HFG)}
    v_mov_b32 {v(HFG + 1)}, {v(HFG)}
    v_permlane32_swap_b32 {v(HFG)}, {v(HFG + 1)}
    ''')
    for g_ in range(4):
        for i in range(2):
            I(f'v_mov_b32 {v(HFG + 2 + i)}, {v(HFG + i)} row_newbcast:{g_} row_mask:{1 << g_}')
    I(f'ds_write_b64 v149, {v(HFG + 2, 2)}')
    TS(4)


if not args.ffn:
    I('s_cmp_ge_u32 s2, 224')
    I('s_cbranch_scc1 L_PV1')
    flag_wait(F_F0, 1)
    ffn_w1(W1T)
    ffn_rest(W1T, 0)
I('s_branch L_PV1')

a.label('L_F2')
I(f'''
v_mov_b32 v16, 0
v_mov_b32 v17, 0
v_mov_b32 v18, 0
v_mov_b32 v19, 0
ds_write_b128 {v(VFL)}, v[16:19]
ds_write_b128 {v(VFL)}, v[16:19] offset:16
ds_write_b128 {v(VFL)}, v[16:19] offset:32
ds_write_b128 {v(VFL)}, v[16:19] offset:48
v_lshlrev_b32 v20, 2, v1
v_add_u32 v20, {L_MA}, v20
v_mov_b32 v21, 0xff800000
ds_write_b32 v20, v21
''')
I('v_and_b32 v5, 3, v0')
I('v_lshlrev_b32 v5, 21, v5')
if args.probe:
    PR = [50, 51, 52, 53, 54, 55, 56, 57]
    for r_ in PR:
        I(f's_mov_b32 {s(r_)}, 0x7fc1a5a5')
    I(f's_lshl_b32 {s(sT0)}, {s(sS)}, 17')
    I(f's_lshl_b32 {s(sT1)}, {s(sGA)}, 7')
    I(f's_add_u32 {s(sT0)}, {s(sT0)}, {s(sT1)}')
I('s_waitcnt lgkmcnt(0)')
if args.probe:
    I(f's_add_u32 {s(sB)}, {s(pCKV)}, {s(sT0)}')
    I(f's_addc_u32 {s(sB + 1)}, {s(pCKV + 1)}, 0')
    for k, pg in enumerate((0, 2, 3, 1, 6, 4, 5, 7)):
        I(f's_load_dword {s(PR[pg])}, {P(sB)}, {pg * 4096}')
    I('s_waitcnt lgkmcnt(4)')
    I(f's_mov_b32 {s(TSB + 28)}, 0')
    for pg in (0, 2, 3, 1, 6, 4, 5, 7):
        I(f's_cmp_lg_u32 {s(PR[pg])}, 0x7fc1a5a5')
        I(f'{"s_subb_u32" if pg & 2 else "s_addc_u32"} {s(TSB + 28)}, {s(TSB + 28)}, 0')
    TS(13)
    I('s_waitcnt lgkmcnt(0)')
load_epoch()
if args.ee:
    I('s_waitcnt lgkmcnt(0)')
I('s_barrier')
if not args.nopt:
    I('s_mov_b64 exec, 7')
    I(f'global_load_dword v22, v5, {P(pWS)} offset:256')
    I('s_mov_b64 exec, 1')
    I(f'global_load_dword v23, v16, {P(pOUT)}')
    I('s_mov_b64 exec, -1')
epoch_ready()


def touch(base_code, offsets):
    I(base_code)
    I(f's_add_u32 {s(sB)}, {s(pWS)}, {s(sT0)}')
    I(f's_addc_u32 {s(sB + 1)}, {s(pWS + 1)}, 0')
    for o in offsets:
        I(f's_load_dword s61, {P(sB)}, {o}')


if args.pt & 8:
    touch(f's_lshr_b32 {s(sT0)}, s2, 4\ns_lshl_b32 {s(sT0)}, {s(sT0)}, 8\ns_and_b32 {s(sT1)}, s2, 15\ns_add_u32 {s(sT0)}, {s(sT0)}, {s(sT1)}\ns_lshl_b32 {s(sT0)}, {s(sT0)}, 7',
          [W_HF + p_ * 2048 for p_ in range(16)])
if args.pt & 4:
    touch(f's_lshl_b32 {s(sT0)}, s2, 12\ns_add_u32 {s(sT0)}, {s(sT0)}, {W_H5}', [z_ * 128 for z_ in range(32)])
if args.pt & 16:
    touch(f's_lshl_b32 {s(sT0)}, s2, 14\ns_add_u32 {s(sT0)}, {s(sT0)}, {W_H3}', [z_ * 128 for z_ in range(128)])
if args.warm & 2:
    flag_wait(F_F0, 1)
    I('s_mov_b64 exec, 0')
    I('s_branch L_PVC')
    a.label('L_PVC_back')
    I('s_mov_b64 exec, -1')


a.label('L_QG')
G2, LA = 64, 56
I(f'''
s_lshr_b32 {s(sT1)}, {s(sWV)}, 1
s_lshl1_add_u32 {s(sT0)}, {s(sGA)}, {s(sT1)}
s_lshl_b32 {s(sT0)}, {s(sT0)}, 13
s_add_u32 {s(sT0)}, {s(sT0)}, {W_H2}
v_add_u32 v8, {s(sT0)}, v3
v_add_u32 v9, 0x1000, v8
v_and_b32 v10, 7, v0
v_add_u32 v11, 8, v10
v_lshlrev_b32 v6, 4, v10
v_lshl_add_u32 v6, v0, 8, v6
s_lshl_b32 {s(sT1)}, {s(sT1)}, 7
s_add_u32 {s(sT1)}, {s(sT1)}, {L_QA}
v_add_u32 {v(LA)}, {s(sT1)}, v6
s_mul_i32 {s(sM3)}, {s(sEP)}, {(HASH * 8) & 0xffffffff}
''')
for hd in range(1, 8):
    I(f'v_xor_b32 {v(LA + hd)}, {16 * hd}, {v(LA)}')
tr_addr()
pv_setup()
I('s_setprio 1')
if args.qa:
    flag_wait(C_ISS, 4)
flag_wait(F_H2, 1 + args.h2)
assert not args.hint2
if args.hint2:
    I(f's_cmp_eq_u32 {s(sWV)}, 0')
    I('s_cbranch_scc1 L_QG_w0')
    I(f's_xor_b32 {s(sT0)}, {s(sY)}, 16')
    I(f's_lshl_b32 {s(sT0)}, {s(sT0)}, 11')
    I(f's_add_u32 {s(sT0)}, {s(sT0)}, {W_H2}')
    I(f's_add_u32 {s(sB)}, {s(pWS)}, {s(sT0)}')
    I(f's_addc_u32 {s(sB + 1)}, {s(pWS + 1)}, 0')
    scalar_poll([k * 256 + 252 for k in range(8)])
    flag_add(F_HINT)
    I('s_branch L_QG_hd')
    a.label('L_QG_w0')
    flag_wait(F_HINT, 1)
    a.label('L_QG_hd')
TS(10)


def qa_loads():
    for k in range(8):
        I(f'global_load_dwordx4 {v(G2 + 4 * k, 4)}, {v(8 + (k >> 2))}, {P(pWS)} offset:{(k & 3) * 1024} sc1')


qa_loads()
for i in range(args.pre):
    tr_slot(i)
I(f's_mov_b32 {s(sCNT)}, {args.spin}')
a.label('L_QG_chk')
for k in range(8):
    d0, d1 = v(G2 + 4 * k), v(G2 + 4 * k + 1)
    I(f's_waitcnt vmcnt({7 - k})')
    I(f'v_and_b32 v6, {s(sK1)}, {d0}')
    I(f'v_and_b32 v7, {s(sK1)}, {d1}')
    I(f'v_xor_b32 {d0}, v6, {d0}')
    I(f'v_xor_b32 {d1}, v7, {d1}')
    I(f'ds_write_b128 {v(LA + k)}, {v(G2 + 4 * k, 4)}')
    I(f'v_lshl_add_u32 v24, v6, v10, {"0" if k == 0 else "v24"}')
    I('v_lshl_add_u32 v24, v7, v11, v24')
    I(f'v_add3_u32 v24, {d0}, {d1}, v24')
for st in OCT:
    I(f'v_add_u32 v24, v24, v24 {st}')
I(f's_sub_u32 {s(sCNT)}, {s(sCNT)}, 1')
I(f'v_cmp_ne_u32 vcc, {s(sM3)}, v24')
a.B('s_cbranch_scc1 L_QG_go')
a.B('s_cbranch_vccz L_QG_go')
I('s_waitcnt lgkmcnt(0)')
I('s_mov_b64 exec, vcc')
qa_loads()
I('s_branch L_QG_chk')
a.label('L_QG_go')
flag_add(C_QA)
I('s_setprio 0')
TS(11)
TSN()
a.label('L_PVs')
for i in range(args.pre, 4):
    tr_slot(i)

a.label('L_PV')
if args.ffn:
    I(f's_cmp_eq_u32 {s(sWV)}, 3')
    I(f's_cselect_b32 {s(sR)}, s2, 224')
    I(f's_cmp_ge_u32 {s(sR)}, 224')
    I('s_cbranch_scc1 L_PV_now1')
    ffn_w1(W1T)
    a.label('L_PV_now1')
if not args.bm3:
    TS(6)
    I('s_barrier')
if args.pp:
    I(f's_setprio {args.pp}')
I('s_barrier')
a.label('L_PVC')
for u in range(4):
    I(f'ds_read_b128 {v(PF + 4 * u, 4)}, {v(48 + u)}')
LW, MW = 32, 36
I(f'ds_read_b128 {v(LW, 4)}, v43')
I(f'ds_read_b128 {v(MW, 4)}, v42')
TS(7)
O = 16
cvt = lambda k: [f'v_cvt_pk_bf16_f32 {v(O + 4 * r + k)}, {v(ACC + 8 * k + r)}, {v(ACC + 8 * k + 4 + r)}' for r in range(4)]
R4 = range(4)
fill = {}


def place(first, ops):
    for i, t_ in enumerate(ops):
        fill.setdefault(first + i // 2, []).append(t_)


w0 = [f'v_add_f32 {v(LW + r)}, {v(LW + r)}, {v(LW + r)} row_ror:{st}' for st in (8, 4, 2, 1) for r in R4]
w0[0] = 's_waitcnt lgkmcnt(0)\n' + w0[0]
w1 = [f'v_cvt_f16_f32 {v(LW + r)}, {v(LW + r)}' for r in R4]
w1 += [f'v_and_or_b32 {v(LW + r)}, {v(LW + r)}, {s(sT0)}, {v(MW + r)}' for r in R4]
w1 += [f'v_lshrrev_b32 {v(LW + r)}, v1, {v(LW + r)}' for r in R4]
w2 = cvt(0) + [f'v_and_b32 {v(O + 4 * r)}, {s(sK2)}, {v(O + 4 * r)}' for r in R4]
w3 = cvt(1) + [f'v_bfi_b32 {v(O + 4 * r + 1)}, {s(sK1)}, {v(LW + r)}, {v(O + 4 * r + 1)}' for r in R4]
w3 += [f'v_add_u32 {v(CK + r)}, {v(O + 4 * r)}, {v(O + 4 * r + 1)}' for r in R4]
w3 += [f'v_add_u32 {v(CK + r)}, {v(CK + r)}, {v(CK + r)} row_ror:{st}' for st in (8, 4, 2, 1) for r in R4]
allw = w0 + w2 + w1 + w3
place(2, allw[:60])
I(f's_mov_b32 {s(sT0)}, 0xffff')
i = 0
for k in range(4):
    for u in range(4):
        for T in (2 * k, 2 * k + 1):
            if k == 0 and T == 0 and u < 2:
                I(f's_waitcnt lgkmcnt({5 - u})')
            I(f'{MFMA} {v(ACC + 4 * T, 4)}, {v(PF + 4 * u, 4)}, {v(BF + (u * 8 + T) * 4, 4)}, {"0" if u == 0 else v(ACC + 4 * T, 4)}')
            for t_ in fill.get(i, []):
                I(t_)
            i += 1
for t_ in allw[60:] + cvt(2):
    I(t_)
for r in range(4):
    I(f'v_sub_u32 {v(CK + r)}, {s(sK0)}, {v(CK + r)}')
    I(cvt(3)[r])
    I(f'v_lshrrev_b32 {v(CK + r)}, v1, {v(CK + r)}')
    I(f'v_and_or_b32 {v(O + 4 * r)}, {v(CK + r)}, {s(sK1)}, {v(O + 4 * r)}')
    if args.warm & 2 and r == 0:
        a.B('s_cbranch_execz L_PVC_back')
    I(f'global_store_dwordx4 {v(52 + r)}, {v(O + 4 * r, 4)}, {P(pWS)} {args.sf.replace("+", " ")}')
flag_add(C_ST)
TS(8)
if args.ffn:
    I('s_setprio 0')
    I(f's_cmp_ge_u32 {s(sR)}, 224')
    I('s_cbranch_scc1 L_PV_noffn')
    ffn_rest(W1T, 4)
    I('s_branch L_PV_end')
    a.label('L_PV_noffn')
I('s_waitcnt vmcnt(0)')
flag_add(C_ACK)
TS(9)
a.label('L_PV_end')
I('s_waitcnt lgkmcnt(0)')
ts_dump()
I('s_endpgm')

a.label('L_S')
AF, QB, WUV, SA, MK, WO0, QAD = 128, 96, 48, 40, 36, 64, 80
WOR, PL, AW, AT2 = 128, 176, 208, 240
XR2, B2R, OA, W2T, HH = 46, 47, 104, 88, 124
sQ, sDL = sK1, sK2
WOq = lambda q: WO0 + 4 * q if q < 4 else WOR + 4 * (q - 4)
KS = {0: 12, 1: 16, 2: 19}[args.kmap]
if args.kmap == 0:
    I(f's_lshl_b32 {s(sT0)}, {s(sS)}, 17')
elif args.kmap == 1:
    I(f's_and_b32 {s(sT0)}, {s(sS)}, 15')
    I(f's_lshl_b32 {s(sT0)}, {s(sT0)}, 12')
    I(f's_lshl_b32 {s(sT1)}, {s(sX)}, 21')
    I(f's_add_u32 {s(sT0)}, {s(sT0)}, {s(sT1)}')
else:
    I(f's_lshl_b32 {s(sT0)}, {s(sS)}, 12')
I(f"""
s_lshl_b32 {s(sT1)}, {s(sW)}, {KS + 3}
s_add_u32 {s(sT0)}, {s(sT0)}, {s(sT1)}
s_lshl_b32 {s(sT1)}, {s(sW)}, 8
s_add_u32 {s(sT0)}, {s(sT0)}, {s(sT1)}
v_lshlrev_b32 v4, 1, v2
v_xor_b32 v4, v4, v1
v_lshlrev_b32 v4, 4, v4
v_lshl_add_u32 v4, v2, 10, v4
v_add_u32 v4, {s(sT0)}, v4
v_xor_b32 v26, 0x80, v4
v_add_u32 v26, {1 << KS}, v26
s_mul_i32 {s(sT1)}, {s(sW)}, {32768 + 8192}
s_mov_b32 m0, {s(sT1)}
s_mov_b32 {s(sT2)}, {2 << KS}
s_mov_b32 {s(sQ)}, {s(sW)}
s_lshr_b32 {s(sHT)}, {s(sY)}, 3
s_lshl2_add_u32 {s(sHT)}, {s(sX)}, {s(sHT)}
s_and_b32 {s(sCI)}, {s(sY)}, 3
s_bfe_u32 {s(sDI)}, {s(sY)}, 0x10002
v_and_b32 v5, 7, v1
v_lshlrev_b32 v5, 1, v5
v_xor_b32 v5, v5, v2
v_lshlrev_b32 v5, 4, v5
v_lshl_add_u32 v5, v1, 8, v5
s_lshl_b32 {s(sT1)}, {s(sW)}, 13
v_add_u32 v5, {s(sT1)}, v5
v_lshl_add_u32 v27, {s(sW)}, 2, {v(VFL)}
""")
I(f"""
s_lshr_b32 {s(sT0)}, {s(sW)}, 1
s_lshl1_add_u32 {s(sT0)}, {s(sCI)}, {s(sT0)}
s_lshl_b32 {s(sT0)}, {s(sT0)}, 19
s_and_b32 {s(sT3)}, {s(sW)}, 1
s_lshl_b32 {s(sT3)}, {s(sT3)}, 16
s_add_u32 {s(sT0)}, {s(sT0)}, {s(sT3)}
s_lshl1_add_u32 {s(sT3)}, {s(sHT)}, {s(sDI)}
s_lshl_b32 {s(sT1)}, {s(sT3)}, 7
s_add_u32 {s(sT0)}, {s(sT0)}, {s(sT1)}
v_lshrrev_b32 v8, 3, v0
v_lshlrev_b32 v8, 13, v8
v_and_b32 v9, 7, v0
v_lshl_add_u32 v8, v9, 4, v8
v_add_u32 v8, {s(sT0)}, v8
""")
I('s_waitcnt lgkmcnt(0)')
load_epoch()
if args.ee:
    I('s_waitcnt lgkmcnt(0)')
I('s_barrier')
I(f"""
s_lshl_b32 {s(sT0)}, {s(sT3)}, 16
s_lshl_b32 {s(sT1)}, {s(sW)}, 8
s_add_u32 {s(sT0)}, {s(sT0)}, {s(sT1)}
v_lshlrev_b32 v34, 12, v2
v_lshl_add_u32 v34, v1, 4, v34
v_add_u32 v34, {s(sT0)}, v34
""")
for b in range(4):
    I(f's_add_u32 {s(sT0)}, {s(sCI)}, {b}')
    I(f's_and_b32 {s(sT0)}, {s(sT0)}, 3')
    I(f's_lshl_b32 {s(sT0)}, {s(sT0)}, 14')
    I(f'v_add_u32 {v(28 + b)}, {s(sT0)}, v34')
build_masks(MK, 9, 10)
TS(1)


def s_setup():
    I(f"""
    v_lshlrev_b32 v10, 4, v1
    v_add_u32 v10, {L_MX}, v10
    s_lshl_b32 {s(sT0)}, {s(sW)}, 2
    v_add_u32 v9, {s(sT0)}, v10
    s_lshl_b32 {s(sT0)}, {s(sW)}, 10
    s_add_u32 {s(sT0)}, {s(sT0)}, {L_P}
    v_add_u32 v11, {s(sT0)}, v3
    v_lshlrev_b32 v33, 2, v1
    v_add_u32 v33, {L_MF}, v33
    s_lshl_b32 {s(sT0)}, {s(sW)}, 8
    s_add_u32 {s(sT0)}, {s(sT0)}, {L_LS}
    v_lshl_add_u32 v32, v0, 2, {s(sT0)}
    v_xor_b32 v6, v1, v2
    v_lshlrev_b32 v6, 4, v6
    v_lshl_add_u32 v6, v2, 8, v6
    """)
    for i in range(4):
        I(f's_add_u32 {s(sT0)}, {s(sW)}, {i}')
        I(f's_and_b32 {s(sT0)}, {s(sT0)}, 3')
        I(f's_lshl_b32 {s(sT0)}, {s(sT0)}, 12')
        I(f's_add_u32 {s(sT0)}, {s(sT0)}, {L_QA}')
        I(f'v_add_u32 {v(QAD + 2 * i)}, {s(sT0)}, v6')
        I(f'v_xor_b32 {v(QAD + 2 * i + 1)}, 64, {v(QAD + 2 * i)}')
    I(f"""
    s_bfe_u32 {s(sT0)}, s2, 0x20004
    s_and_b32 {s(sT1)}, s2, 3
    s_lshl2_add_u32 {s(sT0)}, {s(sT0)}, {s(sT1)}
    s_lshl_b32 {s(sT0)}, {s(sT0)}, 6
    s_bfe_u32 {s(sT1)}, s2, 0x10002
    s_lshl3_add_u32 {s(sT0)}, {s(sT1)}, {s(sT0)}
    s_bfe_u32 {s(sT1)}, s2, 0x10003
    s_lshl2_add_u32 {s(sT0)}, {s(sT1)}, {s(sT0)}
    v_and_b32 v35, 3, v0
    v_lshl_add_u32 v12, v35, 4, {s(sT0)}
    s_mov_b32 {s(sK0)}, 0x20000
    s_lshr_b32 {s(sT1)}, s2, 6
    s_lshl_b32 {s(sT1)}, {s(sT1)}, 10
    s_add_u32 {s(sT0)}, {s(sT0)}, {s(sT1)}
    s_cmp_lt_u32 s2, 224
    s_cselect_b32 {s(sR)}, -1, 0
    s_cselect_b32 {s(sT1)}, 0, 512
    s_sub_u32 {s(sT0)}, {s(sT0)}, {s(sT1)}
    s_lshl1_add_u32 {s(sT0)}, {s(sT0)}, {s(sW)}
    s_lshl_b32 {s(sT0)}, {s(sT0)}, 8
    v_lshlrev_b32 v34, 13, v2
    v_lshl_add_u32 v34, v1, 4, v34
    v_add_u32 v34, {s(sT0)}, v34
    """)


def dma_row(r):
    k = r & 7
    va = 'v26' if k & 1 else 'v4'
    I(f'global_load_lds_dwordx4 {va}, {P(pCKV)}{NT}')
    if r < 30:
        if k == 5:
            I(f's_lshl_b32 {s(sDL)}, {s(sQ)}, 8')
            I(f's_add_u32 {s(sQ)}, {s(sQ)}, 1')
            I(f's_and_b32 {s(sQ)}, {s(sQ)}, 3')
            I(f's_lshl_b32 {s(sT0)}, {s(sQ)}, 8')
            I(f's_sub_u32 {s(sDL)}, {s(sT0)}, {s(sDL)}')
            I(f's_sub_u32 {s(sDL)}, {s(sDL)}, {6 << KS}')
        I(f'v_add_u32 {va}, {s(sDL if k >= 6 else sT2)}, {va}')
    if r < 31:
        if k == 7:
            I(f's_lshl2_add_u32 {s(sT0)}, {s(sQ)}, {s(sW)}')
            I(f's_lshl_b32 m0, {s(sT0)}, 13')
        else:
            I('s_add_u32 m0, m0, 0x400')
    if r == args.qa and r:
        flag_add(C_ISS)
    if r == args.hr and r:
        flag_add(C_ER)


def stage_addr(i):
    I(f's_add_u32 {s(sT1)}, {s(sW)}, {i}')
    I(f's_and_b32 {s(sT1)}, {s(sT1)}, 3')
    I(f's_lshl_b32 {s(sT1)}, {s(sT1)}, 15')
    I(f'v_add_u32 v16, {s(sT1)}, v5')
    for t in range(1, 4):
        I(f'v_xor_b32 {v(16 + t)}, {64 * t}, v16')


def stage_reads(i):
    for t in range(4):
        for tau in range(2):
            I(f'ds_read_b128 {v(AF + 32 * i + 8 * t + 4 * tau, 4)}, {v(16 + t)} offset:{4096 * tau}')


tail = []
for i in range(4):
    tail.append(f'global_load_dwordx4 {v(WO0 + 4 * i, 4)}, v28, {P(pWO)} offset:{1024 * i}{NT if args.nto else ""}')
for i in range(4):
    tail.append(f'global_load_dwordx4 {v(WUV + 4 * i, 4)}, v8, {P(pWUV)}{NT}' + (f'\nv_add_u32 v8, {s(sK0)}, v8' if i < 3 else ''))
for i in range(2):
    tail.append(f'global_load_dwordx4 {v(W2T + 4 * i, 4)}, v34, {P(pW2)} offset:{1024 * i}{NT}')
w2_loads = []
if args.ffn:
    w2_loads = tail[8:10]
    tail = tail[:8]
    args.ns = min(args.ns, 4) if args.ns == 6 else args.ns
wuv_loads = []
if args.wuv:
    assert args.tord == 1
    wuv_loads = tail[4:8]
    tail = tail[:4] + tail[8:]
elif args.tord == 1:
    tail = tail[:4] + tail[8:10] + tail[4:8]
if args.tord == 2:
    tail = tail[4:8] + tail[8:10] + tail[:4]
assert args.nt1 + args.ns + args.ne <= len(tail)

depth = lambda r: args.d1 if r < args.k1 else (args.d2 if r < args.k2 else args.d3)
for r in range(args.d1):
    dma_row(r)
s_setup()
I(f'global_load_dword v6, v12, {P(pX)}')
I(f'global_load_dword v7, v12, {P(pB2)}')
if args.warm & 1:
    I('s_mov_b64 exec, 0')
    I('s_branch L_SM_nb')
    a.label('L_SM_back')
    I('s_mov_b64 exec, -1')
I('s_mov_b64 vcc, -1')
stg = 0
for r in range(args.d1, 32):
    if args.tpos <= r < args.tpos + args.ne:
        I(tail.pop(0))
    if args.wuv == 2 and args.k1 <= r < args.k1 + 4:
        I(wuv_loads.pop(0))
    dma_row(r)
    d = depth(r)
    if args.dyn and r >= args.k1 and r < 31:
        lab = a.newlabel('L_dy')
        a.B(f's_cbranch_vccz {lab}')
        I(f'ds_read_b32 {v(VFT)}, {v(VFL)} offset:{4 * F_H2}')
        I(f's_waitcnt vmcnt({args.dyn}) lgkmcnt(0)')
        I(f'v_cmp_eq_u32 vcc, 0, {v(VFT)}')
        a.label(lab)
    if r + 1 > d and r < 31:
        I(f's_waitcnt vmcnt({d})')
        if r + 1 - d >= 8 * (stg + 1):
            flag_add(K0, 27)
            stage_addr(stg)
            stage_reads(stg)
            stg += 1
TS(2)
while stg < (3 if args.p2 < 0 else 2):
    stage_addr(stg)
    I(f's_waitcnt vmcnt({24 - 8 * stg})')
    flag_add(K0, 27)
    stage_reads(stg)
    stg += 1
for _ in range(args.nt1):
    I(tail.pop(0))
if args.qa == 32:
    flag_add(C_ISS)
stage_addr(3 if args.p2 < 0 else 2)
assert args.p2 < 0 or (stg == 2 and args.p2 <= 8 and args.p2 <= args.last)
epoch_ready()
I('s_setprio 2')
flag_wait(C_QA, 2)
TS(4)
LOOK = 4


def qa_read(t):
    I(f'ds_read_b128 {v(QB + 4 * (t & 7), 4)}, {v(QAD + 2 * (t >> 2) + (t & 1))} offset:{1024 * (t & 3)}')


def wo_rest():
    for q in range(4, 16):
        I(f'global_load_dwordx4 {v(WOq(q), 4)}, {v(28 + (q >> 2))}, {P(pWO)} offset:{1024 * (q & 3)}{NTS}')


def s_mfma(t):
    for tau in range(2):
        I(f'{MFMA} {v(SA + 4 * tau, 4)}, {v(AF + 8 * t + 4 * tau, 4)}, {v(QB + 4 * (t & 7), 4)}, {"0" if t == 0 else v(SA + 4 * tau, 4)}')


ldsq = []


def pickup(i):
    I(f's_waitcnt vmcnt({8 * (3 - i) + args.nt1})')
    stage_reads(i)
    ldsq.extend([('A', 4 * i + t) for t in range(4) for _ in range(2)])
    if i < 3 or not args.bm3:
        flag_add(K0, 27)
        ldsq.append(('F', i))
    if i == 2:
        stage_addr(3)
    else:
        TS(3)


waited = -1
for t in range(LOOK):
    qa_read(t)
    ldsq.append(('Q', t))
for t in range(16):
    if t == args.p2:
        pickup(2)
    if t == args.last:
        pickup(3)
    if t + LOOK < 16:
        qa_read(t + LOOK)
        ldsq.append(('Q', t + LOOK))
    need_ = max(i for i, o in enumerate(ldsq) if o in (('Q', t), ('A', t)))
    if need_ > waited:
        younger = min(15, len(ldsq) - 1 - need_)
        I(f's_waitcnt lgkmcnt({younger})')
        waited = len(ldsq) - 1 - younger
    s_mfma(t)
    if t >= 12:
        for _ in range((args.ns + 3 - (t - 12)) // 4):
            if tail:
                I(tail.pop(0))
TS(5)
a.label('L_SM')
I(f'''
s_mov_b32 {s(sT3)}, 0xffff0000
s_mov_b32 {s(sT0)}, 0x3db504f3
s_mov_b32 {s(sT1)}, 0x3fb8aa3b
v_max3_f32 v24, {v(SA)}, {v(SA + 1)}, {v(SA + 2)}
v_max3_f32 v25, {v(SA + 4)}, {v(SA + 5)}, {v(SA + 6)}
v_max3_f32 v24, v24, {v(SA + 3)}, {v(SA + 7)}
v_max_f32 v24, v24, v25
''')
if args.dsmax:
    I(f'ds_max_f32 v33, v24 offset:{L_MA - L_MF}')
else:
    cross_rows_allreduce('v_max_f32', 24, 25)
    I('ds_write_b32 v9, v24')
if args.mimic:
    round_pairs(SA, 8, 16)
I('s_waitcnt lgkmcnt(0)')
I('s_barrier')
a.label('L_SM_nb')
I(f'ds_read_b32 v24, v33 offset:{L_MA - L_MF}' if args.dsmax else 'ds_read_b128 v[20:23], v10')
for i in range(8):
    I(f'v_mul_f32 {v(SA + i)}, {s(sT0)}, {v(SA + i)}')
if args.mimic:
    round_pairs(SA, 8, 16)
I('s_waitcnt lgkmcnt(0)')
if not args.dsmax:
    I('v_max3_f32 v24, v20, v21, v22')
    I('v_max_f32 v24, v24, v23')
if args.mimic:
    I('v_cvt_pk_bf16_f32 v24, v24, v24')
    I(f'v_and_b32 v24, {s(sT3)}, v24')
I(f'v_mul_f32 v24, {s(sT0)}, v24')
assert args.mimic
I('v_cvt_pk_bf16_f32 v24, v24, v24')
I(f'v_and_b32 v25, {s(sT3)}, v24')
I(f'v_mul_f32 v24, {s(sT1)}, v25')
I('ds_write_b32 v33, v25')
for i in range(8):
    I(f'v_fma_f32 {v(SA + i)}, {v(SA + i)}, {s(sT1)}, -v24')
for i in range(8):
    I(f'v_exp_f32 {v(SA + i)}, {v(SA + i)}')
for i in range(4):
    I(f'v_cvt_pk_bf16_f32 {v(16 + i)}, {v(SA + 2 * i)}, {v(SA + 2 * i + 1)}')
I('ds_write_b128 v11, v[16:19]')
I(f's_mov_b32 {s(sT0)}, 0x3f803f80')
I(f'v_dot2_f32_bf16 v25, v16, {s(sT0)}, 0')
for i in range(1, 4):
    I(f'v_dot2_f32_bf16 v25, {v(16 + i)}, {s(sT0)}, v25')
I('ds_write_b32 v32, v25')
if args.warm & 1:
    a.B('s_cbranch_execz L_SM_back')
I('s_waitcnt lgkmcnt(0)')
I('s_barrier')
I('s_setprio 0')
TS(6)
I(f'v_mov_b32 {v(XR2)}, v6')
I(f'v_mov_b32 {v(B2R)}, v7')
for _ in range(args.nb):
    if tail:
        I(tail.pop(0))
if args.wor == 1:
    wo_rest()
I(f'''
v_lshlrev_b32 v10, 3, v0
v_add_u32 v10, {L_FF}, v10
s_lshl2_add_u32 {s(sT0)}, {s(sHT)}, {s(sCI)}
s_lshl2_add_u32 {s(sT0)}, {s(sT0)}, {s(sW)}
s_lshl_b32 {s(sT0)}, {s(sT0)}, 13
s_add_u32 {s(sT0)}, {s(sT0)}, {W_H3}
v_lshlrev_b32 v4, 11, v2
v_lshl_add_u32 v4, v1, 4, v4
v_add_u32 v4, {s(sT0)}, v4
s_mul_i32 {s(sK1)}, {s(sEP)}, {(HASH * 8) & 0xffffffff}
s_mov_b32 {s(sK2)}, {EMB}
s_lshl_b32 {s(sT0)}, {s(sW)}, 2
s_add_u32 {s(sT0)}, {s(sT0)}, {L_MX}
v_mov_b32 v7, {s(sT0)}
v_mov_b32 v45, {L_MX}
s_lshl_b32 {s(sT0)}, {s(sW)}, 18
s_lshl_b32 {s(sT1)}, s2, {6 + args.h5}
s_add_u32 {s(sT0)}, {s(sT0)}, {s(sT1)}
s_add_u32 {s(sT0)}, {s(sT0)}, {W_H5}
v_lshrrev_b32 v44, {2 + args.h5}, v0
v_lshlrev_b32 v44, {14 + args.h5}, v44
v_and_b32 v16, {7 if args.h5 else 3}, v0
v_lshl_add_u32 v44, v16, 4, v44
v_add_u32 v44, {s(sT0)}, v44
v_and_b32 v16, 1, v2
v_lshrrev_b32 v17, 1, v2
s_lshl_b32 {s(sT0)}, {s(sW)}, 9
s_add_u32 {s(sT1)}, {s(sT0)}, {L_CL}
v_add_u32 v40, {s(sT1)}, v3
s_add_u32 {s(sT1)}, {s(sT0)}, {L_CX}
v_and_b32 v42, 7, v0
v_lshlrev_b32 v42, 5, v42
v_lshl_add_u32 v42, v16, 4, v42
v_lshl_add_u32 v42, v17, 8, v42
v_add_u32 v42, {s(sT1)}, v42
s_lshl_b32 {s(sT0)}, {s(sW)}, 7
s_add_u32 {s(sT0)}, {s(sT0)}, {L_CL}
v_lshrrev_b32 v41, 3, v0
v_lshl_add_u32 v41, v41, 4, {s(sT0)}
v_lshl_add_u32 v41, v35, 2, v41
v_bfe_u32 v9, v0, 2, 1
v_lshl_add_u32 v41, v9, 10, v41
v_lshl_add_u32 v9, v9, 3, v45
v_lshrrev_b32 v43, 2, v1
v_add_u32 v43, {s(sCI)}, v43
v_and_b32 v43, 3, v43
v_lshlrev_b32 v43, 4, v43
v_lshl_add_u32 v43, v2, 2, v43
v_add_u32 v43, v43, v35
v_lshlrev_b32 v43, 2, v43
v_add_u32 v43, {L_CX}, v43
v_mov_b32 v33, {s(sEP)}
v_cmp_gt_u32 {P(sM1)}, v0, 31
v_and_b32 v16, 1, v0
v_cmp_eq_u32 {P(sM2)}, 1, v16
''')
if args.pfu:
    I(f'''
    s_lshl2_add_u32 {s(sT0)}, {s(sCI)}, {s(sW)}
    s_lshl_b32 {s(sT0)}, {s(sT0)}, 18
    s_xor_b32 {s(sT1)}, {s(sDI)}, 1
    s_lshl1_add_u32 {s(sT1)}, {s(sHT)}, {s(sT1)}
    s_lshl_b32 {s(sT1)}, {s(sT1)}, 7
    s_add_u32 {s(sT0)}, {s(sT0)}, {s(sT1)}
    v_lshl_add_u32 v11, v0, 13, {s(sT0)}
    ''')
    pf = f's_mov_b32 exec_hi, 0\nglobal_load_dword v126, v11, {P(pWUV)}{NT}\ns_mov_b64 exec, -1'
    tail = tail + [pf] if args.pfu == 1 else [pf] + tail
if tail or args.wor == 2:
    flag_wait(C_ST, 4)
while tail:
    I(tail.pop(0))
if args.wor == 2:
    wo_rest()
flag_wait(C_ACK if args.ew else C_ST, 4)
for q in range(4, 4 + args.wpre):
    I(f'global_load_dwordx4 {v(WOq(q), 4)}, {v(28 + (q >> 2))}, {P(pWO)} offset:{1024 * (q & 3)}{NTS}')
if args.dly:
    I(f's_sleep {args.dly}')
if args.gv:
    I(f's_waitcnt vmcnt({args.gv - 1})')
TS(8)
U = 96
nwo = 0


def gather(first):
    global nwo
    for q in range(8):
        I(f'global_load_dwordx4 {v(PL + 4 * q, 4)}, v4, {P(pWS)} offset:{q * 256} {args.lf.replace("+", " ")} ')
    n2 = len(w2_loads) if first else 0
    if first:
        for t_ in w2_loads:
            I(t_)
    n_ = 0
    for q in range(8):
        d0, d1 = v(PL + 4 * q), v(PL + 4 * q + 1)
        I(f's_waitcnt vmcnt({7 - q + n_ + n2})')
        if first and args.wor == 3:
            for _ in range(2 if q < 4 else 1):
                qq = 4 + n_ + args.wpre
                if qq > 15:
                    continue
                I(f'global_load_dwordx4 {v(WOq(qq), 4)}, {v(28 + (qq >> 2))}, {P(pWO)} offset:{1024 * (qq & 3)}{NTS}')
                n_ += 1
        I(f'v_and_b32 v19, {s(sK2)}, {d0}')
        I(f'v_and_b32 {v(U + q)}, {s(sK2)}, {d1}')
        I(f'v_xor_b32 {d0}, v19, {d0}')
        I(f'v_lshl_add_u32 v19, v19, v1, {d1}')
        I(f'v_xor_b32 {d1}, {v(U + q)}, {d1}')
        I(f'v_lshlrev_b32 {v(U + q)}, v1, {v(U + q)}')
        I(f'v_add3_u32 v32, {d0}, v19, {"0" if q == 0 else "v32"}')
    if first:
        nwo = n_


gather(True)
I(f's_mov_b32 {s(sCNT)}, {args.spin}')
a.label('L_T3_chk')
for k in range(4):
    I(f'v_or_b32 {v(20 + k)}, {v(U + k)}, {v(U + k)} row_ror:8 bank_mask:0x3')
I('v_add_u32 v32, v32, v32 row_ror:8')
for k in range(4):
    I(f'v_or_b32 {v(20 + k)}, {v(U + 4 + k)}, {v(U + 4 + k)} row_ror:8 bank_mask:0xc')
I('v_add_u32 v32, v32, v32 row_ror:4')
for k in range(2):
    I(f'v_or_b32 {v(24 + k)}, {v(20 + k)}, {v(20 + k)} row_shl:4 bank_mask:0x5')
for k in range(2):
    I(f'v_or_b32 {v(24 + k)}, {v(22 + k)}, {v(22 + k)} row_shr:4 bank_mask:0xa')
I('v_add_u32 v32, v32, v32 row_ror:2')
for k in range(2):
    I(f'v_or_b32 {v(24 + k)}, {v(24 + k)}, {v(24 + k)} quad_perm:[1,0,3,2]')
I('v_add_u32 v32, v32, v32 row_ror:1')
for k in range(2):
    I(f'v_or_b32 {v(24 + k)}, {v(24 + k)}, {v(24 + k)} quad_perm:[2,3,0,1]')
I(f'v_cmp_ne_u32 vcc, {s(sK1)}, v32')
I(f's_sub_u32 {s(sCNT)}, {s(sCNT)}, 1')
I(f'v_cndmask_b32 v5, v24, v25, {P(sM2)}')
a.B('s_cbranch_vccz L_T3_go')
a.B('s_cbranch_scc1 L_T3_go')
I('s_mov_b64 exec, vcc')
gather(False)
I('s_branch L_T3_chk')
a.label('L_T3_go')
I('s_mov_b64 exec, -1')
TS(7)
I(f's_mov_b32 {s(sT1)}, 0x3fb8aa3b')
I(f'v_and_b32 v6, {s(sT3)}, v5')
I('v_cvt_f32_f16 v21, v5')
I(f'v_mul_f32 v6, {s(sT1)}, v6')
I('v_mul_f32 v21, 0.5, v21')
I('v_max_f32 v18, v6, v6 row_ror:8')
row_allreduce('v_max_f32', [18], steps=(4, 1))
cross_rows_allreduce('v_max_f32', 18, 19)
I('''
v_sub_f32 v17, v6, v18
v_exp_f32 v17, v17
v_cvt_pk_bf16_f32 v16, v17, v17
v_mul_f32 v17, v17, v21
''')
TS(1)
red = [f'v_add_f32 v17, v17, v17 row_ror:{st}' for st in (8, 4, 2, 1)]
red += ['v_mov_b32 v19, v17', 'v_permlane16_swap_b32 v19, v17\nv_add_f32 v17, v17, v19\nv_mov_b32 v19, v17',
        'v_permlane32_swap_b32 v19, v17\nv_add_f32 v17, v17, v19', 'ds_write2_b32 v7, v18, v17 offset0:0 offset1:4']
QL = lambda q: 8 * (q >> 2) + 4 * ((q >> 1) & 1) + (q & 1)


def w_and(q):
    for r in range(4):
        I(f'v_and_b32 {v(AW + 4 * (q & 1) + r)}, v16, {v(MK + r)} row_newbcast:{QL(q)}')


w_and(0)
for q in range(8):
    if q < 7:
        w_and(q + 1)
    I(f'{MFMA} v[24:27], {v(AW + 4 * (q & 1), 4)}, {v(PL + 4 * q, 4)}, {"0" if q == 0 else "v[24:27]"}')
    if q < 4:
        I(red[q])
for t_ in red[4:]:
    I(t_)
I('s_mov_b32 exec_hi, 0')
I('ds_write_b128 v40, v[24:27]')
I('s_mov_b64 exec, -1')
I('s_waitcnt lgkmcnt(0)')
TS(9)
TSN(0)
I('s_barrier')
I('ds_read_b128 v[96:99], v45')
I('ds_read_b64 v[100:101], v9')
I('ds_read2st64_b32 v[108:109], v41 offset0:0 offset1:2')
I('ds_read_b64 v[102:103], v9 offset:16')
I(f'ds_read_b64 {v(HH, 2)}, v10')
I('''
s_waitcnt lgkmcnt(4)
v_max3_f32 v18, v96, v97, v98
v_max_f32 v18, v18, v99
s_waitcnt lgkmcnt(2)
v_sub_f32 v100, v100, v18
v_sub_f32 v101, v101, v18
v_exp_f32 v100, v100
v_exp_f32 v101, v101
v_mul_f32 v20, v100, v108
v_fmac_f32 v20, v101, v109
s_waitcnt lgkmcnt(0)
v_mul_f32 v18, v100, v102
v_add_f32 v21, v20, v20 row_shl:4 bank_mask:0x5
v_fmac_f32 v18, v101, v103
v_add_f32 v21, v20, v20 row_shr:4 bank_mask:0xa
v_cvt_pk_bf16_f32 v20, v21, v21
v_add_f32 v18, v18, v18 row_half_mirror
''')
QP = lambda i: f'quad_perm:[{i},{i},{i},{i}]'
for r in range(4):
    I(f'v_and_b32 {v(AW + r)}, v20, {v(MK + r)} {QP(0)}')
for i in range(4):
    if i < 3:
        for r in range(4):
            I(f'v_and_b32 {v(AW + 4 * (i + 1) + r)}, v20, {v(MK + r)} {QP(i + 1)}')
    else:
        I('v_rcp_f32 v18, v18')
    I(f'{MFMA} v[24:27], {v(AW + 4 * i, 4)}, {v(WUV + 4 * i, 4)}, {"0" if i == 0 else "v[24:27]"}')
for i in range(2):
    I(f'v_and_b32 {v(HH + i)}, {s(sR)}, {v(HH + i)}')
for r in range(4):
    I(f'v_and_b32 {v(AW + 16 + r)}, {v(HH)}, {v(MK + r)}')
I('s_mov_b32 exec_lo, 0x00ff00ff')
I('s_mov_b32 exec_hi, 0xff00ff00')
I('ds_write_b128 v42, v[24:27]')
I('s_mov_b64 exec, -1')
for r in range(4):
    I(f'v_and_b32 {v(AW + 20 + r)}, {v(HH + 1)}, {v(MK + r)}')
I('s_waitcnt lgkmcnt(0)')
I('s_barrier')
for k in range(4):
    I(f'ds_read2st64_b32 {v(108 + 2 * k, 2)}, v43 offset0:{2 * k} offset1:{2 * k + 1}')
TS(10)
I(f's_waitcnt vmcnt({nwo})')
for i in range(2):
    I(f'{MFMA} {v(OA, 4)}, {v(AW + 16 + 4 * i, 4)}, {v(W2T + 4 * i, 4)}, {"0" if i == 0 else v(OA, 4)}')
I('v_mov_b32 v22, v33')
I('v_mov_b32 v23, v33')
I('''
s_waitcnt lgkmcnt(2)
v_add_f32 v108, v108, v109
v_add_f32 v110, v110, v111
s_waitcnt lgkmcnt(0)
v_add_f32 v112, v112, v113
v_add_f32 v114, v114, v115
v_add_f32 v108, v108, v110
v_add_f32 v112, v112, v114
v_add_f32 v108, v108, v112
''')
I('v_mul_f32 v108, v108, v18')
I('v_cvt_pk_bf16_f32 v20, v108, v108')


def wo_and(q):
    for r in range(4):
        I(f'v_and_b32 {v(AT2 + 4 * (q & 1) + r)}, v20, {v(MK + r)} row_newbcast:{q}')


wo_and(0)
for q in range(16):
    if q < 15:
        wo_and(q + 1)
    if args.wor == 3 and q >= 4:
        I(f's_waitcnt vmcnt({15 - q})')
    I(f'{MFMA} {v(OA, 4)}, {v(AT2 + 4 * (q & 1), 4)}, {v(WOq(q), 4)}, {v(OA, 4)}')
TS(11)
I(f'v_cndmask_b32 v20, {v(OA)}, {v(OA + 2)}, {P(sM1)}')
I(f'v_cndmask_b32 v21, {v(OA + 1)}, {v(OA + 3)}, {P(sM1)}')
I(f'global_store_dwordx4 v44, v[20:23], {P(pWS)} sc1')
TS(12)
I('s_cmp_lt_u32 s2, 192')
I('s_cbranch_scc1 L_T_ep' if args.ee else 's_cbranch_scc1 L_T_done')
I(f'''
s_bfe_u32 {s(sT0)}, s2, {0x50001 if args.h5 else 0x60000}
s_lshl2_add_u32 {s(sT0)}, {s(sT0)}, {s(sW)}
s_lshl_b32 {s(sT0)}, {s(sT0)}, {12 + args.h5}
s_and_b32 {s(sT1)}, s2, {args.h5}
s_lshl_b32 {s(sT1)}, {s(sT1)}, 6
s_add_u32 {s(sT0)}, {s(sT0)}, {s(sT1)}
s_add_u32 {s(sT0)}, {s(sT0)}, {W_H5}
v_lshrrev_b32 v4, 2, v0
v_lshlrev_b32 v4, {6 + args.h5}, v4
v_lshl_add_u32 v4, v35, 4, v4
v_add_u32 v4, {s(sT0)}, v4
v_add_u32 v5, {2048 << args.h5}, v4
v_lshrrev_b32 v6, 1, v2
v_lshl_add_u32 v8, v6, 2, v35
v_lshlrev_b32 v8, 5, v8
v_and_b32 v6, 1, v2
v_lshl_add_u32 v8, v6, 2, v8
s_lshl_b32 {s(sT0)}, {s(sW)}, 3
s_add_u32 {s(sT0)}, {s(sT0)}, {L_CL}
v_add_u32 v8, {s(sT0)}, v8
v_and_b32 v9, 7, v0
v_lshlrev_b32 v9, 5, v9
v_add_u32 v9, {L_CL}, v9
v_lshlrev_b32 v108, 16, {v(XR2)}
v_and_b32 v109, {s(sT3)}, {v(XR2)}
v_lshlrev_b32 v110, 16, {v(B2R)}
v_and_b32 v111, {s(sT3)}, {v(B2R)}
v_add_f32 v108, v108, v110
v_add_f32 v109, v109, v111
v_mov_b32 v108, v109 quad_perm:[0,1,2,3] bank_mask:0xa
s_mov_b32 {s(sCNT)}, {args.spin}
''')
if args.a5:
    I('s_waitcnt vmcnt(0)')
f5 = lambda k: f'global_load_dwordx4 {v(128 + 4 * k, 4)}, {v(4 + (k >> 1))}, {P(pWS)} offset:{(1024 << args.h5) * (k & 1)} sc1'
a.label('L_T5_retry')
for k in range(4):
    I(f5(k))
a.label('L_T5_chk')
I(f's_sub_u32 {s(sCNT)}, {s(sCNT)}, 1')
I('s_waitcnt vmcnt(2)')
I('v_xor_b32 v17, v130, v33')
I('v_add_f32 v20, v128, v132')
I('v_bitop3_b32 v17, v134, v33, v17 bitop3:0xbe')
I('v_add_f32 v21, v129, v133')
I('s_waitcnt vmcnt(0)')
I('v_bitop3_b32 v17, v138, v33, v17 bitop3:0xbe')
I('v_add_f32 v24, v136, v140')
I('v_bitop3_b32 v17, v142, v33, v17 bitop3:0xbe')
I('v_add_f32 v25, v137, v141')
I('v_cmp_ne_u32 vcc, 0, v17')
I('v_add_f32 v20, v20, v24')
I('v_add_f32 v21, v21, v25')
a.B('s_cbranch_scc1 L_T5_go')
if args.m5:
    a.B('s_cbranch_vccz L_T5_go')
    for k in range(4):
        lab = a.newlabel('L_r5')
        I(f'v_cmp_ne_u32 vcc, {v(130 + 4 * k)}, v33')
        I('s_nop 0')
        a.B(f's_cbranch_vccz {lab}')
        I('s_mov_b64 exec, vcc')
        I(f5(k))
        I('s_mov_b64 exec, -1')
        a.label(lab)
    I('s_waitcnt vmcnt(0)')
    I('s_branch L_T5_chk')
else:
    a.B('s_cbranch_vccnz L_T5_retry')
a.label('L_T5_go')
TS(13)
TSN(3)
I('''
v_permlane32_swap_b32 v20, v21
v_add_f32 v20, v20, v21
v_add_f32 v20, v20, v20 row_ror:4
v_add_f32 v20, v20, v20 row_ror:8
ds_write_b32 v8, v20
s_waitcnt lgkmcnt(0)
s_barrier
''')
I(f's_cmp_lg_u32 {s(sW)}, 0')
I('s_cbranch_scc1 L_T_done')
I('''
ds_read_b128 v[128:131], v9
ds_read_b128 v[132:135], v9 offset:16
s_waitcnt lgkmcnt(1)
v_add_f32 v128, v128, v129
v_add_f32 v130, v130, v131
v_add_f32 v108, v108, v128
v_add_f32 v108, v108, v130
s_waitcnt lgkmcnt(0)
v_add_f32 v132, v132, v133
v_add_f32 v134, v134, v135
v_add_f32 v108, v108, v132
v_add_f32 v108, v108, v134
''')
if args.pert:
    import struct
    kind, val = args.pert.split(',')
    bits = struct.unpack('<I', struct.pack('<f', float(val)))[0]
    if kind == 'm':
        I(f'v_mul_f32 v108, {bits}, v108')
    elif kind == 'a':
        I(f'v_add_f32 v108, {bits}, v108')
    else:
        I('s_cmp_lg_u32 s2, 200')
        I('s_cbranch_scc1 L_nop')
        I('s_mov_b64 exec, 1')
        I(f'v_add_f32 v108, {bits}, v108')
        I('s_mov_b64 exec, -1')
        a.label('L_nop')
        I('s_nop 1')
I('''
v_mov_b32 v109, v108 row_shl:4
v_cvt_pk_bf16_f32 v20, v108, v109
s_mov_b64 exec, 15
''')
I(f'global_store_dword v12, v20, {P(pOUT)} {args.of.replace("+", " ")}')
if args.ee:
    I('s_branch L_T_done')
    a.label('L_T_ep')
    I(f's_lshl2_add_u32 {s(sT0)}, s2, {s(sW)}')
    I(f's_cmp_lg_u32 {s(sT0)}, 400')
else:
    I('s_cmp_lg_u32 s2, 0xe0')
I('s_cbranch_scc1 L_T_done')
I(f'v_mov_b32 v22, {W_EP}')
I('s_mov_b64 exec, 1')
I(f'global_store_dword v22, v33, {P(pWS)} {args.ef}')
a.label('L_T_done')
TS(14)
ts_dump()
a.label('L_end')
I('s_endpgm')

a.raw('.section .rodata,"a"')
a.raw('.p2align 6')
a.raw(f'.amdhsa_kernel {NAME}_kernel')
a.raw('''  .amdhsa_next_free_vgpr 256
  .amdhsa_next_free_sgpr 102
  .amdhsa_accum_offset 256
  .amdhsa_group_segment_fixed_size 0
  .amdhsa_kernarg_size 112
  .amdhsa_user_sgpr_count 2
  .amdhsa_user_sgpr_kernarg_segment_ptr 1
  .amdhsa_system_sgpr_workgroup_id_x 1
.end_amdhsa_kernel''')
open(args.o, 'w').write(a.text())
```

```python
import sys, argparse, re
from asmlib import Asm, v, s

NAME = 'parallel_sum__compressed_kv_cla__dense_activation_squared_relu__decode'

ap = argparse.ArgumentParser()
A_ = lambda n, d, t=int: ap.add_argument('--' + n, type=t, default=d)
ap.add_argument('-o', default='out.s')
A_('ts', 0)
A_('nt', 1)
A_('d1', 2); A_('k1', 4); A_('d2', 10); A_('k2', 16); A_('d3', 10)
A_('swap', 0)
A_('qa', 20)
A_('h2', 1)
A_('h3', 1)
A_('nt1', 0)
A_('wor', 3)
A_('dyn', 4)
A_('own', 1)
A_('ns', 6)
A_('nb', 0)
A_('w1', 0)
A_('last', 12)
A_('h5', 0)
A_('np', 1)
A_('sl', 5)
A_('pre', 2)
A_('tord', 1)
A_('light', 1)
A_('pt', 0)
A_('dly', 0)
A_('dly5', 0)
A_('hint1', 0)
A_('hint2', 0)
A_('wuv', 0)
A_('ew', 1)
A_('bpos', 1)
A_('a5', 1)
A_('comb', 1)
A_('tpos', 32)
A_('ne', 0)
A_('gv', 4)
A_('pp', 3)
A_('bo', 0)
A_('clk', 0)
A_('wpre', 0)
A_('nts', 0)
A_('nto', 0)
A_('ntm', 0x3f, lambda x: int(x, 0))
A_('xc', 0)
A_('kmap', 0)
A_('p2', 8)
A_('ffn', 0)
A_('dsmax', 1)
A_('pfu', 0)
A_('lf', 'sc1', str)
A_('sf', 'sc1', str)
A_('lfa', 'sc1', str)
A_('of', '', str)
A_('m5', 1)
A_('bm3', 1)
A_('top', 0)
A_('warm', 3)
A_('pert', '', str)
A_('ef', 'sc1', str)
A_('hr', 0)
A_('fr', 0)
A_('wsoff', 0, lambda x: int(x, 0))
A_('ee', 0)
A_('nopt', 1)
A_('probe', 0)
A_('spf', 0)
A_('spw', 0)
A_('spx', 60)
A_('rot', 0)
A_('nin', 12)
A_('nip', 0)
A_('lt', 0)
A_('ltq', 4)
A_('lts', 0)
A_('ltf', 0)
A_('pw', 23)
A_('pwt', 0)
A_('pwq', 0)
A_('mimic', 1)
A_('touch', 0)
A_('spin', 100000)
A_('notail', 0)
A_('tsn', 0)
A_('amp', '', str)
A_('tsmask', 0xffff, lambda x: int(x, 0))
args = ap.parse_args()
NT = ' nt' if args.nt else ''
NTS = ' nt' if args.nts else ''

L_QA = 131072
L_P = L_QA + 16384
L_XN = L_P + 4096
L_MX = L_XN + 1024
L_MF = L_MX + 256
L_MA = L_MF + 128
L_CL = L_MF + 256
L_CX = L_CL + 2048
L_FF = L_CX + 2048
L_LS = L_FF + 512
L_FL = L_LS + 1024
L_END = L_FL + 64
assert L_END <= 163840
F_F0, C_ISS, F_H2, C_QA, C_ST, C_ACK, C_ER, F_HINT, K0 = range(9)
C_L, C_M = K0 + 4, K0 + 5
W_EP = 0
W_H1 = 0x1000 + args.wsoff
W_H2 = W_H1 + 0x20000
W_HF = W_H2 + 0x10000
W_H5 = W_HF + 0x80000
W_LT = 0x1c0000
W_H3 = 0x200000 + args.wsoff
W_TS = 0x600000
assert W_H5 + 0x100000 <= W_LT

pX, pCKV, pWQ, pWUK, pWUV, pWO, pW1 = 4, 6, 8, 10, 12, 14, 18
pB1, pW2, pB2, pOUT, pDBG, pWS = 20, 22, 24, 26, 28, 30
sWV = 3
sX, sY, sFC, sGA, sS, sR, sHT, sCI, sDI = range(32, 41)
sJ, sH = sX, sY
sEP, sT0, sT1, sT2, sT3, sCNT, sW = 41, 42, 43, 44, 45, 46, 47
sB = 48
sM1, sM2, sM3, sM4 = 50, 52, 54, 56
sK0, sK1, sK2 = 58, 59, 60
TSB = 64
VFL, VONE, VFT = 13, 14, 15

a = Asm()
P = lambda r: s(r, 2)
MFMA = 'v_mfma_f32_16x16x32_bf16'


def I(text):
    if args.lfa != 'sc1':
        text = re.sub(r'(global_load\S* .*) sc1$', r'\1 ' + args.lfa.replace('+', ' '), text, flags=re.M)
    for bit, p_ in ((1, pWQ), (2, pWUK), (4, pCKV), (8, pWUV), (16, pW1), (32, pW2)):
        if not args.ntm & bit:
            text = re.sub(r'(global_load\S* .*s\[%d:%d\].*) nt' % (p_, p_ + 1), r'\1', text)
    if args.notail:
        out = []
        for line in text.split('\n'):
            m = re.match(r'\s*global_load_dwordx4 (v\[\d+:\d+\]), v\d+, s\[(\d+):', line)
            if m and int(m.group(2)) in (pWUV, pWO, pW1, pW2):
                line = f'global_load_dwordx4 {m.group(1)}, v3, s[4:5]'
            out.append(line)
        text = '\n'.join(out)
    a.I(text)


def TS(i):
    if args.ts and (args.tsmask >> i) & 1:
        I(f'{"s_memtime" if args.clk else "s_memrealtime"} {s(TSB + 2 * i, 2)}')


def TSN(k=None):
    if args.ts and (k is None or k == args.tsn):
        I(f's_sub_u32 {s(TSB + 2 * 15)}, {args.spin}, {s(sCNT)}')


def ts_dump(n=16):
    if not args.ts:
        return
    if args.xc:
        I(f's_getreg_b32 {s(TSB + 30)}, hwreg(HW_REG_XCC_ID)')
        I(f's_add_u32 {s(TSB + 30)}, {s(TSB + 30)}, {s(sEP)}')
        lab, done = a.newlabel('L_xc'), a.newlabel('L_xcd')
        I('s_cmp_lg_u32 s2, 224')
        I(f's_cbranch_scc1 {done}')
        I(f's_cmp_lg_u32 {s(sWV)}, 4')
        I(f's_cbranch_scc1 {done}')
        I('s_mov_b64 exec, -1')
        I(f'v_mov_b32 v4, {W_TS + args.xc * 512 + 60}')
        I(f'global_load_dword v5, v4, {P(pWS)} sc1')
        I('s_memrealtime s[96:97]')
        I('s_waitcnt vmcnt(0) lgkmcnt(0)')
        I(f'v_readfirstlane_b32 {s(sT0)}, v5')
        I(f's_cmp_eq_u32 {s(sT0)}, {s(TSB + 30)}')
        I(f's_cbranch_scc1 {done}')
        a.label(lab)
        I('s_memrealtime s[98:99]')
        I('s_waitcnt lgkmcnt(0)')
        I(f's_sub_u32 {s(sT1)}, s98, s96')
        I(f's_cmp_lt_u32 {s(sT1)}, 5000')
        I(f's_cbranch_scc1 {lab}')
        a.label(done)
    if args.amp:
        wg, w, k = map(int, args.amp.split(','))
        lab, done = a.newlabel('L_amp'), a.newlabel('L_ampd')
        I(f's_cmp_lg_u32 s2, {wg}')
        I(f's_cbranch_scc1 {done}')
        I(f's_cmp_lg_u32 {s(sWV)}, {w}')
        I(f's_cbranch_scc1 {done}')
        I('s_memrealtime s[96:97]')
        I('s_waitcnt lgkmcnt(0)')
        I(f's_sub_u32 {s(sT0)}, {s(TSB + 2 * k)}, {s(TSB)}')
        I(f's_lshl_b32 {s(sT0)}, {s(sT0)}, 3')
        I(f's_min_u32 {s(sT0)}, {s(sT0)}, 100000')
        a.label(lab)
        I('s_memrealtime s[98:99]')
        I('s_waitcnt lgkmcnt(0)')
        I(f's_sub_u32 {s(sT1)}, s98, s96')
        I(f's_cmp_lt_u32 {s(sT1)}, {s(sT0)}')
        I(f's_cbranch_scc1 {lab}')
        a.label(done)
    I('s_waitcnt lgkmcnt(0)')
    I('s_mov_b64 exec, -1')
    I('v_mov_b32 v4, 0')
    for i in range(n):
        I(f'v_writelane_b32 v4, {s(TSB + 2 * i)}, {i}')
    I(f's_lshl_b32 {s(sT0)}, s2, 3')
    I(f's_add_u32 {s(sT0)}, {s(sT0)}, {s(sWV)}')
    I(f's_lshl_b32 {s(sT0)}, {s(sT0)}, 6')
    I(f's_add_u32 {s(sT0)}, {s(sT0)}, {W_TS}')
    I(f'v_lshl_add_u32 v5, v0, 2, {s(sT0)}')
    I('s_mov_b64 exec, 0xffff')
    I(f'global_store_dword v5, v4, {P(pWS)}')
    I('s_waitcnt vmcnt(0)')


def load_epoch():
    I(f's_load_dword {s(sEP)}, {P(pWS)}, {W_EP}')


def epoch_ready():
    I('s_waitcnt lgkmcnt(0)')
    I(f's_add_u32 {s(sEP)}, {s(sEP)}, 1')
    I(f's_addc_u32 {s(sEP)}, {s(sEP)}, 0')


def row_allreduce(op, regs, steps=(8, 4, 2, 1)):
    for st in steps:
        for r in regs:
            I(f'{op} {v(r)}, {v(r)}, {v(r)} row_ror:{st}')


def cross_rows_allreduce(op, r, t):
    for sw in ('v_permlane16_swap_b32', 'v_permlane32_swap_b32'):
        I(f'v_mov_b32 {v(t)}, {v(r)}')
        I(f'{sw} {v(t)}, {v(r)}')
        I(f'{op} {v(r)}, {v(r)}, {v(t)}')


def scalar_poll(offsets):
    lab, done = a.newlabel('L_sp'), a.newlabel('L_spd')
    R = [61, 62, 63, 96, 97, 98, 99, 100]
    I(f's_mov_b32 {s(sCNT)}, {args.spin}')
    a.label(lab)
    for k, o in enumerate(offsets):
        I(f's_load_dword {s(R[k])}, {P(sB)}, {o} glc')
    I(f's_sub_u32 {s(sCNT)}, {s(sCNT)}, 1')
    I(f's_cbranch_scc1 {done}')
    I('s_waitcnt lgkmcnt(0)')
    I(f's_xor_b32 {s(sT0)}, {s(R[0])}, {s(sEP)}')
    for k in range(1, len(offsets)):
        I(f's_xor_b32 {s(sT1)}, {s(R[k])}, {s(sEP)}')
        I(f's_or_b32 {s(sT0)}, {s(sT0)}, {s(sT1)}')
    I(f's_cbranch_scc1 {lab}')
    a.label(done)
    I('s_waitcnt lgkmcnt(0)')


def flag_add(idx, base=VFL):
    I('s_mov_b64 exec, 1')
    I(f'ds_add_u32 {v(base)}, {v(VONE)} offset:{4 * idx}')
    I('s_mov_b64 exec, -1')


def flag_wait(idx, n, base=VFL):
    lab, done = a.newlabel('L_fw'), a.newlabel('L_fwd')
    if args.bo and idx in (F_F0, C_ISS, F_H2, C_ST, C_ACK, K0):
        l2 = a.newlabel('L_fw')
        a.B(f's_branch {l2}')
        a.label(lab)
        I(f's_sleep {args.bo}')
        a.label(l2)
    else:
        a.label(lab)
    I(f'ds_read_b32 {v(VFT)}, {v(base)} offset:{4 * idx}')
    I(f's_sub_u32 {s(sFC)}, {s(sFC)}, 1')
    I('s_waitcnt lgkmcnt(0)')
    I(f'v_cmp_gt_u32 vcc, {n}, {v(VFT)}')
    a.B(f's_cbranch_scc1 {done}')
    a.B(f's_cbranch_vccnz {lab}')
    a.label(done)
    I(f's_max_i32 {s(sFC)}, {s(sFC)}, 0')


def build_masks(M, t0, t1):
    I(f'v_and_b32 {v(t0)}, 1, v1')
    I(f'v_lshlrev_b32 {v(t0)}, 4, {v(t0)}')
    I(f'v_mov_b32 {v(t1)}, 0xffff')
    I(f'v_lshlrev_b32 {v(t1)}, {v(t0)}, {v(t1)}')
    I(f'v_bfe_u32 {v(t0)}, v1, 1, 2')
    for r in range(4):
        I(f'v_cmp_eq_u32 vcc, {r}, {v(t0)}')
        I(f'v_cndmask_b32 {v(M + r)}, 0, {v(t1)}, vcc')


BF, ACC, PF = 128, 96, 80
AT, SEL, XP, ACC0, REC = 72, 32, 80, 88, 92


def build_sel(t=6):
    J = lambda x: I(re.sub(r'\bv([6-9])\b', lambda m: 'v%d' % (int(m.group(1)) - 6 + t), x))
    J('''
    v_and_b32 v6, 1, v1
    v_cmp_eq_u32 vcc, 1, v6
    v_mov_b32 v7, 0x0c0c0100
    v_mov_b32 v8, 0x01000c0c
    v_cndmask_b32 v7, v7, v8, vcc
    v_mov_b32 v8, 0x0c0c0302
    v_mov_b32 v9, 0x03020c0c
    v_cndmask_b32 v8, v8, v9, vcc
    v_mov_b32 v9, 0x0c0c0c0c
    v_bfe_u32 v6, v1, 1, 2
    ''')
    for r in range(4):
        J(f'v_cmp_eq_u32 vcc, {r}, v6')
        J(f'v_cndmask_b32 {v(SEL + r)}, v9, v7, vcc')
        J(f'v_cndmask_b32 {v(SEL + 4 + r)}, v9, v8, vcc')


def diag_stage(n, W, younger=0):
    def perms(k):
        for r in range(4):
            I(f'v_perm_b32 {v(AT + 4 * (k & 1) + r)}, {v(XP + (k >> 1))}, {v(XP + (k >> 1))}, {v(SEL + 4 * (k & 1) + r)}')
    perms(0)
    for k in range(n):
        if k < n - 1:
            perms(k + 1)
        else:
            I(f'v_mov_b32 {v(REC + 2)}, {s(sEP)}')
            I(f'v_mov_b32 {v(REC + 3)}, {s(sEP)}')
        I(f's_waitcnt vmcnt({n - 1 - k + younger})')
        I(f'{MFMA} {v(ACC0, 4)}, {v(AT + 4 * (k & 1), 4)}, {v(W(k), 4)}, {"0" if k == 0 else v(ACC0, 4)}')


TA = 16


def tr_addr():
    I(f'''
    v_lshrrev_b32 v4, 2, v0
    v_lshlrev_b32 v4, 8, v4
    v_and_b32 v5, 31, v0
    v_lshl_add_u32 v4, v5, 3, v4
    s_lshl_b32 {s(sT0)}, {s(sW)}, 15
    v_add_u32 v4, {s(sT0)}, v4
    ''')


CK = 44
EMB = 0x00010001
HASH = 0x9e3779b1
OCT = ('quad_perm:[1,0,3,2]', 'quad_perm:[2,3,0,1]', 'row_half_mirror')


def pv_setup():
    for i in range(4):
        I(f's_sub_u32 {s(sT0)}, {s(sW)}, {i}')
        I(f's_and_b32 {s(sT0)}, {s(sT0)}, 3')
        I(f's_lshl_b32 {s(sT0)}, {s(sT0)}, 10')
        I(f's_add_u32 {s(sT0)}, {s(sT0)}, {L_P}')
        I(f'v_add_u32 {v(48 + i)}, {s(sT0)}, v3')
    I(f"""
    s_lshl_b32 {s(sT0)}, {s(sGA)}, 6
    s_add_u32 {s(sT0)}, {s(sT0)}, {s(sW)}
    s_lshl_b32 {s(sT0)}, {s(sT0)}, 7
    s_add_u32 {s(sT0)}, {s(sT0)}, {s(sS)}
    s_lshl_b32 {s(sT1)}, {s(sT0)}, 8
    s_add_u32 {s(sT1)}, {s(sT1)}, {W_H3}
    v_lshlrev_b32 v52, 19, v2
    v_lshl_add_u32 v52, v1, 4, v52
    v_add_u32 v52, {s(sT1)}, v52
    s_mov_b32 {s(sT2)}, 0x20000
    v_add_u32 v53, {s(sT2)}, v52
    v_add_u32 v54, {s(sT2)}, v53
    v_add_u32 v55, {s(sT2)}, v54
    v_lshlrev_b32 v42, 4, v2
    v_lshl_add_u32 v43, v1, 6, v42
    v_add_u32 v43, {L_LS}, v43
    v_add_u32 v42, {L_MF}, v42
    s_mul_i32 {s(sK0)}, {s(sEP)}, {(2 * HASH) & 0xffffffff}
    s_add_u32 {s(sK0)}, {s(sK0)}, {HASH}
    s_mov_b32 {s(sK1)}, {EMB}
    s_mov_b32 {s(sK2)}, {~EMB & 0xffffffff}
    """)


def pv_prewrite(qg, late=False):
    if args.pwt >= 3:
        if late and args.pw & 16:
            for e in range(4):
                I(f'v_mov_b32 {v(28 + e)}, 0')
            for r in range(4):
                I(f'global_store_dwordx4 {v(52 + r)}, v[28:31], {P(pWS)} sc1')
    elif args.pw & 16 and (qg or not args.pwt):
        for e in range(4):
            I(f'v_mov_b32 {v(28 + e)}, 0')
        for r in range(4):
            I(f'global_store_dwordx4 {v(52 + r)}, v[28:31], {P(pWS)} sc1')
            if args.pwt:
                I(f'v_add_u32 v6, 0x8000, {v(52 + r)}')
                I(f'global_store_dwordx4 v6, v[28:31], {P(pWS)} sc1')
        if args.pwt == 2:
            I(f'''
            s_lshl_b32 {s(sT0)}, {s(sW)}, 18
            s_lshl_b32 {s(sT1)}, s2, 7
            s_add_u32 {s(sT0)}, {s(sT0)}, {s(sT1)}
            s_add_u32 {s(sT0)}, {s(sT0)}, {W_H5}
            v_lshrrev_b32 v6, 3, v0
            v_lshlrev_b32 v6, 15, v6
            v_lshl_add_u32 v6, v10, 4, v6
            v_add_u32 v6, {s(sT0)}, v6
            global_store_dwordx4 v6, v[28:31], {P(pWS)} sc1
            v_add_u32 v6, 0x40000, v6
            global_store_dwordx4 v6, v[28:31], {P(pWS)} sc1
            ''')


def tr_slot(i):
    I(f's_sub_u32 {s(sT0)}, {s(sW)}, {i}')
    I(f's_and_b32 {s(sT0)}, {s(sT0)}, 3')
    I(f's_lshl_b32 {s(sT1)}, {s(sT0)}, 13')
    I(f'v_lshl_add_u32 v5, {s(sT0)}, 2, {v(VFL)}')
    I(f'v_add_u32 {v(TA)}, {s(sT1)}, v4')
    for T in range(1, 8):
        I(f'v_xor_b32 {v(TA + T)}, {32 * T}, {v(TA)}')
    if i == 3 and args.bm3:
        assert not args.ffn
        TS(6)
        I('s_barrier')
    else:
        flag_wait(K0, i + 1, 5)
    for T in range(8):
        for tau in range(2):
            I(f'ds_read_b64_tr_b16 {v(BF + (i * 8 + T) * 4 + 2 * tau, 2)}, {v(TA + T)} offset:{tau * 4096}')


def round_pairs(base, n, tmp):
    for i in range(n // 2):
        I(f'v_cvt_pk_bf16_f32 {v(tmp + i)}, {v(base + 2 * i)}, {v(base + 2 * i + 1)}')
    for i in range(n // 2):
        I(f'v_lshlrev_b32 {v(base + 2 * i)}, 16, {v(tmp + i)}')
        I(f'v_and_b32 {v(base + 2 * i + 1)}, {s(sT3)}, {v(tmp + i)}')


hdr = open('cdna_kernels/%s.s.ref' % NAME).read().split('; Override launch geometry')[0]
a.raw(hdr.rstrip())
a.raw(f'; @launch grid=(256,1,1) block=(512,1,1) lds={L_END}')
a.raw(""";
; carries the launch tag (ws[0] + 1, advanced at the end) or a share of a check word derived from it; all spins are bounded.""")
a.raw('.amdgcn_target "amdgcn-amd-amdhsa--gfx950"')
a.raw('.text')
a.raw(f'.globl {NAME}_kernel')
a.raw('.p2align 8')
a.raw(f'.type {NAME}_kernel,@function')
a.label(f'{NAME}_kernel')
a.label('L_start')
I('s_load_dwordx16 s[4:19], s[0:1], 0')
I(f's_getpc_b64 {P(sB)}')
a.label('L_pc')
I('s_cmpk_ge_u32 s2, 0x100')
I('s_cbranch_scc1 L_end')
TS(0)
if args.top:
    I(f'''
    v_cmp_gt_u32 vcc, 64, v0
    s_and_b32 {s(sX)}, s2, 7
    s_lshr_b32 {s(sY)}, s2, 3
    v_lshl_add_u32 v6, {s(sX)}, 6, v0
    v_lshl_add_u32 v6, v6, 5, {s(sY)}
    v_lshlrev_b32 v5, 4, v0
    v_lshlrev_b32 v6, 8, v6
    ''')
    a.B('s_cbranch_vccz L_top')
    I(f'''
    s_waitcnt lgkmcnt(0)
    global_load_dwordx4 v[120:123], v5, {P(pX)}
    ''')
    if args.top == 1:
        I(f'global_load_dword v41, v6, {P(pWQ)}{NT}')
        I(f'global_load_dword v41, v6, {P(pWQ)} offset:128{NT}')
    a.label('L_top')
I('s_load_dwordx8 s[20:27], s[0:1], 64')
I('s_load_dwordx4 s[28:31], s[0:1], 96')
I(f'''
v_lshrrev_b32 v3, 6, v0
v_lshrrev_b32 v4, 5, v0
s_lshr_b32 {s(sY)}, s2, 3
s_and_b32 {s(sT1)}, {s(sY)}, 15
s_lshl_b32 {s(sT1)}, {s(sT1)}, 11
v_lshl_add_u32 v4, v4, 7, {s(sT1)}
v_min_u32 v4, L_end-L_pc, v4
s_mov_b32 exec_lo, 1
s_mov_b32 exec_hi, 1
global_load_dword v15, v4, {P(sB)}
s_mov_b64 exec, -1
v_readfirstlane_b32 {s(sWV)}, v3
v_and_b32 v0, 63, v0
v_and_b32 v1, 15, v0
v_lshrrev_b32 v2, 4, v0
s_and_b32 {s(sX)}, s2, 7
s_lshr_b32 {s(sGA)}, {s(sY)}, 4
s_xor_b32 {s(sGA)}, {s(sGA)}, 1
s_and_b32 {s(sT0)}, {s(sY)}, 15
s_lshl4_add_u32 {s(sS)}, {s(sX)}, {s(sT0)}
s_and_b32 {s(sW)}, {s(sWV)}, 3
v_lshlrev_b32 v3, 4, v0
v_mov_b32 {v(VFL)}, {L_FL}
v_mov_b32 {v(VONE)}, 1
s_mov_b32 {s(sFC)}, 0x1000000
s_cmp_ge_u32 {s(sWV)}, 4
''')
a.B('s_cbranch_scc1 L_S')
I(f'''
s_lshl_b32 {s(sT0)}, {s(sJ)}, 19
s_lshl_b32 {s(sT1)}, {s(sH)}, 8
s_add_u32 {s(sT0)}, {s(sT0)}, {s(sT1)}
s_cmp_eq_u32 {s(sWV)}, 1
''')
a.B('s_cbranch_scc1 L_F1')
I(f's_cmp_eq_u32 {s(sWV)}, 2')
a.B('s_cbranch_scc1 L_F2')
I(f's_cmp_eq_u32 {s(sWV)}, 3')
a.B('s_cbranch_scc1 L_F3')

Wq, XR = 128, 120
I(f'''
v_lshlrev_b32 v5, 17, v2
v_lshl_add_u32 v5, v1, 4, v5
v_add_u32 v5, {s(sT0)}, v5
s_movk_i32 {s(sT2)}, 0x2000
''')
if not args.top:
    I('s_waitcnt lgkmcnt(0)')
    I(f'global_load_dwordx4 {v(XR, 4)}, v3, {P(pX)}')
for k in range(16):
    I(f'global_load_dwordx4 {v(Wq + 4 * k, 4)}, v5, {P(pWQ)}{NT}')
    if k < 15:
        I(f'v_add_u32 v5, {s(sT2)}, v5')
if args.bpos == 0:
    I('s_barrier')
I('s_waitcnt lgkmcnt(0)')
load_epoch()
if args.pw & 1:
    I(f's_lshl_b32 {s(sT0)}, s2, 9')
    I(f's_add_u32 {s(sT0)}, {s(sT0)}, {W_H1}')
    I(f'v_add_u32 v12, {s(sT0)}, v3')
    for e in range(4):
        I(f'v_mov_b32 {v(REC + e)}, 0')
    I('s_mov_b32 exec_hi, 0')
    I(f'global_store_dwordx4 v12, {v(REC, 4)}, {P(pWS)} sc1')
    I('s_mov_b64 exec, -1')
TS(1)
build_sel()
I(f'''
v_add_u32 v10, {L_XN}, v3
s_lshl_b32 {s(sT0)}, {s(sJ)}, 7
s_add_u32 {s(sT0)}, {s(sT0)}, {L_XN}
v_lshl_add_u32 v11, v2, 5, {s(sT0)}
s_lshl_b32 {s(sT0)}, s2, 9
s_add_u32 {s(sT0)}, {s(sT0)}, {W_H1}
v_add_u32 v12, {s(sT0)}, v3
s_mov_b32 {s(sT3)}, 0xffff0000
s_mov_b32 {s(sK0)}, 0x07060501
s_mov_b32 {s(sK1)}, 0x07060502
s_mov_b32 {s(sK2)}, 0x07060503
''')
F, Dd, t0, t1, t2, t3, PK = 96, 104, 112, 113, 114, 115, 116
I(f's_waitcnt vmcnt({(16, 19, 17)[args.top] + (args.pw & 1)})')
if args.bpos == 1:
    I('s_barrier')
TS(2)
for i in range(4):
    I(f'v_lshlrev_b32 {v(F + 2 * i)}, 16, {v(XR + i)}')
    I(f'v_and_b32 {v(F + 2 * i + 1)}, {s(sT3)}, {v(XR + i)}')
I(f'''
v_add_f32 {v(t0)}, {v(F)}, {v(F + 1)}
v_add_f32 {v(t1)}, {v(F + 2)}, {v(F + 3)}
v_add_f32 {v(t2)}, {v(F + 4)}, {v(F + 5)}
v_add_f32 {v(t3)}, {v(F + 6)}, {v(F + 7)}
v_add_f32 {v(t0)}, {v(t0)}, {v(t1)}
v_add_f32 {v(t2)}, {v(t2)}, {v(t3)}
v_add_f32 {v(t0)}, {v(t0)}, {v(t2)}
''')
row_allreduce('v_add_f32', [t0])
I(f'v_add_f32 {v(t0)}, {v(t0)}, {v(t0)} row_bcast:15 row_mask:0xa')
I(f'v_add_f32 {v(t0)}, {v(t0)}, {v(t0)} row_bcast:31 row_mask:0xc')
I(f'v_mov_b32 {v(t1)}, 0x3b000000')
I(f'v_readlane_b32 {s(sT0)}, {v(t0)}, 63')
I(f'v_mul_f32 {v(t1)}, {s(sT0)}, {v(t1)}')
for i in range(8):
    I(f'v_sub_f32 {v(Dd + i)}, {v(F + i)}, {v(t1)}')
if args.bpos == 2:
    I('s_barrier')
I(f'v_mul_f32 {v(t0)}, {v(Dd)}, {v(Dd)}')
I(f'v_mul_f32 {v(t2)}, {v(Dd + 1)}, {v(Dd + 1)}')
for i in range(2, 8, 2):
    I(f'v_fmac_f32 {v(t0)}, {v(Dd + i)}, {v(Dd + i)}')
    I(f'v_fmac_f32 {v(t2)}, {v(Dd + i + 1)}, {v(Dd + i + 1)}')
I(f'v_add_f32 {v(t0)}, {v(t0)}, {v(t2)}')
I(f'v_cvt_pk_bf16_f32 {v(t1)}, {v(t1)}, {v(t1)}')
I(f'v_and_b32 {v(t1)}, {s(sT3)}, {v(t1)}')
row_allreduce('v_add_f32', [t0], steps=(8,))
for i in range(0, 4):
    I(f'v_sub_f32 {v(Dd + i)}, {v(F + i)}, {v(t1)}')
row_allreduce('v_add_f32', [t0], steps=(4,))
for i in range(4, 8):
    I(f'v_sub_f32 {v(Dd + i)}, {v(F + i)}, {v(t1)}')
row_allreduce('v_add_f32', [t0], steps=(2,))
for i in range(0, 2):
    I(f'v_cvt_pk_bf16_f32 {v(PK + i)}, {v(Dd + 2 * i)}, {v(Dd + 2 * i + 1)}')
row_allreduce('v_add_f32', [t0], steps=(1,))
for i in range(2, 4):
    I(f'v_cvt_pk_bf16_f32 {v(PK + i)}, {v(Dd + 2 * i)}, {v(Dd + 2 * i + 1)}')
I(f'v_add_f32 {v(t0)}, {v(t0)}, {v(t0)} row_bcast:15 row_mask:0xa')
for i in range(0, 2):
    I(f'v_lshlrev_b32 {v(Dd + 2 * i)}, 16, {v(PK + i)}')
    I(f'v_and_b32 {v(Dd + 2 * i + 1)}, {s(sT3)}, {v(PK + i)}')
I(f'v_add_f32 {v(t0)}, {v(t0)}, {v(t0)} row_bcast:31 row_mask:0xc')
for i in range(2, 4):
    I(f'v_lshlrev_b32 {v(Dd + 2 * i)}, 16, {v(PK + i)}')
    I(f'v_and_b32 {v(Dd + 2 * i + 1)}, {s(sT3)}, {v(PK + i)}')
I(f'v_mov_b32 {v(t1)}, 0x3b000000')
I(f'v_readlane_b32 {s(sT0)}, {v(t0)}, 63')
I(f'''
v_mul_f32 {v(t1)}, {s(sT0)}, {v(t1)}
v_cvt_pk_bf16_f32 {v(t1)}, {v(t1)}, {v(t1)}
v_and_b32 {v(t1)}, {s(sT3)}, {v(t1)}
v_add_f32 {v(t1)}, 0x3727c5ac, {v(t1)}
v_cvt_pk_bf16_f32 {v(t1)}, {v(t1)}, {v(t1)}
v_and_b32 {v(t1)}, {s(sT3)}, {v(t1)}
v_sqrt_f32 {v(t1)}, {v(t1)}
v_cvt_pk_bf16_f32 {v(t1)}, {v(t1)}, {v(t1)}
v_and_b32 {v(t1)}, {s(sT3)}, {v(t1)}
v_rcp_f32 {v(t1)}, {v(t1)}
''')
for i in range(8):
    I(f'v_mul_f32 {v(Dd + i)}, {v(Dd + i)}, {v(t1)}')
for i in range(4):
    I(f'v_cvt_pk_bf16_f32 {v(PK + i)}, {v(Dd + 2 * i)}, {v(Dd + 2 * i + 1)}')
I(f'ds_write_b128 v10, {v(PK, 4)}')
I(f'ds_read_b128 {v(XP, 4)}, v11')
I(f'ds_read_b128 {v(XP + 4, 4)}, v11 offset:16')
if args.bpos == 3:
    I('s_barrier')
epoch_ready()
TS(3)
diag_stage(16, lambda k: Wq + 4 * k, args.pw & 1)
for i in range(3):
    I(f'v_perm_b32 {v(REC + i)}, {v(ACC0 + i)}, {v(ACC0 + 3)}, {s(sK0 + i)}')
I('s_mov_b32 exec_hi, 0')
I(f'global_store_dwordx4 v12, {v(REC, 4)}, {P(pWS)} sc1')
I(f'ds_write_b128 v10, {v(ACC0, 4)} offset:{L_CX - L_XN}')
TS(4)
flag_add(F_F0)
I('s_branch L_QG')

a.label('L_F1')
WK, G1, QF, DK = 128, 192, 96, 112
I(f'''
v_lshlrev_b32 v6, 1, v2
v_xor_b32 v6, v6, v1
v_lshlrev_b32 v5, 16, v2
v_lshl_add_u32 v5, v6, 4, v5
v_add_u32 v5, {s(sT0)}, v5
v_xor_b32 v6, 0x80, v5
v_add_u32 v6, 0x40000, v6
s_mov_b32 {s(sT2)}, 0x8000
s_mov_b32 {s(sT3)}, {(-3 * 8192) & 0xffffffff}
s_mov_b32 m0, {L_QA}
s_waitcnt lgkmcnt(0)
''')
load_epoch()
if args.pw & 2:
    I(f's_lshl_b32 {s(sT1)}, s2, 7')
    I(f's_add_u32 {s(sT1)}, {s(sT1)}, {W_H2}')
    I(f'v_add_u32 v12, {s(sT1)}, v3')
    for e in range(4):
        I(f'v_mov_b32 {v(20 + e)}, 0')
I('s_barrier')
if args.pw & 2:
    I('s_mov_b64 exec, 0xff')
    I(f'global_store_dwordx4 v12, v[20:23], {P(pWS)} sc1')
    I('s_mov_b64 exec, -1')
for k in range(16):
    I(f'global_load_lds_dwordx4 {"v6" if k & 1 else "v5"}, {P(pWUK)}{NT}')
    if k < 15:
        I('s_add_u32 m0, m0, 0x400')
    if k < 14:
        I(f'v_add_u32 {"v6" if k & 1 else "v5"}, {s(sT3 if k & 2 else sT2)}, {"v6" if k & 1 else "v5"}')
TS(1)
I(f'''
v_and_b32 v5, 7, v1
v_lshlrev_b32 v5, 1, v5
v_xor_b32 v5, v5, v2
v_lshlrev_b32 v5, 4, v5
v_lshl_add_u32 v5, v1, 8, v5
v_add_u32 v24, {L_QA}, v5
v_xor_b32 v25, 64, v24
v_xor_b32 v26, 0x80, v24
v_xor_b32 v27, 0xc0, v24
s_lshl_b32 {s(sT0)}, {s(sH)}, 12
s_add_u32 {s(sT0)}, {s(sT0)}, {W_H1}
v_add_u32 v8, {s(sT0)}, v3
s_lshl_b32 {s(sT1)}, {s(sJ)}, 9
v_add_u32 v6, {s(sT1)}, v3
s_movk_i32 {s(sT1)}, 0xfff
v_and_b32 v16, {s(sT1)}, v6
v_add_u32 v6, 0x400, v6
v_and_b32 v17, {s(sT1)}, v6
v_add_u32 v6, 0x400, v6
v_and_b32 v18, {s(sT1)}, v6
v_add_u32 v6, 0x400, v6
v_and_b32 v19, {s(sT1)}, v6
v_add_u32 v32, {s(sT0)}, v16
v_add_u32 v33, {s(sT0)}, v17
v_add_u32 v34, {s(sT0)}, v18
v_add_u32 v35, {s(sT0)}, v19
v_add_u32 v9, {L_CX}, v3
v_and_b32 v10, 1, v2
v_lshlrev_b32 v10, 1, v10
v_lshrrev_b32 v11, 1, v2
v_add_u32 v10, v10, v11
v_lshl_add_u32 v10, v1, 2, v10
v_lshlrev_b32 v10, 2, v10
v_add_u32 v10, {L_CL}, v10
v_lshlrev_b32 v11, 4, v2
v_add_u32 v11, {L_CL}, v11
s_lshl_b32 {s(sT0)}, s2, 7
s_add_u32 {s(sT0)}, {s(sT0)}, {W_H2}
v_add_u32 v12, {s(sT0)}, v3
v_add_u32 v37, 8, v1
s_mov_b32 {s(sM2)}, {EMB}
s_mov_b32 {s(sM2 + 1)}, {~EMB & 0xffffffff}
s_mov_b32 {s(sK0)}, 0x0c04000c
s_mov_b32 {s(sK1)}, 0x0402010c
s_mov_b32 {s(sK2)}, 0x07060302
s_mov_b32 {s(sM3 + 1)}, 0x10000
''')
epoch_ready()
I(f'v_mov_b32 v22, {s(sEP)}')
I(f's_mul_i32 {s(sM3)}, {s(sEP)}, {(2 * HASH) & 0xffffffff}')
I(f's_add_u32 {s(sM3)}, {s(sM3)}, {HASH}')
I('s_setprio 1')
NP = args.np
for p_ in range(NP):
    I(f'v_mov_b32 {v(G1 + 16 * p_ + 3)}, v22')
    for e in range(3):
        I(f'v_mov_b32 {v(G1 + 16 * p_ + e)}, 0')


def h1_loads(p_):
    for k in range(4):
        if k == 0:
            I('s_mov_b32 exec_lo, 0')
        I(f'global_load_dwordx4 {v(G1 + 16 * p_ + 4 * k, 4)}, {v(32 + k)}, {P(pWS)} sc1')
        if k == 0:
            I('s_mov_b32 exec_lo, -1')


if args.hint1:
    assert NP == 1
    I(f's_lshl_b32 {s(sT0)}, {s(sH)}, 12')
    I(f's_add_u32 {s(sT0)}, {s(sT0)}, {W_H1 + 508}')
    I(f's_add_u32 {s(sB)}, {s(pWS)}, {s(sT0)}')
    I(f's_addc_u32 {s(sB + 1)}, {s(pWS + 1)}, 0')
    HO = [4, 5, 6, 7, 8, 9, 12]
    for k in range(7):
        I(f's_add_u32 {s(HO[k])}, {s(sJ)}, {k + 1}')
        I(f's_and_b32 {s(HO[k])}, {s(HO[k])}, 7')
        I(f's_lshl_b32 {s(HO[k])}, {s(HO[k])}, 9')
    scalar_poll([s(r) for r in HO])
elif args.hr:
    flag_wait(C_ER, 4)
else:
    I('s_waitcnt vmcnt(4)')
TS(2)
h1_loads(0)
I('s_waitcnt vmcnt(4)')
for tau in range(4):
    for t in range(4):
        I(f'ds_read_b128 {v(WK + 16 * tau + 4 * t, 4)}, {v(24 + t)} offset:{4096 * tau}')
for p_ in range(1, NP):
    if p_ > 1 and args.sl:
        I(f's_sleep {args.sl}')
    h1_loads(p_)
Q4 = 40
for e in range(4):
    I(f'v_mov_b32 {v(Q4 + 4 + e)}, 0')
flag_wait(F_F0, 1)
I('s_mov_b32 exec_hi, 0')
I(f'ds_read_b128 {v(Q4 + 4, 4)}, v9')
I('s_mov_b64 exec, -1')
I(f's_mov_b32 {s(sCNT)}, {args.spin}')
I('s_waitcnt lgkmcnt(0)')
a.label('L_F1_poll')
for p_ in range(NP):
    G = G1 + 16 * p_
    I(f's_sub_u32 {s(sCNT)}, {s(sCNT)}, 1')
    I(f's_waitcnt vmcnt({4 * (NP - 1)})')
    I(f'v_xor_b32 v16, {v(G + 3)}, v22')
    for k in range(1, 4):
        I(f'v_bitop3_b32 v16, {v(G + 4 * k + 3)}, v22, v16 bitop3:0xbe')
    I('v_cmp_ne_u32 vcc, 0, v16')
    a.B(f's_cbranch_scc1 L_F1_go{p_}')
    a.B(f's_cbranch_vccz L_F1_go{p_}')
    h1_loads(p_)
I('s_branch L_F1_poll')
for p_ in reversed(range(NP)):
    G = G1 + 16 * p_
    a.label(f'L_F1_go{p_}')
    for k in range(4):
        I(f'v_perm_b32 {v(G + 4 * k + 3)}, {v(G + 4 * k + 1)}, {v(G + 4 * k)}, {s(sK0)}')
    for k in range(4):
        I(f'v_perm_b32 {v(G + 4 * k + 3)}, {v(G + 4 * k + 2)}, {v(G + 4 * k + 3)}, {s(sK1)}')
    for e in (0, 2):
        I(f'v_pk_add_f32 {v(Q4 + 4 + e, 2)}, {v(Q4 + 4 + e, 2)}, {v(G + e, 2)}')
        I(f'v_pk_add_f32 {v(G + 4 + e, 2)}, {v(G + 4 + e, 2)}, {v(G + 8 + e, 2)}')
    for e in (0, 2):
        I(f'v_pk_add_f32 {v(Q4 + 4 + e, 2)}, {v(Q4 + 4 + e, 2)}, {v(G + 12 + e, 2)}')
    for e in (0, 2):
        I(f'v_pk_add_f32 {v(Q4 + e, 2)}, {v(Q4 + 4 + e, 2)}, {v(G + 4 + e, 2)}')
    if p_:
        I('s_branch L_F1_go')
a.label('L_F1_go')
TS(3)
TSN()
G1 = Q4
I(f'v_permlane32_swap_b32 {v(G1)}, {v(G1 + 2)}')
I(f'v_permlane32_swap_b32 {v(G1 + 1)}, {v(G1 + 3)}')
I(f'v_add_f32 {v(G1)}, {v(G1)}, {v(G1 + 2)}')
I(f'v_add_f32 {v(G1 + 1)}, {v(G1 + 1)}, {v(G1 + 3)}')
I(f'v_cvt_pk_bf16_f32 v16, {v(G1)}, {v(G1 + 1)}')
I('ds_write_b32 v10, v16')
for t in range(4):
    I(f'ds_read_b128 {v(QF + 4 * t, 4)}, v11 offset:{64 * t}')
for half in ((0, 1), (2, 3)):
    for t in range(4):
        if half[0] == 0:
            I(f's_waitcnt lgkmcnt({3 - t})')
        for tau in half:
            I(f'{MFMA} {v(DK + 4 * tau, 4)}, {v(QF + 4 * t, 4)}, {v(WK + 16 * tau + 4 * t, 4)}, {"0" if t == 0 else v(DK + 4 * tau, 4)}')


def q_pack(k):
    lo, hi = DK + 8 * k, DK + 8 * k + 4
    I(f'v_cvt_pk_bf16_f32 {v(24 + k)}, {v(lo)}, {v(hi)}')
    I(f'v_add_u32 {v(lo)}, {s(sM3 + 1)}, {v(lo)}')
    I(f'v_add_u32 {v(hi)}, {s(sM3 + 1)}, {v(hi)}')
    I(f'v_perm_b32 {v(20 + k)}, {v(hi)}, {v(lo)}, {s(sK2)}')
    I(f'v_and_b32 {v(20 + k)}, {s(sM2 + 1)}, {v(20 + k)}')


q_pack(0)
I('v_mov_b32 v22, v24 row_ror:8')
q_pack(1)
I('v_add_u32 v16, v20, v21')
I('v_mov_b32 v23, v25 row_ror:8')
for st in OCT:
    I(f'v_add_u32 v16, v16, v16 {st}')
I(f'v_sub_u32 v16, {s(sM3)}, v16')
I('v_lshrrev_b32 v17, v1, v16')
I('v_lshrrev_b32 v16, v37, v16')
I(f'v_and_or_b32 v20, v17, {s(sM2)}, v20')
I(f'v_and_or_b32 v21, v16, {s(sM2)}, v21')
I('s_mov_b64 exec, 0xff')
I(f'global_store_dwordx4 v12, v[20:23], {P(pWS)} sc1')
TS(4)
I('s_setprio 0')
flag_add(F_H2)
I('s_waitcnt vmcnt(0)')
flag_add(F_H2)
a.label('L_PV1')
tr_addr()
pv_setup()
pv_prewrite(False)


def scalar_prefetch():
    I(f'''
    s_lshr_b32 {s(sHT)}, {s(sY)}, 3
    s_lshl2_add_u32 {s(sHT)}, {s(sX)}, {s(sHT)}
    s_bfe_u32 {s(sDI)}, {s(sY)}, 0x10002
    s_lshl1_add_u32 {s(sHT)}, {s(sHT)}, {s(sDI)}
    s_and_b32 {s(sCI)}, {s(sY)}, 3
    s_lshr_b32 {s(sT1)}, {s(sWV)}, 1
    s_lshl1_add_u32 {s(sCI)}, {s(sCI)}, {s(sT1)}
    ''')
    for bit, ptr, sh_ci, sh_ht, step in ((1, pWUV, 19, 7, 8192), (2, pWO, 13, 16, 128)):
        if not args.spf & bit:
            continue
        lab = a.newlabel('L_spf')
        I(f's_lshl_b32 {s(sT0)}, {s(sCI)}, {sh_ci}')
        I(f's_lshl_b32 {s(sT1)}, {s(sHT)}, {sh_ht}')
        I(f's_add_u32 {s(sT0)}, {s(sT0)}, {s(sT1)}')
        I(f's_add_u32 {s(sB)}, {s(ptr)}, {s(sT0)}')
        I(f's_addc_u32 {s(sB + 1)}, {s(ptr + 1)}, 0')
        I(f's_mov_b32 {s(sCNT)}, 8')
        a.label(lab)
        for k in range(8):
            I(f's_load_dword{"x2 s[62:63]" if args.spx else " s62"}, {P(sB)}, {k * step + args.spx}')
        I(f's_add_u32 {s(sB)}, {s(sB)}, {8 * step}')
        I(f's_addc_u32 {s(sB + 1)}, {s(sB + 1)}, 0')
        I(f's_sub_u32 {s(sCNT)}, {s(sCNT)}, 1')
        I(f's_cmp_lg_u32 {s(sCNT)}, 0')
        I(f's_cbranch_scc1 {lab}')
    TS(12)


for i in range(args.pre):
    if args.spf and i == args.spw:
        scalar_prefetch()
    tr_slot(i)
I('s_branch L_PVs')

a.label('L_F3')
HFG, B1R = 24, 28
W1T = lambda k: 56 + 4 * k if k < 6 else 8 if k == 6 else 4
I('s_waitcnt lgkmcnt(0)')
load_epoch()
if args.ee:
    I('s_waitcnt lgkmcnt(0)')
I('s_barrier')
epoch_ready()


def ffn_w1(dst):
    I(f"""
    s_and_b32 {s(sT3)}, s2, 15
    s_mul_i32 {s(sT0)}, {s(sT3)}, {32 * 3584}
    s_lshr_b32 {s(sT1)}, s2, 4
    s_lshl_b32 {s(sT1)}, {s(sT1)}, 8
    s_add_u32 {s(sT0)}, {s(sT0)}, {s(sT1)}
    v_mul_u32_u24 v12, {8 * 3584}, v2
    v_lshl_add_u32 v12, v1, 4, v12
    v_add_u32 v12, {s(sT0)}, v12
    s_movk_i32 {s(sT2)}, {2 * 3584}
    """)
    for k in range(8):
        I(f'global_load_dwordx4 {v(dst(k), 4)}, v12, {P(pW1)} offset:{3584 * (k & 1)}{NT}')
        if k & 1 and k < 7:
            I(f'v_add_u32 v12, {s(sT2)}, v12')


def ffn_rest(dst, younger):
    global AT, SEL
    AT, SEL = 128, 136
    I(f"""
    s_and_b32 {s(sT3)}, s2, 15
    s_lshr_b32 {s(sT1)}, s2, 4
    s_lshl_b32 {s(sT1)}, {s(sT1)}, 8
    s_lshl_b32 {s(sT3)}, {s(sT3)}, 6
    s_add_u32 {s(sT0)}, {s(sT3)}, {L_XN}
    v_lshl_add_u32 v144, v2, 4, {s(sT0)}
    ds_read_b128 {v(XP, 4)}, v144
    s_lshl_b32 {s(sT0)}, {s(sT1)}, 6
    s_add_u32 {s(sT0)}, {s(sT0)}, {s(sT3)}
    s_lshl_b32 {s(sT0)}, {s(sT0)}, 1
    s_add_u32 {s(sT0)}, {s(sT0)}, {W_HF}
    v_lshrrev_b32 v145, 2, v0
    v_lshlrev_b32 v146, 11, v145
    v_and_b32 v147, 3, v0
    v_lshl_add_u32 v146, v147, 4, v146
    v_add_u32 v146, {s(sT0)}, v146
    v_cmp_gt_u32 {P(sM1)}, v0, 31
    s_and_b32 {s(sT0)}, s2, 3
    s_lshl_b32 {s(sT0)}, {s(sT0)}, 6
    s_add_u32 {s(sT0)}, {s(sT0)}, {s(sT1)}
    s_bfe_u32 {s(sT1)}, s2, 0x10002
    s_lshl3_add_u32 {s(sT0)}, {s(sT1)}, {s(sT0)}
    s_bfe_u32 {s(sT1)}, s2, 0x10003
    s_lshl2_add_u32 {s(sT0)}, {s(sT1)}, {s(sT0)}
    v_lshl_add_u32 v148, v147, 4, {s(sT0)}
    s_lshl_b32 {s(sT0)}, s2, 11
    s_add_u32 {s(sT0)}, {s(sT0)}, {W_HF}
    v_lshlrev_b32 v147, 4, v147
    v_lshl_add_u32 v147, v145, 7, v147
    v_add_u32 v147, {s(sT0)}, v147
    v_lshlrev_b32 v149, 3, v0
    v_add_u32 v149, {L_FF}, v149
    s_mov_b32 {s(sT3)}, 0xffff0000
    """)
    build_sel(150)
    I('s_waitcnt lgkmcnt(0)')
    diag_stage(8, dst, younger)
    I(f'v_cndmask_b32 {v(REC)}, {v(ACC0)}, {v(ACC0 + 2)}, {P(sM1)}')
    I(f'v_cndmask_b32 {v(REC + 1)}, {v(ACC0 + 1)}, {v(ACC0 + 3)}, {P(sM1)}')
    I(f'global_store_dwordx4 v146, {v(REC, 4)}, {P(pWS)} sc1')
    I(f'global_load_dword {v(B1R)}, v148, {P(pB1)}')
    TS(2)
    I(f's_mov_b32 {s(sCNT)}, {args.spin}')
    if args.ffn:
        I('s_waitcnt vmcnt(2)')
        flag_add(C_ACK)
        I('s_waitcnt vmcnt(0)')
    else:
        flag_wait(*((C_ISS, 4) if args.fr else (F_H2, 2)))
    a.label('L_TF')
    I(f'global_load_dwordx4 {v(HFG, 4)}, v147, {P(pWS)} sc1')
    I(f's_sub_u32 {s(sCNT)}, {s(sCNT)}, 1')
    I('s_waitcnt vmcnt(0)')
    I(f'v_cmp_ne_u32 vcc, {v(HFG + 2)}, {v(REC + 2)}')
    a.B('s_cbranch_scc1 L_TF_go')
    a.B('s_cbranch_vccnz L_TF')
    a.label('L_TF_go')
    TSN()
    row_allreduce('v_add_f32', [HFG, HFG + 1], steps=(4, 8))
    I(f'''
    v_permlane32_swap_b32 {v(HFG)}, {v(HFG + 1)}
    v_add_f32 {v(HFG)}, {v(HFG)}, {v(HFG + 1)}
    v_mov_b32 {v(HFG + 1)}, {v(HFG)}
    v_permlane16_swap_b32 {v(HFG)}, {v(HFG + 1)}
    v_lshlrev_b32 v16, 16, {v(B1R)}
    v_add_f32 {v(HFG)}, {v(HFG)}, {v(HFG + 1)}
    v_and_b32 v17, {s(sT3)}, {v(B1R)}
    v_cvt_pk_bf16_f32 {v(HFG)}, {v(HFG)}, {v(HFG)}
    v_cndmask_b32 v16, v16, v17, {P(sM1)}
    v_and_b32 {v(HFG)}, {s(sT3)}, {v(HFG)}
    v_add_f32 {v(HFG)}, {v(HFG)}, v16
    v_cvt_pk_bf16_f32 {v(HFG)}, {v(HFG)}, {v(HFG)}
    v_and_b32 {v(HFG)}, {s(sT3)}, {v(HFG)}
    v_max_f32 {v(HFG)}, 0, {v(HFG)}
    v_mul_f32 {v(HFG)}, {v(HFG)}, {v(HFG)}
    v_cvt_pk_bf16_f32 {v(HFG)}, {v(HFG)}, {v(HFG)}
    v_mov_b32 {v(HFG + 1)}, {v(HFG)}
    v_permlane32_swap_b32 {v(HFG)}, {v(HFG + 1)}
    ''')
    for g_ in range(4):
        for i in range(2):
            I(f'v_mov_b32 {v(HFG + 2 + i)}, {v(HFG + i)} row_newbcast:{g_} row_mask:{1 << g_}')
    I(f'ds_write_b64 v149, {v(HFG + 2, 2)}')
    TS(4)


if not args.ffn:
    I('s_cmp_ge_u32 s2, 224')
    I('s_cbranch_scc1 L_PV1')
    if args.pw & 8:
        I(f'''
        s_lshr_b32 {s(sT0)}, s2, 4
        s_lshl_b32 {s(sT0)}, {s(sT0)}, 8
        s_and_b32 {s(sT1)}, s2, 15
        s_add_u32 {s(sT0)}, {s(sT0)}, {s(sT1)}
        s_lshl_b32 {s(sT0)}, {s(sT0)}, 7
        s_add_u32 {s(sT0)}, {s(sT0)}, {W_HF}
        v_lshrrev_b32 v16, 3, v0
        v_lshlrev_b32 v16, 11, v16
        v_and_b32 v17, 7, v0
        v_lshl_add_u32 v16, v17, 4, v16
        v_add_u32 v16, {s(sT0)}, v16
        v_add_u32 v17, 0x4000, v16
        v_mov_b32 v20, 0
        v_mov_b32 v21, 0
        v_mov_b32 v22, 0
        v_mov_b32 v23, 0
        global_store_dwordx4 v16, v[20:23], {P(pWS)} sc1
        global_store_dwordx4 v17, v[20:23], {P(pWS)} sc1
        ''')
    flag_wait(F_F0, 1)
    ffn_w1(W1T)
    ffn_rest(W1T, 0)
I('s_branch L_PV1')

a.label('L_F2')
I(f'''
v_mov_b32 v16, 0
v_mov_b32 v17, 0
v_mov_b32 v18, 0
v_mov_b32 v19, 0
ds_write_b128 {v(VFL)}, v[16:19]
ds_write_b128 {v(VFL)}, v[16:19] offset:16
ds_write_b128 {v(VFL)}, v[16:19] offset:32
ds_write_b128 {v(VFL)}, v[16:19] offset:48
v_lshlrev_b32 v20, 2, v1
v_add_u32 v20, {L_MA}, v20
v_mov_b32 v21, 0xff800000
ds_write_b32 v20, v21
''')
I('v_and_b32 v5, 3, v0')
I('v_lshlrev_b32 v5, 21, v5')
if args.probe:
    PR = [50, 51, 52, 53, 54, 55, 56, 57]
    for r_ in PR:
        I(f's_mov_b32 {s(r_)}, 0x7fc1a5a5')
    I(f's_lshl_b32 {s(sT0)}, {s(sS)}, 17')
    I(f's_lshl_b32 {s(sT1)}, {s(sGA)}, 7')
    I(f's_add_u32 {s(sT0)}, {s(sT0)}, {s(sT1)}')
I('s_waitcnt lgkmcnt(0)')
if args.probe:
    I(f's_add_u32 {s(sB)}, {s(pCKV)}, {s(sT0)}')
    I(f's_addc_u32 {s(sB + 1)}, {s(pCKV + 1)}, 0')
    for k, pg in enumerate((0, 2, 3, 1, 6, 4, 5, 7)):
        I(f's_load_dword {s(PR[pg])}, {P(sB)}, {pg * 4096}')
    I('s_waitcnt lgkmcnt(4)')
    I(f's_mov_b32 {s(TSB + 28)}, 0')
    for pg in (0, 2, 3, 1, 6, 4, 5, 7):
        I(f's_cmp_lg_u32 {s(PR[pg])}, 0x7fc1a5a5')
        I(f'{"s_subb_u32" if pg & 2 else "s_addc_u32"} {s(TSB + 28)}, {s(TSB + 28)}, 0')
    TS(13)
    I('s_waitcnt lgkmcnt(0)')
load_epoch()
if args.ee:
    I('s_waitcnt lgkmcnt(0)')
I('s_barrier')
if not args.nopt:
    I('s_mov_b64 exec, 7')
    I(f'global_load_dword v22, v5, {P(pWS)} offset:256')
    I('s_mov_b64 exec, 1')
    I(f'global_load_dword v23, v16, {P(pOUT)}')
    I('s_mov_b64 exec, -1')
epoch_ready()


def touch(base_code, offsets):
    I(base_code)
    I(f's_add_u32 {s(sB)}, {s(pWS)}, {s(sT0)}')
    I(f's_addc_u32 {s(sB + 1)}, {s(pWS + 1)}, 0')
    for o in offsets:
        I(f's_load_dword s61, {P(sB)}, {o}')


if args.pt & 8:
    touch(f's_lshr_b32 {s(sT0)}, s2, 4\ns_lshl_b32 {s(sT0)}, {s(sT0)}, 8\ns_and_b32 {s(sT1)}, s2, 15\ns_add_u32 {s(sT0)}, {s(sT0)}, {s(sT1)}\ns_lshl_b32 {s(sT0)}, {s(sT0)}, 7',
          [W_HF + p_ * 2048 for p_ in range(16)])
if args.pt & 4:
    touch(f's_lshl_b32 {s(sT0)}, s2, 12\ns_add_u32 {s(sT0)}, {s(sT0)}, {W_H5}', [z_ * 128 for z_ in range(32)])
if args.pt & 16:
    touch(f's_lshl_b32 {s(sT0)}, s2, 14\ns_add_u32 {s(sT0)}, {s(sT0)}, {W_H3}', [z_ * 128 for z_ in range(128)])
if args.pwq >= 2:
    I(f'''
    s_lshl_b32 {s(sT0)}, {s(sGA)}, 13
    s_add_u32 {s(sT0)}, {s(sT0)}, {s(sS)}
    s_lshl_b32 {s(sT0)}, {s(sT0)}, 8
    s_add_u32 {s(sT0)}, {s(sT0)}, {W_H3}
    v_lshlrev_b32 v6, 15, v2
    v_lshl_add_u32 v6, v1, 4, v6
    v_add_u32 v6, {s(sT0)}, v6
    s_mov_b32 {s(sT1)}, 0x20000
    ''')
    for k in range(16):
        I(f'global_store_dwordx4 v6, v[16:19], {P(pWS)} sc1')
        I(f'v_add_u32 v6, {s(sT1)}, v6')
        if args.pwq > 2:
            I(f's_waitcnt vmcnt({args.pwq - 2})')
if args.warm & 2:
    flag_wait(F_F0, 1)
    I('s_mov_b64 exec, 0')
    I('s_branch L_PVC')
    a.label('L_PVC_back')
    I('s_mov_b64 exec, -1')


a.label('L_QG')
G2, LA = 64, 56
I(f'''
s_lshr_b32 {s(sT1)}, {s(sWV)}, 1
s_lshl1_add_u32 {s(sT0)}, {s(sGA)}, {s(sT1)}
s_lshl_b32 {s(sT0)}, {s(sT0)}, 13
s_add_u32 {s(sT0)}, {s(sT0)}, {W_H2}
v_add_u32 v8, {s(sT0)}, v3
v_add_u32 v9, 0x1000, v8
v_and_b32 v10, 7, v0
v_add_u32 v11, 8, v10
v_lshlrev_b32 v6, 4, v10
v_lshl_add_u32 v6, v0, 8, v6
s_lshl_b32 {s(sT1)}, {s(sT1)}, 7
s_add_u32 {s(sT1)}, {s(sT1)}, {L_QA}
v_add_u32 {v(LA)}, {s(sT1)}, v6
s_mul_i32 {s(sM3)}, {s(sEP)}, {(HASH * 16) & 0xffffffff}
s_add_u32 {s(sM3)}, {s(sM3)}, {(HASH * 8) & 0xffffffff}
''')
for hd in range(1, 8):
    I(f'v_xor_b32 {v(LA + hd)}, {16 * hd}, {v(LA)}')
tr_addr()
pv_setup()
if args.pwq == 1:
    flag_wait(F_H2, 1)
pv_prewrite(True)
I('s_setprio 1')
if args.qa:
    flag_wait(C_ISS, 4)
flag_wait(F_H2, 1 + args.h2)
assert not args.hint2
if args.hint2:
    I(f's_cmp_eq_u32 {s(sWV)}, 0')
    I('s_cbranch_scc1 L_QG_w0')
    I(f's_xor_b32 {s(sT0)}, {s(sY)}, 16')
    I(f's_lshl_b32 {s(sT0)}, {s(sT0)}, 11')
    I(f's_add_u32 {s(sT0)}, {s(sT0)}, {W_H2}')
    I(f's_add_u32 {s(sB)}, {s(pWS)}, {s(sT0)}')
    I(f's_addc_u32 {s(sB + 1)}, {s(pWS + 1)}, 0')
    scalar_poll([k * 256 + 252 for k in range(8)])
    flag_add(F_HINT)
    I('s_branch L_QG_hd')
    a.label('L_QG_w0')
    flag_wait(F_HINT, 1)
    a.label('L_QG_hd')
TS(10)


def qa_loads():
    for k in range(8):
        I(f'global_load_dwordx4 {v(G2 + 4 * k, 4)}, {v(8 + (k >> 2))}, {P(pWS)} offset:{(k & 3) * 1024} sc1')


qa_loads()
for i in range(args.pre):
    tr_slot(i)
I(f's_mov_b32 {s(sCNT)}, {args.spin}')
a.label('L_QG_chk')
for k in range(8):
    d0, d1 = v(G2 + 4 * k), v(G2 + 4 * k + 1)
    I(f's_waitcnt vmcnt({7 - k})')
    I(f'v_and_b32 v6, {s(sK1)}, {d0}')
    I(f'v_and_b32 v7, {s(sK1)}, {d1}')
    I(f'v_xor_b32 {d0}, v6, {d0}')
    I(f'v_xor_b32 {d1}, v7, {d1}')
    I(f'ds_write_b128 {v(LA + k)}, {v(G2 + 4 * k, 4)}')
    I(f'v_lshl_add_u32 v24, v6, v10, {"0" if k == 0 else "v24"}')
    I('v_lshl_add_u32 v24, v7, v11, v24')
    I(f'v_add3_u32 v24, {d0}, {d1}, v24')
for st in OCT:
    I(f'v_add_u32 v24, v24, v24 {st}')
I(f's_sub_u32 {s(sCNT)}, {s(sCNT)}, 1')
I(f'v_cmp_ne_u32 vcc, {s(sM3)}, v24')
a.B('s_cbranch_scc1 L_QG_go')
a.B('s_cbranch_vccz L_QG_go')
I('s_waitcnt lgkmcnt(0)')
I('s_mov_b64 exec, vcc')
qa_loads()
I('s_branch L_QG_chk')
a.label('L_QG_go')
flag_add(C_QA)
I('s_setprio 0')
TS(11)
TSN()
a.label('L_PVs')
for i in range(args.pre, 4):
    if i == args.pwt - 1:
        pv_prewrite(False, True)
    tr_slot(i)

a.label('L_PV')
if args.ffn:
    I(f's_cmp_eq_u32 {s(sWV)}, 3')
    I(f's_cselect_b32 {s(sR)}, s2, 224')
    I(f's_cmp_ge_u32 {s(sR)}, 224')
    I('s_cbranch_scc1 L_PV_now1')
    ffn_w1(W1T)
    a.label('L_PV_now1')
if not args.bm3:
    TS(6)
    I('s_barrier')
if args.pp:
    I(f's_setprio {args.pp}')
I('s_barrier')
a.label('L_PVC')
for u in range(4):
    I(f'ds_read_b128 {v(PF + 4 * u, 4)}, {v(48 + u)}')
LW, MW = 32, 36
I(f'ds_read_b128 {v(LW, 4)}, v43')
I(f'ds_read_b128 {v(MW, 4)}, v42')
TS(7)
O = 16
cvt = lambda k: [f'v_cvt_pk_bf16_f32 {v(O + 4 * r + k)}, {v(ACC + 8 * k + r)}, {v(ACC + 8 * k + 4 + r)}' for r in range(4)]
R4 = range(4)
fill = {}


def place(first, ops):
    for i, t_ in enumerate(ops):
        fill.setdefault(first + i // 2, []).append(t_)


w0 = [f'v_add_f32 {v(LW + r)}, {v(LW + r)}, {v(LW + r)} row_ror:{st}' for st in (8, 4, 2, 1) for r in R4]
w0[0] = 's_waitcnt lgkmcnt(0)\n' + w0[0]
w1 = [f'v_cvt_f16_f32 {v(LW + r)}, {v(LW + r)}' for r in R4]
w1 += [f'v_and_or_b32 {v(LW + r)}, {v(LW + r)}, {s(sT0)}, {v(MW + r)}' for r in R4]
w1 += [f'v_lshrrev_b32 {v(LW + r)}, v1, {v(LW + r)}' for r in R4]
w2 = cvt(0) + [f'v_and_b32 {v(O + 4 * r)}, {s(sK2)}, {v(O + 4 * r)}' for r in R4]
w3 = cvt(1) + [f'v_bfi_b32 {v(O + 4 * r + 1)}, {s(sK1)}, {v(LW + r)}, {v(O + 4 * r + 1)}' for r in R4]
w3 += [f'v_add_u32 {v(CK + r)}, {v(O + 4 * r)}, {v(O + 4 * r + 1)}' for r in R4]
w3 += [f'v_add_u32 {v(CK + r)}, {v(CK + r)}, {v(CK + r)} row_ror:{st}' for st in (8, 4, 2, 1) for r in R4]
allw = w0 + w2 + w1 + w3
place(2, allw[:60])
I(f's_mov_b32 {s(sT0)}, 0xffff')
i = 0
for k in range(4):
    for u in range(4):
        for T in (2 * k, 2 * k + 1):
            if k == 0 and T == 0 and u < 2:
                I(f's_waitcnt lgkmcnt({5 - u})')
            I(f'{MFMA} {v(ACC + 4 * T, 4)}, {v(PF + 4 * u, 4)}, {v(BF + (u * 8 + T) * 4, 4)}, {"0" if u == 0 else v(ACC + 4 * T, 4)}')
            for t_ in fill.get(i, []):
                I(t_)
            i += 1
for t_ in allw[60:] + cvt(2):
    I(t_)
for r in range(4):
    I(f'v_sub_u32 {v(CK + r)}, {s(sK0)}, {v(CK + r)}')
    I(cvt(3)[r])
    I(f'v_lshrrev_b32 {v(CK + r)}, v1, {v(CK + r)}')
    I(f'v_and_or_b32 {v(O + 4 * r)}, {v(CK + r)}, {s(sK1)}, {v(O + 4 * r)}')
    if args.warm & 2 and r == 0:
        a.B('s_cbranch_execz L_PVC_back')
    I(f'global_store_dwordx4 {v(52 + r)}, {v(O + 4 * r, 4)}, {P(pWS)} {args.sf.replace("+", " ")}')
flag_add(C_ST)
TS(8)
if args.ffn:
    I('s_setprio 0')
    I(f's_cmp_ge_u32 {s(sR)}, 224')
    I('s_cbranch_scc1 L_PV_noffn')
    ffn_rest(W1T, 4)
    I('s_branch L_PV_end')
    a.label('L_PV_noffn')
I('s_waitcnt vmcnt(0)')
flag_add(C_ACK)
TS(9)
a.label('L_PV_end')
I('s_waitcnt lgkmcnt(0)')
ts_dump()
I('s_endpgm')

a.label('L_S')
AF, QB, WUV, SA, MK, WO0, QAD = 128, 96, 48, 40, 36, 64, 80
WOR, PL, AW, AT2 = 128, 176, 208, 240
XR2, B2R, OA, W2T, HH = 46, 47, 104, 88, 124
sQ, sDL = sK1, sK2
WOq = lambda q: WO0 + 4 * q if q < 4 else WOR + 4 * (q - 4)
ROT = {0: '', 1: f's_lshl1_add_u32 {s(sT1)}, {s(sW)}, {s(sY)}', 2: f's_mov_b32 {s(sT1)}, {s(sY)}', 3: f's_lshl_b32 {s(sT1)}, {s(sW)}, 1'}[args.rot]
if args.rot:
    ROT += f'\ns_and_b32 {s(sT1)}, {s(sT1)}, 7\ns_lshl_b32 {s(sT1)}, {s(sT1)}, 12\nv_xor_b32 v4, {s(sT1)}, v4'
KS = {0: 12, 1: 16, 2: 19}[args.kmap]
if args.kmap == 0:
    I(f's_lshl_b32 {s(sT0)}, {s(sS)}, 17')
elif args.kmap == 1:
    I(f's_and_b32 {s(sT0)}, {s(sS)}, 15')
    I(f's_lshl_b32 {s(sT0)}, {s(sT0)}, 12')
    I(f's_lshl_b32 {s(sT1)}, {s(sX)}, 21')
    I(f's_add_u32 {s(sT0)}, {s(sT0)}, {s(sT1)}')
else:
    I(f's_lshl_b32 {s(sT0)}, {s(sS)}, 12')
I(f"""
s_lshl_b32 {s(sT1)}, {s(sW)}, {KS + 3}
s_add_u32 {s(sT0)}, {s(sT0)}, {s(sT1)}
s_lshl_b32 {s(sT1)}, {s(sW)}, 8
s_add_u32 {s(sT0)}, {s(sT0)}, {s(sT1)}
v_lshlrev_b32 v4, 1, v2
v_xor_b32 v4, v4, v1
v_lshlrev_b32 v4, 4, v4
v_lshl_add_u32 v4, v2, 10, v4
v_add_u32 v4, {s(sT0)}, v4
{ROT}
v_xor_b32 v26, 0x80, v4
{'v_xor_b32' if args.rot else 'v_add_u32'} v26, {1 << KS}, v26
s_mul_i32 {s(sT1)}, {s(sW)}, {32768 + 8192}
s_mov_b32 m0, {s(sT1)}
s_mov_b32 {s(sT2)}, {2 << KS}
s_mov_b32 {s(sQ)}, {s(sW)}
s_lshr_b32 {s(sHT)}, {s(sY)}, 3
s_lshl2_add_u32 {s(sHT)}, {s(sX)}, {s(sHT)}
s_and_b32 {s(sCI)}, {s(sY)}, 3
s_bfe_u32 {s(sDI)}, {s(sY)}, 0x10002
v_and_b32 v5, 7, v1
v_lshlrev_b32 v5, 1, v5
v_xor_b32 v5, v5, v2
v_lshlrev_b32 v5, 4, v5
v_lshl_add_u32 v5, v1, 8, v5
s_lshl_b32 {s(sT1)}, {s(sW)}, 13
v_add_u32 v5, {s(sT1)}, v5
v_lshl_add_u32 v27, {s(sW)}, 2, {v(VFL)}
""")
I(f"""
s_lshr_b32 {s(sT0)}, {s(sW)}, 1
s_lshl1_add_u32 {s(sT0)}, {s(sCI)}, {s(sT0)}
s_lshl_b32 {s(sT0)}, {s(sT0)}, 19
s_and_b32 {s(sT3)}, {s(sW)}, 1
s_lshl_b32 {s(sT3)}, {s(sT3)}, 16
s_add_u32 {s(sT0)}, {s(sT0)}, {s(sT3)}
s_lshl1_add_u32 {s(sT3)}, {s(sHT)}, {s(sDI)}
s_lshl_b32 {s(sT1)}, {s(sT3)}, 7
s_add_u32 {s(sT0)}, {s(sT0)}, {s(sT1)}
v_lshrrev_b32 v8, 3, v0
v_lshlrev_b32 v8, 13, v8
v_and_b32 v9, 7, v0
v_lshl_add_u32 v8, v9, 4, v8
v_add_u32 v8, {s(sT0)}, v8
""")
I('s_waitcnt lgkmcnt(0)')
load_epoch()
if args.ee:
    I('s_waitcnt lgkmcnt(0)')
I('s_barrier')
I(f"""
s_lshl_b32 {s(sT0)}, {s(sT3)}, 16
s_lshl_b32 {s(sT1)}, {s(sW)}, 8
s_add_u32 {s(sT0)}, {s(sT0)}, {s(sT1)}
v_lshlrev_b32 v34, 12, v2
v_lshl_add_u32 v34, v1, 4, v34
v_add_u32 v34, {s(sT0)}, v34
""")
for b in range(4):
    I(f's_add_u32 {s(sT0)}, {s(sCI)}, {b}')
    I(f's_and_b32 {s(sT0)}, {s(sT0)}, 3')
    I(f's_lshl_b32 {s(sT0)}, {s(sT0)}, 14')
    I(f'v_add_u32 {v(28 + b)}, {s(sT0)}, v34')
build_masks(MK, 9, 10)
TS(1)


def s_setup():
    I(f"""
    v_lshlrev_b32 v10, 4, v1
    v_add_u32 v10, {L_MX}, v10
    s_lshl_b32 {s(sT0)}, {s(sW)}, 2
    v_add_u32 v9, {s(sT0)}, v10
    s_lshl_b32 {s(sT0)}, {s(sW)}, 10
    s_add_u32 {s(sT0)}, {s(sT0)}, {L_P}
    v_add_u32 v11, {s(sT0)}, v3
    v_lshlrev_b32 v33, 2, v1
    v_add_u32 v33, {L_MF}, v33
    s_lshl_b32 {s(sT0)}, {s(sW)}, 8
    s_add_u32 {s(sT0)}, {s(sT0)}, {L_LS}
    v_lshl_add_u32 v32, v0, 2, {s(sT0)}
    v_xor_b32 v6, v1, v2
    v_lshlrev_b32 v6, 4, v6
    v_lshl_add_u32 v6, v2, 8, v6
    """)
    for i in range(4):
        I(f's_add_u32 {s(sT0)}, {s(sW)}, {i}')
        I(f's_and_b32 {s(sT0)}, {s(sT0)}, 3')
        I(f's_lshl_b32 {s(sT0)}, {s(sT0)}, 12')
        I(f's_add_u32 {s(sT0)}, {s(sT0)}, {L_QA}')
        I(f'v_add_u32 {v(QAD + 2 * i)}, {s(sT0)}, v6')
        I(f'v_xor_b32 {v(QAD + 2 * i + 1)}, 64, {v(QAD + 2 * i)}')
    I(f"""
    s_bfe_u32 {s(sT0)}, s2, 0x20004
    s_and_b32 {s(sT1)}, s2, 3
    s_lshl2_add_u32 {s(sT0)}, {s(sT0)}, {s(sT1)}
    s_lshl_b32 {s(sT0)}, {s(sT0)}, 6
    s_bfe_u32 {s(sT1)}, s2, 0x10002
    s_lshl3_add_u32 {s(sT0)}, {s(sT1)}, {s(sT0)}
    s_bfe_u32 {s(sT1)}, s2, 0x10003
    s_lshl2_add_u32 {s(sT0)}, {s(sT1)}, {s(sT0)}
    v_and_b32 v35, 3, v0
    v_lshl_add_u32 v12, v35, 4, {s(sT0)}
    s_mov_b32 {s(sK0)}, 0x20000
    s_lshr_b32 {s(sT1)}, s2, 6
    s_lshl_b32 {s(sT1)}, {s(sT1)}, 10
    s_add_u32 {s(sT0)}, {s(sT0)}, {s(sT1)}
    s_cmp_lt_u32 s2, 224
    s_cselect_b32 {s(sR)}, -1, 0
    s_cselect_b32 {s(sT1)}, 0, 512
    s_sub_u32 {s(sT0)}, {s(sT0)}, {s(sT1)}
    s_lshl1_add_u32 {s(sT0)}, {s(sT0)}, {s(sW)}
    s_lshl_b32 {s(sT0)}, {s(sT0)}, 8
    v_lshlrev_b32 v34, 13, v2
    v_lshl_add_u32 v34, v1, 4, v34
    v_add_u32 v34, {s(sT0)}, v34
    """)


def dma_row(r):
    k = r & 7
    va = 'v26' if k & 1 else 'v4'
    I(f'global_load_lds_dwordx4 {va}, {P(pCKV)}{NT}')
    if r < 30:
        if k == 5:
            I(f's_lshl_b32 {s(sDL)}, {s(sQ)}, 8')
            I(f's_add_u32 {s(sQ)}, {s(sQ)}, 1')
            I(f's_and_b32 {s(sQ)}, {s(sQ)}, 3')
            I(f's_lshl_b32 {s(sT0)}, {s(sQ)}, 8')
            if args.rot:
                I(f's_xor_b32 {s(sDL)}, {s(sT0)}, {s(sDL)}')
                I(f's_or_b32 {s(sDL)}, {s(sDL)}, {6 << 12}')
            else:
                I(f's_sub_u32 {s(sDL)}, {s(sT0)}, {s(sDL)}')
                I(f's_sub_u32 {s(sDL)}, {s(sDL)}, {6 << KS}')
        if args.rot:
            I(f'v_xor_b32 {va}, {s(sDL) if k >= 6 else (6 << 12) if k & 2 else s(sT2)}, {va}')
        else:
            I(f'v_add_u32 {va}, {s(sDL if k >= 6 else sT2)}, {va}')
    if r < 31:
        if k == 7:
            I(f's_lshl2_add_u32 {s(sT0)}, {s(sQ)}, {s(sW)}')
            I(f's_lshl_b32 m0, {s(sT0)}, 13')
        else:
            I('s_add_u32 m0, m0, 0x400')
    if r == args.qa and r:
        flag_add(C_ISS)
    if r == args.hr and r:
        flag_add(C_ER)


def stage_addr(i):
    I(f's_add_u32 {s(sT1)}, {s(sW)}, {i}')
    I(f's_and_b32 {s(sT1)}, {s(sT1)}, 3')
    I(f's_lshl_b32 {s(sT1)}, {s(sT1)}, 15')
    I(f'v_add_u32 v16, {s(sT1)}, v5')
    for t in range(1, 4):
        I(f'v_xor_b32 {v(16 + t)}, {64 * t}, v16')


def stage_reads(i):
    for t in range(4):
        for tau in range(2):
            I(f'ds_read_b128 {v(AF + 32 * i + 8 * t + 4 * tau, 4)}, {v(16 + t)} offset:{4096 * tau}')


tail = []
for i in range(4):
    tail.append(f'global_load_dwordx4 {v(WO0 + 4 * i, 4)}, v28, {P(pWO)} offset:{1024 * i}{NT if args.nto else ""}')
for i in range(4):
    tail.append(f'global_load_dwordx4 {v(WUV + 4 * i, 4)}, v8, {P(pWUV)}{NT}' + (f'\nv_add_u32 v8, {s(sK0)}, v8' if i < 3 else ''))
for i in range(2):
    tail.append(f'global_load_dwordx4 {v(W2T + 4 * i, 4)}, v34, {P(pW2)} offset:{1024 * i}{NT}')
w2_loads = []
if args.ffn:
    w2_loads = tail[8:10]
    tail = tail[:8]
    args.ns = min(args.ns, 4) if args.ns == 6 else args.ns
wuv_loads = []
if args.wuv:
    assert args.tord == 1
    wuv_loads = tail[4:8]
    tail = tail[:4] + tail[8:]
elif args.tord == 1:
    tail = tail[:4] + tail[8:10] + tail[4:8]
if args.tord == 2:
    tail = tail[4:8] + tail[8:10] + tail[:4]
assert args.nt1 + args.ns + args.ne <= len(tail)

depth = lambda r: args.d1 if r < args.k1 else (args.d2 if r < args.k2 else args.d3)
for r in range(args.d1):
    dma_row(r)
s_setup()
I(f'global_load_dword v6, v12, {P(pX)}')
I(f'global_load_dword v7, v12, {P(pB2)}')
if args.warm & 1:
    I('s_mov_b64 exec, 0')
    I('s_branch L_SM_nb')
    a.label('L_SM_back')
    I('s_mov_b64 exec, -1')
I('s_mov_b64 vcc, -1')
stg = 0
for r in range(args.d1, 32):
    if args.tpos <= r < args.tpos + args.ne:
        I(tail.pop(0))
    if args.wuv == 2 and args.k1 <= r < args.k1 + 4:
        I(wuv_loads.pop(0))
    dma_row(r)
    d = depth(r)
    if args.dyn and r >= args.k1 and r < 31:
        lab = a.newlabel('L_dy')
        a.B(f's_cbranch_vccz {lab}')
        I(f'ds_read_b32 {v(VFT)}, {v(VFL)} offset:{4 * F_H2}')
        I(f's_waitcnt vmcnt({args.dyn}) lgkmcnt(0)')
        I(f'v_cmp_eq_u32 vcc, 0, {v(VFT)}')
        a.label(lab)
    if r + 1 > d and r < 31:
        I(f's_waitcnt vmcnt({d})')
        if r + 1 - d >= 8 * (stg + 1):
            flag_add(K0, 27)
            stage_addr(stg)
            stage_reads(stg)
            stg += 1
TS(2)
while stg < (3 if args.p2 < 0 else 2):
    stage_addr(stg)
    I(f's_waitcnt vmcnt({24 - 8 * stg})')
    flag_add(K0, 27)
    stage_reads(stg)
    stg += 1
for _ in range(args.nt1):
    I(tail.pop(0))
if args.qa == 32:
    flag_add(C_ISS)
stage_addr(3 if args.p2 < 0 else 2)
assert args.p2 < 0 or (stg == 2 and args.p2 <= 8 and args.p2 <= args.last)
epoch_ready()
I('s_setprio 2')
flag_wait(C_QA, 2)
TS(4)
LOOK = 4


def qa_read(t):
    I(f'ds_read_b128 {v(QB + 4 * (t & 7), 4)}, {v(QAD + 2 * (t >> 2) + (t & 1))} offset:{1024 * (t & 3)}')


def wo_rest():
    for q in range(4, 16):
        I(f'global_load_dwordx4 {v(WOq(q), 4)}, {v(28 + (q >> 2))}, {P(pWO)} offset:{1024 * (q & 3)}{NTS}')


def s_mfma(t):
    for tau in range(2):
        I(f'{MFMA} {v(SA + 4 * tau, 4)}, {v(AF + 8 * t + 4 * tau, 4)}, {v(QB + 4 * (t & 7), 4)}, {"0" if t == 0 else v(SA + 4 * tau, 4)}')


ldsq = []


def pickup(i):
    I(f's_waitcnt vmcnt({8 * (3 - i) + args.nt1})')
    stage_reads(i)
    ldsq.extend([('A', 4 * i + t) for t in range(4) for _ in range(2)])
    if i < 3 or not args.bm3:
        flag_add(K0, 27)
        ldsq.append(('F', i))
    if i == 2:
        stage_addr(3)
    else:
        TS(3)


waited = -1
for t in range(LOOK):
    qa_read(t)
    ldsq.append(('Q', t))
for t in range(16):
    if t == args.p2:
        pickup(2)
    if t == args.last:
        pickup(3)
    if t + LOOK < 16:
        qa_read(t + LOOK)
        ldsq.append(('Q', t + LOOK))
    need_ = max(i for i, o in enumerate(ldsq) if o in (('Q', t), ('A', t)))
    if need_ > waited:
        younger = min(15, len(ldsq) - 1 - need_)
        I(f's_waitcnt lgkmcnt({younger})')
        waited = len(ldsq) - 1 - younger
    s_mfma(t)
    if t >= 12:
        for _ in range((args.ns + 3 - (t - 12)) // 4):
            if tail:
                I(tail.pop(0))
TS(5)
a.label('L_SM')
I(f'''
s_mov_b32 {s(sT3)}, 0xffff0000
s_mov_b32 {s(sT0)}, 0x3db504f3
s_mov_b32 {s(sT1)}, 0x3fb8aa3b
v_max3_f32 v24, {v(SA)}, {v(SA + 1)}, {v(SA + 2)}
v_max3_f32 v25, {v(SA + 4)}, {v(SA + 5)}, {v(SA + 6)}
v_max3_f32 v24, v24, {v(SA + 3)}, {v(SA + 7)}
v_max_f32 v24, v24, v25
''')
if args.dsmax:
    I(f'ds_max_f32 v33, v24 offset:{L_MA - L_MF}')
else:
    cross_rows_allreduce('v_max_f32', 24, 25)
    I('ds_write_b32 v9, v24')
if args.mimic:
    round_pairs(SA, 8, 16)
I('s_waitcnt lgkmcnt(0)')
I('s_barrier')
a.label('L_SM_nb')
I(f'ds_read_b32 v24, v33 offset:{L_MA - L_MF}' if args.dsmax else 'ds_read_b128 v[20:23], v10')
for i in range(8):
    I(f'v_mul_f32 {v(SA + i)}, {s(sT0)}, {v(SA + i)}')
if args.mimic:
    round_pairs(SA, 8, 16)
I('s_waitcnt lgkmcnt(0)')
if not args.dsmax:
    I('v_max3_f32 v24, v20, v21, v22')
    I('v_max_f32 v24, v24, v23')
if args.mimic:
    I('v_cvt_pk_bf16_f32 v24, v24, v24')
    I(f'v_and_b32 v24, {s(sT3)}, v24')
I(f'v_mul_f32 v24, {s(sT0)}, v24')
assert args.mimic
I('v_cvt_pk_bf16_f32 v24, v24, v24')
I(f'v_and_b32 v25, {s(sT3)}, v24')
I(f'v_mul_f32 v24, {s(sT1)}, v25')
I('ds_write_b32 v33, v25')
for i in range(8):
    I(f'v_fma_f32 {v(SA + i)}, {v(SA + i)}, {s(sT1)}, -v24')
for i in range(8):
    I(f'v_exp_f32 {v(SA + i)}, {v(SA + i)}')
for i in range(4):
    I(f'v_cvt_pk_bf16_f32 {v(16 + i)}, {v(SA + 2 * i)}, {v(SA + 2 * i + 1)}')
I('ds_write_b128 v11, v[16:19]')
I(f's_mov_b32 {s(sT0)}, 0x3f803f80')
I(f'v_dot2_f32_bf16 v25, v16, {s(sT0)}, 0')
for i in range(1, 4):
    I(f'v_dot2_f32_bf16 v25, {v(16 + i)}, {s(sT0)}, v25')
I('ds_write_b32 v32, v25')
if args.warm & 1:
    a.B('s_cbranch_execz L_SM_back')
I('s_waitcnt lgkmcnt(0)')
I('s_barrier')
I('s_setprio 0')
TS(6)
I(f'v_mov_b32 {v(XR2)}, v6')
I(f'v_mov_b32 {v(B2R)}, v7')
for _ in range(args.nb):
    if tail:
        I(tail.pop(0))
if args.wor == 1:
    wo_rest()
I(f'''
v_lshlrev_b32 v10, 3, v0
v_add_u32 v10, {L_FF}, v10
s_lshl2_add_u32 {s(sT0)}, {s(sHT)}, {s(sCI)}
s_lshl2_add_u32 {s(sT0)}, {s(sT0)}, {s(sW)}
s_lshl_b32 {s(sT0)}, {s(sT0)}, 13
s_add_u32 {s(sT0)}, {s(sT0)}, {W_H3}
v_lshlrev_b32 v4, 11, v2
v_lshl_add_u32 v4, v1, 4, v4
v_add_u32 v4, {s(sT0)}, v4
s_mul_i32 {s(sK1)}, {s(sEP)}, {(HASH * 16) & 0xffffffff}
s_add_u32 {s(sK1)}, {s(sK1)}, {(HASH * 8) & 0xffffffff}
s_mov_b32 {s(sK2)}, {EMB}
s_lshl_b32 {s(sT0)}, {s(sW)}, 2
s_add_u32 {s(sT0)}, {s(sT0)}, {L_MX}
v_mov_b32 v7, {s(sT0)}
v_mov_b32 v45, {L_MX}
s_lshl_b32 {s(sT0)}, {s(sW)}, 18
s_lshl_b32 {s(sT1)}, s2, {6 + args.h5}
s_add_u32 {s(sT0)}, {s(sT0)}, {s(sT1)}
s_add_u32 {s(sT0)}, {s(sT0)}, {W_H5}
v_lshrrev_b32 v44, {2 + args.h5}, v0
v_lshlrev_b32 v44, {14 + args.h5}, v44
v_and_b32 v16, {7 if args.h5 else 3}, v0
v_lshl_add_u32 v44, v16, 4, v44
v_add_u32 v44, {s(sT0)}, v44
v_and_b32 v16, 1, v2
v_lshrrev_b32 v17, 1, v2
s_lshl_b32 {s(sT0)}, {s(sW)}, 9
s_add_u32 {s(sT1)}, {s(sT0)}, {L_CL}
v_add_u32 v40, {s(sT1)}, v3
s_add_u32 {s(sT1)}, {s(sT0)}, {L_CX}
v_and_b32 v42, 7, v0
v_lshlrev_b32 v42, 5, v42
v_lshl_add_u32 v42, v16, 4, v42
v_lshl_add_u32 v42, v17, 8, v42
v_add_u32 v42, {s(sT1)}, v42
s_lshl_b32 {s(sT0)}, {s(sW)}, 7
s_add_u32 {s(sT0)}, {s(sT0)}, {L_CL}
v_lshrrev_b32 v41, 3, v0
v_lshl_add_u32 v41, v41, 4, {s(sT0)}
v_lshl_add_u32 v41, v35, 2, v41
v_bfe_u32 v9, v0, 2, 1
v_lshl_add_u32 v41, v9, 10, v41
v_lshl_add_u32 v9, v9, 3, v45
v_lshrrev_b32 v43, 2, v1
v_add_u32 v43, {s(sCI)}, v43
v_and_b32 v43, 3, v43
v_lshlrev_b32 v43, 4, v43
v_lshl_add_u32 v43, v2, 2, v43
v_add_u32 v43, v43, v35
v_lshlrev_b32 v43, 2, v43
v_add_u32 v43, {L_CX}, v43
v_mov_b32 v33, {s(sEP)}
v_cmp_gt_u32 {P(sM1)}, v0, 31
v_and_b32 v16, 1, v0
v_cmp_eq_u32 {P(sM2)}, 1, v16
''')
if args.pw & 4 and args.pwt != 2:
    for e in range(4):
        I(f'v_mov_b32 {v(20 + e)}, 0')
    I(f'global_store_dwordx4 v44, v[20:23], {P(pWS)} sc1')
if args.pfu:
    I(f'''
    s_lshl2_add_u32 {s(sT0)}, {s(sCI)}, {s(sW)}
    s_lshl_b32 {s(sT0)}, {s(sT0)}, 18
    s_xor_b32 {s(sT1)}, {s(sDI)}, 1
    s_lshl1_add_u32 {s(sT1)}, {s(sHT)}, {s(sT1)}
    s_lshl_b32 {s(sT1)}, {s(sT1)}, 7
    s_add_u32 {s(sT0)}, {s(sT0)}, {s(sT1)}
    v_lshl_add_u32 v11, v0, 13, {s(sT0)}
    ''')
    pf = f's_mov_b32 exec_hi, 0\nglobal_load_dword v126, v11, {P(pWUV)}{NT}\ns_mov_b64 exec, -1'
    tail = tail + [pf] if args.pfu == 1 else [pf] + tail


def lt_read():
    I(f's_lshl_b32 {s(sT0)}, s2, 9')
    I(f's_add_u32 {s(sT0)}, {s(sT0)}, {W_LT}')
    I(f's_add_u32 {s(sB)}, {s(pWS)}, {s(sT0)}')
    I(f's_addc_u32 {s(sB + 1)}, {s(pWS + 1)}, 0')
    for k in range(4):
        I(f's_load_dword {s(96 + k)}, {P(sB)}, {128 * k}')


def lt_signal():
    lab = a.newlabel('L_lts')
    I(f's_cmp_lg_u32 {s(sW)}, 0')
    I(f's_cbranch_scc1 {lab}')
    I('v_mul_u32_u24 v11, 53, v0')
    I('v_add3_u32 v11, v11, s2, 37')
    I('v_and_b32 v11, 0xff, v11')
    I('v_lshl_add_u32 v11, v11, 2, v0')
    I('v_lshlrev_b32 v11, 7, v11')
    I(f'v_add_u32 v11, {W_LT}, v11')
    I('s_mov_b64 exec, 15')
    I(f'global_store_dword v11, v33, {P(pWS)} sc1')
    I('s_mov_b64 exec, -1')
    a.label(lab)


def lt_decide():
    I('s_waitcnt lgkmcnt(0)')
    I(f's_mov_b32 {s(sT0)}, 0')
    for k in range(4):
        I(f's_cmp_eq_u32 {s(96 + k)}, {s(sEP)}')
        I(f's_addc_u32 {s(sT0)}, {s(sT0)}, 0')
    if args.ts and args.tsn == 4:
        I(f's_mov_b32 {s(TSB + 30)}, {s(sT0)}')
    I(f's_cmp_ge_u32 {s(sT0)}, {args.ltq}')


if args.lt == 1:
    lt_read()
if args.lt and args.lts:
    lt_signal()
if tail or args.wor == 2:
    flag_wait(C_ST, 4)
if args.lt == 2:
    lt_read()
if args.lt and not args.lts:
    lt_signal()
late_uv = list(tail)
if args.ltf:
    lt_decide()
    I('s_cbranch_scc1 L_late')
while tail:
    I(tail.pop(0))
if args.lt and not args.ltf:
    lt_decide()
    I('s_cbranch_scc1 L_nogate')
if args.wor == 2:
    wo_rest()
flag_wait(C_ACK if args.ew else C_ST, 4)
for q in range(4, 4 + args.wpre):
    I(f'global_load_dwordx4 {v(WOq(q), 4)}, {v(28 + (q >> 2))}, {P(pWO)} offset:{1024 * (q & 3)}{NTS}')
if args.dly:
    I(f's_sleep {args.dly}')
if args.gv:
    I(f's_waitcnt vmcnt({args.gv - 1})')
a.label('L_nogate')
TS(8)
U = 96
nwo = 0


def gather(first, w2_loads=(), wpre=args.wpre):
    global nwo
    for q in range(8):
        I(f'global_load_dwordx4 {v(PL + 4 * q, 4)}, v4, {P(pWS)} offset:{q * 256} {args.lf.replace("+", " ")} ')
    n2 = len(w2_loads) if first else 0
    if first:
        for t_ in w2_loads:
            I(t_)
    n_ = 0
    for q in range(8):
        d0, d1 = v(PL + 4 * q), v(PL + 4 * q + 1)
        I(f's_waitcnt vmcnt({7 - q + n_ + n2})')
        if first and args.wor == 3:
            for _ in range((args.nin + 7 - q) // 8):
                qq = 4 + n_ + wpre
                if qq > 15:
                    continue
                I(f'global_load_dwordx4 {v(WOq(qq), 4)}, {v(28 + (qq >> 2))}, {P(pWO)} offset:{1024 * (qq & 3)}{NTS}')
                n_ += 1
        I(f'v_and_b32 v19, {s(sK2)}, {d0}')
        I(f'v_and_b32 {v(U + q)}, {s(sK2)}, {d1}')
        I(f'v_xor_b32 {d0}, v19, {d0}')
        I(f'v_lshl_add_u32 v19, v19, v1, {d1}')
        I(f'v_xor_b32 {d1}, {v(U + q)}, {d1}')
        I(f'v_lshlrev_b32 {v(U + q)}, v1, {v(U + q)}')
        I(f'v_add3_u32 v32, {d0}, v19, {"0" if q == 0 else "v32"}')
    if first:
        nwo = n_


gather(True, w2_loads)
if args.ltf:
    I('s_branch L_late_j')
    a.label('L_late')
    TS(8)
    assert args.nin == 12
    gather(True, late_uv, 0)
    a.label('L_late_j')
I(f's_mov_b32 {s(sCNT)}, {args.spin}')
a.label('L_T3_chk')
for k in range(4):
    I(f'v_or_b32 {v(20 + k)}, {v(U + k)}, {v(U + k)} row_ror:8 bank_mask:0x3')
I('v_add_u32 v32, v32, v32 row_ror:8')
for k in range(4):
    I(f'v_or_b32 {v(20 + k)}, {v(U + 4 + k)}, {v(U + 4 + k)} row_ror:8 bank_mask:0xc')
I('v_add_u32 v32, v32, v32 row_ror:4')
for k in range(2):
    I(f'v_or_b32 {v(24 + k)}, {v(20 + k)}, {v(20 + k)} row_shl:4 bank_mask:0x5')
for k in range(2):
    I(f'v_or_b32 {v(24 + k)}, {v(22 + k)}, {v(22 + k)} row_shr:4 bank_mask:0xa')
I('v_add_u32 v32, v32, v32 row_ror:2')
for k in range(2):
    I(f'v_or_b32 {v(24 + k)}, {v(24 + k)}, {v(24 + k)} quad_perm:[1,0,3,2]')
I('v_add_u32 v32, v32, v32 row_ror:1')
for k in range(2):
    I(f'v_or_b32 {v(24 + k)}, {v(24 + k)}, {v(24 + k)} quad_perm:[2,3,0,1]')
I(f'v_cmp_ne_u32 vcc, {s(sK1)}, v32')
I(f's_sub_u32 {s(sCNT)}, {s(sCNT)}, 1')
I(f'v_cndmask_b32 v5, v24, v25, {P(sM2)}')
a.B('s_cbranch_vccz L_T3_go')
a.B('s_cbranch_scc1 L_T3_go')
I('s_mov_b64 exec, vcc')
gather(False)
I('s_branch L_T3_chk')
a.label('L_T3_go')
I('s_mov_b64 exec, -1')
TS(7)
wo_late = [f'global_load_dwordx4 {v(WOq(qq), 4)}, {v(28 + (qq >> 2))}, {P(pWO)} offset:{1024 * (qq & 3)}{NTS}' for qq in range(4 + nwo + args.wpre, 16)] if args.wor == 3 else []
nwo += len(wo_late)
if not args.nip:
    while wo_late:
        I(wo_late.pop(0))
I(f's_mov_b32 {s(sT1)}, 0x3fb8aa3b')
I(f'v_and_b32 v6, {s(sT3)}, v5')
I('v_cvt_f32_f16 v21, v5')
I(f'v_mul_f32 v6, {s(sT1)}, v6')
I('v_mul_f32 v21, 0.5, v21')
I('v_max_f32 v18, v6, v6 row_ror:8')
row_allreduce('v_max_f32', [18], steps=(4, 1))
cross_rows_allreduce('v_max_f32', 18, 19)
I('''
v_sub_f32 v17, v6, v18
v_exp_f32 v17, v17
v_cvt_pk_bf16_f32 v16, v17, v17
v_mul_f32 v17, v17, v21
''')
TS(1)
red = [f'v_add_f32 v17, v17, v17 row_ror:{st}' for st in (8, 4, 2, 1)]
red += ['v_mov_b32 v19, v17', 'v_permlane16_swap_b32 v19, v17\nv_add_f32 v17, v17, v19\nv_mov_b32 v19, v17',
        'v_permlane32_swap_b32 v19, v17\nv_add_f32 v17, v17, v19', 'ds_write2_b32 v7, v18, v17 offset0:0 offset1:4']
QL = lambda q: 8 * (q >> 2) + 4 * ((q >> 1) & 1) + (q & 1)


def w_and(q):
    for r in range(4):
        I(f'v_and_b32 {v(AW + 4 * (q & 1) + r)}, v16, {v(MK + r)} row_newbcast:{QL(q)}')


w_and(0)
for q in range(8):
    if q < 7:
        w_and(q + 1)
    I(f'{MFMA} v[24:27], {v(AW + 4 * (q & 1), 4)}, {v(PL + 4 * q, 4)}, {"0" if q == 0 else "v[24:27]"}')
    if q < 4:
        I(red[q])
    for _ in range(2):
        if wo_late:
            I(wo_late.pop(0))
for t_ in red[4:]:
    I(t_)
I('s_mov_b32 exec_hi, 0')
I('ds_write_b128 v40, v[24:27]')
I('s_mov_b64 exec, -1')
I('s_waitcnt lgkmcnt(0)')
TS(9)
TSN(0)
I('s_barrier')
I('ds_read_b128 v[96:99], v45')
I('ds_read_b64 v[100:101], v9')
I('ds_read2st64_b32 v[108:109], v41 offset0:0 offset1:2')
I('ds_read_b64 v[102:103], v9 offset:16')
I(f'ds_read_b64 {v(HH, 2)}, v10')
I('''
s_waitcnt lgkmcnt(4)
v_max3_f32 v18, v96, v97, v98
v_max_f32 v18, v18, v99
s_waitcnt lgkmcnt(2)
v_sub_f32 v100, v100, v18
v_sub_f32 v101, v101, v18
v_exp_f32 v100, v100
v_exp_f32 v101, v101
v_mul_f32 v20, v100, v108
v_fmac_f32 v20, v101, v109
s_waitcnt lgkmcnt(0)
v_mul_f32 v18, v100, v102
v_add_f32 v21, v20, v20 row_shl:4 bank_mask:0x5
v_fmac_f32 v18, v101, v103
v_add_f32 v21, v20, v20 row_shr:4 bank_mask:0xa
v_cvt_pk_bf16_f32 v20, v21, v21
v_add_f32 v18, v18, v18 row_half_mirror
''')
if args.ltf:
    I(f's_waitcnt vmcnt({nwo})')
QP = lambda i: f'quad_perm:[{i},{i},{i},{i}]'
for r in range(4):
    I(f'v_and_b32 {v(AW + r)}, v20, {v(MK + r)} {QP(0)}')
for i in range(4):
    if i < 3:
        for r in range(4):
            I(f'v_and_b32 {v(AW + 4 * (i + 1) + r)}, v20, {v(MK + r)} {QP(i + 1)}')
    else:
        I('v_rcp_f32 v18, v18')
    I(f'{MFMA} v[24:27], {v(AW + 4 * i, 4)}, {v(WUV + 4 * i, 4)}, {"0" if i == 0 else "v[24:27]"}')
for i in range(2):
    I(f'v_and_b32 {v(HH + i)}, {s(sR)}, {v(HH + i)}')
for r in range(4):
    I(f'v_and_b32 {v(AW + 16 + r)}, {v(HH)}, {v(MK + r)}')
I('s_mov_b32 exec_lo, 0x00ff00ff')
I('s_mov_b32 exec_hi, 0xff00ff00')
I('ds_write_b128 v42, v[24:27]')
I('s_mov_b64 exec, -1')
for r in range(4):
    I(f'v_and_b32 {v(AW + 20 + r)}, {v(HH + 1)}, {v(MK + r)}')
I('s_waitcnt lgkmcnt(0)')
I('s_barrier')
for k in range(4):
    I(f'ds_read2st64_b32 {v(108 + 2 * k, 2)}, v43 offset0:{2 * k} offset1:{2 * k + 1}')
TS(10)
I(f's_waitcnt vmcnt({nwo})')
for i in range(2):
    I(f'{MFMA} {v(OA, 4)}, {v(AW + 16 + 4 * i, 4)}, {v(W2T + 4 * i, 4)}, {"0" if i == 0 else v(OA, 4)}')
I('v_mov_b32 v22, v33')
I('v_mov_b32 v23, v33')
I('''
s_waitcnt lgkmcnt(2)
v_add_f32 v108, v108, v109
v_add_f32 v110, v110, v111
s_waitcnt lgkmcnt(0)
v_add_f32 v112, v112, v113
v_add_f32 v114, v114, v115
v_add_f32 v108, v108, v110
v_add_f32 v112, v112, v114
v_add_f32 v108, v108, v112
''')
I('v_mul_f32 v108, v108, v18')
I('v_cvt_pk_bf16_f32 v20, v108, v108')


def wo_and(q):
    for r in range(4):
        I(f'v_and_b32 {v(AT2 + 4 * (q & 1) + r)}, v20, {v(MK + r)} row_newbcast:{q}')


wo_and(0)
for q in range(16):
    if q < 15:
        wo_and(q + 1)
    if args.wor == 3 and q >= 4:
        I(f's_waitcnt vmcnt({15 - q})')
    I(f'{MFMA} {v(OA, 4)}, {v(AT2 + 4 * (q & 1), 4)}, {v(WOq(q), 4)}, {v(OA, 4)}')
TS(11)
I(f'v_cndmask_b32 v20, {v(OA)}, {v(OA + 2)}, {P(sM1)}')
I(f'v_cndmask_b32 v21, {v(OA + 1)}, {v(OA + 3)}, {P(sM1)}')
I(f'global_store_dwordx4 v44, v[20:23], {P(pWS)} sc1')
TS(12)
I('s_cmp_lt_u32 s2, 192')
I('s_cbranch_scc1 L_T_ep' if args.ee else 's_cbranch_scc1 L_T_done')
I(f'''
s_bfe_u32 {s(sT0)}, s2, {0x50001 if args.h5 else 0x60000}
s_lshl2_add_u32 {s(sT0)}, {s(sT0)}, {s(sW)}
s_lshl_b32 {s(sT0)}, {s(sT0)}, {12 + args.h5}
s_and_b32 {s(sT1)}, s2, {args.h5}
s_lshl_b32 {s(sT1)}, {s(sT1)}, 6
s_add_u32 {s(sT0)}, {s(sT0)}, {s(sT1)}
s_add_u32 {s(sT0)}, {s(sT0)}, {W_H5}
v_lshrrev_b32 v4, 2, v0
v_lshlrev_b32 v4, {6 + args.h5}, v4
v_lshl_add_u32 v4, v35, 4, v4
v_add_u32 v4, {s(sT0)}, v4
v_add_u32 v5, {2048 << args.h5}, v4
v_lshrrev_b32 v6, 1, v2
v_lshl_add_u32 v8, v6, 2, v35
v_lshlrev_b32 v8, 5, v8
v_and_b32 v6, 1, v2
v_lshl_add_u32 v8, v6, 2, v8
s_lshl_b32 {s(sT0)}, {s(sW)}, 3
s_add_u32 {s(sT0)}, {s(sT0)}, {L_CL}
v_add_u32 v8, {s(sT0)}, v8
v_and_b32 v9, 7, v0
v_lshlrev_b32 v9, 5, v9
v_add_u32 v9, {L_CL}, v9
v_lshlrev_b32 v108, 16, {v(XR2)}
v_and_b32 v109, {s(sT3)}, {v(XR2)}
v_lshlrev_b32 v110, 16, {v(B2R)}
v_and_b32 v111, {s(sT3)}, {v(B2R)}
v_add_f32 v108, v108, v110
v_add_f32 v109, v109, v111
v_mov_b32 v108, v109 quad_perm:[0,1,2,3] bank_mask:0xa
s_mov_b32 {s(sCNT)}, {args.spin}
''')
if args.a5:
    I('s_waitcnt vmcnt(0)')
if args.dly5:
    I(f's_sleep {args.dly5}')
f5 = lambda k: f'global_load_dwordx4 {v(128 + 4 * k, 4)}, {v(4 + (k >> 1))}, {P(pWS)} offset:{(1024 << args.h5) * (k & 1)} sc1'
a.label('L_T5_retry')
for k in range(4):
    I(f5(k))
a.label('L_T5_chk')
I(f's_sub_u32 {s(sCNT)}, {s(sCNT)}, 1')
I('s_waitcnt vmcnt(2)')
I('v_xor_b32 v17, v130, v33')
I('v_add_f32 v20, v128, v132')
I('v_bitop3_b32 v17, v134, v33, v17 bitop3:0xbe')
I('v_add_f32 v21, v129, v133')
I('s_waitcnt vmcnt(0)')
I('v_bitop3_b32 v17, v138, v33, v17 bitop3:0xbe')
I('v_add_f32 v24, v136, v140')
I('v_bitop3_b32 v17, v142, v33, v17 bitop3:0xbe')
I('v_add_f32 v25, v137, v141')
I('v_cmp_ne_u32 vcc, 0, v17')
I('v_add_f32 v20, v20, v24')
I('v_add_f32 v21, v21, v25')
a.B('s_cbranch_scc1 L_T5_go')
if args.m5:
    a.B('s_cbranch_vccz L_T5_go')
    for k in range(4):
        lab = a.newlabel('L_r5')
        I(f'v_cmp_ne_u32 vcc, {v(130 + 4 * k)}, v33')
        I('s_nop 0')
        a.B(f's_cbranch_vccz {lab}')
        I('s_mov_b64 exec, vcc')
        I(f5(k))
        I('s_mov_b64 exec, -1')
        a.label(lab)
    I('s_waitcnt vmcnt(0)')
    I('s_branch L_T5_chk')
else:
    a.B('s_cbranch_vccnz L_T5_retry')
a.label('L_T5_go')
TS(13)
TSN(3)
I('''
v_permlane32_swap_b32 v20, v21
v_add_f32 v20, v20, v21
v_add_f32 v20, v20, v20 row_ror:4
v_add_f32 v20, v20, v20 row_ror:8
ds_write_b32 v8, v20
s_waitcnt lgkmcnt(0)
s_barrier
''')
I(f's_cmp_lg_u32 {s(sW)}, 0')
I('s_cbranch_scc1 L_T_done')
I('''
ds_read_b128 v[128:131], v9
ds_read_b128 v[132:135], v9 offset:16
s_waitcnt lgkmcnt(1)
v_add_f32 v128, v128, v129
v_add_f32 v130, v130, v131
v_add_f32 v108, v108, v128
v_add_f32 v108, v108, v130
s_waitcnt lgkmcnt(0)
v_add_f32 v132, v132, v133
v_add_f32 v134, v134, v135
v_add_f32 v108, v108, v132
v_add_f32 v108, v108, v134
''')
if args.pert:
    import struct
    kind, val = args.pert.split(',')
    bits = struct.unpack('<I', struct.pack('<f', float(val)))[0]
    if kind == 'm':
        I(f'v_mul_f32 v108, {bits}, v108')
    elif kind == 'a':
        I(f'v_add_f32 v108, {bits}, v108')
    else:
        I('s_cmp_lg_u32 s2, 200')
        I('s_cbranch_scc1 L_nop')
        I('s_mov_b64 exec, 1')
        I(f'v_add_f32 v108, {bits}, v108')
        I('s_mov_b64 exec, -1')
        a.label('L_nop')
        I('s_nop 1')
I('''
v_mov_b32 v109, v108 row_shl:4
v_cvt_pk_bf16_f32 v20, v108, v109
s_mov_b64 exec, 15
''')
I(f'global_store_dword v12, v20, {P(pOUT)} {args.of.replace("+", " ")}')
if args.ee:
    I('s_branch L_T_done')
    a.label('L_T_ep')
    I(f's_lshl2_add_u32 {s(sT0)}, s2, {s(sW)}')
    I(f's_cmp_lg_u32 {s(sT0)}, 400')
else:
    I('s_cmp_lg_u32 s2, 0xe0')
I('s_cbranch_scc1 L_T_done')
I(f'v_mov_b32 v22, {W_EP}')
I('s_mov_b64 exec, 1')
I(f'global_store_dword v22, v33, {P(pWS)} {args.ef}')
a.label('L_T_done')
TS(14)
ts_dump()
a.label('L_end')
I('s_endpgm')

a.raw('.section .rodata,"a"')
a.raw('.p2align 6')
a.raw(f'.amdhsa_kernel {NAME}_kernel')
a.raw('''  .amdhsa_next_free_vgpr 256
  .amdhsa_next_free_sgpr 102
  .amdhsa_accum_offset 256
  .amdhsa_group_segment_fixed_size 0
  .amdhsa_kernarg_size 112
  .amdhsa_user_sgpr_count 2
  .amdhsa_user_sgpr_kernarg_segment_ptr 1
  .amdhsa_system_sgpr_workgroup_id_x 1
.end_amdhsa_kernel''')
open(args.o, 'w').write(a.text())
```

```python
import sys, argparse, re
from asmlib import Asm, v, s

NAME = 'parallel_sum__compressed_kv_cla__dense_activation_squared_relu__decode'

ap = argparse.ArgumentParser()
A_ = lambda n, d, t=int: ap.add_argument('--' + n, type=t, default=d)
ap.add_argument('-o', default='out.s')
A_('ts', 0)
A_('nt', 1)
A_('d1', 2); A_('k1', 4); A_('d2', 10); A_('k2', 16); A_('d3', 10)
A_('swap', 0)
A_('qa', 20)
A_('h2', 1)
A_('h3', 1)
A_('nt1', 0)
A_('wor', 3)
A_('dyn', 4)
A_('own', 1)
A_('ns', 6)
A_('nb', 0)
A_('w1', 0)
A_('last', 12)
A_('h5', 0)
A_('np', 1)
A_('sl', 5)
A_('pre', 2)
A_('tord', 1)
A_('light', 1)
A_('pt', 0)
A_('dly', 0)
A_('dly5', 0)
A_('hint1', 0)
A_('hint2', 0)
A_('wuv', 0)
A_('ew', 1)
A_('bpos', 1)
A_('a5', 1)
A_('comb', 1)
A_('tpos', 32)
A_('ne', 0)
A_('gv', 4)
A_('pp', 3)
A_('bo', 0)
A_('clk', 0)
A_('wpre', 0)
A_('nts', 0)
A_('nto', 0)
A_('ntm', 0x3f, lambda x: int(x, 0))
A_('xc', 0)
A_('kmap', 0)
A_('p2', 8)
A_('ffn', 0)
A_('dsmax', 1)
A_('pfu', 0)
A_('lf', 'sc1', str)
A_('sf', 'sc1', str)
A_('lfa', 'sc1', str)
A_('of', 'sc1', str)
A_('m5', 1)
A_('bm3', 1)
A_('top', 0)
A_('warm', 3)
A_('pert', '', str)
A_('ef', 'sc1', str)
A_('hr', 0)
A_('fr', 0)
A_('wsoff', 0, lambda x: int(x, 0))
A_('ee', 1)
A_('nopt', 1)
A_('probe', 0)
A_('spf', 0)
A_('spw', 0)
A_('spx', 60)
A_('rot', 0)
A_('nin', 12)
A_('nip', 0)
A_('lt', 0)
A_('ltq', 4)
A_('lts', 0)
A_('ltf', 0)
A_('pw', 55)
A_('pwt', 0)
A_('pwq', 0)
A_('htmap', 0)
A_('ackn', 0)
A_('w2p', 0)
A_('oex', 15)
A_('mimic', 1)
A_('touch', 0)
A_('spin', 100000)
A_('notail', 0)
A_('tsn', 0)
A_('amp', '', str)
A_('tsmask', 0xffff, lambda x: int(x, 0))
args = ap.parse_args()
NT = ' nt' if args.nt else ''
NTS = ' nt' if args.nts else ''

L_QA = 131072
L_P = L_QA + 16384
L_XN = L_P + 4096
L_MX = L_XN + 1024
L_MF = L_MX + 256
L_MA = L_MF + 128
L_CL = L_MF + 256
L_CX = L_CL + 2048
L_FF = L_CX + 2048
L_LS = L_FF + 512
L_FL = L_LS + 1024
L_END = L_FL + 64
assert L_END <= 163840
F_F0, C_ISS, F_H2, C_QA, C_ST, C_ACK, C_ER, F_HINT, K0 = range(9)
C_L, C_M = K0 + 4, K0 + 5
W_EP = 0
W_H1 = 0x1000 + args.wsoff
W_H2 = W_H1 + 0x20000
W_HF = W_H2 + 0x10000
W_H5 = W_HF + 0x80000
W_LT = 0x1c0000
W_H3 = 0x200000 + args.wsoff
W_TS = 0x600000
assert W_H5 + 0x100000 <= W_LT

pX, pCKV, pWQ, pWUK, pWUV, pWO, pW1 = 4, 6, 8, 10, 12, 14, 18
pB1, pW2, pB2, pOUT, pDBG, pWS = 20, 22, 24, 26, 28, 30
sWV = 3
sX, sY, sFC, sGA, sS, sR, sHT, sCI, sDI = range(32, 41)
sJ, sH = sX, sY
sEP, sT0, sT1, sT2, sT3, sCNT, sW = 41, 42, 43, 44, 45, 46, 47
sB = 48
sM1, sM2, sM3, sM4 = 50, 52, 54, 56
sK0, sK1, sK2 = 58, 59, 60
TSB = 64
VFL, VONE, VFT = 13, 14, 15

a = Asm()
P = lambda r: s(r, 2)
MFMA = 'v_mfma_f32_16x16x32_bf16'


def I(text):
    if args.lfa != 'sc1':
        text = re.sub(r'(global_load\S* .*) sc1$', r'\1 ' + args.lfa.replace('+', ' '), text, flags=re.M)
    for bit, p_ in ((1, pWQ), (2, pWUK), (4, pCKV), (8, pWUV), (16, pW1), (32, pW2)):
        if not args.ntm & bit:
            text = re.sub(r'(global_load\S* .*s\[%d:%d\].*) nt' % (p_, p_ + 1), r'\1', text)
    if args.notail:
        out = []
        for line in text.split('\n'):
            m = re.match(r'\s*global_load_dwordx4 (v\[\d+:\d+\]), v\d+, s\[(\d+):', line)
            if m and int(m.group(2)) in (pWUV, pWO, pW1, pW2):
                line = f'global_load_dwordx4 {m.group(1)}, v3, s[4:5]'
            out.append(line)
        text = '\n'.join(out)
    a.I(text)


def TS(i):
    if args.ts and (args.tsmask >> i) & 1:
        I(f'{"s_memtime" if args.clk else "s_memrealtime"} {s(TSB + 2 * i, 2)}')


def TSN(k=None):
    if args.ts and (k is None or k == args.tsn):
        I(f's_sub_u32 {s(TSB + 2 * 15)}, {args.spin}, {s(sCNT)}')


def ts_dump(n=16):
    if not args.ts:
        return
    if args.xc:
        I(f's_getreg_b32 {s(TSB + 30)}, hwreg(HW_REG_XCC_ID)')
        I(f's_add_u32 {s(TSB + 30)}, {s(TSB + 30)}, {s(sEP)}')
        lab, done = a.newlabel('L_xc'), a.newlabel('L_xcd')
        I('s_cmp_lg_u32 s2, 224')
        I(f's_cbranch_scc1 {done}')
        I(f's_cmp_lg_u32 {s(sWV)}, 4')
        I(f's_cbranch_scc1 {done}')
        I('s_mov_b64 exec, -1')
        I(f'v_mov_b32 v4, {W_TS + args.xc * 512 + 60}')
        I(f'global_load_dword v5, v4, {P(pWS)} sc1')
        I('s_memrealtime s[96:97]')
        I('s_waitcnt vmcnt(0) lgkmcnt(0)')
        I(f'v_readfirstlane_b32 {s(sT0)}, v5')
        I(f's_cmp_eq_u32 {s(sT0)}, {s(TSB + 30)}')
        I(f's_cbranch_scc1 {done}')
        a.label(lab)
        I('s_memrealtime s[98:99]')
        I('s_waitcnt lgkmcnt(0)')
        I(f's_sub_u32 {s(sT1)}, s98, s96')
        I(f's_cmp_lt_u32 {s(sT1)}, 5000')
        I(f's_cbranch_scc1 {lab}')
        a.label(done)
    if args.amp:
        wg, w, k = map(int, args.amp.split(','))
        lab, done = a.newlabel('L_amp'), a.newlabel('L_ampd')
        I(f's_cmp_lg_u32 s2, {wg}')
        I(f's_cbranch_scc1 {done}')
        I(f's_cmp_lg_u32 {s(sWV)}, {w}')
        I(f's_cbranch_scc1 {done}')
        I('s_memrealtime s[96:97]')
        I('s_waitcnt lgkmcnt(0)')
        I(f's_sub_u32 {s(sT0)}, {s(TSB + 2 * k)}, {s(TSB)}')
        I(f's_lshl_b32 {s(sT0)}, {s(sT0)}, 3')
        I(f's_min_u32 {s(sT0)}, {s(sT0)}, 100000')
        a.label(lab)
        I('s_memrealtime s[98:99]')
        I('s_waitcnt lgkmcnt(0)')
        I(f's_sub_u32 {s(sT1)}, s98, s96')
        I(f's_cmp_lt_u32 {s(sT1)}, {s(sT0)}')
        I(f's_cbranch_scc1 {lab}')
        a.label(done)
    I('s_waitcnt lgkmcnt(0)')
    I('s_mov_b64 exec, -1')
    I('v_mov_b32 v4, 0')
    for i in range(n):
        I(f'v_writelane_b32 v4, {s(TSB + 2 * i)}, {i}')
    I(f's_lshl_b32 {s(sT0)}, s2, 3')
    I(f's_add_u32 {s(sT0)}, {s(sT0)}, {s(sWV)}')
    I(f's_lshl_b32 {s(sT0)}, {s(sT0)}, 6')
    I(f's_add_u32 {s(sT0)}, {s(sT0)}, {W_TS}')
    I(f'v_lshl_add_u32 v5, v0, 2, {s(sT0)}')
    I('s_mov_b64 exec, 0xffff')
    I(f'global_store_dword v5, v4, {P(pWS)}')
    I('s_waitcnt vmcnt(0)')


def load_epoch():
    I(f's_load_dword {s(sEP)}, {P(pWS)}, {W_EP}')


def epoch_ready():
    I('s_waitcnt lgkmcnt(0)')
    I(f's_add_u32 {s(sEP)}, {s(sEP)}, 1')
    I(f's_addc_u32 {s(sEP)}, {s(sEP)}, 0')


def row_allreduce(op, regs, steps=(8, 4, 2, 1)):
    for st in steps:
        for r in regs:
            I(f'{op} {v(r)}, {v(r)}, {v(r)} row_ror:{st}')


def cross_rows_allreduce(op, r, t):
    for sw in ('v_permlane16_swap_b32', 'v_permlane32_swap_b32'):
        I(f'v_mov_b32 {v(t)}, {v(r)}')
        I(f'{sw} {v(t)}, {v(r)}')
        I(f'{op} {v(r)}, {v(r)}, {v(t)}')


def scalar_poll(offsets):
    lab, done = a.newlabel('L_sp'), a.newlabel('L_spd')
    R = [61, 62, 63, 96, 97, 98, 99, 100]
    I(f's_mov_b32 {s(sCNT)}, {args.spin}')
    a.label(lab)
    for k, o in enumerate(offsets):
        I(f's_load_dword {s(R[k])}, {P(sB)}, {o} glc')
    I(f's_sub_u32 {s(sCNT)}, {s(sCNT)}, 1')
    I(f's_cbranch_scc1 {done}')
    I('s_waitcnt lgkmcnt(0)')
    I(f's_xor_b32 {s(sT0)}, {s(R[0])}, {s(sEP)}')
    for k in range(1, len(offsets)):
        I(f's_xor_b32 {s(sT1)}, {s(R[k])}, {s(sEP)}')
        I(f's_or_b32 {s(sT0)}, {s(sT0)}, {s(sT1)}')
    I(f's_cbranch_scc1 {lab}')
    a.label(done)
    I('s_waitcnt lgkmcnt(0)')


def flag_add(idx, base=VFL):
    I('s_mov_b64 exec, 1')
    I(f'ds_add_u32 {v(base)}, {v(VONE)} offset:{4 * idx}')
    I('s_mov_b64 exec, -1')


def flag_wait(idx, n, base=VFL):
    lab, done = a.newlabel('L_fw'), a.newlabel('L_fwd')
    if args.bo and idx in (F_F0, C_ISS, F_H2, C_ST, C_ACK, K0):
        l2 = a.newlabel('L_fw')
        a.B(f's_branch {l2}')
        a.label(lab)
        I(f's_sleep {args.bo}')
        a.label(l2)
    else:
        a.label(lab)
    I(f'ds_read_b32 {v(VFT)}, {v(base)} offset:{4 * idx}')
    I(f's_sub_u32 {s(sFC)}, {s(sFC)}, 1')
    I('s_waitcnt lgkmcnt(0)')
    I(f'v_cmp_gt_u32 vcc, {n}, {v(VFT)}')
    a.B(f's_cbranch_scc1 {done}')
    a.B(f's_cbranch_vccnz {lab}')
    a.label(done)
    I(f's_max_i32 {s(sFC)}, {s(sFC)}, 0')


def build_masks(M, t0, t1):
    I(f'v_and_b32 {v(t0)}, 1, v1')
    I(f'v_lshlrev_b32 {v(t0)}, 4, {v(t0)}')
    I(f'v_mov_b32 {v(t1)}, 0xffff')
    I(f'v_lshlrev_b32 {v(t1)}, {v(t0)}, {v(t1)}')
    I(f'v_bfe_u32 {v(t0)}, v1, 1, 2')
    for r in range(4):
        I(f'v_cmp_eq_u32 vcc, {r}, {v(t0)}')
        I(f'v_cndmask_b32 {v(M + r)}, 0, {v(t1)}, vcc')


BF, ACC, PF = 128, 96, 80
AT, SEL, XP, ACC0, REC = 72, 32, 80, 88, 92


def build_sel(t=6):
    J = lambda x: I(re.sub(r'\bv([6-9])\b', lambda m: 'v%d' % (int(m.group(1)) - 6 + t), x))
    J('''
    v_and_b32 v6, 1, v1
    v_cmp_eq_u32 vcc, 1, v6
    v_mov_b32 v7, 0x0c0c0100
    v_mov_b32 v8, 0x01000c0c
    v_cndmask_b32 v7, v7, v8, vcc
    v_mov_b32 v8, 0x0c0c0302
    v_mov_b32 v9, 0x03020c0c
    v_cndmask_b32 v8, v8, v9, vcc
    v_mov_b32 v9, 0x0c0c0c0c
    v_bfe_u32 v6, v1, 1, 2
    ''')
    for r in range(4):
        J(f'v_cmp_eq_u32 vcc, {r}, v6')
        J(f'v_cndmask_b32 {v(SEL + r)}, v9, v7, vcc')
        J(f'v_cndmask_b32 {v(SEL + 4 + r)}, v9, v8, vcc')


def diag_stage(n, W, younger=0):
    def perms(k):
        for r in range(4):
            I(f'v_perm_b32 {v(AT + 4 * (k & 1) + r)}, {v(XP + (k >> 1))}, {v(XP + (k >> 1))}, {v(SEL + 4 * (k & 1) + r)}')
    perms(0)
    for k in range(n):
        if k < n - 1:
            perms(k + 1)
        else:
            I(f'v_mov_b32 {v(REC + 2)}, {s(sEP)}')
            I(f'v_mov_b32 {v(REC + 3)}, {s(sEP)}')
        I(f's_waitcnt vmcnt({n - 1 - k + younger})')
        I(f'{MFMA} {v(ACC0, 4)}, {v(AT + 4 * (k & 1), 4)}, {v(W(k), 4)}, {"0" if k == 0 else v(ACC0, 4)}')


TA = 16


def tr_addr():
    I(f'''
    v_lshrrev_b32 v4, 2, v0
    v_lshlrev_b32 v4, 8, v4
    v_and_b32 v5, 31, v0
    v_lshl_add_u32 v4, v5, 3, v4
    s_lshl_b32 {s(sT0)}, {s(sW)}, 15
    v_add_u32 v4, {s(sT0)}, v4
    ''')


CK = 44
EMB = 0x00010001
HASH = 0x9e3779b1
OCT = ('quad_perm:[1,0,3,2]', 'quad_perm:[2,3,0,1]', 'row_half_mirror')


def pv_setup():
    for i in range(4):
        I(f's_sub_u32 {s(sT0)}, {s(sW)}, {i}')
        I(f's_and_b32 {s(sT0)}, {s(sT0)}, 3')
        I(f's_lshl_b32 {s(sT0)}, {s(sT0)}, 10')
        I(f's_add_u32 {s(sT0)}, {s(sT0)}, {L_P}')
        I(f'v_add_u32 {v(48 + i)}, {s(sT0)}, v3')
    I(f"""
    s_lshl_b32 {s(sT0)}, {s(sGA)}, 6
    s_add_u32 {s(sT0)}, {s(sT0)}, {s(sW)}
    s_lshl_b32 {s(sT0)}, {s(sT0)}, 7
    s_add_u32 {s(sT0)}, {s(sT0)}, {s(sS)}
    s_lshl_b32 {s(sT1)}, {s(sT0)}, 8
    s_add_u32 {s(sT1)}, {s(sT1)}, {W_H3}
    v_lshlrev_b32 v52, 19, v2
    v_lshl_add_u32 v52, v1, 4, v52
    v_add_u32 v52, {s(sT1)}, v52
    s_mov_b32 {s(sT2)}, 0x20000
    v_add_u32 v53, {s(sT2)}, v52
    v_add_u32 v54, {s(sT2)}, v53
    v_add_u32 v55, {s(sT2)}, v54
    v_lshlrev_b32 v42, 4, v2
    v_lshl_add_u32 v43, v1, 6, v42
    v_add_u32 v43, {L_LS}, v43
    v_add_u32 v42, {L_MF}, v42
    s_mul_i32 {s(sK0)}, {s(sEP)}, {(2 * HASH) & 0xffffffff}
    s_add_u32 {s(sK0)}, {s(sK0)}, {HASH}
    s_mov_b32 {s(sK1)}, {EMB}
    s_mov_b32 {s(sK2)}, {~EMB & 0xffffffff}
    """)


def pv_prewrite(qg, late=False):
    if args.pwt >= 3:
        if late and args.pw & 16:
            for e in range(4):
                I(f'v_mov_b32 {v(28 + e)}, 0')
            for r in range(4):
                I(f'global_store_dwordx4 {v(52 + r)}, v[28:31], {P(pWS)} sc1')
    elif args.pw & 16 and (qg or not args.pwt):
        for e in range(4):
            I(f'v_mov_b32 {v(28 + e)}, 0')
        for r in range(4):
            I(f'global_store_dwordx4 {v(52 + r)}, v[28:31], {P(pWS)} sc1')
            if args.pwt:
                I(f'v_add_u32 v6, 0x8000, {v(52 + r)}')
                I(f'global_store_dwordx4 v6, v[28:31], {P(pWS)} sc1')
        if args.pwt == 2:
            I(f'''
            s_lshl_b32 {s(sT0)}, {s(sW)}, 18
            s_lshl_b32 {s(sT1)}, s2, 7
            s_add_u32 {s(sT0)}, {s(sT0)}, {s(sT1)}
            s_add_u32 {s(sT0)}, {s(sT0)}, {W_H5}
            v_lshrrev_b32 v6, 3, v0
            v_lshlrev_b32 v6, 15, v6
            v_lshl_add_u32 v6, v10, 4, v6
            v_add_u32 v6, {s(sT0)}, v6
            global_store_dwordx4 v6, v[28:31], {P(pWS)} sc1
            v_add_u32 v6, 0x40000, v6
            global_store_dwordx4 v6, v[28:31], {P(pWS)} sc1
            ''')


def tr_slot(i):
    I(f's_sub_u32 {s(sT0)}, {s(sW)}, {i}')
    I(f's_and_b32 {s(sT0)}, {s(sT0)}, 3')
    I(f's_lshl_b32 {s(sT1)}, {s(sT0)}, 13')
    I(f'v_lshl_add_u32 v5, {s(sT0)}, 2, {v(VFL)}')
    I(f'v_add_u32 {v(TA)}, {s(sT1)}, v4')
    for T in range(1, 8):
        I(f'v_xor_b32 {v(TA + T)}, {32 * T}, {v(TA)}')
    if i == 3 and args.bm3:
        assert not args.ffn
        TS(6)
        I('s_barrier')
    else:
        flag_wait(K0, i + 1, 5)
    for T in range(8):
        for tau in range(2):
            I(f'ds_read_b64_tr_b16 {v(BF + (i * 8 + T) * 4 + 2 * tau, 2)}, {v(TA + T)} offset:{tau * 4096}')


def round_pairs(base, n, tmp):
    for i in range(n // 2):
        I(f'v_cvt_pk_bf16_f32 {v(tmp + i)}, {v(base + 2 * i)}, {v(base + 2 * i + 1)}')
    for i in range(n // 2):
        I(f'v_lshlrev_b32 {v(base + 2 * i)}, 16, {v(tmp + i)}')
        I(f'v_and_b32 {v(base + 2 * i + 1)}, {s(sT3)}, {v(tmp + i)}')


hdr = open('cdna_kernels/%s.s.ref' % NAME).read().split('; Override launch geometry')[0]
a.raw(hdr.rstrip())
a.raw(f'; @launch grid=(256,1,1) block=(512,1,1) lds={L_END}')
a.raw(""";
; carries the launch tag (ws[0] + 1, advanced at the end) or a share of a check word derived from it; all spins are bounded.""")
a.raw('.amdgcn_target "amdgcn-amd-amdhsa--gfx950"')
a.raw('.text')
a.raw(f'.globl {NAME}_kernel')
a.raw('.p2align 8')
a.raw(f'.type {NAME}_kernel,@function')
a.label(f'{NAME}_kernel')
a.label('L_start')
I('s_load_dwordx16 s[4:19], s[0:1], 0')
I(f's_getpc_b64 {P(sB)}')
a.label('L_pc')
I('s_cmpk_ge_u32 s2, 0x100')
I('s_cbranch_scc1 L_end')
TS(0)
if args.top:
    I(f'''
    v_cmp_gt_u32 vcc, 64, v0
    s_and_b32 {s(sX)}, s2, 7
    s_lshr_b32 {s(sY)}, s2, 3
    v_lshl_add_u32 v6, {s(sX)}, 6, v0
    v_lshl_add_u32 v6, v6, 5, {s(sY)}
    v_lshlrev_b32 v5, 4, v0
    v_lshlrev_b32 v6, 8, v6
    ''')
    a.B('s_cbranch_vccz L_top')
    I(f'''
    s_waitcnt lgkmcnt(0)
    global_load_dwordx4 v[120:123], v5, {P(pX)}
    ''')
    if args.top == 1:
        I(f'global_load_dword v41, v6, {P(pWQ)}{NT}')
        I(f'global_load_dword v41, v6, {P(pWQ)} offset:128{NT}')
    a.label('L_top')
I('s_load_dwordx8 s[20:27], s[0:1], 64')
I('s_load_dwordx4 s[28:31], s[0:1], 96')
I(f'''
v_lshrrev_b32 v3, 6, v0
v_lshrrev_b32 v4, 5, v0
s_lshr_b32 {s(sY)}, s2, 3
s_and_b32 {s(sT1)}, {s(sY)}, 15
s_lshl_b32 {s(sT1)}, {s(sT1)}, 11
v_lshl_add_u32 v4, v4, 7, {s(sT1)}
v_min_u32 v4, L_end-L_pc, v4
s_mov_b32 exec_lo, 1
s_mov_b32 exec_hi, 1
global_load_dword v15, v4, {P(sB)}
s_mov_b64 exec, -1
v_readfirstlane_b32 {s(sWV)}, v3
v_and_b32 v0, 63, v0
v_and_b32 v1, 15, v0
v_lshrrev_b32 v2, 4, v0
s_and_b32 {s(sX)}, s2, 7
s_lshr_b32 {s(sGA)}, {s(sY)}, 4
s_xor_b32 {s(sGA)}, {s(sGA)}, 1
s_and_b32 {s(sT0)}, {s(sY)}, 15
s_lshl4_add_u32 {s(sS)}, {s(sX)}, {s(sT0)}
s_and_b32 {s(sW)}, {s(sWV)}, 3
v_lshlrev_b32 v3, 4, v0
v_mov_b32 {v(VFL)}, {L_FL}
v_mov_b32 {v(VONE)}, 1
s_mov_b32 {s(sFC)}, 0x1000000
s_cmp_ge_u32 {s(sWV)}, 4
''')
a.B('s_cbranch_scc1 L_S')
I(f'''
s_lshl_b32 {s(sT0)}, {s(sJ)}, 19
s_lshl_b32 {s(sT1)}, {s(sH)}, 8
s_add_u32 {s(sT0)}, {s(sT0)}, {s(sT1)}
s_cmp_eq_u32 {s(sWV)}, 1
''')
a.B('s_cbranch_scc1 L_F1')
I(f's_cmp_eq_u32 {s(sWV)}, 2')
a.B('s_cbranch_scc1 L_F2')
I(f's_cmp_eq_u32 {s(sWV)}, 3')
a.B('s_cbranch_scc1 L_F3')

Wq, XR = 128, 120
I(f'''
v_lshlrev_b32 v5, 17, v2
v_lshl_add_u32 v5, v1, 4, v5
v_add_u32 v5, {s(sT0)}, v5
s_movk_i32 {s(sT2)}, 0x2000
''')
if not args.top:
    I('s_waitcnt lgkmcnt(0)')
    I(f'global_load_dwordx4 {v(XR, 4)}, v3, {P(pX)}')
for k in range(16):
    I(f'global_load_dwordx4 {v(Wq + 4 * k, 4)}, v5, {P(pWQ)}{NT}')
    if k < 15:
        I(f'v_add_u32 v5, {s(sT2)}, v5')
if args.bpos == 0:
    I('s_barrier')
I('s_waitcnt lgkmcnt(0)')
load_epoch()
if args.pw & 1:
    I(f's_lshl_b32 {s(sT0)}, s2, 9')
    I(f's_add_u32 {s(sT0)}, {s(sT0)}, {W_H1}')
    I(f'v_add_u32 v12, {s(sT0)}, v3')
    for e in range(4):
        I(f'v_mov_b32 {v(REC + e)}, 0')
    I('s_mov_b32 exec_hi, 0')
    I(f'global_store_dwordx4 v12, {v(REC, 4)}, {P(pWS)} sc1')
    I('s_mov_b64 exec, -1')
TS(1)
build_sel()
I(f'''
v_add_u32 v10, {L_XN}, v3
s_lshl_b32 {s(sT0)}, {s(sJ)}, 7
s_add_u32 {s(sT0)}, {s(sT0)}, {L_XN}
v_lshl_add_u32 v11, v2, 5, {s(sT0)}
s_lshl_b32 {s(sT0)}, s2, 9
s_add_u32 {s(sT0)}, {s(sT0)}, {W_H1}
v_add_u32 v12, {s(sT0)}, v3
s_mov_b32 {s(sT3)}, 0xffff0000
s_mov_b32 {s(sK0)}, 0x07060501
s_mov_b32 {s(sK1)}, 0x07060502
s_mov_b32 {s(sK2)}, 0x07060503
''')
F, Dd, t0, t1, t2, t3, PK = 96, 104, 112, 113, 114, 115, 116
I(f's_waitcnt vmcnt({(16, 19, 17)[args.top] + (args.pw & 1)})')
if args.bpos == 1:
    I('s_barrier')
TS(2)
for i in range(4):
    I(f'v_lshlrev_b32 {v(F + 2 * i)}, 16, {v(XR + i)}')
    I(f'v_and_b32 {v(F + 2 * i + 1)}, {s(sT3)}, {v(XR + i)}')
I(f'''
v_add_f32 {v(t0)}, {v(F)}, {v(F + 1)}
v_add_f32 {v(t1)}, {v(F + 2)}, {v(F + 3)}
v_add_f32 {v(t2)}, {v(F + 4)}, {v(F + 5)}
v_add_f32 {v(t3)}, {v(F + 6)}, {v(F + 7)}
v_add_f32 {v(t0)}, {v(t0)}, {v(t1)}
v_add_f32 {v(t2)}, {v(t2)}, {v(t3)}
v_add_f32 {v(t0)}, {v(t0)}, {v(t2)}
''')
row_allreduce('v_add_f32', [t0])
I(f'v_add_f32 {v(t0)}, {v(t0)}, {v(t0)} row_bcast:15 row_mask:0xa')
I(f'v_add_f32 {v(t0)}, {v(t0)}, {v(t0)} row_bcast:31 row_mask:0xc')
I(f'v_mov_b32 {v(t1)}, 0x3b000000')
I(f'v_readlane_b32 {s(sT0)}, {v(t0)}, 63')
I(f'v_mul_f32 {v(t1)}, {s(sT0)}, {v(t1)}')
for i in range(8):
    I(f'v_sub_f32 {v(Dd + i)}, {v(F + i)}, {v(t1)}')
if args.bpos == 2:
    I('s_barrier')
I(f'v_mul_f32 {v(t0)}, {v(Dd)}, {v(Dd)}')
I(f'v_mul_f32 {v(t2)}, {v(Dd + 1)}, {v(Dd + 1)}')
for i in range(2, 8, 2):
    I(f'v_fmac_f32 {v(t0)}, {v(Dd + i)}, {v(Dd + i)}')
    I(f'v_fmac_f32 {v(t2)}, {v(Dd + i + 1)}, {v(Dd + i + 1)}')
I(f'v_add_f32 {v(t0)}, {v(t0)}, {v(t2)}')
I(f'v_cvt_pk_bf16_f32 {v(t1)}, {v(t1)}, {v(t1)}')
I(f'v_and_b32 {v(t1)}, {s(sT3)}, {v(t1)}')
row_allreduce('v_add_f32', [t0], steps=(8,))
for i in range(0, 4):
    I(f'v_sub_f32 {v(Dd + i)}, {v(F + i)}, {v(t1)}')
row_allreduce('v_add_f32', [t0], steps=(4,))
for i in range(4, 8):
    I(f'v_sub_f32 {v(Dd + i)}, {v(F + i)}, {v(t1)}')
row_allreduce('v_add_f32', [t0], steps=(2,))
for i in range(0, 2):
    I(f'v_cvt_pk_bf16_f32 {v(PK + i)}, {v(Dd + 2 * i)}, {v(Dd + 2 * i + 1)}')
row_allreduce('v_add_f32', [t0], steps=(1,))
for i in range(2, 4):
    I(f'v_cvt_pk_bf16_f32 {v(PK + i)}, {v(Dd + 2 * i)}, {v(Dd + 2 * i + 1)}')
I(f'v_add_f32 {v(t0)}, {v(t0)}, {v(t0)} row_bcast:15 row_mask:0xa')
for i in range(0, 2):
    I(f'v_lshlrev_b32 {v(Dd + 2 * i)}, 16, {v(PK + i)}')
    I(f'v_and_b32 {v(Dd + 2 * i + 1)}, {s(sT3)}, {v(PK + i)}')
I(f'v_add_f32 {v(t0)}, {v(t0)}, {v(t0)} row_bcast:31 row_mask:0xc')
for i in range(2, 4):
    I(f'v_lshlrev_b32 {v(Dd + 2 * i)}, 16, {v(PK + i)}')
    I(f'v_and_b32 {v(Dd + 2 * i + 1)}, {s(sT3)}, {v(PK + i)}')
I(f'v_mov_b32 {v(t1)}, 0x3b000000')
I(f'v_readlane_b32 {s(sT0)}, {v(t0)}, 63')
I(f'''
v_mul_f32 {v(t1)}, {s(sT0)}, {v(t1)}
v_cvt_pk_bf16_f32 {v(t1)}, {v(t1)}, {v(t1)}
v_and_b32 {v(t1)}, {s(sT3)}, {v(t1)}
v_add_f32 {v(t1)}, 0x3727c5ac, {v(t1)}
v_cvt_pk_bf16_f32 {v(t1)}, {v(t1)}, {v(t1)}
v_and_b32 {v(t1)}, {s(sT3)}, {v(t1)}
v_sqrt_f32 {v(t1)}, {v(t1)}
v_cvt_pk_bf16_f32 {v(t1)}, {v(t1)}, {v(t1)}
v_and_b32 {v(t1)}, {s(sT3)}, {v(t1)}
v_rcp_f32 {v(t1)}, {v(t1)}
''')
for i in range(8):
    I(f'v_mul_f32 {v(Dd + i)}, {v(Dd + i)}, {v(t1)}')
for i in range(4):
    I(f'v_cvt_pk_bf16_f32 {v(PK + i)}, {v(Dd + 2 * i)}, {v(Dd + 2 * i + 1)}')
I(f'ds_write_b128 v10, {v(PK, 4)}')
I(f'ds_read_b128 {v(XP, 4)}, v11')
I(f'ds_read_b128 {v(XP + 4, 4)}, v11 offset:16')
if args.bpos == 3:
    I('s_barrier')
epoch_ready()
TS(3)
diag_stage(16, lambda k: Wq + 4 * k, args.pw & 1)
for i in range(3):
    I(f'v_perm_b32 {v(REC + i)}, {v(ACC0 + i)}, {v(ACC0 + 3)}, {s(sK0 + i)}')
I('s_mov_b32 exec_hi, 0')
I(f'global_store_dwordx4 v12, {v(REC, 4)}, {P(pWS)} sc1')
I(f'ds_write_b128 v10, {v(ACC0, 4)} offset:{L_CX - L_XN}')
TS(4)
flag_add(F_F0)
I('s_branch L_QG')

a.label('L_F1')
WK, G1, QF, DK = 128, 192, 96, 112
I(f'''
v_lshlrev_b32 v6, 1, v2
v_xor_b32 v6, v6, v1
v_lshlrev_b32 v5, 16, v2
v_lshl_add_u32 v5, v6, 4, v5
v_add_u32 v5, {s(sT0)}, v5
v_xor_b32 v6, 0x80, v5
v_add_u32 v6, 0x40000, v6
s_mov_b32 {s(sT2)}, 0x8000
s_mov_b32 {s(sT3)}, {(-3 * 8192) & 0xffffffff}
s_mov_b32 m0, {L_QA}
s_waitcnt lgkmcnt(0)
''')
load_epoch()
if args.pw & 2:
    I(f's_lshl_b32 {s(sT1)}, s2, 7')
    I(f's_add_u32 {s(sT1)}, {s(sT1)}, {W_H2}')
    I(f'v_add_u32 v12, {s(sT1)}, v3')
    for e in range(4):
        I(f'v_mov_b32 {v(20 + e)}, 0')
I('s_barrier')
if args.pw & 2:
    I('s_mov_b64 exec, 0xff')
    I(f'global_store_dwordx4 v12, v[20:23], {P(pWS)} sc1')
    I('s_mov_b64 exec, -1')
for k in range(16):
    I(f'global_load_lds_dwordx4 {"v6" if k & 1 else "v5"}, {P(pWUK)}{NT}')
    if k < 15:
        I('s_add_u32 m0, m0, 0x400')
    if k < 14:
        I(f'v_add_u32 {"v6" if k & 1 else "v5"}, {s(sT3 if k & 2 else sT2)}, {"v6" if k & 1 else "v5"}')
TS(1)
I(f'''
v_and_b32 v5, 7, v1
v_lshlrev_b32 v5, 1, v5
v_xor_b32 v5, v5, v2
v_lshlrev_b32 v5, 4, v5
v_lshl_add_u32 v5, v1, 8, v5
v_add_u32 v24, {L_QA}, v5
v_xor_b32 v25, 64, v24
v_xor_b32 v26, 0x80, v24
v_xor_b32 v27, 0xc0, v24
s_lshl_b32 {s(sT0)}, {s(sH)}, 12
s_add_u32 {s(sT0)}, {s(sT0)}, {W_H1}
v_add_u32 v8, {s(sT0)}, v3
s_lshl_b32 {s(sT1)}, {s(sJ)}, 9
v_add_u32 v6, {s(sT1)}, v3
s_movk_i32 {s(sT1)}, 0xfff
v_and_b32 v16, {s(sT1)}, v6
v_add_u32 v6, 0x400, v6
v_and_b32 v17, {s(sT1)}, v6
v_add_u32 v6, 0x400, v6
v_and_b32 v18, {s(sT1)}, v6
v_add_u32 v6, 0x400, v6
v_and_b32 v19, {s(sT1)}, v6
v_add_u32 v32, {s(sT0)}, v16
v_add_u32 v33, {s(sT0)}, v17
v_add_u32 v34, {s(sT0)}, v18
v_add_u32 v35, {s(sT0)}, v19
v_add_u32 v9, {L_CX}, v3
v_and_b32 v10, 1, v2
v_lshlrev_b32 v10, 1, v10
v_lshrrev_b32 v11, 1, v2
v_add_u32 v10, v10, v11
v_lshl_add_u32 v10, v1, 2, v10
v_lshlrev_b32 v10, 2, v10
v_add_u32 v10, {L_CL}, v10
v_lshlrev_b32 v11, 4, v2
v_add_u32 v11, {L_CL}, v11
s_lshl_b32 {s(sT0)}, s2, 7
s_add_u32 {s(sT0)}, {s(sT0)}, {W_H2}
v_add_u32 v12, {s(sT0)}, v3
v_add_u32 v37, 8, v1
s_mov_b32 {s(sM2)}, {EMB}
s_mov_b32 {s(sM2 + 1)}, {~EMB & 0xffffffff}
s_mov_b32 {s(sK0)}, 0x0c04000c
s_mov_b32 {s(sK1)}, 0x0402010c
s_mov_b32 {s(sK2)}, 0x07060302
s_mov_b32 {s(sM3 + 1)}, 0x10000
''')
epoch_ready()
I(f'v_mov_b32 v22, {s(sEP)}')
I(f's_mul_i32 {s(sM3)}, {s(sEP)}, {(2 * HASH) & 0xffffffff}')
I(f's_add_u32 {s(sM3)}, {s(sM3)}, {HASH}')
I('s_setprio 1')
NP = args.np
for p_ in range(NP):
    I(f'v_mov_b32 {v(G1 + 16 * p_ + 3)}, v22')
    for e in range(3):
        I(f'v_mov_b32 {v(G1 + 16 * p_ + e)}, 0')


def h1_loads(p_):
    for k in range(4):
        if k == 0:
            I('s_mov_b32 exec_lo, 0')
        I(f'global_load_dwordx4 {v(G1 + 16 * p_ + 4 * k, 4)}, {v(32 + k)}, {P(pWS)} sc1')
        if k == 0:
            I('s_mov_b32 exec_lo, -1')


if args.hint1:
    assert NP == 1
    I(f's_lshl_b32 {s(sT0)}, {s(sH)}, 12')
    I(f's_add_u32 {s(sT0)}, {s(sT0)}, {W_H1 + 508}')
    I(f's_add_u32 {s(sB)}, {s(pWS)}, {s(sT0)}')
    I(f's_addc_u32 {s(sB + 1)}, {s(pWS + 1)}, 0')
    HO = [4, 5, 6, 7, 8, 9, 12]
    for k in range(7):
        I(f's_add_u32 {s(HO[k])}, {s(sJ)}, {k + 1}')
        I(f's_and_b32 {s(HO[k])}, {s(HO[k])}, 7')
        I(f's_lshl_b32 {s(HO[k])}, {s(HO[k])}, 9')
    scalar_poll([s(r) for r in HO])
elif args.hr:
    flag_wait(C_ER, 4)
else:
    I('s_waitcnt vmcnt(4)')
TS(2)
h1_loads(0)
I('s_waitcnt vmcnt(4)')
for tau in range(4):
    for t in range(4):
        I(f'ds_read_b128 {v(WK + 16 * tau + 4 * t, 4)}, {v(24 + t)} offset:{4096 * tau}')
for p_ in range(1, NP):
    if p_ > 1 and args.sl:
        I(f's_sleep {args.sl}')
    h1_loads(p_)
Q4 = 40
for e in range(4):
    I(f'v_mov_b32 {v(Q4 + 4 + e)}, 0')
flag_wait(F_F0, 1)
I('s_mov_b32 exec_hi, 0')
I(f'ds_read_b128 {v(Q4 + 4, 4)}, v9')
I('s_mov_b64 exec, -1')
I(f's_mov_b32 {s(sCNT)}, {args.spin}')
I('s_waitcnt lgkmcnt(0)')
a.label('L_F1_poll')
for p_ in range(NP):
    G = G1 + 16 * p_
    I(f's_sub_u32 {s(sCNT)}, {s(sCNT)}, 1')
    I(f's_waitcnt vmcnt({4 * (NP - 1)})')
    I(f'v_xor_b32 v16, {v(G + 3)}, v22')
    for k in range(1, 4):
        I(f'v_bitop3_b32 v16, {v(G + 4 * k + 3)}, v22, v16 bitop3:0xbe')
    I('v_cmp_ne_u32 vcc, 0, v16')
    a.B(f's_cbranch_scc1 L_F1_go{p_}')
    a.B(f's_cbranch_vccz L_F1_go{p_}')
    h1_loads(p_)
I('s_branch L_F1_poll')
for p_ in reversed(range(NP)):
    G = G1 + 16 * p_
    a.label(f'L_F1_go{p_}')
    for k in range(4):
        I(f'v_perm_b32 {v(G + 4 * k + 3)}, {v(G + 4 * k + 1)}, {v(G + 4 * k)}, {s(sK0)}')
    for k in range(4):
        I(f'v_perm_b32 {v(G + 4 * k + 3)}, {v(G + 4 * k + 2)}, {v(G + 4 * k + 3)}, {s(sK1)}')
    for e in (0, 2):
        I(f'v_pk_add_f32 {v(Q4 + 4 + e, 2)}, {v(Q4 + 4 + e, 2)}, {v(G + e, 2)}')
        I(f'v_pk_add_f32 {v(G + 4 + e, 2)}, {v(G + 4 + e, 2)}, {v(G + 8 + e, 2)}')
    for e in (0, 2):
        I(f'v_pk_add_f32 {v(Q4 + 4 + e, 2)}, {v(Q4 + 4 + e, 2)}, {v(G + 12 + e, 2)}')
    for e in (0, 2):
        I(f'v_pk_add_f32 {v(Q4 + e, 2)}, {v(Q4 + 4 + e, 2)}, {v(G + 4 + e, 2)}')
    if p_:
        I('s_branch L_F1_go')
a.label('L_F1_go')
TS(3)
TSN()
G1 = Q4
I(f'v_permlane32_swap_b32 {v(G1)}, {v(G1 + 2)}')
I(f'v_permlane32_swap_b32 {v(G1 + 1)}, {v(G1 + 3)}')
I(f'v_add_f32 {v(G1)}, {v(G1)}, {v(G1 + 2)}')
I(f'v_add_f32 {v(G1 + 1)}, {v(G1 + 1)}, {v(G1 + 3)}')
I(f'v_cvt_pk_bf16_f32 v16, {v(G1)}, {v(G1 + 1)}')
I('ds_write_b32 v10, v16')
for t in range(4):
    I(f'ds_read_b128 {v(QF + 4 * t, 4)}, v11 offset:{64 * t}')
for half in ((0, 1), (2, 3)):
    for t in range(4):
        if half[0] == 0:
            I(f's_waitcnt lgkmcnt({3 - t})')
        for tau in half:
            I(f'{MFMA} {v(DK + 4 * tau, 4)}, {v(QF + 4 * t, 4)}, {v(WK + 16 * tau + 4 * t, 4)}, {"0" if t == 0 else v(DK + 4 * tau, 4)}')


def q_pack(k):
    lo, hi = DK + 8 * k, DK + 8 * k + 4
    I(f'v_cvt_pk_bf16_f32 {v(24 + k)}, {v(lo)}, {v(hi)}')
    I(f'v_add_u32 {v(lo)}, {s(sM3 + 1)}, {v(lo)}')
    I(f'v_add_u32 {v(hi)}, {s(sM3 + 1)}, {v(hi)}')
    I(f'v_perm_b32 {v(20 + k)}, {v(hi)}, {v(lo)}, {s(sK2)}')
    I(f'v_and_b32 {v(20 + k)}, {s(sM2 + 1)}, {v(20 + k)}')


q_pack(0)
I('v_mov_b32 v22, v24 row_ror:8')
q_pack(1)
I('v_add_u32 v16, v20, v21')
I('v_mov_b32 v23, v25 row_ror:8')
for st in OCT:
    I(f'v_add_u32 v16, v16, v16 {st}')
I(f'v_sub_u32 v16, {s(sM3)}, v16')
I('v_lshrrev_b32 v17, v1, v16')
I('v_lshrrev_b32 v16, v37, v16')
I(f'v_and_or_b32 v20, v17, {s(sM2)}, v20')
I(f'v_and_or_b32 v21, v16, {s(sM2)}, v21')
I('s_mov_b64 exec, 0xff')
I(f'global_store_dwordx4 v12, v[20:23], {P(pWS)} sc1')
TS(4)
I('s_setprio 0')
flag_add(F_H2)
I('s_waitcnt vmcnt(0)')
flag_add(F_H2)
a.label('L_PV1')
tr_addr()
pv_setup()
pv_prewrite(False)


def scalar_prefetch():
    I(f'''
    s_lshr_b32 {s(sHT)}, {s(sY)}, 3
    s_lshl2_add_u32 {s(sHT)}, {s(sX)}, {s(sHT)}
    s_bfe_u32 {s(sDI)}, {s(sY)}, 0x10002
    s_lshl1_add_u32 {s(sHT)}, {s(sHT)}, {s(sDI)}
    s_and_b32 {s(sCI)}, {s(sY)}, 3
    s_lshr_b32 {s(sT1)}, {s(sWV)}, 1
    s_lshl1_add_u32 {s(sCI)}, {s(sCI)}, {s(sT1)}
    ''')
    for bit, ptr, sh_ci, sh_ht, step in ((1, pWUV, 19, 7, 8192), (2, pWO, 13, 16, 128)):
        if not args.spf & bit:
            continue
        lab = a.newlabel('L_spf')
        I(f's_lshl_b32 {s(sT0)}, {s(sCI)}, {sh_ci}')
        I(f's_lshl_b32 {s(sT1)}, {s(sHT)}, {sh_ht}')
        I(f's_add_u32 {s(sT0)}, {s(sT0)}, {s(sT1)}')
        I(f's_add_u32 {s(sB)}, {s(ptr)}, {s(sT0)}')
        I(f's_addc_u32 {s(sB + 1)}, {s(ptr + 1)}, 0')
        I(f's_mov_b32 {s(sCNT)}, 8')
        a.label(lab)
        for k in range(8):
            I(f's_load_dword{"x2 s[62:63]" if args.spx else " s62"}, {P(sB)}, {k * step + args.spx}')
        I(f's_add_u32 {s(sB)}, {s(sB)}, {8 * step}')
        I(f's_addc_u32 {s(sB + 1)}, {s(sB + 1)}, 0')
        I(f's_sub_u32 {s(sCNT)}, {s(sCNT)}, 1')
        I(f's_cmp_lg_u32 {s(sCNT)}, 0')
        I(f's_cbranch_scc1 {lab}')
    TS(12)


for i in range(args.pre):
    if args.spf and i == args.spw:
        scalar_prefetch()
    tr_slot(i)
I('s_branch L_PVs')

a.label('L_F3')
HFG, B1R = 24, 28
W1T = lambda k: 56 + 4 * k if k < 6 else 8 if k == 6 else 4
I('s_waitcnt lgkmcnt(0)')
load_epoch()
if args.ee:
    I('s_waitcnt lgkmcnt(0)')
I('s_barrier')
epoch_ready()


def ffn_w1(dst):
    I(f"""
    s_and_b32 {s(sT3)}, s2, 15
    s_mul_i32 {s(sT0)}, {s(sT3)}, {32 * 3584}
    s_lshr_b32 {s(sT1)}, s2, 4
    s_lshl_b32 {s(sT1)}, {s(sT1)}, 8
    s_add_u32 {s(sT0)}, {s(sT0)}, {s(sT1)}
    v_mul_u32_u24 v12, {8 * 3584}, v2
    v_lshl_add_u32 v12, v1, 4, v12
    v_add_u32 v12, {s(sT0)}, v12
    s_movk_i32 {s(sT2)}, {2 * 3584}
    """)
    for k in range(8):
        I(f'global_load_dwordx4 {v(dst(k), 4)}, v12, {P(pW1)} offset:{3584 * (k & 1)}{NT}')
        if k & 1 and k < 7:
            I(f'v_add_u32 v12, {s(sT2)}, v12')


def ffn_rest(dst, younger):
    global AT, SEL
    AT, SEL = 128, 136
    I(f"""
    s_and_b32 {s(sT3)}, s2, 15
    s_lshr_b32 {s(sT1)}, s2, 4
    s_lshl_b32 {s(sT1)}, {s(sT1)}, 8
    s_lshl_b32 {s(sT3)}, {s(sT3)}, 6
    s_add_u32 {s(sT0)}, {s(sT3)}, {L_XN}
    v_lshl_add_u32 v144, v2, 4, {s(sT0)}
    ds_read_b128 {v(XP, 4)}, v144
    s_lshl_b32 {s(sT0)}, {s(sT1)}, 6
    s_add_u32 {s(sT0)}, {s(sT0)}, {s(sT3)}
    s_lshl_b32 {s(sT0)}, {s(sT0)}, 1
    s_add_u32 {s(sT0)}, {s(sT0)}, {W_HF}
    v_lshrrev_b32 v145, 2, v0
    v_lshlrev_b32 v146, 11, v145
    v_and_b32 v147, 3, v0
    v_lshl_add_u32 v146, v147, 4, v146
    v_add_u32 v146, {s(sT0)}, v146
    v_cmp_gt_u32 {P(sM1)}, v0, 31
    s_and_b32 {s(sT0)}, s2, 3
    s_lshl_b32 {s(sT0)}, {s(sT0)}, 6
    s_add_u32 {s(sT0)}, {s(sT0)}, {s(sT1)}
    s_bfe_u32 {s(sT1)}, s2, 0x10002
    s_lshl3_add_u32 {s(sT0)}, {s(sT1)}, {s(sT0)}
    s_bfe_u32 {s(sT1)}, s2, 0x10003
    s_lshl2_add_u32 {s(sT0)}, {s(sT1)}, {s(sT0)}
    v_lshl_add_u32 v148, v147, 4, {s(sT0)}
    s_lshl_b32 {s(sT0)}, s2, 11
    s_add_u32 {s(sT0)}, {s(sT0)}, {W_HF}
    v_lshlrev_b32 v147, 4, v147
    v_lshl_add_u32 v147, v145, 7, v147
    v_add_u32 v147, {s(sT0)}, v147
    v_lshlrev_b32 v149, 3, v0
    v_add_u32 v149, {L_FF}, v149
    s_mov_b32 {s(sT3)}, 0xffff0000
    """)
    build_sel(150)
    I('s_waitcnt lgkmcnt(0)')
    diag_stage(8, dst, younger)
    I(f'v_cndmask_b32 {v(REC)}, {v(ACC0)}, {v(ACC0 + 2)}, {P(sM1)}')
    I(f'v_cndmask_b32 {v(REC + 1)}, {v(ACC0 + 1)}, {v(ACC0 + 3)}, {P(sM1)}')
    I(f'global_store_dwordx4 v146, {v(REC, 4)}, {P(pWS)} sc1')
    I(f'global_load_dword {v(B1R)}, v148, {P(pB1)}')
    TS(2)
    I(f's_mov_b32 {s(sCNT)}, {args.spin}')
    if args.ffn:
        I('s_waitcnt vmcnt(2)')
        flag_add(C_ACK)
        I('s_waitcnt vmcnt(0)')
    else:
        flag_wait(*((C_ISS, 4) if args.fr else (F_H2, 2)))
    a.label('L_TF')
    I(f'global_load_dwordx4 {v(HFG, 4)}, v147, {P(pWS)} sc1')
    I(f's_sub_u32 {s(sCNT)}, {s(sCNT)}, 1')
    I('s_waitcnt vmcnt(0)')
    I(f'v_cmp_ne_u32 vcc, {v(HFG + 2)}, {v(REC + 2)}')
    a.B('s_cbranch_scc1 L_TF_go')
    a.B('s_cbranch_vccnz L_TF')
    a.label('L_TF_go')
    TSN()
    row_allreduce('v_add_f32', [HFG, HFG + 1], steps=(4, 8))
    I(f'''
    v_permlane32_swap_b32 {v(HFG)}, {v(HFG + 1)}
    v_add_f32 {v(HFG)}, {v(HFG)}, {v(HFG + 1)}
    v_mov_b32 {v(HFG + 1)}, {v(HFG)}
    v_permlane16_swap_b32 {v(HFG)}, {v(HFG + 1)}
    v_lshlrev_b32 v16, 16, {v(B1R)}
    v_add_f32 {v(HFG)}, {v(HFG)}, {v(HFG + 1)}
    v_and_b32 v17, {s(sT3)}, {v(B1R)}
    v_cvt_pk_bf16_f32 {v(HFG)}, {v(HFG)}, {v(HFG)}
    v_cndmask_b32 v16, v16, v17, {P(sM1)}
    v_and_b32 {v(HFG)}, {s(sT3)}, {v(HFG)}
    v_add_f32 {v(HFG)}, {v(HFG)}, v16
    v_cvt_pk_bf16_f32 {v(HFG)}, {v(HFG)}, {v(HFG)}
    v_and_b32 {v(HFG)}, {s(sT3)}, {v(HFG)}
    v_max_f32 {v(HFG)}, 0, {v(HFG)}
    v_mul_f32 {v(HFG)}, {v(HFG)}, {v(HFG)}
    v_cvt_pk_bf16_f32 {v(HFG)}, {v(HFG)}, {v(HFG)}
    v_mov_b32 {v(HFG + 1)}, {v(HFG)}
    v_permlane32_swap_b32 {v(HFG)}, {v(HFG + 1)}
    ''')
    for g_ in range(4):
        for i in range(2):
            I(f'v_mov_b32 {v(HFG + 2 + i)}, {v(HFG + i)} row_newbcast:{g_} row_mask:{1 << g_}')
    I(f'ds_write_b64 v149, {v(HFG + 2, 2)}')
    TS(4)


if not args.ffn:
    I('s_cmp_ge_u32 s2, 224')
    I('s_cbranch_scc1 L_PV1')
    if args.pw & 8:
        I(f'''
        s_lshr_b32 {s(sT0)}, s2, 4
        s_lshl_b32 {s(sT0)}, {s(sT0)}, 8
        s_and_b32 {s(sT1)}, s2, 15
        s_add_u32 {s(sT0)}, {s(sT0)}, {s(sT1)}
        s_lshl_b32 {s(sT0)}, {s(sT0)}, 7
        s_add_u32 {s(sT0)}, {s(sT0)}, {W_HF}
        v_lshrrev_b32 v16, 3, v0
        v_lshlrev_b32 v16, 11, v16
        v_and_b32 v17, 7, v0
        v_lshl_add_u32 v16, v17, 4, v16
        v_add_u32 v16, {s(sT0)}, v16
        v_add_u32 v17, 0x4000, v16
        v_mov_b32 v20, 0
        v_mov_b32 v21, 0
        v_mov_b32 v22, 0
        v_mov_b32 v23, 0
        global_store_dwordx4 v16, v[20:23], {P(pWS)} sc1
        global_store_dwordx4 v17, v[20:23], {P(pWS)} sc1
        ''')
    flag_wait(F_F0, 1)
    ffn_w1(W1T)
    ffn_rest(W1T, 0)
I('s_branch L_PV1')

a.label('L_F2')
I(f'''
v_mov_b32 v16, 0
v_mov_b32 v17, 0
v_mov_b32 v18, 0
v_mov_b32 v19, 0
ds_write_b128 {v(VFL)}, v[16:19]
ds_write_b128 {v(VFL)}, v[16:19] offset:16
ds_write_b128 {v(VFL)}, v[16:19] offset:32
ds_write_b128 {v(VFL)}, v[16:19] offset:48
v_lshlrev_b32 v20, 2, v1
v_add_u32 v20, {L_MA}, v20
v_mov_b32 v21, 0xff800000
ds_write_b32 v20, v21
''')
I('v_and_b32 v5, 3, v0')
I('v_lshlrev_b32 v5, 21, v5')
if args.probe:
    PR = [50, 51, 52, 53, 54, 55, 56, 57]
    for r_ in PR:
        I(f's_mov_b32 {s(r_)}, 0x7fc1a5a5')
    I(f's_lshl_b32 {s(sT0)}, {s(sS)}, 17')
    I(f's_lshl_b32 {s(sT1)}, {s(sGA)}, 7')
    I(f's_add_u32 {s(sT0)}, {s(sT0)}, {s(sT1)}')
I('s_waitcnt lgkmcnt(0)')
if args.probe:
    I(f's_add_u32 {s(sB)}, {s(pCKV)}, {s(sT0)}')
    I(f's_addc_u32 {s(sB + 1)}, {s(pCKV + 1)}, 0')
    for k, pg in enumerate((0, 2, 3, 1, 6, 4, 5, 7)):
        I(f's_load_dword {s(PR[pg])}, {P(sB)}, {pg * 4096}')
    I('s_waitcnt lgkmcnt(4)')
    I(f's_mov_b32 {s(TSB + 28)}, 0')
    for pg in (0, 2, 3, 1, 6, 4, 5, 7):
        I(f's_cmp_lg_u32 {s(PR[pg])}, 0x7fc1a5a5')
        I(f'{"s_subb_u32" if pg & 2 else "s_addc_u32"} {s(TSB + 28)}, {s(TSB + 28)}, 0')
    TS(13)
    I('s_waitcnt lgkmcnt(0)')
load_epoch()
if args.ee:
    I('s_waitcnt lgkmcnt(0)')
I('s_barrier')
if not args.nopt:
    I('s_mov_b64 exec, 7')
    I(f'global_load_dword v22, v5, {P(pWS)} offset:256')
    I('s_mov_b64 exec, 1')
    I(f'global_load_dword v23, v16, {P(pOUT)}')
    I('s_mov_b64 exec, -1')
epoch_ready()


def touch(base_code, offsets):
    I(base_code)
    I(f's_add_u32 {s(sB)}, {s(pWS)}, {s(sT0)}')
    I(f's_addc_u32 {s(sB + 1)}, {s(pWS + 1)}, 0')
    for o in offsets:
        I(f's_load_dword s61, {P(sB)}, {o}')


if args.pt & 8:
    touch(f's_lshr_b32 {s(sT0)}, s2, 4\ns_lshl_b32 {s(sT0)}, {s(sT0)}, 8\ns_and_b32 {s(sT1)}, s2, 15\ns_add_u32 {s(sT0)}, {s(sT0)}, {s(sT1)}\ns_lshl_b32 {s(sT0)}, {s(sT0)}, 7',
          [W_HF + p_ * 2048 for p_ in range(16)])
if args.pt & 4:
    touch(f's_lshl_b32 {s(sT0)}, s2, 12\ns_add_u32 {s(sT0)}, {s(sT0)}, {W_H5}', [z_ * 128 for z_ in range(32)])
if args.pt & 16:
    touch(f's_lshl_b32 {s(sT0)}, s2, 14\ns_add_u32 {s(sT0)}, {s(sT0)}, {W_H3}', [z_ * 128 for z_ in range(128)])
if args.pwq >= 2:
    I(f'''
    s_lshl_b32 {s(sT0)}, {s(sGA)}, 13
    s_add_u32 {s(sT0)}, {s(sT0)}, {s(sS)}
    s_lshl_b32 {s(sT0)}, {s(sT0)}, 8
    s_add_u32 {s(sT0)}, {s(sT0)}, {W_H3}
    v_lshlrev_b32 v6, 15, v2
    v_lshl_add_u32 v6, v1, 4, v6
    v_add_u32 v6, {s(sT0)}, v6
    s_mov_b32 {s(sT1)}, 0x20000
    ''')
    for k in range(16):
        I(f'global_store_dwordx4 v6, v[16:19], {P(pWS)} sc1')
        I(f'v_add_u32 v6, {s(sT1)}, v6')
        if args.pwq > 2:
            I(f's_waitcnt vmcnt({args.pwq - 2})')
if args.warm & 2:
    flag_wait(F_F0, 1)
    I('s_mov_b64 exec, 0')
    I('s_branch L_PVC')
    a.label('L_PVC_back')
    I('s_mov_b64 exec, -1')


a.label('L_QG')
G2, LA = 64, 56
I(f'''
s_lshr_b32 {s(sT1)}, {s(sWV)}, 1
s_lshl1_add_u32 {s(sT0)}, {s(sGA)}, {s(sT1)}
s_lshl_b32 {s(sT0)}, {s(sT0)}, 13
s_add_u32 {s(sT0)}, {s(sT0)}, {W_H2}
v_add_u32 v8, {s(sT0)}, v3
v_add_u32 v9, 0x1000, v8
v_and_b32 v10, 7, v0
v_add_u32 v11, 8, v10
v_lshlrev_b32 v6, 4, v10
v_lshl_add_u32 v6, v0, 8, v6
s_lshl_b32 {s(sT1)}, {s(sT1)}, 7
s_add_u32 {s(sT1)}, {s(sT1)}, {L_QA}
v_add_u32 {v(LA)}, {s(sT1)}, v6
s_mul_i32 {s(sM3)}, {s(sEP)}, {(HASH * 16) & 0xffffffff}
s_add_u32 {s(sM3)}, {s(sM3)}, {(HASH * 8) & 0xffffffff}
''')
for hd in range(1, 8):
    I(f'v_xor_b32 {v(LA + hd)}, {16 * hd}, {v(LA)}')
tr_addr()
pv_setup()
if args.pwq == 1:
    flag_wait(F_H2, 1)
pv_prewrite(True)
I('s_setprio 1')
if args.qa:
    flag_wait(C_ISS, 4)
flag_wait(F_H2, 1 + args.h2)
assert not args.hint2
if args.hint2:
    I(f's_cmp_eq_u32 {s(sWV)}, 0')
    I('s_cbranch_scc1 L_QG_w0')
    I(f's_xor_b32 {s(sT0)}, {s(sY)}, 16')
    I(f's_lshl_b32 {s(sT0)}, {s(sT0)}, 11')
    I(f's_add_u32 {s(sT0)}, {s(sT0)}, {W_H2}')
    I(f's_add_u32 {s(sB)}, {s(pWS)}, {s(sT0)}')
    I(f's_addc_u32 {s(sB + 1)}, {s(pWS + 1)}, 0')
    scalar_poll([k * 256 + 252 for k in range(8)])
    flag_add(F_HINT)
    I('s_branch L_QG_hd')
    a.label('L_QG_w0')
    flag_wait(F_HINT, 1)
    a.label('L_QG_hd')
TS(10)


def qa_loads():
    for k in range(8):
        I(f'global_load_dwordx4 {v(G2 + 4 * k, 4)}, {v(8 + (k >> 2))}, {P(pWS)} offset:{(k & 3) * 1024} sc1')


qa_loads()
for i in range(args.pre):
    tr_slot(i)
I(f's_mov_b32 {s(sCNT)}, {args.spin}')
a.label('L_QG_chk')
for k in range(8):
    d0, d1 = v(G2 + 4 * k), v(G2 + 4 * k + 1)
    I(f's_waitcnt vmcnt({7 - k})')
    I(f'v_and_b32 v6, {s(sK1)}, {d0}')
    I(f'v_and_b32 v7, {s(sK1)}, {d1}')
    I(f'v_xor_b32 {d0}, v6, {d0}')
    I(f'v_xor_b32 {d1}, v7, {d1}')
    I(f'ds_write_b128 {v(LA + k)}, {v(G2 + 4 * k, 4)}')
    I(f'v_lshl_add_u32 v24, v6, v10, {"0" if k == 0 else "v24"}')
    I('v_lshl_add_u32 v24, v7, v11, v24')
    I(f'v_add3_u32 v24, {d0}, {d1}, v24')
for st in OCT:
    I(f'v_add_u32 v24, v24, v24 {st}')
I(f's_sub_u32 {s(sCNT)}, {s(sCNT)}, 1')
I(f'v_cmp_ne_u32 vcc, {s(sM3)}, v24')
a.B('s_cbranch_scc1 L_QG_go')
a.B('s_cbranch_vccz L_QG_go')
I('s_waitcnt lgkmcnt(0)')
I('s_mov_b64 exec, vcc')
qa_loads()
I('s_branch L_QG_chk')
a.label('L_QG_go')
flag_add(C_QA)
I('s_setprio 0')
TS(11)
TSN()
a.label('L_PVs')
for i in range(args.pre, 4):
    if i == args.pwt - 1:
        pv_prewrite(False, True)
    tr_slot(i)

a.label('L_PV')
if args.ffn:
    I(f's_cmp_eq_u32 {s(sWV)}, 3')
    I(f's_cselect_b32 {s(sR)}, s2, 224')
    I(f's_cmp_ge_u32 {s(sR)}, 224')
    I('s_cbranch_scc1 L_PV_now1')
    ffn_w1(W1T)
    a.label('L_PV_now1')
if not args.bm3:
    TS(6)
    I('s_barrier')
if args.pp:
    I(f's_setprio {args.pp}')
I('s_barrier')
a.label('L_PVC')
for u in range(4):
    I(f'ds_read_b128 {v(PF + 4 * u, 4)}, {v(48 + u)}')
LW, MW = 32, 36
I(f'ds_read_b128 {v(LW, 4)}, v43')
I(f'ds_read_b128 {v(MW, 4)}, v42')
TS(7)
O = 16
cvt = lambda k: [f'v_cvt_pk_bf16_f32 {v(O + 4 * r + k)}, {v(ACC + 8 * k + r)}, {v(ACC + 8 * k + 4 + r)}' for r in range(4)]
R4 = range(4)
fill = {}


def place(first, ops):
    for i, t_ in enumerate(ops):
        fill.setdefault(first + i // 2, []).append(t_)


w0 = [f'v_add_f32 {v(LW + r)}, {v(LW + r)}, {v(LW + r)} row_ror:{st}' for st in (8, 4, 2, 1) for r in R4]
w0[0] = 's_waitcnt lgkmcnt(0)\n' + w0[0]
w1 = [f'v_cvt_f16_f32 {v(LW + r)}, {v(LW + r)}' for r in R4]
w1 += [f'v_and_or_b32 {v(LW + r)}, {v(LW + r)}, {s(sT0)}, {v(MW + r)}' for r in R4]
w1 += [f'v_lshrrev_b32 {v(LW + r)}, v1, {v(LW + r)}' for r in R4]
w2 = cvt(0) + [f'v_and_b32 {v(O + 4 * r)}, {s(sK2)}, {v(O + 4 * r)}' for r in R4]
w3 = cvt(1) + [f'v_bfi_b32 {v(O + 4 * r + 1)}, {s(sK1)}, {v(LW + r)}, {v(O + 4 * r + 1)}' for r in R4]
w3 += [f'v_add_u32 {v(CK + r)}, {v(O + 4 * r)}, {v(O + 4 * r + 1)}' for r in R4]
w3 += [f'v_add_u32 {v(CK + r)}, {v(CK + r)}, {v(CK + r)} row_ror:{st}' for st in (8, 4, 2, 1) for r in R4]
allw = w0 + w2 + w1 + w3
place(2, allw[:60])
I(f's_mov_b32 {s(sT0)}, 0xffff')
i = 0
for k in range(4):
    for u in range(4):
        for T in (2 * k, 2 * k + 1):
            if k == 0 and T == 0 and u < 2:
                I(f's_waitcnt lgkmcnt({5 - u})')
            I(f'{MFMA} {v(ACC + 4 * T, 4)}, {v(PF + 4 * u, 4)}, {v(BF + (u * 8 + T) * 4, 4)}, {"0" if u == 0 else v(ACC + 4 * T, 4)}')
            for t_ in fill.get(i, []):
                I(t_)
            i += 1
for t_ in allw[60:] + cvt(2):
    I(t_)
for r in range(4):
    I(f'v_sub_u32 {v(CK + r)}, {s(sK0)}, {v(CK + r)}')
    I(cvt(3)[r])
    I(f'v_lshrrev_b32 {v(CK + r)}, v1, {v(CK + r)}')
    I(f'v_and_or_b32 {v(O + 4 * r)}, {v(CK + r)}, {s(sK1)}, {v(O + 4 * r)}')
    if args.warm & 2 and r == 0:
        a.B('s_cbranch_execz L_PVC_back')
    I(f'global_store_dwordx4 {v(52 + r)}, {v(O + 4 * r, 4)}, {P(pWS)} {args.sf.replace("+", " ")}')
flag_add(C_ST)
TS(8)
if args.ffn:
    I('s_setprio 0')
    I(f's_cmp_ge_u32 {s(sR)}, 224')
    I('s_cbranch_scc1 L_PV_noffn')
    ffn_rest(W1T, 4)
    I('s_branch L_PV_end')
    a.label('L_PV_noffn')
I('s_waitcnt vmcnt(0)')
flag_add(C_ACK)
TS(9)
a.label('L_PV_end')
I('s_waitcnt lgkmcnt(0)')
ts_dump()
I('s_endpgm')

a.label('L_S')
AF, QB, WUV, SA, MK, WO0, QAD = 128, 96, 48, 40, 36, 64, 80
WOR, PL, AW, AT2 = 128, 176, 208, 240
XR2, B2R, OA, W2T, HH = 46, 47, 104, 88, 124
sQ, sDL = sK1, sK2
WOq = lambda q: WO0 + 4 * q if q < 4 else WOR + 4 * (q - 4)
HTC = {0: f's_lshr_b32 {s(sHT)}, {s(sY)}, 3\ns_lshl2_add_u32 {s(sHT)}, {s(sX)}, {s(sHT)}',
       1: f's_and_b32 {s(sHT)}, {s(sY)}, 24\ns_add_u32 {s(sHT)}, {s(sX)}, {s(sHT)}',
       2: f's_bfe_u32 {s(sHT)}, {s(sY)}, 0x10003\ns_lshl1_add_u32 {s(sHT)}, {s(sX)}, {s(sHT)}\ns_and_b32 {s(sCI)}, {s(sY)}, 16\ns_add_u32 {s(sHT)}, {s(sHT)}, {s(sCI)}'}[args.htmap]
ROT = {0: '', 1: f's_lshl1_add_u32 {s(sT1)}, {s(sW)}, {s(sY)}', 2: f's_mov_b32 {s(sT1)}, {s(sY)}', 3: f's_lshl_b32 {s(sT1)}, {s(sW)}, 1'}[args.rot]
if args.rot:
    ROT += f'\ns_and_b32 {s(sT1)}, {s(sT1)}, 7\ns_lshl_b32 {s(sT1)}, {s(sT1)}, 12\nv_xor_b32 v4, {s(sT1)}, v4'
KS = {0: 12, 1: 16, 2: 19}[args.kmap]
if args.kmap == 0:
    I(f's_lshl_b32 {s(sT0)}, {s(sS)}, 17')
elif args.kmap == 1:
    I(f's_and_b32 {s(sT0)}, {s(sS)}, 15')
    I(f's_lshl_b32 {s(sT0)}, {s(sT0)}, 12')
    I(f's_lshl_b32 {s(sT1)}, {s(sX)}, 21')
    I(f's_add_u32 {s(sT0)}, {s(sT0)}, {s(sT1)}')
else:
    I(f's_lshl_b32 {s(sT0)}, {s(sS)}, 12')
I(f"""
s_lshl_b32 {s(sT1)}, {s(sW)}, {KS + 3}
s_add_u32 {s(sT0)}, {s(sT0)}, {s(sT1)}
s_lshl_b32 {s(sT1)}, {s(sW)}, 8
s_add_u32 {s(sT0)}, {s(sT0)}, {s(sT1)}
v_lshlrev_b32 v4, 1, v2
v_xor_b32 v4, v4, v1
v_lshlrev_b32 v4, 4, v4
v_lshl_add_u32 v4, v2, 10, v4
v_add_u32 v4, {s(sT0)}, v4
{ROT}
v_xor_b32 v26, 0x80, v4
{'v_xor_b32' if args.rot else 'v_add_u32'} v26, {1 << KS}, v26
s_mul_i32 {s(sT1)}, {s(sW)}, {32768 + 8192}
s_mov_b32 m0, {s(sT1)}
s_mov_b32 {s(sT2)}, {2 << KS}
s_mov_b32 {s(sQ)}, {s(sW)}
{HTC}
s_and_b32 {s(sCI)}, {s(sY)}, 3
s_bfe_u32 {s(sDI)}, {s(sY)}, 0x10002
v_and_b32 v5, 7, v1
v_lshlrev_b32 v5, 1, v5
v_xor_b32 v5, v5, v2
v_lshlrev_b32 v5, 4, v5
v_lshl_add_u32 v5, v1, 8, v5
s_lshl_b32 {s(sT1)}, {s(sW)}, 13
v_add_u32 v5, {s(sT1)}, v5
v_lshl_add_u32 v27, {s(sW)}, 2, {v(VFL)}
""")
I(f"""
s_lshr_b32 {s(sT0)}, {s(sW)}, 1
s_lshl1_add_u32 {s(sT0)}, {s(sCI)}, {s(sT0)}
s_lshl_b32 {s(sT0)}, {s(sT0)}, 19
s_and_b32 {s(sT3)}, {s(sW)}, 1
s_lshl_b32 {s(sT3)}, {s(sT3)}, 16
s_add_u32 {s(sT0)}, {s(sT0)}, {s(sT3)}
s_lshl1_add_u32 {s(sT3)}, {s(sHT)}, {s(sDI)}
s_lshl_b32 {s(sT1)}, {s(sT3)}, 7
s_add_u32 {s(sT0)}, {s(sT0)}, {s(sT1)}
v_lshrrev_b32 v8, 3, v0
v_lshlrev_b32 v8, 13, v8
v_and_b32 v9, 7, v0
v_lshl_add_u32 v8, v9, 4, v8
v_add_u32 v8, {s(sT0)}, v8
""")
I('s_waitcnt lgkmcnt(0)')
load_epoch()
if args.ee:
    I('s_waitcnt lgkmcnt(0)')
I('s_barrier')
I(f"""
s_lshl_b32 {s(sT0)}, {s(sT3)}, 16
s_lshl_b32 {s(sT1)}, {s(sW)}, 8
s_add_u32 {s(sT0)}, {s(sT0)}, {s(sT1)}
v_lshlrev_b32 v34, 12, v2
v_lshl_add_u32 v34, v1, 4, v34
v_add_u32 v34, {s(sT0)}, v34
""")
for b in range(4):
    I(f's_add_u32 {s(sT0)}, {s(sCI)}, {b}')
    I(f's_and_b32 {s(sT0)}, {s(sT0)}, 3')
    I(f's_lshl_b32 {s(sT0)}, {s(sT0)}, 14')
    I(f'v_add_u32 {v(28 + b)}, {s(sT0)}, v34')
build_masks(MK, 9, 10)
TS(1)


def s_setup():
    I(f"""
    v_lshlrev_b32 v10, 4, v1
    v_add_u32 v10, {L_MX}, v10
    s_lshl_b32 {s(sT0)}, {s(sW)}, 2
    v_add_u32 v9, {s(sT0)}, v10
    s_lshl_b32 {s(sT0)}, {s(sW)}, 10
    s_add_u32 {s(sT0)}, {s(sT0)}, {L_P}
    v_add_u32 v11, {s(sT0)}, v3
    v_lshlrev_b32 v33, 2, v1
    v_add_u32 v33, {L_MF}, v33
    s_lshl_b32 {s(sT0)}, {s(sW)}, 8
    s_add_u32 {s(sT0)}, {s(sT0)}, {L_LS}
    v_lshl_add_u32 v32, v0, 2, {s(sT0)}
    v_xor_b32 v6, v1, v2
    v_lshlrev_b32 v6, 4, v6
    v_lshl_add_u32 v6, v2, 8, v6
    """)
    for i in range(4):
        I(f's_add_u32 {s(sT0)}, {s(sW)}, {i}')
        I(f's_and_b32 {s(sT0)}, {s(sT0)}, 3')
        I(f's_lshl_b32 {s(sT0)}, {s(sT0)}, 12')
        I(f's_add_u32 {s(sT0)}, {s(sT0)}, {L_QA}')
        I(f'v_add_u32 {v(QAD + 2 * i)}, {s(sT0)}, v6')
        I(f'v_xor_b32 {v(QAD + 2 * i + 1)}, 64, {v(QAD + 2 * i)}')
    I(f"""
    s_bfe_u32 {s(sT0)}, s2, 0x20004
    s_and_b32 {s(sT1)}, s2, 3
    s_lshl2_add_u32 {s(sT0)}, {s(sT0)}, {s(sT1)}
    s_lshl_b32 {s(sT0)}, {s(sT0)}, 6
    s_bfe_u32 {s(sT1)}, s2, 0x10002
    s_lshl3_add_u32 {s(sT0)}, {s(sT1)}, {s(sT0)}
    s_bfe_u32 {s(sT1)}, s2, 0x10003
    s_lshl2_add_u32 {s(sT0)}, {s(sT1)}, {s(sT0)}
    v_and_b32 v35, 3, v0
    v_lshl_add_u32 v12, v35, 4, {s(sT0)}
    s_mov_b32 {s(sK0)}, 0x20000
    s_lshr_b32 {s(sT1)}, s2, 6
    s_lshl_b32 {s(sT1)}, {s(sT1)}, 10
    s_add_u32 {s(sT0)}, {s(sT0)}, {s(sT1)}
    s_cmp_lt_u32 s2, 224
    s_cselect_b32 {s(sR)}, -1, 0
    s_cselect_b32 {s(sT1)}, 0, 512
    s_sub_u32 {s(sT0)}, {s(sT0)}, {s(sT1)}
    s_lshl1_add_u32 {s(sT0)}, {s(sT0)}, {s(sW)}
    s_lshl_b32 {s(sT0)}, {s(sT0)}, 8
    v_lshlrev_b32 v34, 13, v2
    v_lshl_add_u32 v34, v1, 4, v34
    v_add_u32 v34, {s(sT0)}, v34
    """)


def dma_row(r):
    k = r & 7
    va = 'v26' if k & 1 else 'v4'
    I(f'global_load_lds_dwordx4 {va}, {P(pCKV)}{NT}')
    if r < 30:
        if k == 5:
            I(f's_lshl_b32 {s(sDL)}, {s(sQ)}, 8')
            I(f's_add_u32 {s(sQ)}, {s(sQ)}, 1')
            I(f's_and_b32 {s(sQ)}, {s(sQ)}, 3')
            I(f's_lshl_b32 {s(sT0)}, {s(sQ)}, 8')
            if args.rot:
                I(f's_xor_b32 {s(sDL)}, {s(sT0)}, {s(sDL)}')
                I(f's_or_b32 {s(sDL)}, {s(sDL)}, {6 << 12}')
            else:
                I(f's_sub_u32 {s(sDL)}, {s(sT0)}, {s(sDL)}')
                I(f's_sub_u32 {s(sDL)}, {s(sDL)}, {6 << KS}')
        if args.rot:
            I(f'v_xor_b32 {va}, {s(sDL) if k >= 6 else (6 << 12) if k & 2 else s(sT2)}, {va}')
        else:
            I(f'v_add_u32 {va}, {s(sDL if k >= 6 else sT2)}, {va}')
    if r < 31:
        if k == 7:
            I(f's_lshl2_add_u32 {s(sT0)}, {s(sQ)}, {s(sW)}')
            I(f's_lshl_b32 m0, {s(sT0)}, 13')
        else:
            I('s_add_u32 m0, m0, 0x400')
    if r == args.qa and r:
        flag_add(C_ISS)
    if r == args.hr and r:
        flag_add(C_ER)


def stage_addr(i):
    I(f's_add_u32 {s(sT1)}, {s(sW)}, {i}')
    I(f's_and_b32 {s(sT1)}, {s(sT1)}, 3')
    I(f's_lshl_b32 {s(sT1)}, {s(sT1)}, 15')
    I(f'v_add_u32 v16, {s(sT1)}, v5')
    for t in range(1, 4):
        I(f'v_xor_b32 {v(16 + t)}, {64 * t}, v16')


def stage_reads(i):
    for t in range(4):
        for tau in range(2):
            I(f'ds_read_b128 {v(AF + 32 * i + 8 * t + 4 * tau, 4)}, {v(16 + t)} offset:{4096 * tau}')


tail = []
for i in range(4):
    tail.append(f'global_load_dwordx4 {v(WO0 + 4 * i, 4)}, v28, {P(pWO)} offset:{1024 * i}{NT if args.nto else ""}')
for i in range(4):
    tail.append(f'global_load_dwordx4 {v(WUV + 4 * i, 4)}, v8, {P(pWUV)}{NT}' + (f'\nv_add_u32 v8, {s(sK0)}, v8' if i < 3 else ''))
for i in range(2):
    tail.append(f'global_load_dwordx4 {v(W2T + 4 * i, 4)}, v34, {P(pW2)} offset:{1024 * i}{NT}')
w2_loads = []
w2_late = []
if args.w2p:
    w2_late = tail[8:10]
    tail = tail[:8]
if args.ffn:
    w2_loads = tail[8:10]
    tail = tail[:8]
    args.ns = min(args.ns, 4) if args.ns == 6 else args.ns
wuv_loads = []
if args.wuv:
    assert args.tord == 1
    wuv_loads = tail[4:8]
    tail = tail[:4] + tail[8:]
elif args.tord == 1:
    tail = tail[:4] + tail[8:10] + tail[4:8]
if args.tord == 2:
    tail = tail[4:8] + tail[8:10] + tail[:4]
assert args.nt1 + args.ns + args.ne <= len(tail)

depth = lambda r: args.d1 if r < args.k1 else (args.d2 if r < args.k2 else args.d3)
for r in range(args.d1):
    dma_row(r)
s_setup()
I(f'global_load_dword v6, v12, {P(pX)}')
I(f'global_load_dword v7, v12, {P(pB2)}')
if args.warm & 1:
    I('s_mov_b64 exec, 0')
    I('s_branch L_SM_nb')
    a.label('L_SM_back')
    I('s_mov_b64 exec, -1')
I('s_mov_b64 vcc, -1')
stg = 0
for r in range(args.d1, 32):
    if args.tpos <= r < args.tpos + args.ne:
        I(tail.pop(0))
    if args.wuv == 2 and args.k1 <= r < args.k1 + 4:
        I(wuv_loads.pop(0))
    dma_row(r)
    d = depth(r)
    if args.dyn and r >= args.k1 and r < 31:
        lab = a.newlabel('L_dy')
        a.B(f's_cbranch_vccz {lab}')
        I(f'ds_read_b32 {v(VFT)}, {v(VFL)} offset:{4 * F_H2}')
        I(f's_waitcnt vmcnt({args.dyn}) lgkmcnt(0)')
        I(f'v_cmp_eq_u32 vcc, 0, {v(VFT)}')
        a.label(lab)
    if r + 1 > d and r < 31:
        I(f's_waitcnt vmcnt({d})')
        if r + 1 - d >= 8 * (stg + 1):
            flag_add(K0, 27)
            stage_addr(stg)
            stage_reads(stg)
            stg += 1
TS(2)
while stg < (3 if args.p2 < 0 else 2):
    stage_addr(stg)
    I(f's_waitcnt vmcnt({24 - 8 * stg})')
    flag_add(K0, 27)
    stage_reads(stg)
    stg += 1
for _ in range(args.nt1):
    I(tail.pop(0))
if args.qa == 32:
    flag_add(C_ISS)
stage_addr(3 if args.p2 < 0 else 2)
assert args.p2 < 0 or (stg == 2 and args.p2 <= 8 and args.p2 <= args.last)
epoch_ready()
I('s_setprio 2')
flag_wait(C_QA, 2)
TS(4)
LOOK = 4


def qa_read(t):
    I(f'ds_read_b128 {v(QB + 4 * (t & 7), 4)}, {v(QAD + 2 * (t >> 2) + (t & 1))} offset:{1024 * (t & 3)}')


def wo_rest():
    for q in range(4, 16):
        I(f'global_load_dwordx4 {v(WOq(q), 4)}, {v(28 + (q >> 2))}, {P(pWO)} offset:{1024 * (q & 3)}{NTS}')


def s_mfma(t):
    for tau in range(2):
        I(f'{MFMA} {v(SA + 4 * tau, 4)}, {v(AF + 8 * t + 4 * tau, 4)}, {v(QB + 4 * (t & 7), 4)}, {"0" if t == 0 else v(SA + 4 * tau, 4)}')


ldsq = []


def pickup(i):
    I(f's_waitcnt vmcnt({8 * (3 - i) + args.nt1})')
    stage_reads(i)
    ldsq.extend([('A', 4 * i + t) for t in range(4) for _ in range(2)])
    if i < 3 or not args.bm3:
        flag_add(K0, 27)
        ldsq.append(('F', i))
    if i == 2:
        stage_addr(3)
    else:
        TS(3)


waited = -1
for t in range(LOOK):
    qa_read(t)
    ldsq.append(('Q', t))
for t in range(16):
    if t == args.p2:
        pickup(2)
    if t == args.last:
        pickup(3)
    if t + LOOK < 16:
        qa_read(t + LOOK)
        ldsq.append(('Q', t + LOOK))
    need_ = max(i for i, o in enumerate(ldsq) if o in (('Q', t), ('A', t)))
    if need_ > waited:
        younger = min(15, len(ldsq) - 1 - need_)
        I(f's_waitcnt lgkmcnt({younger})')
        waited = len(ldsq) - 1 - younger
    s_mfma(t)
    if t >= 12:
        for _ in range((args.ns + 3 - (t - 12)) // 4):
            if tail:
                I(tail.pop(0))
TS(5)
a.label('L_SM')
I(f'''
s_mov_b32 {s(sT3)}, 0xffff0000
s_mov_b32 {s(sT0)}, 0x3db504f3
s_mov_b32 {s(sT1)}, 0x3fb8aa3b
v_max3_f32 v24, {v(SA)}, {v(SA + 1)}, {v(SA + 2)}
v_max3_f32 v25, {v(SA + 4)}, {v(SA + 5)}, {v(SA + 6)}
v_max3_f32 v24, v24, {v(SA + 3)}, {v(SA + 7)}
v_max_f32 v24, v24, v25
''')
if args.dsmax:
    I(f'ds_max_f32 v33, v24 offset:{L_MA - L_MF}')
else:
    cross_rows_allreduce('v_max_f32', 24, 25)
    I('ds_write_b32 v9, v24')
if args.mimic:
    round_pairs(SA, 8, 16)
I('s_waitcnt lgkmcnt(0)')
I('s_barrier')
a.label('L_SM_nb')
I(f'ds_read_b32 v24, v33 offset:{L_MA - L_MF}' if args.dsmax else 'ds_read_b128 v[20:23], v10')
for i in range(8):
    I(f'v_mul_f32 {v(SA + i)}, {s(sT0)}, {v(SA + i)}')
if args.mimic:
    round_pairs(SA, 8, 16)
I('s_waitcnt lgkmcnt(0)')
if not args.dsmax:
    I('v_max3_f32 v24, v20, v21, v22')
    I('v_max_f32 v24, v24, v23')
if args.mimic:
    I('v_cvt_pk_bf16_f32 v24, v24, v24')
    I(f'v_and_b32 v24, {s(sT3)}, v24')
I(f'v_mul_f32 v24, {s(sT0)}, v24')
assert args.mimic
I('v_cvt_pk_bf16_f32 v24, v24, v24')
I(f'v_and_b32 v25, {s(sT3)}, v24')
I(f'v_mul_f32 v24, {s(sT1)}, v25')
I('ds_write_b32 v33, v25')
for i in range(8):
    I(f'v_fma_f32 {v(SA + i)}, {v(SA + i)}, {s(sT1)}, -v24')
for i in range(8):
    I(f'v_exp_f32 {v(SA + i)}, {v(SA + i)}')
for i in range(4):
    I(f'v_cvt_pk_bf16_f32 {v(16 + i)}, {v(SA + 2 * i)}, {v(SA + 2 * i + 1)}')
I('ds_write_b128 v11, v[16:19]')
I(f's_mov_b32 {s(sT0)}, 0x3f803f80')
I(f'v_dot2_f32_bf16 v25, v16, {s(sT0)}, 0')
for i in range(1, 4):
    I(f'v_dot2_f32_bf16 v25, {v(16 + i)}, {s(sT0)}, v25')
I('ds_write_b32 v32, v25')
if args.warm & 1:
    a.B('s_cbranch_execz L_SM_back')
I('s_waitcnt lgkmcnt(0)')
I('s_barrier')
I('s_setprio 0')
TS(6)
I(f'v_mov_b32 {v(XR2)}, v6')
I(f'v_mov_b32 {v(B2R)}, v7')
for _ in range(args.nb):
    if tail:
        I(tail.pop(0))
if args.wor == 1:
    wo_rest()
I(f'''
v_lshlrev_b32 v10, 3, v0
v_add_u32 v10, {L_FF}, v10
s_lshl2_add_u32 {s(sT0)}, {s(sHT)}, {s(sCI)}
s_lshl2_add_u32 {s(sT0)}, {s(sT0)}, {s(sW)}
s_lshl_b32 {s(sT0)}, {s(sT0)}, 13
s_add_u32 {s(sT0)}, {s(sT0)}, {W_H3}
v_lshlrev_b32 v4, 11, v2
v_lshl_add_u32 v4, v1, 4, v4
v_add_u32 v4, {s(sT0)}, v4
s_mul_i32 {s(sK1)}, {s(sEP)}, {(HASH * 16) & 0xffffffff}
s_add_u32 {s(sK1)}, {s(sK1)}, {(HASH * 8) & 0xffffffff}
s_mov_b32 {s(sK2)}, {EMB}
s_lshl_b32 {s(sT0)}, {s(sW)}, 2
s_add_u32 {s(sT0)}, {s(sT0)}, {L_MX}
v_mov_b32 v7, {s(sT0)}
v_mov_b32 v45, {L_MX}
s_lshl_b32 {s(sT0)}, {s(sW)}, 18
s_lshl_b32 {s(sT1)}, s2, {6 + args.h5}
s_add_u32 {s(sT0)}, {s(sT0)}, {s(sT1)}
s_add_u32 {s(sT0)}, {s(sT0)}, {W_H5}
v_lshrrev_b32 v44, {2 + args.h5}, v0
v_lshlrev_b32 v44, {14 + args.h5}, v44
v_and_b32 v16, {7 if args.h5 else 3}, v0
v_lshl_add_u32 v44, v16, 4, v44
v_add_u32 v44, {s(sT0)}, v44
v_and_b32 v16, 1, v2
v_lshrrev_b32 v17, 1, v2
s_lshl_b32 {s(sT0)}, {s(sW)}, 9
s_add_u32 {s(sT1)}, {s(sT0)}, {L_CL}
v_add_u32 v40, {s(sT1)}, v3
s_add_u32 {s(sT1)}, {s(sT0)}, {L_CX}
v_and_b32 v42, 7, v0
v_lshlrev_b32 v42, 5, v42
v_lshl_add_u32 v42, v16, 4, v42
v_lshl_add_u32 v42, v17, 8, v42
v_add_u32 v42, {s(sT1)}, v42
s_lshl_b32 {s(sT0)}, {s(sW)}, 7
s_add_u32 {s(sT0)}, {s(sT0)}, {L_CL}
v_lshrrev_b32 v41, 3, v0
v_lshl_add_u32 v41, v41, 4, {s(sT0)}
v_lshl_add_u32 v41, v35, 2, v41
v_bfe_u32 v9, v0, 2, 1
v_lshl_add_u32 v41, v9, 10, v41
v_lshl_add_u32 v9, v9, 3, v45
v_lshrrev_b32 v43, 2, v1
v_add_u32 v43, {s(sCI)}, v43
v_and_b32 v43, 3, v43
v_lshlrev_b32 v43, 4, v43
v_lshl_add_u32 v43, v2, 2, v43
v_add_u32 v43, v43, v35
v_lshlrev_b32 v43, 2, v43
v_add_u32 v43, {L_CX}, v43
v_mov_b32 v33, {s(sEP)}
v_cmp_gt_u32 {P(sM1)}, v0, 31
v_and_b32 v16, 1, v0
v_cmp_eq_u32 {P(sM2)}, 1, v16
''')
if args.pw & 4 and args.pwt != 2:
    for e in range(4):
        I(f'v_mov_b32 {v(20 + e)}, 0')
    I(f'global_store_dwordx4 v44, v[20:23], {P(pWS)} sc1')
if args.pw & 32:
    I(f's_lshl_b32 {s(sT0)}, {s(sW)}, 8')
    I(f's_sub_u32 {s(sT0)}, s2, {s(sT0)}')
    I(f's_cmp_lt_i32 {s(sT0)}, 192')
    I('s_cbranch_scc1 L_nopwo')
    I('s_mov_b64 exec, 15')
    I(f'global_store_dword v12, v20, {P(pOUT)} sc1')
    I('s_mov_b64 exec, -1')
    a.label('L_nopwo')
if args.pfu:
    I(f'''
    s_lshl2_add_u32 {s(sT0)}, {s(sCI)}, {s(sW)}
    s_lshl_b32 {s(sT0)}, {s(sT0)}, 18
    s_xor_b32 {s(sT1)}, {s(sDI)}, 1
    s_lshl1_add_u32 {s(sT1)}, {s(sHT)}, {s(sT1)}
    s_lshl_b32 {s(sT1)}, {s(sT1)}, 7
    s_add_u32 {s(sT0)}, {s(sT0)}, {s(sT1)}
    v_lshl_add_u32 v11, v0, 13, {s(sT0)}
    ''')
    pf = f's_mov_b32 exec_hi, 0\nglobal_load_dword v126, v11, {P(pWUV)}{NT}\ns_mov_b64 exec, -1'
    tail = tail + [pf] if args.pfu == 1 else [pf] + tail


def lt_read():
    I(f's_lshl_b32 {s(sT0)}, s2, 9')
    I(f's_add_u32 {s(sT0)}, {s(sT0)}, {W_LT}')
    I(f's_add_u32 {s(sB)}, {s(pWS)}, {s(sT0)}')
    I(f's_addc_u32 {s(sB + 1)}, {s(pWS + 1)}, 0')
    for k in range(4):
        I(f's_load_dword {s(96 + k)}, {P(sB)}, {128 * k}')


def lt_signal():
    lab = a.newlabel('L_lts')
    I(f's_cmp_lg_u32 {s(sW)}, 0')
    I(f's_cbranch_scc1 {lab}')
    I('v_mul_u32_u24 v11, 53, v0')
    I('v_add3_u32 v11, v11, s2, 37')
    I('v_and_b32 v11, 0xff, v11')
    I('v_lshl_add_u32 v11, v11, 2, v0')
    I('v_lshlrev_b32 v11, 7, v11')
    I(f'v_add_u32 v11, {W_LT}, v11')
    I('s_mov_b64 exec, 15')
    I(f'global_store_dword v11, v33, {P(pWS)} sc1')
    I('s_mov_b64 exec, -1')
    a.label(lab)


def lt_decide():
    I('s_waitcnt lgkmcnt(0)')
    I(f's_mov_b32 {s(sT0)}, 0')
    for k in range(4):
        I(f's_cmp_eq_u32 {s(96 + k)}, {s(sEP)}')
        I(f's_addc_u32 {s(sT0)}, {s(sT0)}, 0')
    if args.ts and args.tsn == 4:
        I(f's_mov_b32 {s(TSB + 30)}, {s(sT0)}')
    I(f's_cmp_ge_u32 {s(sT0)}, {args.ltq}')


if args.lt == 1:
    lt_read()
if args.lt and args.lts:
    lt_signal()
if tail or args.wor == 2:
    flag_wait(C_ST, 4)
if args.lt == 2:
    lt_read()
if args.lt and not args.lts:
    lt_signal()
late_uv = list(tail)
if args.ltf:
    lt_decide()
    I('s_cbranch_scc1 L_late')
while tail:
    I(tail.pop(0))
if args.lt and not args.ltf:
    lt_decide()
    I('s_cbranch_scc1 L_nogate')
if args.wor == 2:
    wo_rest()
if args.ackn:
    I(f's_mov_b32 {s(sCNT)}, {args.ackn}')
    a.label('L_ackw')
    I(f'ds_read_b32 {v(VFT)}, {v(VFL)} offset:{4 * C_ACK}')
    I(f's_sub_u32 {s(sCNT)}, {s(sCNT)}, 1')
    I('s_waitcnt lgkmcnt(0)')
    I(f'v_cmp_gt_u32 vcc, 4, {v(VFT)}')
    a.B('s_cbranch_scc1 L_nogate')
    a.B('s_cbranch_vccnz L_ackw')
else:
    flag_wait(C_ACK if args.ew else C_ST, 4)
for q in range(4, 4 + args.wpre):
    I(f'global_load_dwordx4 {v(WOq(q), 4)}, {v(28 + (q >> 2))}, {P(pWO)} offset:{1024 * (q & 3)}{NTS}')
if args.dly:
    I(f's_sleep {args.dly}')
if args.gv:
    I(f's_waitcnt vmcnt({args.gv - 1})')
a.label('L_nogate')
TS(8)
U = 96
nwo = 0


def gather(first, w2_loads=(), wpre=args.wpre):
    global nwo
    for q in range(8):
        I(f'global_load_dwordx4 {v(PL + 4 * q, 4)}, v4, {P(pWS)} offset:{q * 256} {args.lf.replace("+", " ")} ')
    n2 = len(w2_loads) if first else 0
    if first:
        for t_ in w2_loads:
            I(t_)
    n_ = 0
    for q in range(8):
        d0, d1 = v(PL + 4 * q), v(PL + 4 * q + 1)
        I(f's_waitcnt vmcnt({7 - q + n_ + n2})')
        if first and args.wor == 3:
            for _ in range((args.nin + 7 - q) // 8):
                qq = 4 + n_ + wpre
                if qq > 15:
                    continue
                I(f'global_load_dwordx4 {v(WOq(qq), 4)}, {v(28 + (qq >> 2))}, {P(pWO)} offset:{1024 * (qq & 3)}{NTS}')
                n_ += 1
        I(f'v_and_b32 v19, {s(sK2)}, {d0}')
        I(f'v_and_b32 {v(U + q)}, {s(sK2)}, {d1}')
        I(f'v_xor_b32 {d0}, v19, {d0}')
        I(f'v_lshl_add_u32 v19, v19, v1, {d1}')
        I(f'v_xor_b32 {d1}, {v(U + q)}, {d1}')
        I(f'v_lshlrev_b32 {v(U + q)}, v1, {v(U + q)}')
        I(f'v_add3_u32 v32, {d0}, v19, {"0" if q == 0 else "v32"}')
    if first:
        nwo = n_


gather(True, w2_loads)
if args.w2p == 2:
    assert args.nin == 12
    for t_ in w2_late:
        I(t_)
if args.ltf:
    I('s_branch L_late_j')
    a.label('L_late')
    TS(8)
    assert args.nin == 12
    gather(True, late_uv, 0)
    a.label('L_late_j')
I(f's_mov_b32 {s(sCNT)}, {args.spin}')
a.label('L_T3_chk')
for k in range(4):
    I(f'v_or_b32 {v(20 + k)}, {v(U + k)}, {v(U + k)} row_ror:8 bank_mask:0x3')
I('v_add_u32 v32, v32, v32 row_ror:8')
for k in range(4):
    I(f'v_or_b32 {v(20 + k)}, {v(U + 4 + k)}, {v(U + 4 + k)} row_ror:8 bank_mask:0xc')
I('v_add_u32 v32, v32, v32 row_ror:4')
for k in range(2):
    I(f'v_or_b32 {v(24 + k)}, {v(20 + k)}, {v(20 + k)} row_shl:4 bank_mask:0x5')
for k in range(2):
    I(f'v_or_b32 {v(24 + k)}, {v(22 + k)}, {v(22 + k)} row_shr:4 bank_mask:0xa')
I('v_add_u32 v32, v32, v32 row_ror:2')
for k in range(2):
    I(f'v_or_b32 {v(24 + k)}, {v(24 + k)}, {v(24 + k)} quad_perm:[1,0,3,2]')
I('v_add_u32 v32, v32, v32 row_ror:1')
for k in range(2):
    I(f'v_or_b32 {v(24 + k)}, {v(24 + k)}, {v(24 + k)} quad_perm:[2,3,0,1]')
I(f'v_cmp_ne_u32 vcc, {s(sK1)}, v32')
I(f's_sub_u32 {s(sCNT)}, {s(sCNT)}, 1')
I(f'v_cndmask_b32 v5, v24, v25, {P(sM2)}')
a.B('s_cbranch_vccz L_T3_go')
a.B('s_cbranch_scc1 L_T3_go')
I('s_mov_b64 exec, vcc')
gather(False)
I('s_branch L_T3_chk')
a.label('L_T3_go')
I('s_mov_b64 exec, -1')
TS(7)
wo_late = [f'global_load_dwordx4 {v(WOq(qq), 4)}, {v(28 + (qq >> 2))}, {P(pWO)} offset:{1024 * (qq & 3)}{NTS}' for qq in range(4 + nwo + args.wpre, 16)] if args.wor == 3 else []
nwo += len(wo_late)
if args.w2p == 1:
    wo_late += w2_late
if not args.nip:
    while wo_late:
        I(wo_late.pop(0))
I(f's_mov_b32 {s(sT1)}, 0x3fb8aa3b')
I(f'v_and_b32 v6, {s(sT3)}, v5')
I('v_cvt_f32_f16 v21, v5')
I(f'v_mul_f32 v6, {s(sT1)}, v6')
I('v_mul_f32 v21, 0.5, v21')
I('v_max_f32 v18, v6, v6 row_ror:8')
row_allreduce('v_max_f32', [18], steps=(4, 1))
cross_rows_allreduce('v_max_f32', 18, 19)
I('''
v_sub_f32 v17, v6, v18
v_exp_f32 v17, v17
v_cvt_pk_bf16_f32 v16, v17, v17
v_mul_f32 v17, v17, v21
''')
TS(1)
red = [f'v_add_f32 v17, v17, v17 row_ror:{st}' for st in (8, 4, 2, 1)]
red += ['v_mov_b32 v19, v17', 'v_permlane16_swap_b32 v19, v17\nv_add_f32 v17, v17, v19\nv_mov_b32 v19, v17',
        'v_permlane32_swap_b32 v19, v17\nv_add_f32 v17, v17, v19', 'ds_write2_b32 v7, v18, v17 offset0:0 offset1:4']
QL = lambda q: 8 * (q >> 2) + 4 * ((q >> 1) & 1) + (q & 1)


def w_and(q):
    for r in range(4):
        I(f'v_and_b32 {v(AW + 4 * (q & 1) + r)}, v16, {v(MK + r)} row_newbcast:{QL(q)}')


w_and(0)
for q in range(8):
    if q < 7:
        w_and(q + 1)
    I(f'{MFMA} v[24:27], {v(AW + 4 * (q & 1), 4)}, {v(PL + 4 * q, 4)}, {"0" if q == 0 else "v[24:27]"}')
    if q < 4:
        I(red[q])
    for _ in range(2):
        if wo_late:
            I(wo_late.pop(0))
for t_ in red[4:]:
    I(t_)
I('s_mov_b32 exec_hi, 0')
I('ds_write_b128 v40, v[24:27]')
I('s_mov_b64 exec, -1')
I('s_waitcnt lgkmcnt(0)')
TS(9)
TSN(0)
I('s_barrier')
I('ds_read_b128 v[96:99], v45')
I('ds_read_b64 v[100:101], v9')
I('ds_read2st64_b32 v[108:109], v41 offset0:0 offset1:2')
I('ds_read_b64 v[102:103], v9 offset:16')
I(f'ds_read_b64 {v(HH, 2)}, v10')
I('''
s_waitcnt lgkmcnt(4)
v_max3_f32 v18, v96, v97, v98
v_max_f32 v18, v18, v99
s_waitcnt lgkmcnt(2)
v_sub_f32 v100, v100, v18
v_sub_f32 v101, v101, v18
v_exp_f32 v100, v100
v_exp_f32 v101, v101
v_mul_f32 v20, v100, v108
v_fmac_f32 v20, v101, v109
s_waitcnt lgkmcnt(0)
v_mul_f32 v18, v100, v102
v_add_f32 v21, v20, v20 row_shl:4 bank_mask:0x5
v_fmac_f32 v18, v101, v103
v_add_f32 v21, v20, v20 row_shr:4 bank_mask:0xa
v_cvt_pk_bf16_f32 v20, v21, v21
v_add_f32 v18, v18, v18 row_half_mirror
''')
if args.ltf:
    I(f's_waitcnt vmcnt({nwo})')
QP = lambda i: f'quad_perm:[{i},{i},{i},{i}]'
for r in range(4):
    I(f'v_and_b32 {v(AW + r)}, v20, {v(MK + r)} {QP(0)}')
for i in range(4):
    if i < 3:
        for r in range(4):
            I(f'v_and_b32 {v(AW + 4 * (i + 1) + r)}, v20, {v(MK + r)} {QP(i + 1)}')
    else:
        I('v_rcp_f32 v18, v18')
    I(f'{MFMA} v[24:27], {v(AW + 4 * i, 4)}, {v(WUV + 4 * i, 4)}, {"0" if i == 0 else "v[24:27]"}')
for i in range(2):
    I(f'v_and_b32 {v(HH + i)}, {s(sR)}, {v(HH + i)}')
for r in range(4):
    I(f'v_and_b32 {v(AW + 16 + r)}, {v(HH)}, {v(MK + r)}')
I('s_mov_b32 exec_lo, 0x00ff00ff')
I('s_mov_b32 exec_hi, 0xff00ff00')
I('ds_write_b128 v42, v[24:27]')
I('s_mov_b64 exec, -1')
for r in range(4):
    I(f'v_and_b32 {v(AW + 20 + r)}, {v(HH + 1)}, {v(MK + r)}')
I('s_waitcnt lgkmcnt(0)')
I('s_barrier')
for k in range(4):
    I(f'ds_read2st64_b32 {v(108 + 2 * k, 2)}, v43 offset0:{2 * k} offset1:{2 * k + 1}')
TS(10)
if not args.w2p:
    I(f's_waitcnt vmcnt({nwo})')
    for i in range(2):
        I(f'{MFMA} {v(OA, 4)}, {v(AW + 16 + 4 * i, 4)}, {v(W2T + 4 * i, 4)}, {"0" if i == 0 else v(OA, 4)}')
I('v_mov_b32 v22, v33')
I('v_mov_b32 v23, v33')
I('''
s_waitcnt lgkmcnt(2)
v_add_f32 v108, v108, v109
v_add_f32 v110, v110, v111
s_waitcnt lgkmcnt(0)
v_add_f32 v112, v112, v113
v_add_f32 v114, v114, v115
v_add_f32 v108, v108, v110
v_add_f32 v112, v112, v114
v_add_f32 v108, v108, v112
''')
I('v_mul_f32 v108, v108, v18')
I('v_cvt_pk_bf16_f32 v20, v108, v108')


def wo_and(q):
    for r in range(4):
        I(f'v_and_b32 {v(AT2 + 4 * (q & 1) + r)}, v20, {v(MK + r)} row_newbcast:{q}')


wo_and(0)
for q in range(16):
    if q < 15:
        wo_and(q + 1)
    if args.wor == 3 and q >= 4:
        I(f's_waitcnt vmcnt({15 - q + len(w2_late)})')
    I(f'{MFMA} {v(OA, 4)}, {v(AT2 + 4 * (q & 1), 4)}, {v(WOq(q), 4)}, {"0" if q == 0 and args.w2p else v(OA, 4)}')
if args.w2p:
    for i in range(2):
        I(f's_waitcnt vmcnt({1 - i})')
        I(f'{MFMA} {v(OA, 4)}, {v(AW + 16 + 4 * i, 4)}, {v(W2T + 4 * i, 4)}, {v(OA, 4)}')
TS(11)
I(f'v_cndmask_b32 v20, {v(OA)}, {v(OA + 2)}, {P(sM1)}')
I(f'v_cndmask_b32 v21, {v(OA + 1)}, {v(OA + 3)}, {P(sM1)}')
I(f'global_store_dwordx4 v44, v[20:23], {P(pWS)} sc1')
TS(12)
I('s_cmp_lt_u32 s2, 192')
I('s_cbranch_scc1 L_T_ep' if args.ee else 's_cbranch_scc1 L_T_done')
I(f'''
s_bfe_u32 {s(sT0)}, s2, {0x50001 if args.h5 else 0x60000}
s_lshl2_add_u32 {s(sT0)}, {s(sT0)}, {s(sW)}
s_lshl_b32 {s(sT0)}, {s(sT0)}, {12 + args.h5}
s_and_b32 {s(sT1)}, s2, {args.h5}
s_lshl_b32 {s(sT1)}, {s(sT1)}, 6
s_add_u32 {s(sT0)}, {s(sT0)}, {s(sT1)}
s_add_u32 {s(sT0)}, {s(sT0)}, {W_H5}
v_lshrrev_b32 v4, 2, v0
v_lshlrev_b32 v4, {6 + args.h5}, v4
v_lshl_add_u32 v4, v35, 4, v4
v_add_u32 v4, {s(sT0)}, v4
v_add_u32 v5, {2048 << args.h5}, v4
v_lshrrev_b32 v6, 1, v2
v_lshl_add_u32 v8, v6, 2, v35
v_lshlrev_b32 v8, 5, v8
v_and_b32 v6, 1, v2
v_lshl_add_u32 v8, v6, 2, v8
s_lshl_b32 {s(sT0)}, {s(sW)}, 3
s_add_u32 {s(sT0)}, {s(sT0)}, {L_CL}
v_add_u32 v8, {s(sT0)}, v8
v_and_b32 v9, 7, v0
v_lshlrev_b32 v9, 5, v9
v_add_u32 v9, {L_CL}, v9
v_lshlrev_b32 v108, 16, {v(XR2)}
v_and_b32 v109, {s(sT3)}, {v(XR2)}
v_lshlrev_b32 v110, 16, {v(B2R)}
v_and_b32 v111, {s(sT3)}, {v(B2R)}
v_add_f32 v108, v108, v110
v_add_f32 v109, v109, v111
v_mov_b32 v108, v109 quad_perm:[0,1,2,3] bank_mask:0xa
s_mov_b32 {s(sCNT)}, {args.spin}
''')
if args.a5:
    I('s_waitcnt vmcnt(0)')
if args.dly5:
    I(f's_sleep {args.dly5}')
f5 = lambda k: f'global_load_dwordx4 {v(128 + 4 * k, 4)}, {v(4 + (k >> 1))}, {P(pWS)} offset:{(1024 << args.h5) * (k & 1)} sc1'
a.label('L_T5_retry')
for k in range(4):
    I(f5(k))
a.label('L_T5_chk')
I(f's_sub_u32 {s(sCNT)}, {s(sCNT)}, 1')
I('s_waitcnt vmcnt(2)')
I('v_xor_b32 v17, v130, v33')
I('v_add_f32 v20, v128, v132')
I('v_bitop3_b32 v17, v134, v33, v17 bitop3:0xbe')
I('v_add_f32 v21, v129, v133')
I('s_waitcnt vmcnt(0)')
I('v_bitop3_b32 v17, v138, v33, v17 bitop3:0xbe')
I('v_add_f32 v24, v136, v140')
I('v_bitop3_b32 v17, v142, v33, v17 bitop3:0xbe')
I('v_add_f32 v25, v137, v141')
I('v_cmp_ne_u32 vcc, 0, v17')
I('v_add_f32 v20, v20, v24')
I('v_add_f32 v21, v21, v25')
a.B('s_cbranch_scc1 L_T5_go')
if args.m5:
    a.B('s_cbranch_vccz L_T5_go')
    for k in range(4):
        lab = a.newlabel('L_r5')
        I(f'v_cmp_ne_u32 vcc, {v(130 + 4 * k)}, v33')
        I('s_nop 0')
        a.B(f's_cbranch_vccz {lab}')
        I('s_mov_b64 exec, vcc')
        I(f5(k))
        I('s_mov_b64 exec, -1')
        a.label(lab)
    I('s_waitcnt vmcnt(0)')
    I('s_branch L_T5_chk')
else:
    a.B('s_cbranch_vccnz L_T5_retry')
a.label('L_T5_go')
TS(13)
TSN(3)
I('''
v_permlane32_swap_b32 v20, v21
v_add_f32 v20, v20, v21
v_add_f32 v20, v20, v20 row_ror:4
v_add_f32 v20, v20, v20 row_ror:8
ds_write_b32 v8, v20
s_waitcnt lgkmcnt(0)
s_barrier
''')
I(f's_cmp_lg_u32 {s(sW)}, 0')
I('s_cbranch_scc1 L_T_done')
I('''
ds_read_b128 v[128:131], v9
ds_read_b128 v[132:135], v9 offset:16
s_waitcnt lgkmcnt(1)
v_add_f32 v128, v128, v129
v_add_f32 v130, v130, v131
v_add_f32 v108, v108, v128
v_add_f32 v108, v108, v130
s_waitcnt lgkmcnt(0)
v_add_f32 v132, v132, v133
v_add_f32 v134, v134, v135
v_add_f32 v108, v108, v132
v_add_f32 v108, v108, v134
''')
if args.pert:
    import struct
    kind, val = args.pert.split(',')
    bits = struct.unpack('<I', struct.pack('<f', float(val)))[0]
    if kind == 'm':
        I(f'v_mul_f32 v108, {bits}, v108')
    elif kind == 'a':
        I(f'v_add_f32 v108, {bits}, v108')
    else:
        I('s_cmp_lg_u32 s2, 200')
        I('s_cbranch_scc1 L_nop')
        I('s_mov_b64 exec, 1')
        I(f'v_add_f32 v108, {bits}, v108')
        I('s_mov_b64 exec, -1')
        a.label('L_nop')
        I('s_nop 1')
I('''
v_mov_b32 v109, v108 row_shl:4
v_cvt_pk_bf16_f32 v20, v108, v109
''')
I(f's_mov_b64 exec, {args.oex}')
I(f'global_store_dword v12, v20, {P(pOUT)} {args.of.replace("+", " ")}')
if args.ee:
    I('s_branch L_T_done')
    a.label('L_T_ep')
    I(f's_lshl2_add_u32 {s(sT0)}, s2, {s(sW)}')
    I(f's_cmp_lg_u32 {s(sT0)}, 400')
else:
    I('s_cmp_lg_u32 s2, 0xe0')
I('s_cbranch_scc1 L_T_done')
I(f'v_mov_b32 v22, {W_EP}')
I('s_mov_b64 exec, 1')
I(f'global_store_dword v22, v33, {P(pWS)} {args.ef}')
a.label('L_T_done')
TS(14)
ts_dump()
a.label('L_end')
I('s_endpgm')

a.raw('.section .rodata,"a"')
a.raw('.p2align 6')
a.raw(f'.amdhsa_kernel {NAME}_kernel')
a.raw('''  .amdhsa_next_free_vgpr 256
  .amdhsa_next_free_sgpr 102
  .amdhsa_accum_offset 256
  .amdhsa_group_segment_fixed_size 0
  .amdhsa_kernarg_size 112
  .amdhsa_user_sgpr_count 2
  .amdhsa_user_sgpr_kernarg_segment_ptr 1
  .amdhsa_system_sgpr_workgroup_id_x 1
.end_amdhsa_kernel''')
open(args.o, 'w').write(a.text())
```

```python
import sys, argparse, re
from asmlib import Asm, v, s

NAME = 'parallel_sum__compressed_kv_cla__dense_activation_squared_relu__decode'

ap = argparse.ArgumentParser()
A_ = lambda n, d, t=int: ap.add_argument('--' + n, type=t, default=d)
ap.add_argument('-o', default='out.s')
A_('ts', 0)
A_('nt', 1)
A_('d1', 1); A_('k1', 2); A_('d2', 10); A_('k2', 16); A_('d3', 10)
A_('swap', 0)
A_('qa', 21)
A_('h2', 1)
A_('h3', 1)
A_('nt1', 0)
A_('wor', 3)
A_('dyn', 5)
A_('own', 1)
A_('ns', 6)
A_('nb', 0)
A_('w1', 0)
A_('last', 12)
A_('h5', 0)
A_('np', 1)
A_('sl', 5)
A_('pre', 2)
A_('tord', 1)
A_('light', 1)
A_('pt', 0)
A_('dly', 0)
A_('dly5', 0)
A_('hint1', 0)
A_('hint2', 0)
A_('wuv', 0)
A_('ew', 1)
A_('bpos', 1)
A_('a5', 1)
A_('comb', 1)
A_('tpos', 32)
A_('ne', 0)
A_('gv', 4)
A_('pp', 3)
A_('bo', 0)
A_('clk', 0)
A_('wpre', 0)
A_('nts', 0)
A_('nto', 0)
A_('ntm', 0x3f, lambda x: int(x, 0))
A_('xc', 0)
A_('kmap', 0)
A_('p2', 8)
A_('ffn', 0)
A_('dsmax', 1)
A_('pfu', 0)
A_('lf', 'sc1', str)
A_('sf', 'sc1', str)
A_('lfa', 'sc1', str)
A_('of', 'sc1', str)
A_('m5', 1)
A_('bm3', 1)
A_('top', 0)
A_('warm', 3)
A_('pert', '', str)
A_('ef', 'sc1', str)
A_('hr', 0)
A_('fr', 1)
A_('wsoff', 0, lambda x: int(x, 0))
A_('ee', 1)
A_('nopt', 1)
A_('probe', 0)
A_('spf', 0)
A_('spw', 0)
A_('spx', 60)
A_('rot', 0)
A_('nin', 12)
A_('nip', 0)
A_('lt', 0)
A_('ltq', 4)
A_('lts', 0)
A_('ltf', 0)
A_('pw', 63)
A_('pwt', 0)
A_('pwq', 0)
A_('htmap', 0)
A_('ackn', 0)
A_('w2p', 0)
A_('oex', 15)
A_('pw0', 0)
A_('hv', 4)
A_('mimic', 1)
A_('touch', 0)
A_('spin', 100000)
A_('notail', 0)
A_('tsn', 0)
A_('amp', '', str)
A_('tsmask', 0xffff, lambda x: int(x, 0))
args = ap.parse_args()
NT = ' nt' if args.nt else ''
NTS = ' nt' if args.nts else ''

L_QA = 131072
L_P = L_QA + 16384
L_XN = L_P + 4096
L_MX = L_XN + 1024
L_MF = L_MX + 256
L_MA = L_MF + 128
L_CL = L_MF + 256
L_CX = L_CL + 2048
L_FF = L_CX + 2048
L_LS = L_FF + 512
L_FL = L_LS + 1024
L_END = L_FL + 64
assert L_END <= 163840
F_F0, C_ISS, F_H2, C_QA, C_ST, C_ACK, C_ER, F_HINT, K0 = range(9)
C_L, C_M = K0 + 4, K0 + 5
W_EP = 0
W_H1 = 0x1000 + args.wsoff
W_H2 = W_H1 + 0x20000
W_HF = W_H2 + 0x10000
W_H5 = W_HF + 0x80000
W_LT = 0x1c0000
W_H3 = 0x200000 + args.wsoff
W_TS = 0x600000
assert W_H5 + 0x100000 <= W_LT

pX, pCKV, pWQ, pWUK, pWUV, pWO, pW1 = 4, 6, 8, 10, 12, 14, 18
pB1, pW2, pB2, pOUT, pDBG, pWS = 20, 22, 24, 26, 28, 30
sWV = 3
sX, sY, sFC, sGA, sS, sR, sHT, sCI, sDI = range(32, 41)
sJ, sH = sX, sY
sEP, sT0, sT1, sT2, sT3, sCNT, sW = 41, 42, 43, 44, 45, 46, 47
sB = 48
sM1, sM2, sM3, sM4 = 50, 52, 54, 56
sK0, sK1, sK2 = 58, 59, 60
TSB = 64
VFL, VONE, VFT = 13, 14, 15

a = Asm()
P = lambda r: s(r, 2)
MFMA = 'v_mfma_f32_16x16x32_bf16'


def I(text):
    if args.lfa != 'sc1':
        text = re.sub(r'(global_load\S* .*) sc1$', r'\1 ' + args.lfa.replace('+', ' '), text, flags=re.M)
    for bit, p_ in ((1, pWQ), (2, pWUK), (4, pCKV), (8, pWUV), (16, pW1), (32, pW2)):
        if not args.ntm & bit:
            text = re.sub(r'(global_load\S* .*s\[%d:%d\].*) nt' % (p_, p_ + 1), r'\1', text)
    if args.notail:
        out = []
        for line in text.split('\n'):
            m = re.match(r'\s*global_load_dwordx4 (v\[\d+:\d+\]), v\d+, s\[(\d+):', line)
            if m and int(m.group(2)) in (pWUV, pWO, pW1, pW2):
                line = f'global_load_dwordx4 {m.group(1)}, v3, s[4:5]'
            out.append(line)
        text = '\n'.join(out)
    a.I(text)


def TS(i):
    if args.ts and (args.tsmask >> i) & 1:
        I(f'{"s_memtime" if args.clk else "s_memrealtime"} {s(TSB + 2 * i, 2)}')


def TSN(k=None):
    if args.ts and (k is None or k == args.tsn):
        I(f's_sub_u32 {s(TSB + 2 * 15)}, {args.spin}, {s(sCNT)}')


def ts_dump(n=16):
    if not args.ts:
        return
    if args.xc:
        I(f's_getreg_b32 {s(TSB + 30)}, hwreg(HW_REG_XCC_ID)')
        I(f's_add_u32 {s(TSB + 30)}, {s(TSB + 30)}, {s(sEP)}')
        lab, done = a.newlabel('L_xc'), a.newlabel('L_xcd')
        I('s_cmp_lg_u32 s2, 224')
        I(f's_cbranch_scc1 {done}')
        I(f's_cmp_lg_u32 {s(sWV)}, 4')
        I(f's_cbranch_scc1 {done}')
        I('s_mov_b64 exec, -1')
        I(f'v_mov_b32 v4, {W_TS + args.xc * 512 + 60}')
        I(f'global_load_dword v5, v4, {P(pWS)} sc1')
        I('s_memrealtime s[96:97]')
        I('s_waitcnt vmcnt(0) lgkmcnt(0)')
        I(f'v_readfirstlane_b32 {s(sT0)}, v5')
        I(f's_cmp_eq_u32 {s(sT0)}, {s(TSB + 30)}')
        I(f's_cbranch_scc1 {done}')
        a.label(lab)
        I('s_memrealtime s[98:99]')
        I('s_waitcnt lgkmcnt(0)')
        I(f's_sub_u32 {s(sT1)}, s98, s96')
        I(f's_cmp_lt_u32 {s(sT1)}, 5000')
        I(f's_cbranch_scc1 {lab}')
        a.label(done)
    if args.amp:
        wg, w, k = map(int, args.amp.split(','))
        lab, done = a.newlabel('L_amp'), a.newlabel('L_ampd')
        I(f's_cmp_lg_u32 s2, {wg}')
        I(f's_cbranch_scc1 {done}')
        I(f's_cmp_lg_u32 {s(sWV)}, {w}')
        I(f's_cbranch_scc1 {done}')
        I('s_memrealtime s[96:97]')
        I('s_waitcnt lgkmcnt(0)')
        I(f's_sub_u32 {s(sT0)}, {s(TSB + 2 * k)}, {s(TSB)}')
        I(f's_lshl_b32 {s(sT0)}, {s(sT0)}, 3')
        I(f's_min_u32 {s(sT0)}, {s(sT0)}, 100000')
        a.label(lab)
        I('s_memrealtime s[98:99]')
        I('s_waitcnt lgkmcnt(0)')
        I(f's_sub_u32 {s(sT1)}, s98, s96')
        I(f's_cmp_lt_u32 {s(sT1)}, {s(sT0)}')
        I(f's_cbranch_scc1 {lab}')
        a.label(done)
    I('s_waitcnt lgkmcnt(0)')
    I('s_mov_b64 exec, -1')
    I('v_mov_b32 v4, 0')
    for i in range(n):
        I(f'v_writelane_b32 v4, {s(TSB + 2 * i)}, {i}')
    I(f's_lshl_b32 {s(sT0)}, s2, 3')
    I(f's_add_u32 {s(sT0)}, {s(sT0)}, {s(sWV)}')
    I(f's_lshl_b32 {s(sT0)}, {s(sT0)}, 6')
    I(f's_add_u32 {s(sT0)}, {s(sT0)}, {W_TS}')
    I(f'v_lshl_add_u32 v5, v0, 2, {s(sT0)}')
    I('s_mov_b64 exec, 0xffff')
    I(f'global_store_dword v5, v4, {P(pWS)}')
    I('s_waitcnt vmcnt(0)')


def load_epoch():
    I(f's_load_dword {s(sEP)}, {P(pWS)}, {W_EP}')


def epoch_ready():
    I('s_waitcnt lgkmcnt(0)')
    I(f's_add_u32 {s(sEP)}, {s(sEP)}, 1')
    I(f's_addc_u32 {s(sEP)}, {s(sEP)}, 0')


def row_allreduce(op, regs, steps=(8, 4, 2, 1)):
    for st in steps:
        for r in regs:
            I(f'{op} {v(r)}, {v(r)}, {v(r)} row_ror:{st}')


def cross_rows_allreduce(op, r, t):
    for sw in ('v_permlane16_swap_b32', 'v_permlane32_swap_b32'):
        I(f'v_mov_b32 {v(t)}, {v(r)}')
        I(f'{sw} {v(t)}, {v(r)}')
        I(f'{op} {v(r)}, {v(r)}, {v(t)}')


def scalar_poll(offsets):
    lab, done = a.newlabel('L_sp'), a.newlabel('L_spd')
    R = [61, 62, 63, 96, 97, 98, 99, 100]
    I(f's_mov_b32 {s(sCNT)}, {args.spin}')
    a.label(lab)
    for k, o in enumerate(offsets):
        I(f's_load_dword {s(R[k])}, {P(sB)}, {o} glc')
    I(f's_sub_u32 {s(sCNT)}, {s(sCNT)}, 1')
    I(f's_cbranch_scc1 {done}')
    I('s_waitcnt lgkmcnt(0)')
    I(f's_xor_b32 {s(sT0)}, {s(R[0])}, {s(sEP)}')
    for k in range(1, len(offsets)):
        I(f's_xor_b32 {s(sT1)}, {s(R[k])}, {s(sEP)}')
        I(f's_or_b32 {s(sT0)}, {s(sT0)}, {s(sT1)}')
    I(f's_cbranch_scc1 {lab}')
    a.label(done)
    I('s_waitcnt lgkmcnt(0)')


def flag_add(idx, base=VFL):
    I('s_mov_b64 exec, 1')
    I(f'ds_add_u32 {v(base)}, {v(VONE)} offset:{4 * idx}')
    I('s_mov_b64 exec, -1')


def flag_wait(idx, n, base=VFL):
    lab, done = a.newlabel('L_fw'), a.newlabel('L_fwd')
    if args.bo and idx in (F_F0, C_ISS, F_H2, C_ST, C_ACK, K0):
        l2 = a.newlabel('L_fw')
        a.B(f's_branch {l2}')
        a.label(lab)
        I(f's_sleep {args.bo}')
        a.label(l2)
    else:
        a.label(lab)
    I(f'ds_read_b32 {v(VFT)}, {v(base)} offset:{4 * idx}')
    I(f's_sub_u32 {s(sFC)}, {s(sFC)}, 1')
    I('s_waitcnt lgkmcnt(0)')
    I(f'v_cmp_gt_u32 vcc, {n}, {v(VFT)}')
    a.B(f's_cbranch_scc1 {done}')
    a.B(f's_cbranch_vccnz {lab}')
    a.label(done)
    I(f's_max_i32 {s(sFC)}, {s(sFC)}, 0')


def build_masks(M, t0, t1):
    I(f'v_and_b32 {v(t0)}, 1, v1')
    I(f'v_lshlrev_b32 {v(t0)}, 4, {v(t0)}')
    I(f'v_mov_b32 {v(t1)}, 0xffff')
    I(f'v_lshlrev_b32 {v(t1)}, {v(t0)}, {v(t1)}')
    I(f'v_bfe_u32 {v(t0)}, v1, 1, 2')
    for r in range(4):
        I(f'v_cmp_eq_u32 vcc, {r}, {v(t0)}')
        I(f'v_cndmask_b32 {v(M + r)}, 0, {v(t1)}, vcc')


BF, ACC, PF = 128, 96, 80
AT, SEL, XP, ACC0, REC = 72, 32, 80, 88, 92


def build_sel(t=6):
    J = lambda x: I(re.sub(r'\bv([6-9])\b', lambda m: 'v%d' % (int(m.group(1)) - 6 + t), x))
    J('''
    v_and_b32 v6, 1, v1
    v_cmp_eq_u32 vcc, 1, v6
    v_mov_b32 v7, 0x0c0c0100
    v_mov_b32 v8, 0x01000c0c
    v_cndmask_b32 v7, v7, v8, vcc
    v_mov_b32 v8, 0x0c0c0302
    v_mov_b32 v9, 0x03020c0c
    v_cndmask_b32 v8, v8, v9, vcc
    v_mov_b32 v9, 0x0c0c0c0c
    v_bfe_u32 v6, v1, 1, 2
    ''')
    for r in range(4):
        J(f'v_cmp_eq_u32 vcc, {r}, v6')
        J(f'v_cndmask_b32 {v(SEL + r)}, v9, v7, vcc')
        J(f'v_cndmask_b32 {v(SEL + 4 + r)}, v9, v8, vcc')


def diag_stage(n, W, younger=0):
    def perms(k):
        for r in range(4):
            I(f'v_perm_b32 {v(AT + 4 * (k & 1) + r)}, {v(XP + (k >> 1))}, {v(XP + (k >> 1))}, {v(SEL + 4 * (k & 1) + r)}')
    perms(0)
    for k in range(n):
        if k < n - 1:
            perms(k + 1)
        else:
            I(f'v_mov_b32 {v(REC + 2)}, {s(sEP)}')
            I(f'v_mov_b32 {v(REC + 3)}, {s(sEP)}')
        I(f's_waitcnt vmcnt({n - 1 - k + younger})')
        I(f'{MFMA} {v(ACC0, 4)}, {v(AT + 4 * (k & 1), 4)}, {v(W(k), 4)}, {"0" if k == 0 else v(ACC0, 4)}')


TA = 16


def tr_addr():
    I(f'''
    v_lshrrev_b32 v4, 2, v0
    v_lshlrev_b32 v4, 8, v4
    v_and_b32 v5, 31, v0
    v_lshl_add_u32 v4, v5, 3, v4
    s_lshl_b32 {s(sT0)}, {s(sW)}, 15
    v_add_u32 v4, {s(sT0)}, v4
    ''')


CK = 44
EMB = 0x00010001
HASH = 0x9e3779b1
OCT = ('quad_perm:[1,0,3,2]', 'quad_perm:[2,3,0,1]', 'row_half_mirror')


def pv_setup():
    for i in range(4):
        I(f's_sub_u32 {s(sT0)}, {s(sW)}, {i}')
        I(f's_and_b32 {s(sT0)}, {s(sT0)}, 3')
        I(f's_lshl_b32 {s(sT0)}, {s(sT0)}, 10')
        I(f's_add_u32 {s(sT0)}, {s(sT0)}, {L_P}')
        I(f'v_add_u32 {v(48 + i)}, {s(sT0)}, v3')
    I(f"""
    s_lshl_b32 {s(sT0)}, {s(sGA)}, 6
    s_add_u32 {s(sT0)}, {s(sT0)}, {s(sW)}
    s_lshl_b32 {s(sT0)}, {s(sT0)}, 7
    s_add_u32 {s(sT0)}, {s(sT0)}, {s(sS)}
    s_lshl_b32 {s(sT1)}, {s(sT0)}, 8
    s_add_u32 {s(sT1)}, {s(sT1)}, {W_H3}
    v_lshlrev_b32 v52, 19, v2
    v_lshl_add_u32 v52, v1, 4, v52
    v_add_u32 v52, {s(sT1)}, v52
    s_mov_b32 {s(sT2)}, 0x20000
    v_add_u32 v53, {s(sT2)}, v52
    v_add_u32 v54, {s(sT2)}, v53
    v_add_u32 v55, {s(sT2)}, v54
    v_lshlrev_b32 v42, 4, v2
    v_lshl_add_u32 v43, v1, 6, v42
    v_add_u32 v43, {L_LS}, v43
    v_add_u32 v42, {L_MF}, v42
    s_mul_i32 {s(sK0)}, {s(sEP)}, {(2 * HASH) & 0xffffffff}
    s_add_u32 {s(sK0)}, {s(sK0)}, {HASH}
    s_mov_b32 {s(sK1)}, {EMB}
    s_mov_b32 {s(sK2)}, {~EMB & 0xffffffff}
    """)


def pv_prewrite(qg, late=False):
    if args.pwt >= 3:
        if late and args.pw & 16:
            for e in range(4):
                I(f'v_mov_b32 {v(28 + e)}, 0')
            for r in range(4):
                I(f'global_store_dwordx4 {v(52 + r)}, v[28:31], {P(pWS)} sc1')
    elif args.pw0 >= (8 if qg else 16):
        pass
    elif args.pw & 16 and (qg or not args.pwt):
        for e in range(4):
            I(f'v_mov_b32 {v(28 + e)}, 0')
        for r in range(4):
            I(f'global_store_dwordx4 {v(52 + r)}, v[28:31], {P(pWS)} sc1')
            if args.pwt:
                I(f'v_add_u32 v6, 0x8000, {v(52 + r)}')
                I(f'global_store_dwordx4 v6, v[28:31], {P(pWS)} sc1')
        if args.pwt == 2:
            I(f'''
            s_lshl_b32 {s(sT0)}, {s(sW)}, 18
            s_lshl_b32 {s(sT1)}, s2, 7
            s_add_u32 {s(sT0)}, {s(sT0)}, {s(sT1)}
            s_add_u32 {s(sT0)}, {s(sT0)}, {W_H5}
            v_lshrrev_b32 v6, 3, v0
            v_lshlrev_b32 v6, 15, v6
            v_lshl_add_u32 v6, v10, 4, v6
            v_add_u32 v6, {s(sT0)}, v6
            global_store_dwordx4 v6, v[28:31], {P(pWS)} sc1
            v_add_u32 v6, 0x40000, v6
            global_store_dwordx4 v6, v[28:31], {P(pWS)} sc1
            ''')


def tr_slot(i):
    I(f's_sub_u32 {s(sT0)}, {s(sW)}, {i}')
    I(f's_and_b32 {s(sT0)}, {s(sT0)}, 3')
    I(f's_lshl_b32 {s(sT1)}, {s(sT0)}, 13')
    I(f'v_lshl_add_u32 v5, {s(sT0)}, 2, {v(VFL)}')
    I(f'v_add_u32 {v(TA)}, {s(sT1)}, v4')
    for T in range(1, 8):
        I(f'v_xor_b32 {v(TA + T)}, {32 * T}, {v(TA)}')
    if i == 3 and args.bm3:
        assert not args.ffn
        TS(6)
        I('s_barrier')
    else:
        flag_wait(K0, i + 1, 5)
    for T in range(8):
        for tau in range(2):
            I(f'ds_read_b64_tr_b16 {v(BF + (i * 8 + T) * 4 + 2 * tau, 2)}, {v(TA + T)} offset:{tau * 4096}')


def round_pairs(base, n, tmp):
    for i in range(n // 2):
        I(f'v_cvt_pk_bf16_f32 {v(tmp + i)}, {v(base + 2 * i)}, {v(base + 2 * i + 1)}')
    for i in range(n // 2):
        I(f'v_lshlrev_b32 {v(base + 2 * i)}, 16, {v(tmp + i)}')
        I(f'v_and_b32 {v(base + 2 * i + 1)}, {s(sT3)}, {v(tmp + i)}')


hdr = open('cdna_kernels/%s.s.ref' % NAME).read().split('; Override launch geometry')[0]
a.raw(hdr.rstrip())
a.raw(f'; @launch grid=(256,1,1) block=(512,1,1) lds={L_END}')
a.raw(""";
; carries the launch tag (ws[0] + 1, advanced at the end) or a share of a check word derived from it; all spins are bounded.""")
a.raw('.amdgcn_target "amdgcn-amd-amdhsa--gfx950"')
a.raw('.text')
a.raw(f'.globl {NAME}_kernel')
a.raw('.p2align 8')
a.raw(f'.type {NAME}_kernel,@function')
a.label(f'{NAME}_kernel')
a.label('L_start')
I('s_load_dwordx16 s[4:19], s[0:1], 0')
I(f's_getpc_b64 {P(sB)}')
a.label('L_pc')
I('s_cmpk_ge_u32 s2, 0x100')
I('s_cbranch_scc1 L_end')
TS(0)
if args.top:
    I(f'''
    v_cmp_gt_u32 vcc, 64, v0
    s_and_b32 {s(sX)}, s2, 7
    s_lshr_b32 {s(sY)}, s2, 3
    v_lshl_add_u32 v6, {s(sX)}, 6, v0
    v_lshl_add_u32 v6, v6, 5, {s(sY)}
    v_lshlrev_b32 v5, 4, v0
    v_lshlrev_b32 v6, 8, v6
    ''')
    a.B('s_cbranch_vccz L_top')
    I(f'''
    s_waitcnt lgkmcnt(0)
    global_load_dwordx4 v[120:123], v5, {P(pX)}
    ''')
    if args.top == 1:
        I(f'global_load_dword v41, v6, {P(pWQ)}{NT}')
        I(f'global_load_dword v41, v6, {P(pWQ)} offset:128{NT}')
    a.label('L_top')
I('s_load_dwordx8 s[20:27], s[0:1], 64')
I('s_load_dwordx4 s[28:31], s[0:1], 96')
I(f'''
v_lshrrev_b32 v3, 6, v0
v_lshrrev_b32 v4, 5, v0
s_lshr_b32 {s(sY)}, s2, 3
s_and_b32 {s(sT1)}, {s(sY)}, 15
s_lshl_b32 {s(sT1)}, {s(sT1)}, 11
v_lshl_add_u32 v4, v4, 7, {s(sT1)}
v_min_u32 v4, L_end-L_pc, v4
s_mov_b32 exec_lo, 1
s_mov_b32 exec_hi, 1
global_load_dword v15, v4, {P(sB)}
s_mov_b64 exec, -1
v_readfirstlane_b32 {s(sWV)}, v3
v_and_b32 v0, 63, v0
v_and_b32 v1, 15, v0
v_lshrrev_b32 v2, 4, v0
s_and_b32 {s(sX)}, s2, 7
s_lshr_b32 {s(sGA)}, {s(sY)}, 4
s_xor_b32 {s(sGA)}, {s(sGA)}, 1
s_and_b32 {s(sT0)}, {s(sY)}, 15
s_lshl4_add_u32 {s(sS)}, {s(sX)}, {s(sT0)}
s_and_b32 {s(sW)}, {s(sWV)}, 3
v_lshlrev_b32 v3, 4, v0
v_mov_b32 {v(VFL)}, {L_FL}
v_mov_b32 {v(VONE)}, 1
s_mov_b32 {s(sFC)}, 0x1000000
s_cmp_ge_u32 {s(sWV)}, 4
''')
a.B('s_cbranch_scc1 L_S')
I(f'''
s_lshl_b32 {s(sT0)}, {s(sJ)}, 19
s_lshl_b32 {s(sT1)}, {s(sH)}, 8
s_add_u32 {s(sT0)}, {s(sT0)}, {s(sT1)}
s_cmp_eq_u32 {s(sWV)}, 1
''')
a.B('s_cbranch_scc1 L_F1')
I(f's_cmp_eq_u32 {s(sWV)}, 2')
a.B('s_cbranch_scc1 L_F2')
I(f's_cmp_eq_u32 {s(sWV)}, 3')
a.B('s_cbranch_scc1 L_F3')

Wq, XR = 128, 120
I(f'''
v_lshlrev_b32 v5, 17, v2
v_lshl_add_u32 v5, v1, 4, v5
v_add_u32 v5, {s(sT0)}, v5
s_movk_i32 {s(sT2)}, 0x2000
''')
if not args.top:
    I('s_waitcnt lgkmcnt(0)')
    I(f'global_load_dwordx4 {v(XR, 4)}, v3, {P(pX)}')
for k in range(16):
    I(f'global_load_dwordx4 {v(Wq + 4 * k, 4)}, v5, {P(pWQ)}{NT}')
    if k < 15:
        I(f'v_add_u32 v5, {s(sT2)}, v5')
if args.bpos == 0:
    I('s_barrier')
I('s_waitcnt lgkmcnt(0)')
load_epoch()
if args.pw & 1:
    I(f's_lshl_b32 {s(sT0)}, s2, 9')
    I(f's_add_u32 {s(sT0)}, {s(sT0)}, {W_H1}')
    I(f'v_add_u32 v12, {s(sT0)}, v3')
    for e in range(4):
        I(f'v_mov_b32 {v(REC + e)}, 0')
    I('s_mov_b32 exec_hi, 0')
    I(f'global_store_dwordx4 v12, {v(REC, 4)}, {P(pWS)} sc1')
    I('s_mov_b64 exec, -1')
TS(1)
build_sel()
I(f'''
v_add_u32 v10, {L_XN}, v3
s_lshl_b32 {s(sT0)}, {s(sJ)}, 7
s_add_u32 {s(sT0)}, {s(sT0)}, {L_XN}
v_lshl_add_u32 v11, v2, 5, {s(sT0)}
s_lshl_b32 {s(sT0)}, s2, 9
s_add_u32 {s(sT0)}, {s(sT0)}, {W_H1}
v_add_u32 v12, {s(sT0)}, v3
s_mov_b32 {s(sT3)}, 0xffff0000
s_mov_b32 {s(sK0)}, 0x07060501
s_mov_b32 {s(sK1)}, 0x07060502
s_mov_b32 {s(sK2)}, 0x07060503
''')
F, Dd, t0, t1, t2, t3, PK = 96, 104, 112, 113, 114, 115, 116
I(f's_waitcnt vmcnt({(16, 19, 17)[args.top] + (args.pw & 1)})')
if args.bpos == 1:
    I('s_barrier')
TS(2)
for i in range(4):
    I(f'v_lshlrev_b32 {v(F + 2 * i)}, 16, {v(XR + i)}')
    I(f'v_and_b32 {v(F + 2 * i + 1)}, {s(sT3)}, {v(XR + i)}')
I(f'''
v_add_f32 {v(t0)}, {v(F)}, {v(F + 1)}
v_add_f32 {v(t1)}, {v(F + 2)}, {v(F + 3)}
v_add_f32 {v(t2)}, {v(F + 4)}, {v(F + 5)}
v_add_f32 {v(t3)}, {v(F + 6)}, {v(F + 7)}
v_add_f32 {v(t0)}, {v(t0)}, {v(t1)}
v_add_f32 {v(t2)}, {v(t2)}, {v(t3)}
v_add_f32 {v(t0)}, {v(t0)}, {v(t2)}
''')
row_allreduce('v_add_f32', [t0])
I(f'v_add_f32 {v(t0)}, {v(t0)}, {v(t0)} row_bcast:15 row_mask:0xa')
I(f'v_add_f32 {v(t0)}, {v(t0)}, {v(t0)} row_bcast:31 row_mask:0xc')
I(f'v_mov_b32 {v(t1)}, 0x3b000000')
I(f'v_readlane_b32 {s(sT0)}, {v(t0)}, 63')
I(f'v_mul_f32 {v(t1)}, {s(sT0)}, {v(t1)}')
for i in range(8):
    I(f'v_sub_f32 {v(Dd + i)}, {v(F + i)}, {v(t1)}')
if args.bpos == 2:
    I('s_barrier')
I(f'v_mul_f32 {v(t0)}, {v(Dd)}, {v(Dd)}')
I(f'v_mul_f32 {v(t2)}, {v(Dd + 1)}, {v(Dd + 1)}')
for i in range(2, 8, 2):
    I(f'v_fmac_f32 {v(t0)}, {v(Dd + i)}, {v(Dd + i)}')
    I(f'v_fmac_f32 {v(t2)}, {v(Dd + i + 1)}, {v(Dd + i + 1)}')
I(f'v_add_f32 {v(t0)}, {v(t0)}, {v(t2)}')
I(f'v_cvt_pk_bf16_f32 {v(t1)}, {v(t1)}, {v(t1)}')
I(f'v_and_b32 {v(t1)}, {s(sT3)}, {v(t1)}')
row_allreduce('v_add_f32', [t0], steps=(8,))
for i in range(0, 4):
    I(f'v_sub_f32 {v(Dd + i)}, {v(F + i)}, {v(t1)}')
row_allreduce('v_add_f32', [t0], steps=(4,))
for i in range(4, 8):
    I(f'v_sub_f32 {v(Dd + i)}, {v(F + i)}, {v(t1)}')
row_allreduce('v_add_f32', [t0], steps=(2,))
for i in range(0, 2):
    I(f'v_cvt_pk_bf16_f32 {v(PK + i)}, {v(Dd + 2 * i)}, {v(Dd + 2 * i + 1)}')
row_allreduce('v_add_f32', [t0], steps=(1,))
for i in range(2, 4):
    I(f'v_cvt_pk_bf16_f32 {v(PK + i)}, {v(Dd + 2 * i)}, {v(Dd + 2 * i + 1)}')
I(f'v_add_f32 {v(t0)}, {v(t0)}, {v(t0)} row_bcast:15 row_mask:0xa')
for i in range(0, 2):
    I(f'v_lshlrev_b32 {v(Dd + 2 * i)}, 16, {v(PK + i)}')
    I(f'v_and_b32 {v(Dd + 2 * i + 1)}, {s(sT3)}, {v(PK + i)}')
I(f'v_add_f32 {v(t0)}, {v(t0)}, {v(t0)} row_bcast:31 row_mask:0xc')
for i in range(2, 4):
    I(f'v_lshlrev_b32 {v(Dd + 2 * i)}, 16, {v(PK + i)}')
    I(f'v_and_b32 {v(Dd + 2 * i + 1)}, {s(sT3)}, {v(PK + i)}')
I(f'v_mov_b32 {v(t1)}, 0x3b000000')
I(f'v_readlane_b32 {s(sT0)}, {v(t0)}, 63')
I(f'''
v_mul_f32 {v(t1)}, {s(sT0)}, {v(t1)}
v_cvt_pk_bf16_f32 {v(t1)}, {v(t1)}, {v(t1)}
v_and_b32 {v(t1)}, {s(sT3)}, {v(t1)}
v_add_f32 {v(t1)}, 0x3727c5ac, {v(t1)}
v_cvt_pk_bf16_f32 {v(t1)}, {v(t1)}, {v(t1)}
v_and_b32 {v(t1)}, {s(sT3)}, {v(t1)}
v_sqrt_f32 {v(t1)}, {v(t1)}
v_cvt_pk_bf16_f32 {v(t1)}, {v(t1)}, {v(t1)}
v_and_b32 {v(t1)}, {s(sT3)}, {v(t1)}
v_rcp_f32 {v(t1)}, {v(t1)}
''')
for i in range(8):
    I(f'v_mul_f32 {v(Dd + i)}, {v(Dd + i)}, {v(t1)}')
for i in range(4):
    I(f'v_cvt_pk_bf16_f32 {v(PK + i)}, {v(Dd + 2 * i)}, {v(Dd + 2 * i + 1)}')
I(f'ds_write_b128 v10, {v(PK, 4)}')
I(f'ds_read_b128 {v(XP, 4)}, v11')
I(f'ds_read_b128 {v(XP + 4, 4)}, v11 offset:16')
if args.bpos == 3:
    I('s_barrier')
epoch_ready()
TS(3)
diag_stage(16, lambda k: Wq + 4 * k, args.pw & 1)
for i in range(3):
    I(f'v_perm_b32 {v(REC + i)}, {v(ACC0 + i)}, {v(ACC0 + 3)}, {s(sK0 + i)}')
I('s_mov_b32 exec_hi, 0')
I(f'global_store_dwordx4 v12, {v(REC, 4)}, {P(pWS)} sc1')
I(f'ds_write_b128 v10, {v(ACC0, 4)} offset:{L_CX - L_XN}')
TS(4)
flag_add(F_F0)
I('s_branch L_QG')

a.label('L_F1')
WK, G1, QF, DK = 128, 192, 96, 112
I(f'''
v_lshlrev_b32 v6, 1, v2
v_xor_b32 v6, v6, v1
v_lshlrev_b32 v5, 16, v2
v_lshl_add_u32 v5, v6, 4, v5
v_add_u32 v5, {s(sT0)}, v5
v_xor_b32 v6, 0x80, v5
v_add_u32 v6, 0x40000, v6
s_mov_b32 {s(sT2)}, 0x8000
s_mov_b32 {s(sT3)}, {(-3 * 8192) & 0xffffffff}
s_mov_b32 m0, {L_QA}
s_waitcnt lgkmcnt(0)
''')
load_epoch()
if args.pw & 2:
    I(f's_lshl_b32 {s(sT1)}, s2, 7')
    I(f's_add_u32 {s(sT1)}, {s(sT1)}, {W_H2}')
    I(f'v_add_u32 v12, {s(sT1)}, v3')
    for e in range(4):
        I(f'v_mov_b32 {v(20 + e)}, 0')
I('s_barrier')
if args.pw & 2:
    I('s_mov_b64 exec, 0xff')
    I(f'global_store_dwordx4 v12, v[20:23], {P(pWS)} sc1')
    I('s_mov_b64 exec, -1')
for k in range(16):
    I(f'global_load_lds_dwordx4 {"v6" if k & 1 else "v5"}, {P(pWUK)}{NT}')
    if k < 15:
        I('s_add_u32 m0, m0, 0x400')
    if k < 14:
        I(f'v_add_u32 {"v6" if k & 1 else "v5"}, {s(sT3 if k & 2 else sT2)}, {"v6" if k & 1 else "v5"}')
TS(1)
I(f'''
v_and_b32 v5, 7, v1
v_lshlrev_b32 v5, 1, v5
v_xor_b32 v5, v5, v2
v_lshlrev_b32 v5, 4, v5
v_lshl_add_u32 v5, v1, 8, v5
v_add_u32 v24, {L_QA}, v5
v_xor_b32 v25, 64, v24
v_xor_b32 v26, 0x80, v24
v_xor_b32 v27, 0xc0, v24
s_lshl_b32 {s(sT0)}, {s(sH)}, 12
s_add_u32 {s(sT0)}, {s(sT0)}, {W_H1}
v_add_u32 v8, {s(sT0)}, v3
s_lshl_b32 {s(sT1)}, {s(sJ)}, 9
v_add_u32 v6, {s(sT1)}, v3
s_movk_i32 {s(sT1)}, 0xfff
v_and_b32 v16, {s(sT1)}, v6
v_add_u32 v6, 0x400, v6
v_and_b32 v17, {s(sT1)}, v6
v_add_u32 v6, 0x400, v6
v_and_b32 v18, {s(sT1)}, v6
v_add_u32 v6, 0x400, v6
v_and_b32 v19, {s(sT1)}, v6
v_add_u32 v32, {s(sT0)}, v16
v_add_u32 v33, {s(sT0)}, v17
v_add_u32 v34, {s(sT0)}, v18
v_add_u32 v35, {s(sT0)}, v19
v_add_u32 v9, {L_CX}, v3
v_and_b32 v10, 1, v2
v_lshlrev_b32 v10, 1, v10
v_lshrrev_b32 v11, 1, v2
v_add_u32 v10, v10, v11
v_lshl_add_u32 v10, v1, 2, v10
v_lshlrev_b32 v10, 2, v10
v_add_u32 v10, {L_CL}, v10
v_lshlrev_b32 v11, 4, v2
v_add_u32 v11, {L_CL}, v11
s_lshl_b32 {s(sT0)}, s2, 7
s_add_u32 {s(sT0)}, {s(sT0)}, {W_H2}
v_add_u32 v12, {s(sT0)}, v3
v_add_u32 v37, 8, v1
s_mov_b32 {s(sM2)}, {EMB}
s_mov_b32 {s(sM2 + 1)}, {~EMB & 0xffffffff}
s_mov_b32 {s(sK0)}, 0x0c04000c
s_mov_b32 {s(sK1)}, 0x0402010c
s_mov_b32 {s(sK2)}, 0x07060302
s_mov_b32 {s(sM3 + 1)}, 0x10000
''')
epoch_ready()
I(f'v_mov_b32 v22, {s(sEP)}')
I(f's_mul_i32 {s(sM3)}, {s(sEP)}, {(2 * HASH) & 0xffffffff}')
I(f's_add_u32 {s(sM3)}, {s(sM3)}, {HASH}')
I('s_setprio 1')
NP = args.np
for p_ in range(NP):
    I(f'v_mov_b32 {v(G1 + 16 * p_ + 3)}, v22')
    for e in range(3):
        I(f'v_mov_b32 {v(G1 + 16 * p_ + e)}, 0')


def h1_loads(p_):
    for k in range(4):
        if k == 0:
            I('s_mov_b32 exec_lo, 0')
        I(f'global_load_dwordx4 {v(G1 + 16 * p_ + 4 * k, 4)}, {v(32 + k)}, {P(pWS)} sc1')
        if k == 0:
            I('s_mov_b32 exec_lo, -1')


if args.hint1:
    assert NP == 1
    I(f's_lshl_b32 {s(sT0)}, {s(sH)}, 12')
    I(f's_add_u32 {s(sT0)}, {s(sT0)}, {W_H1 + 508}')
    I(f's_add_u32 {s(sB)}, {s(pWS)}, {s(sT0)}')
    I(f's_addc_u32 {s(sB + 1)}, {s(pWS + 1)}, 0')
    HO = [4, 5, 6, 7, 8, 9, 12]
    for k in range(7):
        I(f's_add_u32 {s(HO[k])}, {s(sJ)}, {k + 1}')
        I(f's_and_b32 {s(HO[k])}, {s(HO[k])}, 7')
        I(f's_lshl_b32 {s(HO[k])}, {s(HO[k])}, 9')
    scalar_poll([s(r) for r in HO])
elif args.hr:
    flag_wait(C_ER, 4)
else:
    I(f's_waitcnt vmcnt({args.hv})')
TS(2)
h1_loads(0)
I('s_waitcnt vmcnt(4)')
for tau in range(4):
    for t in range(4):
        I(f'ds_read_b128 {v(WK + 16 * tau + 4 * t, 4)}, {v(24 + t)} offset:{4096 * tau}')
for p_ in range(1, NP):
    if p_ > 1 and args.sl:
        I(f's_sleep {args.sl}')
    h1_loads(p_)
Q4 = 40
for e in range(4):
    I(f'v_mov_b32 {v(Q4 + 4 + e)}, 0')
flag_wait(F_F0, 1)
I('s_mov_b32 exec_hi, 0')
I(f'ds_read_b128 {v(Q4 + 4, 4)}, v9')
I('s_mov_b64 exec, -1')
I(f's_mov_b32 {s(sCNT)}, {args.spin}')
I('s_waitcnt lgkmcnt(0)')
a.label('L_F1_poll')
for p_ in range(NP):
    G = G1 + 16 * p_
    I(f's_sub_u32 {s(sCNT)}, {s(sCNT)}, 1')
    I(f's_waitcnt vmcnt({4 * (NP - 1)})')
    I(f'v_xor_b32 v16, {v(G + 3)}, v22')
    for k in range(1, 4):
        I(f'v_bitop3_b32 v16, {v(G + 4 * k + 3)}, v22, v16 bitop3:0xbe')
    I('v_cmp_ne_u32 vcc, 0, v16')
    a.B(f's_cbranch_scc1 L_F1_go{p_}')
    a.B(f's_cbranch_vccz L_F1_go{p_}')
    h1_loads(p_)
I('s_branch L_F1_poll')
for p_ in reversed(range(NP)):
    G = G1 + 16 * p_
    a.label(f'L_F1_go{p_}')
    for k in range(4):
        I(f'v_perm_b32 {v(G + 4 * k + 3)}, {v(G + 4 * k + 1)}, {v(G + 4 * k)}, {s(sK0)}')
    for k in range(4):
        I(f'v_perm_b32 {v(G + 4 * k + 3)}, {v(G + 4 * k + 2)}, {v(G + 4 * k + 3)}, {s(sK1)}')
    for e in (0, 2):
        I(f'v_pk_add_f32 {v(Q4 + 4 + e, 2)}, {v(Q4 + 4 + e, 2)}, {v(G + e, 2)}')
        I(f'v_pk_add_f32 {v(G + 4 + e, 2)}, {v(G + 4 + e, 2)}, {v(G + 8 + e, 2)}')
    for e in (0, 2):
        I(f'v_pk_add_f32 {v(Q4 + 4 + e, 2)}, {v(Q4 + 4 + e, 2)}, {v(G + 12 + e, 2)}')
    for e in (0, 2):
        I(f'v_pk_add_f32 {v(Q4 + e, 2)}, {v(Q4 + 4 + e, 2)}, {v(G + 4 + e, 2)}')
    if p_:
        I('s_branch L_F1_go')
a.label('L_F1_go')
TS(3)
TSN()
G1 = Q4
I(f'v_permlane32_swap_b32 {v(G1)}, {v(G1 + 2)}')
I(f'v_permlane32_swap_b32 {v(G1 + 1)}, {v(G1 + 3)}')
I(f'v_add_f32 {v(G1)}, {v(G1)}, {v(G1 + 2)}')
I(f'v_add_f32 {v(G1 + 1)}, {v(G1 + 1)}, {v(G1 + 3)}')
I(f'v_cvt_pk_bf16_f32 v16, {v(G1)}, {v(G1 + 1)}')
I('ds_write_b32 v10, v16')
for t in range(4):
    I(f'ds_read_b128 {v(QF + 4 * t, 4)}, v11 offset:{64 * t}')
for half in ((0, 1), (2, 3)):
    for t in range(4):
        if half[0] == 0:
            I(f's_waitcnt lgkmcnt({3 - t})')
        for tau in half:
            I(f'{MFMA} {v(DK + 4 * tau, 4)}, {v(QF + 4 * t, 4)}, {v(WK + 16 * tau + 4 * t, 4)}, {"0" if t == 0 else v(DK + 4 * tau, 4)}')


def q_pack(k):
    lo, hi = DK + 8 * k, DK + 8 * k + 4
    I(f'v_cvt_pk_bf16_f32 {v(24 + k)}, {v(lo)}, {v(hi)}')
    I(f'v_add_u32 {v(lo)}, {s(sM3 + 1)}, {v(lo)}')
    I(f'v_add_u32 {v(hi)}, {s(sM3 + 1)}, {v(hi)}')
    I(f'v_perm_b32 {v(20 + k)}, {v(hi)}, {v(lo)}, {s(sK2)}')
    I(f'v_and_b32 {v(20 + k)}, {s(sM2 + 1)}, {v(20 + k)}')


q_pack(0)
I('v_mov_b32 v22, v24 row_ror:8')
q_pack(1)
I('v_add_u32 v16, v20, v21')
I('v_mov_b32 v23, v25 row_ror:8')
for st in OCT:
    I(f'v_add_u32 v16, v16, v16 {st}')
I(f'v_sub_u32 v16, {s(sM3)}, v16')
I('v_lshrrev_b32 v17, v1, v16')
I('v_lshrrev_b32 v16, v37, v16')
I(f'v_and_or_b32 v20, v17, {s(sM2)}, v20')
I(f'v_and_or_b32 v21, v16, {s(sM2)}, v21')
I('s_mov_b64 exec, 0xff')
I(f'global_store_dwordx4 v12, v[20:23], {P(pWS)} sc1')
TS(4)
I('s_setprio 0')
flag_add(F_H2)
I('s_waitcnt vmcnt(0)')
flag_add(F_H2)
a.label('L_PV1')
tr_addr()
pv_setup()
pv_prewrite(False)


def scalar_prefetch():
    I(f'''
    s_lshr_b32 {s(sHT)}, {s(sY)}, 3
    s_lshl2_add_u32 {s(sHT)}, {s(sX)}, {s(sHT)}
    s_bfe_u32 {s(sDI)}, {s(sY)}, 0x10002
    s_lshl1_add_u32 {s(sHT)}, {s(sHT)}, {s(sDI)}
    s_and_b32 {s(sCI)}, {s(sY)}, 3
    s_lshr_b32 {s(sT1)}, {s(sWV)}, 1
    s_lshl1_add_u32 {s(sCI)}, {s(sCI)}, {s(sT1)}
    ''')
    for bit, ptr, sh_ci, sh_ht, step in ((1, pWUV, 19, 7, 8192), (2, pWO, 13, 16, 128)):
        if not args.spf & bit:
            continue
        lab = a.newlabel('L_spf')
        I(f's_lshl_b32 {s(sT0)}, {s(sCI)}, {sh_ci}')
        I(f's_lshl_b32 {s(sT1)}, {s(sHT)}, {sh_ht}')
        I(f's_add_u32 {s(sT0)}, {s(sT0)}, {s(sT1)}')
        I(f's_add_u32 {s(sB)}, {s(ptr)}, {s(sT0)}')
        I(f's_addc_u32 {s(sB + 1)}, {s(ptr + 1)}, 0')
        I(f's_mov_b32 {s(sCNT)}, 8')
        a.label(lab)
        for k in range(8):
            I(f's_load_dword{"x2 s[62:63]" if args.spx else " s62"}, {P(sB)}, {k * step + args.spx}')
        I(f's_add_u32 {s(sB)}, {s(sB)}, {8 * step}')
        I(f's_addc_u32 {s(sB + 1)}, {s(sB + 1)}, 0')
        I(f's_sub_u32 {s(sCNT)}, {s(sCNT)}, 1')
        I(f's_cmp_lg_u32 {s(sCNT)}, 0')
        I(f's_cbranch_scc1 {lab}')
    TS(12)


for i in range(args.pre):
    if args.spf and i == args.spw:
        scalar_prefetch()
    tr_slot(i)
I('s_branch L_PVs')

a.label('L_F3')
HFG, B1R = 24, 28
W1T = lambda k: 56 + 4 * k if k < 6 else 8 if k == 6 else 4
I('s_waitcnt lgkmcnt(0)')
load_epoch()
if args.ee:
    I('s_waitcnt lgkmcnt(0)')
I('s_barrier')
epoch_ready()


def ffn_w1(dst):
    I(f"""
    s_and_b32 {s(sT3)}, s2, 15
    s_mul_i32 {s(sT0)}, {s(sT3)}, {32 * 3584}
    s_lshr_b32 {s(sT1)}, s2, 4
    s_lshl_b32 {s(sT1)}, {s(sT1)}, 8
    s_add_u32 {s(sT0)}, {s(sT0)}, {s(sT1)}
    v_mul_u32_u24 v12, {8 * 3584}, v2
    v_lshl_add_u32 v12, v1, 4, v12
    v_add_u32 v12, {s(sT0)}, v12
    s_movk_i32 {s(sT2)}, {2 * 3584}
    """)
    for k in range(8):
        I(f'global_load_dwordx4 {v(dst(k), 4)}, v12, {P(pW1)} offset:{3584 * (k & 1)}{NT}')
        if k & 1 and k < 7:
            I(f'v_add_u32 v12, {s(sT2)}, v12')


def ffn_rest(dst, younger):
    global AT, SEL
    AT, SEL = 128, 136
    I(f"""
    s_and_b32 {s(sT3)}, s2, 15
    s_lshr_b32 {s(sT1)}, s2, 4
    s_lshl_b32 {s(sT1)}, {s(sT1)}, 8
    s_lshl_b32 {s(sT3)}, {s(sT3)}, 6
    s_add_u32 {s(sT0)}, {s(sT3)}, {L_XN}
    v_lshl_add_u32 v144, v2, 4, {s(sT0)}
    ds_read_b128 {v(XP, 4)}, v144
    s_lshl_b32 {s(sT0)}, {s(sT1)}, 6
    s_add_u32 {s(sT0)}, {s(sT0)}, {s(sT3)}
    s_lshl_b32 {s(sT0)}, {s(sT0)}, 1
    s_add_u32 {s(sT0)}, {s(sT0)}, {W_HF}
    v_lshrrev_b32 v145, 2, v0
    v_lshlrev_b32 v146, 11, v145
    v_and_b32 v147, 3, v0
    v_lshl_add_u32 v146, v147, 4, v146
    v_add_u32 v146, {s(sT0)}, v146
    v_cmp_gt_u32 {P(sM1)}, v0, 31
    s_and_b32 {s(sT0)}, s2, 3
    s_lshl_b32 {s(sT0)}, {s(sT0)}, 6
    s_add_u32 {s(sT0)}, {s(sT0)}, {s(sT1)}
    s_bfe_u32 {s(sT1)}, s2, 0x10002
    s_lshl3_add_u32 {s(sT0)}, {s(sT1)}, {s(sT0)}
    s_bfe_u32 {s(sT1)}, s2, 0x10003
    s_lshl2_add_u32 {s(sT0)}, {s(sT1)}, {s(sT0)}
    v_lshl_add_u32 v148, v147, 4, {s(sT0)}
    s_lshl_b32 {s(sT0)}, s2, 11
    s_add_u32 {s(sT0)}, {s(sT0)}, {W_HF}
    v_lshlrev_b32 v147, 4, v147
    v_lshl_add_u32 v147, v145, 7, v147
    v_add_u32 v147, {s(sT0)}, v147
    v_lshlrev_b32 v149, 3, v0
    v_add_u32 v149, {L_FF}, v149
    s_mov_b32 {s(sT3)}, 0xffff0000
    """)
    build_sel(150)
    I('s_waitcnt lgkmcnt(0)')
    diag_stage(8, dst, younger)
    I(f'v_cndmask_b32 {v(REC)}, {v(ACC0)}, {v(ACC0 + 2)}, {P(sM1)}')
    I(f'v_cndmask_b32 {v(REC + 1)}, {v(ACC0 + 1)}, {v(ACC0 + 3)}, {P(sM1)}')
    I(f'global_store_dwordx4 v146, {v(REC, 4)}, {P(pWS)} sc1')
    I(f'global_load_dword {v(B1R)}, v148, {P(pB1)}')
    TS(2)
    I(f's_mov_b32 {s(sCNT)}, {args.spin}')
    if args.ffn:
        I('s_waitcnt vmcnt(2)')
        flag_add(C_ACK)
        I('s_waitcnt vmcnt(0)')
    else:
        flag_wait(*((C_ISS, 4) if args.fr else (F_H2, 2)))
    a.label('L_TF')
    I(f'global_load_dwordx4 {v(HFG, 4)}, v147, {P(pWS)} sc1')
    I(f's_sub_u32 {s(sCNT)}, {s(sCNT)}, 1')
    I('s_waitcnt vmcnt(0)')
    I(f'v_cmp_ne_u32 vcc, {v(HFG + 2)}, {v(REC + 2)}')
    a.B('s_cbranch_scc1 L_TF_go')
    a.B('s_cbranch_vccnz L_TF')
    a.label('L_TF_go')
    TSN()
    row_allreduce('v_add_f32', [HFG, HFG + 1], steps=(4, 8))
    I(f'''
    v_permlane32_swap_b32 {v(HFG)}, {v(HFG + 1)}
    v_add_f32 {v(HFG)}, {v(HFG)}, {v(HFG + 1)}
    v_mov_b32 {v(HFG + 1)}, {v(HFG)}
    v_permlane16_swap_b32 {v(HFG)}, {v(HFG + 1)}
    v_lshlrev_b32 v16, 16, {v(B1R)}
    v_add_f32 {v(HFG)}, {v(HFG)}, {v(HFG + 1)}
    v_and_b32 v17, {s(sT3)}, {v(B1R)}
    v_cvt_pk_bf16_f32 {v(HFG)}, {v(HFG)}, {v(HFG)}
    v_cndmask_b32 v16, v16, v17, {P(sM1)}
    v_and_b32 {v(HFG)}, {s(sT3)}, {v(HFG)}
    v_add_f32 {v(HFG)}, {v(HFG)}, v16
    v_cvt_pk_bf16_f32 {v(HFG)}, {v(HFG)}, {v(HFG)}
    v_and_b32 {v(HFG)}, {s(sT3)}, {v(HFG)}
    v_max_f32 {v(HFG)}, 0, {v(HFG)}
    v_mul_f32 {v(HFG)}, {v(HFG)}, {v(HFG)}
    v_cvt_pk_bf16_f32 {v(HFG)}, {v(HFG)}, {v(HFG)}
    v_mov_b32 {v(HFG + 1)}, {v(HFG)}
    v_permlane32_swap_b32 {v(HFG)}, {v(HFG + 1)}
    ''')
    for g_ in range(4):
        for i in range(2):
            I(f'v_mov_b32 {v(HFG + 2 + i)}, {v(HFG + i)} row_newbcast:{g_} row_mask:{1 << g_}')
    I(f'ds_write_b64 v149, {v(HFG + 2, 2)}')
    TS(4)


if not args.ffn:
    I('s_cmp_ge_u32 s2, 224')
    I('s_cbranch_scc1 L_PV1')
    if args.pw & 8:
        I(f'''
        s_lshr_b32 {s(sT0)}, s2, 4
        s_lshl_b32 {s(sT0)}, {s(sT0)}, 8
        s_and_b32 {s(sT1)}, s2, 15
        s_add_u32 {s(sT0)}, {s(sT0)}, {s(sT1)}
        s_lshl_b32 {s(sT0)}, {s(sT0)}, 7
        s_add_u32 {s(sT0)}, {s(sT0)}, {W_HF}
        v_lshrrev_b32 v16, 3, v0
        v_lshlrev_b32 v16, 11, v16
        v_and_b32 v17, 7, v0
        v_lshl_add_u32 v16, v17, 4, v16
        v_add_u32 v16, {s(sT0)}, v16
        v_add_u32 v17, 0x4000, v16
        v_mov_b32 v20, 0
        v_mov_b32 v21, 0
        v_mov_b32 v22, 0
        v_mov_b32 v23, 0
        global_store_dwordx4 v16, v[20:23], {P(pWS)} sc1
        global_store_dwordx4 v17, v[20:23], {P(pWS)} sc1
        ''')
    flag_wait(F_F0, 1)
    ffn_w1(W1T)
    ffn_rest(W1T, 0)
I('s_branch L_PV1')

a.label('L_F2')
I(f'''
v_mov_b32 v16, 0
v_mov_b32 v17, 0
v_mov_b32 v18, 0
v_mov_b32 v19, 0
ds_write_b128 {v(VFL)}, v[16:19]
ds_write_b128 {v(VFL)}, v[16:19] offset:16
ds_write_b128 {v(VFL)}, v[16:19] offset:32
ds_write_b128 {v(VFL)}, v[16:19] offset:48
v_lshlrev_b32 v20, 2, v1
v_add_u32 v20, {L_MA}, v20
v_mov_b32 v21, 0xff800000
ds_write_b32 v20, v21
''')
I('v_and_b32 v5, 3, v0')
I('v_lshlrev_b32 v5, 21, v5')
if args.probe:
    PR = [50, 51, 52, 53, 54, 55, 56, 57]
    for r_ in PR:
        I(f's_mov_b32 {s(r_)}, 0x7fc1a5a5')
    I(f's_lshl_b32 {s(sT0)}, {s(sS)}, 17')
    I(f's_lshl_b32 {s(sT1)}, {s(sGA)}, 7')
    I(f's_add_u32 {s(sT0)}, {s(sT0)}, {s(sT1)}')
I('s_waitcnt lgkmcnt(0)')
if args.probe:
    I(f's_add_u32 {s(sB)}, {s(pCKV)}, {s(sT0)}')
    I(f's_addc_u32 {s(sB + 1)}, {s(pCKV + 1)}, 0')
    for k, pg in enumerate((0, 2, 3, 1, 6, 4, 5, 7)):
        I(f's_load_dword {s(PR[pg])}, {P(sB)}, {pg * 4096}')
    I('s_waitcnt lgkmcnt(4)')
    I(f's_mov_b32 {s(TSB + 28)}, 0')
    for pg in (0, 2, 3, 1, 6, 4, 5, 7):
        I(f's_cmp_lg_u32 {s(PR[pg])}, 0x7fc1a5a5')
        I(f'{"s_subb_u32" if pg & 2 else "s_addc_u32"} {s(TSB + 28)}, {s(TSB + 28)}, 0')
    TS(13)
    I('s_waitcnt lgkmcnt(0)')
load_epoch()
if args.pw0:
    I(f'''
    s_lshl_b32 {s(sT0)}, {s(sGA)}, 13
    s_add_u32 {s(sT0)}, {s(sT0)}, {s(sS)}
    s_lshl_b32 {s(sT0)}, {s(sT0)}, 8
    s_add_u32 {s(sT0)}, {s(sT0)}, {W_H3}
    v_lshlrev_b32 v6, 19, v2
    v_lshl_add_u32 v6, v1, 4, v6
    v_add_u32 v6, {s(sT0)}, v6
    ''')
    for k in range(args.pw0):
        I(f'v_add_u32 v7, {(k & 3) * 0x20000 + (0, 2, 1, 3)[k >> 2] * 0x8000}, v6')
        I(f'global_store_dwordx4 v7, v[16:19], {P(pWS)} sc1')
if args.ee:
    I('s_waitcnt lgkmcnt(0)')
I('s_barrier')
if not args.nopt:
    I('s_mov_b64 exec, 7')
    I(f'global_load_dword v22, v5, {P(pWS)} offset:256')
    I('s_mov_b64 exec, 1')
    I(f'global_load_dword v23, v16, {P(pOUT)}')
    I('s_mov_b64 exec, -1')
epoch_ready()


def touch(base_code, offsets):
    I(base_code)
    I(f's_add_u32 {s(sB)}, {s(pWS)}, {s(sT0)}')
    I(f's_addc_u32 {s(sB + 1)}, {s(pWS + 1)}, 0')
    for o in offsets:
        I(f's_load_dword s61, {P(sB)}, {o}')


if args.pt & 8:
    touch(f's_lshr_b32 {s(sT0)}, s2, 4\ns_lshl_b32 {s(sT0)}, {s(sT0)}, 8\ns_and_b32 {s(sT1)}, s2, 15\ns_add_u32 {s(sT0)}, {s(sT0)}, {s(sT1)}\ns_lshl_b32 {s(sT0)}, {s(sT0)}, 7',
          [W_HF + p_ * 2048 for p_ in range(16)])
if args.pt & 4:
    touch(f's_lshl_b32 {s(sT0)}, s2, 12\ns_add_u32 {s(sT0)}, {s(sT0)}, {W_H5}', [z_ * 128 for z_ in range(32)])
if args.pt & 16:
    touch(f's_lshl_b32 {s(sT0)}, s2, 14\ns_add_u32 {s(sT0)}, {s(sT0)}, {W_H3}', [z_ * 128 for z_ in range(128)])
if args.pwq >= 2:
    I(f'''
    s_lshl_b32 {s(sT0)}, {s(sGA)}, 13
    s_add_u32 {s(sT0)}, {s(sT0)}, {s(sS)}
    s_lshl_b32 {s(sT0)}, {s(sT0)}, 8
    s_add_u32 {s(sT0)}, {s(sT0)}, {W_H3}
    v_lshlrev_b32 v6, 15, v2
    v_lshl_add_u32 v6, v1, 4, v6
    v_add_u32 v6, {s(sT0)}, v6
    s_mov_b32 {s(sT1)}, 0x20000
    ''')
    for k in range(16):
        I(f'global_store_dwordx4 v6, v[16:19], {P(pWS)} sc1')
        I(f'v_add_u32 v6, {s(sT1)}, v6')
        if args.pwq > 2:
            I(f's_waitcnt vmcnt({args.pwq - 2})')
if args.warm & 2:
    flag_wait(F_F0, 1)
    I('s_mov_b64 exec, 0')
    I('s_branch L_PVC')
    a.label('L_PVC_back')
    I('s_mov_b64 exec, -1')


a.label('L_QG')
G2, LA = 64, 56
I(f'''
s_lshr_b32 {s(sT1)}, {s(sWV)}, 1
s_lshl1_add_u32 {s(sT0)}, {s(sGA)}, {s(sT1)}
s_lshl_b32 {s(sT0)}, {s(sT0)}, 13
s_add_u32 {s(sT0)}, {s(sT0)}, {W_H2}
v_add_u32 v8, {s(sT0)}, v3
v_add_u32 v9, 0x1000, v8
v_and_b32 v10, 7, v0
v_add_u32 v11, 8, v10
v_lshlrev_b32 v6, 4, v10
v_lshl_add_u32 v6, v0, 8, v6
s_lshl_b32 {s(sT1)}, {s(sT1)}, 7
s_add_u32 {s(sT1)}, {s(sT1)}, {L_QA}
v_add_u32 {v(LA)}, {s(sT1)}, v6
s_mul_i32 {s(sM3)}, {s(sEP)}, {(HASH * 16) & 0xffffffff}
s_add_u32 {s(sM3)}, {s(sM3)}, {(HASH * 8) & 0xffffffff}
''')
for hd in range(1, 8):
    I(f'v_xor_b32 {v(LA + hd)}, {16 * hd}, {v(LA)}')
tr_addr()
pv_setup()
if args.pwq == 1:
    flag_wait(F_H2, 1)
pv_prewrite(True)
I('s_setprio 1')
if args.qa:
    flag_wait(C_ISS, 4)
flag_wait(F_H2, 1 + args.h2)
assert not args.hint2
if args.hint2:
    I(f's_cmp_eq_u32 {s(sWV)}, 0')
    I('s_cbranch_scc1 L_QG_w0')
    I(f's_xor_b32 {s(sT0)}, {s(sY)}, 16')
    I(f's_lshl_b32 {s(sT0)}, {s(sT0)}, 11')
    I(f's_add_u32 {s(sT0)}, {s(sT0)}, {W_H2}')
    I(f's_add_u32 {s(sB)}, {s(pWS)}, {s(sT0)}')
    I(f's_addc_u32 {s(sB + 1)}, {s(pWS + 1)}, 0')
    scalar_poll([k * 256 + 252 for k in range(8)])
    flag_add(F_HINT)
    I('s_branch L_QG_hd')
    a.label('L_QG_w0')
    flag_wait(F_HINT, 1)
    a.label('L_QG_hd')
TS(10)


def qa_loads():
    for k in range(8):
        I(f'global_load_dwordx4 {v(G2 + 4 * k, 4)}, {v(8 + (k >> 2))}, {P(pWS)} offset:{(k & 3) * 1024} sc1')


qa_loads()
for i in range(args.pre):
    tr_slot(i)
I(f's_mov_b32 {s(sCNT)}, {args.spin}')
a.label('L_QG_chk')
for k in range(8):
    d0, d1 = v(G2 + 4 * k), v(G2 + 4 * k + 1)
    I(f's_waitcnt vmcnt({7 - k})')
    I(f'v_and_b32 v6, {s(sK1)}, {d0}')
    I(f'v_and_b32 v7, {s(sK1)}, {d1}')
    I(f'v_xor_b32 {d0}, v6, {d0}')
    I(f'v_xor_b32 {d1}, v7, {d1}')
    I(f'ds_write_b128 {v(LA + k)}, {v(G2 + 4 * k, 4)}')
    I(f'v_lshl_add_u32 v24, v6, v10, {"0" if k == 0 else "v24"}')
    I('v_lshl_add_u32 v24, v7, v11, v24')
    I(f'v_add3_u32 v24, {d0}, {d1}, v24')
for st in OCT:
    I(f'v_add_u32 v24, v24, v24 {st}')
I(f's_sub_u32 {s(sCNT)}, {s(sCNT)}, 1')
I(f'v_cmp_ne_u32 vcc, {s(sM3)}, v24')
a.B('s_cbranch_scc1 L_QG_go')
a.B('s_cbranch_vccz L_QG_go')
I('s_waitcnt lgkmcnt(0)')
I('s_mov_b64 exec, vcc')
qa_loads()
I('s_branch L_QG_chk')
a.label('L_QG_go')
flag_add(C_QA)
I('s_setprio 0')
TS(11)
TSN()
a.label('L_PVs')
for i in range(args.pre, 4):
    if i == args.pwt - 1:
        pv_prewrite(False, True)
    tr_slot(i)

a.label('L_PV')
if args.ffn:
    I(f's_cmp_eq_u32 {s(sWV)}, 3')
    I(f's_cselect_b32 {s(sR)}, s2, 224')
    I(f's_cmp_ge_u32 {s(sR)}, 224')
    I('s_cbranch_scc1 L_PV_now1')
    ffn_w1(W1T)
    a.label('L_PV_now1')
if not args.bm3:
    TS(6)
    I('s_barrier')
if args.pp:
    I(f's_setprio {args.pp}')
I('s_barrier')
a.label('L_PVC')
for u in range(4):
    I(f'ds_read_b128 {v(PF + 4 * u, 4)}, {v(48 + u)}')
LW, MW = 32, 36
I(f'ds_read_b128 {v(LW, 4)}, v43')
I(f'ds_read_b128 {v(MW, 4)}, v42')
TS(7)
O = 16
cvt = lambda k: [f'v_cvt_pk_bf16_f32 {v(O + 4 * r + k)}, {v(ACC + 8 * k + r)}, {v(ACC + 8 * k + 4 + r)}' for r in range(4)]
R4 = range(4)
fill = {}


def place(first, ops):
    for i, t_ in enumerate(ops):
        fill.setdefault(first + i // 2, []).append(t_)


w0 = [f'v_add_f32 {v(LW + r)}, {v(LW + r)}, {v(LW + r)} row_ror:{st}' for st in (8, 4, 2, 1) for r in R4]
w0[0] = 's_waitcnt lgkmcnt(0)\n' + w0[0]
w1 = [f'v_cvt_f16_f32 {v(LW + r)}, {v(LW + r)}' for r in R4]
w1 += [f'v_and_or_b32 {v(LW + r)}, {v(LW + r)}, {s(sT0)}, {v(MW + r)}' for r in R4]
w1 += [f'v_lshrrev_b32 {v(LW + r)}, v1, {v(LW + r)}' for r in R4]
w2 = cvt(0) + [f'v_and_b32 {v(O + 4 * r)}, {s(sK2)}, {v(O + 4 * r)}' for r in R4]
w3 = cvt(1) + [f'v_bfi_b32 {v(O + 4 * r + 1)}, {s(sK1)}, {v(LW + r)}, {v(O + 4 * r + 1)}' for r in R4]
w3 += [f'v_add_u32 {v(CK + r)}, {v(O + 4 * r)}, {v(O + 4 * r + 1)}' for r in R4]
w3 += [f'v_add_u32 {v(CK + r)}, {v(CK + r)}, {v(CK + r)} row_ror:{st}' for st in (8, 4, 2, 1) for r in R4]
allw = w0 + w2 + w1 + w3
place(2, allw[:60])
I(f's_mov_b32 {s(sT0)}, 0xffff')
i = 0
for k in range(4):
    for u in range(4):
        for T in (2 * k, 2 * k + 1):
            if k == 0 and T == 0 and u < 2:
                I(f's_waitcnt lgkmcnt({5 - u})')
            I(f'{MFMA} {v(ACC + 4 * T, 4)}, {v(PF + 4 * u, 4)}, {v(BF + (u * 8 + T) * 4, 4)}, {"0" if u == 0 else v(ACC + 4 * T, 4)}')
            for t_ in fill.get(i, []):
                I(t_)
            i += 1
for t_ in allw[60:] + cvt(2):
    I(t_)
for r in range(4):
    I(f'v_sub_u32 {v(CK + r)}, {s(sK0)}, {v(CK + r)}')
    I(cvt(3)[r])
    I(f'v_lshrrev_b32 {v(CK + r)}, v1, {v(CK + r)}')
    I(f'v_and_or_b32 {v(O + 4 * r)}, {v(CK + r)}, {s(sK1)}, {v(O + 4 * r)}')
    if args.warm & 2 and r == 0:
        a.B('s_cbranch_execz L_PVC_back')
    I(f'global_store_dwordx4 {v(52 + r)}, {v(O + 4 * r, 4)}, {P(pWS)} {args.sf.replace("+", " ")}')
flag_add(C_ST)
TS(8)
if args.ffn:
    I('s_setprio 0')
    I(f's_cmp_ge_u32 {s(sR)}, 224')
    I('s_cbranch_scc1 L_PV_noffn')
    ffn_rest(W1T, 4)
    I('s_branch L_PV_end')
    a.label('L_PV_noffn')
I('s_waitcnt vmcnt(0)')
flag_add(C_ACK)
TS(9)
a.label('L_PV_end')
I('s_waitcnt lgkmcnt(0)')
ts_dump()
I('s_endpgm')

a.label('L_S')
AF, QB, WUV, SA, MK, WO0, QAD = 128, 96, 48, 40, 36, 64, 80
WOR, PL, AW, AT2 = 128, 176, 208, 240
XR2, B2R, OA, W2T, HH = 46, 47, 104, 88, 124
sQ, sDL = sK1, sK2
WOq = lambda q: WO0 + 4 * q if q < 4 else WOR + 4 * (q - 4)
HTC = {0: f's_lshr_b32 {s(sHT)}, {s(sY)}, 3\ns_lshl2_add_u32 {s(sHT)}, {s(sX)}, {s(sHT)}',
       1: f's_and_b32 {s(sHT)}, {s(sY)}, 24\ns_add_u32 {s(sHT)}, {s(sX)}, {s(sHT)}',
       2: f's_bfe_u32 {s(sHT)}, {s(sY)}, 0x10003\ns_lshl1_add_u32 {s(sHT)}, {s(sX)}, {s(sHT)}\ns_and_b32 {s(sCI)}, {s(sY)}, 16\ns_add_u32 {s(sHT)}, {s(sHT)}, {s(sCI)}'}[args.htmap]
ROT = {0: '', 1: f's_lshl1_add_u32 {s(sT1)}, {s(sW)}, {s(sY)}', 2: f's_mov_b32 {s(sT1)}, {s(sY)}', 3: f's_lshl_b32 {s(sT1)}, {s(sW)}, 1'}[args.rot]
if args.rot:
    ROT += f'\ns_and_b32 {s(sT1)}, {s(sT1)}, 7\ns_lshl_b32 {s(sT1)}, {s(sT1)}, 12\nv_xor_b32 v4, {s(sT1)}, v4'
KS = {0: 12, 1: 16, 2: 19}[args.kmap]
if args.kmap == 0:
    I(f's_lshl_b32 {s(sT0)}, {s(sS)}, 17')
elif args.kmap == 1:
    I(f's_and_b32 {s(sT0)}, {s(sS)}, 15')
    I(f's_lshl_b32 {s(sT0)}, {s(sT0)}, 12')
    I(f's_lshl_b32 {s(sT1)}, {s(sX)}, 21')
    I(f's_add_u32 {s(sT0)}, {s(sT0)}, {s(sT1)}')
else:
    I(f's_lshl_b32 {s(sT0)}, {s(sS)}, 12')
I(f"""
s_lshl_b32 {s(sT1)}, {s(sW)}, {KS + 3}
s_add_u32 {s(sT0)}, {s(sT0)}, {s(sT1)}
s_lshl_b32 {s(sT1)}, {s(sW)}, 8
s_add_u32 {s(sT0)}, {s(sT0)}, {s(sT1)}
v_lshlrev_b32 v4, 1, v2
v_xor_b32 v4, v4, v1
v_lshlrev_b32 v4, 4, v4
v_lshl_add_u32 v4, v2, 10, v4
v_add_u32 v4, {s(sT0)}, v4
{ROT}
v_xor_b32 v26, 0x80, v4
{'v_xor_b32' if args.rot else 'v_add_u32'} v26, {1 << KS}, v26
s_mul_i32 {s(sT1)}, {s(sW)}, {32768 + 8192}
s_mov_b32 m0, {s(sT1)}
s_mov_b32 {s(sT2)}, {2 << KS}
s_mov_b32 {s(sQ)}, {s(sW)}
{HTC}
s_and_b32 {s(sCI)}, {s(sY)}, 3
s_bfe_u32 {s(sDI)}, {s(sY)}, 0x10002
v_and_b32 v5, 7, v1
v_lshlrev_b32 v5, 1, v5
v_xor_b32 v5, v5, v2
v_lshlrev_b32 v5, 4, v5
v_lshl_add_u32 v5, v1, 8, v5
s_lshl_b32 {s(sT1)}, {s(sW)}, 13
v_add_u32 v5, {s(sT1)}, v5
v_lshl_add_u32 v27, {s(sW)}, 2, {v(VFL)}
""")
I(f"""
s_lshr_b32 {s(sT0)}, {s(sW)}, 1
s_lshl1_add_u32 {s(sT0)}, {s(sCI)}, {s(sT0)}
s_lshl_b32 {s(sT0)}, {s(sT0)}, 19
s_and_b32 {s(sT3)}, {s(sW)}, 1
s_lshl_b32 {s(sT3)}, {s(sT3)}, 16
s_add_u32 {s(sT0)}, {s(sT0)}, {s(sT3)}
s_lshl1_add_u32 {s(sT3)}, {s(sHT)}, {s(sDI)}
s_lshl_b32 {s(sT1)}, {s(sT3)}, 7
s_add_u32 {s(sT0)}, {s(sT0)}, {s(sT1)}
v_lshrrev_b32 v8, 3, v0
v_lshlrev_b32 v8, 13, v8
v_and_b32 v9, 7, v0
v_lshl_add_u32 v8, v9, 4, v8
v_add_u32 v8, {s(sT0)}, v8
""")
I('s_waitcnt lgkmcnt(0)')
load_epoch()
if args.ee:
    I('s_waitcnt lgkmcnt(0)')
I('s_barrier')
I(f"""
s_lshl_b32 {s(sT0)}, {s(sT3)}, 16
s_lshl_b32 {s(sT1)}, {s(sW)}, 8
s_add_u32 {s(sT0)}, {s(sT0)}, {s(sT1)}
v_lshlrev_b32 v34, 12, v2
v_lshl_add_u32 v34, v1, 4, v34
v_add_u32 v34, {s(sT0)}, v34
""")
for b in range(4):
    I(f's_add_u32 {s(sT0)}, {s(sCI)}, {b}')
    I(f's_and_b32 {s(sT0)}, {s(sT0)}, 3')
    I(f's_lshl_b32 {s(sT0)}, {s(sT0)}, 14')
    I(f'v_add_u32 {v(28 + b)}, {s(sT0)}, v34')
build_masks(MK, 9, 10)
TS(1)


def s_setup():
    I(f"""
    v_lshlrev_b32 v10, 4, v1
    v_add_u32 v10, {L_MX}, v10
    s_lshl_b32 {s(sT0)}, {s(sW)}, 2
    v_add_u32 v9, {s(sT0)}, v10
    s_lshl_b32 {s(sT0)}, {s(sW)}, 10
    s_add_u32 {s(sT0)}, {s(sT0)}, {L_P}
    v_add_u32 v11, {s(sT0)}, v3
    v_lshlrev_b32 v33, 2, v1
    v_add_u32 v33, {L_MF}, v33
    s_lshl_b32 {s(sT0)}, {s(sW)}, 8
    s_add_u32 {s(sT0)}, {s(sT0)}, {L_LS}
    v_lshl_add_u32 v32, v0, 2, {s(sT0)}
    v_xor_b32 v6, v1, v2
    v_lshlrev_b32 v6, 4, v6
    v_lshl_add_u32 v6, v2, 8, v6
    """)
    for i in range(4):
        I(f's_add_u32 {s(sT0)}, {s(sW)}, {i}')
        I(f's_and_b32 {s(sT0)}, {s(sT0)}, 3')
        I(f's_lshl_b32 {s(sT0)}, {s(sT0)}, 12')
        I(f's_add_u32 {s(sT0)}, {s(sT0)}, {L_QA}')
        I(f'v_add_u32 {v(QAD + 2 * i)}, {s(sT0)}, v6')
        I(f'v_xor_b32 {v(QAD + 2 * i + 1)}, 64, {v(QAD + 2 * i)}')
    I(f"""
    s_bfe_u32 {s(sT0)}, s2, 0x20004
    s_and_b32 {s(sT1)}, s2, 3
    s_lshl2_add_u32 {s(sT0)}, {s(sT0)}, {s(sT1)}
    s_lshl_b32 {s(sT0)}, {s(sT0)}, 6
    s_bfe_u32 {s(sT1)}, s2, 0x10002
    s_lshl3_add_u32 {s(sT0)}, {s(sT1)}, {s(sT0)}
    s_bfe_u32 {s(sT1)}, s2, 0x10003
    s_lshl2_add_u32 {s(sT0)}, {s(sT1)}, {s(sT0)}
    v_and_b32 v35, 3, v0
    v_lshl_add_u32 v12, v35, 4, {s(sT0)}
    s_mov_b32 {s(sK0)}, 0x20000
    s_lshr_b32 {s(sT1)}, s2, 6
    s_lshl_b32 {s(sT1)}, {s(sT1)}, 10
    s_add_u32 {s(sT0)}, {s(sT0)}, {s(sT1)}
    s_cmp_lt_u32 s2, 224
    s_cselect_b32 {s(sR)}, -1, 0
    s_cselect_b32 {s(sT1)}, 0, 512
    s_sub_u32 {s(sT0)}, {s(sT0)}, {s(sT1)}
    s_lshl1_add_u32 {s(sT0)}, {s(sT0)}, {s(sW)}
    s_lshl_b32 {s(sT0)}, {s(sT0)}, 8
    v_lshlrev_b32 v34, 13, v2
    v_lshl_add_u32 v34, v1, 4, v34
    v_add_u32 v34, {s(sT0)}, v34
    """)


def dma_row(r):
    k = r & 7
    va = 'v26' if k & 1 else 'v4'
    I(f'global_load_lds_dwordx4 {va}, {P(pCKV)}{NT}')
    if r < 30:
        if k == 5:
            I(f's_lshl_b32 {s(sDL)}, {s(sQ)}, 8')
            I(f's_add_u32 {s(sQ)}, {s(sQ)}, 1')
            I(f's_and_b32 {s(sQ)}, {s(sQ)}, 3')
            I(f's_lshl_b32 {s(sT0)}, {s(sQ)}, 8')
            if args.rot:
                I(f's_xor_b32 {s(sDL)}, {s(sT0)}, {s(sDL)}')
                I(f's_or_b32 {s(sDL)}, {s(sDL)}, {6 << 12}')
            else:
                I(f's_sub_u32 {s(sDL)}, {s(sT0)}, {s(sDL)}')
                I(f's_sub_u32 {s(sDL)}, {s(sDL)}, {6 << KS}')
        if args.rot:
            I(f'v_xor_b32 {va}, {s(sDL) if k >= 6 else (6 << 12) if k & 2 else s(sT2)}, {va}')
        else:
            I(f'v_add_u32 {va}, {s(sDL if k >= 6 else sT2)}, {va}')
    if r < 31:
        if k == 7:
            I(f's_lshl2_add_u32 {s(sT0)}, {s(sQ)}, {s(sW)}')
            I(f's_lshl_b32 m0, {s(sT0)}, 13')
        else:
            I('s_add_u32 m0, m0, 0x400')
    if r == args.qa and r:
        flag_add(C_ISS)
    if r == args.hr and r:
        flag_add(C_ER)


def stage_addr(i):
    I(f's_add_u32 {s(sT1)}, {s(sW)}, {i}')
    I(f's_and_b32 {s(sT1)}, {s(sT1)}, 3')
    I(f's_lshl_b32 {s(sT1)}, {s(sT1)}, 15')
    I(f'v_add_u32 v16, {s(sT1)}, v5')
    for t in range(1, 4):
        I(f'v_xor_b32 {v(16 + t)}, {64 * t}, v16')


def stage_reads(i):
    for t in range(4):
        for tau in range(2):
            I(f'ds_read_b128 {v(AF + 32 * i + 8 * t + 4 * tau, 4)}, {v(16 + t)} offset:{4096 * tau}')


tail = []
for i in range(4):
    tail.append(f'global_load_dwordx4 {v(WO0 + 4 * i, 4)}, v28, {P(pWO)} offset:{1024 * i}{NT if args.nto else ""}')
for i in range(4):
    tail.append(f'global_load_dwordx4 {v(WUV + 4 * i, 4)}, v8, {P(pWUV)}{NT}' + (f'\nv_add_u32 v8, {s(sK0)}, v8' if i < 3 else ''))
for i in range(2):
    tail.append(f'global_load_dwordx4 {v(W2T + 4 * i, 4)}, v34, {P(pW2)} offset:{1024 * i}{NT}')
w2_loads = []
w2_late = []
if args.w2p:
    w2_late = tail[8:10]
    tail = tail[:8]
if args.ffn:
    w2_loads = tail[8:10]
    tail = tail[:8]
    args.ns = min(args.ns, 4) if args.ns == 6 else args.ns
wuv_loads = []
if args.wuv:
    assert args.tord == 1
    wuv_loads = tail[4:8]
    tail = tail[:4] + tail[8:]
elif args.tord == 1:
    tail = tail[:4] + tail[8:10] + tail[4:8]
if args.tord == 2:
    tail = tail[4:8] + tail[8:10] + tail[:4]
assert args.nt1 + args.ns + args.ne <= len(tail)

depth = lambda r: args.d1 if r < args.k1 else (args.d2 if r < args.k2 else args.d3)
for r in range(args.d1):
    dma_row(r)
s_setup()
I(f'global_load_dword v6, v12, {P(pX)}')
I(f'global_load_dword v7, v12, {P(pB2)}')
if args.warm & 1:
    I('s_mov_b64 exec, 0')
    I('s_branch L_SM_nb')
    a.label('L_SM_back')
    I('s_mov_b64 exec, -1')
I('s_mov_b64 vcc, -1')
stg = 0
for r in range(args.d1, 32):
    if args.tpos <= r < args.tpos + args.ne:
        I(tail.pop(0))
    if args.wuv == 2 and args.k1 <= r < args.k1 + 4:
        I(wuv_loads.pop(0))
    dma_row(r)
    d = depth(r)
    if args.dyn and r >= args.k1 and r < 31:
        lab = a.newlabel('L_dy')
        a.B(f's_cbranch_vccz {lab}')
        I(f'ds_read_b32 {v(VFT)}, {v(VFL)} offset:{4 * F_H2}')
        I(f's_waitcnt vmcnt({args.dyn}) lgkmcnt(0)')
        I(f'v_cmp_eq_u32 vcc, 0, {v(VFT)}')
        a.label(lab)
    if r + 1 > d and r < 31:
        I(f's_waitcnt vmcnt({d})')
        if r + 1 - d >= 8 * (stg + 1):
            flag_add(K0, 27)
            stage_addr(stg)
            stage_reads(stg)
            stg += 1
TS(2)
while stg < (3 if args.p2 < 0 else 2):
    stage_addr(stg)
    I(f's_waitcnt vmcnt({24 - 8 * stg})')
    flag_add(K0, 27)
    stage_reads(stg)
    stg += 1
for _ in range(args.nt1):
    I(tail.pop(0))
if args.qa == 32:
    flag_add(C_ISS)
stage_addr(3 if args.p2 < 0 else 2)
assert args.p2 < 0 or (stg == 2 and args.p2 <= 8 and args.p2 <= args.last)
epoch_ready()
I('s_setprio 2')
flag_wait(C_QA, 2)
TS(4)
LOOK = 4


def qa_read(t):
    I(f'ds_read_b128 {v(QB + 4 * (t & 7), 4)}, {v(QAD + 2 * (t >> 2) + (t & 1))} offset:{1024 * (t & 3)}')


def wo_rest():
    for q in range(4, 16):
        I(f'global_load_dwordx4 {v(WOq(q), 4)}, {v(28 + (q >> 2))}, {P(pWO)} offset:{1024 * (q & 3)}{NTS}')


def s_mfma(t):
    for tau in range(2):
        I(f'{MFMA} {v(SA + 4 * tau, 4)}, {v(AF + 8 * t + 4 * tau, 4)}, {v(QB + 4 * (t & 7), 4)}, {"0" if t == 0 else v(SA + 4 * tau, 4)}')


ldsq = []


def pickup(i):
    I(f's_waitcnt vmcnt({8 * (3 - i) + args.nt1})')
    stage_reads(i)
    ldsq.extend([('A', 4 * i + t) for t in range(4) for _ in range(2)])
    if i < 3 or not args.bm3:
        flag_add(K0, 27)
        ldsq.append(('F', i))
    if i == 2:
        stage_addr(3)
    else:
        TS(3)


waited = -1
for t in range(LOOK):
    qa_read(t)
    ldsq.append(('Q', t))
for t in range(16):
    if t == args.p2:
        pickup(2)
    if t == args.last:
        pickup(3)
    if t + LOOK < 16:
        qa_read(t + LOOK)
        ldsq.append(('Q', t + LOOK))
    need_ = max(i for i, o in enumerate(ldsq) if o in (('Q', t), ('A', t)))
    if need_ > waited:
        younger = min(15, len(ldsq) - 1 - need_)
        I(f's_waitcnt lgkmcnt({younger})')
        waited = len(ldsq) - 1 - younger
    s_mfma(t)
    if t >= 12:
        for _ in range((args.ns + 3 - (t - 12)) // 4):
            if tail:
                I(tail.pop(0))
TS(5)
a.label('L_SM')
I(f'''
s_mov_b32 {s(sT3)}, 0xffff0000
s_mov_b32 {s(sT0)}, 0x3db504f3
s_mov_b32 {s(sT1)}, 0x3fb8aa3b
v_max3_f32 v24, {v(SA)}, {v(SA + 1)}, {v(SA + 2)}
v_max3_f32 v25, {v(SA + 4)}, {v(SA + 5)}, {v(SA + 6)}
v_max3_f32 v24, v24, {v(SA + 3)}, {v(SA + 7)}
v_max_f32 v24, v24, v25
''')
if args.dsmax:
    I(f'ds_max_f32 v33, v24 offset:{L_MA - L_MF}')
else:
    cross_rows_allreduce('v_max_f32', 24, 25)
    I('ds_write_b32 v9, v24')
if args.mimic:
    round_pairs(SA, 8, 16)
I('s_waitcnt lgkmcnt(0)')
I('s_barrier')
a.label('L_SM_nb')
I(f'ds_read_b32 v24, v33 offset:{L_MA - L_MF}' if args.dsmax else 'ds_read_b128 v[20:23], v10')
for i in range(8):
    I(f'v_mul_f32 {v(SA + i)}, {s(sT0)}, {v(SA + i)}')
if args.mimic:
    round_pairs(SA, 8, 16)
I('s_waitcnt lgkmcnt(0)')
if not args.dsmax:
    I('v_max3_f32 v24, v20, v21, v22')
    I('v_max_f32 v24, v24, v23')
if args.mimic:
    I('v_cvt_pk_bf16_f32 v24, v24, v24')
    I(f'v_and_b32 v24, {s(sT3)}, v24')
I(f'v_mul_f32 v24, {s(sT0)}, v24')
assert args.mimic
I('v_cvt_pk_bf16_f32 v24, v24, v24')
I(f'v_and_b32 v25, {s(sT3)}, v24')
I(f'v_mul_f32 v24, {s(sT1)}, v25')
I('ds_write_b32 v33, v25')
for i in range(8):
    I(f'v_fma_f32 {v(SA + i)}, {v(SA + i)}, {s(sT1)}, -v24')
for i in range(8):
    I(f'v_exp_f32 {v(SA + i)}, {v(SA + i)}')
for i in range(4):
    I(f'v_cvt_pk_bf16_f32 {v(16 + i)}, {v(SA + 2 * i)}, {v(SA + 2 * i + 1)}')
I('ds_write_b128 v11, v[16:19]')
I(f's_mov_b32 {s(sT0)}, 0x3f803f80')
I(f'v_dot2_f32_bf16 v25, v16, {s(sT0)}, 0')
for i in range(1, 4):
    I(f'v_dot2_f32_bf16 v25, {v(16 + i)}, {s(sT0)}, v25')
I('ds_write_b32 v32, v25')
if args.warm & 1:
    a.B('s_cbranch_execz L_SM_back')
I('s_waitcnt lgkmcnt(0)')
I('s_barrier')
I('s_setprio 0')
TS(6)
I(f'v_mov_b32 {v(XR2)}, v6')
I(f'v_mov_b32 {v(B2R)}, v7')
for _ in range(args.nb):
    if tail:
        I(tail.pop(0))
if args.wor == 1:
    wo_rest()
I(f'''
v_lshlrev_b32 v10, 3, v0
v_add_u32 v10, {L_FF}, v10
s_lshl2_add_u32 {s(sT0)}, {s(sHT)}, {s(sCI)}
s_lshl2_add_u32 {s(sT0)}, {s(sT0)}, {s(sW)}
s_lshl_b32 {s(sT0)}, {s(sT0)}, 13
s_add_u32 {s(sT0)}, {s(sT0)}, {W_H3}
v_lshlrev_b32 v4, 11, v2
v_lshl_add_u32 v4, v1, 4, v4
v_add_u32 v4, {s(sT0)}, v4
s_mul_i32 {s(sK1)}, {s(sEP)}, {(HASH * 16) & 0xffffffff}
s_add_u32 {s(sK1)}, {s(sK1)}, {(HASH * 8) & 0xffffffff}
s_mov_b32 {s(sK2)}, {EMB}
s_lshl_b32 {s(sT0)}, {s(sW)}, 2
s_add_u32 {s(sT0)}, {s(sT0)}, {L_MX}
v_mov_b32 v7, {s(sT0)}
v_mov_b32 v45, {L_MX}
s_lshl_b32 {s(sT0)}, {s(sW)}, 18
s_lshl_b32 {s(sT1)}, s2, {6 + args.h5}
s_add_u32 {s(sT0)}, {s(sT0)}, {s(sT1)}
s_add_u32 {s(sT0)}, {s(sT0)}, {W_H5}
v_lshrrev_b32 v44, {2 + args.h5}, v0
v_lshlrev_b32 v44, {14 + args.h5}, v44
v_and_b32 v16, {7 if args.h5 else 3}, v0
v_lshl_add_u32 v44, v16, 4, v44
v_add_u32 v44, {s(sT0)}, v44
v_and_b32 v16, 1, v2
v_lshrrev_b32 v17, 1, v2
s_lshl_b32 {s(sT0)}, {s(sW)}, 9
s_add_u32 {s(sT1)}, {s(sT0)}, {L_CL}
v_add_u32 v40, {s(sT1)}, v3
s_add_u32 {s(sT1)}, {s(sT0)}, {L_CX}
v_and_b32 v42, 7, v0
v_lshlrev_b32 v42, 5, v42
v_lshl_add_u32 v42, v16, 4, v42
v_lshl_add_u32 v42, v17, 8, v42
v_add_u32 v42, {s(sT1)}, v42
s_lshl_b32 {s(sT0)}, {s(sW)}, 7
s_add_u32 {s(sT0)}, {s(sT0)}, {L_CL}
v_lshrrev_b32 v41, 3, v0
v_lshl_add_u32 v41, v41, 4, {s(sT0)}
v_lshl_add_u32 v41, v35, 2, v41
v_bfe_u32 v9, v0, 2, 1
v_lshl_add_u32 v41, v9, 10, v41
v_lshl_add_u32 v9, v9, 3, v45
v_lshrrev_b32 v43, 2, v1
v_add_u32 v43, {s(sCI)}, v43
v_and_b32 v43, 3, v43
v_lshlrev_b32 v43, 4, v43
v_lshl_add_u32 v43, v2, 2, v43
v_add_u32 v43, v43, v35
v_lshlrev_b32 v43, 2, v43
v_add_u32 v43, {L_CX}, v43
v_mov_b32 v33, {s(sEP)}
v_cmp_gt_u32 {P(sM1)}, v0, 31
v_and_b32 v16, 1, v0
v_cmp_eq_u32 {P(sM2)}, 1, v16
''')
if args.pw & 4 and args.pwt != 2:
    for e in range(4):
        I(f'v_mov_b32 {v(20 + e)}, 0')
    I(f'global_store_dwordx4 v44, v[20:23], {P(pWS)} sc1')
if args.pw & 32:
    I(f's_lshl_b32 {s(sT0)}, {s(sW)}, 8')
    I(f's_sub_u32 {s(sT0)}, s2, {s(sT0)}')
    I(f's_cmp_lt_i32 {s(sT0)}, 192')
    I('s_cbranch_scc1 L_nopwo')
    I('s_mov_b64 exec, 15')
    I(f'global_store_dword v12, v20, {P(pOUT)} sc1')
    I('s_mov_b64 exec, -1')
    a.label('L_nopwo')
if args.pfu:
    I(f'''
    s_lshl2_add_u32 {s(sT0)}, {s(sCI)}, {s(sW)}
    s_lshl_b32 {s(sT0)}, {s(sT0)}, 18
    s_xor_b32 {s(sT1)}, {s(sDI)}, 1
    s_lshl1_add_u32 {s(sT1)}, {s(sHT)}, {s(sT1)}
    s_lshl_b32 {s(sT1)}, {s(sT1)}, 7
    s_add_u32 {s(sT0)}, {s(sT0)}, {s(sT1)}
    v_lshl_add_u32 v11, v0, 13, {s(sT0)}
    ''')
    pf = f's_mov_b32 exec_hi, 0\nglobal_load_dword v126, v11, {P(pWUV)}{NT}\ns_mov_b64 exec, -1'
    tail = tail + [pf] if args.pfu == 1 else [pf] + tail


def lt_read():
    I(f's_lshl_b32 {s(sT0)}, s2, 9')
    I(f's_add_u32 {s(sT0)}, {s(sT0)}, {W_LT}')
    I(f's_add_u32 {s(sB)}, {s(pWS)}, {s(sT0)}')
    I(f's_addc_u32 {s(sB + 1)}, {s(pWS + 1)}, 0')
    for k in range(4):
        I(f's_load_dword {s(96 + k)}, {P(sB)}, {128 * k}')


def lt_signal():
    lab = a.newlabel('L_lts')
    I(f's_cmp_lg_u32 {s(sW)}, 0')
    I(f's_cbranch_scc1 {lab}')
    I('v_mul_u32_u24 v11, 53, v0')
    I('v_add3_u32 v11, v11, s2, 37')
    I('v_and_b32 v11, 0xff, v11')
    I('v_lshl_add_u32 v11, v11, 2, v0')
    I('v_lshlrev_b32 v11, 7, v11')
    I(f'v_add_u32 v11, {W_LT}, v11')
    I('s_mov_b64 exec, 15')
    I(f'global_store_dword v11, v33, {P(pWS)} sc1')
    I('s_mov_b64 exec, -1')
    a.label(lab)


def lt_decide():
    I('s_waitcnt lgkmcnt(0)')
    I(f's_mov_b32 {s(sT0)}, 0')
    for k in range(4):
        I(f's_cmp_eq_u32 {s(96 + k)}, {s(sEP)}')
        I(f's_addc_u32 {s(sT0)}, {s(sT0)}, 0')
    if args.ts and args.tsn == 4:
        I(f's_mov_b32 {s(TSB + 30)}, {s(sT0)}')
    I(f's_cmp_ge_u32 {s(sT0)}, {args.ltq}')


if args.lt == 1:
    lt_read()
if args.lt and args.lts:
    lt_signal()
if tail or args.wor == 2:
    flag_wait(C_ST, 4)
if args.lt == 2:
    lt_read()
if args.lt and not args.lts:
    lt_signal()
late_uv = list(tail)
if args.ltf:
    lt_decide()
    I('s_cbranch_scc1 L_late')
while tail:
    I(tail.pop(0))
if args.lt and not args.ltf:
    lt_decide()
    I('s_cbranch_scc1 L_nogate')
if args.wor == 2:
    wo_rest()
if args.ackn:
    I(f's_mov_b32 {s(sCNT)}, {args.ackn}')
    a.label('L_ackw')
    I(f'ds_read_b32 {v(VFT)}, {v(VFL)} offset:{4 * C_ACK}')
    I(f's_sub_u32 {s(sCNT)}, {s(sCNT)}, 1')
    I('s_waitcnt lgkmcnt(0)')
    I(f'v_cmp_gt_u32 vcc, 4, {v(VFT)}')
    a.B('s_cbranch_scc1 L_nogate')
    a.B('s_cbranch_vccnz L_ackw')
else:
    flag_wait(C_ACK if args.ew else C_ST, 4)
for q in range(4, 4 + args.wpre):
    I(f'global_load_dwordx4 {v(WOq(q), 4)}, {v(28 + (q >> 2))}, {P(pWO)} offset:{1024 * (q & 3)}{NTS}')
if args.dly:
    I(f's_sleep {args.dly}')
if args.gv:
    I(f's_waitcnt vmcnt({args.gv - 1})')
a.label('L_nogate')
TS(8)
U = 96
nwo = 0


def gather(first, w2_loads=(), wpre=args.wpre):
    global nwo
    for q in range(8):
        I(f'global_load_dwordx4 {v(PL + 4 * q, 4)}, v4, {P(pWS)} offset:{q * 256} {args.lf.replace("+", " ")} ')
    n2 = len(w2_loads) if first else 0
    if first:
        for t_ in w2_loads:
            I(t_)
    n_ = 0
    for q in range(8):
        d0, d1 = v(PL + 4 * q), v(PL + 4 * q + 1)
        I(f's_waitcnt vmcnt({7 - q + n_ + n2})')
        if first and args.wor == 3:
            for _ in range((args.nin + 7 - q) // 8):
                qq = 4 + n_ + wpre
                if qq > 15:
                    continue
                I(f'global_load_dwordx4 {v(WOq(qq), 4)}, {v(28 + (qq >> 2))}, {P(pWO)} offset:{1024 * (qq & 3)}{NTS}')
                n_ += 1
        I(f'v_and_b32 v19, {s(sK2)}, {d0}')
        I(f'v_and_b32 {v(U + q)}, {s(sK2)}, {d1}')
        I(f'v_xor_b32 {d0}, v19, {d0}')
        I(f'v_lshl_add_u32 v19, v19, v1, {d1}')
        I(f'v_xor_b32 {d1}, {v(U + q)}, {d1}')
        I(f'v_lshlrev_b32 {v(U + q)}, v1, {v(U + q)}')
        I(f'v_add3_u32 v32, {d0}, v19, {"0" if q == 0 else "v32"}')
    if first:
        nwo = n_


gather(True, w2_loads)
if args.w2p == 2:
    assert args.nin == 12
    for t_ in w2_late:
        I(t_)
if args.ltf:
    I('s_branch L_late_j')
    a.label('L_late')
    TS(8)
    assert args.nin == 12
    gather(True, late_uv, 0)
    a.label('L_late_j')
I(f's_mov_b32 {s(sCNT)}, {args.spin}')
a.label('L_T3_chk')
for k in range(4):
    I(f'v_or_b32 {v(20 + k)}, {v(U + k)}, {v(U + k)} row_ror:8 bank_mask:0x3')
I('v_add_u32 v32, v32, v32 row_ror:8')
for k in range(4):
    I(f'v_or_b32 {v(20 + k)}, {v(U + 4 + k)}, {v(U + 4 + k)} row_ror:8 bank_mask:0xc')
I('v_add_u32 v32, v32, v32 row_ror:4')
for k in range(2):
    I(f'v_or_b32 {v(24 + k)}, {v(20 + k)}, {v(20 + k)} row_shl:4 bank_mask:0x5')
for k in range(2):
    I(f'v_or_b32 {v(24 + k)}, {v(22 + k)}, {v(22 + k)} row_shr:4 bank_mask:0xa')
I('v_add_u32 v32, v32, v32 row_ror:2')
for k in range(2):
    I(f'v_or_b32 {v(24 + k)}, {v(24 + k)}, {v(24 + k)} quad_perm:[1,0,3,2]')
I('v_add_u32 v32, v32, v32 row_ror:1')
for k in range(2):
    I(f'v_or_b32 {v(24 + k)}, {v(24 + k)}, {v(24 + k)} quad_perm:[2,3,0,1]')
I(f'v_cmp_ne_u32 vcc, {s(sK1)}, v32')
I(f's_sub_u32 {s(sCNT)}, {s(sCNT)}, 1')
I(f'v_cndmask_b32 v5, v24, v25, {P(sM2)}')
a.B('s_cbranch_vccz L_T3_go')
a.B('s_cbranch_scc1 L_T3_go')
I('s_mov_b64 exec, vcc')
gather(False)
I('s_branch L_T3_chk')
a.label('L_T3_go')
I('s_mov_b64 exec, -1')
TS(7)
wo_late = [f'global_load_dwordx4 {v(WOq(qq), 4)}, {v(28 + (qq >> 2))}, {P(pWO)} offset:{1024 * (qq & 3)}{NTS}' for qq in range(4 + nwo + args.wpre, 16)] if args.wor == 3 else []
nwo += len(wo_late)
if args.w2p == 1:
    wo_late += w2_late
if not args.nip:
    while wo_late:
        I(wo_late.pop(0))
I(f's_mov_b32 {s(sT1)}, 0x3fb8aa3b')
I(f'v_and_b32 v6, {s(sT3)}, v5')
I('v_cvt_f32_f16 v21, v5')
I(f'v_mul_f32 v6, {s(sT1)}, v6')
I('v_mul_f32 v21, 0.5, v21')
I('v_max_f32 v18, v6, v6 row_ror:8')
row_allreduce('v_max_f32', [18], steps=(4, 1))
cross_rows_allreduce('v_max_f32', 18, 19)
I('''
v_sub_f32 v17, v6, v18
v_exp_f32 v17, v17
v_cvt_pk_bf16_f32 v16, v17, v17
v_mul_f32 v17, v17, v21
''')
TS(1)
red = [f'v_add_f32 v17, v17, v17 row_ror:{st}' for st in (8, 4, 2, 1)]
red += ['v_mov_b32 v19, v17', 'v_permlane16_swap_b32 v19, v17\nv_add_f32 v17, v17, v19\nv_mov_b32 v19, v17',
        'v_permlane32_swap_b32 v19, v17\nv_add_f32 v17, v17, v19', 'ds_write2_b32 v7, v18, v17 offset0:0 offset1:4']
QL = lambda q: 8 * (q >> 2) + 4 * ((q >> 1) & 1) + (q & 1)


def w_and(q):
    for r in range(4):
        I(f'v_and_b32 {v(AW + 4 * (q & 1) + r)}, v16, {v(MK + r)} row_newbcast:{QL(q)}')


w_and(0)
for q in range(8):
    if q < 7:
        w_and(q + 1)
    I(f'{MFMA} v[24:27], {v(AW + 4 * (q & 1), 4)}, {v(PL + 4 * q, 4)}, {"0" if q == 0 else "v[24:27]"}')
    if q < 4:
        I(red[q])
    for _ in range(2):
        if wo_late:
            I(wo_late.pop(0))
for t_ in red[4:]:
    I(t_)
I('s_mov_b32 exec_hi, 0')
I('ds_write_b128 v40, v[24:27]')
I('s_mov_b64 exec, -1')
I('s_waitcnt lgkmcnt(0)')
TS(9)
TSN(0)
I('s_barrier')
I('ds_read_b128 v[96:99], v45')
I('ds_read_b64 v[100:101], v9')
I('ds_read2st64_b32 v[108:109], v41 offset0:0 offset1:2')
I('ds_read_b64 v[102:103], v9 offset:16')
I(f'ds_read_b64 {v(HH, 2)}, v10')
I('''
s_waitcnt lgkmcnt(4)
v_max3_f32 v18, v96, v97, v98
v_max_f32 v18, v18, v99
s_waitcnt lgkmcnt(2)
v_sub_f32 v100, v100, v18
v_sub_f32 v101, v101, v18
v_exp_f32 v100, v100
v_exp_f32 v101, v101
v_mul_f32 v20, v100, v108
v_fmac_f32 v20, v101, v109
s_waitcnt lgkmcnt(0)
v_mul_f32 v18, v100, v102
v_add_f32 v21, v20, v20 row_shl:4 bank_mask:0x5
v_fmac_f32 v18, v101, v103
v_add_f32 v21, v20, v20 row_shr:4 bank_mask:0xa
v_cvt_pk_bf16_f32 v20, v21, v21
v_add_f32 v18, v18, v18 row_half_mirror
''')
if args.ltf:
    I(f's_waitcnt vmcnt({nwo})')
QP = lambda i: f'quad_perm:[{i},{i},{i},{i}]'
for r in range(4):
    I(f'v_and_b32 {v(AW + r)}, v20, {v(MK + r)} {QP(0)}')
for i in range(4):
    if i < 3:
        for r in range(4):
            I(f'v_and_b32 {v(AW + 4 * (i + 1) + r)}, v20, {v(MK + r)} {QP(i + 1)}')
    else:
        I('v_rcp_f32 v18, v18')
    I(f'{MFMA} v[24:27], {v(AW + 4 * i, 4)}, {v(WUV + 4 * i, 4)}, {"0" if i == 0 else "v[24:27]"}')
for i in range(2):
    I(f'v_and_b32 {v(HH + i)}, {s(sR)}, {v(HH + i)}')
for r in range(4):
    I(f'v_and_b32 {v(AW + 16 + r)}, {v(HH)}, {v(MK + r)}')
I('s_mov_b32 exec_lo, 0x00ff00ff')
I('s_mov_b32 exec_hi, 0xff00ff00')
I('ds_write_b128 v42, v[24:27]')
I('s_mov_b64 exec, -1')
for r in range(4):
    I(f'v_and_b32 {v(AW + 20 + r)}, {v(HH + 1)}, {v(MK + r)}')
I('s_waitcnt lgkmcnt(0)')
I('s_barrier')
for k in range(4):
    I(f'ds_read2st64_b32 {v(108 + 2 * k, 2)}, v43 offset0:{2 * k} offset1:{2 * k + 1}')
TS(10)
if not args.w2p:
    I(f's_waitcnt vmcnt({nwo})')
    for i in range(2):
        I(f'{MFMA} {v(OA, 4)}, {v(AW + 16 + 4 * i, 4)}, {v(W2T + 4 * i, 4)}, {"0" if i == 0 else v(OA, 4)}')
I('v_mov_b32 v22, v33')
I('v_mov_b32 v23, v33')
I('''
s_waitcnt lgkmcnt(2)
v_add_f32 v108, v108, v109
v_add_f32 v110, v110, v111
s_waitcnt lgkmcnt(0)
v_add_f32 v112, v112, v113
v_add_f32 v114, v114, v115
v_add_f32 v108, v108, v110
v_add_f32 v112, v112, v114
v_add_f32 v108, v108, v112
''')
I('v_mul_f32 v108, v108, v18')
I('v_cvt_pk_bf16_f32 v20, v108, v108')


def wo_and(q):
    for r in range(4):
        I(f'v_and_b32 {v(AT2 + 4 * (q & 1) + r)}, v20, {v(MK + r)} row_newbcast:{q}')


wo_and(0)
for q in range(16):
    if q < 15:
        wo_and(q + 1)
    if args.wor == 3 and q >= 4 and q % 2 == 0:
        I(f's_waitcnt vmcnt({14 - q + len(w2_late)})')
    I(f'{MFMA} {v(OA, 4)}, {v(AT2 + 4 * (q & 1), 4)}, {v(WOq(q), 4)}, {"0" if q == 0 and args.w2p else v(OA, 4)}')
if args.w2p:
    for i in range(2):
        I(f's_waitcnt vmcnt({1 - i})')
        I(f'{MFMA} {v(OA, 4)}, {v(AW + 16 + 4 * i, 4)}, {v(W2T + 4 * i, 4)}, {v(OA, 4)}')
TS(11)
I(f'v_cndmask_b32 v20, {v(OA)}, {v(OA + 2)}, {P(sM1)}')
I(f'v_cndmask_b32 v21, {v(OA + 1)}, {v(OA + 3)}, {P(sM1)}')
I(f'global_store_dwordx4 v44, v[20:23], {P(pWS)} sc1')
TS(12)
I('s_cmp_lt_u32 s2, 192')
I('s_cbranch_scc1 L_T_ep' if args.ee else 's_cbranch_scc1 L_T_done')
I(f'''
s_bfe_u32 {s(sT0)}, s2, {0x50001 if args.h5 else 0x60000}
s_lshl2_add_u32 {s(sT0)}, {s(sT0)}, {s(sW)}
s_lshl_b32 {s(sT0)}, {s(sT0)}, {12 + args.h5}
s_and_b32 {s(sT1)}, s2, {args.h5}
s_lshl_b32 {s(sT1)}, {s(sT1)}, 6
s_add_u32 {s(sT0)}, {s(sT0)}, {s(sT1)}
s_add_u32 {s(sT0)}, {s(sT0)}, {W_H5}
v_lshrrev_b32 v4, 2, v0
v_lshlrev_b32 v4, {6 + args.h5}, v4
v_lshl_add_u32 v4, v35, 4, v4
v_add_u32 v4, {s(sT0)}, v4
v_add_u32 v5, {2048 << args.h5}, v4
v_lshrrev_b32 v6, 1, v2
v_lshl_add_u32 v8, v6, 2, v35
v_lshlrev_b32 v8, 5, v8
v_and_b32 v6, 1, v2
v_lshl_add_u32 v8, v6, 2, v8
s_lshl_b32 {s(sT0)}, {s(sW)}, 3
s_add_u32 {s(sT0)}, {s(sT0)}, {L_CL}
v_add_u32 v8, {s(sT0)}, v8
v_and_b32 v9, 7, v0
v_lshlrev_b32 v9, 5, v9
v_add_u32 v9, {L_CL}, v9
v_lshlrev_b32 v108, 16, {v(XR2)}
v_and_b32 v109, {s(sT3)}, {v(XR2)}
v_lshlrev_b32 v110, 16, {v(B2R)}
v_and_b32 v111, {s(sT3)}, {v(B2R)}
v_add_f32 v108, v108, v110
v_add_f32 v109, v109, v111
v_mov_b32 v108, v109 quad_perm:[0,1,2,3] bank_mask:0xa
s_mov_b32 {s(sCNT)}, {args.spin}
''')
if args.a5:
    I('s_waitcnt vmcnt(0)')
if args.dly5:
    I(f's_sleep {args.dly5}')
f5 = lambda k: f'global_load_dwordx4 {v(128 + 4 * k, 4)}, {v(4 + (k >> 1))}, {P(pWS)} offset:{(1024 << args.h5) * (k & 1)} sc1'
a.label('L_T5_retry')
for k in range(4):
    I(f5(k))
a.label('L_T5_chk')
I(f's_sub_u32 {s(sCNT)}, {s(sCNT)}, 1')
I('s_waitcnt vmcnt(2)')
I('v_xor_b32 v17, v130, v33')
I('v_add_f32 v20, v128, v132')
I('v_bitop3_b32 v17, v134, v33, v17 bitop3:0xbe')
I('v_add_f32 v21, v129, v133')
I('s_waitcnt vmcnt(0)')
I('v_bitop3_b32 v17, v138, v33, v17 bitop3:0xbe')
I('v_add_f32 v24, v136, v140')
I('v_bitop3_b32 v17, v142, v33, v17 bitop3:0xbe')
I('v_add_f32 v25, v137, v141')
I('v_cmp_ne_u32 vcc, 0, v17')
I('v_add_f32 v20, v20, v24')
I('v_add_f32 v21, v21, v25')
a.B('s_cbranch_scc1 L_T5_go')
if args.m5:
    a.B('s_cbranch_vccz L_T5_go')
    for k in range(4):
        lab = a.newlabel('L_r5')
        I(f'v_cmp_ne_u32 vcc, {v(130 + 4 * k)}, v33')
        I('s_nop 0')
        a.B(f's_cbranch_vccz {lab}')
        I('s_mov_b64 exec, vcc')
        I(f5(k))
        I('s_mov_b64 exec, -1')
        a.label(lab)
    I('s_waitcnt vmcnt(0)')
    I('s_branch L_T5_chk')
else:
    a.B('s_cbranch_vccnz L_T5_retry')
a.label('L_T5_go')
TS(13)
TSN(3)
I('''
v_permlane32_swap_b32 v20, v21
v_add_f32 v20, v20, v21
v_add_f32 v20, v20, v20 row_ror:4
v_add_f32 v20, v20, v20 row_ror:8
ds_write_b32 v8, v20
s_waitcnt lgkmcnt(0)
s_barrier
''')
I(f's_cmp_lg_u32 {s(sW)}, 0')
I('s_cbranch_scc1 L_T_done')
I('''
ds_read_b128 v[128:131], v9
ds_read_b128 v[132:135], v9 offset:16
s_waitcnt lgkmcnt(1)
v_add_f32 v128, v128, v129
v_add_f32 v130, v130, v131
v_add_f32 v108, v108, v128
v_add_f32 v108, v108, v130
s_waitcnt lgkmcnt(0)
v_add_f32 v132, v132, v133
v_add_f32 v134, v134, v135
v_add_f32 v108, v108, v132
v_add_f32 v108, v108, v134
''')
if args.pert:
    import struct
    kind, val = args.pert.split(',')
    bits = struct.unpack('<I', struct.pack('<f', float(val)))[0]
    if kind == 'm':
        I(f'v_mul_f32 v108, {bits}, v108')
    elif kind == 'a':
        I(f'v_add_f32 v108, {bits}, v108')
    else:
        I('s_cmp_lg_u32 s2, 200')
        I('s_cbranch_scc1 L_nop')
        I('s_mov_b64 exec, 1')
        I(f'v_add_f32 v108, {bits}, v108')
        I('s_mov_b64 exec, -1')
        a.label('L_nop')
        I('s_nop 1')
I('''
v_mov_b32 v109, v108 row_shl:4
v_cvt_pk_bf16_f32 v20, v108, v109
''')
I(f's_mov_b64 exec, {args.oex}')
I(f'global_store_dword v12, v20, {P(pOUT)} {args.of.replace("+", " ")}')
if args.ee:
    I('s_branch L_T_done')
    a.label('L_T_ep')
    I(f's_lshl2_add_u32 {s(sT0)}, s2, {s(sW)}')
    I(f's_cmp_lg_u32 {s(sT0)}, 400')
else:
    I('s_cmp_lg_u32 s2, 0xe0')
I('s_cbranch_scc1 L_T_done')
I(f'v_mov_b32 v22, {W_EP}')
I('s_mov_b64 exec, 1')
I(f'global_store_dword v22, v33, {P(pWS)} {args.ef}')
a.label('L_T_done')
TS(14)
ts_dump()
a.label('L_end')
I('s_endpgm')

a.raw('.section .rodata,"a"')
a.raw('.p2align 6')
a.raw(f'.amdhsa_kernel {NAME}_kernel')
a.raw('''  .amdhsa_next_free_vgpr 256
  .amdhsa_next_free_sgpr 102
  .amdhsa_accum_offset 256
  .amdhsa_group_segment_fixed_size 0
  .amdhsa_kernarg_size 112
  .amdhsa_user_sgpr_count 2
  .amdhsa_user_sgpr_kernarg_segment_ptr 1
  .amdhsa_system_sgpr_workgroup_id_x 1
.end_amdhsa_kernel''')
open(args.o, 'w').write(a.text())
```

```python
import sys, argparse, re
from asmlib import Asm, v, s

NAME = 'parallel_sum__compressed_kv_cla__dense_activation_squared_relu__decode'

ap = argparse.ArgumentParser()
A_ = lambda n, d, t=int: ap.add_argument('--' + n, type=t, default=d)
ap.add_argument('-o', default='out.s')
A_('ts', 0)
A_('nt', 1)
A_('d1', 1); A_('k1', 2); A_('d2', 10); A_('k2', 16); A_('d3', 10)
A_('swap', 0)
A_('qa', 21)
A_('h2', 1)
A_('h3', 1)
A_('nt1', 0)
A_('wor', 3)
A_('dyn', 5)
A_('own', 1)
A_('ns', 6)
A_('nb', 0)
A_('w1', 0)
A_('last', 12)
A_('h5', 0)
A_('np', 1)
A_('sl', 5)
A_('pre', 2)
A_('tord', 1)
A_('light', 1)
A_('pt', 0)
A_('dly', 0)
A_('dly5', 0)
A_('hint1', 0)
A_('hint2', 0)
A_('wuv', 0)
A_('ew', 1)
A_('bpos', 1)
A_('a5', 1)
A_('comb', 1)
A_('tpos', 32)
A_('ne', 0)
A_('gv', 4)
A_('pp', 3)
A_('bo', 0)
A_('clk', 0)
A_('wpre', 0)
A_('nts', 0)
A_('nto', 0)
A_('ntm', 0x3f, lambda x: int(x, 0))
A_('xc', 0)
A_('kmap', 0)
A_('p2', 8)
A_('ffn', 0)
A_('dsmax', 1)
A_('pfu', 0)
A_('lf', 'sc1', str)
A_('sf', 'sc1', str)
A_('lfa', 'sc1', str)
A_('of', 'sc1', str)
A_('m5', 1)
A_('bm3', 1)
A_('top', 0)
A_('warm', 3)
A_('pert', '', str)
A_('ef', 'sc1', str)
A_('hr', 0)
A_('fr', 1)
A_('wsoff', 0, lambda x: int(x, 0))
A_('ee', 1)
A_('nopt', 1)
A_('probe', 0)
A_('spf', 0)
A_('spw', 0)
A_('spx', 60)
A_('rot', 0)
A_('nin', 12)
A_('nip', 0)
A_('lt', 0)
A_('ltq', 4)
A_('lts', 0)
A_('ltf', 0)
A_('pw', 63)
A_('pwt', 0)
A_('pwq', 0)
A_('htmap', 0)
A_('ackn', 0)
A_('w2p', 0)
A_('oex', 15)
A_('pw0', 0)
A_('hv', 4)
A_('ln', 0)
A_('lrow', 0)
A_('mimic', 1)
A_('touch', 0)
A_('spin', 100000)
A_('notail', 0)
A_('tsn', 0)
A_('amp', '', str)
A_('tsmask', 0xffff, lambda x: int(x, 0))
args = ap.parse_args()
NT = ' nt' if args.nt else ''
NTS = ' nt' if args.nts else ''

L_QA = 131072
L_P = L_QA + 16384
L_XN = L_P + 4096
L_MX = L_XN + 1024
L_MF = L_MX + 256
L_MA = L_MF + 128
L_CL = L_MF + 256
L_CX = L_CL + 2048
L_FF = L_CX + 2048
L_LS = L_FF + 512
L_FL = L_LS + 1024
L_END = L_FL + 64
assert L_END <= 163840
F_F0, C_ISS, F_H2, C_QA, C_ST, C_ACK, C_ER, F_HINT, K0 = range(9)
C_L, C_M = K0 + 4, K0 + 5
W_EP = 0
W_H1 = 0x1000 + args.wsoff
W_H2 = W_H1 + 0x20000
W_HF = W_H2 + 0x10000
W_H5 = W_HF + 0x80000
W_LT = 0x1c0000
W_H3 = 0x200000 + args.wsoff
W_TS = 0x600000
assert W_H5 + 0x100000 <= W_LT

pX, pCKV, pWQ, pWUK, pWUV, pWO, pW1 = 4, 6, 8, 10, 12, 14, 18
pB1, pW2, pB2, pOUT, pDBG, pWS = 20, 22, 24, 26, 28, 30
sWV = 3
sX, sY, sFC, sGA, sS, sR, sHT, sCI, sDI = range(32, 41)
sJ, sH = sX, sY
sEP, sT0, sT1, sT2, sT3, sCNT, sW = 41, 42, 43, 44, 45, 46, 47
sB = 48
sM1, sM2, sM3, sM4 = 50, 52, 54, 56
sK0, sK1, sK2 = 58, 59, 60
TSB = 64
VFL, VONE, VFT = 13, 14, 15

a = Asm()
P = lambda r: s(r, 2)
MFMA = 'v_mfma_f32_16x16x32_bf16'


def I(text):
    if args.lfa != 'sc1':
        text = re.sub(r'(global_load\S* .*) sc1$', r'\1 ' + args.lfa.replace('+', ' '), text, flags=re.M)
    for bit, p_ in ((1, pWQ), (2, pWUK), (4, pCKV), (8, pWUV), (16, pW1), (32, pW2)):
        if not args.ntm & bit:
            text = re.sub(r'(global_load\S* .*s\[%d:%d\].*) nt' % (p_, p_ + 1), r'\1', text)
    if args.notail:
        out = []
        for line in text.split('\n'):
            m = re.match(r'\s*global_load_dwordx4 (v\[\d+:\d+\]), v\d+, s\[(\d+):', line)
            if m and int(m.group(2)) in (pWUV, pWO, pW1, pW2):
                line = f'global_load_dwordx4 {m.group(1)}, v3, s[4:5]'
            out.append(line)
        text = '\n'.join(out)
    a.I(text)


def TS(i):
    if args.ts and (args.tsmask >> i) & 1:
        I(f'{"s_memtime" if args.clk else "s_memrealtime"} {s(TSB + 2 * i, 2)}')


def TSN(k=None):
    if args.ts and (k is None or k == args.tsn):
        I(f's_sub_u32 {s(TSB + 2 * 15)}, {args.spin}, {s(sCNT)}')


def ts_dump(n=16):
    if not args.ts:
        return
    if args.xc:
        I(f's_getreg_b32 {s(TSB + 30)}, hwreg(HW_REG_XCC_ID)')
        I(f's_add_u32 {s(TSB + 30)}, {s(TSB + 30)}, {s(sEP)}')
        lab, done = a.newlabel('L_xc'), a.newlabel('L_xcd')
        I('s_cmp_lg_u32 s2, 224')
        I(f's_cbranch_scc1 {done}')
        I(f's_cmp_lg_u32 {s(sWV)}, 4')
        I(f's_cbranch_scc1 {done}')
        I('s_mov_b64 exec, -1')
        I(f'v_mov_b32 v4, {W_TS + args.xc * 512 + 60}')
        I(f'global_load_dword v5, v4, {P(pWS)} sc1')
        I('s_memrealtime s[96:97]')
        I('s_waitcnt vmcnt(0) lgkmcnt(0)')
        I(f'v_readfirstlane_b32 {s(sT0)}, v5')
        I(f's_cmp_eq_u32 {s(sT0)}, {s(TSB + 30)}')
        I(f's_cbranch_scc1 {done}')
        a.label(lab)
        I('s_memrealtime s[98:99]')
        I('s_waitcnt lgkmcnt(0)')
        I(f's_sub_u32 {s(sT1)}, s98, s96')
        I(f's_cmp_lt_u32 {s(sT1)}, 5000')
        I(f's_cbranch_scc1 {lab}')
        a.label(done)
    if args.amp:
        wg, w, k = map(int, args.amp.split(','))
        lab, done = a.newlabel('L_amp'), a.newlabel('L_ampd')
        I(f's_cmp_lg_u32 s2, {wg}')
        I(f's_cbranch_scc1 {done}')
        I(f's_cmp_lg_u32 {s(sWV)}, {w}')
        I(f's_cbranch_scc1 {done}')
        I('s_memrealtime s[96:97]')
        I('s_waitcnt lgkmcnt(0)')
        I(f's_sub_u32 {s(sT0)}, {s(TSB + 2 * k)}, {s(TSB)}')
        I(f's_lshl_b32 {s(sT0)}, {s(sT0)}, 3')
        I(f's_min_u32 {s(sT0)}, {s(sT0)}, 100000')
        a.label(lab)
        I('s_memrealtime s[98:99]')
        I('s_waitcnt lgkmcnt(0)')
        I(f's_sub_u32 {s(sT1)}, s98, s96')
        I(f's_cmp_lt_u32 {s(sT1)}, {s(sT0)}')
        I(f's_cbranch_scc1 {lab}')
        a.label(done)
    I('s_waitcnt lgkmcnt(0)')
    I('s_mov_b64 exec, -1')
    I('v_mov_b32 v4, 0')
    for i in range(n):
        I(f'v_writelane_b32 v4, {s(TSB + 2 * i)}, {i}')
    I(f's_lshl_b32 {s(sT0)}, s2, 3')
    I(f's_add_u32 {s(sT0)}, {s(sT0)}, {s(sWV)}')
    I(f's_lshl_b32 {s(sT0)}, {s(sT0)}, 6')
    I(f's_add_u32 {s(sT0)}, {s(sT0)}, {W_TS}')
    I(f'v_lshl_add_u32 v5, v0, 2, {s(sT0)}')
    I('s_mov_b64 exec, 0xffff')
    I(f'global_store_dword v5, v4, {P(pWS)}')
    I('s_waitcnt vmcnt(0)')


def load_epoch():
    I(f's_load_dword {s(sEP)}, {P(pWS)}, {W_EP}')


def epoch_ready():
    I('s_waitcnt lgkmcnt(0)')
    I(f's_add_u32 {s(sEP)}, {s(sEP)}, 1')
    I(f's_addc_u32 {s(sEP)}, {s(sEP)}, 0')


def row_allreduce(op, regs, steps=(8, 4, 2, 1)):
    for st in steps:
        for r in regs:
            I(f'{op} {v(r)}, {v(r)}, {v(r)} row_ror:{st}')


def cross_rows_allreduce(op, r, t):
    for sw in ('v_permlane16_swap_b32', 'v_permlane32_swap_b32'):
        I(f'v_mov_b32 {v(t)}, {v(r)}')
        I(f'{sw} {v(t)}, {v(r)}')
        I(f'{op} {v(r)}, {v(r)}, {v(t)}')


def scalar_poll(offsets):
    lab, done = a.newlabel('L_sp'), a.newlabel('L_spd')
    R = [61, 62, 63, 96, 97, 98, 99, 100]
    I(f's_mov_b32 {s(sCNT)}, {args.spin}')
    a.label(lab)
    for k, o in enumerate(offsets):
        I(f's_load_dword {s(R[k])}, {P(sB)}, {o} glc')
    I(f's_sub_u32 {s(sCNT)}, {s(sCNT)}, 1')
    I(f's_cbranch_scc1 {done}')
    I('s_waitcnt lgkmcnt(0)')
    I(f's_xor_b32 {s(sT0)}, {s(R[0])}, {s(sEP)}')
    for k in range(1, len(offsets)):
        I(f's_xor_b32 {s(sT1)}, {s(R[k])}, {s(sEP)}')
        I(f's_or_b32 {s(sT0)}, {s(sT0)}, {s(sT1)}')
    I(f's_cbranch_scc1 {lab}')
    a.label(done)
    I('s_waitcnt lgkmcnt(0)')


def flag_add(idx, base=VFL):
    I('s_mov_b64 exec, 1')
    I(f'ds_add_u32 {v(base)}, {v(VONE)} offset:{4 * idx}')
    I('s_mov_b64 exec, -1')


def flag_wait(idx, n, base=VFL):
    lab, done = a.newlabel('L_fw'), a.newlabel('L_fwd')
    if args.bo and idx in (F_F0, C_ISS, F_H2, C_ST, C_ACK, K0):
        l2 = a.newlabel('L_fw')
        a.B(f's_branch {l2}')
        a.label(lab)
        I(f's_sleep {args.bo}')
        a.label(l2)
    else:
        a.label(lab)
    I(f'ds_read_b32 {v(VFT)}, {v(base)} offset:{4 * idx}')
    I(f's_sub_u32 {s(sFC)}, {s(sFC)}, 1')
    I('s_waitcnt lgkmcnt(0)')
    I(f'v_cmp_gt_u32 vcc, {n}, {v(VFT)}')
    a.B(f's_cbranch_scc1 {done}')
    a.B(f's_cbranch_vccnz {lab}')
    a.label(done)
    I(f's_max_i32 {s(sFC)}, {s(sFC)}, 0')


def build_masks(M, t0, t1):
    I(f'v_and_b32 {v(t0)}, 1, v1')
    I(f'v_lshlrev_b32 {v(t0)}, 4, {v(t0)}')
    I(f'v_mov_b32 {v(t1)}, 0xffff')
    I(f'v_lshlrev_b32 {v(t1)}, {v(t0)}, {v(t1)}')
    I(f'v_bfe_u32 {v(t0)}, v1, 1, 2')
    for r in range(4):
        I(f'v_cmp_eq_u32 vcc, {r}, {v(t0)}')
        I(f'v_cndmask_b32 {v(M + r)}, 0, {v(t1)}, vcc')


BF, ACC, PF = 128, 96, 80
AT, SEL, XP, ACC0, REC = 72, 32, 80, 88, 92


def build_sel(t=6):
    J = lambda x: I(re.sub(r'\bv([6-9])\b', lambda m: 'v%d' % (int(m.group(1)) - 6 + t), x))
    J('''
    v_and_b32 v6, 1, v1
    v_cmp_eq_u32 vcc, 1, v6
    v_mov_b32 v7, 0x0c0c0100
    v_mov_b32 v8, 0x01000c0c
    v_cndmask_b32 v7, v7, v8, vcc
    v_mov_b32 v8, 0x0c0c0302
    v_mov_b32 v9, 0x03020c0c
    v_cndmask_b32 v8, v8, v9, vcc
    v_mov_b32 v9, 0x0c0c0c0c
    v_bfe_u32 v6, v1, 1, 2
    ''')
    for r in range(4):
        J(f'v_cmp_eq_u32 vcc, {r}, v6')
        J(f'v_cndmask_b32 {v(SEL + r)}, v9, v7, vcc')
        J(f'v_cndmask_b32 {v(SEL + 4 + r)}, v9, v8, vcc')


def diag_stage(n, W, younger=0):
    def perms(k):
        for r in range(4):
            I(f'v_perm_b32 {v(AT + 4 * (k & 1) + r)}, {v(XP + (k >> 1))}, {v(XP + (k >> 1))}, {v(SEL + 4 * (k & 1) + r)}')
    perms(0)
    for k in range(n):
        if k < n - 1:
            perms(k + 1)
        else:
            I(f'v_mov_b32 {v(REC + 2)}, {s(sEP)}')
            I(f'v_mov_b32 {v(REC + 3)}, {s(sEP)}')
        I(f's_waitcnt vmcnt({n - 1 - k + younger})')
        I(f'{MFMA} {v(ACC0, 4)}, {v(AT + 4 * (k & 1), 4)}, {v(W(k), 4)}, {"0" if k == 0 else v(ACC0, 4)}')


TA = 16


def tr_addr():
    I(f'''
    v_lshrrev_b32 v4, 2, v0
    v_lshlrev_b32 v4, 8, v4
    v_and_b32 v5, 31, v0
    v_lshl_add_u32 v4, v5, 3, v4
    s_lshl_b32 {s(sT0)}, {s(sW)}, 15
    v_add_u32 v4, {s(sT0)}, v4
    ''')


CK = 44
EMB = 0x00010001
HASH = 0x9e3779b1
OCT = ('quad_perm:[1,0,3,2]', 'quad_perm:[2,3,0,1]', 'row_half_mirror')


def pv_setup():
    for i in range(4):
        I(f's_sub_u32 {s(sT0)}, {s(sW)}, {i}')
        I(f's_and_b32 {s(sT0)}, {s(sT0)}, 3')
        I(f's_lshl_b32 {s(sT0)}, {s(sT0)}, 10')
        I(f's_add_u32 {s(sT0)}, {s(sT0)}, {L_P}')
        I(f'v_add_u32 {v(48 + i)}, {s(sT0)}, v3')
    I(f"""
    s_lshl_b32 {s(sT0)}, {s(sGA)}, 6
    s_add_u32 {s(sT0)}, {s(sT0)}, {s(sW)}
    s_lshl_b32 {s(sT0)}, {s(sT0)}, 7
    s_add_u32 {s(sT0)}, {s(sT0)}, {s(sS)}
    s_lshl_b32 {s(sT1)}, {s(sT0)}, 8
    s_add_u32 {s(sT1)}, {s(sT1)}, {W_H3}
    v_lshlrev_b32 v52, 19, v2
    v_lshl_add_u32 v52, v1, 4, v52
    v_add_u32 v52, {s(sT1)}, v52
    s_mov_b32 {s(sT2)}, 0x20000
    v_add_u32 v53, {s(sT2)}, v52
    v_add_u32 v54, {s(sT2)}, v53
    v_add_u32 v55, {s(sT2)}, v54
    v_lshlrev_b32 v42, 4, v2
    v_lshl_add_u32 v43, v1, 6, v42
    v_add_u32 v43, {L_LS}, v43
    v_add_u32 v42, {L_MF}, v42
    s_mul_i32 {s(sK0)}, {s(sEP)}, {(2 * HASH) & 0xffffffff}
    s_add_u32 {s(sK0)}, {s(sK0)}, {HASH}
    s_mov_b32 {s(sK1)}, {EMB}
    s_mov_b32 {s(sK2)}, {~EMB & 0xffffffff}
    """)


def pv_prewrite(qg, late=False):
    if args.pwt >= 3:
        if late and args.pw & 16:
            for e in range(4):
                I(f'v_mov_b32 {v(28 + e)}, 0')
            for r in range(4):
                I(f'global_store_dwordx4 {v(52 + r)}, v[28:31], {P(pWS)} sc1')
    elif args.pw0 >= (8 if qg else 16):
        pass
    elif args.pw & 16 and (qg or not args.pwt):
        for e in range(4):
            I(f'v_mov_b32 {v(28 + e)}, 0')
        for r in range(4):
            I(f'global_store_dwordx4 {v(52 + r)}, v[28:31], {P(pWS)} sc1')
            if args.pwt:
                I(f'v_add_u32 v6, 0x8000, {v(52 + r)}')
                I(f'global_store_dwordx4 v6, v[28:31], {P(pWS)} sc1')
        if args.pwt == 2:
            I(f'''
            s_lshl_b32 {s(sT0)}, {s(sW)}, 18
            s_lshl_b32 {s(sT1)}, s2, 7
            s_add_u32 {s(sT0)}, {s(sT0)}, {s(sT1)}
            s_add_u32 {s(sT0)}, {s(sT0)}, {W_H5}
            v_lshrrev_b32 v6, 3, v0
            v_lshlrev_b32 v6, 15, v6
            v_lshl_add_u32 v6, v10, 4, v6
            v_add_u32 v6, {s(sT0)}, v6
            global_store_dwordx4 v6, v[28:31], {P(pWS)} sc1
            v_add_u32 v6, 0x40000, v6
            global_store_dwordx4 v6, v[28:31], {P(pWS)} sc1
            ''')


def tr_slot(i):
    I(f's_sub_u32 {s(sT0)}, {s(sW)}, {i}')
    I(f's_and_b32 {s(sT0)}, {s(sT0)}, 3')
    I(f's_lshl_b32 {s(sT1)}, {s(sT0)}, 13')
    I(f'v_lshl_add_u32 v5, {s(sT0)}, 2, {v(VFL)}')
    I(f'v_add_u32 {v(TA)}, {s(sT1)}, v4')
    for T in range(1, 8):
        I(f'v_xor_b32 {v(TA + T)}, {32 * T}, {v(TA)}')
    if i == 3 and args.bm3:
        assert not args.ffn
        TS(6)
        I('s_barrier')
    else:
        flag_wait(K0, i + 1, 5)
    for T in range(8):
        for tau in range(2):
            I(f'ds_read_b64_tr_b16 {v(BF + (i * 8 + T) * 4 + 2 * tau, 2)}, {v(TA + T)} offset:{tau * 4096}')


def round_pairs(base, n, tmp):
    for i in range(n // 2):
        I(f'v_cvt_pk_bf16_f32 {v(tmp + i)}, {v(base + 2 * i)}, {v(base + 2 * i + 1)}')
    for i in range(n // 2):
        I(f'v_lshlrev_b32 {v(base + 2 * i)}, 16, {v(tmp + i)}')
        I(f'v_and_b32 {v(base + 2 * i + 1)}, {s(sT3)}, {v(tmp + i)}')


hdr = open('cdna_kernels/%s.s.ref' % NAME).read().split('; Override launch geometry')[0]
a.raw(hdr.rstrip())
a.raw(f'; @launch grid=(256,1,1) block=(512,1,1) lds={L_END}')
a.raw(""";
; carries the launch tag (ws[0] + 1, advanced at the end) or a share of a check word derived from it; all spins are bounded.""")
a.raw('.amdgcn_target "amdgcn-amd-amdhsa--gfx950"')
a.raw('.text')
a.raw(f'.globl {NAME}_kernel')
a.raw('.p2align 8')
a.raw(f'.type {NAME}_kernel,@function')
a.label(f'{NAME}_kernel')
a.label('L_start')
I('s_load_dwordx16 s[4:19], s[0:1], 0')
I('s_load_dwordx4 s[28:31], s[0:1], 96')
I(f's_getpc_b64 {P(sB)}')
a.label('L_pc')
I('s_cmpk_ge_u32 s2, 0x100')
I('s_cbranch_scc1 L_end')
TS(0)
I(f'''
v_lshrrev_b32 v4, 5, v0
s_lshl_b32 {s(sT1)}, s2, 8
v_readfirstlane_b32 {s(sWV)}, v4
s_and_b32 {s(sT1)}, {s(sT1)}, 0x7800
v_lshl_add_u32 v4, v4, 7, {s(sT1)}
v_min_u32 v4, L_end-L_pc, v4
s_mov_b32 exec_lo, 1
s_mov_b32 exec_hi, 1
global_load_dword v15, v4, {P(sB)}
s_mov_b64 exec, -1
s_cmp_ge_u32 {s(sWV)}, 8
''')
a.B('s_cbranch_scc1 L_S')
I(f's_cmp_eq_u32 {s(sWV)}, 2')
a.B('s_cbranch_scc1 L_F1')
I(f's_cmp_lg_u32 {s(sWV)}, 0')
a.B('s_cbranch_scc1 L_F23')


def common(first=True):
    I('s_load_dwordx8 s[20:27], s[0:1], 64')
    if first:
        I(f'''
        v_and_b32 v0, 63, v0
        v_and_b32 v1, 15, v0
        v_lshrrev_b32 v2, 4, v0
        v_lshlrev_b32 v3, 4, v0
        s_and_b32 {s(sX)}, s2, 7
        s_lshr_b32 {s(sY)}, s2, 3
        ''')
    I(f'''
    s_lshr_b32 {s(sWV)}, {s(sWV)}, 1
    s_lshr_b32 {s(sGA)}, {s(sY)}, 4
    s_xor_b32 {s(sGA)}, {s(sGA)}, 1
    s_and_b32 {s(sT0)}, {s(sY)}, 15
    s_lshl4_add_u32 {s(sS)}, {s(sX)}, {s(sT0)}
    s_and_b32 {s(sW)}, {s(sWV)}, 3
    v_mov_b32 {v(VFL)}, {L_FL}
    v_mov_b32 {v(VONE)}, 1
    s_mov_b32 {s(sFC)}, 0x1000000
    ''')


Wq, XR = 128, 120
I(f'''
v_lshrrev_b32 v2, 4, v0
s_and_b32 {s(sX)}, s2, 7
v_and_b32 v1, 15, v0
s_lshr_b32 {s(sY)}, s2, 3
v_lshl_add_u32 v5, {s(sX)}, 2, v2
v_lshl_add_u32 v5, v5, 9, {s(sY)}
v_lshl_add_u32 v5, v5, 4, v1
v_lshlrev_b32 v3, 4, v0
v_lshlrev_b32 v5, 4, v5
s_movk_i32 {s(sT2)}, 0x4000
s_waitcnt lgkmcnt(0)
global_load_dwordx4 {v(XR, 4)}, v3, {P(pX)}
s_add_u32 s16, {s(pWQ)}, 0x2000
s_addc_u32 s17, {s(pWQ + 1)}, 0
''')
for k in range(16):
    I(f'global_load_dwordx4 {v(Wq + 4 * k, 4)}, v5, {P(16 if k & 1 else pWQ)}{NT}')
    if k & 1 and k < 15:
        I(f'v_add_u32 v5, {s(sT2)}, v5')
common(False)
if args.bpos == 0:
    I('s_barrier')
I('s_waitcnt lgkmcnt(0)')
load_epoch()
if args.pw & 1:
    I(f's_lshl_b32 {s(sT0)}, s2, 9')
    I(f's_add_u32 {s(sT0)}, {s(sT0)}, {W_H1}')
    I(f'v_add_u32 v12, {s(sT0)}, v3')
    for e in range(4):
        I(f'v_mov_b32 {v(REC + e)}, 0')
    I('s_mov_b32 exec_hi, 0')
    I(f'global_store_dwordx4 v12, {v(REC, 4)}, {P(pWS)} sc1')
    I('s_mov_b64 exec, -1')
TS(1)
build_sel()
I(f'''
v_add_u32 v10, {L_XN}, v3
s_lshl_b32 {s(sT0)}, {s(sJ)}, 7
s_add_u32 {s(sT0)}, {s(sT0)}, {L_XN}
v_lshl_add_u32 v11, v2, 5, {s(sT0)}
s_lshl_b32 {s(sT0)}, s2, 9
s_add_u32 {s(sT0)}, {s(sT0)}, {W_H1}
v_add_u32 v12, {s(sT0)}, v3
s_mov_b32 {s(sT3)}, 0xffff0000
s_mov_b32 {s(sK0)}, 0x07060501
s_mov_b32 {s(sK1)}, 0x07060502
s_mov_b32 {s(sK2)}, 0x07060503
''')
F, Dd, t0, t1, t2, t3, PK = 96, 104, 112, 113, 114, 115, 116
I(f's_waitcnt vmcnt({(16, 19, 17)[args.top] + (args.pw & 1)})')
if args.bpos == 1:
    I('s_barrier')
TS(2)
if args.ln:
    pk = lambda r: v(r, 2)
    I(f'v_readfirstlane_b32 {s(sT0)}, {v(XR)}')
    for i in range(4):
        I(f'v_lshlrev_b32 {v(F + 2 * i)}, 16, {v(XR + i)}')
        I(f'v_and_b32 {v(F + 2 * i + 1)}, {s(sT3)}, {v(XR + i)}')
    I(f's_lshl_b32 {s(sT0)}, {s(sT0)}, 16')
    I(f's_mov_b32 {s(sT1)}, {s(sT0)}')
    for i in range(4):
        I(f'v_pk_add_f32 {pk(Dd + 2 * i)}, {pk(F + 2 * i)}, {P(sT0)} neg_lo:[0,1] neg_hi:[0,1]')
    I(f"""
    v_pk_add_f32 {pk(t0)}, {pk(Dd)}, {pk(Dd + 2)}
    v_pk_mul_f32 {pk(t2)}, {pk(Dd)}, {pk(Dd)}
    v_pk_add_f32 {pk(PK)}, {pk(Dd + 4)}, {pk(Dd + 6)}
    v_pk_fma_f32 {pk(t2)}, {pk(Dd + 2)}, {pk(Dd + 2)}, {pk(t2)}
    v_pk_add_f32 {pk(t0)}, {pk(t0)}, {pk(PK)}
    v_pk_fma_f32 {pk(t2)}, {pk(Dd + 4)}, {pk(Dd + 4)}, {pk(t2)}
    v_add_f32 {v(t0)}, {v(t0)}, {v(t1)}
    v_pk_fma_f32 {pk(t2)}, {pk(Dd + 6)}, {pk(Dd + 6)}, {pk(t2)}
    v_add_f32 {v(t2)}, {v(t2)}, {v(t3)}
    """)
    if args.bpos == 2:
        I('s_barrier')
    row_allreduce('v_add_f32', [t0, t2])
    for m in ('row_bcast:15 row_mask:0xa', 'row_bcast:31 row_mask:0xc'):
        for r_ in (t0, t2):
            I(f'v_add_f32 {v(r_)}, {v(r_)}, {v(r_)} {m}')
    I(f'v_mov_b32 {v(t1)}, 0x3b000000')
    I(f'v_readlane_b32 {s(sT1)}, {v(t0)}, 63')
    I(f'v_readlane_b32 {s(sT2)}, {v(t2)}, 63')
    rnd = lambda r_: [f'v_cvt_pk_bf16_f32 {v(r_)}, {v(r_)}, {v(r_)}', f'v_and_b32 {v(r_)}, {s(sT3)}, {v(r_)}']
    I(f"""
    v_mul_f32 {v(t0)}, {s(sT1)}, {v(t1)}
    v_mul_f32 {v(t2)}, {s(sT2)}, {v(t1)}
    v_fma_f32 {v(t2)}, -{v(t0)}, {v(t0)}, {v(t2)}
    v_add_f32 {v(t0)}, {s(sT0)}, {v(t0)}
    v_max_f32 {v(t2)}, 0, {v(t2)}
    """)
    c1 = rnd(t0) + [f'v_pk_add_f32 {pk(Dd + 2 * i)}, {pk(F + 2 * i)}, {pk(t0)} op_sel_hi:[1,0] neg_lo:[0,1] neg_hi:[0,1]' for i in range(4)]
    c1 += [f'v_cvt_pk_bf16_f32 {v(PK + i)}, {v(Dd + 2 * i)}, {v(Dd + 2 * i + 1)}' for i in range(4)]
    for i in range(4):
        c1 += [f'v_lshlrev_b32 {v(Dd + 2 * i)}, 16, {v(PK + i)}', f'v_and_b32 {v(Dd + 2 * i + 1)}, {s(sT3)}, {v(PK + i)}']
    c2 = rnd(t2) + [f'v_add_f32 {v(t2)}, 0x3727c5ac, {v(t2)}'] + rnd(t2) + [f'v_sqrt_f32 {v(t2)}, {v(t2)}'] + rnd(t2) + [f'v_rcp_f32 {v(t2)}, {v(t2)}']
    while c1 or c2:
        for c_ in (c2, c1, c1):
            if c_:
                I(c_.pop(0))
    for i in range(4):
        I(f'v_pk_mul_f32 {pk(Dd + 2 * i)}, {pk(Dd + 2 * i)}, {pk(t2)} op_sel_hi:[1,0]')
    for i in range(4):
        I(f'v_cvt_pk_bf16_f32 {v(PK + i)}, {v(Dd + 2 * i)}, {v(Dd + 2 * i + 1)}')
else:
    for i in range(4):
        I(f'v_lshlrev_b32 {v(F + 2 * i)}, 16, {v(XR + i)}')
        I(f'v_and_b32 {v(F + 2 * i + 1)}, {s(sT3)}, {v(XR + i)}')
    I(f'''
    v_add_f32 {v(t0)}, {v(F)}, {v(F + 1)}
    v_add_f32 {v(t1)}, {v(F + 2)}, {v(F + 3)}
    v_add_f32 {v(t2)}, {v(F + 4)}, {v(F + 5)}
    v_add_f32 {v(t3)}, {v(F + 6)}, {v(F + 7)}
    v_add_f32 {v(t0)}, {v(t0)}, {v(t1)}
    v_add_f32 {v(t2)}, {v(t2)}, {v(t3)}
    v_add_f32 {v(t0)}, {v(t0)}, {v(t2)}
    ''')
    row_allreduce('v_add_f32', [t0])
    I(f'v_add_f32 {v(t0)}, {v(t0)}, {v(t0)} row_bcast:15 row_mask:0xa')
    I(f'v_add_f32 {v(t0)}, {v(t0)}, {v(t0)} row_bcast:31 row_mask:0xc')
    I(f'v_mov_b32 {v(t1)}, 0x3b000000')
    I(f'v_readlane_b32 {s(sT0)}, {v(t0)}, 63')
    I(f'v_mul_f32 {v(t1)}, {s(sT0)}, {v(t1)}')
    for i in range(8):
        I(f'v_sub_f32 {v(Dd + i)}, {v(F + i)}, {v(t1)}')
    if args.bpos == 2:
        I('s_barrier')
    I(f'v_mul_f32 {v(t0)}, {v(Dd)}, {v(Dd)}')
    I(f'v_mul_f32 {v(t2)}, {v(Dd + 1)}, {v(Dd + 1)}')
    for i in range(2, 8, 2):
        I(f'v_fmac_f32 {v(t0)}, {v(Dd + i)}, {v(Dd + i)}')
        I(f'v_fmac_f32 {v(t2)}, {v(Dd + i + 1)}, {v(Dd + i + 1)}')
    I(f'v_add_f32 {v(t0)}, {v(t0)}, {v(t2)}')
    I(f'v_cvt_pk_bf16_f32 {v(t1)}, {v(t1)}, {v(t1)}')
    I(f'v_and_b32 {v(t1)}, {s(sT3)}, {v(t1)}')
    row_allreduce('v_add_f32', [t0], steps=(8,))
    for i in range(0, 4):
        I(f'v_sub_f32 {v(Dd + i)}, {v(F + i)}, {v(t1)}')
    row_allreduce('v_add_f32', [t0], steps=(4,))
    for i in range(4, 8):
        I(f'v_sub_f32 {v(Dd + i)}, {v(F + i)}, {v(t1)}')
    row_allreduce('v_add_f32', [t0], steps=(2,))
    for i in range(0, 2):
        I(f'v_cvt_pk_bf16_f32 {v(PK + i)}, {v(Dd + 2 * i)}, {v(Dd + 2 * i + 1)}')
    row_allreduce('v_add_f32', [t0], steps=(1,))
    for i in range(2, 4):
        I(f'v_cvt_pk_bf16_f32 {v(PK + i)}, {v(Dd + 2 * i)}, {v(Dd + 2 * i + 1)}')
    I(f'v_add_f32 {v(t0)}, {v(t0)}, {v(t0)} row_bcast:15 row_mask:0xa')
    for i in range(0, 2):
        I(f'v_lshlrev_b32 {v(Dd + 2 * i)}, 16, {v(PK + i)}')
        I(f'v_and_b32 {v(Dd + 2 * i + 1)}, {s(sT3)}, {v(PK + i)}')
    I(f'v_add_f32 {v(t0)}, {v(t0)}, {v(t0)} row_bcast:31 row_mask:0xc')
    for i in range(2, 4):
        I(f'v_lshlrev_b32 {v(Dd + 2 * i)}, 16, {v(PK + i)}')
        I(f'v_and_b32 {v(Dd + 2 * i + 1)}, {s(sT3)}, {v(PK + i)}')
    I(f'v_mov_b32 {v(t1)}, 0x3b000000')
    I(f'v_readlane_b32 {s(sT0)}, {v(t0)}, 63')
    I(f'''
    v_mul_f32 {v(t1)}, {s(sT0)}, {v(t1)}
    v_cvt_pk_bf16_f32 {v(t1)}, {v(t1)}, {v(t1)}
    v_and_b32 {v(t1)}, {s(sT3)}, {v(t1)}
    v_add_f32 {v(t1)}, 0x3727c5ac, {v(t1)}
    v_cvt_pk_bf16_f32 {v(t1)}, {v(t1)}, {v(t1)}
    v_and_b32 {v(t1)}, {s(sT3)}, {v(t1)}
    v_sqrt_f32 {v(t1)}, {v(t1)}
    v_cvt_pk_bf16_f32 {v(t1)}, {v(t1)}, {v(t1)}
    v_and_b32 {v(t1)}, {s(sT3)}, {v(t1)}
    v_rcp_f32 {v(t1)}, {v(t1)}
    ''')
    for i in range(8):
        I(f'v_mul_f32 {v(Dd + i)}, {v(Dd + i)}, {v(t1)}')
    for i in range(4):
        I(f'v_cvt_pk_bf16_f32 {v(PK + i)}, {v(Dd + 2 * i)}, {v(Dd + 2 * i + 1)}')
I(f'ds_write_b128 v10, {v(PK, 4)}')
I(f'ds_read_b128 {v(XP, 4)}, v11')
I(f'ds_read_b128 {v(XP + 4, 4)}, v11 offset:16')
if args.bpos == 3:
    I('s_barrier')
epoch_ready()
TS(3)
diag_stage(16, lambda k: Wq + 4 * k, args.pw & 1)
for i in range(3):
    I(f'v_perm_b32 {v(REC + i)}, {v(ACC0 + i)}, {v(ACC0 + 3)}, {s(sK0 + i)}')
I('s_mov_b32 exec_hi, 0')
I(f'global_store_dwordx4 v12, {v(REC, 4)}, {P(pWS)} sc1')
I(f'ds_write_b128 v10, {v(ACC0, 4)} offset:{L_CX - L_XN}')
TS(4)
flag_add(F_F0)
I('s_branch L_QG')

a.label('L_F1')
common()
I(f's_lshl_b32 {s(sT0)}, {s(sJ)}, 19')
I(f's_lshl_b32 {s(sT1)}, {s(sH)}, 8')
I(f's_add_u32 {s(sT0)}, {s(sT0)}, {s(sT1)}')
WK, G1, QF, DK = 128, 192, 96, 112
I(f'''
v_lshlrev_b32 v6, 1, v2
v_xor_b32 v6, v6, v1
v_lshlrev_b32 v5, 16, v2
v_lshl_add_u32 v5, v6, 4, v5
v_add_u32 v5, {s(sT0)}, v5
v_xor_b32 v6, 0x80, v5
v_add_u32 v6, 0x40000, v6
s_mov_b32 {s(sT2)}, 0x8000
s_mov_b32 {s(sT3)}, {(-3 * 8192) & 0xffffffff}
s_mov_b32 m0, {L_QA}
s_waitcnt lgkmcnt(0)
''')
load_epoch()
if args.pw & 2:
    I(f's_lshl_b32 {s(sT1)}, s2, 7')
    I(f's_add_u32 {s(sT1)}, {s(sT1)}, {W_H2}')
    I(f'v_add_u32 v12, {s(sT1)}, v3')
    for e in range(4):
        I(f'v_mov_b32 {v(20 + e)}, 0')
I('s_barrier')
if args.pw & 2:
    I('s_mov_b64 exec, 0xff')
    I(f'global_store_dwordx4 v12, v[20:23], {P(pWS)} sc1')
    I('s_mov_b64 exec, -1')
for k in range(16):
    I(f'global_load_lds_dwordx4 {"v6" if k & 1 else "v5"}, {P(pWUK)}{NT}')
    if k < 15:
        I('s_add_u32 m0, m0, 0x400')
    if k < 14:
        I(f'v_add_u32 {"v6" if k & 1 else "v5"}, {s(sT3 if k & 2 else sT2)}, {"v6" if k & 1 else "v5"}')
TS(1)
I(f'''
v_and_b32 v5, 7, v1
v_lshlrev_b32 v5, 1, v5
v_xor_b32 v5, v5, v2
v_lshlrev_b32 v5, 4, v5
v_lshl_add_u32 v5, v1, 8, v5
v_add_u32 v24, {L_QA}, v5
v_xor_b32 v25, 64, v24
v_xor_b32 v26, 0x80, v24
v_xor_b32 v27, 0xc0, v24
s_lshl_b32 {s(sT0)}, {s(sH)}, 12
s_add_u32 {s(sT0)}, {s(sT0)}, {W_H1}
v_add_u32 v8, {s(sT0)}, v3
s_lshl_b32 {s(sT1)}, {s(sJ)}, 9
v_add_u32 v6, {s(sT1)}, v3
s_movk_i32 {s(sT1)}, 0xfff
v_and_b32 v16, {s(sT1)}, v6
v_add_u32 v6, 0x400, v6
v_and_b32 v17, {s(sT1)}, v6
v_add_u32 v6, 0x400, v6
v_and_b32 v18, {s(sT1)}, v6
v_add_u32 v6, 0x400, v6
v_and_b32 v19, {s(sT1)}, v6
v_add_u32 v32, {s(sT0)}, v16
v_add_u32 v33, {s(sT0)}, v17
v_add_u32 v34, {s(sT0)}, v18
v_add_u32 v35, {s(sT0)}, v19
v_add_u32 v9, {L_CX}, v3
v_and_b32 v10, 1, v2
v_lshlrev_b32 v10, 1, v10
v_lshrrev_b32 v11, 1, v2
v_add_u32 v10, v10, v11
v_lshl_add_u32 v10, v1, 2, v10
v_lshlrev_b32 v10, 2, v10
v_add_u32 v10, {L_CL}, v10
v_lshlrev_b32 v11, 4, v2
v_add_u32 v11, {L_CL}, v11
s_lshl_b32 {s(sT0)}, s2, 7
s_add_u32 {s(sT0)}, {s(sT0)}, {W_H2}
v_add_u32 v12, {s(sT0)}, v3
v_add_u32 v37, 8, v1
s_mov_b32 {s(sM2)}, {EMB}
s_mov_b32 {s(sM2 + 1)}, {~EMB & 0xffffffff}
s_mov_b32 {s(sK0)}, 0x0c04000c
s_mov_b32 {s(sK1)}, 0x0402010c
s_mov_b32 {s(sK2)}, 0x07060302
s_mov_b32 {s(sM3 + 1)}, 0x10000
''')
epoch_ready()
I(f'v_mov_b32 v22, {s(sEP)}')
I(f's_mul_i32 {s(sM3)}, {s(sEP)}, {(2 * HASH) & 0xffffffff}')
I(f's_add_u32 {s(sM3)}, {s(sM3)}, {HASH}')
I('s_setprio 1')
NP = args.np
for p_ in range(NP):
    I(f'v_mov_b32 {v(G1 + 16 * p_ + 3)}, v22')
    for e in range(3):
        I(f'v_mov_b32 {v(G1 + 16 * p_ + e)}, 0')


def h1_loads(p_):
    for k in range(4):
        if k == 0:
            I('s_mov_b32 exec_lo, 0')
        I(f'global_load_dwordx4 {v(G1 + 16 * p_ + 4 * k, 4)}, {v(32 + k)}, {P(pWS)} sc1')
        if k == 0:
            I('s_mov_b32 exec_lo, -1')


if args.hint1:
    assert NP == 1
    I(f's_lshl_b32 {s(sT0)}, {s(sH)}, 12')
    I(f's_add_u32 {s(sT0)}, {s(sT0)}, {W_H1 + 508}')
    I(f's_add_u32 {s(sB)}, {s(pWS)}, {s(sT0)}')
    I(f's_addc_u32 {s(sB + 1)}, {s(pWS + 1)}, 0')
    HO = [4, 5, 6, 7, 8, 9, 12]
    for k in range(7):
        I(f's_add_u32 {s(HO[k])}, {s(sJ)}, {k + 1}')
        I(f's_and_b32 {s(HO[k])}, {s(HO[k])}, 7')
        I(f's_lshl_b32 {s(HO[k])}, {s(HO[k])}, 9')
    scalar_poll([s(r) for r in HO])
elif args.hr:
    flag_wait(C_ER, 4)
else:
    I(f's_waitcnt vmcnt({args.hv})')
TS(2)
h1_loads(0)
I('s_waitcnt vmcnt(4)')
for tau in range(4):
    for t in range(4):
        I(f'ds_read_b128 {v(WK + 16 * tau + 4 * t, 4)}, {v(24 + t)} offset:{4096 * tau}')
for p_ in range(1, NP):
    if p_ > 1 and args.sl:
        I(f's_sleep {args.sl}')
    h1_loads(p_)
Q4 = 40
for e in range(4):
    I(f'v_mov_b32 {v(Q4 + 4 + e)}, 0')
flag_wait(F_F0, 1)
I('s_mov_b32 exec_hi, 0')
I(f'ds_read_b128 {v(Q4 + 4, 4)}, v9')
I('s_mov_b64 exec, -1')
I(f's_mov_b32 {s(sCNT)}, {args.spin}')
I('s_waitcnt lgkmcnt(0)')
a.label('L_F1_poll')
for p_ in range(NP):
    G = G1 + 16 * p_
    I(f's_sub_u32 {s(sCNT)}, {s(sCNT)}, 1')
    I(f's_waitcnt vmcnt({4 * (NP - 1)})')
    I(f'v_xor_b32 v16, {v(G + 3)}, v22')
    for k in range(1, 4):
        I(f'v_bitop3_b32 v16, {v(G + 4 * k + 3)}, v22, v16 bitop3:0xbe')
    I('v_cmp_ne_u32 vcc, 0, v16')
    a.B(f's_cbranch_scc1 L_F1_go{p_}')
    a.B(f's_cbranch_vccz L_F1_go{p_}')
    h1_loads(p_)
I('s_branch L_F1_poll')
for p_ in reversed(range(NP)):
    G = G1 + 16 * p_
    a.label(f'L_F1_go{p_}')
    for k in range(4):
        I(f'v_perm_b32 {v(G + 4 * k + 3)}, {v(G + 4 * k + 1)}, {v(G + 4 * k)}, {s(sK0)}')
    for k in range(4):
        I(f'v_perm_b32 {v(G + 4 * k + 3)}, {v(G + 4 * k + 2)}, {v(G + 4 * k + 3)}, {s(sK1)}')
    for e in (0, 2):
        I(f'v_pk_add_f32 {v(Q4 + 4 + e, 2)}, {v(Q4 + 4 + e, 2)}, {v(G + e, 2)}')
        I(f'v_pk_add_f32 {v(G + 4 + e, 2)}, {v(G + 4 + e, 2)}, {v(G + 8 + e, 2)}')
    for e in (0, 2):
        I(f'v_pk_add_f32 {v(Q4 + 4 + e, 2)}, {v(Q4 + 4 + e, 2)}, {v(G + 12 + e, 2)}')
    for e in (0, 2):
        I(f'v_pk_add_f32 {v(Q4 + e, 2)}, {v(Q4 + 4 + e, 2)}, {v(G + 4 + e, 2)}')
    if p_:
        I('s_branch L_F1_go')
a.label('L_F1_go')
TS(3)
TSN()
G1 = Q4
I(f'v_permlane32_swap_b32 {v(G1)}, {v(G1 + 2)}')
I(f'v_permlane32_swap_b32 {v(G1 + 1)}, {v(G1 + 3)}')
I(f'v_add_f32 {v(G1)}, {v(G1)}, {v(G1 + 2)}')
I(f'v_add_f32 {v(G1 + 1)}, {v(G1 + 1)}, {v(G1 + 3)}')
I(f'v_cvt_pk_bf16_f32 v16, {v(G1)}, {v(G1 + 1)}')
I('ds_write_b32 v10, v16')
for t in range(4):
    I(f'ds_read_b128 {v(QF + 4 * t, 4)}, v11 offset:{64 * t}')
for half in ((0, 1), (2, 3)):
    for t in range(4):
        if half[0] == 0:
            I(f's_waitcnt lgkmcnt({3 - t})')
        for tau in half:
            I(f'{MFMA} {v(DK + 4 * tau, 4)}, {v(QF + 4 * t, 4)}, {v(WK + 16 * tau + 4 * t, 4)}, {"0" if t == 0 else v(DK + 4 * tau, 4)}')


def q_pack(k):
    lo, hi = DK + 8 * k, DK + 8 * k + 4
    I(f'v_cvt_pk_bf16_f32 {v(24 + k)}, {v(lo)}, {v(hi)}')
    I(f'v_add_u32 {v(lo)}, {s(sM3 + 1)}, {v(lo)}')
    I(f'v_add_u32 {v(hi)}, {s(sM3 + 1)}, {v(hi)}')
    I(f'v_perm_b32 {v(20 + k)}, {v(hi)}, {v(lo)}, {s(sK2)}')
    I(f'v_and_b32 {v(20 + k)}, {s(sM2 + 1)}, {v(20 + k)}')


q_pack(0)
I('v_mov_b32 v22, v24 row_ror:8')
q_pack(1)
I('v_add_u32 v16, v20, v21')
I('v_mov_b32 v23, v25 row_ror:8')
for st in OCT:
    I(f'v_add_u32 v16, v16, v16 {st}')
I(f'v_sub_u32 v16, {s(sM3)}, v16')
I('v_lshrrev_b32 v17, v1, v16')
I('v_lshrrev_b32 v16, v37, v16')
I(f'v_and_or_b32 v20, v17, {s(sM2)}, v20')
I(f'v_and_or_b32 v21, v16, {s(sM2)}, v21')
I('s_mov_b64 exec, 0xff')
I(f'global_store_dwordx4 v12, v[20:23], {P(pWS)} sc1')
TS(4)
I('s_setprio 0')
flag_add(F_H2)
I('s_waitcnt vmcnt(0)')
flag_add(F_H2)
a.label('L_PV1')
tr_addr()
pv_setup()
pv_prewrite(False)


def scalar_prefetch():
    I(f'''
    s_lshr_b32 {s(sHT)}, {s(sY)}, 3
    s_lshl2_add_u32 {s(sHT)}, {s(sX)}, {s(sHT)}
    s_bfe_u32 {s(sDI)}, {s(sY)}, 0x10002
    s_lshl1_add_u32 {s(sHT)}, {s(sHT)}, {s(sDI)}
    s_and_b32 {s(sCI)}, {s(sY)}, 3
    s_lshr_b32 {s(sT1)}, {s(sWV)}, 1
    s_lshl1_add_u32 {s(sCI)}, {s(sCI)}, {s(sT1)}
    ''')
    for bit, ptr, sh_ci, sh_ht, step in ((1, pWUV, 19, 7, 8192), (2, pWO, 13, 16, 128)):
        if not args.spf & bit:
            continue
        lab = a.newlabel('L_spf')
        I(f's_lshl_b32 {s(sT0)}, {s(sCI)}, {sh_ci}')
        I(f's_lshl_b32 {s(sT1)}, {s(sHT)}, {sh_ht}')
        I(f's_add_u32 {s(sT0)}, {s(sT0)}, {s(sT1)}')
        I(f's_add_u32 {s(sB)}, {s(ptr)}, {s(sT0)}')
        I(f's_addc_u32 {s(sB + 1)}, {s(ptr + 1)}, 0')
        I(f's_mov_b32 {s(sCNT)}, 8')
        a.label(lab)
        for k in range(8):
            I(f's_load_dword{"x2 s[62:63]" if args.spx else " s62"}, {P(sB)}, {k * step + args.spx}')
        I(f's_add_u32 {s(sB)}, {s(sB)}, {8 * step}')
        I(f's_addc_u32 {s(sB + 1)}, {s(sB + 1)}, 0')
        I(f's_sub_u32 {s(sCNT)}, {s(sCNT)}, 1')
        I(f's_cmp_lg_u32 {s(sCNT)}, 0')
        I(f's_cbranch_scc1 {lab}')
    TS(12)


for i in range(args.pre):
    if args.spf and i == args.spw:
        scalar_prefetch()
    tr_slot(i)
I('s_branch L_PVs')

a.label('L_F23')
common()
I(f's_cmp_eq_u32 {s(sWV)}, 2')
I('s_cbranch_scc0 L_F3')
I(f'''
v_mov_b32 v16, 0
v_mov_b32 v17, 0
v_mov_b32 v18, 0
v_mov_b32 v19, 0
v_and_b32 v20, 3, v0
v_lshl_add_u32 v20, v20, 4, {v(VFL)}
ds_write_b128 v20, v[16:19]
v_lshlrev_b32 v20, 2, v1
v_add_u32 v20, {L_MA}, v20
v_mov_b32 v21, 0xff800000
ds_write_b32 v20, v21
''')
a.label('L_F3')
HFG, B1R = 24, 28
W1T = lambda k: 56 + 4 * k if k < 6 else 8 if k == 6 else 4
I('s_waitcnt lgkmcnt(0)')
load_epoch()
if args.ee:
    I('s_waitcnt lgkmcnt(0)')
I('s_barrier')
epoch_ready()
I(f's_cmp_eq_u32 {s(sWV)}, 2')
I('s_cbranch_scc1 L_F2')


def ffn_w1(dst):
    I(f"""
    s_and_b32 {s(sT3)}, s2, 15
    s_mul_i32 {s(sT0)}, {s(sT3)}, {32 * 3584}
    s_lshr_b32 {s(sT1)}, s2, 4
    s_lshl_b32 {s(sT1)}, {s(sT1)}, 8
    s_add_u32 {s(sT0)}, {s(sT0)}, {s(sT1)}
    v_mul_u32_u24 v12, {8 * 3584}, v2
    v_lshl_add_u32 v12, v1, 4, v12
    v_add_u32 v12, {s(sT0)}, v12
    s_movk_i32 {s(sT2)}, {2 * 3584}
    """)
    for k in range(8):
        I(f'global_load_dwordx4 {v(dst(k), 4)}, v12, {P(pW1)} offset:{3584 * (k & 1)}{NT}')
        if k & 1 and k < 7:
            I(f'v_add_u32 v12, {s(sT2)}, v12')


def ffn_rest(dst, younger):
    global AT, SEL
    AT, SEL = 128, 136
    I(f"""
    s_and_b32 {s(sT3)}, s2, 15
    s_lshr_b32 {s(sT1)}, s2, 4
    s_lshl_b32 {s(sT1)}, {s(sT1)}, 8
    s_lshl_b32 {s(sT3)}, {s(sT3)}, 6
    s_add_u32 {s(sT0)}, {s(sT3)}, {L_XN}
    v_lshl_add_u32 v144, v2, 4, {s(sT0)}
    ds_read_b128 {v(XP, 4)}, v144
    s_lshl_b32 {s(sT0)}, {s(sT1)}, 6
    s_add_u32 {s(sT0)}, {s(sT0)}, {s(sT3)}
    s_lshl_b32 {s(sT0)}, {s(sT0)}, 1
    s_add_u32 {s(sT0)}, {s(sT0)}, {W_HF}
    v_lshrrev_b32 v145, 2, v0
    v_lshlrev_b32 v146, 11, v145
    v_and_b32 v147, 3, v0
    v_lshl_add_u32 v146, v147, 4, v146
    v_add_u32 v146, {s(sT0)}, v146
    v_cmp_gt_u32 {P(sM1)}, v0, 31
    s_and_b32 {s(sT0)}, s2, 3
    s_lshl_b32 {s(sT0)}, {s(sT0)}, 6
    s_add_u32 {s(sT0)}, {s(sT0)}, {s(sT1)}
    s_bfe_u32 {s(sT1)}, s2, 0x10002
    s_lshl3_add_u32 {s(sT0)}, {s(sT1)}, {s(sT0)}
    s_bfe_u32 {s(sT1)}, s2, 0x10003
    s_lshl2_add_u32 {s(sT0)}, {s(sT1)}, {s(sT0)}
    v_lshl_add_u32 v148, v147, 4, {s(sT0)}
    s_lshl_b32 {s(sT0)}, s2, 11
    s_add_u32 {s(sT0)}, {s(sT0)}, {W_HF}
    v_lshlrev_b32 v147, 4, v147
    v_lshl_add_u32 v147, v145, 7, v147
    v_add_u32 v147, {s(sT0)}, v147
    v_lshlrev_b32 v149, 3, v0
    v_add_u32 v149, {L_FF}, v149
    s_mov_b32 {s(sT3)}, 0xffff0000
    """)
    build_sel(150)
    I('s_waitcnt lgkmcnt(0)')
    diag_stage(8, dst, younger)
    I(f'v_cndmask_b32 {v(REC)}, {v(ACC0)}, {v(ACC0 + 2)}, {P(sM1)}')
    I(f'v_cndmask_b32 {v(REC + 1)}, {v(ACC0 + 1)}, {v(ACC0 + 3)}, {P(sM1)}')
    I(f'global_store_dwordx4 v146, {v(REC, 4)}, {P(pWS)} sc1')
    I(f'global_load_dword {v(B1R)}, v148, {P(pB1)}')
    TS(2)
    I(f's_mov_b32 {s(sCNT)}, {args.spin}')
    if args.ffn:
        I('s_waitcnt vmcnt(2)')
        flag_add(C_ACK)
        I('s_waitcnt vmcnt(0)')
    else:
        flag_wait(*((C_ISS, 4) if args.fr else (F_H2, 2)))
    a.label('L_TF')
    I(f'global_load_dwordx4 {v(HFG, 4)}, v147, {P(pWS)} sc1')
    I(f's_sub_u32 {s(sCNT)}, {s(sCNT)}, 1')
    I('s_waitcnt vmcnt(0)')
    I(f'v_cmp_ne_u32 vcc, {v(HFG + 2)}, {v(REC + 2)}')
    a.B('s_cbranch_scc1 L_TF_go')
    a.B('s_cbranch_vccnz L_TF')
    a.label('L_TF_go')
    TSN()
    row_allreduce('v_add_f32', [HFG, HFG + 1], steps=(4, 8))
    I(f'''
    v_permlane32_swap_b32 {v(HFG)}, {v(HFG + 1)}
    v_add_f32 {v(HFG)}, {v(HFG)}, {v(HFG + 1)}
    v_mov_b32 {v(HFG + 1)}, {v(HFG)}
    v_permlane16_swap_b32 {v(HFG)}, {v(HFG + 1)}
    v_lshlrev_b32 v16, 16, {v(B1R)}
    v_add_f32 {v(HFG)}, {v(HFG)}, {v(HFG + 1)}
    v_and_b32 v17, {s(sT3)}, {v(B1R)}
    v_cvt_pk_bf16_f32 {v(HFG)}, {v(HFG)}, {v(HFG)}
    v_cndmask_b32 v16, v16, v17, {P(sM1)}
    v_and_b32 {v(HFG)}, {s(sT3)}, {v(HFG)}
    v_add_f32 {v(HFG)}, {v(HFG)}, v16
    v_cvt_pk_bf16_f32 {v(HFG)}, {v(HFG)}, {v(HFG)}
    v_and_b32 {v(HFG)}, {s(sT3)}, {v(HFG)}
    v_max_f32 {v(HFG)}, 0, {v(HFG)}
    v_mul_f32 {v(HFG)}, {v(HFG)}, {v(HFG)}
    v_cvt_pk_bf16_f32 {v(HFG)}, {v(HFG)}, {v(HFG)}
    v_mov_b32 {v(HFG + 1)}, {v(HFG)}
    v_permlane32_swap_b32 {v(HFG)}, {v(HFG + 1)}
    ''')
    for g_ in range(4):
        for i in range(2):
            I(f'v_mov_b32 {v(HFG + 2 + i)}, {v(HFG + i)} row_newbcast:{g_} row_mask:{1 << g_}')
    I(f'ds_write_b64 v149, {v(HFG + 2, 2)}')
    TS(4)


if not args.ffn:
    I('s_cmp_ge_u32 s2, 224')
    I('s_cbranch_scc1 L_PV1')
    if args.pw & 8:
        I(f'''
        s_lshr_b32 {s(sT0)}, s2, 4
        s_lshl_b32 {s(sT0)}, {s(sT0)}, 8
        s_and_b32 {s(sT1)}, s2, 15
        s_add_u32 {s(sT0)}, {s(sT0)}, {s(sT1)}
        s_lshl_b32 {s(sT0)}, {s(sT0)}, 7
        s_add_u32 {s(sT0)}, {s(sT0)}, {W_HF}
        v_lshrrev_b32 v16, 3, v0
        v_lshlrev_b32 v16, 11, v16
        v_and_b32 v17, 7, v0
        v_lshl_add_u32 v16, v17, 4, v16
        v_add_u32 v16, {s(sT0)}, v16
        v_add_u32 v17, 0x4000, v16
        v_mov_b32 v20, 0
        v_mov_b32 v21, 0
        v_mov_b32 v22, 0
        v_mov_b32 v23, 0
        global_store_dwordx4 v16, v[20:23], {P(pWS)} sc1
        global_store_dwordx4 v17, v[20:23], {P(pWS)} sc1
        ''')
    flag_wait(F_F0, 1)
    ffn_w1(W1T)
    ffn_rest(W1T, 0)
I('s_branch L_PV1')

a.label('L_F2')
assert args.nopt and not args.probe and not args.pw0


def touch(base_code, offsets):
    I(base_code)
    I(f's_add_u32 {s(sB)}, {s(pWS)}, {s(sT0)}')
    I(f's_addc_u32 {s(sB + 1)}, {s(pWS + 1)}, 0')
    for o in offsets:
        I(f's_load_dword s61, {P(sB)}, {o}')


if args.pt & 8:
    touch(f's_lshr_b32 {s(sT0)}, s2, 4\ns_lshl_b32 {s(sT0)}, {s(sT0)}, 8\ns_and_b32 {s(sT1)}, s2, 15\ns_add_u32 {s(sT0)}, {s(sT0)}, {s(sT1)}\ns_lshl_b32 {s(sT0)}, {s(sT0)}, 7',
          [W_HF + p_ * 2048 for p_ in range(16)])
if args.pt & 4:
    touch(f's_lshl_b32 {s(sT0)}, s2, 12\ns_add_u32 {s(sT0)}, {s(sT0)}, {W_H5}', [z_ * 128 for z_ in range(32)])
if args.pt & 16:
    touch(f's_lshl_b32 {s(sT0)}, s2, 14\ns_add_u32 {s(sT0)}, {s(sT0)}, {W_H3}', [z_ * 128 for z_ in range(128)])
if args.pwq >= 2:
    I(f'''
    s_lshl_b32 {s(sT0)}, {s(sGA)}, 13
    s_add_u32 {s(sT0)}, {s(sT0)}, {s(sS)}
    s_lshl_b32 {s(sT0)}, {s(sT0)}, 8
    s_add_u32 {s(sT0)}, {s(sT0)}, {W_H3}
    v_lshlrev_b32 v6, 15, v2
    v_lshl_add_u32 v6, v1, 4, v6
    v_add_u32 v6, {s(sT0)}, v6
    s_mov_b32 {s(sT1)}, 0x20000
    ''')
    for k in range(16):
        I(f'global_store_dwordx4 v6, v[16:19], {P(pWS)} sc1')
        I(f'v_add_u32 v6, {s(sT1)}, v6')
        if args.pwq > 2:
            I(f's_waitcnt vmcnt({args.pwq - 2})')
if args.warm & 2:
    flag_wait(F_F0, 1)
    I('s_mov_b64 exec, 0')
    I('s_branch L_PVC')
    a.label('L_PVC_back')
    I('s_mov_b64 exec, -1')


a.label('L_QG')
G2, LA = 64, 56
I(f'''
s_lshr_b32 {s(sT1)}, {s(sWV)}, 1
s_lshl1_add_u32 {s(sT0)}, {s(sGA)}, {s(sT1)}
s_lshl_b32 {s(sT0)}, {s(sT0)}, 13
s_add_u32 {s(sT0)}, {s(sT0)}, {W_H2}
v_add_u32 v8, {s(sT0)}, v3
v_add_u32 v9, 0x1000, v8
v_and_b32 v10, 7, v0
v_add_u32 v11, 8, v10
v_lshlrev_b32 v6, 4, v10
v_lshl_add_u32 v6, v0, 8, v6
s_lshl_b32 {s(sT1)}, {s(sT1)}, 7
s_add_u32 {s(sT1)}, {s(sT1)}, {L_QA}
v_add_u32 {v(LA)}, {s(sT1)}, v6
s_mul_i32 {s(sM3)}, {s(sEP)}, {(HASH * 16) & 0xffffffff}
s_add_u32 {s(sM3)}, {s(sM3)}, {(HASH * 8) & 0xffffffff}
''')
for hd in range(1, 8):
    I(f'v_xor_b32 {v(LA + hd)}, {16 * hd}, {v(LA)}')
tr_addr()
pv_setup()
if args.pwq == 1:
    flag_wait(F_H2, 1)
pv_prewrite(True)
I('s_setprio 1')
if args.qa:
    flag_wait(C_ISS, 4)
flag_wait(F_H2, 1 + args.h2)
assert not args.hint2
if args.hint2:
    I(f's_cmp_eq_u32 {s(sWV)}, 0')
    I('s_cbranch_scc1 L_QG_w0')
    I(f's_xor_b32 {s(sT0)}, {s(sY)}, 16')
    I(f's_lshl_b32 {s(sT0)}, {s(sT0)}, 11')
    I(f's_add_u32 {s(sT0)}, {s(sT0)}, {W_H2}')
    I(f's_add_u32 {s(sB)}, {s(pWS)}, {s(sT0)}')
    I(f's_addc_u32 {s(sB + 1)}, {s(pWS + 1)}, 0')
    scalar_poll([k * 256 + 252 for k in range(8)])
    flag_add(F_HINT)
    I('s_branch L_QG_hd')
    a.label('L_QG_w0')
    flag_wait(F_HINT, 1)
    a.label('L_QG_hd')
TS(10)


def qa_loads():
    for k in range(8):
        I(f'global_load_dwordx4 {v(G2 + 4 * k, 4)}, {v(8 + (k >> 2))}, {P(pWS)} offset:{(k & 3) * 1024} sc1')


qa_loads()
for i in range(args.pre):
    tr_slot(i)
I(f's_mov_b32 {s(sCNT)}, {args.spin}')
a.label('L_QG_chk')
for k in range(8):
    d0, d1 = v(G2 + 4 * k), v(G2 + 4 * k + 1)
    I(f's_waitcnt vmcnt({7 - k})')
    I(f'v_and_b32 v6, {s(sK1)}, {d0}')
    I(f'v_and_b32 v7, {s(sK1)}, {d1}')
    I(f'v_xor_b32 {d0}, v6, {d0}')
    I(f'v_xor_b32 {d1}, v7, {d1}')
    I(f'ds_write_b128 {v(LA + k)}, {v(G2 + 4 * k, 4)}')
    I(f'v_lshl_add_u32 v24, v6, v10, {"0" if k == 0 else "v24"}')
    I('v_lshl_add_u32 v24, v7, v11, v24')
    I(f'v_add3_u32 v24, {d0}, {d1}, v24')
for st in OCT:
    I(f'v_add_u32 v24, v24, v24 {st}')
I(f's_sub_u32 {s(sCNT)}, {s(sCNT)}, 1')
I(f'v_cmp_ne_u32 vcc, {s(sM3)}, v24')
a.B('s_cbranch_scc1 L_QG_go')
a.B('s_cbranch_vccz L_QG_go')
I('s_waitcnt lgkmcnt(0)')
I('s_mov_b64 exec, vcc')
qa_loads()
I('s_branch L_QG_chk')
a.label('L_QG_go')
flag_add(C_QA)
I('s_setprio 0')
TS(11)
TSN()
a.label('L_PVs')
for i in range(args.pre, 4):
    if i == args.pwt - 1:
        pv_prewrite(False, True)
    tr_slot(i)

a.label('L_PV')
if args.ffn:
    I(f's_cmp_eq_u32 {s(sWV)}, 3')
    I(f's_cselect_b32 {s(sR)}, s2, 224')
    I(f's_cmp_ge_u32 {s(sR)}, 224')
    I('s_cbranch_scc1 L_PV_now1')
    ffn_w1(W1T)
    a.label('L_PV_now1')
if not args.bm3:
    TS(6)
    I('s_barrier')
if args.pp:
    I(f's_setprio {args.pp}')
I('s_barrier')
a.label('L_PVC')
for u in range(4):
    I(f'ds_read_b128 {v(PF + 4 * u, 4)}, {v(48 + u)}')
LW, MW = 32, 36
I(f'ds_read_b128 {v(LW, 4)}, v43')
I(f'ds_read_b128 {v(MW, 4)}, v42')
TS(7)
O = 16
cvt = lambda k: [f'v_cvt_pk_bf16_f32 {v(O + 4 * r + k)}, {v(ACC + 8 * k + r)}, {v(ACC + 8 * k + 4 + r)}' for r in range(4)]
R4 = range(4)
fill = {}


def place(first, ops):
    for i, t_ in enumerate(ops):
        fill.setdefault(first + i // 2, []).append(t_)


w0 = [f'v_add_f32 {v(LW + r)}, {v(LW + r)}, {v(LW + r)} row_ror:{st}' for st in (8, 4, 2, 1) for r in R4]
w0[0] = 's_waitcnt lgkmcnt(0)\n' + w0[0]
w1 = [f'v_cvt_f16_f32 {v(LW + r)}, {v(LW + r)}' for r in R4]
w1 += [f'v_and_or_b32 {v(LW + r)}, {v(LW + r)}, {s(sT0)}, {v(MW + r)}' for r in R4]
w1 += [f'v_lshrrev_b32 {v(LW + r)}, v1, {v(LW + r)}' for r in R4]
w2 = cvt(0) + [f'v_and_b32 {v(O + 4 * r)}, {s(sK2)}, {v(O + 4 * r)}' for r in R4]
w3 = cvt(1) + [f'v_bfi_b32 {v(O + 4 * r + 1)}, {s(sK1)}, {v(LW + r)}, {v(O + 4 * r + 1)}' for r in R4]
w3 += [f'v_add_u32 {v(CK + r)}, {v(O + 4 * r)}, {v(O + 4 * r + 1)}' for r in R4]
w3 += [f'v_add_u32 {v(CK + r)}, {v(CK + r)}, {v(CK + r)} row_ror:{st}' for st in (8, 4, 2, 1) for r in R4]
allw = w0 + w2 + w1 + w3
place(2, allw[:60])
I(f's_mov_b32 {s(sT0)}, 0xffff')
i = 0
for k in range(4):
    for u in range(4):
        for T in (2 * k, 2 * k + 1):
            if k == 0 and T == 0 and u < 2:
                I(f's_waitcnt lgkmcnt({5 - u})')
            I(f'{MFMA} {v(ACC + 4 * T, 4)}, {v(PF + 4 * u, 4)}, {v(BF + (u * 8 + T) * 4, 4)}, {"0" if u == 0 else v(ACC + 4 * T, 4)}')
            for t_ in fill.get(i, []):
                I(t_)
            i += 1
for t_ in allw[60:] + cvt(2):
    I(t_)
for r in range(4):
    I(f'v_sub_u32 {v(CK + r)}, {s(sK0)}, {v(CK + r)}')
    I(cvt(3)[r])
    I(f'v_lshrrev_b32 {v(CK + r)}, v1, {v(CK + r)}')
    I(f'v_and_or_b32 {v(O + 4 * r)}, {v(CK + r)}, {s(sK1)}, {v(O + 4 * r)}')
    if args.warm & 2 and r == 0:
        a.B('s_cbranch_execz L_PVC_back')
    I(f'global_store_dwordx4 {v(52 + r)}, {v(O + 4 * r, 4)}, {P(pWS)} {args.sf.replace("+", " ")}')
flag_add(C_ST)
TS(8)
if args.ffn:
    I('s_setprio 0')
    I(f's_cmp_ge_u32 {s(sR)}, 224')
    I('s_cbranch_scc1 L_PV_noffn')
    ffn_rest(W1T, 4)
    I('s_branch L_PV_end')
    a.label('L_PV_noffn')
I('s_waitcnt vmcnt(0)')
flag_add(C_ACK)
TS(9)
a.label('L_PV_end')
I('s_waitcnt lgkmcnt(0)')
ts_dump()
I('s_endpgm')

a.label('L_S')
common()
AF, QB, WUV, SA, MK, WO0, QAD = 128, 96, 48, 40, 36, 64, 80
WOR, PL, AW, AT2 = 128, 176, 208, 240
XR2, B2R, OA, W2T, HH = 46, 47, 104, 88, 124
sQ, sDL = sK1, sK2
WOq = lambda q: WO0 + 4 * q if q < 4 else WOR + 4 * (q - 4)
HTC = {0: f's_lshr_b32 {s(sHT)}, {s(sY)}, 3\ns_lshl2_add_u32 {s(sHT)}, {s(sX)}, {s(sHT)}',
       1: f's_and_b32 {s(sHT)}, {s(sY)}, 24\ns_add_u32 {s(sHT)}, {s(sX)}, {s(sHT)}',
       2: f's_bfe_u32 {s(sHT)}, {s(sY)}, 0x10003\ns_lshl1_add_u32 {s(sHT)}, {s(sX)}, {s(sHT)}\ns_and_b32 {s(sCI)}, {s(sY)}, 16\ns_add_u32 {s(sHT)}, {s(sHT)}, {s(sCI)}'}[args.htmap]
ROT = {0: '', 1: f's_lshl1_add_u32 {s(sT1)}, {s(sW)}, {s(sY)}', 2: f's_mov_b32 {s(sT1)}, {s(sY)}', 3: f's_lshl_b32 {s(sT1)}, {s(sW)}, 1'}[args.rot]
if args.rot:
    ROT += f'\ns_and_b32 {s(sT1)}, {s(sT1)}, 7\ns_lshl_b32 {s(sT1)}, {s(sT1)}, 12\nv_xor_b32 v4, {s(sT1)}, v4'
KS = {0: 12, 1: 16, 2: 19}[args.kmap]
if args.kmap == 0:
    I(f's_lshl_b32 {s(sT0)}, {s(sS)}, 17')
elif args.kmap == 1:
    I(f's_and_b32 {s(sT0)}, {s(sS)}, 15')
    I(f's_lshl_b32 {s(sT0)}, {s(sT0)}, 12')
    I(f's_lshl_b32 {s(sT1)}, {s(sX)}, 21')
    I(f's_add_u32 {s(sT0)}, {s(sT0)}, {s(sT1)}')
else:
    I(f's_lshl_b32 {s(sT0)}, {s(sS)}, 12')
I(f"""
s_lshl_b32 {s(sT1)}, {s(sW)}, {KS + 3}
s_add_u32 {s(sT0)}, {s(sT0)}, {s(sT1)}
s_lshl_b32 {s(sT1)}, {s(sW)}, 8
s_add_u32 {s(sT0)}, {s(sT0)}, {s(sT1)}
v_lshlrev_b32 v4, 1, v2
v_xor_b32 v4, v4, v1
v_lshlrev_b32 v4, 4, v4
v_lshl_add_u32 v4, v2, 10, v4
v_add_u32 v4, {s(sT0)}, v4
{ROT}
v_xor_b32 v26, 0x80, v4
{'v_xor_b32' if args.rot else 'v_add_u32'} v26, {1 << KS}, v26
s_mul_i32 {s(sT1)}, {s(sW)}, {32768 + 8192}
s_mov_b32 m0, {s(sT1)}
s_mov_b32 {s(sT2)}, {2 << KS}
s_mov_b32 {s(sQ)}, {s(sW)}
{HTC}
s_and_b32 {s(sCI)}, {s(sY)}, 3
s_bfe_u32 {s(sDI)}, {s(sY)}, 0x10002
v_and_b32 v5, 7, v1
v_lshlrev_b32 v5, 1, v5
v_xor_b32 v5, v5, v2
v_lshlrev_b32 v5, 4, v5
v_lshl_add_u32 v5, v1, 8, v5
s_lshl_b32 {s(sT1)}, {s(sW)}, 13
v_add_u32 v5, {s(sT1)}, v5
v_lshl_add_u32 v27, {s(sW)}, 2, {v(VFL)}
""")
I(f"""
s_lshr_b32 {s(sT0)}, {s(sW)}, 1
s_lshl1_add_u32 {s(sT0)}, {s(sCI)}, {s(sT0)}
s_lshl_b32 {s(sT0)}, {s(sT0)}, 19
s_and_b32 {s(sT3)}, {s(sW)}, 1
s_lshl_b32 {s(sT3)}, {s(sT3)}, 16
s_add_u32 {s(sT0)}, {s(sT0)}, {s(sT3)}
s_lshl1_add_u32 {s(sT3)}, {s(sHT)}, {s(sDI)}
s_lshl_b32 {s(sT1)}, {s(sT3)}, 7
s_add_u32 {s(sT0)}, {s(sT0)}, {s(sT1)}
v_lshrrev_b32 v8, 3, v0
v_lshlrev_b32 v8, 13, v8
v_and_b32 v9, 7, v0
v_lshl_add_u32 v8, v9, 4, v8
v_add_u32 v8, {s(sT0)}, v8
""")
I('s_waitcnt lgkmcnt(0)')
load_epoch()
if args.ee:
    I('s_waitcnt lgkmcnt(0)')
I('s_barrier')
I(f"""
s_lshl_b32 {s(sT0)}, {s(sT3)}, 16
s_lshl_b32 {s(sT1)}, {s(sW)}, 8
s_add_u32 {s(sT0)}, {s(sT0)}, {s(sT1)}
v_lshlrev_b32 v34, 12, v2
v_lshl_add_u32 v34, v1, 4, v34
v_add_u32 v34, {s(sT0)}, v34
""")
for b in range(4):
    I(f's_add_u32 {s(sT0)}, {s(sCI)}, {b}')
    I(f's_and_b32 {s(sT0)}, {s(sT0)}, 3')
    I(f's_lshl_b32 {s(sT0)}, {s(sT0)}, 14')
    I(f'v_add_u32 {v(28 + b)}, {s(sT0)}, v34')
build_masks(MK, 9, 10)
TS(1)


def s_setup():
    I(f"""
    v_lshlrev_b32 v10, 4, v1
    v_add_u32 v10, {L_MX}, v10
    s_lshl_b32 {s(sT0)}, {s(sW)}, 2
    v_add_u32 v9, {s(sT0)}, v10
    s_lshl_b32 {s(sT0)}, {s(sW)}, 10
    s_add_u32 {s(sT0)}, {s(sT0)}, {L_P}
    v_add_u32 v11, {s(sT0)}, v3
    v_lshlrev_b32 v33, 2, v1
    v_add_u32 v33, {L_MF}, v33
    s_lshl_b32 {s(sT0)}, {s(sW)}, 8
    s_add_u32 {s(sT0)}, {s(sT0)}, {L_LS}
    v_lshl_add_u32 v32, v0, 2, {s(sT0)}
    v_xor_b32 v6, v1, v2
    v_lshlrev_b32 v6, 4, v6
    v_lshl_add_u32 v6, v2, 8, v6
    """)
    for i in range(4):
        I(f's_add_u32 {s(sT0)}, {s(sW)}, {i}')
        I(f's_and_b32 {s(sT0)}, {s(sT0)}, 3')
        I(f's_lshl_b32 {s(sT0)}, {s(sT0)}, 12')
        I(f's_add_u32 {s(sT0)}, {s(sT0)}, {L_QA}')
        I(f'v_add_u32 {v(QAD + 2 * i)}, {s(sT0)}, v6')
        I(f'v_xor_b32 {v(QAD + 2 * i + 1)}, 64, {v(QAD + 2 * i)}')
    I(f"""
    s_bfe_u32 {s(sT0)}, s2, 0x20004
    s_and_b32 {s(sT1)}, s2, 3
    s_lshl2_add_u32 {s(sT0)}, {s(sT0)}, {s(sT1)}
    s_lshl_b32 {s(sT0)}, {s(sT0)}, 6
    s_bfe_u32 {s(sT1)}, s2, 0x10002
    s_lshl3_add_u32 {s(sT0)}, {s(sT1)}, {s(sT0)}
    s_bfe_u32 {s(sT1)}, s2, 0x10003
    s_lshl2_add_u32 {s(sT0)}, {s(sT1)}, {s(sT0)}
    v_and_b32 v35, 3, v0
    v_lshl_add_u32 v12, v35, 4, {s(sT0)}
    s_mov_b32 {s(sK0)}, 0x20000
    s_lshr_b32 {s(sT1)}, s2, 6
    s_lshl_b32 {s(sT1)}, {s(sT1)}, 10
    s_add_u32 {s(sT0)}, {s(sT0)}, {s(sT1)}
    s_cmp_lt_u32 s2, 224
    s_cselect_b32 {s(sR)}, -1, 0
    s_cselect_b32 {s(sT1)}, 0, 512
    s_sub_u32 {s(sT0)}, {s(sT0)}, {s(sT1)}
    s_lshl1_add_u32 {s(sT0)}, {s(sT0)}, {s(sW)}
    s_lshl_b32 {s(sT0)}, {s(sT0)}, 8
    v_lshlrev_b32 v34, 13, v2
    v_lshl_add_u32 v34, v1, 4, v34
    v_add_u32 v34, {s(sT0)}, v34
    """)


def dma_row(r):
    k = r & 7
    va = 'v26' if k & 1 else 'v4'
    I(f'global_load_lds_dwordx4 {va}, {P(pCKV)}{NT}')
    if r < 30:
        if k == 5:
            I(f's_lshl_b32 {s(sDL)}, {s(sQ)}, 8')
            I(f's_add_u32 {s(sQ)}, {s(sQ)}, 1')
            I(f's_and_b32 {s(sQ)}, {s(sQ)}, 3')
            I(f's_lshl_b32 {s(sT0)}, {s(sQ)}, 8')
            if args.rot:
                I(f's_xor_b32 {s(sDL)}, {s(sT0)}, {s(sDL)}')
                I(f's_or_b32 {s(sDL)}, {s(sDL)}, {6 << 12}')
            else:
                I(f's_sub_u32 {s(sDL)}, {s(sT0)}, {s(sDL)}')
                I(f's_sub_u32 {s(sDL)}, {s(sDL)}, {6 << KS}')
        if args.rot:
            I(f'v_xor_b32 {va}, {s(sDL) if k >= 6 else (6 << 12) if k & 2 else s(sT2)}, {va}')
        else:
            I(f'v_add_u32 {va}, {s(sDL if k >= 6 else sT2)}, {va}')
    if r < 31:
        if k == 7:
            I(f's_lshl2_add_u32 {s(sT0)}, {s(sQ)}, {s(sW)}')
            I(f's_lshl_b32 m0, {s(sT0)}, 13')
        else:
            I('s_add_u32 m0, m0, 0x400')
    if r == args.qa and r:
        flag_add(C_ISS)
    if r == args.hr and r:
        flag_add(C_ER)


def stage_addr(i):
    I(f's_add_u32 {s(sT1)}, {s(sW)}, {i}')
    I(f's_and_b32 {s(sT1)}, {s(sT1)}, 3')
    I(f's_lshl_b32 {s(sT1)}, {s(sT1)}, 15')
    I(f'v_add_u32 v16, {s(sT1)}, v5')
    for t in range(1, 4):
        I(f'v_xor_b32 {v(16 + t)}, {64 * t}, v16')


def stage_reads(i):
    for t in range(4):
        for tau in range(2):
            I(f'ds_read_b128 {v(AF + 32 * i + 8 * t + 4 * tau, 4)}, {v(16 + t)} offset:{4096 * tau}')


tail = []
for i in range(4):
    tail.append(f'global_load_dwordx4 {v(WO0 + 4 * i, 4)}, v28, {P(pWO)} offset:{1024 * i}{NT if args.nto else ""}')
for i in range(4):
    tail.append(f'global_load_dwordx4 {v(WUV + 4 * i, 4)}, v8, {P(pWUV)}{NT}' + (f'\nv_add_u32 v8, {s(sK0)}, v8' if i < 3 else ''))
for i in range(2):
    tail.append(f'global_load_dwordx4 {v(W2T + 4 * i, 4)}, v34, {P(pW2)} offset:{1024 * i}{NT}')
w2_loads = []
w2_late = []
if args.w2p:
    w2_late = tail[8:10]
    tail = tail[:8]
if args.ffn:
    w2_loads = tail[8:10]
    tail = tail[:8]
    args.ns = min(args.ns, 4) if args.ns == 6 else args.ns
wuv_loads = []
if args.wuv:
    assert args.tord == 1
    wuv_loads = tail[4:8]
    tail = tail[:4] + tail[8:]
elif args.tord == 1:
    tail = tail[:4] + tail[8:10] + tail[4:8]
if args.tord == 2:
    tail = tail[4:8] + tail[8:10] + tail[:4]
assert args.nt1 + args.ns + args.ne <= len(tail)

depth = lambda r: args.d1 if r < args.k1 else (args.d2 if r < args.k2 else args.d3)
for r in range(args.d1):
    dma_row(r)
s_setup()
I(f'global_load_dword v6, v12, {P(pX)}')
I(f'global_load_dword v7, v12, {P(pB2)}')
if args.warm & 1:
    I('s_mov_b64 exec, 0')
    I('s_branch L_SM_nb')
    a.label('L_SM_back')
    I('s_mov_b64 exec, -1')
I('s_mov_b64 vcc, -1')
stg = 0
for r in range(args.d1, 32):
    if args.tpos <= r < args.tpos + args.ne:
        I(tail.pop(0))
    if args.wuv == 2 and args.k1 <= r < args.k1 + 4:
        I(wuv_loads.pop(0))
    dma_row(r)
    d = depth(r)
    if args.dyn and r >= args.k1 and r < 31:
        lab = a.newlabel('L_dy')
        a.B(f's_cbranch_vccz {lab}')
        I(f'ds_read_b32 {v(VFT)}, {v(VFL)} offset:{4 * F_H2}')
        I(f's_waitcnt vmcnt({args.dyn}) lgkmcnt(0)')
        I(f'v_cmp_eq_u32 vcc, 0, {v(VFT)}')
        a.label(lab)
    if r + 1 > d and r < 31:
        I(f's_waitcnt vmcnt({d})')
        if r + 1 - d >= 8 * (stg + 1):
            flag_add(K0, 27)
            stage_addr(stg)
            stage_reads(stg)
            stg += 1
TS(2)
while stg < (3 if args.p2 < 0 else 2):
    stage_addr(stg)
    I(f's_waitcnt vmcnt({24 - 8 * stg})')
    flag_add(K0, 27)
    stage_reads(stg)
    stg += 1
for _ in range(args.nt1):
    I(tail.pop(0))
if args.qa == 32:
    flag_add(C_ISS)
stage_addr(3 if args.p2 < 0 else 2)
assert args.p2 < 0 or (stg == 2 and args.p2 <= 8 and args.p2 <= args.last)
epoch_ready()
I('s_setprio 2')
flag_wait(C_QA, 2)
TS(4)
LOOK = 4


def qa_read(t):
    I(f'ds_read_b128 {v(QB + 4 * (t & 7), 4)}, {v(QAD + 2 * (t >> 2) + (t & 1))} offset:{1024 * (t & 3)}')


def wo_rest():
    for q in range(4, 16):
        I(f'global_load_dwordx4 {v(WOq(q), 4)}, {v(28 + (q >> 2))}, {P(pWO)} offset:{1024 * (q & 3)}{NTS}')


def s_mfma(t):
    for tau in range(2):
        I(f'{MFMA} {v(SA + 4 * tau, 4)}, {v(AF + 8 * t + 4 * tau, 4)}, {v(QB + 4 * (t & 7), 4)}, {"0" if t == 0 else v(SA + 4 * tau, 4)}')


ldsq = []


def pickup(i):
    I(f's_waitcnt vmcnt({8 * (3 - i) + args.nt1})')
    stage_reads(i)
    ldsq.extend([('A', 4 * i + t) for t in range(4) for _ in range(2)])
    if i < 3 or not args.bm3:
        flag_add(K0, 27)
        ldsq.append(('F', i))
    if i == 2:
        stage_addr(3)
    else:
        TS(3)


waited = -1
for t in range(LOOK):
    qa_read(t)
    ldsq.append(('Q', t))
for t in range(16):
    if t == args.p2:
        pickup(2)
    if t == args.last:
        pickup(3)
    if t + LOOK < 16:
        qa_read(t + LOOK)
        ldsq.append(('Q', t + LOOK))
    need_ = max(i for i, o in enumerate(ldsq) if o in (('Q', t), ('A', t)))
    if need_ > waited:
        younger = min(15, len(ldsq) - 1 - need_)
        I(f's_waitcnt lgkmcnt({younger})')
        waited = len(ldsq) - 1 - younger
    s_mfma(t)
    if t >= 12:
        for _ in range((args.ns + 3 - (t - 12)) // 4):
            if tail:
                I(tail.pop(0))
TS(5)
a.label('L_SM')
I(f'''
s_mov_b32 {s(sT3)}, 0xffff0000
s_mov_b32 {s(sT0)}, 0x3db504f3
s_mov_b32 {s(sT1)}, 0x3fb8aa3b
v_max3_f32 v24, {v(SA)}, {v(SA + 1)}, {v(SA + 2)}
v_max3_f32 v25, {v(SA + 4)}, {v(SA + 5)}, {v(SA + 6)}
v_max3_f32 v24, v24, {v(SA + 3)}, {v(SA + 7)}
v_max_f32 v24, v24, v25
''')
if args.dsmax:
    I(f'ds_max_f32 v33, v24 offset:{L_MA - L_MF}')
else:
    cross_rows_allreduce('v_max_f32', 24, 25)
    I('ds_write_b32 v9, v24')
if args.mimic:
    round_pairs(SA, 8, 16)
I('s_waitcnt lgkmcnt(0)')
I('s_barrier')
a.label('L_SM_nb')
I(f'ds_read_b32 v24, v33 offset:{L_MA - L_MF}' if args.dsmax else 'ds_read_b128 v[20:23], v10')
for i in range(8):
    I(f'v_mul_f32 {v(SA + i)}, {s(sT0)}, {v(SA + i)}')
if args.mimic:
    round_pairs(SA, 8, 16)
I('s_waitcnt lgkmcnt(0)')
if not args.dsmax:
    I('v_max3_f32 v24, v20, v21, v22')
    I('v_max_f32 v24, v24, v23')
if args.mimic:
    I('v_cvt_pk_bf16_f32 v24, v24, v24')
    I(f'v_and_b32 v24, {s(sT3)}, v24')
I(f'v_mul_f32 v24, {s(sT0)}, v24')
assert args.mimic
I('v_cvt_pk_bf16_f32 v24, v24, v24')
I(f'v_and_b32 v25, {s(sT3)}, v24')
I(f'v_mul_f32 v24, {s(sT1)}, v25')
I('ds_write_b32 v33, v25')
for i in range(8):
    I(f'v_fma_f32 {v(SA + i)}, {v(SA + i)}, {s(sT1)}, -v24')
for i in range(8):
    I(f'v_exp_f32 {v(SA + i)}, {v(SA + i)}')
for i in range(4):
    I(f'v_cvt_pk_bf16_f32 {v(16 + i)}, {v(SA + 2 * i)}, {v(SA + 2 * i + 1)}')
I('ds_write_b128 v11, v[16:19]')
I(f's_mov_b32 {s(sT0)}, 0x3f803f80')
I(f'v_dot2_f32_bf16 v25, v16, {s(sT0)}, 0')
for i in range(1, 4):
    I(f'v_dot2_f32_bf16 v25, {v(16 + i)}, {s(sT0)}, v25')
I('ds_write_b32 v32, v25')
if args.warm & 1:
    a.B('s_cbranch_execz L_SM_back')
I('s_waitcnt lgkmcnt(0)')
I('s_barrier')
I('s_setprio 0')
TS(6)
I(f'v_mov_b32 {v(XR2)}, v6')
I(f'v_mov_b32 {v(B2R)}, v7')
for _ in range(args.nb):
    if tail:
        I(tail.pop(0))
if args.wor == 1:
    wo_rest()
I(f'''
v_lshlrev_b32 v10, 3, v0
v_add_u32 v10, {L_FF}, v10
s_lshl2_add_u32 {s(sT0)}, {s(sHT)}, {s(sCI)}
s_lshl2_add_u32 {s(sT0)}, {s(sT0)}, {s(sW)}
s_lshl_b32 {s(sT0)}, {s(sT0)}, 13
s_add_u32 {s(sT0)}, {s(sT0)}, {W_H3}
v_lshlrev_b32 v4, 11, v2
v_lshl_add_u32 v4, v1, 4, v4
v_add_u32 v4, {s(sT0)}, v4
s_mul_i32 {s(sK1)}, {s(sEP)}, {(HASH * 16) & 0xffffffff}
s_add_u32 {s(sK1)}, {s(sK1)}, {(HASH * 8) & 0xffffffff}
s_mov_b32 {s(sK2)}, {EMB}
s_lshl_b32 {s(sT0)}, {s(sW)}, 2
s_add_u32 {s(sT0)}, {s(sT0)}, {L_MX}
v_mov_b32 v7, {s(sT0)}
v_mov_b32 v45, {L_MX}
s_lshl_b32 {s(sT0)}, {s(sW)}, 4
s_add_u32 {s(sT0)}, {s(sT0)}, {L_MX + 16}
v_lshl_add_u32 v11, v2, 2, {s(sT0)}
s_lshl_b32 {s(sT0)}, {s(sW)}, 18
s_lshl_b32 {s(sT1)}, s2, {6 + args.h5}
s_add_u32 {s(sT0)}, {s(sT0)}, {s(sT1)}
s_add_u32 {s(sT0)}, {s(sT0)}, {W_H5}
v_lshrrev_b32 v44, {2 + args.h5}, v0
v_lshlrev_b32 v44, {14 + args.h5}, v44
v_and_b32 v16, {7 if args.h5 else 3}, v0
v_lshl_add_u32 v44, v16, 4, v44
v_add_u32 v44, {s(sT0)}, v44
v_and_b32 v16, 1, v2
v_lshrrev_b32 v17, 1, v2
s_lshl_b32 {s(sT0)}, {s(sW)}, 9
s_add_u32 {s(sT1)}, {s(sT0)}, {L_CL}
v_add_u32 v40, {s(sT1)}, v3
s_add_u32 {s(sT1)}, {s(sT0)}, {L_CX}
v_and_b32 v42, 7, v0
v_lshlrev_b32 v42, 5, v42
v_lshl_add_u32 v42, v16, 4, v42
v_lshl_add_u32 v42, v17, 8, v42
v_add_u32 v42, {s(sT1)}, v42
s_lshl_b32 {s(sT0)}, {s(sW)}, 7
s_add_u32 {s(sT0)}, {s(sT0)}, {L_CL}
v_lshrrev_b32 v41, 3, v0
v_lshl_add_u32 v41, v41, 4, {s(sT0)}
v_lshl_add_u32 v41, v35, 2, v41
v_bfe_u32 v9, v0, 2, 1
v_lshl_add_u32 v41, v9, 10, v41
v_lshl_add_u32 v127, v9, 3, v35
v_lshl_add_u32 v127, v127, 2, v45
v_lshl_add_u32 v9, v9, 3, v45
v_lshrrev_b32 v43, 2, v1
v_add_u32 v43, {s(sCI)}, v43
v_and_b32 v43, 3, v43
v_lshlrev_b32 v43, 4, v43
v_lshl_add_u32 v43, v2, 2, v43
v_add_u32 v43, v43, v35
v_lshlrev_b32 v43, 2, v43
v_add_u32 v43, {L_CX}, v43
v_mov_b32 v33, {s(sEP)}
v_cmp_gt_u32 {P(sM1)}, v0, 31
v_and_b32 v16, 1, v0
v_cmp_eq_u32 {P(sM2)}, 1, v16
''')
if args.pw & 4 and args.pwt != 2:
    for e in range(4):
        I(f'v_mov_b32 {v(20 + e)}, 0')
    I(f'global_store_dwordx4 v44, v[20:23], {P(pWS)} sc1')
if args.pw & 32:
    I(f's_lshl_b32 {s(sT0)}, {s(sW)}, 8')
    I(f's_sub_u32 {s(sT0)}, s2, {s(sT0)}')
    I(f's_cmp_lt_i32 {s(sT0)}, 192')
    I('s_cbranch_scc1 L_nopwo')
    I('s_mov_b64 exec, 15')
    I(f'global_store_dword v12, v20, {P(pOUT)} sc1')
    I('s_mov_b64 exec, -1')
    a.label('L_nopwo')
if args.pfu:
    I(f'''
    s_lshl2_add_u32 {s(sT0)}, {s(sCI)}, {s(sW)}
    s_lshl_b32 {s(sT0)}, {s(sT0)}, 18
    s_xor_b32 {s(sT1)}, {s(sDI)}, 1
    s_lshl1_add_u32 {s(sT1)}, {s(sHT)}, {s(sT1)}
    s_lshl_b32 {s(sT1)}, {s(sT1)}, 7
    s_add_u32 {s(sT0)}, {s(sT0)}, {s(sT1)}
    v_lshl_add_u32 v11, v0, 13, {s(sT0)}
    ''')
    pf = f's_mov_b32 exec_hi, 0\nglobal_load_dword v126, v11, {P(pWUV)}{NT}\ns_mov_b64 exec, -1'
    tail = tail + [pf] if args.pfu == 1 else [pf] + tail


def lt_read():
    I(f's_lshl_b32 {s(sT0)}, s2, 9')
    I(f's_add_u32 {s(sT0)}, {s(sT0)}, {W_LT}')
    I(f's_add_u32 {s(sB)}, {s(pWS)}, {s(sT0)}')
    I(f's_addc_u32 {s(sB + 1)}, {s(pWS + 1)}, 0')
    for k in range(4):
        I(f's_load_dword {s(96 + k)}, {P(sB)}, {128 * k}')


def lt_signal():
    lab = a.newlabel('L_lts')
    I(f's_cmp_lg_u32 {s(sW)}, 0')
    I(f's_cbranch_scc1 {lab}')
    I('v_mul_u32_u24 v11, 53, v0')
    I('v_add3_u32 v11, v11, s2, 37')
    I('v_and_b32 v11, 0xff, v11')
    I('v_lshl_add_u32 v11, v11, 2, v0')
    I('v_lshlrev_b32 v11, 7, v11')
    I(f'v_add_u32 v11, {W_LT}, v11')
    I('s_mov_b64 exec, 15')
    I(f'global_store_dword v11, v33, {P(pWS)} sc1')
    I('s_mov_b64 exec, -1')
    a.label(lab)


def lt_decide():
    I('s_waitcnt lgkmcnt(0)')
    I(f's_mov_b32 {s(sT0)}, 0')
    for k in range(4):
        I(f's_cmp_eq_u32 {s(96 + k)}, {s(sEP)}')
        I(f's_addc_u32 {s(sT0)}, {s(sT0)}, 0')
    if args.ts and args.tsn == 4:
        I(f's_mov_b32 {s(TSB + 30)}, {s(sT0)}')
    I(f's_cmp_ge_u32 {s(sT0)}, {args.ltq}')


if args.lt == 1:
    lt_read()
if args.lt and args.lts:
    lt_signal()
if tail or args.wor == 2:
    flag_wait(C_ST, 4)
if args.lt == 2:
    lt_read()
if args.lt and not args.lts:
    lt_signal()
late_uv = list(tail)
if args.ltf:
    lt_decide()
    I('s_cbranch_scc1 L_late')
while tail:
    I(tail.pop(0))
if args.lt and not args.ltf:
    lt_decide()
    I('s_cbranch_scc1 L_nogate')
if args.wor == 2:
    wo_rest()
if args.ackn:
    I(f's_mov_b32 {s(sCNT)}, {args.ackn}')
    a.label('L_ackw')
    I(f'ds_read_b32 {v(VFT)}, {v(VFL)} offset:{4 * C_ACK}')
    I(f's_sub_u32 {s(sCNT)}, {s(sCNT)}, 1')
    I('s_waitcnt lgkmcnt(0)')
    I(f'v_cmp_gt_u32 vcc, 4, {v(VFT)}')
    a.B('s_cbranch_scc1 L_nogate')
    a.B('s_cbranch_vccnz L_ackw')
else:
    flag_wait(C_ACK if args.ew else C_ST, 4)
for q in range(4, 4 + args.wpre):
    I(f'global_load_dwordx4 {v(WOq(q), 4)}, {v(28 + (q >> 2))}, {P(pWO)} offset:{1024 * (q & 3)}{NTS}')
if args.dly:
    I(f's_sleep {args.dly}')
if args.gv:
    I(f's_waitcnt vmcnt({args.gv - 1})')
a.label('L_nogate')
TS(8)
U = 96
nwo = 0


def gather(first, w2_loads=(), wpre=args.wpre):
    global nwo
    for q in range(8):
        I(f'global_load_dwordx4 {v(PL + 4 * q, 4)}, v4, {P(pWS)} offset:{q * 256} {args.lf.replace("+", " ")} ')
    n2 = len(w2_loads) if first else 0
    if first:
        for t_ in w2_loads:
            I(t_)
    n_ = 0
    for q in range(8):
        d0, d1 = v(PL + 4 * q), v(PL + 4 * q + 1)
        I(f's_waitcnt vmcnt({7 - q + n_ + n2})')
        if first and args.wor == 3:
            for _ in range((args.nin + 7 - q) // 8):
                qq = 4 + n_ + wpre
                if qq > 15:
                    continue
                I(f'global_load_dwordx4 {v(WOq(qq), 4)}, {v(28 + (qq >> 2))}, {P(pWO)} offset:{1024 * (qq & 3)}{NTS}')
                n_ += 1
        I(f'v_and_b32 v19, {s(sK2)}, {d0}')
        I(f'v_and_b32 {v(U + q)}, {s(sK2)}, {d1}')
        I(f'v_xor_b32 {d0}, v19, {d0}')
        I(f'v_lshl_add_u32 v19, v19, v1, {d1}')
        I(f'v_xor_b32 {d1}, {v(U + q)}, {d1}')
        I(f'v_lshlrev_b32 {v(U + q)}, v1, {v(U + q)}')
        I(f'v_add3_u32 v32, {d0}, v19, {"0" if q == 0 else "v32"}')
    if first:
        nwo = n_


gather(True, w2_loads)
if args.w2p == 2:
    assert args.nin == 12
    for t_ in w2_late:
        I(t_)
if args.ltf:
    I('s_branch L_late_j')
    a.label('L_late')
    TS(8)
    assert args.nin == 12
    gather(True, late_uv, 0)
    a.label('L_late_j')
I(f's_mov_b32 {s(sCNT)}, {args.spin}')
a.label('L_T3_chk')
for k in range(4):
    I(f'v_or_b32 {v(20 + k)}, {v(U + k)}, {v(U + k)} row_ror:8 bank_mask:0x3')
I('v_add_u32 v32, v32, v32 row_ror:8')
for k in range(4):
    I(f'v_or_b32 {v(20 + k)}, {v(U + 4 + k)}, {v(U + 4 + k)} row_ror:8 bank_mask:0xc')
I('v_add_u32 v32, v32, v32 row_ror:4')
for k in range(2):
    I(f'v_or_b32 {v(24 + k)}, {v(20 + k)}, {v(20 + k)} row_shl:4 bank_mask:0x5')
for k in range(2):
    I(f'v_or_b32 {v(24 + k)}, {v(22 + k)}, {v(22 + k)} row_shr:4 bank_mask:0xa')
I('v_add_u32 v32, v32, v32 row_ror:2')
for k in range(2):
    I(f'v_or_b32 {v(24 + k)}, {v(24 + k)}, {v(24 + k)} quad_perm:[1,0,3,2]')
I('v_add_u32 v32, v32, v32 row_ror:1')
for k in range(2):
    I(f'v_or_b32 {v(24 + k)}, {v(24 + k)}, {v(24 + k)} quad_perm:[2,3,0,1]')
I(f'v_cmp_ne_u32 vcc, {s(sK1)}, v32')
I(f's_sub_u32 {s(sCNT)}, {s(sCNT)}, 1')
I(f'v_cndmask_b32 v5, v24, v25, {P(sM2)}')
a.B('s_cbranch_vccz L_T3_go')
a.B('s_cbranch_scc1 L_T3_go')
I('s_mov_b64 exec, vcc')
gather(False)
I('s_branch L_T3_chk')
a.label('L_T3_go')
I('s_mov_b64 exec, -1')
TS(7)
wo_late = [f'global_load_dwordx4 {v(WOq(qq), 4)}, {v(28 + (qq >> 2))}, {P(pWO)} offset:{1024 * (qq & 3)}{NTS}' for qq in range(4 + nwo + args.wpre, 16)] if args.wor == 3 else []
nwo += len(wo_late)
if args.w2p == 1:
    wo_late += w2_late
if not args.nip:
    while wo_late:
        I(wo_late.pop(0))
I(f's_mov_b32 {s(sT1)}, 0x3fb8aa3b')
I(f'v_and_b32 v6, {s(sT3)}, v5')
I('v_cvt_f32_f16 v21, v5')
I(f'v_mul_f32 v6, {s(sT1)}, v6')
I('v_mul_f32 v21, 0.5, v21')
I('v_max_f32 v18, v6, v6 row_ror:8')
row_allreduce('v_max_f32', [18], steps=(4, 1))
cross_rows_allreduce('v_max_f32', 18, 19)
I('''
v_sub_f32 v17, v6, v18
v_exp_f32 v17, v17
v_cvt_pk_bf16_f32 v16, v17, v17
v_mul_f32 v17, v17, v21
''')
TS(1)
red = [f'v_add_f32 v17, v17, v17 row_ror:{st}' for st in (8, 4, 2, 1)]
red += ['v_mov_b32 v19, v17', 'v_permlane16_swap_b32 v19, v17\nv_add_f32 v17, v17, v19\nv_mov_b32 v19, v17',
        'v_permlane32_swap_b32 v19, v17\nv_add_f32 v17, v17, v19', 'ds_write2_b32 v7, v18, v17 offset0:0 offset1:4']
QL = lambda q: 8 * (q >> 2) + 4 * ((q >> 1) & 1) + (q & 1)


def w_and(q):
    for r in range(4):
        I(f'v_and_b32 {v(AW + 4 * (q & 1) + r)}, v16, {v(MK + r)} row_newbcast:{QL(q)}')


w_and(0)
for q in range(8):
    if q < 7:
        w_and(q + 1)
    I(f'{MFMA} v[24:27], {v(AW + 4 * (q & 1), 4)}, {v(PL + 4 * q, 4)}, {"0" if q == 0 else "v[24:27]"}')
    if q < 4:
        I(red[q])
    for _ in range(2):
        if wo_late:
            I(wo_late.pop(0))
if args.lrow:
    I('ds_write_b32 v7, v18')
    I('ds_write_b32 v11, v17')
else:
    for t_ in red[4:]:
        I(t_)
I('s_mov_b32 exec_hi, 0')
I('ds_write_b128 v40, v[24:27]')
I('s_mov_b64 exec, -1')
I('s_waitcnt lgkmcnt(0)')
TS(9)
TSN(0)
I('s_barrier')
I('ds_read_b128 v[96:99], v45')
I('ds_read_b64 v[100:101], v9')
I('ds_read2st64_b32 v[108:109], v41 offset0:0 offset1:2')
I('ds_read2_b32 v[102:103], v127 offset0:4 offset1:8' if args.lrow else 'ds_read_b64 v[102:103], v9 offset:16')
I(f'ds_read_b64 {v(HH, 2)}, v10')
I('''
s_waitcnt lgkmcnt(4)
v_max3_f32 v18, v96, v97, v98
v_max_f32 v18, v18, v99
s_waitcnt lgkmcnt(2)
v_sub_f32 v100, v100, v18
v_sub_f32 v101, v101, v18
v_exp_f32 v100, v100
v_exp_f32 v101, v101
v_mul_f32 v20, v100, v108
v_fmac_f32 v20, v101, v109
s_waitcnt lgkmcnt(0)
v_mul_f32 v18, v100, v102
v_add_f32 v21, v20, v20 row_shl:4 bank_mask:0x5
v_fmac_f32 v18, v101, v103
v_add_f32 v21, v20, v20 row_shr:4 bank_mask:0xa
v_cvt_pk_bf16_f32 v20, v21, v21
v_add_f32 v18, v18, v18 row_half_mirror
''')
if args.ltf:
    I(f's_waitcnt vmcnt({nwo})')
QP = lambda i: f'quad_perm:[{i},{i},{i},{i}]'
for r in range(4):
    I(f'v_and_b32 {v(AW + r)}, v20, {v(MK + r)} {QP(0)}')
for i in range(4):
    if i < 3:
        for r in range(4):
            I(f'v_and_b32 {v(AW + 4 * (i + 1) + r)}, v20, {v(MK + r)} {QP(i + 1)}')
    elif not args.lrow:
        I('v_rcp_f32 v18, v18')
    if args.lrow and i >= 2:
        I(f'v_add_f32 v18, v18, v18 {OCT[i - 2]}')
    I(f'{MFMA} v[24:27], {v(AW + 4 * i, 4)}, {v(WUV + 4 * i, 4)}, {"0" if i == 0 else "v[24:27]"}')
if args.lrow:
    I('v_rcp_f32 v18, v18')
for i in range(2):
    I(f'v_and_b32 {v(HH + i)}, {s(sR)}, {v(HH + i)}')
for r in range(4):
    I(f'v_and_b32 {v(AW + 16 + r)}, {v(HH)}, {v(MK + r)}')
I('s_mov_b32 exec_lo, 0x00ff00ff')
I('s_mov_b32 exec_hi, 0xff00ff00')
I('ds_write_b128 v42, v[24:27]')
I('s_mov_b64 exec, -1')
for r in range(4):
    I(f'v_and_b32 {v(AW + 20 + r)}, {v(HH + 1)}, {v(MK + r)}')
I('s_waitcnt lgkmcnt(0)')
I('s_barrier')
for k in range(4):
    I(f'ds_read2st64_b32 {v(108 + 2 * k, 2)}, v43 offset0:{2 * k} offset1:{2 * k + 1}')
TS(10)
if not args.w2p:
    I(f's_waitcnt vmcnt({nwo})')
    for i in range(2):
        I(f'{MFMA} {v(OA, 4)}, {v(AW + 16 + 4 * i, 4)}, {v(W2T + 4 * i, 4)}, {"0" if i == 0 else v(OA, 4)}')
I('v_mov_b32 v22, v33')
I('v_mov_b32 v23, v33')
I('''
s_waitcnt lgkmcnt(2)
v_add_f32 v108, v108, v109
v_add_f32 v110, v110, v111
s_waitcnt lgkmcnt(0)
v_add_f32 v112, v112, v113
v_add_f32 v114, v114, v115
v_add_f32 v108, v108, v110
v_add_f32 v112, v112, v114
v_add_f32 v108, v108, v112
''')
I('v_mul_f32 v108, v108, v18')
I('v_cvt_pk_bf16_f32 v20, v108, v108')


def wo_and(q):
    for r in range(4):
        I(f'v_and_b32 {v(AT2 + 4 * (q & 1) + r)}, v20, {v(MK + r)} row_newbcast:{q}')


wo_and(0)
for q in range(16):
    if q < 15:
        wo_and(q + 1)
    if args.wor == 3 and q >= 4 and q % 2 == 0:
        I(f's_waitcnt vmcnt({14 - q + len(w2_late)})')
    I(f'{MFMA} {v(OA, 4)}, {v(AT2 + 4 * (q & 1), 4)}, {v(WOq(q), 4)}, {"0" if q == 0 and args.w2p else v(OA, 4)}')
if args.w2p:
    for i in range(2):
        I(f's_waitcnt vmcnt({1 - i})')
        I(f'{MFMA} {v(OA, 4)}, {v(AW + 16 + 4 * i, 4)}, {v(W2T + 4 * i, 4)}, {v(OA, 4)}')
TS(11)
I(f'v_cndmask_b32 v20, {v(OA)}, {v(OA + 2)}, {P(sM1)}')
I(f'v_cndmask_b32 v21, {v(OA + 1)}, {v(OA + 3)}, {P(sM1)}')
I(f'global_store_dwordx4 v44, v[20:23], {P(pWS)} sc1')
TS(12)
I('s_cmp_lt_u32 s2, 192')
I('s_cbranch_scc1 L_T_ep' if args.ee else 's_cbranch_scc1 L_T_done')
I(f'''
s_bfe_u32 {s(sT0)}, s2, {0x50001 if args.h5 else 0x60000}
s_lshl2_add_u32 {s(sT0)}, {s(sT0)}, {s(sW)}
s_lshl_b32 {s(sT0)}, {s(sT0)}, {12 + args.h5}
s_and_b32 {s(sT1)}, s2, {args.h5}
s_lshl_b32 {s(sT1)}, {s(sT1)}, 6
s_add_u32 {s(sT0)}, {s(sT0)}, {s(sT1)}
s_add_u32 {s(sT0)}, {s(sT0)}, {W_H5}
v_lshrrev_b32 v4, 2, v0
v_lshlrev_b32 v4, {6 + args.h5}, v4
v_lshl_add_u32 v4, v35, 4, v4
v_add_u32 v4, {s(sT0)}, v4
v_add_u32 v5, {2048 << args.h5}, v4
v_lshrrev_b32 v6, 1, v2
v_lshl_add_u32 v8, v6, 2, v35
v_lshlrev_b32 v8, 5, v8
v_and_b32 v6, 1, v2
v_lshl_add_u32 v8, v6, 2, v8
s_lshl_b32 {s(sT0)}, {s(sW)}, 3
s_add_u32 {s(sT0)}, {s(sT0)}, {L_CL}
v_add_u32 v8, {s(sT0)}, v8
v_and_b32 v9, 7, v0
v_lshlrev_b32 v9, 5, v9
v_add_u32 v9, {L_CL}, v9
v_lshlrev_b32 v108, 16, {v(XR2)}
v_and_b32 v109, {s(sT3)}, {v(XR2)}
v_lshlrev_b32 v110, 16, {v(B2R)}
v_and_b32 v111, {s(sT3)}, {v(B2R)}
v_add_f32 v108, v108, v110
v_add_f32 v109, v109, v111
v_mov_b32 v108, v109 quad_perm:[0,1,2,3] bank_mask:0xa
s_mov_b32 {s(sCNT)}, {args.spin}
''')
if args.a5:
    I('s_waitcnt vmcnt(0)')
if args.dly5:
    I(f's_sleep {args.dly5}')
f5 = lambda k: f'global_load_dwordx4 {v(128 + 4 * k, 4)}, {v(4 + (k >> 1))}, {P(pWS)} offset:{(1024 << args.h5) * (k & 1)} sc1'
a.label('L_T5_retry')
for k in range(4):
    I(f5(k))
a.label('L_T5_chk')
I(f's_sub_u32 {s(sCNT)}, {s(sCNT)}, 1')
I('s_waitcnt vmcnt(2)')
I('v_xor_b32 v17, v130, v33')
I('v_add_f32 v20, v128, v132')
I('v_bitop3_b32 v17, v134, v33, v17 bitop3:0xbe')
I('v_add_f32 v21, v129, v133')
I('s_waitcnt vmcnt(0)')
I('v_bitop3_b32 v17, v138, v33, v17 bitop3:0xbe')
I('v_add_f32 v24, v136, v140')
I('v_bitop3_b32 v17, v142, v33, v17 bitop3:0xbe')
I('v_add_f32 v25, v137, v141')
I('v_cmp_ne_u32 vcc, 0, v17')
I('v_add_f32 v20, v20, v24')
I('v_add_f32 v21, v21, v25')
a.B('s_cbranch_scc1 L_T5_go')
if args.m5:
    a.B('s_cbranch_vccz L_T5_go')
    for k in range(4):
        lab = a.newlabel('L_r5')
        I(f'v_cmp_ne_u32 vcc, {v(130 + 4 * k)}, v33')
        I('s_nop 0')
        a.B(f's_cbranch_vccz {lab}')
        I('s_mov_b64 exec, vcc')
        I(f5(k))
        I('s_mov_b64 exec, -1')
        a.label(lab)
    I('s_waitcnt vmcnt(0)')
    I('s_branch L_T5_chk')
else:
    a.B('s_cbranch_vccnz L_T5_retry')
a.label('L_T5_go')
TS(13)
TSN(3)
I('''
v_permlane32_swap_b32 v20, v21
v_add_f32 v20, v20, v21
v_add_f32 v20, v20, v20 row_ror:4
v_add_f32 v20, v20, v20 row_ror:8
ds_write_b32 v8, v20
s_waitcnt lgkmcnt(0)
s_barrier
''')
I(f's_cmp_lg_u32 {s(sW)}, 0')
I('s_cbranch_scc1 L_T_done')
I('''
ds_read_b128 v[128:131], v9
ds_read_b128 v[132:135], v9 offset:16
s_waitcnt lgkmcnt(1)
v_add_f32 v128, v128, v129
v_add_f32 v130, v130, v131
v_add_f32 v108, v108, v128
v_add_f32 v108, v108, v130
s_waitcnt lgkmcnt(0)
v_add_f32 v132, v132, v133
v_add_f32 v134, v134, v135
v_add_f32 v108, v108, v132
v_add_f32 v108, v108, v134
''')
if args.pert:
    import struct
    kind, val = args.pert.split(',')
    bits = struct.unpack('<I', struct.pack('<f', float(val)))[0]
    if kind == 'm':
        I(f'v_mul_f32 v108, {bits}, v108')
    elif kind == 'a':
        I(f'v_add_f32 v108, {bits}, v108')
    else:
        I('s_cmp_lg_u32 s2, 200')
        I('s_cbranch_scc1 L_nop')
        I('s_mov_b64 exec, 1')
        I(f'v_add_f32 v108, {bits}, v108')
        I('s_mov_b64 exec, -1')
        a.label('L_nop')
        I('s_nop 1')
I('''
v_mov_b32 v109, v108 row_shl:4
v_cvt_pk_bf16_f32 v20, v108, v109
''')
I(f's_mov_b64 exec, {args.oex}')
I(f'global_store_dword v12, v20, {P(pOUT)} {args.of.replace("+", " ")}')
if args.ee:
    I('s_branch L_T_done')
    a.label('L_T_ep')
    I(f's_lshl2_add_u32 {s(sT0)}, s2, {s(sW)}')
    I(f's_cmp_lg_u32 {s(sT0)}, 400')
else:
    I('s_cmp_lg_u32 s2, 0xe0')
I('s_cbranch_scc1 L_T_done')
I(f'v_mov_b32 v22, {W_EP}')
I('s_mov_b64 exec, 1')
I(f'global_store_dword v22, v33, {P(pWS)} {args.ef}')
a.label('L_T_done')
TS(14)
ts_dump()
a.label('L_end')
I('s_endpgm')

a.raw('.section .rodata,"a"')
a.raw('.p2align 6')
a.raw(f'.amdhsa_kernel {NAME}_kernel')
a.raw('''  .amdhsa_next_free_vgpr 256
  .amdhsa_next_free_sgpr 102
  .amdhsa_accum_offset 256
  .amdhsa_group_segment_fixed_size 0
  .amdhsa_kernarg_size 112
  .amdhsa_user_sgpr_count 2
  .amdhsa_user_sgpr_kernarg_segment_ptr 1
  .amdhsa_system_sgpr_workgroup_id_x 1
.end_amdhsa_kernel''')
open(args.o, 'w').write(a.text())
```

```python
import sys, argparse, re
from asmlib import Asm, v, s

NAME = 'parallel_sum__compressed_kv_cla__dense_activation_squared_relu__decode'

ap = argparse.ArgumentParser()
A_ = lambda n, d, t=int: ap.add_argument('--' + n, type=t, default=d)
ap.add_argument('-o', default='out.s')
A_('ts', 0)
A_('nt', 1)
A_('d1', 1); A_('k1', 2); A_('d2', 10); A_('k2', 16); A_('d3', 10)
A_('swap', 0)
A_('qa', 21)
A_('h2', 1)
A_('h3', 1)
A_('nt1', 0)
A_('wor', 3)
A_('dyn', 5)
A_('own', 1)
A_('ns', 6)
A_('nb', 0)
A_('w1', 0)
A_('last', 12)
A_('h5', 0)
A_('np', 1)
A_('sl', 5)
A_('pre', 2)
A_('tord', 1)
A_('light', 1)
A_('pt', 0)
A_('dly', 0)
A_('dly5', 0)
A_('hint1', 0)
A_('hint2', 0)
A_('wuv', 0)
A_('ew', 1)
A_('bpos', 1)
A_('a5', 1)
A_('comb', 1)
A_('tpos', 32)
A_('ne', 0)
A_('gv', 4)
A_('pp', 3)
A_('bo', 0)
A_('clk', 0)
A_('wpre', 0)
A_('nts', 0)
A_('nto', 0)
A_('ntm', 0x3f, lambda x: int(x, 0))
A_('xc', 0)
A_('kmap', 0)
A_('p2', 8)
A_('ffn', 0)
A_('dsmax', 1)
A_('pfu', 0)
A_('lf', 'sc1', str)
A_('sf', 'sc1', str)
A_('lfa', 'sc1', str)
A_('of', 'sc1', str)
A_('m5', 1)
A_('bm3', 1)
A_('top', 0)
A_('warm', 3)
A_('pert', '', str)
A_('ef', 'sc1', str)
A_('hr', 0)
A_('fr', 1)
A_('wsoff', 0, lambda x: int(x, 0))
A_('ee', 1)
A_('nopt', 1)
A_('probe', 0)
A_('spf', 0)
A_('spw', 0)
A_('spx', 60)
A_('rot', 0)
A_('nin', 12)
A_('nip', 0)
A_('lt', 0)
A_('ltq', 4)
A_('lts', 0)
A_('ltf', 0)
A_('pw', 63)
A_('pwt', 0)
A_('pwq', 0)
A_('htmap', 0)
A_('ackn', 0)
A_('w2p', 0)
A_('oex', 15)
A_('pw0', 0)
A_('hv', 4)
A_('ln', 0)
A_('lrow', 1)
A_('prm', 0)
A_('pair', 1)
A_('pairc', 1)
A_('pairu', 0)
A_('mimic', 1)
A_('touch', 0)
A_('spin', 100000)
A_('notail', 0)
A_('tsn', 0)
A_('amp', '', str)
A_('tsmask', 0xffff, lambda x: int(x, 0))
args = ap.parse_args()
NT = ' nt' if args.nt else ''
NTS = ' nt' if args.nts else ''

L_QA = 131072
L_P = L_QA + 16384
L_XN = L_P + 4096
L_MX = L_XN + 1024
L_MF = L_MX + 256
L_MA = L_MF + 128
L_CL = L_MF + 256
L_CX = L_CL + 2048
L_FF = L_CX + 2048
L_LS = L_FF + 512
L_FL = L_LS + 1024
L_END = L_FL + 64
assert L_END <= 163840
F_F0, C_ISS, F_H2, C_QA, C_ST, C_ACK, C_ER, F_HINT, K0 = range(9)
C_L, C_M = K0 + 4, K0 + 5
W_EP = 0
W_H1 = 0x1000 + args.wsoff
W_H2 = W_H1 + 0x20000
W_HF = W_H2 + 0x10000
W_H5 = W_HF + 0x80000
W_LT = 0x1c0000
W_H3 = 0x200000 + args.wsoff
W_TS = 0x600000
assert W_H5 + 0x100000 <= W_LT

pX, pCKV, pWQ, pWUK, pWUV, pWO, pW1 = 4, 6, 8, 10, 12, 14, 18
pB1, pW2, pB2, pOUT, pDBG, pWS = 20, 22, 24, 26, 28, 30
sWV = 3
sX, sY, sFC, sGA, sS, sR, sHT, sCI, sDI = range(32, 41)
sJ, sH = sX, sY
sEP, sT0, sT1, sT2, sT3, sCNT, sW = 41, 42, 43, 44, 45, 46, 47
sB = 48
sM1, sM2, sM3, sM4 = 50, 52, 54, 56
sK0, sK1, sK2 = 58, 59, 60
TSB = 64
VFL, VONE, VFT = 13, 14, 15

a = Asm()
P = lambda r: s(r, 2)
MFMA = 'v_mfma_f32_16x16x32_bf16'


def I(text):
    if args.lfa != 'sc1':
        text = re.sub(r'(global_load\S* .*) sc1$', r'\1 ' + args.lfa.replace('+', ' '), text, flags=re.M)
    for bit, p_ in ((1, pWQ), (2, pWUK), (4, pCKV), (8, pWUV), (16, pW1), (32, pW2)):
        if not args.ntm & bit:
            text = re.sub(r'(global_load\S* .*s\[%d:%d\].*) nt' % (p_, p_ + 1), r'\1', text)
    if args.notail:
        out = []
        for line in text.split('\n'):
            m = re.match(r'\s*global_load_dwordx4 (v\[\d+:\d+\]), v\d+, s\[(\d+):', line)
            if m and int(m.group(2)) in (pWUV, pWO, pW1, pW2):
                line = f'global_load_dwordx4 {m.group(1)}, v3, s[4:5]'
            out.append(line)
        text = '\n'.join(out)
    a.I(text)


def TS(i):
    if args.ts and (args.tsmask >> i) & 1:
        I(f'{"s_memtime" if args.clk else "s_memrealtime"} {s(TSB + 2 * i, 2)}')


def TSN(k=None):
    if args.ts and (k is None or k == args.tsn):
        I(f's_sub_u32 {s(TSB + 2 * 15)}, {args.spin}, {s(sCNT)}')


def ts_dump(n=16):
    if not args.ts:
        return
    if args.xc:
        I(f's_getreg_b32 {s(TSB + 30)}, hwreg(HW_REG_XCC_ID)')
        I(f's_add_u32 {s(TSB + 30)}, {s(TSB + 30)}, {s(sEP)}')
        lab, done = a.newlabel('L_xc'), a.newlabel('L_xcd')
        I('s_cmp_lg_u32 s2, 224')
        I(f's_cbranch_scc1 {done}')
        I(f's_cmp_lg_u32 {s(sWV)}, 4')
        I(f's_cbranch_scc1 {done}')
        I('s_mov_b64 exec, -1')
        I(f'v_mov_b32 v4, {W_TS + args.xc * 512 + 60}')
        I(f'global_load_dword v5, v4, {P(pWS)} sc1')
        I('s_memrealtime s[96:97]')
        I('s_waitcnt vmcnt(0) lgkmcnt(0)')
        I(f'v_readfirstlane_b32 {s(sT0)}, v5')
        I(f's_cmp_eq_u32 {s(sT0)}, {s(TSB + 30)}')
        I(f's_cbranch_scc1 {done}')
        a.label(lab)
        I('s_memrealtime s[98:99]')
        I('s_waitcnt lgkmcnt(0)')
        I(f's_sub_u32 {s(sT1)}, s98, s96')
        I(f's_cmp_lt_u32 {s(sT1)}, 5000')
        I(f's_cbranch_scc1 {lab}')
        a.label(done)
    if args.amp:
        wg, w, k = map(int, args.amp.split(','))
        lab, done = a.newlabel('L_amp'), a.newlabel('L_ampd')
        I(f's_cmp_lg_u32 s2, {wg}')
        I(f's_cbranch_scc1 {done}')
        I(f's_cmp_lg_u32 {s(sWV)}, {w}')
        I(f's_cbranch_scc1 {done}')
        I('s_memrealtime s[96:97]')
        I('s_waitcnt lgkmcnt(0)')
        I(f's_sub_u32 {s(sT0)}, {s(TSB + 2 * k)}, {s(TSB)}')
        I(f's_lshl_b32 {s(sT0)}, {s(sT0)}, 3')
        I(f's_min_u32 {s(sT0)}, {s(sT0)}, 100000')
        a.label(lab)
        I('s_memrealtime s[98:99]')
        I('s_waitcnt lgkmcnt(0)')
        I(f's_sub_u32 {s(sT1)}, s98, s96')
        I(f's_cmp_lt_u32 {s(sT1)}, {s(sT0)}')
        I(f's_cbranch_scc1 {lab}')
        a.label(done)
    I('s_waitcnt lgkmcnt(0)')
    I('s_mov_b64 exec, -1')
    I('v_mov_b32 v4, 0')
    for i in range(n):
        I(f'v_writelane_b32 v4, {s(TSB + 2 * i)}, {i}')
    I(f's_lshl_b32 {s(sT0)}, s2, 3')
    I(f's_add_u32 {s(sT0)}, {s(sT0)}, {s(sWV)}')
    I(f's_lshl_b32 {s(sT0)}, {s(sT0)}, 6')
    I(f's_add_u32 {s(sT0)}, {s(sT0)}, {W_TS}')
    I(f'v_lshl_add_u32 v5, v0, 2, {s(sT0)}')
    I('s_mov_b64 exec, 0xffff')
    I(f'global_store_dword v5, v4, {P(pWS)}')
    I('s_waitcnt vmcnt(0)')


def load_epoch():
    I(f's_load_dword {s(sEP)}, {P(pWS)}, {W_EP}')


def epoch_ready():
    I('s_waitcnt lgkmcnt(0)')
    I(f's_add_u32 {s(sEP)}, {s(sEP)}, 1')
    I(f's_addc_u32 {s(sEP)}, {s(sEP)}, 0')


def row_allreduce(op, regs, steps=(8, 4, 2, 1)):
    for st in steps:
        for r in regs:
            I(f'{op} {v(r)}, {v(r)}, {v(r)} row_ror:{st}')


def cross_rows_allreduce(op, r, t):
    for sw in ('v_permlane16_swap_b32', 'v_permlane32_swap_b32'):
        I(f'v_mov_b32 {v(t)}, {v(r)}')
        I(f'{sw} {v(t)}, {v(r)}')
        I(f'{op} {v(r)}, {v(r)}, {v(t)}')


def scalar_poll(offsets):
    lab, done = a.newlabel('L_sp'), a.newlabel('L_spd')
    R = [61, 62, 63, 96, 97, 98, 99, 100]
    I(f's_mov_b32 {s(sCNT)}, {args.spin}')
    a.label(lab)
    for k, o in enumerate(offsets):
        I(f's_load_dword {s(R[k])}, {P(sB)}, {o} glc')
    I(f's_sub_u32 {s(sCNT)}, {s(sCNT)}, 1')
    I(f's_cbranch_scc1 {done}')
    I('s_waitcnt lgkmcnt(0)')
    I(f's_xor_b32 {s(sT0)}, {s(R[0])}, {s(sEP)}')
    for k in range(1, len(offsets)):
        I(f's_xor_b32 {s(sT1)}, {s(R[k])}, {s(sEP)}')
        I(f's_or_b32 {s(sT0)}, {s(sT0)}, {s(sT1)}')
    I(f's_cbranch_scc1 {lab}')
    a.label(done)
    I('s_waitcnt lgkmcnt(0)')


def flag_add(idx, base=VFL):
    I('s_mov_b64 exec, 1')
    I(f'ds_add_u32 {v(base)}, {v(VONE)} offset:{4 * idx}')
    I('s_mov_b64 exec, -1')


def flag_wait(idx, n, base=VFL):
    lab, done = a.newlabel('L_fw'), a.newlabel('L_fwd')
    if args.bo and idx in (F_F0, C_ISS, F_H2, C_ST, C_ACK, K0):
        l2 = a.newlabel('L_fw')
        a.B(f's_branch {l2}')
        a.label(lab)
        I(f's_sleep {args.bo}')
        a.label(l2)
    else:
        a.label(lab)
    I(f'ds_read_b32 {v(VFT)}, {v(base)} offset:{4 * idx}')
    I(f's_sub_u32 {s(sFC)}, {s(sFC)}, 1')
    I('s_waitcnt lgkmcnt(0)')
    I(f'v_cmp_gt_u32 vcc, {n}, {v(VFT)}')
    a.B(f's_cbranch_scc1 {done}')
    a.B(f's_cbranch_vccnz {lab}')
    a.label(done)
    I(f's_max_i32 {s(sFC)}, {s(sFC)}, 0')


def build_masks(M, t0, t1):
    I(f'v_and_b32 {v(t0)}, 1, v1')
    I(f'v_lshlrev_b32 {v(t0)}, 4, {v(t0)}')
    I(f'v_mov_b32 {v(t1)}, 0xffff')
    I(f'v_lshlrev_b32 {v(t1)}, {v(t0)}, {v(t1)}')
    I(f'v_bfe_u32 {v(t0)}, v1, 1, 2')
    for r in range(4):
        I(f'v_cmp_eq_u32 vcc, {r}, {v(t0)}')
        I(f'v_cndmask_b32 {v(M + r)}, 0, {v(t1)}, vcc')


BF, ACC, PF = 128, 96, 80
AT, SEL, XP, ACC0, REC = 72, 32, 80, 88, 92


def build_sel(t=6):
    J = lambda x: I(re.sub(r'\bv([6-9])\b', lambda m: 'v%d' % (int(m.group(1)) - 6 + t), x))
    J('''
    v_and_b32 v6, 1, v1
    v_cmp_eq_u32 vcc, 1, v6
    v_mov_b32 v7, 0x0c0c0100
    v_mov_b32 v8, 0x01000c0c
    v_cndmask_b32 v7, v7, v8, vcc
    v_mov_b32 v8, 0x0c0c0302
    v_mov_b32 v9, 0x03020c0c
    v_cndmask_b32 v8, v8, v9, vcc
    v_mov_b32 v9, 0x0c0c0c0c
    v_bfe_u32 v6, v1, 1, 2
    ''')
    for r in range(4):
        J(f'v_cmp_eq_u32 vcc, {r}, v6')
        J(f'v_cndmask_b32 {v(SEL + r)}, v9, v7, vcc')
        J(f'v_cndmask_b32 {v(SEL + 4 + r)}, v9, v8, vcc')


def diag_stage(n, W, younger=0):
    def perms(k):
        for r in range(4):
            I(f'v_perm_b32 {v(AT + 4 * (k & 1) + r)}, {v(XP + (k >> 1))}, {v(XP + (k >> 1))}, {v(SEL + 4 * (k & 1) + r)}')
    perms(0)
    for k in range(n):
        if k < n - 1:
            perms(k + 1)
        else:
            I(f'v_mov_b32 {v(REC + 2)}, {s(sEP)}')
            I(f'v_mov_b32 {v(REC + 3)}, {s(sEP)}')
        I(f's_waitcnt vmcnt({n - 1 - k + younger})')
        I(f'{MFMA} {v(ACC0, 4)}, {v(AT + 4 * (k & 1), 4)}, {v(W(k), 4)}, {"0" if k == 0 else v(ACC0, 4)}')


TA = 16


def tr_addr():
    I(f'''
    v_lshrrev_b32 v4, 2, v0
    v_lshlrev_b32 v4, 8, v4
    v_and_b32 v5, 31, v0
    v_lshl_add_u32 v4, v5, 3, v4
    s_lshl_b32 {s(sT0)}, {s(sW)}, 15
    v_add_u32 v4, {s(sT0)}, v4
    ''')


CK = 44
EMB = 0x00010001
HASH = 0x9e3779b1
OCT = ('quad_perm:[1,0,3,2]', 'quad_perm:[2,3,0,1]', 'row_half_mirror')


def pv_setup():
    for i in range(4):
        I(f's_sub_u32 {s(sT0)}, {s(sW)}, {i}')
        I(f's_and_b32 {s(sT0)}, {s(sT0)}, 3')
        I(f's_lshl_b32 {s(sT0)}, {s(sT0)}, 10')
        I(f's_add_u32 {s(sT0)}, {s(sT0)}, {L_P}')
        I(f'v_add_u32 {v(48 + i)}, {s(sT0)}, v3')
    I(f"""
    s_lshl_b32 {s(sT0)}, {s(sGA)}, 6
    s_add_u32 {s(sT0)}, {s(sT0)}, {s(sW)}
    s_lshl_b32 {s(sT0)}, {s(sT0)}, 7
    s_add_u32 {s(sT0)}, {s(sT0)}, {s(sS)}
    s_lshl_b32 {s(sT1)}, {s(sT0)}, 8
    s_add_u32 {s(sT1)}, {s(sT1)}, {W_H3}
    v_lshlrev_b32 v52, 19, v2
    v_lshl_add_u32 v52, v1, 4, v52
    v_add_u32 v52, {s(sT1)}, v52
    s_mov_b32 {s(sT2)}, 0x20000
    v_add_u32 v53, {s(sT2)}, v52
    v_add_u32 v54, {s(sT2)}, v53
    v_add_u32 v55, {s(sT2)}, v54
    v_lshlrev_b32 v42, 4, v2
    v_lshl_add_u32 v43, v1, 6, v42
    v_add_u32 v43, {L_LS}, v43
    v_add_u32 v42, {L_MF}, v42
    s_mul_i32 {s(sK0)}, {s(sEP)}, {(2 * HASH) & 0xffffffff}
    s_add_u32 {s(sK0)}, {s(sK0)}, {HASH}
    s_mov_b32 {s(sK1)}, {EMB}
    s_mov_b32 {s(sK2)}, {~EMB & 0xffffffff}
    """)


def pv_prewrite(qg, late=False):
    if args.pwt >= 3:
        if late and args.pw & 16:
            for e in range(4):
                I(f'v_mov_b32 {v(28 + e)}, 0')
            for r in range(4):
                I(f'global_store_dwordx4 {v(52 + r)}, v[28:31], {P(pWS)} sc1')
    elif args.pw0 >= (8 if qg else 16):
        pass
    elif args.pw & 16 and (qg or not args.pwt):
        for e in range(4):
            I(f'v_mov_b32 {v(28 + e)}, 0')
        for r in range(4):
            I(f'global_store_dwordx4 {v(52 + r)}, v[28:31], {P(pWS)} sc1')
            if args.pwt:
                I(f'v_add_u32 v6, 0x8000, {v(52 + r)}')
                I(f'global_store_dwordx4 v6, v[28:31], {P(pWS)} sc1')
        if args.pwt == 2:
            I(f'''
            s_lshl_b32 {s(sT0)}, {s(sW)}, 18
            s_lshl_b32 {s(sT1)}, s2, 7
            s_add_u32 {s(sT0)}, {s(sT0)}, {s(sT1)}
            s_add_u32 {s(sT0)}, {s(sT0)}, {W_H5}
            v_lshrrev_b32 v6, 3, v0
            v_lshlrev_b32 v6, 15, v6
            v_lshl_add_u32 v6, v10, 4, v6
            v_add_u32 v6, {s(sT0)}, v6
            global_store_dwordx4 v6, v[28:31], {P(pWS)} sc1
            v_add_u32 v6, 0x40000, v6
            global_store_dwordx4 v6, v[28:31], {P(pWS)} sc1
            ''')


def tr_slot(i):
    I(f's_sub_u32 {s(sT0)}, {s(sW)}, {i}')
    I(f's_and_b32 {s(sT0)}, {s(sT0)}, 3')
    I(f's_lshl_b32 {s(sT1)}, {s(sT0)}, 13')
    I(f'v_lshl_add_u32 v5, {s(sT0)}, 2, {v(VFL)}')
    I(f'v_add_u32 {v(TA)}, {s(sT1)}, v4')
    for T in range(1, 8):
        I(f'v_xor_b32 {v(TA + T)}, {32 * T}, {v(TA)}')
    if i == 3 and args.bm3:
        assert not args.ffn
        TS(6)
        I('s_barrier')
    else:
        flag_wait(K0, i + 1, 5)
    for T in range(8):
        for tau in range(2):
            I(f'ds_read_b64_tr_b16 {v(BF + (i * 8 + T) * 4 + 2 * tau, 2)}, {v(TA + T)} offset:{tau * 4096}')


def round_pairs(base, n, tmp):
    for i in range(n // 2):
        I(f'v_cvt_pk_bf16_f32 {v(tmp + i)}, {v(base + 2 * i)}, {v(base + 2 * i + 1)}')
    for i in range(n // 2):
        I(f'v_lshlrev_b32 {v(base + 2 * i)}, 16, {v(tmp + i)}')
        I(f'v_and_b32 {v(base + 2 * i + 1)}, {s(sT3)}, {v(tmp + i)}')


hdr = open('cdna_kernels/%s.s.ref' % NAME).read().split('; Override launch geometry')[0]
a.raw(hdr.rstrip())
a.raw(f'; @launch grid=(256,1,1) block=(512,1,1) lds={L_END}')
a.raw(""";
; carries the launch tag (ws[0] + 1, advanced at the end) or a share of a check word derived from it; all spins are bounded.""")
a.raw('.amdgcn_target "amdgcn-amd-amdhsa--gfx950"')
a.raw('.text')
a.raw(f'.globl {NAME}_kernel')
a.raw('.p2align 8')
a.raw(f'.type {NAME}_kernel,@function')
a.label(f'{NAME}_kernel')
a.label('L_start')
I('s_load_dwordx16 s[4:19], s[0:1], 0')
I('s_load_dwordx4 s[28:31], s[0:1], 96')
I(f's_getpc_b64 {P(sB)}')
a.label('L_pc')
I('s_cmpk_ge_u32 s2, 0x100')
I('s_cbranch_scc1 L_end')
TS(0)
I(f'''
v_lshrrev_b32 v4, 5, v0
s_lshl_b32 {s(sT1)}, s2, 8
v_readfirstlane_b32 {s(sWV)}, v4
s_and_b32 {s(sT1)}, {s(sT1)}, 0x7800
v_lshl_add_u32 v4, v4, 7, {s(sT1)}
v_min_u32 v4, L_end-L_pc, v4
s_mov_b32 exec_lo, 1
s_mov_b32 exec_hi, 1
global_load_dword v15, v4, {P(sB)}
s_mov_b64 exec, -1
s_cmp_ge_u32 {s(sWV)}, 8
''')
a.B('s_cbranch_scc1 L_S')
I(f's_cmp_eq_u32 {s(sWV)}, 2')
a.B('s_cbranch_scc1 L_F1')
I(f's_cmp_lg_u32 {s(sWV)}, 0')
a.B('s_cbranch_scc1 L_F23')


def common(first=True):
    I('s_load_dwordx8 s[20:27], s[0:1], 64')
    if first:
        I(f'''
        v_and_b32 v0, 63, v0
        v_and_b32 v1, 15, v0
        v_lshrrev_b32 v2, 4, v0
        v_lshlrev_b32 v3, 4, v0
        s_and_b32 {s(sX)}, s2, 7
        s_lshr_b32 {s(sY)}, s2, 3
        ''')
    I(f'''
    s_lshr_b32 {s(sWV)}, {s(sWV)}, 1
    s_lshr_b32 {s(sGA)}, {s(sY)}, 4
    s_xor_b32 {s(sGA)}, {s(sGA)}, 1
    s_and_b32 {s(sT0)}, {s(sY)}, 15
    s_lshl4_add_u32 {s(sS)}, {s(sX)}, {s(sT0)}
    s_and_b32 {s(sW)}, {s(sWV)}, 3
    v_mov_b32 {v(VFL)}, {L_FL}
    v_mov_b32 {v(VONE)}, 1
    s_mov_b32 {s(sFC)}, 0x1000000
    ''')


Wq, XR = 128, 120
I(f'''
v_lshrrev_b32 v2, 4, v0
s_and_b32 {s(sX)}, s2, 7
v_and_b32 v1, 15, v0
s_lshr_b32 {s(sY)}, s2, 3
v_lshl_add_u32 v5, {s(sX)}, 2, v2
v_lshl_add_u32 v5, v5, 9, {s(sY)}
v_lshl_add_u32 v5, v5, 4, v1
v_lshlrev_b32 v3, 4, v0
v_lshlrev_b32 v5, 4, v5
s_movk_i32 {s(sT2)}, 0x4000
s_waitcnt lgkmcnt(0)
global_load_dwordx4 {v(XR, 4)}, v3, {P(pX)}
s_add_u32 s16, {s(pWQ)}, 0x2000
s_addc_u32 s17, {s(pWQ + 1)}, 0
''')
for k in range(16):
    I(f'global_load_dwordx4 {v(Wq + 4 * k, 4)}, v5, {P(16 if k & 1 else pWQ)}{NT}')
    if k & 1 and k < 15:
        I(f'v_add_u32 v5, {s(sT2)}, v5')
common(False)
if args.bpos == 0:
    I('s_barrier')
I('s_waitcnt lgkmcnt(0)')
load_epoch()
if args.pw & 1:
    I(f's_lshl_b32 {s(sT0)}, s2, 9')
    I(f's_add_u32 {s(sT0)}, {s(sT0)}, {W_H1}')
    I(f'v_add_u32 v12, {s(sT0)}, v3')
    for e in range(4):
        I(f'v_mov_b32 {v(REC + e)}, 0')
    I('s_mov_b32 exec_hi, 0')
    I(f'global_store_dwordx4 v12, {v(REC, 4)}, {P(pWS)} sc1')
    I('s_mov_b64 exec, -1')
TS(1)
build_sel()
I(f'''
v_add_u32 v10, {L_XN}, v3
s_lshl_b32 {s(sT0)}, {s(sJ)}, 7
s_add_u32 {s(sT0)}, {s(sT0)}, {L_XN}
v_lshl_add_u32 v11, v2, 5, {s(sT0)}
s_lshl_b32 {s(sT0)}, s2, 9
s_add_u32 {s(sT0)}, {s(sT0)}, {W_H1}
v_add_u32 v12, {s(sT0)}, v3
s_mov_b32 {s(sT3)}, 0xffff0000
s_mov_b32 {s(sK0)}, 0x07060501
s_mov_b32 {s(sK1)}, 0x07060502
s_mov_b32 {s(sK2)}, 0x07060503
''')
F, Dd, t0, t1, t2, t3, PK = 96, 104, 112, 113, 114, 115, 116
I(f's_waitcnt vmcnt({(16, 19, 17)[args.top] + (args.pw & 1)})')
if args.bpos == 1:
    I('s_barrier')
TS(2)
if args.ln:
    pk = lambda r: v(r, 2)
    I(f'v_readfirstlane_b32 {s(sT0)}, {v(XR)}')
    for i in range(4):
        I(f'v_lshlrev_b32 {v(F + 2 * i)}, 16, {v(XR + i)}')
        I(f'v_and_b32 {v(F + 2 * i + 1)}, {s(sT3)}, {v(XR + i)}')
    I(f's_lshl_b32 {s(sT0)}, {s(sT0)}, 16')
    I(f's_mov_b32 {s(sT1)}, {s(sT0)}')
    for i in range(4):
        I(f'v_pk_add_f32 {pk(Dd + 2 * i)}, {pk(F + 2 * i)}, {P(sT0)} neg_lo:[0,1] neg_hi:[0,1]')
    I(f"""
    v_pk_add_f32 {pk(t0)}, {pk(Dd)}, {pk(Dd + 2)}
    v_pk_mul_f32 {pk(t2)}, {pk(Dd)}, {pk(Dd)}
    v_pk_add_f32 {pk(PK)}, {pk(Dd + 4)}, {pk(Dd + 6)}
    v_pk_fma_f32 {pk(t2)}, {pk(Dd + 2)}, {pk(Dd + 2)}, {pk(t2)}
    v_pk_add_f32 {pk(t0)}, {pk(t0)}, {pk(PK)}
    v_pk_fma_f32 {pk(t2)}, {pk(Dd + 4)}, {pk(Dd + 4)}, {pk(t2)}
    v_add_f32 {v(t0)}, {v(t0)}, {v(t1)}
    v_pk_fma_f32 {pk(t2)}, {pk(Dd + 6)}, {pk(Dd + 6)}, {pk(t2)}
    v_add_f32 {v(t2)}, {v(t2)}, {v(t3)}
    """)
    if args.bpos == 2:
        I('s_barrier')
    row_allreduce('v_add_f32', [t0, t2])
    for m in ('row_bcast:15 row_mask:0xa', 'row_bcast:31 row_mask:0xc'):
        for r_ in (t0, t2):
            I(f'v_add_f32 {v(r_)}, {v(r_)}, {v(r_)} {m}')
    I(f'v_mov_b32 {v(t1)}, 0x3b000000')
    I(f'v_readlane_b32 {s(sT1)}, {v(t0)}, 63')
    I(f'v_readlane_b32 {s(sT2)}, {v(t2)}, 63')
    rnd = lambda r_: [f'v_cvt_pk_bf16_f32 {v(r_)}, {v(r_)}, {v(r_)}', f'v_and_b32 {v(r_)}, {s(sT3)}, {v(r_)}']
    I(f"""
    v_mul_f32 {v(t0)}, {s(sT1)}, {v(t1)}
    v_mul_f32 {v(t2)}, {s(sT2)}, {v(t1)}
    v_fma_f32 {v(t2)}, -{v(t0)}, {v(t0)}, {v(t2)}
    v_add_f32 {v(t0)}, {s(sT0)}, {v(t0)}
    v_max_f32 {v(t2)}, 0, {v(t2)}
    """)
    c1 = rnd(t0) + [f'v_pk_add_f32 {pk(Dd + 2 * i)}, {pk(F + 2 * i)}, {pk(t0)} op_sel_hi:[1,0] neg_lo:[0,1] neg_hi:[0,1]' for i in range(4)]
    c1 += [f'v_cvt_pk_bf16_f32 {v(PK + i)}, {v(Dd + 2 * i)}, {v(Dd + 2 * i + 1)}' for i in range(4)]
    for i in range(4):
        c1 += [f'v_lshlrev_b32 {v(Dd + 2 * i)}, 16, {v(PK + i)}', f'v_and_b32 {v(Dd + 2 * i + 1)}, {s(sT3)}, {v(PK + i)}']
    c2 = rnd(t2) + [f'v_add_f32 {v(t2)}, 0x3727c5ac, {v(t2)}'] + rnd(t2) + [f'v_sqrt_f32 {v(t2)}, {v(t2)}'] + rnd(t2) + [f'v_rcp_f32 {v(t2)}, {v(t2)}']
    while c1 or c2:
        for c_ in (c2, c1, c1):
            if c_:
                I(c_.pop(0))
    for i in range(4):
        I(f'v_pk_mul_f32 {pk(Dd + 2 * i)}, {pk(Dd + 2 * i)}, {pk(t2)} op_sel_hi:[1,0]')
    for i in range(4):
        I(f'v_cvt_pk_bf16_f32 {v(PK + i)}, {v(Dd + 2 * i)}, {v(Dd + 2 * i + 1)}')
else:
    for i in range(4):
        I(f'v_lshlrev_b32 {v(F + 2 * i)}, 16, {v(XR + i)}')
        I(f'v_and_b32 {v(F + 2 * i + 1)}, {s(sT3)}, {v(XR + i)}')
    I(f'''
    v_add_f32 {v(t0)}, {v(F)}, {v(F + 1)}
    v_add_f32 {v(t1)}, {v(F + 2)}, {v(F + 3)}
    v_add_f32 {v(t2)}, {v(F + 4)}, {v(F + 5)}
    v_add_f32 {v(t3)}, {v(F + 6)}, {v(F + 7)}
    v_add_f32 {v(t0)}, {v(t0)}, {v(t1)}
    v_add_f32 {v(t2)}, {v(t2)}, {v(t3)}
    v_add_f32 {v(t0)}, {v(t0)}, {v(t2)}
    ''')
    row_allreduce('v_add_f32', [t0])
    I(f'v_add_f32 {v(t0)}, {v(t0)}, {v(t0)} row_bcast:15 row_mask:0xa')
    I(f'v_add_f32 {v(t0)}, {v(t0)}, {v(t0)} row_bcast:31 row_mask:0xc')
    I(f'v_mov_b32 {v(t1)}, 0x3b000000')
    I(f'v_readlane_b32 {s(sT0)}, {v(t0)}, 63')
    I(f'v_mul_f32 {v(t1)}, {s(sT0)}, {v(t1)}')
    for i in range(8):
        I(f'v_sub_f32 {v(Dd + i)}, {v(F + i)}, {v(t1)}')
    if args.bpos == 2:
        I('s_barrier')
    I(f'v_mul_f32 {v(t0)}, {v(Dd)}, {v(Dd)}')
    I(f'v_mul_f32 {v(t2)}, {v(Dd + 1)}, {v(Dd + 1)}')
    for i in range(2, 8, 2):
        I(f'v_fmac_f32 {v(t0)}, {v(Dd + i)}, {v(Dd + i)}')
        I(f'v_fmac_f32 {v(t2)}, {v(Dd + i + 1)}, {v(Dd + i + 1)}')
    I(f'v_add_f32 {v(t0)}, {v(t0)}, {v(t2)}')
    I(f'v_cvt_pk_bf16_f32 {v(t1)}, {v(t1)}, {v(t1)}')
    I(f'v_and_b32 {v(t1)}, {s(sT3)}, {v(t1)}')
    row_allreduce('v_add_f32', [t0], steps=(8,))
    for i in range(0, 4):
        I(f'v_sub_f32 {v(Dd + i)}, {v(F + i)}, {v(t1)}')
    row_allreduce('v_add_f32', [t0], steps=(4,))
    for i in range(4, 8):
        I(f'v_sub_f32 {v(Dd + i)}, {v(F + i)}, {v(t1)}')
    row_allreduce('v_add_f32', [t0], steps=(2,))
    for i in range(0, 2):
        I(f'v_cvt_pk_bf16_f32 {v(PK + i)}, {v(Dd + 2 * i)}, {v(Dd + 2 * i + 1)}')
    row_allreduce('v_add_f32', [t0], steps=(1,))
    for i in range(2, 4):
        I(f'v_cvt_pk_bf16_f32 {v(PK + i)}, {v(Dd + 2 * i)}, {v(Dd + 2 * i + 1)}')
    I(f'v_add_f32 {v(t0)}, {v(t0)}, {v(t0)} row_bcast:15 row_mask:0xa')
    for i in range(0, 2):
        I(f'v_lshlrev_b32 {v(Dd + 2 * i)}, 16, {v(PK + i)}')
        I(f'v_and_b32 {v(Dd + 2 * i + 1)}, {s(sT3)}, {v(PK + i)}')
    I(f'v_add_f32 {v(t0)}, {v(t0)}, {v(t0)} row_bcast:31 row_mask:0xc')
    for i in range(2, 4):
        I(f'v_lshlrev_b32 {v(Dd + 2 * i)}, 16, {v(PK + i)}')
        I(f'v_and_b32 {v(Dd + 2 * i + 1)}, {s(sT3)}, {v(PK + i)}')
    I(f'v_mov_b32 {v(t1)}, 0x3b000000')
    I(f'v_readlane_b32 {s(sT0)}, {v(t0)}, 63')
    I(f'''
    v_mul_f32 {v(t1)}, {s(sT0)}, {v(t1)}
    v_cvt_pk_bf16_f32 {v(t1)}, {v(t1)}, {v(t1)}
    v_and_b32 {v(t1)}, {s(sT3)}, {v(t1)}
    v_add_f32 {v(t1)}, 0x3727c5ac, {v(t1)}
    v_cvt_pk_bf16_f32 {v(t1)}, {v(t1)}, {v(t1)}
    v_and_b32 {v(t1)}, {s(sT3)}, {v(t1)}
    v_sqrt_f32 {v(t1)}, {v(t1)}
    v_cvt_pk_bf16_f32 {v(t1)}, {v(t1)}, {v(t1)}
    v_and_b32 {v(t1)}, {s(sT3)}, {v(t1)}
    v_rcp_f32 {v(t1)}, {v(t1)}
    ''')
    for i in range(8):
        I(f'v_mul_f32 {v(Dd + i)}, {v(Dd + i)}, {v(t1)}')
    for i in range(4):
        I(f'v_cvt_pk_bf16_f32 {v(PK + i)}, {v(Dd + 2 * i)}, {v(Dd + 2 * i + 1)}')
I(f'ds_write_b128 v10, {v(PK, 4)}')
I(f'ds_read_b128 {v(XP, 4)}, v11')
I(f'ds_read_b128 {v(XP + 4, 4)}, v11 offset:16')
if args.bpos == 3:
    I('s_barrier')
epoch_ready()
TS(3)
diag_stage(16, lambda k: Wq + 4 * k, args.pw & 1)
for i in range(3):
    I(f'v_perm_b32 {v(REC + i)}, {v(ACC0 + i)}, {v(ACC0 + 3)}, {s(sK0 + i)}')
I('s_mov_b32 exec_hi, 0')
I(f'global_store_dwordx4 v12, {v(REC, 4)}, {P(pWS)} sc1')
I(f'ds_write_b128 v10, {v(ACC0, 4)} offset:{L_CX - L_XN}')
TS(4)
flag_add(F_F0)
I('s_branch L_QG')

a.label('L_F1')
common()
I(f's_lshl_b32 {s(sT0)}, {s(sJ)}, 19')
I(f's_lshl_b32 {s(sT1)}, {s(sH)}, 8')
I(f's_add_u32 {s(sT0)}, {s(sT0)}, {s(sT1)}')
WK, G1, QF, DK = 128, 192, 96, 112
I(f'''
v_lshlrev_b32 v6, 1, v2
v_xor_b32 v6, v6, v1
v_lshlrev_b32 v5, 16, v2
v_lshl_add_u32 v5, v6, 4, v5
v_add_u32 v5, {s(sT0)}, v5
v_xor_b32 v6, 0x80, v5
v_add_u32 v6, 0x40000, v6
s_mov_b32 {s(sT2)}, 0x8000
s_mov_b32 {s(sT3)}, {(-3 * 8192) & 0xffffffff}
s_mov_b32 m0, {L_QA}
s_waitcnt lgkmcnt(0)
''')
load_epoch()
if args.pw & 2:
    I(f's_lshl_b32 {s(sT1)}, s2, 7')
    I(f's_add_u32 {s(sT1)}, {s(sT1)}, {W_H2}')
    I(f'v_add_u32 v12, {s(sT1)}, v3')
    for e in range(4):
        I(f'v_mov_b32 {v(20 + e)}, 0')
I('s_barrier')
if args.pw & 2:
    I('s_mov_b64 exec, 0xff')
    I(f'global_store_dwordx4 v12, v[20:23], {P(pWS)} sc1')
    I('s_mov_b64 exec, -1')
for k in range(16):
    I(f'global_load_lds_dwordx4 {"v6" if k & 1 else "v5"}, {P(pWUK)}{NT}')
    if k < 15:
        I('s_add_u32 m0, m0, 0x400')
    if k < 14:
        I(f'v_add_u32 {"v6" if k & 1 else "v5"}, {s(sT3 if k & 2 else sT2)}, {"v6" if k & 1 else "v5"}')
TS(1)
I(f'''
v_and_b32 v5, 7, v1
v_lshlrev_b32 v5, 1, v5
v_xor_b32 v5, v5, v2
v_lshlrev_b32 v5, 4, v5
v_lshl_add_u32 v5, v1, 8, v5
v_add_u32 v24, {L_QA}, v5
v_xor_b32 v25, 64, v24
v_xor_b32 v26, 0x80, v24
v_xor_b32 v27, 0xc0, v24
s_lshl_b32 {s(sT0)}, {s(sH)}, 12
s_add_u32 {s(sT0)}, {s(sT0)}, {W_H1}
v_add_u32 v8, {s(sT0)}, v3
s_lshl_b32 {s(sT1)}, {s(sJ)}, 9
v_add_u32 v6, {s(sT1)}, v3
s_movk_i32 {s(sT1)}, 0xfff
v_and_b32 v16, {s(sT1)}, v6
v_add_u32 v6, 0x400, v6
v_and_b32 v17, {s(sT1)}, v6
v_add_u32 v6, 0x400, v6
v_and_b32 v18, {s(sT1)}, v6
v_add_u32 v6, 0x400, v6
v_and_b32 v19, {s(sT1)}, v6
v_add_u32 v32, {s(sT0)}, v16
v_add_u32 v33, {s(sT0)}, v17
v_add_u32 v34, {s(sT0)}, v18
v_add_u32 v35, {s(sT0)}, v19
v_add_u32 v9, {L_CX}, v3
v_and_b32 v10, 1, v2
v_lshlrev_b32 v10, 1, v10
v_lshrrev_b32 v11, 1, v2
v_add_u32 v10, v10, v11
v_lshl_add_u32 v10, v1, 2, v10
v_lshlrev_b32 v10, 2, v10
v_add_u32 v10, {L_CL}, v10
v_lshlrev_b32 v11, 4, v2
v_add_u32 v11, {L_CL}, v11
s_lshl_b32 {s(sT0)}, s2, 7
s_add_u32 {s(sT0)}, {s(sT0)}, {W_H2}
v_add_u32 v12, {s(sT0)}, v3
v_add_u32 v37, 8, v1
s_mov_b32 {s(sM2)}, {EMB}
s_mov_b32 {s(sM2 + 1)}, {~EMB & 0xffffffff}
s_mov_b32 {s(sK0)}, 0x0c04000c
s_mov_b32 {s(sK1)}, 0x0402010c
s_mov_b32 {s(sK2)}, 0x07060302
s_mov_b32 {s(sM3 + 1)}, 0x10000
''')
epoch_ready()
I(f'v_mov_b32 v22, {s(sEP)}')
I(f's_mul_i32 {s(sM3)}, {s(sEP)}, {(2 * HASH) & 0xffffffff}')
I(f's_add_u32 {s(sM3)}, {s(sM3)}, {HASH}')
I('s_setprio 1')
NP = args.np
for p_ in range(NP):
    I(f'v_mov_b32 {v(G1 + 16 * p_ + 3)}, v22')
    for e in range(3):
        I(f'v_mov_b32 {v(G1 + 16 * p_ + e)}, 0')


def h1_loads(p_):
    for k in range(4):
        if k == 0:
            I('s_mov_b32 exec_lo, 0')
        I(f'global_load_dwordx4 {v(G1 + 16 * p_ + 4 * k, 4)}, {v(32 + k)}, {P(pWS)} sc1')
        if k == 0:
            I('s_mov_b32 exec_lo, -1')


if args.hint1:
    assert NP == 1
    I(f's_lshl_b32 {s(sT0)}, {s(sH)}, 12')
    I(f's_add_u32 {s(sT0)}, {s(sT0)}, {W_H1 + 508}')
    I(f's_add_u32 {s(sB)}, {s(pWS)}, {s(sT0)}')
    I(f's_addc_u32 {s(sB + 1)}, {s(pWS + 1)}, 0')
    HO = [4, 5, 6, 7, 8, 9, 12]
    for k in range(7):
        I(f's_add_u32 {s(HO[k])}, {s(sJ)}, {k + 1}')
        I(f's_and_b32 {s(HO[k])}, {s(HO[k])}, 7')
        I(f's_lshl_b32 {s(HO[k])}, {s(HO[k])}, 9')
    scalar_poll([s(r) for r in HO])
elif args.hr:
    flag_wait(C_ER, 4)
else:
    I(f's_waitcnt vmcnt({args.hv})')
TS(2)
h1_loads(0)
I('s_waitcnt vmcnt(4)')
for tau in range(4):
    for t in range(4):
        I(f'ds_read_b128 {v(WK + 16 * tau + 4 * t, 4)}, {v(24 + t)} offset:{4096 * tau}')
for p_ in range(1, NP):
    if p_ > 1 and args.sl:
        I(f's_sleep {args.sl}')
    h1_loads(p_)
Q4 = 40
for e in range(4):
    I(f'v_mov_b32 {v(Q4 + 4 + e)}, 0')
flag_wait(F_F0, 1)
I('s_mov_b32 exec_hi, 0')
I(f'ds_read_b128 {v(Q4 + 4, 4)}, v9')
I('s_mov_b64 exec, -1')
I(f's_mov_b32 {s(sCNT)}, {args.spin}')
I('s_waitcnt lgkmcnt(0)')
a.label('L_F1_poll')
for p_ in range(NP):
    G = G1 + 16 * p_
    I(f's_sub_u32 {s(sCNT)}, {s(sCNT)}, 1')
    I(f's_waitcnt vmcnt({4 * (NP - 1)})')
    I(f'v_xor_b32 v16, {v(G + 3)}, v22')
    for k in range(1, 4):
        I(f'v_bitop3_b32 v16, {v(G + 4 * k + 3)}, v22, v16 bitop3:0xbe')
    I('v_cmp_ne_u32 vcc, 0, v16')
    a.B(f's_cbranch_scc1 L_F1_go{p_}')
    a.B(f's_cbranch_vccz L_F1_go{p_}')
    h1_loads(p_)
I('s_branch L_F1_poll')
for p_ in reversed(range(NP)):
    G = G1 + 16 * p_
    a.label(f'L_F1_go{p_}')
    for k in range(4):
        I(f'v_perm_b32 {v(G + 4 * k + 3)}, {v(G + 4 * k + 1)}, {v(G + 4 * k)}, {s(sK0)}')
    for k in range(4):
        I(f'v_perm_b32 {v(G + 4 * k + 3)}, {v(G + 4 * k + 2)}, {v(G + 4 * k + 3)}, {s(sK1)}')
    for e in (0, 2):
        I(f'v_pk_add_f32 {v(Q4 + 4 + e, 2)}, {v(Q4 + 4 + e, 2)}, {v(G + e, 2)}')
        I(f'v_pk_add_f32 {v(G + 4 + e, 2)}, {v(G + 4 + e, 2)}, {v(G + 8 + e, 2)}')
    for e in (0, 2):
        I(f'v_pk_add_f32 {v(Q4 + 4 + e, 2)}, {v(Q4 + 4 + e, 2)}, {v(G + 12 + e, 2)}')
    for e in (0, 2):
        I(f'v_pk_add_f32 {v(Q4 + e, 2)}, {v(Q4 + 4 + e, 2)}, {v(G + 4 + e, 2)}')
    if p_:
        I('s_branch L_F1_go')
a.label('L_F1_go')
TS(3)
TSN()
G1 = Q4
I(f'v_permlane32_swap_b32 {v(G1)}, {v(G1 + 2)}')
I(f'v_permlane32_swap_b32 {v(G1 + 1)}, {v(G1 + 3)}')
I(f'v_add_f32 {v(G1)}, {v(G1)}, {v(G1 + 2)}')
I(f'v_add_f32 {v(G1 + 1)}, {v(G1 + 1)}, {v(G1 + 3)}')
I(f'v_cvt_pk_bf16_f32 v16, {v(G1)}, {v(G1 + 1)}')
I('ds_write_b32 v10, v16')
for t in range(4):
    I(f'ds_read_b128 {v(QF + 4 * t, 4)}, v11 offset:{64 * t}')
for half in ((0, 1), (2, 3)):
    for t in range(4):
        if half[0] == 0:
            I(f's_waitcnt lgkmcnt({3 - t})')
        for tau in half:
            I(f'{MFMA} {v(DK + 4 * tau, 4)}, {v(QF + 4 * t, 4)}, {v(WK + 16 * tau + 4 * t, 4)}, {"0" if t == 0 else v(DK + 4 * tau, 4)}')


def q_pack(k):
    lo, hi = DK + 8 * k, DK + 8 * k + 4
    I(f'v_cvt_pk_bf16_f32 {v(24 + k)}, {v(lo)}, {v(hi)}')
    I(f'v_add_u32 {v(lo)}, {s(sM3 + 1)}, {v(lo)}')
    I(f'v_add_u32 {v(hi)}, {s(sM3 + 1)}, {v(hi)}')
    I(f'v_perm_b32 {v(20 + k)}, {v(hi)}, {v(lo)}, {s(sK2)}')
    I(f'v_and_b32 {v(20 + k)}, {s(sM2 + 1)}, {v(20 + k)}')


q_pack(0)
I('v_mov_b32 v22, v24 row_ror:8')
q_pack(1)
I('v_add_u32 v16, v20, v21')
I('v_mov_b32 v23, v25 row_ror:8')
for st in OCT:
    I(f'v_add_u32 v16, v16, v16 {st}')
I(f'v_sub_u32 v16, {s(sM3)}, v16')
I('v_lshrrev_b32 v17, v1, v16')
I('v_lshrrev_b32 v16, v37, v16')
I(f'v_and_or_b32 v20, v17, {s(sM2)}, v20')
I(f'v_and_or_b32 v21, v16, {s(sM2)}, v21')
I('s_mov_b64 exec, 0xff')
I(f'global_store_dwordx4 v12, v[20:23], {P(pWS)} sc1')
TS(4)
I('s_setprio 0')
flag_add(F_H2)
I('s_waitcnt vmcnt(0)')
flag_add(F_H2)
a.label('L_PV1')
tr_addr()
pv_setup()
pv_prewrite(False)


def scalar_prefetch():
    I(f'''
    s_lshr_b32 {s(sHT)}, {s(sY)}, 3
    s_lshl2_add_u32 {s(sHT)}, {s(sX)}, {s(sHT)}
    s_bfe_u32 {s(sDI)}, {s(sY)}, 0x10002
    s_lshl1_add_u32 {s(sHT)}, {s(sHT)}, {s(sDI)}
    s_and_b32 {s(sCI)}, {s(sY)}, 3
    s_lshr_b32 {s(sT1)}, {s(sWV)}, 1
    s_lshl1_add_u32 {s(sCI)}, {s(sCI)}, {s(sT1)}
    ''')
    for bit, ptr, sh_ci, sh_ht, step in ((1, pWUV, 19, 7, 8192), (2, pWO, 13, 16, 128)):
        if not args.spf & bit:
            continue
        lab = a.newlabel('L_spf')
        I(f's_lshl_b32 {s(sT0)}, {s(sCI)}, {sh_ci}')
        I(f's_lshl_b32 {s(sT1)}, {s(sHT)}, {sh_ht}')
        I(f's_add_u32 {s(sT0)}, {s(sT0)}, {s(sT1)}')
        I(f's_add_u32 {s(sB)}, {s(ptr)}, {s(sT0)}')
        I(f's_addc_u32 {s(sB + 1)}, {s(ptr + 1)}, 0')
        I(f's_mov_b32 {s(sCNT)}, 8')
        a.label(lab)
        for k in range(8):
            I(f's_load_dword{"x2 s[62:63]" if args.spx else " s62"}, {P(sB)}, {k * step + args.spx}')
        I(f's_add_u32 {s(sB)}, {s(sB)}, {8 * step}')
        I(f's_addc_u32 {s(sB + 1)}, {s(sB + 1)}, 0')
        I(f's_sub_u32 {s(sCNT)}, {s(sCNT)}, 1')
        I(f's_cmp_lg_u32 {s(sCNT)}, 0')
        I(f's_cbranch_scc1 {lab}')
    TS(12)


for i in range(args.pre):
    if args.spf and i == args.spw:
        scalar_prefetch()
    tr_slot(i)
I('s_branch L_PVs')

a.label('L_F23')
common()
I(f's_cmp_eq_u32 {s(sWV)}, 2')
I('s_cbranch_scc0 L_F3')
I(f'''
v_mov_b32 v16, 0
v_mov_b32 v17, 0
v_mov_b32 v18, 0
v_mov_b32 v19, 0
v_and_b32 v20, 3, v0
v_lshl_add_u32 v20, v20, 4, {v(VFL)}
ds_write_b128 v20, v[16:19]
v_lshlrev_b32 v20, 2, v1
v_add_u32 v20, {L_MA}, v20
v_mov_b32 v21, 0xff800000
ds_write_b32 v20, v21
''')
a.label('L_F3')
HFG, B1R = 24, 28
W1T = lambda k: 56 + 4 * k if k < 6 else 8 if k == 6 else 4
I('s_waitcnt lgkmcnt(0)')
load_epoch()
if args.ee:
    I('s_waitcnt lgkmcnt(0)')
I('s_barrier')
epoch_ready()
I(f's_cmp_eq_u32 {s(sWV)}, 2')
I('s_cbranch_scc1 L_F2')


def ffn_w1(dst):
    I(f"""
    s_and_b32 {s(sT3)}, s2, 15
    s_mul_i32 {s(sT0)}, {s(sT3)}, {32 * 3584}
    s_lshr_b32 {s(sT1)}, s2, 4
    s_lshl_b32 {s(sT1)}, {s(sT1)}, 8
    s_add_u32 {s(sT0)}, {s(sT0)}, {s(sT1)}
    v_mul_u32_u24 v12, {8 * 3584}, v2
    v_lshl_add_u32 v12, v1, 4, v12
    v_add_u32 v12, {s(sT0)}, v12
    s_movk_i32 {s(sT2)}, {2 * 3584}
    """)
    for k in range(8):
        I(f'global_load_dwordx4 {v(dst(k), 4)}, v12, {P(pW1)} offset:{3584 * (k & 1)}{NT}')
        if k & 1 and k < 7:
            I(f'v_add_u32 v12, {s(sT2)}, v12')


def ffn_rest(dst, younger):
    global AT, SEL
    AT, SEL = 128, 136
    I(f"""
    s_and_b32 {s(sT3)}, s2, 15
    s_lshr_b32 {s(sT1)}, s2, 4
    s_lshl_b32 {s(sT1)}, {s(sT1)}, 8
    s_lshl_b32 {s(sT3)}, {s(sT3)}, 6
    s_add_u32 {s(sT0)}, {s(sT3)}, {L_XN}
    v_lshl_add_u32 v144, v2, 4, {s(sT0)}
    ds_read_b128 {v(XP, 4)}, v144
    s_lshl_b32 {s(sT0)}, {s(sT1)}, 6
    s_add_u32 {s(sT0)}, {s(sT0)}, {s(sT3)}
    s_lshl_b32 {s(sT0)}, {s(sT0)}, 1
    s_add_u32 {s(sT0)}, {s(sT0)}, {W_HF}
    v_lshrrev_b32 v145, 2, v0
    v_lshlrev_b32 v146, 11, v145
    v_and_b32 v147, 3, v0
    v_lshl_add_u32 v146, v147, 4, v146
    v_add_u32 v146, {s(sT0)}, v146
    v_cmp_gt_u32 {P(sM1)}, v0, 31
    s_and_b32 {s(sT0)}, s2, 3
    s_lshl_b32 {s(sT0)}, {s(sT0)}, 6
    s_add_u32 {s(sT0)}, {s(sT0)}, {s(sT1)}
    s_bfe_u32 {s(sT1)}, s2, 0x10002
    s_lshl3_add_u32 {s(sT0)}, {s(sT1)}, {s(sT0)}
    s_bfe_u32 {s(sT1)}, s2, 0x10003
    s_lshl2_add_u32 {s(sT0)}, {s(sT1)}, {s(sT0)}
    v_lshl_add_u32 v148, v147, 4, {s(sT0)}
    s_lshl_b32 {s(sT0)}, s2, 11
    s_add_u32 {s(sT0)}, {s(sT0)}, {W_HF}
    v_lshlrev_b32 v147, 4, v147
    v_lshl_add_u32 v147, v145, 7, v147
    v_add_u32 v147, {s(sT0)}, v147
    v_lshlrev_b32 v149, 3, v0
    v_add_u32 v149, {L_FF}, v149
    s_mov_b32 {s(sT3)}, 0xffff0000
    """)
    build_sel(150)
    I('s_waitcnt lgkmcnt(0)')
    diag_stage(8, dst, younger)
    I(f'v_cndmask_b32 {v(REC)}, {v(ACC0)}, {v(ACC0 + 2)}, {P(sM1)}')
    I(f'v_cndmask_b32 {v(REC + 1)}, {v(ACC0 + 1)}, {v(ACC0 + 3)}, {P(sM1)}')
    I(f'global_store_dwordx4 v146, {v(REC, 4)}, {P(pWS)} sc1')
    I(f'global_load_dword {v(B1R)}, v148, {P(pB1)}')
    TS(2)
    I(f's_mov_b32 {s(sCNT)}, {args.spin}')
    if args.ffn:
        I('s_waitcnt vmcnt(2)')
        flag_add(C_ACK)
        I('s_waitcnt vmcnt(0)')
    else:
        flag_wait(*((C_ISS, 4) if args.fr else (F_H2, 2)))
    a.label('L_TF')
    I(f'global_load_dwordx4 {v(HFG, 4)}, v147, {P(pWS)} sc1')
    I(f's_sub_u32 {s(sCNT)}, {s(sCNT)}, 1')
    I('s_waitcnt vmcnt(0)')
    I(f'v_cmp_ne_u32 vcc, {v(HFG + 2)}, {v(REC + 2)}')
    a.B('s_cbranch_scc1 L_TF_go')
    a.B('s_cbranch_vccnz L_TF')
    a.label('L_TF_go')
    TSN()
    row_allreduce('v_add_f32', [HFG, HFG + 1], steps=(4, 8))
    I(f'''
    v_permlane32_swap_b32 {v(HFG)}, {v(HFG + 1)}
    v_add_f32 {v(HFG)}, {v(HFG)}, {v(HFG + 1)}
    v_mov_b32 {v(HFG + 1)}, {v(HFG)}
    v_permlane16_swap_b32 {v(HFG)}, {v(HFG + 1)}
    v_lshlrev_b32 v16, 16, {v(B1R)}
    v_add_f32 {v(HFG)}, {v(HFG)}, {v(HFG + 1)}
    v_and_b32 v17, {s(sT3)}, {v(B1R)}
    v_cvt_pk_bf16_f32 {v(HFG)}, {v(HFG)}, {v(HFG)}
    v_cndmask_b32 v16, v16, v17, {P(sM1)}
    v_and_b32 {v(HFG)}, {s(sT3)}, {v(HFG)}
    v_add_f32 {v(HFG)}, {v(HFG)}, v16
    v_cvt_pk_bf16_f32 {v(HFG)}, {v(HFG)}, {v(HFG)}
    v_and_b32 {v(HFG)}, {s(sT3)}, {v(HFG)}
    v_max_f32 {v(HFG)}, 0, {v(HFG)}
    v_mul_f32 {v(HFG)}, {v(HFG)}, {v(HFG)}
    v_cvt_pk_bf16_f32 {v(HFG)}, {v(HFG)}, {v(HFG)}
    v_mov_b32 {v(HFG + 1)}, {v(HFG)}
    v_permlane32_swap_b32 {v(HFG)}, {v(HFG + 1)}
    ''')
    for g_ in range(4):
        for i in range(2):
            I(f'v_mov_b32 {v(HFG + 2 + i)}, {v(HFG + i)} row_newbcast:{g_} row_mask:{1 << g_}')
    I(f'ds_write_b64 v149, {v(HFG + 2, 2)}')
    TS(4)


if not args.ffn:
    I('s_cmp_ge_u32 s2, 224')
    I('s_cbranch_scc1 L_PV1')
    if args.pw & 8:
        I(f'''
        s_lshr_b32 {s(sT0)}, s2, 4
        s_lshl_b32 {s(sT0)}, {s(sT0)}, 8
        s_and_b32 {s(sT1)}, s2, 15
        s_add_u32 {s(sT0)}, {s(sT0)}, {s(sT1)}
        s_lshl_b32 {s(sT0)}, {s(sT0)}, 7
        s_add_u32 {s(sT0)}, {s(sT0)}, {W_HF}
        v_lshrrev_b32 v16, 3, v0
        v_lshlrev_b32 v16, 11, v16
        v_and_b32 v17, 7, v0
        v_lshl_add_u32 v16, v17, 4, v16
        v_add_u32 v16, {s(sT0)}, v16
        v_add_u32 v17, 0x4000, v16
        v_mov_b32 v20, 0
        v_mov_b32 v21, 0
        v_mov_b32 v22, 0
        v_mov_b32 v23, 0
        global_store_dwordx4 v16, v[20:23], {P(pWS)} sc1
        global_store_dwordx4 v17, v[20:23], {P(pWS)} sc1
        ''')
    flag_wait(F_F0, 1)
    ffn_w1(W1T)
    ffn_rest(W1T, 0)
I('s_branch L_PV1')

a.label('L_F2')
assert args.nopt and not args.probe and not args.pw0


def touch(base_code, offsets):
    I(base_code)
    I(f's_add_u32 {s(sB)}, {s(pWS)}, {s(sT0)}')
    I(f's_addc_u32 {s(sB + 1)}, {s(pWS + 1)}, 0')
    for o in offsets:
        I(f's_load_dword s61, {P(sB)}, {o}')


if args.pt & 8:
    touch(f's_lshr_b32 {s(sT0)}, s2, 4\ns_lshl_b32 {s(sT0)}, {s(sT0)}, 8\ns_and_b32 {s(sT1)}, s2, 15\ns_add_u32 {s(sT0)}, {s(sT0)}, {s(sT1)}\ns_lshl_b32 {s(sT0)}, {s(sT0)}, 7',
          [W_HF + p_ * 2048 for p_ in range(16)])
if args.pt & 4:
    touch(f's_lshl_b32 {s(sT0)}, s2, 12\ns_add_u32 {s(sT0)}, {s(sT0)}, {W_H5}', [z_ * 128 for z_ in range(32)])
if args.pt & 16:
    touch(f's_lshl_b32 {s(sT0)}, s2, 14\ns_add_u32 {s(sT0)}, {s(sT0)}, {W_H3}', [z_ * 128 for z_ in range(128)])
if args.pwq >= 2:
    I(f'''
    s_lshl_b32 {s(sT0)}, {s(sGA)}, 13
    s_add_u32 {s(sT0)}, {s(sT0)}, {s(sS)}
    s_lshl_b32 {s(sT0)}, {s(sT0)}, 8
    s_add_u32 {s(sT0)}, {s(sT0)}, {W_H3}
    v_lshlrev_b32 v6, 15, v2
    v_lshl_add_u32 v6, v1, 4, v6
    v_add_u32 v6, {s(sT0)}, v6
    s_mov_b32 {s(sT1)}, 0x20000
    ''')
    for k in range(16):
        I(f'global_store_dwordx4 v6, v[16:19], {P(pWS)} sc1')
        I(f'v_add_u32 v6, {s(sT1)}, v6')
        if args.pwq > 2:
            I(f's_waitcnt vmcnt({args.pwq - 2})')
if args.warm & 2:
    flag_wait(F_F0, 1)
    I('s_mov_b64 exec, 0')
    I('s_branch L_PVC')
    a.label('L_PVC_back')
    I('s_mov_b64 exec, -1')


a.label('L_QG')
G2, LA = 64, 56
I(f'''
s_lshr_b32 {s(sT1)}, {s(sWV)}, 1
s_lshl1_add_u32 {s(sT0)}, {s(sGA)}, {s(sT1)}
s_lshl_b32 {s(sT0)}, {s(sT0)}, 13
s_add_u32 {s(sT0)}, {s(sT0)}, {W_H2}
v_add_u32 v8, {s(sT0)}, v3
v_add_u32 v9, 0x1000, v8
v_and_b32 v10, 7, v0
v_add_u32 v11, 8, v10
v_lshlrev_b32 v6, 4, v10
v_lshl_add_u32 v6, v0, 8, v6
s_lshl_b32 {s(sT1)}, {s(sT1)}, 7
s_add_u32 {s(sT1)}, {s(sT1)}, {L_QA}
v_add_u32 {v(LA)}, {s(sT1)}, v6
s_mul_i32 {s(sM3)}, {s(sEP)}, {(HASH * 16) & 0xffffffff}
s_add_u32 {s(sM3)}, {s(sM3)}, {(HASH * 8) & 0xffffffff}
''')
for hd in range(1, 8):
    I(f'v_xor_b32 {v(LA + hd)}, {16 * hd}, {v(LA)}')
tr_addr()
pv_setup()
if args.pwq == 1:
    flag_wait(F_H2, 1)
pv_prewrite(True)
I('s_setprio 1')
if args.qa:
    flag_wait(C_ISS, 4)
flag_wait(F_H2, 1 + args.h2)
assert not args.hint2
if args.hint2:
    I(f's_cmp_eq_u32 {s(sWV)}, 0')
    I('s_cbranch_scc1 L_QG_w0')
    I(f's_xor_b32 {s(sT0)}, {s(sY)}, 16')
    I(f's_lshl_b32 {s(sT0)}, {s(sT0)}, 11')
    I(f's_add_u32 {s(sT0)}, {s(sT0)}, {W_H2}')
    I(f's_add_u32 {s(sB)}, {s(pWS)}, {s(sT0)}')
    I(f's_addc_u32 {s(sB + 1)}, {s(pWS + 1)}, 0')
    scalar_poll([k * 256 + 252 for k in range(8)])
    flag_add(F_HINT)
    I('s_branch L_QG_hd')
    a.label('L_QG_w0')
    flag_wait(F_HINT, 1)
    a.label('L_QG_hd')
TS(10)


def qa_loads():
    for k in range(8):
        I(f'global_load_dwordx4 {v(G2 + 4 * k, 4)}, {v(8 + (k >> 2))}, {P(pWS)} offset:{(k & 3) * 1024} sc1')


qa_loads()
for i in range(args.pre):
    tr_slot(i)
I(f's_mov_b32 {s(sCNT)}, {args.spin}')
a.label('L_QG_chk')
for k in range(8):
    d0, d1 = v(G2 + 4 * k), v(G2 + 4 * k + 1)
    I(f's_waitcnt vmcnt({7 - k})')
    I(f'v_and_b32 v6, {s(sK1)}, {d0}')
    I(f'v_and_b32 v7, {s(sK1)}, {d1}')
    I(f'v_xor_b32 {d0}, v6, {d0}')
    I(f'v_xor_b32 {d1}, v7, {d1}')
    I(f'ds_write_b128 {v(LA + k)}, {v(G2 + 4 * k, 4)}')
    I(f'v_lshl_add_u32 v24, v6, v10, {"0" if k == 0 else "v24"}')
    I('v_lshl_add_u32 v24, v7, v11, v24')
    I(f'v_add3_u32 v24, {d0}, {d1}, v24')
for st in OCT:
    I(f'v_add_u32 v24, v24, v24 {st}')
I(f's_sub_u32 {s(sCNT)}, {s(sCNT)}, 1')
I(f'v_cmp_ne_u32 vcc, {s(sM3)}, v24')
a.B('s_cbranch_scc1 L_QG_go')
a.B('s_cbranch_vccz L_QG_go')
I('s_waitcnt lgkmcnt(0)')
I('s_mov_b64 exec, vcc')
qa_loads()
I('s_branch L_QG_chk')
a.label('L_QG_go')
flag_add(C_QA)
I('s_setprio 0')
TS(11)
TSN()
a.label('L_PVs')
for i in range(args.pre, 4):
    if i == args.pwt - 1:
        pv_prewrite(False, True)
    tr_slot(i)

a.label('L_PV')
if args.ffn:
    I(f's_cmp_eq_u32 {s(sWV)}, 3')
    I(f's_cselect_b32 {s(sR)}, s2, 224')
    I(f's_cmp_ge_u32 {s(sR)}, 224')
    I('s_cbranch_scc1 L_PV_now1')
    ffn_w1(W1T)
    a.label('L_PV_now1')
if not args.bm3:
    TS(6)
    I('s_barrier')
if args.pp:
    I(f's_setprio {args.pp}')
I('s_barrier')
a.label('L_PVC')
for u in range(4):
    I(f'ds_read_b128 {v(PF + 4 * u, 4)}, {v(48 + u)}')
LW, MW = 32, 36
I(f'ds_read_b128 {v(LW, 4)}, v43')
I(f'ds_read_b128 {v(MW, 4)}, v42')
TS(7)
O = 16
cvt = lambda k: [f'v_cvt_pk_bf16_f32 {v(O + 4 * r + k)}, {v(ACC + 8 * k + r)}, {v(ACC + 8 * k + 4 + r)}' for r in range(4)]
R4 = range(4)
fill = {}


def place(first, ops):
    for i, t_ in enumerate(ops):
        fill.setdefault(first + i // 2, []).append(t_)


w0 = [f'v_add_f32 {v(LW + r)}, {v(LW + r)}, {v(LW + r)} row_ror:{st}' for st in (8, 4, 2, 1) for r in R4]
w0[0] = 's_waitcnt lgkmcnt(0)\n' + w0[0]
w1 = [f'v_cvt_f16_f32 {v(LW + r)}, {v(LW + r)}' for r in R4]
w1 += [f'v_and_or_b32 {v(LW + r)}, {v(LW + r)}, {s(sT0)}, {v(MW + r)}' for r in R4]
w1 += [f'v_lshrrev_b32 {v(LW + r)}, v1, {v(LW + r)}' for r in R4]
w2 = cvt(0) + [f'v_and_b32 {v(O + 4 * r)}, {s(sK2)}, {v(O + 4 * r)}' for r in R4]
w3 = cvt(1) + [f'v_bfi_b32 {v(O + 4 * r + 1)}, {s(sK1)}, {v(LW + r)}, {v(O + 4 * r + 1)}' for r in R4]
w3 += [f'v_add_u32 {v(CK + r)}, {v(O + 4 * r)}, {v(O + 4 * r + 1)}' for r in R4]
w3 += [f'v_add_u32 {v(CK + r)}, {v(CK + r)}, {v(CK + r)} row_ror:{st}' for st in (8, 4, 2, 1) for r in R4]
allw = w0 + w2 + w1 + w3
place(2, allw[:60])
I(f's_mov_b32 {s(sT0)}, 0xffff')
i = 0
for k in range(4):
    for u in range(4):
        for T in (2 * k, 2 * k + 1):
            if k == 0 and T == 0 and u < 2:
                I(f's_waitcnt lgkmcnt({5 - u})')
            I(f'{MFMA} {v(ACC + 4 * T, 4)}, {v(PF + 4 * u, 4)}, {v(BF + (u * 8 + T) * 4, 4)}, {"0" if u == 0 else v(ACC + 4 * T, 4)}')
            for t_ in fill.get(i, []):
                I(t_)
            i += 1
for t_ in allw[60:] + cvt(2):
    I(t_)
for r in range(4):
    I(f'v_sub_u32 {v(CK + r)}, {s(sK0)}, {v(CK + r)}')
    I(cvt(3)[r])
    I(f'v_lshrrev_b32 {v(CK + r)}, v1, {v(CK + r)}')
    I(f'v_and_or_b32 {v(O + 4 * r)}, {v(CK + r)}, {s(sK1)}, {v(O + 4 * r)}')
    if args.warm & 2 and r == 0:
        a.B('s_cbranch_execz L_PVC_back')
    I(f'global_store_dwordx4 {v(52 + r)}, {v(O + 4 * r, 4)}, {P(pWS)} {args.sf.replace("+", " ")}')
flag_add(C_ST)
TS(8)
if args.ffn:
    I('s_setprio 0')
    I(f's_cmp_ge_u32 {s(sR)}, 224')
    I('s_cbranch_scc1 L_PV_noffn')
    ffn_rest(W1T, 4)
    I('s_branch L_PV_end')
    a.label('L_PV_noffn')
I('s_waitcnt vmcnt(0)')
flag_add(C_ACK)
TS(9)
a.label('L_PV_end')
I('s_waitcnt lgkmcnt(0)')
ts_dump()
I('s_endpgm')

a.label('L_S')
common()
AF, QB, WUV, SA, MK, WO0, QAD = 128, 96, 48, 40, 36, 64, 80
WOR, PL, AW, AT2 = 128, 176, 208, 240
XR2, B2R, OA, W2T, HH = 46, 47, 104, 88, 124
sQ, sDL = sK1, sK2
WOq = lambda q: WO0 + 4 * q if q < 4 else WOR + 4 * (q - 4)
HTC = {0: f's_lshr_b32 {s(sHT)}, {s(sY)}, 3\ns_lshl2_add_u32 {s(sHT)}, {s(sX)}, {s(sHT)}',
       1: f's_and_b32 {s(sHT)}, {s(sY)}, 24\ns_add_u32 {s(sHT)}, {s(sX)}, {s(sHT)}',
       2: f's_bfe_u32 {s(sHT)}, {s(sY)}, 0x10003\ns_lshl1_add_u32 {s(sHT)}, {s(sX)}, {s(sHT)}\ns_and_b32 {s(sCI)}, {s(sY)}, 16\ns_add_u32 {s(sHT)}, {s(sHT)}, {s(sCI)}'}[args.htmap]
ROT = {0: '', 1: f's_lshl1_add_u32 {s(sT1)}, {s(sW)}, {s(sY)}', 2: f's_mov_b32 {s(sT1)}, {s(sY)}', 3: f's_lshl_b32 {s(sT1)}, {s(sW)}, 1'}[args.rot]
if args.rot:
    ROT += f'\ns_and_b32 {s(sT1)}, {s(sT1)}, 7\ns_lshl_b32 {s(sT1)}, {s(sT1)}, 12\nv_xor_b32 v4, {s(sT1)}, v4'
KS = {0: 12, 1: 16, 2: 19}[args.kmap]
if args.kmap == 0:
    I(f's_lshl_b32 {s(sT0)}, {s(sS)}, 17')
elif args.kmap == 1:
    I(f's_and_b32 {s(sT0)}, {s(sS)}, 15')
    I(f's_lshl_b32 {s(sT0)}, {s(sT0)}, 12')
    I(f's_lshl_b32 {s(sT1)}, {s(sX)}, 21')
    I(f's_add_u32 {s(sT0)}, {s(sT0)}, {s(sT1)}')
else:
    I(f's_lshl_b32 {s(sT0)}, {s(sS)}, 12')
I(f"""
s_lshl_b32 {s(sT1)}, {s(sW)}, {KS + 3}
s_add_u32 {s(sT0)}, {s(sT0)}, {s(sT1)}
s_lshl_b32 {s(sT1)}, {s(sW)}, 8
s_add_u32 {s(sT0)}, {s(sT0)}, {s(sT1)}
v_lshlrev_b32 v4, 1, v2
v_xor_b32 v4, v4, v1
v_lshlrev_b32 v4, 4, v4
v_lshl_add_u32 v4, v2, 10, v4
v_add_u32 v4, {s(sT0)}, v4
{ROT}
v_xor_b32 v26, 0x80, v4
{'v_xor_b32' if args.rot else 'v_add_u32'} v26, {1 << KS}, v26
s_mul_i32 {s(sT1)}, {s(sW)}, {32768 + 8192}
s_mov_b32 m0, {s(sT1)}
s_mov_b32 {s(sT2)}, {2 << KS}
s_mov_b32 {s(sQ)}, {s(sW)}
{HTC}
s_and_b32 {s(sCI)}, {s(sY)}, 3
s_bfe_u32 {s(sDI)}, {s(sY)}, 0x10002
v_and_b32 v5, 7, v1
v_lshlrev_b32 v5, 1, v5
v_xor_b32 v5, v5, v2
v_lshlrev_b32 v5, 4, v5
v_lshl_add_u32 v5, v1, 8, v5
s_lshl_b32 {s(sT1)}, {s(sW)}, 13
v_add_u32 v5, {s(sT1)}, v5
v_lshl_add_u32 v27, {s(sW)}, 2, {v(VFL)}
""")
I(f"""
s_lshr_b32 {s(sT0)}, {s(sW)}, 1
s_lshl1_add_u32 {s(sT0)}, {s(sCI)}, {s(sT0)}
s_lshl_b32 {s(sT0)}, {s(sT0)}, 19
s_and_b32 {s(sT3)}, {s(sW)}, 1
s_lshl_b32 {s(sT3)}, {s(sT3)}, 16
s_add_u32 {s(sT0)}, {s(sT0)}, {s(sT3)}
s_lshl1_add_u32 {s(sT3)}, {s(sHT)}, {s(sDI)}
s_lshl_b32 {s(sT1)}, {s(sT3)}, 7
s_add_u32 {s(sT0)}, {s(sT0)}, {s(sT1)}
v_lshrrev_b32 v8, 3, v0
v_lshlrev_b32 v8, 13, v8
v_and_b32 v9, 7, v0
v_lshl_add_u32 v8, v9, 4, v8
v_add_u32 v8, {s(sT0)}, v8
""")
I('s_waitcnt lgkmcnt(0)')
load_epoch()
if args.ee:
    I('s_waitcnt lgkmcnt(0)')
I('s_barrier')
I(f"""
s_lshl_b32 {s(sT0)}, {s(sT3)}, 16
s_lshl_b32 {s(sT1)}, {s(sW)}, 8
s_add_u32 {s(sT0)}, {s(sT0)}, {s(sT1)}
v_lshlrev_b32 v34, 12, v2
v_lshl_add_u32 v34, v1, 4, v34
v_add_u32 v34, {s(sT0)}, v34
""")
for b in range(4):
    I(f's_add_u32 {s(sT0)}, {s(sCI)}, {b}')
    I(f's_and_b32 {s(sT0)}, {s(sT0)}, 3')
    I(f's_lshl_b32 {s(sT0)}, {s(sT0)}, 14')
    I(f'v_add_u32 {v(28 + b)}, {s(sT0)}, v34')
build_masks(MK, 9, 10)
TS(1)


def s_setup():
    I(f"""
    v_lshlrev_b32 v10, 4, v1
    v_add_u32 v10, {L_MX}, v10
    s_lshl_b32 {s(sT0)}, {s(sW)}, 2
    v_add_u32 v9, {s(sT0)}, v10
    s_lshl_b32 {s(sT0)}, {s(sW)}, 10
    s_add_u32 {s(sT0)}, {s(sT0)}, {L_P}
    v_add_u32 v11, {s(sT0)}, v3
    v_lshlrev_b32 v33, 2, v1
    v_add_u32 v33, {L_MF}, v33
    s_lshl_b32 {s(sT0)}, {s(sW)}, 8
    s_add_u32 {s(sT0)}, {s(sT0)}, {L_LS}
    v_lshl_add_u32 v32, v0, 2, {s(sT0)}
    v_xor_b32 v6, v1, v2
    v_lshlrev_b32 v6, 4, v6
    v_lshl_add_u32 v6, v2, 8, v6
    """)
    for i in range(4):
        I(f's_add_u32 {s(sT0)}, {s(sW)}, {i}')
        I(f's_and_b32 {s(sT0)}, {s(sT0)}, 3')
        I(f's_lshl_b32 {s(sT0)}, {s(sT0)}, 12')
        I(f's_add_u32 {s(sT0)}, {s(sT0)}, {L_QA}')
        I(f'v_add_u32 {v(QAD + 2 * i)}, {s(sT0)}, v6')
        I(f'v_xor_b32 {v(QAD + 2 * i + 1)}, 64, {v(QAD + 2 * i)}')
    I(f"""
    s_bfe_u32 {s(sT0)}, s2, 0x20004
    s_and_b32 {s(sT1)}, s2, 3
    s_lshl2_add_u32 {s(sT0)}, {s(sT0)}, {s(sT1)}
    s_lshl_b32 {s(sT0)}, {s(sT0)}, 6
    s_bfe_u32 {s(sT1)}, s2, 0x10002
    s_lshl3_add_u32 {s(sT0)}, {s(sT1)}, {s(sT0)}
    s_bfe_u32 {s(sT1)}, s2, 0x10003
    s_lshl2_add_u32 {s(sT0)}, {s(sT1)}, {s(sT0)}
    v_and_b32 v35, 3, v0
    v_lshl_add_u32 v12, v35, 4, {s(sT0)}
    s_mov_b32 {s(sK0)}, 0x20000
    s_lshr_b32 {s(sT1)}, s2, 6
    s_lshl_b32 {s(sT1)}, {s(sT1)}, 10
    s_add_u32 {s(sT0)}, {s(sT0)}, {s(sT1)}
    s_cmp_lt_u32 s2, 224
    s_cselect_b32 {s(sR)}, -1, 0
    s_cselect_b32 {s(sT1)}, 0, 512
    s_sub_u32 {s(sT0)}, {s(sT0)}, {s(sT1)}
    s_lshl1_add_u32 {s(sT0)}, {s(sT0)}, {s(sW)}
    s_lshl_b32 {s(sT0)}, {s(sT0)}, 8
    v_lshlrev_b32 v34, 13, v2
    v_lshl_add_u32 v34, v1, 4, v34
    v_add_u32 v34, {s(sT0)}, v34
    """)


def dma_row(r):
    k = r & 7
    va = 'v26' if k & 1 else 'v4'
    I(f'global_load_lds_dwordx4 {va}, {P(pCKV)}{NT}')
    if r < 30:
        if k == 5:
            I(f's_lshl_b32 {s(sDL)}, {s(sQ)}, 8')
            I(f's_add_u32 {s(sQ)}, {s(sQ)}, 1')
            I(f's_and_b32 {s(sQ)}, {s(sQ)}, 3')
            I(f's_lshl_b32 {s(sT0)}, {s(sQ)}, 8')
            if args.rot:
                I(f's_xor_b32 {s(sDL)}, {s(sT0)}, {s(sDL)}')
                I(f's_or_b32 {s(sDL)}, {s(sDL)}, {6 << 12}')
            else:
                I(f's_sub_u32 {s(sDL)}, {s(sT0)}, {s(sDL)}')
                I(f's_sub_u32 {s(sDL)}, {s(sDL)}, {6 << KS}')
        if args.rot:
            I(f'v_xor_b32 {va}, {s(sDL) if k >= 6 else (6 << 12) if k & 2 else s(sT2)}, {va}')
        else:
            I(f'v_add_u32 {va}, {s(sDL if k >= 6 else sT2)}, {va}')
    if r < 31:
        if k == 7:
            I(f's_lshl2_add_u32 {s(sT0)}, {s(sQ)}, {s(sW)}')
            I(f's_lshl_b32 m0, {s(sT0)}, 13')
        else:
            I('s_add_u32 m0, m0, 0x400')
    if r == args.qa and r:
        flag_add(C_ISS)
    if r == args.hr and r:
        flag_add(C_ER)


def stage_addr(i):
    I(f's_add_u32 {s(sT1)}, {s(sW)}, {i}')
    I(f's_and_b32 {s(sT1)}, {s(sT1)}, 3')
    I(f's_lshl_b32 {s(sT1)}, {s(sT1)}, 15')
    I(f'v_add_u32 v16, {s(sT1)}, v5')
    for t in range(1, 4):
        I(f'v_xor_b32 {v(16 + t)}, {64 * t}, v16')


def stage_reads(i):
    for t in range(4):
        for tau in range(2):
            I(f'ds_read_b128 {v(AF + 32 * i + 8 * t + 4 * tau, 4)}, {v(16 + t)} offset:{4096 * tau}')


tail = []
for i in range(4):
    tail.append(f'global_load_dwordx4 {v(WO0 + 4 * i, 4)}, v28, {P(pWO)} offset:{1024 * i}{NT if args.nto else ""}')
for i in range(4):
    tail.append(f'global_load_dwordx4 {v(WUV + 4 * i, 4)}, v8, {P(pWUV)}{NT}' + (f'\nv_add_u32 v8, {s(sK0)}, v8' if i < 3 else ''))
for i in range(2):
    tail.append(f'global_load_dwordx4 {v(W2T + 4 * i, 4)}, v34, {P(pW2)} offset:{1024 * i}{NT}')
w2_loads = []
w2_late = []
if args.w2p:
    w2_late = tail[8:10]
    tail = tail[:8]
if args.ffn:
    w2_loads = tail[8:10]
    tail = tail[:8]
    args.ns = min(args.ns, 4) if args.ns == 6 else args.ns
wuv_loads = []
if args.wuv:
    assert args.tord == 1
    wuv_loads = tail[4:8]
    tail = tail[:4] + tail[8:]
elif args.tord == 1:
    tail = tail[:4] + tail[8:10] + tail[4:8]
if args.tord == 2:
    tail = tail[4:8] + tail[8:10] + tail[:4]
assert args.nt1 + args.ns + args.ne <= len(tail)

depth = lambda r: args.d1 if r < args.k1 else (args.d2 if r < args.k2 else args.d3)
for r in range(args.d1):
    dma_row(r)
s_setup()
I(f'global_load_dword v6, v12, {P(pX)}')
I(f'global_load_dword v7, v12, {P(pB2)}')
if args.warm & 1:
    I('s_mov_b64 exec, 0')
    I('s_branch L_SM_nb')
    a.label('L_SM_back')
    I('s_mov_b64 exec, -1')
I('s_mov_b64 vcc, -1')
stg = 0
for r in range(args.d1, 32):
    if args.tpos <= r < args.tpos + args.ne:
        I(tail.pop(0))
    if args.wuv == 2 and args.k1 <= r < args.k1 + 4:
        I(wuv_loads.pop(0))
    dma_row(r)
    d = depth(r)
    if args.dyn and r >= args.k1 and r < 31:
        lab = a.newlabel('L_dy')
        a.B(f's_cbranch_vccz {lab}')
        I(f'ds_read_b32 {v(VFT)}, {v(VFL)} offset:{4 * F_H2}')
        I(f's_waitcnt vmcnt({args.dyn}) lgkmcnt(0)')
        I(f'v_cmp_eq_u32 vcc, 0, {v(VFT)}')
        a.label(lab)
    if r + 1 > d and r < 31:
        I(f's_waitcnt vmcnt({d})')
        if r + 1 - d >= 8 * (stg + 1):
            flag_add(K0, 27)
            stage_addr(stg)
            stage_reads(stg)
            stg += 1
TS(2)
while stg < (3 if args.p2 < 0 else 2):
    stage_addr(stg)
    I(f's_waitcnt vmcnt({24 - 8 * stg})')
    flag_add(K0, 27)
    stage_reads(stg)
    stg += 1
for _ in range(args.nt1):
    I(tail.pop(0))
if args.qa == 32:
    flag_add(C_ISS)
stage_addr(3 if args.p2 < 0 else 2)
assert args.p2 < 0 or (stg == 2 and args.p2 <= 8 and args.p2 <= args.last)
epoch_ready()
I('s_setprio 2')
flag_wait(C_QA, 2)
TS(4)
LOOK = 4


def qa_read(t):
    I(f'ds_read_b128 {v(QB + 4 * (t & 7), 4)}, {v(QAD + 2 * (t >> 2) + (t & 1))} offset:{1024 * (t & 3)}')


def wo_rest():
    for q in range(4, 16):
        I(f'global_load_dwordx4 {v(WOq(q), 4)}, {v(28 + (q >> 2))}, {P(pWO)} offset:{1024 * (q & 3)}{NTS}')


def s_mfma(t):
    for tau in range(2):
        I(f'{MFMA} {v(SA + 4 * tau, 4)}, {v(AF + 8 * t + 4 * tau, 4)}, {v(QB + 4 * (t & 7), 4)}, {"0" if t == 0 else v(SA + 4 * tau, 4)}')


ldsq = []


def pickup(i):
    I(f's_waitcnt vmcnt({8 * (3 - i) + args.nt1})')
    stage_reads(i)
    ldsq.extend([('A', 4 * i + t) for t in range(4) for _ in range(2)])
    if i < 3 or not args.bm3:
        flag_add(K0, 27)
        ldsq.append(('F', i))
    if i == 2:
        stage_addr(3)
    else:
        TS(3)


waited = -1
for t in range(LOOK):
    qa_read(t)
    ldsq.append(('Q', t))
for t in range(16):
    if t == args.p2:
        pickup(2)
    if t == args.last:
        pickup(3)
    if t + LOOK < 16:
        qa_read(t + LOOK)
        ldsq.append(('Q', t + LOOK))
    need_ = max(i for i, o in enumerate(ldsq) if o in (('Q', t), ('A', t)))
    if need_ > waited:
        younger = min(15, len(ldsq) - 1 - need_)
        I(f's_waitcnt lgkmcnt({younger})')
        waited = len(ldsq) - 1 - younger
    s_mfma(t)
    if t >= 12:
        for _ in range((args.ns + 3 - (t - 12)) // 4):
            if tail:
                I(tail.pop(0))
TS(5)
a.label('L_SM')
I(f'''
s_mov_b32 {s(sT3)}, 0xffff0000
s_mov_b32 {s(sT0)}, 0x3db504f3
s_mov_b32 {s(sT1)}, 0x3fb8aa3b
v_max3_f32 v24, {v(SA)}, {v(SA + 1)}, {v(SA + 2)}
v_max3_f32 v25, {v(SA + 4)}, {v(SA + 5)}, {v(SA + 6)}
v_max3_f32 v24, v24, {v(SA + 3)}, {v(SA + 7)}
v_max_f32 v24, v24, v25
''')
if args.dsmax:
    I(f'ds_max_f32 v33, v24 offset:{L_MA - L_MF}')
else:
    cross_rows_allreduce('v_max_f32', 24, 25)
    I('ds_write_b32 v9, v24')
if args.mimic:
    round_pairs(SA, 8, 16)
I('s_waitcnt lgkmcnt(0)')
I('s_barrier')
a.label('L_SM_nb')
I(f'ds_read_b32 v24, v33 offset:{L_MA - L_MF}' if args.dsmax else 'ds_read_b128 v[20:23], v10')
for i in range(8):
    I(f'v_mul_f32 {v(SA + i)}, {s(sT0)}, {v(SA + i)}')
if args.mimic:
    round_pairs(SA, 8, 16)
I('s_waitcnt lgkmcnt(0)')
if not args.dsmax:
    I('v_max3_f32 v24, v20, v21, v22')
    I('v_max_f32 v24, v24, v23')
if args.mimic:
    I('v_cvt_pk_bf16_f32 v24, v24, v24')
    I(f'v_and_b32 v24, {s(sT3)}, v24')
I(f'v_mul_f32 v24, {s(sT0)}, v24')
assert args.mimic
I('v_cvt_pk_bf16_f32 v24, v24, v24')
I(f'v_and_b32 v25, {s(sT3)}, v24')
I(f'v_mul_f32 v24, {s(sT1)}, v25')
I('ds_write_b32 v33, v25')
for i in range(8):
    I(f'v_fma_f32 {v(SA + i)}, {v(SA + i)}, {s(sT1)}, -v24')
for i in range(8):
    I(f'v_exp_f32 {v(SA + i)}, {v(SA + i)}')
for i in range(4):
    I(f'v_cvt_pk_bf16_f32 {v(16 + i)}, {v(SA + 2 * i)}, {v(SA + 2 * i + 1)}')
I('ds_write_b128 v11, v[16:19]')
I(f's_mov_b32 {s(sT0)}, 0x3f803f80')
I(f'v_dot2_f32_bf16 v25, v16, {s(sT0)}, 0')
for i in range(1, 4):
    I(f'v_dot2_f32_bf16 v25, {v(16 + i)}, {s(sT0)}, v25')
I('ds_write_b32 v32, v25')
if args.warm & 1:
    a.B('s_cbranch_execz L_SM_back')
I('s_waitcnt lgkmcnt(0)')
I('s_barrier')
I('s_setprio 0')
TS(6)
I(f'v_mov_b32 {v(XR2)}, v6')
I(f'v_mov_b32 {v(B2R)}, v7')
for _ in range(args.nb):
    if tail:
        I(tail.pop(0))
if args.wor == 1:
    wo_rest()
I(f'''
v_lshlrev_b32 v10, 3, v0
v_add_u32 v10, {L_FF}, v10
s_lshl2_add_u32 {s(sT0)}, {s(sHT)}, {s(sCI)}
s_lshl2_add_u32 {s(sT0)}, {s(sT0)}, {s(sW)}
s_lshl_b32 {s(sT0)}, {s(sT0)}, 13
s_add_u32 {s(sT0)}, {s(sT0)}, {W_H3}
v_lshlrev_b32 v4, 11, v2
v_lshl_add_u32 v4, v1, 4, v4
v_add_u32 v4, {s(sT0)}, v4
s_mul_i32 {s(sK1)}, {s(sEP)}, {(HASH * 16) & 0xffffffff}
s_add_u32 {s(sK1)}, {s(sK1)}, {(HASH * 8) & 0xffffffff}
s_mov_b32 {s(sK2)}, {EMB}
s_lshl_b32 {s(sT0)}, {s(sW)}, 2
s_add_u32 {s(sT0)}, {s(sT0)}, {L_MX}
v_mov_b32 v7, {s(sT0)}
v_mov_b32 v45, {L_MX}
s_lshl_b32 {s(sT0)}, {s(sW)}, 4
s_add_u32 {s(sT0)}, {s(sT0)}, {L_MX + 16}
v_lshl_add_u32 v11, v2, 2, {s(sT0)}
s_lshl_b32 {s(sT0)}, {s(sW)}, 18
s_lshl_b32 {s(sT1)}, s2, {6 + args.h5}
s_add_u32 {s(sT0)}, {s(sT0)}, {s(sT1)}
s_add_u32 {s(sT0)}, {s(sT0)}, {W_H5}
v_lshrrev_b32 v44, {2 + args.h5}, v0
v_lshlrev_b32 v44, {14 + args.h5}, v44
v_and_b32 v16, {7 if args.h5 else 3}, v0
v_lshl_add_u32 v44, v16, 4, v44
v_add_u32 v44, {s(sT0)}, v44
v_and_b32 v16, 1, v2
v_lshrrev_b32 v17, 1, v2
s_lshl_b32 {s(sT0)}, {s(sW)}, 9
s_add_u32 {s(sT1)}, {s(sT0)}, {L_CL}
v_add_u32 v40, {s(sT1)}, v3
s_add_u32 {s(sT1)}, {s(sT0)}, {L_CX}
v_and_b32 v42, 7, v0
v_lshlrev_b32 v42, 5, v42
v_lshl_add_u32 v42, v16, 4, v42
v_lshl_add_u32 v42, v17, 8, v42
v_add_u32 v42, {s(sT1)}, v42
s_lshl_b32 {s(sT0)}, {s(sW)}, 7
s_add_u32 {s(sT0)}, {s(sT0)}, {L_CL}
v_lshrrev_b32 v41, 3, v0
v_lshl_add_u32 v41, v41, 4, {s(sT0)}
v_lshl_add_u32 v41, v35, 2, v41
v_bfe_u32 v9, v0, 2, 1
v_lshl_add_u32 v41, v9, 10, v41
v_lshl_add_u32 v127, v9, 3, v35
v_lshl_add_u32 v127, v127, 2, v45
v_lshl_add_u32 v9, v9, 3, v45
v_lshrrev_b32 v43, 2, v1
v_add_u32 v43, {s(sCI)}, v43
v_and_b32 v43, 3, v43
v_lshlrev_b32 v43, 4, v43
v_lshl_add_u32 v43, v2, 2, v43
v_add_u32 v43, v43, v35
v_lshlrev_b32 v43, 2, v43
v_add_u32 v43, {L_CX}, v43
v_mov_b32 v33, {s(sEP)}
v_cmp_gt_u32 {P(sM1)}, v0, 31
v_and_b32 v16, 1, v0
v_cmp_eq_u32 {P(sM2)}, 1, v16
''')
if args.pw & 4 and args.pwt != 2:
    for e in range(4):
        I(f'v_mov_b32 {v(20 + e)}, 0')
    I(f'global_store_dwordx4 v44, v[20:23], {P(pWS)} sc1')
if args.prm:
    I('v_lshlrev_b32 v11, 4, v1')
    I('v_sub_u32 v11, v28, v11')
    I('v_lshrrev_b32 v16, 1, v1')
    I('v_lshl_add_u32 v11, v16, 10, v11')
    I('v_and_b32 v16, 1, v1')
    I('v_lshl_add_u32 v11, v16, 7, v11')
    prm = f's_mov_b32 exec_lo, 0x00ff00ff\ns_mov_b32 exec_hi, 0x00ff00ff\nglobal_load_dword v126, v11, {P(pWO)} sc1 \ns_mov_b64 exec, -1'
    if args.prm == 1:
        I(prm)
    else:
        tail = [prm] + tail
if args.pw & 32:
    I(f's_lshl_b32 {s(sT0)}, {s(sW)}, 8')
    I(f's_sub_u32 {s(sT0)}, s2, {s(sT0)}')
    I(f's_cmp_lt_i32 {s(sT0)}, 192')
    I('s_cbranch_scc1 L_nopwo')
    I('s_mov_b64 exec, 15')
    I(f'global_store_dword v12, v20, {P(pOUT)} sc1')
    I('s_mov_b64 exec, -1')
    a.label('L_nopwo')
if args.pfu:
    I(f'''
    s_lshl2_add_u32 {s(sT0)}, {s(sCI)}, {s(sW)}
    s_lshl_b32 {s(sT0)}, {s(sT0)}, 18
    s_xor_b32 {s(sT1)}, {s(sDI)}, 1
    s_lshl1_add_u32 {s(sT1)}, {s(sHT)}, {s(sT1)}
    s_lshl_b32 {s(sT1)}, {s(sT1)}, 7
    s_add_u32 {s(sT0)}, {s(sT0)}, {s(sT1)}
    v_lshl_add_u32 v11, v0, 13, {s(sT0)}
    ''')
    pf = f's_mov_b32 exec_hi, 0\nglobal_load_dword v126, v11, {P(pWUV)}{NT}\ns_mov_b64 exec, -1'
    tail = tail + [pf] if args.pfu == 1 else [pf] + tail


def lt_read():
    I(f's_lshl_b32 {s(sT0)}, s2, 9')
    I(f's_add_u32 {s(sT0)}, {s(sT0)}, {W_LT}')
    I(f's_add_u32 {s(sB)}, {s(pWS)}, {s(sT0)}')
    I(f's_addc_u32 {s(sB + 1)}, {s(pWS + 1)}, 0')
    for k in range(4):
        I(f's_load_dword {s(96 + k)}, {P(sB)}, {128 * k}')


def lt_signal():
    lab = a.newlabel('L_lts')
    I(f's_cmp_lg_u32 {s(sW)}, 0')
    I(f's_cbranch_scc1 {lab}')
    I('v_mul_u32_u24 v11, 53, v0')
    I('v_add3_u32 v11, v11, s2, 37')
    I('v_and_b32 v11, 0xff, v11')
    I('v_lshl_add_u32 v11, v11, 2, v0')
    I('v_lshlrev_b32 v11, 7, v11')
    I(f'v_add_u32 v11, {W_LT}, v11')
    I('s_mov_b64 exec, 15')
    I(f'global_store_dword v11, v33, {P(pWS)} sc1')
    I('s_mov_b64 exec, -1')
    a.label(lab)


def lt_decide():
    I('s_waitcnt lgkmcnt(0)')
    I(f's_mov_b32 {s(sT0)}, 0')
    for k in range(4):
        I(f's_cmp_eq_u32 {s(96 + k)}, {s(sEP)}')
        I(f's_addc_u32 {s(sT0)}, {s(sT0)}, 0')
    if args.ts and args.tsn == 4:
        I(f's_mov_b32 {s(TSB + 30)}, {s(sT0)}')
    I(f's_cmp_ge_u32 {s(sT0)}, {args.ltq}')


if args.lt == 1:
    lt_read()
if args.lt and args.lts:
    lt_signal()
if tail or args.wor == 2:
    flag_wait(C_ST, 4)
if args.lt == 2:
    lt_read()
if args.lt and not args.lts:
    lt_signal()
late_uv = list(tail)
if args.ltf:
    lt_decide()
    I('s_cbranch_scc1 L_late')
while tail:
    I(tail.pop(0))
if args.lt and not args.ltf:
    lt_decide()
    I('s_cbranch_scc1 L_nogate')
if args.wor == 2:
    wo_rest()
if args.ackn:
    I(f's_mov_b32 {s(sCNT)}, {args.ackn}')
    a.label('L_ackw')
    I(f'ds_read_b32 {v(VFT)}, {v(VFL)} offset:{4 * C_ACK}')
    I(f's_sub_u32 {s(sCNT)}, {s(sCNT)}, 1')
    I('s_waitcnt lgkmcnt(0)')
    I(f'v_cmp_gt_u32 vcc, 4, {v(VFT)}')
    a.B('s_cbranch_scc1 L_nogate')
    a.B('s_cbranch_vccnz L_ackw')
else:
    flag_wait(C_ACK if args.ew else C_ST, 4)
for q in range(4, 4 + args.wpre):
    I(f'global_load_dwordx4 {v(WOq(q), 4)}, {v(28 + (q >> 2))}, {P(pWO)} offset:{1024 * (q & 3)}{NTS}')
if args.dly:
    I(f's_sleep {args.dly}')
if args.gv:
    I(f's_waitcnt vmcnt({args.gv - 1})')
a.label('L_nogate')
TS(8)
U = 96
nwo = 0


PLO = 224
MP, OB = 248, 116


def pair_swap(R_):
    I(f'v_mov_b64 v[250:251], {v(R_ + 2, 2)}')
    I(f'v_mov_b64 {v(R_ + 2, 2)}, {v(R_ + 4, 2)}')
    I(f'v_mov_b64 {v(R_ + 4, 2)}, v[250:251]')


def gather(first, w2_loads=(), wpre=args.wpre):
    global nwo
    for q in range(8):
        I(f'global_load_dwordx4 {v(PL + 4 * q, 4)}, v4, {P(pWS)} offset:{q * 256} {args.lf.replace("+", " ")} ')
    if first and args.pair:
        assert args.gv and args.wor == 3 and not (args.w2p or args.ltf or args.lt or args.wpre or args.ackn or args.ffn) and args.ns >= 6 and args.tord == 1
        for R_ in (WO0, WO0 + 8, W2T):
            pair_swap(R_)
        I(f'v_or_b32 {v(MP)}, {v(MK)}, {v(MK + 2)}')
        I(f'v_or_b32 {v(MP + 1)}, {v(MK + 1)}, {v(MK + 3)}')
        I(f'v_and_b32 v16, 16, v0')
        I(f'v_cmp_ne_u32 {P(sM3)}, 0, v16')
        if args.pairu:
            I('s_waitcnt vmcnt(8)')
            pair_swap(WUV)
            pair_swap(WUV + 8)
    n2 = len(w2_loads) if first else 0
    if first:
        for t_ in w2_loads:
            I(t_)
    n_ = 0
    for q in range(8):
        d0, d1 = v(PL + 4 * q), v(PL + 4 * q + 1)
        I(f's_waitcnt vmcnt({7 - q + n_ + n2})')
        if first and args.wor == 3:
            for _ in range((args.nin + 7 - q) // 8):
                qq = 4 + n_ + wpre
                if qq > 15:
                    continue
                I(f'global_load_dwordx4 {v(WOq(qq), 4)}, {v(28 + (qq >> 2))}, {P(pWO)} offset:{1024 * (qq & 3)}{NTS}')
                n_ += 1
        I(f'v_and_b32 v19, {s(sK2)}, {d0}')
        I(f'v_and_b32 {v(U + q)}, {s(sK2)}, {d1}')
        e0, e1 = (v(PLO + 2 * q), v(PLO + 2 * q + 1)) if args.pairc else (d0, d1)
        I(f'v_xor_b32 {e0}, v19, {d0}')
        I(f'v_lshl_add_u32 v19, v19, v1, {d1}')
        I(f'v_xor_b32 {e1}, {v(U + q)}, {d1}')
        I(f'v_lshlrev_b32 {v(U + q)}, v1, {v(U + q)}')
        I(f'v_add3_u32 v32, {e0}, v19, {"0" if q == 0 else "v32"}')
        if args.pairc and q & 1:
            I(f'v_mov_b64 {v(PL + 4 * q, 2)}, {v(PL + 4 * q - 2, 2)}')
    if first:
        nwo = n_


gather(True, w2_loads)
if args.w2p == 2:
    assert args.nin == 12
    for t_ in w2_late:
        I(t_)
if args.ltf:
    I('s_branch L_late_j')
    a.label('L_late')
    TS(8)
    assert args.nin == 12
    gather(True, late_uv, 0)
    a.label('L_late_j')
I(f's_mov_b32 {s(sCNT)}, {args.spin}')
a.label('L_T3_chk')
for k in range(4):
    I(f'v_or_b32 {v(20 + k)}, {v(U + k)}, {v(U + k)} row_ror:8 bank_mask:0x3')
I('v_add_u32 v32, v32, v32 row_ror:8')
for k in range(4):
    I(f'v_or_b32 {v(20 + k)}, {v(U + 4 + k)}, {v(U + 4 + k)} row_ror:8 bank_mask:0xc')
I('v_add_u32 v32, v32, v32 row_ror:4')
for k in range(2):
    I(f'v_or_b32 {v(24 + k)}, {v(20 + k)}, {v(20 + k)} row_shl:4 bank_mask:0x5')
for k in range(2):
    I(f'v_or_b32 {v(24 + k)}, {v(22 + k)}, {v(22 + k)} row_shr:4 bank_mask:0xa')
I('v_add_u32 v32, v32, v32 row_ror:2')
for k in range(2):
    I(f'v_or_b32 {v(24 + k)}, {v(24 + k)}, {v(24 + k)} quad_perm:[1,0,3,2]')
I('v_add_u32 v32, v32, v32 row_ror:1')
for k in range(2):
    I(f'v_or_b32 {v(24 + k)}, {v(24 + k)}, {v(24 + k)} quad_perm:[2,3,0,1]')
I(f'v_cmp_ne_u32 vcc, {s(sK1)}, v32')
I(f's_sub_u32 {s(sCNT)}, {s(sCNT)}, 1')
I(f'v_cndmask_b32 v5, v24, v25, {P(sM2)}')
a.B('s_cbranch_vccz L_T3_go')
a.B('s_cbranch_scc1 L_T3_go')
I('s_mov_b64 exec, vcc')
gather(False)
I('s_branch L_T3_chk')
a.label('L_T3_go')
I('s_mov_b64 exec, -1')
TS(7)
wo_late = [f'global_load_dwordx4 {v(WOq(qq), 4)}, {v(28 + (qq >> 2))}, {P(pWO)} offset:{1024 * (qq & 3)}{NTS}' for qq in range(4 + nwo + args.wpre, 16)] if args.wor == 3 else []
nwo += len(wo_late)
if args.w2p == 1:
    wo_late += w2_late
if not args.nip:
    while wo_late:
        I(wo_late.pop(0))
I(f's_mov_b32 {s(sT1)}, 0x3fb8aa3b')
I(f'v_and_b32 v6, {s(sT3)}, v5')
I('v_cvt_f32_f16 v21, v5')
I(f'v_mul_f32 v6, {s(sT1)}, v6')
I('v_mul_f32 v21, 0.5, v21')
I('v_max_f32 v18, v6, v6 row_ror:8')
row_allreduce('v_max_f32', [18], steps=(4, 1))
cross_rows_allreduce('v_max_f32', 18, 19)
I('''
v_sub_f32 v17, v6, v18
v_exp_f32 v17, v17
v_cvt_pk_bf16_f32 v16, v17, v17
v_mul_f32 v17, v17, v21
''')
TS(1)
red = [f'v_add_f32 v17, v17, v17 row_ror:{st}' for st in (8, 4, 2, 1)]
red += ['v_mov_b32 v19, v17', 'v_permlane16_swap_b32 v19, v17\nv_add_f32 v17, v17, v19\nv_mov_b32 v19, v17',
        'v_permlane32_swap_b32 v19, v17\nv_add_f32 v17, v17, v19', 'ds_write2_b32 v7, v18, v17 offset0:0 offset1:4']
QL = lambda q: 8 * (q >> 2) + 4 * ((q >> 1) & 1) + (q & 1)


def w_and(q):
    for r in range(4):
        I(f'v_and_b32 {v(AW + 4 * (q & 1) + r)}, v16, {v(MK + r)} row_newbcast:{QL(q)}')


if args.pairc:
    assert args.pair and not wo_late
    ca = lambda p_, r: f'v_and_b32 {v(AW + 4 * (p_ & 1) + r)}, v16, {v(MP + (r & 1))} row_newbcast:{QL(2 * p_ + (r >> 1))}'
    for r in range(4):
        I(ca(0, r))
    for p_ in range(4):
        for hf in range(2):
            if p_ < 3:
                I(ca(p_ + 1, 2 * hf))
                I(ca(p_ + 1, 2 * hf + 1))
            elif hf == 0:
                I(red[3])
            acc = ('v[24:27]', 'v[20:23]')[hf]
            I(f'{MFMA} {acc}, {v(AW + 4 * (p_ & 1), 4)}, {v(PL + 8 * p_ + 4 if hf else PLO + 4 * p_, 4)}, {"0" if p_ == 0 else acc}')
            if hf and p_ < 3:
                I(red[p_])
    if args.lrow:
        I('ds_write_b32 v7, v18')
        I('ds_write_b32 v11, v17')
    else:
        for t_ in red[4:]:
            I(t_)
    I('s_mov_b64 exec, 0xffff')
    I('ds_write_b128 v40, v[24:27]')
    I('ds_write_b128 v40, v[20:23] offset:256')
    I('s_mov_b64 exec, -1')
else:
    w_and(0)
    for q in range(8):
        if q < 7:
            w_and(q + 1)
        I(f'{MFMA} v[24:27], {v(AW + 4 * (q & 1), 4)}, {v(PL + 4 * q, 4)}, {"0" if q == 0 else "v[24:27]"}')
        if q < 4:
            I(red[q])
        for _ in range(2):
            if wo_late:
                I(wo_late.pop(0))
    if args.lrow:
        I('ds_write_b32 v7, v18')
        I('ds_write_b32 v11, v17')
    else:
        for t_ in red[4:]:
            I(t_)
    I('s_mov_b32 exec_hi, 0')
    I('ds_write_b128 v40, v[24:27]')
    I('s_mov_b64 exec, -1')
I('s_waitcnt lgkmcnt(0)')
TS(9)
TSN(0)
I('s_barrier')
I('ds_read_b128 v[96:99], v45')
I('ds_read_b64 v[100:101], v9')
I('ds_read2st64_b32 v[108:109], v41 offset0:0 offset1:2')
I('ds_read2_b32 v[102:103], v127 offset0:4 offset1:8' if args.lrow else 'ds_read_b64 v[102:103], v9 offset:16')
I(f'ds_read_b64 {v(HH, 2)}, v10')
if args.pair:
    I('s_waitcnt vmcnt(8)')
    pair_swap(WOq(4))
    pair_swap(WOq(6))
I('''
s_waitcnt lgkmcnt(4)
v_max3_f32 v18, v96, v97, v98
v_max_f32 v18, v18, v99
s_waitcnt lgkmcnt(2)
v_sub_f32 v100, v100, v18
v_sub_f32 v101, v101, v18
v_exp_f32 v100, v100
v_exp_f32 v101, v101
v_mul_f32 v20, v100, v108
v_fmac_f32 v20, v101, v109
s_waitcnt lgkmcnt(0)
v_mul_f32 v18, v100, v102
v_add_f32 v21, v20, v20 row_shl:4 bank_mask:0x5
v_fmac_f32 v18, v101, v103
v_add_f32 v21, v20, v20 row_shr:4 bank_mask:0xa
v_cvt_pk_bf16_f32 v20, v21, v21
v_add_f32 v18, v18, v18 row_half_mirror
''')
if args.ltf:
    I(f's_waitcnt vmcnt({nwo})')
QP = lambda i: f'quad_perm:[{i},{i},{i},{i}]'
if args.pairu:
    assert args.lrow and args.pair
    ua = lambda p_, r: f'v_and_b32 {v(AW + 4 * p_ + r)}, v20, {v(MP + (r & 1))} {QP(2 * p_ + (r >> 1))}'
    for r in range(4):
        I(ua(0, r))
    for p_ in range(2):
        for hf in range(2):
            if p_ == 0:
                I(ua(1, 2 * hf))
                I(ua(1, 2 * hf + 1))
            else:
                I(f'v_add_f32 v18, v18, v18 {OCT[hf]}')
            acc = ('v[24:27]', 'v[112:115]')[hf]
            I(f'{MFMA} {acc}, {v(AW + 4 * p_, 4)}, {v(WUV + 8 * p_ + 4 * hf, 4)}, {"0" if p_ == 0 else acc}')
else:
    for r in range(4):
        I(f'v_and_b32 {v(AW + r)}, v20, {v(MK + r)} {QP(0)}')
    for i in range(4):
        if i < 3:
            for r in range(4):
                I(f'v_and_b32 {v(AW + 4 * (i + 1) + r)}, v20, {v(MK + r)} {QP(i + 1)}')
        elif not args.lrow:
            I('v_rcp_f32 v18, v18')
        if args.lrow and i >= 2:
            I(f'v_add_f32 v18, v18, v18 {OCT[i - 2]}')
        I(f'{MFMA} v[24:27], {v(AW + 4 * i, 4)}, {v(WUV + 4 * i, 4)}, {"0" if i == 0 else "v[24:27]"}')
if args.lrow:
    I('v_rcp_f32 v18, v18')
for i in range(2):
    I(f'v_and_b32 {v(HH + i)}, {s(sR)}, {v(HH + i)}')
if args.pair:
    for r in range(4):
        I(f'v_and_b32 {v(AW + 16 + r)}, {v(HH + (r >> 1))}, {v(MP + (r & 1))}')
    if args.pairu:
        I('s_mov_b32 exec_lo, 0x000000ff')
        I('s_mov_b32 exec_hi, 0x0000ff00')
        I('ds_write_b128 v42, v[24:27]')
        I('ds_write_b128 v42, v[112:115] offset:16')
    else:
        I('s_mov_b32 exec_lo, 0x00ff00ff')
        I('s_mov_b32 exec_hi, 0xff00ff00')
        I('ds_write_b128 v42, v[24:27]')
    I('s_mov_b64 exec, -1')
    I('s_waitcnt vmcnt(4)')
    pair_swap(WOq(8))
    pair_swap(WOq(10))
    I('s_waitcnt lgkmcnt(0)')
    I('s_barrier')
    for k in range(4):
        I(f'ds_read2st64_b32 {v(108 + 2 * k, 2)}, v43 offset0:{2 * k} offset1:{2 * k + 1}')
    TS(10)
    I(f'{MFMA} {v(OA, 4)}, {v(AW + 16, 4)}, {v(W2T, 4)}, 0')
    I(f'{MFMA} {v(OB, 4)}, {v(AW + 16, 4)}, {v(W2T + 4, 4)}, 0')
    I('v_mov_b32 v22, v33')
    I('v_mov_b32 v23, v33')
    if args.pair == 1:
        I('s_waitcnt vmcnt(0)')
        pair_swap(WOq(12))
        pair_swap(WOq(14))
    I("""
    s_waitcnt lgkmcnt(2)
    v_add_f32 v108, v108, v109
    v_add_f32 v110, v110, v111
    s_waitcnt lgkmcnt(0)
    v_add_f32 v112, v112, v113
    v_add_f32 v114, v114, v115
    v_add_f32 v108, v108, v110
    v_add_f32 v112, v112, v114
    v_add_f32 v108, v108, v112
    v_mul_f32 v108, v108, v18
    v_cvt_pk_bf16_f32 v20, v108, v108
    """)
    pa = lambda p_, r: f'v_and_b32 {v(AT2 + 4 * (p_ & 1) + r)}, v20, {v(MP + (r & 1))} row_newbcast:{2 * p_ + (r >> 1)}'
    for r in range(4):
        I(pa(0, r))
    for p_ in range(8):
        for hf in range(2):
            if p_ < 7:
                I(pa(p_ + 1, 2 * hf))
                I(pa(p_ + 1, 2 * hf + 1))
            if args.pair == 2 and p_ == 4:
                I(f's_waitcnt vmcnt({2 - 2 * hf})')
                pair_swap(WOq(12 + 2 * hf))
            acc = (OA, OB)[hf]
            I(f'{MFMA} {v(acc, 4)}, {v(AT2 + 4 * (p_ & 1), 4)}, {v(WOq(2 * p_) + 4 * hf, 4)}, {v(acc, 4)}')
    TS(11)
    I(f'v_cndmask_b32 v20, {v(OA)}, {v(OA + 2)}, {P(sM1)}')
    I(f'v_cndmask_b32 v21, {v(OA + 1)}, {v(OA + 3)}, {P(sM1)}')
    I(f'v_cndmask_b32 v16, {v(OB)}, {v(OB + 2)}, {P(sM1)}')
    I(f'v_cndmask_b32 v17, {v(OB + 1)}, {v(OB + 3)}, {P(sM1)}')
    I(f'v_cndmask_b32 v20, v20, v16, {P(sM3)}')
    I(f'v_cndmask_b32 v21, v21, v17, {P(sM3)}')
else:
    for r in range(4):
        I(f'v_and_b32 {v(AW + 16 + r)}, {v(HH)}, {v(MK + r)}')
    I('s_mov_b32 exec_lo, 0x00ff00ff')
    I('s_mov_b32 exec_hi, 0xff00ff00')
    I('ds_write_b128 v42, v[24:27]')
    I('s_mov_b64 exec, -1')
    for r in range(4):
        I(f'v_and_b32 {v(AW + 20 + r)}, {v(HH + 1)}, {v(MK + r)}')
    I('s_waitcnt lgkmcnt(0)')
    I('s_barrier')
    for k in range(4):
        I(f'ds_read2st64_b32 {v(108 + 2 * k, 2)}, v43 offset0:{2 * k} offset1:{2 * k + 1}')
    TS(10)
    if not args.w2p:
        I(f's_waitcnt vmcnt({nwo})')
        for i in range(2):
            I(f'{MFMA} {v(OA, 4)}, {v(AW + 16 + 4 * i, 4)}, {v(W2T + 4 * i, 4)}, {"0" if i == 0 else v(OA, 4)}')
    I('v_mov_b32 v22, v33')
    I('v_mov_b32 v23, v33')
    I('''
    s_waitcnt lgkmcnt(2)
    v_add_f32 v108, v108, v109
    v_add_f32 v110, v110, v111
    s_waitcnt lgkmcnt(0)
    v_add_f32 v112, v112, v113
    v_add_f32 v114, v114, v115
    v_add_f32 v108, v108, v110
    v_add_f32 v112, v112, v114
    v_add_f32 v108, v108, v112
    ''')
    I('v_mul_f32 v108, v108, v18')
    I('v_cvt_pk_bf16_f32 v20, v108, v108')


    def wo_and(q):
        for r in range(4):
            I(f'v_and_b32 {v(AT2 + 4 * (q & 1) + r)}, v20, {v(MK + r)} row_newbcast:{q}')


    wo_and(0)
    for q in range(16):
        if q < 15:
            wo_and(q + 1)
        if args.wor == 3 and q >= 4 and q % 2 == 0:
            I(f's_waitcnt vmcnt({14 - q + len(w2_late)})')
        I(f'{MFMA} {v(OA, 4)}, {v(AT2 + 4 * (q & 1), 4)}, {v(WOq(q), 4)}, {"0" if q == 0 and args.w2p else v(OA, 4)}')
    if args.w2p:
        for i in range(2):
            I(f's_waitcnt vmcnt({1 - i})')
            I(f'{MFMA} {v(OA, 4)}, {v(AW + 16 + 4 * i, 4)}, {v(W2T + 4 * i, 4)}, {v(OA, 4)}')
    TS(11)
    I(f'v_cndmask_b32 v20, {v(OA)}, {v(OA + 2)}, {P(sM1)}')
    I(f'v_cndmask_b32 v21, {v(OA + 1)}, {v(OA + 3)}, {P(sM1)}')
I(f'global_store_dwordx4 v44, v[20:23], {P(pWS)} sc1')
TS(12)
I('s_cmp_lt_u32 s2, 192')
I('s_cbranch_scc1 L_T_ep' if args.ee else 's_cbranch_scc1 L_T_done')
I(f'''
s_bfe_u32 {s(sT0)}, s2, {0x50001 if args.h5 else 0x60000}
s_lshl2_add_u32 {s(sT0)}, {s(sT0)}, {s(sW)}
s_lshl_b32 {s(sT0)}, {s(sT0)}, {12 + args.h5}
s_and_b32 {s(sT1)}, s2, {args.h5}
s_lshl_b32 {s(sT1)}, {s(sT1)}, 6
s_add_u32 {s(sT0)}, {s(sT0)}, {s(sT1)}
s_add_u32 {s(sT0)}, {s(sT0)}, {W_H5}
v_lshrrev_b32 v4, 2, v0
v_lshlrev_b32 v4, {6 + args.h5}, v4
v_lshl_add_u32 v4, v35, 4, v4
v_add_u32 v4, {s(sT0)}, v4
v_add_u32 v5, {2048 << args.h5}, v4
v_lshrrev_b32 v6, 1, v2
v_lshl_add_u32 v8, v6, 2, v35
v_lshlrev_b32 v8, 5, v8
v_and_b32 v6, 1, v2
v_lshl_add_u32 v8, v6, 2, v8
s_lshl_b32 {s(sT0)}, {s(sW)}, 3
s_add_u32 {s(sT0)}, {s(sT0)}, {L_CL}
v_add_u32 v8, {s(sT0)}, v8
v_and_b32 v9, 7, v0
v_lshlrev_b32 v9, 5, v9
v_add_u32 v9, {L_CL}, v9
v_lshlrev_b32 v108, 16, {v(XR2)}
v_and_b32 v109, {s(sT3)}, {v(XR2)}
v_lshlrev_b32 v110, 16, {v(B2R)}
v_and_b32 v111, {s(sT3)}, {v(B2R)}
v_add_f32 v108, v108, v110
v_add_f32 v109, v109, v111
v_mov_b32 v108, v109 quad_perm:[0,1,2,3] bank_mask:0xa
s_mov_b32 {s(sCNT)}, {args.spin}
''')
if args.a5:
    I('s_waitcnt vmcnt(0)')
if args.dly5:
    I(f's_sleep {args.dly5}')
f5 = lambda k: f'global_load_dwordx4 {v(128 + 4 * k, 4)}, {v(4 + (k >> 1))}, {P(pWS)} offset:{(1024 << args.h5) * (k & 1)} sc1'
a.label('L_T5_retry')
for k in range(4):
    I(f5(k))
a.label('L_T5_chk')
I(f's_sub_u32 {s(sCNT)}, {s(sCNT)}, 1')
I('s_waitcnt vmcnt(2)')
I('v_xor_b32 v17, v130, v33')
I('v_add_f32 v20, v128, v132')
I('v_bitop3_b32 v17, v134, v33, v17 bitop3:0xbe')
I('v_add_f32 v21, v129, v133')
I('s_waitcnt vmcnt(0)')
I('v_bitop3_b32 v17, v138, v33, v17 bitop3:0xbe')
I('v_add_f32 v24, v136, v140')
I('v_bitop3_b32 v17, v142, v33, v17 bitop3:0xbe')
I('v_add_f32 v25, v137, v141')
I('v_cmp_ne_u32 vcc, 0, v17')
I('v_add_f32 v20, v20, v24')
I('v_add_f32 v21, v21, v25')
a.B('s_cbranch_scc1 L_T5_go')
if args.m5:
    a.B('s_cbranch_vccz L_T5_go')
    for k in range(4):
        lab = a.newlabel('L_r5')
        I(f'v_cmp_ne_u32 vcc, {v(130 + 4 * k)}, v33')
        I('s_nop 0')
        a.B(f's_cbranch_vccz {lab}')
        I('s_mov_b64 exec, vcc')
        I(f5(k))
        I('s_mov_b64 exec, -1')
        a.label(lab)
    I('s_waitcnt vmcnt(0)')
    I('s_branch L_T5_chk')
else:
    a.B('s_cbranch_vccnz L_T5_retry')
a.label('L_T5_go')
TS(13)
TSN(3)
I('''
v_permlane32_swap_b32 v20, v21
v_add_f32 v20, v20, v21
v_add_f32 v20, v20, v20 row_ror:4
v_add_f32 v20, v20, v20 row_ror:8
ds_write_b32 v8, v20
s_waitcnt lgkmcnt(0)
s_barrier
''')
I(f's_cmp_lg_u32 {s(sW)}, 0')
I('s_cbranch_scc1 L_T_done')
I('''
ds_read_b128 v[128:131], v9
ds_read_b128 v[132:135], v9 offset:16
s_waitcnt lgkmcnt(1)
v_add_f32 v128, v128, v129
v_add_f32 v130, v130, v131
v_add_f32 v108, v108, v128
v_add_f32 v108, v108, v130
s_waitcnt lgkmcnt(0)
v_add_f32 v132, v132, v133
v_add_f32 v134, v134, v135
v_add_f32 v108, v108, v132
v_add_f32 v108, v108, v134
''')
if args.pert:
    import struct
    kind, val = args.pert.split(',')
    bits = struct.unpack('<I', struct.pack('<f', float(val)))[0]
    if kind == 'm':
        I(f'v_mul_f32 v108, {bits}, v108')
    elif kind == 'a':
        I(f'v_add_f32 v108, {bits}, v108')
    else:
        I('s_cmp_lg_u32 s2, 200')
        I('s_cbranch_scc1 L_nop')
        I('s_mov_b64 exec, 1')
        I(f'v_add_f32 v108, {bits}, v108')
        I('s_mov_b64 exec, -1')
        a.label('L_nop')
        I('s_nop 1')
I('''
v_mov_b32 v109, v108 row_shl:4
v_cvt_pk_bf16_f32 v20, v108, v109
''')
I(f's_mov_b64 exec, {args.oex}')
I(f'global_store_dword v12, v20, {P(pOUT)} {args.of.replace("+", " ")}')
if args.ee:
    I('s_branch L_T_done')
    a.label('L_T_ep')
    I(f's_lshl2_add_u32 {s(sT0)}, s2, {s(sW)}')
    I(f's_cmp_lg_u32 {s(sT0)}, 400')
else:
    I('s_cmp_lg_u32 s2, 0xe0')
I('s_cbranch_scc1 L_T_done')
I(f'v_mov_b32 v22, {W_EP}')
I('s_mov_b64 exec, 1')
I(f'global_store_dword v22, v33, {P(pWS)} {args.ef}')
a.label('L_T_done')
TS(14)
ts_dump()
a.label('L_end')
I('s_endpgm')

a.raw('.section .rodata,"a"')
a.raw('.p2align 6')
a.raw(f'.amdhsa_kernel {NAME}_kernel')
a.raw('''  .amdhsa_next_free_vgpr 256
  .amdhsa_next_free_sgpr 102
  .amdhsa_accum_offset 256
  .amdhsa_group_segment_fixed_size 0
  .amdhsa_kernarg_size 112
  .amdhsa_user_sgpr_count 2
  .amdhsa_user_sgpr_kernarg_segment_ptr 1
  .amdhsa_system_sgpr_workgroup_id_x 1
.end_amdhsa_kernel''')
open(args.o, 'w').write(a.text())
```

```python
import sys, argparse, re
from asmlib import Asm, v, s

NAME = 'parallel_sum__compressed_kv_cla__dense_activation_squared_relu__decode'

ap = argparse.ArgumentParser()
A_ = lambda n, d, t=int: ap.add_argument('--' + n, type=t, default=d)
ap.add_argument('-o', default='out.s')
A_('ts', 0)
A_('nt', 1)
A_('d1', 1); A_('k1', 2); A_('d2', 10); A_('k2', 16); A_('d3', 10)
A_('swap', 0)
A_('qa', 21)
A_('h2', 1)
A_('h3', 1)
A_('nt1', 0)
A_('wor', 3)
A_('dyn', 5)
A_('own', 1)
A_('ns', 6)
A_('nb', 0)
A_('w1', 0)
A_('last', 12)
A_('h5', 0)
A_('np', 1)
A_('sl', 5)
A_('pre', 2)
A_('tord', 1)
A_('light', 1)
A_('pt', 0)
A_('dly', 0)
A_('dly5', 0)
A_('hint1', 0)
A_('hint2', 0)
A_('wuv', 0)
A_('ew', 1)
A_('bpos', 1)
A_('a5', 1)
A_('comb', 1)
A_('tpos', 32)
A_('ne', 0)
A_('gv', 3)
A_('pp', 3)
A_('bo', 0)
A_('clk', 0)
A_('wpre', 0)
A_('nts', 0)
A_('nto', 0)
A_('ntm', 0x3f, lambda x: int(x, 0))
A_('xc', 0)
A_('kmap', 0)
A_('p2', 8)
A_('ffn', 0)
A_('dsmax', 1)
A_('pfu', 0)
A_('lf', 'sc1', str)
A_('sf', 'sc1', str)
A_('lfa', 'sc1', str)
A_('of', 'sc1', str)
A_('m5', 1)
A_('bm3', 1)
A_('top', 0)
A_('warm', 3)
A_('pert', '', str)
A_('ef', 'sc1', str)
A_('hr', 0)
A_('fr', 1)
A_('wsoff', 0, lambda x: int(x, 0))
A_('ee', 1)
A_('nopt', 1)
A_('probe', 0)
A_('spf', 0)
A_('spw', 0)
A_('spx', 60)
A_('rot', 0)
A_('nin', 12)
A_('nip', 0)
A_('lt', 0)
A_('ltq', 4)
A_('lts', 0)
A_('ltf', 0)
A_('pw', 63)
A_('pwt', 0)
A_('pwq', 0)
A_('htmap', 0)
A_('ackn', 0)
A_('w2p', 0)
A_('oex', 15)
A_('pw0', 0)
A_('hv', 4)
A_('ln', 0)
A_('lrow', 1)
A_('prm', 0)
A_('pair', 1)
A_('pairc', 1)
A_('pairu', 0)
A_('fin', 0)
A_('p5', 1)
A_('mimic', 1)
A_('touch', 0)
A_('spin', 100000)
A_('notail', 0)
A_('tsn', 0)
A_('amp', '', str)
A_('tsmask', 0xffff, lambda x: int(x, 0))
args = ap.parse_args()
NT = ' nt' if args.nt else ''
NTS = ' nt' if args.nts else ''

L_QA = 131072
L_P = L_QA + 16384
L_XN = L_P + 4096
L_MX = L_XN + 1024
L_MF = L_MX + 256
L_MA = L_MF + 128
L_CL = L_MF + 256
L_CX = L_CL + 2048
L_FF = L_CX + 2048
L_LS = L_FF + 512
L_FL = L_LS + 1024
L_END = L_FL + 64
assert L_END <= 163840
F_F0, C_ISS, F_H2, C_QA, C_ST, C_ACK, C_ER, F_HINT, K0 = range(9)
C_L, C_M = K0 + 4, K0 + 5
W_EP = 0
W_H1 = 0x1000 + args.wsoff
W_H2 = W_H1 + 0x20000
W_HF = W_H2 + 0x10000
W_H5 = W_HF + 0x80000
W_LT = 0x1c0000
W_H3 = 0x200000 + args.wsoff
W_TS = 0x600000
assert W_H5 + 0x100000 <= W_LT

pX, pCKV, pWQ, pWUK, pWUV, pWO, pW1 = 4, 6, 8, 10, 12, 14, 18
pB1, pW2, pB2, pOUT, pDBG, pWS = 20, 22, 24, 26, 28, 30
sWV = 3
sX, sY, sFC, sGA, sS, sR, sHT, sCI, sDI = range(32, 41)
sJ, sH = sX, sY
sEP, sT0, sT1, sT2, sT3, sCNT, sW = 41, 42, 43, 44, 45, 46, 47
sB = 48
sM1, sM2, sM3, sM4 = 50, 52, 54, 56
sK0, sK1, sK2 = 58, 59, 60
TSB = 64
VFL, VONE, VFT = 13, 14, 15

a = Asm()
P = lambda r: s(r, 2)
MFMA = 'v_mfma_f32_16x16x32_bf16'


def I(text):
    if args.lfa != 'sc1':
        text = re.sub(r'(global_load\S* .*) sc1$', r'\1 ' + args.lfa.replace('+', ' '), text, flags=re.M)
    for bit, p_ in ((1, pWQ), (2, pWUK), (4, pCKV), (8, pWUV), (16, pW1), (32, pW2)):
        if not args.ntm & bit:
            text = re.sub(r'(global_load\S* .*s\[%d:%d\].*) nt' % (p_, p_ + 1), r'\1', text)
    if args.notail:
        out = []
        for line in text.split('\n'):
            m = re.match(r'\s*global_load_dwordx4 (v\[\d+:\d+\]), v\d+, s\[(\d+):', line)
            if m and int(m.group(2)) in (pWUV, pWO, pW1, pW2):
                line = f'global_load_dwordx4 {m.group(1)}, v3, s[4:5]'
            out.append(line)
        text = '\n'.join(out)
    a.I(text)


def TS(i):
    if args.ts and (args.tsmask >> i) & 1:
        I(f'{"s_memtime" if args.clk else "s_memrealtime"} {s(TSB + 2 * i, 2)}')


def TSN(k=None):
    if args.ts and (k is None or k == args.tsn):
        I(f's_sub_u32 {s(TSB + 2 * 15)}, {args.spin}, {s(sCNT)}')


def ts_dump(n=16):
    if not args.ts:
        return
    if args.xc:
        I(f's_getreg_b32 {s(TSB + 30)}, hwreg(HW_REG_XCC_ID)')
        I(f's_add_u32 {s(TSB + 30)}, {s(TSB + 30)}, {s(sEP)}')
        lab, done = a.newlabel('L_xc'), a.newlabel('L_xcd')
        I('s_cmp_lg_u32 s2, 224')
        I(f's_cbranch_scc1 {done}')
        I(f's_cmp_lg_u32 {s(sWV)}, 4')
        I(f's_cbranch_scc1 {done}')
        I('s_mov_b64 exec, -1')
        I(f'v_mov_b32 v4, {W_TS + args.xc * 512 + 60}')
        I(f'global_load_dword v5, v4, {P(pWS)} sc1')
        I('s_memrealtime s[96:97]')
        I('s_waitcnt vmcnt(0) lgkmcnt(0)')
        I(f'v_readfirstlane_b32 {s(sT0)}, v5')
        I(f's_cmp_eq_u32 {s(sT0)}, {s(TSB + 30)}')
        I(f's_cbranch_scc1 {done}')
        a.label(lab)
        I('s_memrealtime s[98:99]')
        I('s_waitcnt lgkmcnt(0)')
        I(f's_sub_u32 {s(sT1)}, s98, s96')
        I(f's_cmp_lt_u32 {s(sT1)}, 5000')
        I(f's_cbranch_scc1 {lab}')
        a.label(done)
    if args.amp:
        wg, w, k = map(int, args.amp.split(','))
        lab, done = a.newlabel('L_amp'), a.newlabel('L_ampd')
        I(f's_cmp_lg_u32 s2, {wg}')
        I(f's_cbranch_scc1 {done}')
        I(f's_cmp_lg_u32 {s(sWV)}, {w}')
        I(f's_cbranch_scc1 {done}')
        I('s_memrealtime s[96:97]')
        I('s_waitcnt lgkmcnt(0)')
        I(f's_sub_u32 {s(sT0)}, {s(TSB + 2 * k)}, {s(TSB)}')
        I(f's_lshl_b32 {s(sT0)}, {s(sT0)}, 3')
        I(f's_min_u32 {s(sT0)}, {s(sT0)}, 100000')
        a.label(lab)
        I('s_memrealtime s[98:99]')
        I('s_waitcnt lgkmcnt(0)')
        I(f's_sub_u32 {s(sT1)}, s98, s96')
        I(f's_cmp_lt_u32 {s(sT1)}, {s(sT0)}')
        I(f's_cbranch_scc1 {lab}')
        a.label(done)
    I('s_waitcnt lgkmcnt(0)')
    I('s_mov_b64 exec, -1')
    I('v_mov_b32 v4, 0')
    for i in range(n):
        I(f'v_writelane_b32 v4, {s(TSB + 2 * i)}, {i}')
    I(f's_lshl_b32 {s(sT0)}, s2, 3')
    I(f's_add_u32 {s(sT0)}, {s(sT0)}, {s(sWV)}')
    I(f's_lshl_b32 {s(sT0)}, {s(sT0)}, 6')
    I(f's_add_u32 {s(sT0)}, {s(sT0)}, {W_TS}')
    I(f'v_lshl_add_u32 v5, v0, 2, {s(sT0)}')
    I('s_mov_b64 exec, 0xffff')
    I(f'global_store_dword v5, v4, {P(pWS)}')
    I('s_waitcnt vmcnt(0)')


def load_epoch():
    I(f's_load_dword {s(sEP)}, {P(pWS)}, {W_EP}')


def epoch_ready():
    I('s_waitcnt lgkmcnt(0)')
    I(f's_add_u32 {s(sEP)}, {s(sEP)}, 1')
    I(f's_addc_u32 {s(sEP)}, {s(sEP)}, 0')


def row_allreduce(op, regs, steps=(8, 4, 2, 1)):
    for st in steps:
        for r in regs:
            I(f'{op} {v(r)}, {v(r)}, {v(r)} row_ror:{st}')


def cross_rows_allreduce(op, r, t):
    for sw in ('v_permlane16_swap_b32', 'v_permlane32_swap_b32'):
        I(f'v_mov_b32 {v(t)}, {v(r)}')
        I(f'{sw} {v(t)}, {v(r)}')
        I(f'{op} {v(r)}, {v(r)}, {v(t)}')


def scalar_poll(offsets):
    lab, done = a.newlabel('L_sp'), a.newlabel('L_spd')
    R = [61, 62, 63, 96, 97, 98, 99, 100]
    I(f's_mov_b32 {s(sCNT)}, {args.spin}')
    a.label(lab)
    for k, o in enumerate(offsets):
        I(f's_load_dword {s(R[k])}, {P(sB)}, {o} glc')
    I(f's_sub_u32 {s(sCNT)}, {s(sCNT)}, 1')
    I(f's_cbranch_scc1 {done}')
    I('s_waitcnt lgkmcnt(0)')
    I(f's_xor_b32 {s(sT0)}, {s(R[0])}, {s(sEP)}')
    for k in range(1, len(offsets)):
        I(f's_xor_b32 {s(sT1)}, {s(R[k])}, {s(sEP)}')
        I(f's_or_b32 {s(sT0)}, {s(sT0)}, {s(sT1)}')
    I(f's_cbranch_scc1 {lab}')
    a.label(done)
    I('s_waitcnt lgkmcnt(0)')


def flag_add(idx, base=VFL):
    I('s_mov_b64 exec, 1')
    I(f'ds_add_u32 {v(base)}, {v(VONE)} offset:{4 * idx}')
    I('s_mov_b64 exec, -1')


def flag_wait(idx, n, base=VFL):
    lab, done = a.newlabel('L_fw'), a.newlabel('L_fwd')
    if args.bo and idx in (F_F0, C_ISS, F_H2, C_ST, C_ACK, K0):
        l2 = a.newlabel('L_fw')
        a.B(f's_branch {l2}')
        a.label(lab)
        I(f's_sleep {args.bo}')
        a.label(l2)
    else:
        a.label(lab)
    I(f'ds_read_b32 {v(VFT)}, {v(base)} offset:{4 * idx}')
    I(f's_sub_u32 {s(sFC)}, {s(sFC)}, 1')
    I('s_waitcnt lgkmcnt(0)')
    I(f'v_cmp_gt_u32 vcc, {n}, {v(VFT)}')
    a.B(f's_cbranch_scc1 {done}')
    a.B(f's_cbranch_vccnz {lab}')
    a.label(done)
    I(f's_max_i32 {s(sFC)}, {s(sFC)}, 0')


def build_masks(M, t0, t1):
    I(f'v_and_b32 {v(t0)}, 1, v1')
    I(f'v_lshlrev_b32 {v(t0)}, 4, {v(t0)}')
    I(f'v_mov_b32 {v(t1)}, 0xffff')
    I(f'v_lshlrev_b32 {v(t1)}, {v(t0)}, {v(t1)}')
    I(f'v_bfe_u32 {v(t0)}, v1, 1, 2')
    for r in range(4):
        I(f'v_cmp_eq_u32 vcc, {r}, {v(t0)}')
        I(f'v_cndmask_b32 {v(M + r)}, 0, {v(t1)}, vcc')


BF, ACC, PF = 128, 96, 80
AT, SEL, XP, ACC0, REC = 72, 32, 80, 88, 92


def build_sel(t=6):
    J = lambda x: I(re.sub(r'\bv([6-9])\b', lambda m: 'v%d' % (int(m.group(1)) - 6 + t), x))
    J('''
    v_and_b32 v6, 1, v1
    v_cmp_eq_u32 vcc, 1, v6
    v_mov_b32 v7, 0x0c0c0100
    v_mov_b32 v8, 0x01000c0c
    v_cndmask_b32 v7, v7, v8, vcc
    v_mov_b32 v8, 0x0c0c0302
    v_mov_b32 v9, 0x03020c0c
    v_cndmask_b32 v8, v8, v9, vcc
    v_mov_b32 v9, 0x0c0c0c0c
    v_bfe_u32 v6, v1, 1, 2
    ''')
    for r in range(4):
        J(f'v_cmp_eq_u32 vcc, {r}, v6')
        J(f'v_cndmask_b32 {v(SEL + r)}, v9, v7, vcc')
        J(f'v_cndmask_b32 {v(SEL + 4 + r)}, v9, v8, vcc')


def diag_stage(n, W, younger=0):
    def perms(k):
        for r in range(4):
            I(f'v_perm_b32 {v(AT + 4 * (k & 1) + r)}, {v(XP + (k >> 1))}, {v(XP + (k >> 1))}, {v(SEL + 4 * (k & 1) + r)}')
    perms(0)
    for k in range(n):
        if k < n - 1:
            perms(k + 1)
        else:
            I(f'v_mov_b32 {v(REC + 2)}, {s(sEP)}')
            I(f'v_mov_b32 {v(REC + 3)}, {s(sEP)}')
        I(f's_waitcnt vmcnt({n - 1 - k + younger})')
        I(f'{MFMA} {v(ACC0, 4)}, {v(AT + 4 * (k & 1), 4)}, {v(W(k), 4)}, {"0" if k == 0 else v(ACC0, 4)}')


TA = 16


def tr_addr():
    I(f'''
    v_lshrrev_b32 v4, 2, v0
    v_lshlrev_b32 v4, 8, v4
    v_and_b32 v5, 31, v0
    v_lshl_add_u32 v4, v5, 3, v4
    s_lshl_b32 {s(sT0)}, {s(sW)}, 15
    v_add_u32 v4, {s(sT0)}, v4
    ''')


CK = 44
EMB = 0x00010001
HASH = 0x9e3779b1
OCT = ('quad_perm:[1,0,3,2]', 'quad_perm:[2,3,0,1]', 'row_half_mirror')


def pv_setup():
    for i in range(4):
        I(f's_sub_u32 {s(sT0)}, {s(sW)}, {i}')
        I(f's_and_b32 {s(sT0)}, {s(sT0)}, 3')
        I(f's_lshl_b32 {s(sT0)}, {s(sT0)}, 10')
        I(f's_add_u32 {s(sT0)}, {s(sT0)}, {L_P}')
        I(f'v_add_u32 {v(48 + i)}, {s(sT0)}, v3')
    I(f"""
    s_lshl_b32 {s(sT0)}, {s(sGA)}, 6
    s_add_u32 {s(sT0)}, {s(sT0)}, {s(sW)}
    s_lshl_b32 {s(sT0)}, {s(sT0)}, 7
    s_add_u32 {s(sT0)}, {s(sT0)}, {s(sS)}
    s_lshl_b32 {s(sT1)}, {s(sT0)}, 8
    s_add_u32 {s(sT1)}, {s(sT1)}, {W_H3}
    v_lshlrev_b32 v52, 19, v2
    v_lshl_add_u32 v52, v1, 4, v52
    v_add_u32 v52, {s(sT1)}, v52
    s_mov_b32 {s(sT2)}, 0x20000
    v_add_u32 v53, {s(sT2)}, v52
    v_add_u32 v54, {s(sT2)}, v53
    v_add_u32 v55, {s(sT2)}, v54
    v_lshlrev_b32 v42, 4, v2
    v_lshl_add_u32 v43, v1, 6, v42
    v_add_u32 v43, {L_LS}, v43
    v_add_u32 v42, {L_MF}, v42
    s_mul_i32 {s(sK0)}, {s(sEP)}, {(2 * HASH) & 0xffffffff}
    s_add_u32 {s(sK0)}, {s(sK0)}, {HASH}
    s_mov_b32 {s(sK1)}, {EMB}
    s_mov_b32 {s(sK2)}, {~EMB & 0xffffffff}
    """)


def pv_prewrite(qg, late=False):
    if args.pwt >= 3:
        if late and args.pw & 16:
            for e in range(4):
                I(f'v_mov_b32 {v(28 + e)}, 0')
            for r in range(4):
                I(f'global_store_dwordx4 {v(52 + r)}, v[28:31], {P(pWS)} sc1')
    elif args.pw0 >= (8 if qg else 16):
        pass
    elif args.pw & 16 and (qg or not args.pwt):
        for e in range(4):
            I(f'v_mov_b32 {v(28 + e)}, 0')
        for r in range(4):
            I(f'global_store_dwordx4 {v(52 + r)}, v[28:31], {P(pWS)} sc1')
            if args.pwt:
                I(f'v_add_u32 v6, 0x8000, {v(52 + r)}')
                I(f'global_store_dwordx4 v6, v[28:31], {P(pWS)} sc1')
        if args.pwt == 2:
            I(f'''
            s_lshl_b32 {s(sT0)}, {s(sW)}, 18
            s_lshl_b32 {s(sT1)}, s2, 7
            s_add_u32 {s(sT0)}, {s(sT0)}, {s(sT1)}
            s_add_u32 {s(sT0)}, {s(sT0)}, {W_H5}
            v_lshrrev_b32 v6, 3, v0
            v_lshlrev_b32 v6, 15, v6
            v_lshl_add_u32 v6, v10, 4, v6
            v_add_u32 v6, {s(sT0)}, v6
            global_store_dwordx4 v6, v[28:31], {P(pWS)} sc1
            v_add_u32 v6, 0x40000, v6
            global_store_dwordx4 v6, v[28:31], {P(pWS)} sc1
            ''')


def tr_slot(i):
    I(f's_sub_u32 {s(sT0)}, {s(sW)}, {i}')
    I(f's_and_b32 {s(sT0)}, {s(sT0)}, 3')
    I(f's_lshl_b32 {s(sT1)}, {s(sT0)}, 13')
    I(f'v_lshl_add_u32 v5, {s(sT0)}, 2, {v(VFL)}')
    I(f'v_add_u32 {v(TA)}, {s(sT1)}, v4')
    for T in range(1, 8):
        I(f'v_xor_b32 {v(TA + T)}, {32 * T}, {v(TA)}')
    if i == 3 and args.bm3:
        assert not args.ffn
        TS(6)
        I('s_barrier')
    else:
        flag_wait(K0, i + 1, 5)
    for T in range(8):
        for tau in range(2):
            I(f'ds_read_b64_tr_b16 {v(BF + (i * 8 + T) * 4 + 2 * tau, 2)}, {v(TA + T)} offset:{tau * 4096}')


def round_pairs(base, n, tmp):
    for i in range(n // 2):
        I(f'v_cvt_pk_bf16_f32 {v(tmp + i)}, {v(base + 2 * i)}, {v(base + 2 * i + 1)}')
    for i in range(n // 2):
        I(f'v_lshlrev_b32 {v(base + 2 * i)}, 16, {v(tmp + i)}')
        I(f'v_and_b32 {v(base + 2 * i + 1)}, {s(sT3)}, {v(tmp + i)}')


hdr = open('cdna_kernels/%s.s.ref' % NAME).read().split('; Override launch geometry')[0]
a.raw(hdr.rstrip())
a.raw(f'; @launch grid=(256,1,1) block=(512,1,1) lds={L_END}')
a.raw(""";
; carries the launch tag (ws[0] + 1, advanced at the end) or a share of a check word derived from it; all spins are bounded.""")
a.raw('.amdgcn_target "amdgcn-amd-amdhsa--gfx950"')
a.raw('.text')
a.raw(f'.globl {NAME}_kernel')
a.raw('.p2align 8')
a.raw(f'.type {NAME}_kernel,@function')
a.label(f'{NAME}_kernel')
a.label('L_start')
I('s_load_dwordx16 s[4:19], s[0:1], 0')
I('s_load_dwordx4 s[28:31], s[0:1], 96')
I(f's_getpc_b64 {P(sB)}')
a.label('L_pc')
I('s_cmpk_ge_u32 s2, 0x100')
I('s_cbranch_scc1 L_end')
TS(0)
I(f'''
v_lshrrev_b32 v4, 5, v0
s_lshl_b32 {s(sT1)}, s2, 8
v_readfirstlane_b32 {s(sWV)}, v4
s_and_b32 {s(sT1)}, {s(sT1)}, 0x7800
v_lshl_add_u32 v4, v4, 7, {s(sT1)}
v_min_u32 v4, L_end-L_pc, v4
s_mov_b32 exec_lo, 1
s_mov_b32 exec_hi, 1
global_load_dword v15, v4, {P(sB)}
s_mov_b64 exec, -1
s_cmp_ge_u32 {s(sWV)}, 8
''')
a.B('s_cbranch_scc1 L_S')
I(f's_cmp_eq_u32 {s(sWV)}, 2')
a.B('s_cbranch_scc1 L_F1')
I(f's_cmp_lg_u32 {s(sWV)}, 0')
a.B('s_cbranch_scc1 L_F23')


def common(first=True):
    I('s_load_dwordx8 s[20:27], s[0:1], 64')
    if first:
        I(f'''
        v_and_b32 v0, 63, v0
        v_and_b32 v1, 15, v0
        v_lshrrev_b32 v2, 4, v0
        v_lshlrev_b32 v3, 4, v0
        s_and_b32 {s(sX)}, s2, 7
        s_lshr_b32 {s(sY)}, s2, 3
        ''')
    I(f'''
    s_lshr_b32 {s(sWV)}, {s(sWV)}, 1
    s_lshr_b32 {s(sGA)}, {s(sY)}, 4
    s_xor_b32 {s(sGA)}, {s(sGA)}, 1
    s_and_b32 {s(sT0)}, {s(sY)}, 15
    s_lshl4_add_u32 {s(sS)}, {s(sX)}, {s(sT0)}
    s_and_b32 {s(sW)}, {s(sWV)}, 3
    v_mov_b32 {v(VFL)}, {L_FL}
    v_mov_b32 {v(VONE)}, 1
    s_mov_b32 {s(sFC)}, 0x1000000
    ''')


Wq, XR = 128, 120
I(f'''
v_lshrrev_b32 v2, 4, v0
s_and_b32 {s(sX)}, s2, 7
v_and_b32 v1, 15, v0
s_lshr_b32 {s(sY)}, s2, 3
v_lshl_add_u32 v5, {s(sX)}, 2, v2
v_lshl_add_u32 v5, v5, 9, {s(sY)}
v_lshl_add_u32 v5, v5, 4, v1
v_lshlrev_b32 v3, 4, v0
v_lshlrev_b32 v5, 4, v5
s_movk_i32 {s(sT2)}, 0x4000
s_waitcnt lgkmcnt(0)
global_load_dwordx4 {v(XR, 4)}, v3, {P(pX)}
s_add_u32 s16, {s(pWQ)}, 0x2000
s_addc_u32 s17, {s(pWQ + 1)}, 0
''')
for k in range(16):
    I(f'global_load_dwordx4 {v(Wq + 4 * k, 4)}, v5, {P(16 if k & 1 else pWQ)}{NT}')
    if k & 1 and k < 15:
        I(f'v_add_u32 v5, {s(sT2)}, v5')
common(False)
if args.bpos == 0:
    I('s_barrier')
I('s_waitcnt lgkmcnt(0)')
load_epoch()
if args.pw & 1:
    I(f's_lshl_b32 {s(sT0)}, s2, 9')
    I(f's_add_u32 {s(sT0)}, {s(sT0)}, {W_H1}')
    I(f'v_add_u32 v12, {s(sT0)}, v3')
    for e in range(4):
        I(f'v_mov_b32 {v(REC + e)}, 0')
    I('s_mov_b32 exec_hi, 0')
    I(f'global_store_dwordx4 v12, {v(REC, 4)}, {P(pWS)} sc1')
    I('s_mov_b64 exec, -1')
TS(1)
build_sel()
I(f'''
v_add_u32 v10, {L_XN}, v3
s_lshl_b32 {s(sT0)}, {s(sJ)}, 7
s_add_u32 {s(sT0)}, {s(sT0)}, {L_XN}
v_lshl_add_u32 v11, v2, 5, {s(sT0)}
s_lshl_b32 {s(sT0)}, s2, 9
s_add_u32 {s(sT0)}, {s(sT0)}, {W_H1}
v_add_u32 v12, {s(sT0)}, v3
s_mov_b32 {s(sT3)}, 0xffff0000
s_mov_b32 {s(sK0)}, 0x07060501
s_mov_b32 {s(sK1)}, 0x07060502
s_mov_b32 {s(sK2)}, 0x07060503
''')
F, Dd, t0, t1, t2, t3, PK = 96, 104, 112, 113, 114, 115, 116
I(f's_waitcnt vmcnt({(16, 19, 17)[args.top] + (args.pw & 1)})')
if args.bpos == 1:
    I('s_barrier')
TS(2)
if args.ln:
    pk = lambda r: v(r, 2)
    I(f'v_readfirstlane_b32 {s(sT0)}, {v(XR)}')
    for i in range(4):
        I(f'v_lshlrev_b32 {v(F + 2 * i)}, 16, {v(XR + i)}')
        I(f'v_and_b32 {v(F + 2 * i + 1)}, {s(sT3)}, {v(XR + i)}')
    I(f's_lshl_b32 {s(sT0)}, {s(sT0)}, 16')
    I(f's_mov_b32 {s(sT1)}, {s(sT0)}')
    for i in range(4):
        I(f'v_pk_add_f32 {pk(Dd + 2 * i)}, {pk(F + 2 * i)}, {P(sT0)} neg_lo:[0,1] neg_hi:[0,1]')
    I(f"""
    v_pk_add_f32 {pk(t0)}, {pk(Dd)}, {pk(Dd + 2)}
    v_pk_mul_f32 {pk(t2)}, {pk(Dd)}, {pk(Dd)}
    v_pk_add_f32 {pk(PK)}, {pk(Dd + 4)}, {pk(Dd + 6)}
    v_pk_fma_f32 {pk(t2)}, {pk(Dd + 2)}, {pk(Dd + 2)}, {pk(t2)}
    v_pk_add_f32 {pk(t0)}, {pk(t0)}, {pk(PK)}
    v_pk_fma_f32 {pk(t2)}, {pk(Dd + 4)}, {pk(Dd + 4)}, {pk(t2)}
    v_add_f32 {v(t0)}, {v(t0)}, {v(t1)}
    v_pk_fma_f32 {pk(t2)}, {pk(Dd + 6)}, {pk(Dd + 6)}, {pk(t2)}
    v_add_f32 {v(t2)}, {v(t2)}, {v(t3)}
    """)
    if args.bpos == 2:
        I('s_barrier')
    row_allreduce('v_add_f32', [t0, t2])
    for m in ('row_bcast:15 row_mask:0xa', 'row_bcast:31 row_mask:0xc'):
        for r_ in (t0, t2):
            I(f'v_add_f32 {v(r_)}, {v(r_)}, {v(r_)} {m}')
    I(f'v_mov_b32 {v(t1)}, 0x3b000000')
    I(f'v_readlane_b32 {s(sT1)}, {v(t0)}, 63')
    I(f'v_readlane_b32 {s(sT2)}, {v(t2)}, 63')
    rnd = lambda r_: [f'v_cvt_pk_bf16_f32 {v(r_)}, {v(r_)}, {v(r_)}', f'v_and_b32 {v(r_)}, {s(sT3)}, {v(r_)}']
    I(f"""
    v_mul_f32 {v(t0)}, {s(sT1)}, {v(t1)}
    v_mul_f32 {v(t2)}, {s(sT2)}, {v(t1)}
    v_fma_f32 {v(t2)}, -{v(t0)}, {v(t0)}, {v(t2)}
    v_add_f32 {v(t0)}, {s(sT0)}, {v(t0)}
    v_max_f32 {v(t2)}, 0, {v(t2)}
    """)
    c1 = rnd(t0) + [f'v_pk_add_f32 {pk(Dd + 2 * i)}, {pk(F + 2 * i)}, {pk(t0)} op_sel_hi:[1,0] neg_lo:[0,1] neg_hi:[0,1]' for i in range(4)]
    c1 += [f'v_cvt_pk_bf16_f32 {v(PK + i)}, {v(Dd + 2 * i)}, {v(Dd + 2 * i + 1)}' for i in range(4)]
    for i in range(4):
        c1 += [f'v_lshlrev_b32 {v(Dd + 2 * i)}, 16, {v(PK + i)}', f'v_and_b32 {v(Dd + 2 * i + 1)}, {s(sT3)}, {v(PK + i)}']
    c2 = rnd(t2) + [f'v_add_f32 {v(t2)}, 0x3727c5ac, {v(t2)}'] + rnd(t2) + [f'v_sqrt_f32 {v(t2)}, {v(t2)}'] + rnd(t2) + [f'v_rcp_f32 {v(t2)}, {v(t2)}']
    while c1 or c2:
        for c_ in (c2, c1, c1):
            if c_:
                I(c_.pop(0))
    for i in range(4):
        I(f'v_pk_mul_f32 {pk(Dd + 2 * i)}, {pk(Dd + 2 * i)}, {pk(t2)} op_sel_hi:[1,0]')
    for i in range(4):
        I(f'v_cvt_pk_bf16_f32 {v(PK + i)}, {v(Dd + 2 * i)}, {v(Dd + 2 * i + 1)}')
else:
    for i in range(4):
        I(f'v_lshlrev_b32 {v(F + 2 * i)}, 16, {v(XR + i)}')
        I(f'v_and_b32 {v(F + 2 * i + 1)}, {s(sT3)}, {v(XR + i)}')
    I(f'''
    v_add_f32 {v(t0)}, {v(F)}, {v(F + 1)}
    v_add_f32 {v(t1)}, {v(F + 2)}, {v(F + 3)}
    v_add_f32 {v(t2)}, {v(F + 4)}, {v(F + 5)}
    v_add_f32 {v(t3)}, {v(F + 6)}, {v(F + 7)}
    v_add_f32 {v(t0)}, {v(t0)}, {v(t1)}
    v_add_f32 {v(t2)}, {v(t2)}, {v(t3)}
    v_add_f32 {v(t0)}, {v(t0)}, {v(t2)}
    ''')
    row_allreduce('v_add_f32', [t0])
    I(f'v_add_f32 {v(t0)}, {v(t0)}, {v(t0)} row_bcast:15 row_mask:0xa')
    I(f'v_add_f32 {v(t0)}, {v(t0)}, {v(t0)} row_bcast:31 row_mask:0xc')
    I(f'v_mov_b32 {v(t1)}, 0x3b000000')
    I(f'v_readlane_b32 {s(sT0)}, {v(t0)}, 63')
    I(f'v_mul_f32 {v(t1)}, {s(sT0)}, {v(t1)}')
    for i in range(8):
        I(f'v_sub_f32 {v(Dd + i)}, {v(F + i)}, {v(t1)}')
    if args.bpos == 2:
        I('s_barrier')
    I(f'v_mul_f32 {v(t0)}, {v(Dd)}, {v(Dd)}')
    I(f'v_mul_f32 {v(t2)}, {v(Dd + 1)}, {v(Dd + 1)}')
    for i in range(2, 8, 2):
        I(f'v_fmac_f32 {v(t0)}, {v(Dd + i)}, {v(Dd + i)}')
        I(f'v_fmac_f32 {v(t2)}, {v(Dd + i + 1)}, {v(Dd + i + 1)}')
    I(f'v_add_f32 {v(t0)}, {v(t0)}, {v(t2)}')
    I(f'v_cvt_pk_bf16_f32 {v(t1)}, {v(t1)}, {v(t1)}')
    I(f'v_and_b32 {v(t1)}, {s(sT3)}, {v(t1)}')
    row_allreduce('v_add_f32', [t0], steps=(8,))
    for i in range(0, 4):
        I(f'v_sub_f32 {v(Dd + i)}, {v(F + i)}, {v(t1)}')
    row_allreduce('v_add_f32', [t0], steps=(4,))
    for i in range(4, 8):
        I(f'v_sub_f32 {v(Dd + i)}, {v(F + i)}, {v(t1)}')
    row_allreduce('v_add_f32', [t0], steps=(2,))
    for i in range(0, 2):
        I(f'v_cvt_pk_bf16_f32 {v(PK + i)}, {v(Dd + 2 * i)}, {v(Dd + 2 * i + 1)}')
    row_allreduce('v_add_f32', [t0], steps=(1,))
    for i in range(2, 4):
        I(f'v_cvt_pk_bf16_f32 {v(PK + i)}, {v(Dd + 2 * i)}, {v(Dd + 2 * i + 1)}')
    I(f'v_add_f32 {v(t0)}, {v(t0)}, {v(t0)} row_bcast:15 row_mask:0xa')
    for i in range(0, 2):
        I(f'v_lshlrev_b32 {v(Dd + 2 * i)}, 16, {v(PK + i)}')
        I(f'v_and_b32 {v(Dd + 2 * i + 1)}, {s(sT3)}, {v(PK + i)}')
    I(f'v_add_f32 {v(t0)}, {v(t0)}, {v(t0)} row_bcast:31 row_mask:0xc')
    for i in range(2, 4):
        I(f'v_lshlrev_b32 {v(Dd + 2 * i)}, 16, {v(PK + i)}')
        I(f'v_and_b32 {v(Dd + 2 * i + 1)}, {s(sT3)}, {v(PK + i)}')
    I(f'v_mov_b32 {v(t1)}, 0x3b000000')
    I(f'v_readlane_b32 {s(sT0)}, {v(t0)}, 63')
    I(f'''
    v_mul_f32 {v(t1)}, {s(sT0)}, {v(t1)}
    v_cvt_pk_bf16_f32 {v(t1)}, {v(t1)}, {v(t1)}
    v_and_b32 {v(t1)}, {s(sT3)}, {v(t1)}
    v_add_f32 {v(t1)}, 0x3727c5ac, {v(t1)}
    v_cvt_pk_bf16_f32 {v(t1)}, {v(t1)}, {v(t1)}
    v_and_b32 {v(t1)}, {s(sT3)}, {v(t1)}
    v_sqrt_f32 {v(t1)}, {v(t1)}
    v_cvt_pk_bf16_f32 {v(t1)}, {v(t1)}, {v(t1)}
    v_and_b32 {v(t1)}, {s(sT3)}, {v(t1)}
    v_rcp_f32 {v(t1)}, {v(t1)}
    ''')
    for i in range(8):
        I(f'v_mul_f32 {v(Dd + i)}, {v(Dd + i)}, {v(t1)}')
    for i in range(4):
        I(f'v_cvt_pk_bf16_f32 {v(PK + i)}, {v(Dd + 2 * i)}, {v(Dd + 2 * i + 1)}')
I(f'ds_write_b128 v10, {v(PK, 4)}')
I(f'ds_read_b128 {v(XP, 4)}, v11')
I(f'ds_read_b128 {v(XP + 4, 4)}, v11 offset:16')
if args.bpos == 3:
    I('s_barrier')
epoch_ready()
TS(3)
diag_stage(16, lambda k: Wq + 4 * k, args.pw & 1)
for i in range(3):
    I(f'v_perm_b32 {v(REC + i)}, {v(ACC0 + i)}, {v(ACC0 + 3)}, {s(sK0 + i)}')
I('s_mov_b32 exec_hi, 0')
I(f'global_store_dwordx4 v12, {v(REC, 4)}, {P(pWS)} sc1')
I(f'ds_write_b128 v10, {v(ACC0, 4)} offset:{L_CX - L_XN}')
TS(4)
flag_add(F_F0)
I('s_branch L_QG')

a.label('L_F1')
common()
I(f's_lshl_b32 {s(sT0)}, {s(sJ)}, 19')
I(f's_lshl_b32 {s(sT1)}, {s(sH)}, 8')
I(f's_add_u32 {s(sT0)}, {s(sT0)}, {s(sT1)}')
WK, G1, QF, DK = 128, 192, 96, 112
I(f'''
v_lshlrev_b32 v6, 1, v2
v_xor_b32 v6, v6, v1
v_lshlrev_b32 v5, 16, v2
v_lshl_add_u32 v5, v6, 4, v5
v_add_u32 v5, {s(sT0)}, v5
v_xor_b32 v6, 0x80, v5
v_add_u32 v6, 0x40000, v6
s_mov_b32 {s(sT2)}, 0x8000
s_mov_b32 {s(sT3)}, {(-3 * 8192) & 0xffffffff}
s_mov_b32 m0, {L_QA}
s_waitcnt lgkmcnt(0)
''')
load_epoch()
if args.pw & 2:
    I(f's_lshl_b32 {s(sT1)}, s2, 7')
    I(f's_add_u32 {s(sT1)}, {s(sT1)}, {W_H2}')
    I(f'v_add_u32 v12, {s(sT1)}, v3')
    for e in range(4):
        I(f'v_mov_b32 {v(20 + e)}, 0')
I('s_barrier')
if args.pw & 2:
    I('s_mov_b64 exec, 0xff')
    I(f'global_store_dwordx4 v12, v[20:23], {P(pWS)} sc1')
    I('s_mov_b64 exec, -1')
for k in range(16):
    I(f'global_load_lds_dwordx4 {"v6" if k & 1 else "v5"}, {P(pWUK)}{NT}')
    if k < 15:
        I('s_add_u32 m0, m0, 0x400')
    if k < 14:
        I(f'v_add_u32 {"v6" if k & 1 else "v5"}, {s(sT3 if k & 2 else sT2)}, {"v6" if k & 1 else "v5"}')
TS(1)
I(f'''
v_and_b32 v5, 7, v1
v_lshlrev_b32 v5, 1, v5
v_xor_b32 v5, v5, v2
v_lshlrev_b32 v5, 4, v5
v_lshl_add_u32 v5, v1, 8, v5
v_add_u32 v24, {L_QA}, v5
v_xor_b32 v25, 64, v24
v_xor_b32 v26, 0x80, v24
v_xor_b32 v27, 0xc0, v24
s_lshl_b32 {s(sT0)}, {s(sH)}, 12
s_add_u32 {s(sT0)}, {s(sT0)}, {W_H1}
v_add_u32 v8, {s(sT0)}, v3
s_lshl_b32 {s(sT1)}, {s(sJ)}, 9
v_add_u32 v6, {s(sT1)}, v3
s_movk_i32 {s(sT1)}, 0xfff
v_and_b32 v16, {s(sT1)}, v6
v_add_u32 v6, 0x400, v6
v_and_b32 v17, {s(sT1)}, v6
v_add_u32 v6, 0x400, v6
v_and_b32 v18, {s(sT1)}, v6
v_add_u32 v6, 0x400, v6
v_and_b32 v19, {s(sT1)}, v6
v_add_u32 v32, {s(sT0)}, v16
v_add_u32 v33, {s(sT0)}, v17
v_add_u32 v34, {s(sT0)}, v18
v_add_u32 v35, {s(sT0)}, v19
v_add_u32 v9, {L_CX}, v3
v_and_b32 v10, 1, v2
v_lshlrev_b32 v10, 1, v10
v_lshrrev_b32 v11, 1, v2
v_add_u32 v10, v10, v11
v_lshl_add_u32 v10, v1, 2, v10
v_lshlrev_b32 v10, 2, v10
v_add_u32 v10, {L_CL}, v10
v_lshlrev_b32 v11, 4, v2
v_add_u32 v11, {L_CL}, v11
s_lshl_b32 {s(sT0)}, s2, 7
s_add_u32 {s(sT0)}, {s(sT0)}, {W_H2}
v_add_u32 v12, {s(sT0)}, v3
v_add_u32 v37, 8, v1
s_mov_b32 {s(sM2)}, {EMB}
s_mov_b32 {s(sM2 + 1)}, {~EMB & 0xffffffff}
s_mov_b32 {s(sK0)}, 0x0c04000c
s_mov_b32 {s(sK1)}, 0x0402010c
s_mov_b32 {s(sK2)}, 0x07060302
s_mov_b32 {s(sM3 + 1)}, 0x10000
''')
epoch_ready()
I(f'v_mov_b32 v22, {s(sEP)}')
I(f's_mul_i32 {s(sM3)}, {s(sEP)}, {(2 * HASH) & 0xffffffff}')
I(f's_add_u32 {s(sM3)}, {s(sM3)}, {HASH}')
I('s_setprio 1')
NP = args.np
for p_ in range(NP):
    I(f'v_mov_b32 {v(G1 + 16 * p_ + 3)}, v22')
    for e in range(3):
        I(f'v_mov_b32 {v(G1 + 16 * p_ + e)}, 0')


def h1_loads(p_):
    for k in range(4):
        if k == 0:
            I('s_mov_b32 exec_lo, 0')
        I(f'global_load_dwordx4 {v(G1 + 16 * p_ + 4 * k, 4)}, {v(32 + k)}, {P(pWS)} sc1')
        if k == 0:
            I('s_mov_b32 exec_lo, -1')


if args.hint1:
    assert NP == 1
    I(f's_lshl_b32 {s(sT0)}, {s(sH)}, 12')
    I(f's_add_u32 {s(sT0)}, {s(sT0)}, {W_H1 + 508}')
    I(f's_add_u32 {s(sB)}, {s(pWS)}, {s(sT0)}')
    I(f's_addc_u32 {s(sB + 1)}, {s(pWS + 1)}, 0')
    HO = [4, 5, 6, 7, 8, 9, 12]
    for k in range(7):
        I(f's_add_u32 {s(HO[k])}, {s(sJ)}, {k + 1}')
        I(f's_and_b32 {s(HO[k])}, {s(HO[k])}, 7')
        I(f's_lshl_b32 {s(HO[k])}, {s(HO[k])}, 9')
    scalar_poll([s(r) for r in HO])
elif args.hr:
    flag_wait(C_ER, 4)
else:
    I(f's_waitcnt vmcnt({args.hv})')
TS(2)
h1_loads(0)
I('s_waitcnt vmcnt(4)')
for tau in range(4):
    for t in range(4):
        I(f'ds_read_b128 {v(WK + 16 * tau + 4 * t, 4)}, {v(24 + t)} offset:{4096 * tau}')
for p_ in range(1, NP):
    if p_ > 1 and args.sl:
        I(f's_sleep {args.sl}')
    h1_loads(p_)
Q4 = 40
for e in range(4):
    I(f'v_mov_b32 {v(Q4 + 4 + e)}, 0')
flag_wait(F_F0, 1)
I('s_mov_b32 exec_hi, 0')
I(f'ds_read_b128 {v(Q4 + 4, 4)}, v9')
I('s_mov_b64 exec, -1')
I(f's_mov_b32 {s(sCNT)}, {args.spin}')
I('s_waitcnt lgkmcnt(0)')
a.label('L_F1_poll')
for p_ in range(NP):
    G = G1 + 16 * p_
    I(f's_sub_u32 {s(sCNT)}, {s(sCNT)}, 1')
    I(f's_waitcnt vmcnt({4 * (NP - 1)})')
    I(f'v_xor_b32 v16, {v(G + 3)}, v22')
    for k in range(1, 4):
        I(f'v_bitop3_b32 v16, {v(G + 4 * k + 3)}, v22, v16 bitop3:0xbe')
    I('v_cmp_ne_u32 vcc, 0, v16')
    a.B(f's_cbranch_scc1 L_F1_go{p_}')
    a.B(f's_cbranch_vccz L_F1_go{p_}')
    h1_loads(p_)
I('s_branch L_F1_poll')
for p_ in reversed(range(NP)):
    G = G1 + 16 * p_
    a.label(f'L_F1_go{p_}')
    for k in range(4):
        I(f'v_perm_b32 {v(G + 4 * k + 3)}, {v(G + 4 * k + 1)}, {v(G + 4 * k)}, {s(sK0)}')
    for k in range(4):
        I(f'v_perm_b32 {v(G + 4 * k + 3)}, {v(G + 4 * k + 2)}, {v(G + 4 * k + 3)}, {s(sK1)}')
    for e in (0, 2):
        I(f'v_pk_add_f32 {v(Q4 + 4 + e, 2)}, {v(Q4 + 4 + e, 2)}, {v(G + e, 2)}')
        I(f'v_pk_add_f32 {v(G + 4 + e, 2)}, {v(G + 4 + e, 2)}, {v(G + 8 + e, 2)}')
    for e in (0, 2):
        I(f'v_pk_add_f32 {v(Q4 + 4 + e, 2)}, {v(Q4 + 4 + e, 2)}, {v(G + 12 + e, 2)}')
    for e in (0, 2):
        I(f'v_pk_add_f32 {v(Q4 + e, 2)}, {v(Q4 + 4 + e, 2)}, {v(G + 4 + e, 2)}')
    if p_:
        I('s_branch L_F1_go')
a.label('L_F1_go')
TS(3)
TSN()
G1 = Q4
I(f'v_permlane32_swap_b32 {v(G1)}, {v(G1 + 2)}')
I(f'v_permlane32_swap_b32 {v(G1 + 1)}, {v(G1 + 3)}')
I(f'v_add_f32 {v(G1)}, {v(G1)}, {v(G1 + 2)}')
I(f'v_add_f32 {v(G1 + 1)}, {v(G1 + 1)}, {v(G1 + 3)}')
I(f'v_cvt_pk_bf16_f32 v16, {v(G1)}, {v(G1 + 1)}')
I('ds_write_b32 v10, v16')
for t in range(4):
    I(f'ds_read_b128 {v(QF + 4 * t, 4)}, v11 offset:{64 * t}')
for half in ((0, 1), (2, 3)):
    for t in range(4):
        if half[0] == 0:
            I(f's_waitcnt lgkmcnt({3 - t})')
        for tau in half:
            I(f'{MFMA} {v(DK + 4 * tau, 4)}, {v(QF + 4 * t, 4)}, {v(WK + 16 * tau + 4 * t, 4)}, {"0" if t == 0 else v(DK + 4 * tau, 4)}')


def q_pack(k):
    lo, hi = DK + 8 * k, DK + 8 * k + 4
    I(f'v_cvt_pk_bf16_f32 {v(24 + k)}, {v(lo)}, {v(hi)}')
    I(f'v_add_u32 {v(lo)}, {s(sM3 + 1)}, {v(lo)}')
    I(f'v_add_u32 {v(hi)}, {s(sM3 + 1)}, {v(hi)}')
    I(f'v_perm_b32 {v(20 + k)}, {v(hi)}, {v(lo)}, {s(sK2)}')
    I(f'v_and_b32 {v(20 + k)}, {s(sM2 + 1)}, {v(20 + k)}')


q_pack(0)
I('v_mov_b32 v22, v24 row_ror:8')
q_pack(1)
I('v_add_u32 v16, v20, v21')
I('v_mov_b32 v23, v25 row_ror:8')
for st in OCT:
    I(f'v_add_u32 v16, v16, v16 {st}')
I(f'v_sub_u32 v16, {s(sM3)}, v16')
I('v_lshrrev_b32 v17, v1, v16')
I('v_lshrrev_b32 v16, v37, v16')
I(f'v_and_or_b32 v20, v17, {s(sM2)}, v20')
I(f'v_and_or_b32 v21, v16, {s(sM2)}, v21')
I('s_mov_b64 exec, 0xff')
I(f'global_store_dwordx4 v12, v[20:23], {P(pWS)} sc1')
TS(4)
I('s_setprio 0')
flag_add(F_H2)
I('s_waitcnt vmcnt(0)')
flag_add(F_H2)
a.label('L_PV1')
tr_addr()
pv_setup()
pv_prewrite(False)


def scalar_prefetch():
    I(f'''
    s_lshr_b32 {s(sHT)}, {s(sY)}, 3
    s_lshl2_add_u32 {s(sHT)}, {s(sX)}, {s(sHT)}
    s_bfe_u32 {s(sDI)}, {s(sY)}, 0x10002
    s_lshl1_add_u32 {s(sHT)}, {s(sHT)}, {s(sDI)}
    s_and_b32 {s(sCI)}, {s(sY)}, 3
    s_lshr_b32 {s(sT1)}, {s(sWV)}, 1
    s_lshl1_add_u32 {s(sCI)}, {s(sCI)}, {s(sT1)}
    ''')
    for bit, ptr, sh_ci, sh_ht, step in ((1, pWUV, 19, 7, 8192), (2, pWO, 13, 16, 128)):
        if not args.spf & bit:
            continue
        lab = a.newlabel('L_spf')
        I(f's_lshl_b32 {s(sT0)}, {s(sCI)}, {sh_ci}')
        I(f's_lshl_b32 {s(sT1)}, {s(sHT)}, {sh_ht}')
        I(f's_add_u32 {s(sT0)}, {s(sT0)}, {s(sT1)}')
        I(f's_add_u32 {s(sB)}, {s(ptr)}, {s(sT0)}')
        I(f's_addc_u32 {s(sB + 1)}, {s(ptr + 1)}, 0')
        I(f's_mov_b32 {s(sCNT)}, 8')
        a.label(lab)
        for k in range(8):
            I(f's_load_dword{"x2 s[62:63]" if args.spx else " s62"}, {P(sB)}, {k * step + args.spx}')
        I(f's_add_u32 {s(sB)}, {s(sB)}, {8 * step}')
        I(f's_addc_u32 {s(sB + 1)}, {s(sB + 1)}, 0')
        I(f's_sub_u32 {s(sCNT)}, {s(sCNT)}, 1')
        I(f's_cmp_lg_u32 {s(sCNT)}, 0')
        I(f's_cbranch_scc1 {lab}')
    TS(12)


for i in range(args.pre):
    if args.spf and i == args.spw:
        scalar_prefetch()
    tr_slot(i)
I('s_branch L_PVs')

a.label('L_F23')
common()
I(f's_cmp_eq_u32 {s(sWV)}, 2')
I('s_cbranch_scc0 L_F3')
I(f'''
v_mov_b32 v16, 0
v_mov_b32 v17, 0
v_mov_b32 v18, 0
v_mov_b32 v19, 0
v_and_b32 v20, 3, v0
v_lshl_add_u32 v20, v20, 4, {v(VFL)}
ds_write_b128 v20, v[16:19]
v_lshlrev_b32 v20, 2, v1
v_add_u32 v20, {L_MA}, v20
v_mov_b32 v21, 0xff800000
ds_write_b32 v20, v21
''')
a.label('L_F3')
HFG, B1R = 24, 28
W1T = lambda k: 56 + 4 * k if k < 6 else 8 if k == 6 else 4
I('s_waitcnt lgkmcnt(0)')
load_epoch()
if args.ee:
    I('s_waitcnt lgkmcnt(0)')
I('s_barrier')
epoch_ready()
I(f's_cmp_eq_u32 {s(sWV)}, 2')
I('s_cbranch_scc1 L_F2')


def ffn_w1(dst):
    I(f"""
    s_and_b32 {s(sT3)}, s2, 15
    s_mul_i32 {s(sT0)}, {s(sT3)}, {32 * 3584}
    s_lshr_b32 {s(sT1)}, s2, 4
    s_lshl_b32 {s(sT1)}, {s(sT1)}, 8
    s_add_u32 {s(sT0)}, {s(sT0)}, {s(sT1)}
    v_mul_u32_u24 v12, {8 * 3584}, v2
    v_lshl_add_u32 v12, v1, 4, v12
    v_add_u32 v12, {s(sT0)}, v12
    s_movk_i32 {s(sT2)}, {2 * 3584}
    """)
    for k in range(8):
        I(f'global_load_dwordx4 {v(dst(k), 4)}, v12, {P(pW1)} offset:{3584 * (k & 1)}{NT}')
        if k & 1 and k < 7:
            I(f'v_add_u32 v12, {s(sT2)}, v12')


def ffn_rest(dst, younger):
    global AT, SEL
    AT, SEL = 128, 136
    I(f"""
    s_and_b32 {s(sT3)}, s2, 15
    s_lshr_b32 {s(sT1)}, s2, 4
    s_lshl_b32 {s(sT1)}, {s(sT1)}, 8
    s_lshl_b32 {s(sT3)}, {s(sT3)}, 6
    s_add_u32 {s(sT0)}, {s(sT3)}, {L_XN}
    v_lshl_add_u32 v144, v2, 4, {s(sT0)}
    ds_read_b128 {v(XP, 4)}, v144
    s_lshl_b32 {s(sT0)}, {s(sT1)}, 6
    s_add_u32 {s(sT0)}, {s(sT0)}, {s(sT3)}
    s_lshl_b32 {s(sT0)}, {s(sT0)}, 1
    s_add_u32 {s(sT0)}, {s(sT0)}, {W_HF}
    v_lshrrev_b32 v145, 2, v0
    v_lshlrev_b32 v146, 11, v145
    v_and_b32 v147, 3, v0
    v_lshl_add_u32 v146, v147, 4, v146
    v_add_u32 v146, {s(sT0)}, v146
    v_cmp_gt_u32 {P(sM1)}, v0, 31
    s_and_b32 {s(sT0)}, s2, 3
    s_lshl_b32 {s(sT0)}, {s(sT0)}, 6
    s_add_u32 {s(sT0)}, {s(sT0)}, {s(sT1)}
    s_bfe_u32 {s(sT1)}, s2, 0x10002
    s_lshl3_add_u32 {s(sT0)}, {s(sT1)}, {s(sT0)}
    s_bfe_u32 {s(sT1)}, s2, 0x10003
    s_lshl2_add_u32 {s(sT0)}, {s(sT1)}, {s(sT0)}
    v_lshl_add_u32 v148, v147, 4, {s(sT0)}
    s_lshl_b32 {s(sT0)}, s2, 11
    s_add_u32 {s(sT0)}, {s(sT0)}, {W_HF}
    v_lshlrev_b32 v147, 4, v147
    v_lshl_add_u32 v147, v145, 7, v147
    v_add_u32 v147, {s(sT0)}, v147
    v_lshlrev_b32 v149, 3, v0
    v_add_u32 v149, {L_FF}, v149
    s_mov_b32 {s(sT3)}, 0xffff0000
    """)
    build_sel(150)
    I('s_waitcnt lgkmcnt(0)')
    diag_stage(8, dst, younger)
    I(f'v_cndmask_b32 {v(REC)}, {v(ACC0)}, {v(ACC0 + 2)}, {P(sM1)}')
    I(f'v_cndmask_b32 {v(REC + 1)}, {v(ACC0 + 1)}, {v(ACC0 + 3)}, {P(sM1)}')
    I(f'global_store_dwordx4 v146, {v(REC, 4)}, {P(pWS)} sc1')
    I(f'global_load_dword {v(B1R)}, v148, {P(pB1)}')
    TS(2)
    I(f's_mov_b32 {s(sCNT)}, {args.spin}')
    if args.ffn:
        I('s_waitcnt vmcnt(2)')
        flag_add(C_ACK)
        I('s_waitcnt vmcnt(0)')
    else:
        flag_wait(*((C_ISS, 4) if args.fr else (F_H2, 2)))
    a.label('L_TF')
    I(f'global_load_dwordx4 {v(HFG, 4)}, v147, {P(pWS)} sc1')
    I(f's_sub_u32 {s(sCNT)}, {s(sCNT)}, 1')
    I('s_waitcnt vmcnt(0)')
    I(f'v_cmp_ne_u32 vcc, {v(HFG + 2)}, {v(REC + 2)}')
    a.B('s_cbranch_scc1 L_TF_go')
    a.B('s_cbranch_vccnz L_TF')
    a.label('L_TF_go')
    TSN()
    row_allreduce('v_add_f32', [HFG, HFG + 1], steps=(4, 8))
    I(f'''
    v_permlane32_swap_b32 {v(HFG)}, {v(HFG + 1)}
    v_add_f32 {v(HFG)}, {v(HFG)}, {v(HFG + 1)}
    v_mov_b32 {v(HFG + 1)}, {v(HFG)}
    v_permlane16_swap_b32 {v(HFG)}, {v(HFG + 1)}
    v_lshlrev_b32 v16, 16, {v(B1R)}
    v_add_f32 {v(HFG)}, {v(HFG)}, {v(HFG + 1)}
    v_and_b32 v17, {s(sT3)}, {v(B1R)}
    v_cvt_pk_bf16_f32 {v(HFG)}, {v(HFG)}, {v(HFG)}
    v_cndmask_b32 v16, v16, v17, {P(sM1)}
    v_and_b32 {v(HFG)}, {s(sT3)}, {v(HFG)}
    v_add_f32 {v(HFG)}, {v(HFG)}, v16
    v_cvt_pk_bf16_f32 {v(HFG)}, {v(HFG)}, {v(HFG)}
    v_and_b32 {v(HFG)}, {s(sT3)}, {v(HFG)}
    v_max_f32 {v(HFG)}, 0, {v(HFG)}
    v_mul_f32 {v(HFG)}, {v(HFG)}, {v(HFG)}
    v_cvt_pk_bf16_f32 {v(HFG)}, {v(HFG)}, {v(HFG)}
    v_mov_b32 {v(HFG + 1)}, {v(HFG)}
    v_permlane32_swap_b32 {v(HFG)}, {v(HFG + 1)}
    ''')
    for g_ in range(4):
        for i in range(2):
            I(f'v_mov_b32 {v(HFG + 2 + i)}, {v(HFG + i)} row_newbcast:{g_} row_mask:{1 << g_}')
    I(f'ds_write_b64 v149, {v(HFG + 2, 2)}')
    TS(4)


if not args.ffn:
    I('s_cmp_ge_u32 s2, 224')
    I('s_cbranch_scc1 L_PV1')
    if args.pw & 8:
        I(f'''
        s_lshr_b32 {s(sT0)}, s2, 4
        s_lshl_b32 {s(sT0)}, {s(sT0)}, 8
        s_and_b32 {s(sT1)}, s2, 15
        s_add_u32 {s(sT0)}, {s(sT0)}, {s(sT1)}
        s_lshl_b32 {s(sT0)}, {s(sT0)}, 7
        s_add_u32 {s(sT0)}, {s(sT0)}, {W_HF}
        v_lshrrev_b32 v16, 3, v0
        v_lshlrev_b32 v16, 11, v16
        v_and_b32 v17, 7, v0
        v_lshl_add_u32 v16, v17, 4, v16
        v_add_u32 v16, {s(sT0)}, v16
        v_add_u32 v17, 0x4000, v16
        v_mov_b32 v20, 0
        v_mov_b32 v21, 0
        v_mov_b32 v22, 0
        v_mov_b32 v23, 0
        global_store_dwordx4 v16, v[20:23], {P(pWS)} sc1
        global_store_dwordx4 v17, v[20:23], {P(pWS)} sc1
        ''')
    flag_wait(F_F0, 1)
    ffn_w1(W1T)
    ffn_rest(W1T, 0)
I('s_branch L_PV1')

a.label('L_F2')
assert args.nopt and not args.probe and not args.pw0


def touch(base_code, offsets):
    I(base_code)
    I(f's_add_u32 {s(sB)}, {s(pWS)}, {s(sT0)}')
    I(f's_addc_u32 {s(sB + 1)}, {s(pWS + 1)}, 0')
    for o in offsets:
        I(f's_load_dword s61, {P(sB)}, {o}')


if args.pt & 8:
    touch(f's_lshr_b32 {s(sT0)}, s2, 4\ns_lshl_b32 {s(sT0)}, {s(sT0)}, 8\ns_and_b32 {s(sT1)}, s2, 15\ns_add_u32 {s(sT0)}, {s(sT0)}, {s(sT1)}\ns_lshl_b32 {s(sT0)}, {s(sT0)}, 7',
          [W_HF + p_ * 2048 for p_ in range(16)])
if args.pt & 4:
    touch(f's_lshl_b32 {s(sT0)}, s2, 12\ns_add_u32 {s(sT0)}, {s(sT0)}, {W_H5}', [z_ * 128 for z_ in range(32)])
if args.pt & 16:
    touch(f's_lshl_b32 {s(sT0)}, s2, 14\ns_add_u32 {s(sT0)}, {s(sT0)}, {W_H3}', [z_ * 128 for z_ in range(128)])
if args.pwq >= 2:
    I(f'''
    s_lshl_b32 {s(sT0)}, {s(sGA)}, 13
    s_add_u32 {s(sT0)}, {s(sT0)}, {s(sS)}
    s_lshl_b32 {s(sT0)}, {s(sT0)}, 8
    s_add_u32 {s(sT0)}, {s(sT0)}, {W_H3}
    v_lshlrev_b32 v6, 15, v2
    v_lshl_add_u32 v6, v1, 4, v6
    v_add_u32 v6, {s(sT0)}, v6
    s_mov_b32 {s(sT1)}, 0x20000
    ''')
    for k in range(16):
        I(f'global_store_dwordx4 v6, v[16:19], {P(pWS)} sc1')
        I(f'v_add_u32 v6, {s(sT1)}, v6')
        if args.pwq > 2:
            I(f's_waitcnt vmcnt({args.pwq - 2})')
if args.warm & 2:
    flag_wait(F_F0, 1)
    I('s_mov_b64 exec, 0')
    I('s_branch L_PVC')
    a.label('L_PVC_back')
    I('s_mov_b64 exec, -1')


a.label('L_QG')
G2, LA = 64, 56
I(f'''
s_lshr_b32 {s(sT1)}, {s(sWV)}, 1
s_lshl1_add_u32 {s(sT0)}, {s(sGA)}, {s(sT1)}
s_lshl_b32 {s(sT0)}, {s(sT0)}, 13
s_add_u32 {s(sT0)}, {s(sT0)}, {W_H2}
v_add_u32 v8, {s(sT0)}, v3
v_add_u32 v9, 0x1000, v8
v_and_b32 v10, 7, v0
v_add_u32 v11, 8, v10
v_lshlrev_b32 v6, 4, v10
v_lshl_add_u32 v6, v0, 8, v6
s_lshl_b32 {s(sT1)}, {s(sT1)}, 7
s_add_u32 {s(sT1)}, {s(sT1)}, {L_QA}
v_add_u32 {v(LA)}, {s(sT1)}, v6
s_mul_i32 {s(sM3)}, {s(sEP)}, {(HASH * 16) & 0xffffffff}
s_add_u32 {s(sM3)}, {s(sM3)}, {(HASH * 8) & 0xffffffff}
''')
for hd in range(1, 8):
    I(f'v_xor_b32 {v(LA + hd)}, {16 * hd}, {v(LA)}')
tr_addr()
pv_setup()
if args.pwq == 1:
    flag_wait(F_H2, 1)
pv_prewrite(True)
I('s_setprio 1')
if args.qa:
    flag_wait(C_ISS, 4)
flag_wait(F_H2, 1 + args.h2)
assert not args.hint2
if args.hint2:
    I(f's_cmp_eq_u32 {s(sWV)}, 0')
    I('s_cbranch_scc1 L_QG_w0')
    I(f's_xor_b32 {s(sT0)}, {s(sY)}, 16')
    I(f's_lshl_b32 {s(sT0)}, {s(sT0)}, 11')
    I(f's_add_u32 {s(sT0)}, {s(sT0)}, {W_H2}')
    I(f's_add_u32 {s(sB)}, {s(pWS)}, {s(sT0)}')
    I(f's_addc_u32 {s(sB + 1)}, {s(pWS + 1)}, 0')
    scalar_poll([k * 256 + 252 for k in range(8)])
    flag_add(F_HINT)
    I('s_branch L_QG_hd')
    a.label('L_QG_w0')
    flag_wait(F_HINT, 1)
    a.label('L_QG_hd')
TS(10)


def qa_loads():
    for k in range(8):
        I(f'global_load_dwordx4 {v(G2 + 4 * k, 4)}, {v(8 + (k >> 2))}, {P(pWS)} offset:{(k & 3) * 1024} sc1')


qa_loads()
for i in range(args.pre):
    tr_slot(i)
I(f's_mov_b32 {s(sCNT)}, {args.spin}')
a.label('L_QG_chk')
for k in range(8):
    d0, d1 = v(G2 + 4 * k), v(G2 + 4 * k + 1)
    I(f's_waitcnt vmcnt({7 - k})')
    I(f'v_and_b32 v6, {s(sK1)}, {d0}')
    I(f'v_and_b32 v7, {s(sK1)}, {d1}')
    I(f'v_xor_b32 {d0}, v6, {d0}')
    I(f'v_xor_b32 {d1}, v7, {d1}')
    I(f'ds_write_b128 {v(LA + k)}, {v(G2 + 4 * k, 4)}')
    I(f'v_lshl_add_u32 v24, v6, v10, {"0" if k == 0 else "v24"}')
    I('v_lshl_add_u32 v24, v7, v11, v24')
    I(f'v_add3_u32 v24, {d0}, {d1}, v24')
for st in OCT:
    I(f'v_add_u32 v24, v24, v24 {st}')
I(f's_sub_u32 {s(sCNT)}, {s(sCNT)}, 1')
I(f'v_cmp_ne_u32 vcc, {s(sM3)}, v24')
a.B('s_cbranch_scc1 L_QG_go')
a.B('s_cbranch_vccz L_QG_go')
I('s_waitcnt lgkmcnt(0)')
I('s_mov_b64 exec, vcc')
qa_loads()
I('s_branch L_QG_chk')
a.label('L_QG_go')
flag_add(C_QA)
I('s_setprio 0')
TS(11)
TSN()
a.label('L_PVs')
for i in range(args.pre, 4):
    if i == args.pwt - 1:
        pv_prewrite(False, True)
    tr_slot(i)

a.label('L_PV')
if args.ffn:
    I(f's_cmp_eq_u32 {s(sWV)}, 3')
    I(f's_cselect_b32 {s(sR)}, s2, 224')
    I(f's_cmp_ge_u32 {s(sR)}, 224')
    I('s_cbranch_scc1 L_PV_now1')
    ffn_w1(W1T)
    a.label('L_PV_now1')
if not args.bm3:
    TS(6)
    I('s_barrier')
if args.pp:
    I(f's_setprio {args.pp}')
I('s_barrier')
a.label('L_PVC')
for u in range(4):
    I(f'ds_read_b128 {v(PF + 4 * u, 4)}, {v(48 + u)}')
LW, MW = 32, 36
I(f'ds_read_b128 {v(LW, 4)}, v43')
I(f'ds_read_b128 {v(MW, 4)}, v42')
TS(7)
O = 16
cvt = lambda k: [f'v_cvt_pk_bf16_f32 {v(O + 4 * r + k)}, {v(ACC + 8 * k + r)}, {v(ACC + 8 * k + 4 + r)}' for r in range(4)]
R4 = range(4)
fill = {}


def place(first, ops):
    for i, t_ in enumerate(ops):
        fill.setdefault(first + i // 2, []).append(t_)


w0 = [f'v_add_f32 {v(LW + r)}, {v(LW + r)}, {v(LW + r)} row_ror:{st}' for st in (8, 4, 2, 1) for r in R4]
w0[0] = 's_waitcnt lgkmcnt(0)\n' + w0[0]
w1 = [f'v_cvt_f16_f32 {v(LW + r)}, {v(LW + r)}' for r in R4]
w1 += [f'v_and_or_b32 {v(LW + r)}, {v(LW + r)}, {s(sT0)}, {v(MW + r)}' for r in R4]
w1 += [f'v_lshrrev_b32 {v(LW + r)}, v1, {v(LW + r)}' for r in R4]
w2 = cvt(0) + [f'v_and_b32 {v(O + 4 * r)}, {s(sK2)}, {v(O + 4 * r)}' for r in R4]
w3 = cvt(1) + [f'v_bfi_b32 {v(O + 4 * r + 1)}, {s(sK1)}, {v(LW + r)}, {v(O + 4 * r + 1)}' for r in R4]
w3 += [f'v_add_u32 {v(CK + r)}, {v(O + 4 * r)}, {v(O + 4 * r + 1)}' for r in R4]
w3 += [f'v_add_u32 {v(CK + r)}, {v(CK + r)}, {v(CK + r)} row_ror:{st}' for st in (8, 4, 2, 1) for r in R4]
allw = w0 + w2 + w1 + w3
place(2, allw[:60])
I(f's_mov_b32 {s(sT0)}, 0xffff')
i = 0
for k in range(4):
    for u in range(4):
        for T in (2 * k, 2 * k + 1):
            if k == 0 and T == 0 and u < 2:
                I(f's_waitcnt lgkmcnt({5 - u})')
            I(f'{MFMA} {v(ACC + 4 * T, 4)}, {v(PF + 4 * u, 4)}, {v(BF + (u * 8 + T) * 4, 4)}, {"0" if u == 0 else v(ACC + 4 * T, 4)}')
            for t_ in fill.get(i, []):
                I(t_)
            i += 1
for t_ in allw[60:] + cvt(2):
    I(t_)
for r in range(4):
    I(f'v_sub_u32 {v(CK + r)}, {s(sK0)}, {v(CK + r)}')
    I(cvt(3)[r])
    I(f'v_lshrrev_b32 {v(CK + r)}, v1, {v(CK + r)}')
    I(f'v_and_or_b32 {v(O + 4 * r)}, {v(CK + r)}, {s(sK1)}, {v(O + 4 * r)}')
    if args.warm & 2 and r == 0:
        a.B('s_cbranch_execz L_PVC_back')
    I(f'global_store_dwordx4 {v(52 + r)}, {v(O + 4 * r, 4)}, {P(pWS)} {args.sf.replace("+", " ")}')
flag_add(C_ST)
TS(8)
if args.ffn:
    I('s_setprio 0')
    I(f's_cmp_ge_u32 {s(sR)}, 224')
    I('s_cbranch_scc1 L_PV_noffn')
    ffn_rest(W1T, 4)
    I('s_branch L_PV_end')
    a.label('L_PV_noffn')
I('s_waitcnt vmcnt(0)')
flag_add(C_ACK)
TS(9)
a.label('L_PV_end')
I('s_waitcnt lgkmcnt(0)')
ts_dump()
I('s_endpgm')

a.label('L_S')
common()
AF, QB, WUV, SA, MK, WO0, QAD = 128, 96, 48, 40, 36, 64, 80
WOR, PL, AW, AT2 = 128, 176, 208, 240
XR2, B2R, OA, W2T, HH = 46, 47, 104, 88, 124
sQ, sDL = sK1, sK2
WOq = lambda q: WO0 + 4 * q if q < 4 else WOR + 4 * (q - 4)
HTC = {0: f's_lshr_b32 {s(sHT)}, {s(sY)}, 3\ns_lshl2_add_u32 {s(sHT)}, {s(sX)}, {s(sHT)}',
       1: f's_and_b32 {s(sHT)}, {s(sY)}, 24\ns_add_u32 {s(sHT)}, {s(sX)}, {s(sHT)}',
       2: f's_bfe_u32 {s(sHT)}, {s(sY)}, 0x10003\ns_lshl1_add_u32 {s(sHT)}, {s(sX)}, {s(sHT)}\ns_and_b32 {s(sCI)}, {s(sY)}, 16\ns_add_u32 {s(sHT)}, {s(sHT)}, {s(sCI)}'}[args.htmap]
ROT = {0: '', 1: f's_lshl1_add_u32 {s(sT1)}, {s(sW)}, {s(sY)}', 2: f's_mov_b32 {s(sT1)}, {s(sY)}', 3: f's_lshl_b32 {s(sT1)}, {s(sW)}, 1'}[args.rot]
if args.rot:
    ROT += f'\ns_and_b32 {s(sT1)}, {s(sT1)}, 7\ns_lshl_b32 {s(sT1)}, {s(sT1)}, 12\nv_xor_b32 v4, {s(sT1)}, v4'
KS = {0: 12, 1: 16, 2: 19}[args.kmap]
if args.kmap == 0:
    I(f's_lshl_b32 {s(sT0)}, {s(sS)}, 17')
elif args.kmap == 1:
    I(f's_and_b32 {s(sT0)}, {s(sS)}, 15')
    I(f's_lshl_b32 {s(sT0)}, {s(sT0)}, 12')
    I(f's_lshl_b32 {s(sT1)}, {s(sX)}, 21')
    I(f's_add_u32 {s(sT0)}, {s(sT0)}, {s(sT1)}')
else:
    I(f's_lshl_b32 {s(sT0)}, {s(sS)}, 12')
I(f"""
s_lshl_b32 {s(sT1)}, {s(sW)}, {KS + 3}
s_add_u32 {s(sT0)}, {s(sT0)}, {s(sT1)}
s_lshl_b32 {s(sT1)}, {s(sW)}, 8
s_add_u32 {s(sT0)}, {s(sT0)}, {s(sT1)}
v_lshlrev_b32 v4, 1, v2
v_xor_b32 v4, v4, v1
v_lshlrev_b32 v4, 4, v4
v_lshl_add_u32 v4, v2, 10, v4
v_add_u32 v4, {s(sT0)}, v4
{ROT}
v_xor_b32 v26, 0x80, v4
{'v_xor_b32' if args.rot else 'v_add_u32'} v26, {1 << KS}, v26
s_mul_i32 {s(sT1)}, {s(sW)}, {32768 + 8192}
s_mov_b32 m0, {s(sT1)}
s_mov_b32 {s(sT2)}, {2 << KS}
s_mov_b32 {s(sQ)}, {s(sW)}
{HTC}
s_and_b32 {s(sCI)}, {s(sY)}, 3
s_bfe_u32 {s(sDI)}, {s(sY)}, 0x10002
v_and_b32 v5, 7, v1
v_lshlrev_b32 v5, 1, v5
v_xor_b32 v5, v5, v2
v_lshlrev_b32 v5, 4, v5
v_lshl_add_u32 v5, v1, 8, v5
s_lshl_b32 {s(sT1)}, {s(sW)}, 13
v_add_u32 v5, {s(sT1)}, v5
v_lshl_add_u32 v27, {s(sW)}, 2, {v(VFL)}
""")
I(f"""
s_lshr_b32 {s(sT0)}, {s(sW)}, 1
s_lshl1_add_u32 {s(sT0)}, {s(sCI)}, {s(sT0)}
s_lshl_b32 {s(sT0)}, {s(sT0)}, 19
s_and_b32 {s(sT3)}, {s(sW)}, 1
s_lshl_b32 {s(sT3)}, {s(sT3)}, 16
s_add_u32 {s(sT0)}, {s(sT0)}, {s(sT3)}
s_lshl1_add_u32 {s(sT3)}, {s(sHT)}, {s(sDI)}
s_lshl_b32 {s(sT1)}, {s(sT3)}, 7
s_add_u32 {s(sT0)}, {s(sT0)}, {s(sT1)}
v_lshrrev_b32 v8, 3, v0
v_lshlrev_b32 v8, 13, v8
v_and_b32 v9, 7, v0
v_lshl_add_u32 v8, v9, 4, v8
v_add_u32 v8, {s(sT0)}, v8
""")
I('s_waitcnt lgkmcnt(0)')
load_epoch()
if args.ee:
    I('s_waitcnt lgkmcnt(0)')
I('s_barrier')
I(f"""
s_lshl_b32 {s(sT0)}, {s(sT3)}, 16
s_lshl_b32 {s(sT1)}, {s(sW)}, 8
s_add_u32 {s(sT0)}, {s(sT0)}, {s(sT1)}
v_lshlrev_b32 v34, 12, v2
v_lshl_add_u32 v34, v1, 4, v34
v_add_u32 v34, {s(sT0)}, v34
""")
for b in range(4):
    I(f's_add_u32 {s(sT0)}, {s(sCI)}, {b}')
    I(f's_and_b32 {s(sT0)}, {s(sT0)}, 3')
    I(f's_lshl_b32 {s(sT0)}, {s(sT0)}, 14')
    I(f'v_add_u32 {v(28 + b)}, {s(sT0)}, v34')
build_masks(MK, 9, 10)
TS(1)


def s_setup():
    I(f"""
    v_lshlrev_b32 v10, 4, v1
    v_add_u32 v10, {L_MX}, v10
    s_lshl_b32 {s(sT0)}, {s(sW)}, 2
    v_add_u32 v9, {s(sT0)}, v10
    s_lshl_b32 {s(sT0)}, {s(sW)}, 10
    s_add_u32 {s(sT0)}, {s(sT0)}, {L_P}
    v_add_u32 v11, {s(sT0)}, v3
    v_lshlrev_b32 v33, 2, v1
    v_add_u32 v33, {L_MF}, v33
    s_lshl_b32 {s(sT0)}, {s(sW)}, 8
    s_add_u32 {s(sT0)}, {s(sT0)}, {L_LS}
    v_lshl_add_u32 v32, v0, 2, {s(sT0)}
    v_xor_b32 v6, v1, v2
    v_lshlrev_b32 v6, 4, v6
    v_lshl_add_u32 v6, v2, 8, v6
    """)
    for i in range(4):
        I(f's_add_u32 {s(sT0)}, {s(sW)}, {i}')
        I(f's_and_b32 {s(sT0)}, {s(sT0)}, 3')
        I(f's_lshl_b32 {s(sT0)}, {s(sT0)}, 12')
        I(f's_add_u32 {s(sT0)}, {s(sT0)}, {L_QA}')
        I(f'v_add_u32 {v(QAD + 2 * i)}, {s(sT0)}, v6')
        I(f'v_xor_b32 {v(QAD + 2 * i + 1)}, 64, {v(QAD + 2 * i)}')
    I(f"""
    s_bfe_u32 {s(sT0)}, s2, 0x20004
    s_and_b32 {s(sT1)}, s2, 3
    s_lshl2_add_u32 {s(sT0)}, {s(sT0)}, {s(sT1)}
    s_lshl_b32 {s(sT0)}, {s(sT0)}, 6
    s_bfe_u32 {s(sT1)}, s2, 0x10002
    s_lshl3_add_u32 {s(sT0)}, {s(sT1)}, {s(sT0)}
    s_bfe_u32 {s(sT1)}, s2, 0x10003
    s_lshl2_add_u32 {s(sT0)}, {s(sT1)}, {s(sT0)}
    v_and_b32 v35, 3, v0
    v_lshl_add_u32 v12, v35, 4, {s(sT0)}
    s_mov_b32 {s(sK0)}, 0x20000
    s_lshr_b32 {s(sT1)}, s2, 6
    s_lshl_b32 {s(sT1)}, {s(sT1)}, 10
    s_add_u32 {s(sT0)}, {s(sT0)}, {s(sT1)}
    s_cmp_lt_u32 s2, 224
    s_cselect_b32 {s(sR)}, -1, 0
    s_cselect_b32 {s(sT1)}, 0, 512
    s_sub_u32 {s(sT0)}, {s(sT0)}, {s(sT1)}
    s_lshl1_add_u32 {s(sT0)}, {s(sT0)}, {s(sW)}
    s_lshl_b32 {s(sT0)}, {s(sT0)}, 8
    v_lshlrev_b32 v34, 13, v2
    v_lshl_add_u32 v34, v1, 4, v34
    v_add_u32 v34, {s(sT0)}, v34
    """)


def dma_row(r):
    k = r & 7
    va = 'v26' if k & 1 else 'v4'
    I(f'global_load_lds_dwordx4 {va}, {P(pCKV)}{NT}')
    if r < 30:
        if k == 5:
            I(f's_lshl_b32 {s(sDL)}, {s(sQ)}, 8')
            I(f's_add_u32 {s(sQ)}, {s(sQ)}, 1')
            I(f's_and_b32 {s(sQ)}, {s(sQ)}, 3')
            I(f's_lshl_b32 {s(sT0)}, {s(sQ)}, 8')
            if args.rot:
                I(f's_xor_b32 {s(sDL)}, {s(sT0)}, {s(sDL)}')
                I(f's_or_b32 {s(sDL)}, {s(sDL)}, {6 << 12}')
            else:
                I(f's_sub_u32 {s(sDL)}, {s(sT0)}, {s(sDL)}')
                I(f's_sub_u32 {s(sDL)}, {s(sDL)}, {6 << KS}')
        if args.rot:
            I(f'v_xor_b32 {va}, {s(sDL) if k >= 6 else (6 << 12) if k & 2 else s(sT2)}, {va}')
        else:
            I(f'v_add_u32 {va}, {s(sDL if k >= 6 else sT2)}, {va}')
    if r < 31:
        if k == 7:
            I(f's_lshl2_add_u32 {s(sT0)}, {s(sQ)}, {s(sW)}')
            I(f's_lshl_b32 m0, {s(sT0)}, 13')
        else:
            I('s_add_u32 m0, m0, 0x400')
    if r == args.qa and r:
        flag_add(C_ISS)
    if r == args.hr and r:
        flag_add(C_ER)


def stage_addr(i):
    I(f's_add_u32 {s(sT1)}, {s(sW)}, {i}')
    I(f's_and_b32 {s(sT1)}, {s(sT1)}, 3')
    I(f's_lshl_b32 {s(sT1)}, {s(sT1)}, 15')
    I(f'v_add_u32 v16, {s(sT1)}, v5')
    for t in range(1, 4):
        I(f'v_xor_b32 {v(16 + t)}, {64 * t}, v16')


def stage_reads(i):
    for t in range(4):
        for tau in range(2):
            I(f'ds_read_b128 {v(AF + 32 * i + 8 * t + 4 * tau, 4)}, {v(16 + t)} offset:{4096 * tau}')


tail = []
for i in range(4):
    tail.append(f'global_load_dwordx4 {v(WO0 + 4 * i, 4)}, v28, {P(pWO)} offset:{1024 * i}{NT if args.nto else ""}')
for i in range(4):
    tail.append(f'global_load_dwordx4 {v(WUV + 4 * i, 4)}, v8, {P(pWUV)}{NT}' + (f'\nv_add_u32 v8, {s(sK0)}, v8' if i < 3 else ''))
for i in range(2):
    tail.append(f'global_load_dwordx4 {v(W2T + 4 * i, 4)}, v34, {P(pW2)} offset:{1024 * i}{NT}')
w2_loads = []
w2_late = []
if args.w2p:
    w2_late = tail[8:10]
    tail = tail[:8]
if args.ffn:
    w2_loads = tail[8:10]
    tail = tail[:8]
    args.ns = min(args.ns, 4) if args.ns == 6 else args.ns
wuv_loads = []
if args.wuv:
    assert args.tord == 1
    wuv_loads = tail[4:8]
    tail = tail[:4] + tail[8:]
elif args.tord == 1:
    tail = tail[:4] + tail[8:10] + tail[4:8]
if args.tord == 2:
    tail = tail[4:8] + tail[8:10] + tail[:4]
assert args.nt1 + args.ns + args.ne <= len(tail)

depth = lambda r: args.d1 if r < args.k1 else (args.d2 if r < args.k2 else args.d3)
for r in range(args.d1):
    dma_row(r)
s_setup()
if args.p5:
    assert args.pair and not args.fin and not args.h5 and args.ee
    I(f'''
    s_bfe_u32 {s(sT0)}, s2, 0x20003
    s_and_b32 {s(sT1)}, s2, 3
    s_lshl2_add_u32 {s(sT0)}, {s(sT0)}, {s(sT1)}
    s_lshl_b32 {s(sT0)}, {s(sT0)}, 6
    s_bfe_u32 {s(sT1)}, s2, 0x10002
    s_lshl3_add_u32 {s(sT0)}, {s(sT1)}, {s(sT0)}
    v_lshl_add_u32 v12, v35, 4, {s(sT0)}
    v_and_b32 v6, 4, v0
    v_add_u32 v12, v6, v12
    ''')
if args.fin == 2:
    I(f'''
    s_lshr_b32 {s(sT0)}, {s(sY)}, 3
    s_and_b32 {s(sT1)}, {s(sX)}, 3
    s_lshl2_add_u32 {s(sT0)}, {s(sT0)}, {s(sT1)}
    s_lshl_b32 {s(sT0)}, {s(sT0)}, 6
    s_lshr_b32 {s(sT1)}, {s(sX)}, 2
    s_lshl3_add_u32 {s(sT0)}, {s(sT1)}, {s(sT0)}
    s_and_b32 {s(sT1)}, {s(sY)}, 4
    s_add_u32 {s(sT0)}, {s(sT0)}, {s(sT1)}
    v_lshl_add_u32 v12, v35, 4, {s(sT0)}
    ''')
I(f'global_load_dword v6, v12, {P(pX)}')
I(f'global_load_dword v7, v12, {P(pB2)}')
if args.warm & 1:
    I('s_mov_b64 exec, 0')
    I('s_branch L_SM_nb')
    a.label('L_SM_back')
    I('s_mov_b64 exec, -1')
I('s_mov_b64 vcc, -1')
stg = 0
for r in range(args.d1, 32):
    if args.tpos <= r < args.tpos + args.ne:
        I(tail.pop(0))
    if args.wuv == 2 and args.k1 <= r < args.k1 + 4:
        I(wuv_loads.pop(0))
    dma_row(r)
    d = depth(r)
    if args.dyn and r >= args.k1 and r < 31:
        lab = a.newlabel('L_dy')
        a.B(f's_cbranch_vccz {lab}')
        I(f'ds_read_b32 {v(VFT)}, {v(VFL)} offset:{4 * F_H2}')
        I(f's_waitcnt vmcnt({args.dyn}) lgkmcnt(0)')
        I(f'v_cmp_eq_u32 vcc, 0, {v(VFT)}')
        a.label(lab)
    if r + 1 > d and r < 31:
        I(f's_waitcnt vmcnt({d})')
        if r + 1 - d >= 8 * (stg + 1):
            flag_add(K0, 27)
            stage_addr(stg)
            stage_reads(stg)
            stg += 1
TS(2)
while stg < (3 if args.p2 < 0 else 2):
    stage_addr(stg)
    I(f's_waitcnt vmcnt({24 - 8 * stg})')
    flag_add(K0, 27)
    stage_reads(stg)
    stg += 1
for _ in range(args.nt1):
    I(tail.pop(0))
if args.qa == 32:
    flag_add(C_ISS)
stage_addr(3 if args.p2 < 0 else 2)
assert args.p2 < 0 or (stg == 2 and args.p2 <= 8 and args.p2 <= args.last)
epoch_ready()
I('s_setprio 2')
flag_wait(C_QA, 2)
TS(4)
LOOK = 4


def qa_read(t):
    I(f'ds_read_b128 {v(QB + 4 * (t & 7), 4)}, {v(QAD + 2 * (t >> 2) + (t & 1))} offset:{1024 * (t & 3)}')


def wo_rest():
    for q in range(4, 16):
        I(f'global_load_dwordx4 {v(WOq(q), 4)}, {v(28 + (q >> 2))}, {P(pWO)} offset:{1024 * (q & 3)}{NTS}')


def s_mfma(t):
    for tau in range(2):
        I(f'{MFMA} {v(SA + 4 * tau, 4)}, {v(AF + 8 * t + 4 * tau, 4)}, {v(QB + 4 * (t & 7), 4)}, {"0" if t == 0 else v(SA + 4 * tau, 4)}')


ldsq = []


def pickup(i):
    I(f's_waitcnt vmcnt({8 * (3 - i) + args.nt1})')
    stage_reads(i)
    ldsq.extend([('A', 4 * i + t) for t in range(4) for _ in range(2)])
    if i < 3 or not args.bm3:
        flag_add(K0, 27)
        ldsq.append(('F', i))
    if i == 2:
        stage_addr(3)
    else:
        TS(3)


waited = -1
for t in range(LOOK):
    qa_read(t)
    ldsq.append(('Q', t))
for t in range(16):
    if t == args.p2:
        pickup(2)
    if t == args.last:
        pickup(3)
    if t + LOOK < 16:
        qa_read(t + LOOK)
        ldsq.append(('Q', t + LOOK))
    need_ = max(i for i, o in enumerate(ldsq) if o in (('Q', t), ('A', t)))
    if need_ > waited:
        younger = min(15, len(ldsq) - 1 - need_)
        I(f's_waitcnt lgkmcnt({younger})')
        waited = len(ldsq) - 1 - younger
    s_mfma(t)
    if t >= 12:
        for _ in range((args.ns + 3 - (t - 12)) // 4):
            if tail:
                I(tail.pop(0))
TS(5)
a.label('L_SM')
I(f'''
s_mov_b32 {s(sT3)}, 0xffff0000
s_mov_b32 {s(sT0)}, 0x3db504f3
s_mov_b32 {s(sT1)}, 0x3fb8aa3b
v_max3_f32 v24, {v(SA)}, {v(SA + 1)}, {v(SA + 2)}
v_max3_f32 v25, {v(SA + 4)}, {v(SA + 5)}, {v(SA + 6)}
v_max3_f32 v24, v24, {v(SA + 3)}, {v(SA + 7)}
v_max_f32 v24, v24, v25
''')
if args.dsmax:
    I(f'ds_max_f32 v33, v24 offset:{L_MA - L_MF}')
else:
    cross_rows_allreduce('v_max_f32', 24, 25)
    I('ds_write_b32 v9, v24')
if args.mimic:
    round_pairs(SA, 8, 16)
I('s_waitcnt lgkmcnt(0)')
I('s_barrier')
a.label('L_SM_nb')
I(f'ds_read_b32 v24, v33 offset:{L_MA - L_MF}' if args.dsmax else 'ds_read_b128 v[20:23], v10')
for i in range(8):
    I(f'v_mul_f32 {v(SA + i)}, {s(sT0)}, {v(SA + i)}')
if args.mimic:
    round_pairs(SA, 8, 16)
I('s_waitcnt lgkmcnt(0)')
if not args.dsmax:
    I('v_max3_f32 v24, v20, v21, v22')
    I('v_max_f32 v24, v24, v23')
if args.mimic:
    I('v_cvt_pk_bf16_f32 v24, v24, v24')
    I(f'v_and_b32 v24, {s(sT3)}, v24')
I(f'v_mul_f32 v24, {s(sT0)}, v24')
assert args.mimic
I('v_cvt_pk_bf16_f32 v24, v24, v24')
I(f'v_and_b32 v25, {s(sT3)}, v24')
I(f'v_mul_f32 v24, {s(sT1)}, v25')
I('ds_write_b32 v33, v25')
for i in range(8):
    I(f'v_fma_f32 {v(SA + i)}, {v(SA + i)}, {s(sT1)}, -v24')
for i in range(8):
    I(f'v_exp_f32 {v(SA + i)}, {v(SA + i)}')
for i in range(4):
    I(f'v_cvt_pk_bf16_f32 {v(16 + i)}, {v(SA + 2 * i)}, {v(SA + 2 * i + 1)}')
I('ds_write_b128 v11, v[16:19]')
I(f's_mov_b32 {s(sT0)}, 0x3f803f80')
I(f'v_dot2_f32_bf16 v25, v16, {s(sT0)}, 0')
for i in range(1, 4):
    I(f'v_dot2_f32_bf16 v25, {v(16 + i)}, {s(sT0)}, v25')
I('ds_write_b32 v32, v25')
if args.warm & 1:
    a.B('s_cbranch_execz L_SM_back')
I('s_waitcnt lgkmcnt(0)')
I('s_barrier')
I('s_setprio 0')
TS(6)
I(f'v_mov_b32 {v(XR2)}, v6')
I(f'v_mov_b32 {v(B2R)}, v7')
for _ in range(args.nb):
    if tail:
        I(tail.pop(0))
if args.wor == 1:
    wo_rest()
I(f'''
v_lshlrev_b32 v10, 3, v0
v_add_u32 v10, {L_FF}, v10
s_lshl2_add_u32 {s(sT0)}, {s(sHT)}, {s(sCI)}
s_lshl2_add_u32 {s(sT0)}, {s(sT0)}, {s(sW)}
s_lshl_b32 {s(sT0)}, {s(sT0)}, 13
s_add_u32 {s(sT0)}, {s(sT0)}, {W_H3}
v_lshlrev_b32 v4, 11, v2
v_lshl_add_u32 v4, v1, 4, v4
v_add_u32 v4, {s(sT0)}, v4
s_mul_i32 {s(sK1)}, {s(sEP)}, {(HASH * 16) & 0xffffffff}
s_add_u32 {s(sK1)}, {s(sK1)}, {(HASH * 8) & 0xffffffff}
s_mov_b32 {s(sK2)}, {EMB}
s_lshl_b32 {s(sT0)}, {s(sW)}, 2
s_add_u32 {s(sT0)}, {s(sT0)}, {L_MX}
v_mov_b32 v7, {s(sT0)}
v_mov_b32 v45, {L_MX}
s_lshl_b32 {s(sT0)}, {s(sW)}, 4
s_add_u32 {s(sT0)}, {s(sT0)}, {L_MX + 16}
v_lshl_add_u32 v11, v2, 2, {s(sT0)}
s_lshl_b32 {s(sT0)}, {s(sW)}, {18 - args.p5}
s_lshl_b32 {s(sT1)}, s2, {6 + args.h5}
s_add_u32 {s(sT0)}, {s(sT0)}, {s(sT1)}
s_add_u32 {s(sT0)}, {s(sT0)}, {W_H5}
v_lshrrev_b32 v44, {2 + args.h5}, v0
v_lshlrev_b32 v44, {14 + args.h5}, v44
v_and_b32 v16, {7 if args.h5 else 3}, v0
v_lshl_add_u32 v44, v16, 4, v44
v_add_u32 v44, {s(sT0)}, v44
v_and_b32 v16, 1, v2
v_lshrrev_b32 v17, 1, v2
s_lshl_b32 {s(sT0)}, {s(sW)}, 9
s_add_u32 {s(sT1)}, {s(sT0)}, {L_CL}
v_add_u32 v40, {s(sT1)}, v3
s_add_u32 {s(sT1)}, {s(sT0)}, {L_CX}
v_and_b32 v42, 7, v0
v_lshlrev_b32 v42, 5, v42
v_lshl_add_u32 v42, v16, 4, v42
v_lshl_add_u32 v42, v17, 8, v42
v_add_u32 v42, {s(sT1)}, v42
s_lshl_b32 {s(sT0)}, {s(sW)}, 7
s_add_u32 {s(sT0)}, {s(sT0)}, {L_CL}
v_lshrrev_b32 v41, 3, v0
v_lshl_add_u32 v41, v41, 4, {s(sT0)}
v_lshl_add_u32 v41, v35, 2, v41
v_bfe_u32 v9, v0, 2, 1
v_lshl_add_u32 v41, v9, 10, v41
v_lshl_add_u32 v127, v9, 3, v35
v_lshl_add_u32 v127, v127, 2, v45
v_lshl_add_u32 v9, v9, 3, v45
v_lshrrev_b32 v43, 2, v1
v_add_u32 v43, {s(sCI)}, v43
v_and_b32 v43, 3, v43
v_lshlrev_b32 v43, 4, v43
v_lshl_add_u32 v43, v2, 2, v43
v_add_u32 v43, v43, v35
v_lshlrev_b32 v43, 2, v43
v_add_u32 v43, {L_CX}, v43
v_mov_b32 v33, {s(sEP)}
v_cmp_gt_u32 {P(sM1)}, v0, 31
v_and_b32 v16, 1, v0
v_cmp_eq_u32 {P(sM2)}, 1, v16
''')
if args.pw & 4 and args.pwt != 2:
    for e in range(4):
        I(f'v_mov_b32 {v(20 + e)}, 0')
    if args.p5:
        I('s_mov_b32 exec_hi, 0')
    I(f'global_store_dwordx4 v44, v[20:23], {P(pWS)} sc1')
    I('s_mov_b64 exec, -1')
if args.prm:
    I('v_lshlrev_b32 v11, 4, v1')
    I('v_sub_u32 v11, v28, v11')
    I('v_lshrrev_b32 v16, 1, v1')
    I('v_lshl_add_u32 v11, v16, 10, v11')
    I('v_and_b32 v16, 1, v1')
    I('v_lshl_add_u32 v11, v16, 7, v11')
    prm = f's_mov_b32 exec_lo, 0x00ff00ff\ns_mov_b32 exec_hi, 0x00ff00ff\nglobal_load_dword v126, v11, {P(pWO)} sc1 \ns_mov_b64 exec, -1'
    if args.prm == 1:
        I(prm)
    else:
        tail = [prm] + tail
if args.pw & 32:
    I(f's_lshl_b32 {s(sT0)}, {s(sW)}, 8')
    I(f's_sub_u32 {s(sT0)}, s2, {s(sT0)}')
    I(f's_cmp_lt_i32 {s(sT0)}, {0 if args.fin == 2 else 224 if args.p5 else 192}')
    I('s_cbranch_scc1 L_nopwo')
    I(f's_lshl_b64 exec, 1, {s(sCI)}' if args.fin == 2 else 's_mov_b64 exec, 0xff' if args.p5 else 's_mov_b64 exec, 15')
    I(f'global_store_dword v12, v20, {P(pOUT)} sc1')
    I('s_mov_b64 exec, -1')
    a.label('L_nopwo')
if args.pfu:
    I(f'''
    s_lshl2_add_u32 {s(sT0)}, {s(sCI)}, {s(sW)}
    s_lshl_b32 {s(sT0)}, {s(sT0)}, 18
    s_xor_b32 {s(sT1)}, {s(sDI)}, 1
    s_lshl1_add_u32 {s(sT1)}, {s(sHT)}, {s(sT1)}
    s_lshl_b32 {s(sT1)}, {s(sT1)}, 7
    s_add_u32 {s(sT0)}, {s(sT0)}, {s(sT1)}
    v_lshl_add_u32 v11, v0, 13, {s(sT0)}
    ''')
    pf = f's_mov_b32 exec_hi, 0\nglobal_load_dword v126, v11, {P(pWUV)}{NT}\ns_mov_b64 exec, -1'
    tail = tail + [pf] if args.pfu == 1 else [pf] + tail


def lt_read():
    I(f's_lshl_b32 {s(sT0)}, s2, 9')
    I(f's_add_u32 {s(sT0)}, {s(sT0)}, {W_LT}')
    I(f's_add_u32 {s(sB)}, {s(pWS)}, {s(sT0)}')
    I(f's_addc_u32 {s(sB + 1)}, {s(pWS + 1)}, 0')
    for k in range(4):
        I(f's_load_dword {s(96 + k)}, {P(sB)}, {128 * k}')


def lt_signal():
    lab = a.newlabel('L_lts')
    I(f's_cmp_lg_u32 {s(sW)}, 0')
    I(f's_cbranch_scc1 {lab}')
    I('v_mul_u32_u24 v16, 53, v0')
    I('v_add3_u32 v16, v16, s2, 37')
    I('v_and_b32 v16, 0xff, v16')
    I('v_lshl_add_u32 v16, v16, 2, v0')
    I('v_lshlrev_b32 v16, 7, v16')
    I(f'v_add_u32 v16, {W_LT}, v16')
    I('s_mov_b64 exec, 15')
    I(f'global_store_dword v16, v33, {P(pWS)} sc1')
    I('s_mov_b64 exec, -1')
    a.label(lab)


def lt_decide():
    I('s_waitcnt lgkmcnt(0)')
    I(f's_mov_b32 {s(sT0)}, 0')
    for k in range(4):
        I(f's_cmp_eq_u32 {s(96 + k)}, {s(sEP)}')
        I(f's_addc_u32 {s(sT0)}, {s(sT0)}, 0')
    if args.ts and args.tsn == 4:
        I(f's_mov_b32 {s(TSB + 30)}, {s(sT0)}')
    I(f's_cmp_ge_u32 {s(sT0)}, {args.ltq}')


if args.lt == 1:
    lt_read()
if args.lt and args.lts:
    lt_signal()
if tail or args.wor == 2:
    flag_wait(C_ST, 4)
if args.lt == 2:
    lt_read()
if args.lt and not args.lts:
    lt_signal()
late_uv = list(tail)
if args.ltf:
    lt_decide()
    I('s_cbranch_scc1 L_late')
while tail:
    I(tail.pop(0))
if args.lt and not args.ltf:
    lt_decide()
    I('s_cbranch_scc1 L_nogate')
if args.wor == 2:
    wo_rest()
if args.ackn:
    I(f's_mov_b32 {s(sCNT)}, {args.ackn}')
    a.label('L_ackw')
    I(f'ds_read_b32 {v(VFT)}, {v(VFL)} offset:{4 * C_ACK}')
    I(f's_sub_u32 {s(sCNT)}, {s(sCNT)}, 1')
    I('s_waitcnt lgkmcnt(0)')
    I(f'v_cmp_gt_u32 vcc, 4, {v(VFT)}')
    a.B('s_cbranch_scc1 L_nogate')
    a.B('s_cbranch_vccnz L_ackw')
else:
    flag_wait(C_ACK if args.ew else C_ST, 4)
for q in range(4, 4 + args.wpre):
    I(f'global_load_dwordx4 {v(WOq(q), 4)}, {v(28 + (q >> 2))}, {P(pWO)} offset:{1024 * (q & 3)}{NTS}')
if args.dly:
    I(f's_sleep {args.dly}')
if args.gv:
    I(f's_waitcnt vmcnt({args.gv - 1})')
a.label('L_nogate')
TS(8)
U = 96
nwo = 0


PLO = 224
MP, OB = 248, 116


def pair_swap(R_):
    I(f'v_mov_b64 v[250:251], {v(R_ + 2, 2)}')
    I(f'v_mov_b64 {v(R_ + 2, 2)}, {v(R_ + 4, 2)}')
    I(f'v_mov_b64 {v(R_ + 4, 2)}, v[250:251]')


def gather(first, w2_loads=(), wpre=args.wpre):
    global nwo
    for q in range(8):
        I(f'global_load_dwordx4 {v(PL + 4 * q, 4)}, v4, {P(pWS)} offset:{q * 256} {args.lf.replace("+", " ")} ')
    if first and args.pair:
        assert args.wor == 3 and not (args.w2p or args.ltf or args.wpre or args.ffn) and args.ns >= 6 and args.tord == 1
        if args.lt or args.ackn or not args.gv:
            I(f's_waitcnt vmcnt({8 + len(late_uv)})')
        for R_ in (WO0, WO0 + 8, W2T):
            pair_swap(R_)
        I(f'v_or_b32 {v(MP)}, {v(MK)}, {v(MK + 2)}')
        I(f'v_or_b32 {v(MP + 1)}, {v(MK + 1)}, {v(MK + 3)}')
        I(f'v_and_b32 v16, 16, v0')
        I(f'v_cmp_ne_u32 {P(sM3)}, 0, v16')
        if args.pairu:
            I('s_waitcnt vmcnt(8)')
            pair_swap(WUV)
            pair_swap(WUV + 8)
    n2 = len(w2_loads) if first else 0
    if first:
        for t_ in w2_loads:
            I(t_)
    n_ = 0
    for q in range(8):
        d0, d1 = v(PL + 4 * q), v(PL + 4 * q + 1)
        I(f's_waitcnt vmcnt({7 - q + n_ + n2})')
        if first and args.wor == 3:
            for _ in range((args.nin + 7 - q) // 8):
                qq = 4 + n_ + wpre
                if qq > 15:
                    continue
                I(f'global_load_dwordx4 {v(WOq(qq), 4)}, {v(28 + (qq >> 2))}, {P(pWO)} offset:{1024 * (qq & 3)}{NTS}')
                n_ += 1
        I(f'v_and_b32 v19, {s(sK2)}, {d0}')
        I(f'v_and_b32 {v(U + q)}, {s(sK2)}, {d1}')
        e0, e1 = (v(PLO + 2 * q), v(PLO + 2 * q + 1)) if args.pairc else (d0, d1)
        I(f'v_xor_b32 {e0}, v19, {d0}')
        I(f'v_lshl_add_u32 v19, v19, v1, {d1}')
        I(f'v_xor_b32 {e1}, {v(U + q)}, {d1}')
        I(f'v_lshlrev_b32 {v(U + q)}, v1, {v(U + q)}')
        I(f'v_add3_u32 v32, {e0}, v19, {"0" if q == 0 else "v32"}')
        if args.pairc and q & 1:
            I(f'v_mov_b64 {v(PL + 4 * q, 2)}, {v(PL + 4 * q - 2, 2)}')
    if first:
        nwo = n_


gather(True, w2_loads)
if args.w2p == 2:
    assert args.nin == 12
    for t_ in w2_late:
        I(t_)
if args.ltf:
    I('s_branch L_late_j')
    a.label('L_late')
    TS(8)
    assert args.nin == 12
    gather(True, late_uv, 0)
    a.label('L_late_j')
I(f's_mov_b32 {s(sCNT)}, {args.spin}')
a.label('L_T3_chk')
for k in range(4):
    I(f'v_or_b32 {v(20 + k)}, {v(U + k)}, {v(U + k)} row_ror:8 bank_mask:0x3')
I('v_add_u32 v32, v32, v32 row_ror:8')
for k in range(4):
    I(f'v_or_b32 {v(20 + k)}, {v(U + 4 + k)}, {v(U + 4 + k)} row_ror:8 bank_mask:0xc')
I('v_add_u32 v32, v32, v32 row_ror:4')
for k in range(2):
    I(f'v_or_b32 {v(24 + k)}, {v(20 + k)}, {v(20 + k)} row_shl:4 bank_mask:0x5')
for k in range(2):
    I(f'v_or_b32 {v(24 + k)}, {v(22 + k)}, {v(22 + k)} row_shr:4 bank_mask:0xa')
I('v_add_u32 v32, v32, v32 row_ror:2')
for k in range(2):
    I(f'v_or_b32 {v(24 + k)}, {v(24 + k)}, {v(24 + k)} quad_perm:[1,0,3,2]')
I('v_add_u32 v32, v32, v32 row_ror:1')
for k in range(2):
    I(f'v_or_b32 {v(24 + k)}, {v(24 + k)}, {v(24 + k)} quad_perm:[2,3,0,1]')
I(f'v_cmp_ne_u32 vcc, {s(sK1)}, v32')
I(f's_sub_u32 {s(sCNT)}, {s(sCNT)}, 1')
I(f'v_cndmask_b32 v5, v24, v25, {P(sM2)}')
a.B('s_cbranch_vccz L_T3_go')
a.B('s_cbranch_scc1 L_T3_go')
I('s_mov_b64 exec, vcc')
gather(False)
I('s_branch L_T3_chk')
a.label('L_T3_go')
I('s_mov_b64 exec, -1')
TS(7)
wo_late = [f'global_load_dwordx4 {v(WOq(qq), 4)}, {v(28 + (qq >> 2))}, {P(pWO)} offset:{1024 * (qq & 3)}{NTS}' for qq in range(4 + nwo + args.wpre, 16)] if args.wor == 3 else []
nwo += len(wo_late)
if args.w2p == 1:
    wo_late += w2_late
if not args.nip:
    while wo_late:
        I(wo_late.pop(0))
I(f's_mov_b32 {s(sT1)}, 0x3fb8aa3b')
I(f'v_and_b32 v6, {s(sT3)}, v5')
I('v_cvt_f32_f16 v21, v5')
I(f'v_mul_f32 v6, {s(sT1)}, v6')
I('v_mul_f32 v21, 0.5, v21')
I('v_max_f32 v18, v6, v6 row_ror:8')
row_allreduce('v_max_f32', [18], steps=(4, 1))
cross_rows_allreduce('v_max_f32', 18, 19)
I('''
v_sub_f32 v17, v6, v18
v_exp_f32 v17, v17
v_cvt_pk_bf16_f32 v16, v17, v17
v_mul_f32 v17, v17, v21
''')
TS(1)
red = [f'v_add_f32 v17, v17, v17 row_ror:{st}' for st in (8, 4, 2, 1)]
red += ['v_mov_b32 v19, v17', 'v_permlane16_swap_b32 v19, v17\nv_add_f32 v17, v17, v19\nv_mov_b32 v19, v17',
        'v_permlane32_swap_b32 v19, v17\nv_add_f32 v17, v17, v19', 'ds_write2_b32 v7, v18, v17 offset0:0 offset1:4']
QL = lambda q: 8 * (q >> 2) + 4 * ((q >> 1) & 1) + (q & 1)


def w_and(q):
    for r in range(4):
        I(f'v_and_b32 {v(AW + 4 * (q & 1) + r)}, v16, {v(MK + r)} row_newbcast:{QL(q)}')


if args.pairc:
    assert args.pair and not wo_late
    ca = lambda p_, r: f'v_and_b32 {v(AW + 4 * (p_ & 1) + r)}, v16, {v(MP + (r & 1))} row_newbcast:{QL(2 * p_ + (r >> 1))}'
    for r in range(4):
        I(ca(0, r))
    for p_ in range(4):
        for hf in range(2):
            if p_ < 3:
                I(ca(p_ + 1, 2 * hf))
                I(ca(p_ + 1, 2 * hf + 1))
            elif hf == 0:
                I(red[3])
            acc = ('v[24:27]', 'v[20:23]')[hf]
            I(f'{MFMA} {acc}, {v(AW + 4 * (p_ & 1), 4)}, {v(PL + 8 * p_ + 4 if hf else PLO + 4 * p_, 4)}, {"0" if p_ == 0 else acc}')
            if hf and p_ < 3:
                I(red[p_])
    if args.lrow:
        I('ds_write_b32 v7, v18')
        I('ds_write_b32 v11, v17')
    else:
        for t_ in red[4:]:
            I(t_)
    I('s_mov_b64 exec, 0xffff')
    I('ds_write_b128 v40, v[24:27]')
    I('ds_write_b128 v40, v[20:23] offset:256')
    I('s_mov_b64 exec, -1')
else:
    w_and(0)
    for q in range(8):
        if q < 7:
            w_and(q + 1)
        I(f'{MFMA} v[24:27], {v(AW + 4 * (q & 1), 4)}, {v(PL + 4 * q, 4)}, {"0" if q == 0 else "v[24:27]"}')
        if q < 4:
            I(red[q])
        for _ in range(2):
            if wo_late:
                I(wo_late.pop(0))
    if args.lrow:
        I('ds_write_b32 v7, v18')
        I('ds_write_b32 v11, v17')
    else:
        for t_ in red[4:]:
            I(t_)
    I('s_mov_b32 exec_hi, 0')
    I('ds_write_b128 v40, v[24:27]')
    I('s_mov_b64 exec, -1')
I('s_waitcnt lgkmcnt(0)')
TS(9)
TSN(0)
I('s_barrier')
I('ds_read_b128 v[96:99], v45')
I('ds_read_b64 v[100:101], v9')
I('ds_read2st64_b32 v[108:109], v41 offset0:0 offset1:2')
I('ds_read2_b32 v[102:103], v127 offset0:4 offset1:8' if args.lrow else 'ds_read_b64 v[102:103], v9 offset:16')
I(f'ds_read_b64 {v(HH, 2)}, v10')
if args.pair:
    I('s_waitcnt vmcnt(8)')
    pair_swap(WOq(4))
    pair_swap(WOq(6))
I('''
s_waitcnt lgkmcnt(4)
v_max3_f32 v18, v96, v97, v98
v_max_f32 v18, v18, v99
s_waitcnt lgkmcnt(2)
v_sub_f32 v100, v100, v18
v_sub_f32 v101, v101, v18
v_exp_f32 v100, v100
v_exp_f32 v101, v101
v_mul_f32 v20, v100, v108
v_fmac_f32 v20, v101, v109
s_waitcnt lgkmcnt(0)
v_mul_f32 v18, v100, v102
v_add_f32 v21, v20, v20 row_shl:4 bank_mask:0x5
v_fmac_f32 v18, v101, v103
v_add_f32 v21, v20, v20 row_shr:4 bank_mask:0xa
v_cvt_pk_bf16_f32 v20, v21, v21
v_add_f32 v18, v18, v18 row_half_mirror
''')
if args.ltf:
    I(f's_waitcnt vmcnt({nwo})')
QP = lambda i: f'quad_perm:[{i},{i},{i},{i}]'
if args.pairu:
    assert args.lrow and args.pair
    ua = lambda p_, r: f'v_and_b32 {v(AW + 4 * p_ + r)}, v20, {v(MP + (r & 1))} {QP(2 * p_ + (r >> 1))}'
    for r in range(4):
        I(ua(0, r))
    for p_ in range(2):
        for hf in range(2):
            if p_ == 0:
                I(ua(1, 2 * hf))
                I(ua(1, 2 * hf + 1))
            else:
                I(f'v_add_f32 v18, v18, v18 {OCT[hf]}')
            acc = ('v[24:27]', 'v[112:115]')[hf]
            I(f'{MFMA} {acc}, {v(AW + 4 * p_, 4)}, {v(WUV + 8 * p_ + 4 * hf, 4)}, {"0" if p_ == 0 else acc}')
else:
    for r in range(4):
        I(f'v_and_b32 {v(AW + r)}, v20, {v(MK + r)} {QP(0)}')
    for i in range(4):
        if i < 3:
            for r in range(4):
                I(f'v_and_b32 {v(AW + 4 * (i + 1) + r)}, v20, {v(MK + r)} {QP(i + 1)}')
        elif not args.lrow:
            I('v_rcp_f32 v18, v18')
        if args.lrow and i >= 2:
            I(f'v_add_f32 v18, v18, v18 {OCT[i - 2]}')
        I(f'{MFMA} v[24:27], {v(AW + 4 * i, 4)}, {v(WUV + 4 * i, 4)}, {"0" if i == 0 else "v[24:27]"}')
if args.lrow:
    I('v_rcp_f32 v18, v18')
for i in range(2):
    I(f'v_and_b32 {v(HH + i)}, {s(sR)}, {v(HH + i)}')
if args.pair:
    for r in range(4):
        I(f'v_and_b32 {v(AW + 16 + r)}, {v(HH + (r >> 1))}, {v(MP + (r & 1))}')
    if args.pairu:
        I('s_mov_b32 exec_lo, 0x000000ff')
        I('s_mov_b32 exec_hi, 0x0000ff00')
        I('ds_write_b128 v42, v[24:27]')
        I('ds_write_b128 v42, v[112:115] offset:16')
    else:
        I('s_mov_b32 exec_lo, 0x00ff00ff')
        I('s_mov_b32 exec_hi, 0xff00ff00')
        I('ds_write_b128 v42, v[24:27]')
    I('s_mov_b64 exec, -1')
    I('s_waitcnt vmcnt(4)')
    pair_swap(WOq(8))
    pair_swap(WOq(10))
    I('s_waitcnt lgkmcnt(0)')
    I('s_barrier')
    for k in range(4):
        I(f'ds_read2st64_b32 {v(108 + 2 * k, 2)}, v43 offset0:{2 * k} offset1:{2 * k + 1}')
    TS(10)
    I(f'{MFMA} {v(OA, 4)}, {v(AW + 16, 4)}, {v(W2T, 4)}, 0')
    I(f'{MFMA} {v(OB, 4)}, {v(AW + 16, 4)}, {v(W2T + 4, 4)}, 0')
    I('v_mov_b32 v22, v33')
    I('v_mov_b32 v23, v33')
    if args.pair == 1:
        I('s_waitcnt vmcnt(0)')
        pair_swap(WOq(12))
        pair_swap(WOq(14))
    I("""
    s_waitcnt lgkmcnt(2)
    v_add_f32 v108, v108, v109
    v_add_f32 v110, v110, v111
    s_waitcnt lgkmcnt(0)
    v_add_f32 v112, v112, v113
    v_add_f32 v114, v114, v115
    v_add_f32 v108, v108, v110
    v_add_f32 v112, v112, v114
    v_add_f32 v108, v108, v112
    v_mul_f32 v108, v108, v18
    v_cvt_pk_bf16_f32 v20, v108, v108
    """)
    pa = lambda p_, r: f'v_and_b32 {v(AT2 + 4 * (p_ & 1) + r)}, v20, {v(MP + (r & 1))} row_newbcast:{2 * p_ + (r >> 1)}'
    for r in range(4):
        I(pa(0, r))
    for p_ in range(8):
        for hf in range(2):
            if p_ < 7:
                I(pa(p_ + 1, 2 * hf))
                I(pa(p_ + 1, 2 * hf + 1))
            if args.pair == 2 and p_ == 4:
                I(f's_waitcnt vmcnt({2 - 2 * hf})')
                pair_swap(WOq(12 + 2 * hf))
            acc = (OA, OB)[hf]
            I(f'{MFMA} {v(acc, 4)}, {v(AT2 + 4 * (p_ & 1), 4)}, {v(WOq(2 * p_) + 4 * hf, 4)}, {v(acc, 4)}')
    TS(11)
    if args.p5:
        I(f's_mov_b32 {s(sT0)}, 0x07060501')
        I(f's_mov_b32 {s(sT1)}, 0x07060502')
        I(f's_mov_b32 {s(sT2)}, 0x07060503')
        I('s_mov_b32 exec_hi, 0')
        for r in (3, 0, 1, 2):
            I(f'v_cndmask_b32 {v(16 + r)}, {v(OA + r)}, {v(OB + r)}, {P(sM3)}')
        for r in range(3):
            I(f'v_perm_b32 {v(20 + r)}, {v(16 + r)}, v19, {s(sT0 + r)}')
    else:
        I(f'v_cndmask_b32 v20, {v(OA)}, {v(OA + 2)}, {P(sM1)}')
        I(f'v_cndmask_b32 v21, {v(OA + 1)}, {v(OA + 3)}, {P(sM1)}')
        I(f'v_cndmask_b32 v16, {v(OB)}, {v(OB + 2)}, {P(sM1)}')
        I(f'v_cndmask_b32 v17, {v(OB + 1)}, {v(OB + 3)}, {P(sM1)}')
        I(f'v_cndmask_b32 v20, v20, v16, {P(sM3)}')
        I(f'v_cndmask_b32 v21, v21, v17, {P(sM3)}')
else:
    for r in range(4):
        I(f'v_and_b32 {v(AW + 16 + r)}, {v(HH)}, {v(MK + r)}')
    I('s_mov_b32 exec_lo, 0x00ff00ff')
    I('s_mov_b32 exec_hi, 0xff00ff00')
    I('ds_write_b128 v42, v[24:27]')
    I('s_mov_b64 exec, -1')
    for r in range(4):
        I(f'v_and_b32 {v(AW + 20 + r)}, {v(HH + 1)}, {v(MK + r)}')
    I('s_waitcnt lgkmcnt(0)')
    I('s_barrier')
    for k in range(4):
        I(f'ds_read2st64_b32 {v(108 + 2 * k, 2)}, v43 offset0:{2 * k} offset1:{2 * k + 1}')
    TS(10)
    if not args.w2p:
        I(f's_waitcnt vmcnt({nwo})')
        for i in range(2):
            I(f'{MFMA} {v(OA, 4)}, {v(AW + 16 + 4 * i, 4)}, {v(W2T + 4 * i, 4)}, {"0" if i == 0 else v(OA, 4)}')
    I('v_mov_b32 v22, v33')
    I('v_mov_b32 v23, v33')
    I('''
    s_waitcnt lgkmcnt(2)
    v_add_f32 v108, v108, v109
    v_add_f32 v110, v110, v111
    s_waitcnt lgkmcnt(0)
    v_add_f32 v112, v112, v113
    v_add_f32 v114, v114, v115
    v_add_f32 v108, v108, v110
    v_add_f32 v112, v112, v114
    v_add_f32 v108, v108, v112
    ''')
    I('v_mul_f32 v108, v108, v18')
    I('v_cvt_pk_bf16_f32 v20, v108, v108')


    def wo_and(q):
        for r in range(4):
            I(f'v_and_b32 {v(AT2 + 4 * (q & 1) + r)}, v20, {v(MK + r)} row_newbcast:{q}')


    wo_and(0)
    for q in range(16):
        if q < 15:
            wo_and(q + 1)
        if args.wor == 3 and q >= 4 and q % 2 == 0:
            I(f's_waitcnt vmcnt({14 - q + len(w2_late)})')
        I(f'{MFMA} {v(OA, 4)}, {v(AT2 + 4 * (q & 1), 4)}, {v(WOq(q), 4)}, {"0" if q == 0 and args.w2p else v(OA, 4)}')
    if args.w2p:
        for i in range(2):
            I(f's_waitcnt vmcnt({1 - i})')
            I(f'{MFMA} {v(OA, 4)}, {v(AW + 16 + 4 * i, 4)}, {v(W2T + 4 * i, 4)}, {v(OA, 4)}')
    TS(11)
    I(f'v_cndmask_b32 v20, {v(OA)}, {v(OA + 2)}, {P(sM1)}')
    I(f'v_cndmask_b32 v21, {v(OA + 1)}, {v(OA + 3)}, {P(sM1)}')
I(f'global_store_dwordx4 v44, v[20:23], {P(pWS)} sc1')
TS(12)
if args.p5:
    I('s_mov_b64 exec, -1')
    I('s_cmp_lt_u32 s2, 224')
    I('s_cbranch_scc1 L_T_ep')
    I(f"""
    s_and_b32 {s(sT0)}, s2, 31
    s_lshl2_add_u32 {s(sT0)}, {s(sT0)}, {s(sW)}
    s_lshl_b32 {s(sT0)}, {s(sT0)}, 12
    s_add_u32 {s(sT0)}, {s(sT0)}, {W_H5}
    v_add_u32 v4, {s(sT0)}, v3
    v_lshl_add_u32 v8, v2, 2, v35
    s_lshl_b32 {s(sT0)}, {s(sW)}, 2
    s_add_u32 {s(sT0)}, {s(sT0)}, {L_CL}
    v_lshl_add_u32 v8, v8, 4, {s(sT0)}
    v_lshlrev_b32 v9, 4, v1
    v_add_u32 v9, {L_CL}, v9
    v_lshlrev_b32 v108, 16, {v(XR2)}
    v_and_b32 v109, {s(sT3)}, {v(XR2)}
    v_lshlrev_b32 v110, 16, {v(B2R)}
    v_and_b32 v111, {s(sT3)}, {v(B2R)}
    v_add_f32 v108, v108, v110
    v_add_f32 v109, v109, v111
    s_mov_b32 {s(sT0)}, 0x0c04000c
    s_mov_b32 {s(sT1)}, 0x0402010c
    s_mov_b32 {s(sCNT)}, {args.spin}
    v_mov_b32 v108, v109 quad_perm:[0,1,2,3] bank_mask:0xc
    s_waitcnt vmcnt(0)
    """)
    f5 = lambda k: f'global_load_dwordx4 {v(128 + 4 * k, 4)}, v4, {P(pWS)} offset:{1024 * k} sc1'
    for k in range(4):
        I(f5(k))
    a.label('L_T5_chk')
    I(f's_sub_u32 {s(sCNT)}, {s(sCNT)}, 1')
    for k in range(4):
        G = 128 + 4 * k
        I(f's_waitcnt vmcnt({3 - k})')
        I(f'v_perm_b32 v16, {v(G + 1)}, {v(G)}, {s(sT0)}')
        I(f'v_xor_b32 v17, {v(G + 3)}, v33' if k == 0 else f'v_bitop3_b32 v17, {v(G + 3)}, v33, v17 bitop3:0xbe')
        I(f'v_perm_b32 {"v23" if k == 0 else "v16"}, {v(G + 2)}, v16, {s(sT1)}')
        if k:
            src = 128 if k == 1 else 20
            I(f'v_pk_add_f32 v[20:21], {v(src, 2)}, {v(G, 2)}')
            I(f'v_add_f32 v22, {v(src + 2)}, {v(G + 2)}')
            I('v_add_f32 v23, v23, v16')
    I('v_cmp_ne_u32 vcc, 0, v17')
    a.B('s_cbranch_scc1 L_T5_go')
    a.B('s_cbranch_vccz L_T5_go')
    for k in range(4):
        lab = a.newlabel('L_r5')
        I(f'v_cmp_ne_u32 vcc, {v(131 + 4 * k)}, v33')
        I('s_nop 0')
        a.B(f's_cbranch_vccz {lab}')
        I('s_mov_b64 exec, vcc')
        I(f5(k))
        I('s_mov_b64 exec, -1')
        a.label(lab)
    I('s_waitcnt vmcnt(0)')
    I('s_branch L_T5_chk')
    a.label('L_T5_go')
    TS(13)
    TSN(3)
    I("""
    v_permlane32_swap_b32 v20, v21
    v_permlane32_swap_b32 v22, v23
    v_add_f32 v20, v20, v21
    v_add_f32 v22, v22, v23
    v_permlane16_swap_b32 v20, v22
    v_add_f32 v20, v20, v22
    v_add_f32 v20, v20, v20 row_ror:4
    v_add_f32 v20, v20, v20 row_ror:8
    ds_write_b32 v8, v20
    s_waitcnt lgkmcnt(0)
    s_barrier
    """)
    I(f's_cmp_lg_u32 {s(sW)}, 0')
    I('s_cbranch_scc1 L_T_done')
    I("""
    ds_read_b128 v[128:131], v9
    s_waitcnt lgkmcnt(0)
    v_add_f32 v128, v128, v129
    v_add_f32 v130, v130, v131
    v_add_f32 v108, v108, v128
    v_add_f32 v108, v108, v130
    v_mov_b32 v109, v108 row_ror:8
    v_cvt_pk_bf16_f32 v20, v108, v109
    s_mov_b64 exec, 0xff
    """)
else:
    I(f's_cmp_lg_u32 {s(sW)}, 0' if args.fin == 2 else 's_cmp_lt_u32 s2, 192')
    I('s_cbranch_scc1 L_T_ep' if args.ee else 's_cbranch_scc1 L_T_done')
    I(f'''
    s_bfe_u32 {s(sT0)}, s2, {0x50001 if args.h5 else 0x60000}
    s_lshl2_add_u32 {s(sT0)}, {s(sT0)}, {s(sW)}
    s_lshl_b32 {s(sT0)}, {s(sT0)}, {12 + args.h5}
    s_and_b32 {s(sT1)}, s2, {args.h5}
    s_lshl_b32 {s(sT1)}, {s(sT1)}, 6
    s_add_u32 {s(sT0)}, {s(sT0)}, {s(sT1)}
    s_add_u32 {s(sT0)}, {s(sT0)}, {W_H5}
    v_lshrrev_b32 v4, 2, v0
    v_lshlrev_b32 v4, {6 + args.h5}, v4
    v_lshl_add_u32 v4, v35, 4, v4
    v_add_u32 v4, {s(sT0)}, v4
    v_add_u32 v5, {2048 << args.h5}, v4
    v_lshrrev_b32 v6, 1, v2
    v_lshl_add_u32 v8, v6, 2, v35
    v_lshlrev_b32 v8, 5, v8
    v_and_b32 v6, 1, v2
    v_lshl_add_u32 v8, v6, 2, v8
    s_lshl_b32 {s(sT0)}, {s(sW)}, 3
    s_add_u32 {s(sT0)}, {s(sT0)}, {L_CL}
    v_add_u32 v8, {s(sT0)}, v8
    v_and_b32 v9, 7, v0
    v_lshlrev_b32 v9, 5, v9
    v_add_u32 v9, {L_CL}, v9
    v_lshlrev_b32 v108, 16, {v(XR2)}
    v_and_b32 v109, {s(sT3)}, {v(XR2)}
    v_lshlrev_b32 v110, 16, {v(B2R)}
    v_and_b32 v111, {s(sT3)}, {v(B2R)}
    v_add_f32 v108, v108, v110
    v_add_f32 v109, v109, v111
    s_mov_b32 {s(sCNT)}, {args.spin}
    ''')
    sE = (None, sW, sCI)[args.fin]
    if args.fin:
        assert args.ee and not args.h5
        if args.fin == 1:
            I(f's_and_b32 {s(sT0)}, s2, 63')
        else:
            I(f's_lshr_b32 {s(sT0)}, {s(sY)}, 2')
            I(f's_lshl3_add_u32 {s(sT0)}, {s(sT0)}, {s(sX)}')
        I(f'''
        s_lshl_b32 {s(sT0)}, {s(sT0)}, 14
        s_lshl4_add_u32 {s(sT0)}, {s(sE)}, {s(sT0)}
        s_add_u32 {s(sT0)}, {s(sT0)}, {W_H5}
        v_lshl_add_u32 v4, v0, 6, {s(sT0)}
        v_add_u32 v5, 0x1000, v4
        v_add_u32 v6, 0x2000, v4
        v_add_u32 v7, 0x3000, v4
        ''')
    else:
        I('v_mov_b32 v108, v109 quad_perm:[0,1,2,3] bank_mask:0xa')
    if args.a5:
        I('s_waitcnt vmcnt(0)')
    if args.dly5:
        I(f's_sleep {args.dly5}')
    f5 = lambda k: f'global_load_dwordx4 {v(128 + 4 * k, 4)}, {v(4 + (k >> 1))}, {P(pWS)} offset:{(1024 << args.h5) * (k & 1)} sc1'
    if args.fin:
        f5 = lambda k: f'global_load_dwordx4 {v(128 + 4 * k, 4)}, {v(4 + k)}, {P(pWS)} sc1'
    a.label('L_T5_retry')
    for k in range(4):
        I(f5(k))
    a.label('L_T5_chk')
    I(f's_sub_u32 {s(sCNT)}, {s(sCNT)}, 1')
    I('s_waitcnt vmcnt(2)')
    I('v_xor_b32 v17, v130, v33')
    I('v_add_f32 v20, v128, v132')
    I('v_bitop3_b32 v17, v134, v33, v17 bitop3:0xbe')
    I('v_add_f32 v21, v129, v133')
    I('s_waitcnt vmcnt(0)')
    I('v_bitop3_b32 v17, v138, v33, v17 bitop3:0xbe')
    I('v_add_f32 v24, v136, v140')
    I('v_bitop3_b32 v17, v142, v33, v17 bitop3:0xbe')
    I('v_add_f32 v25, v137, v141')
    I('v_cmp_ne_u32 vcc, 0, v17')
    I('v_add_f32 v20, v20, v24')
    I('v_add_f32 v21, v21, v25')
    a.B('s_cbranch_scc1 L_T5_go')
    if args.m5:
        a.B('s_cbranch_vccz L_T5_go')
        for k in range(4):
            lab = a.newlabel('L_r5')
            I(f'v_cmp_ne_u32 vcc, {v(130 + 4 * k)}, v33')
            I('s_nop 0')
            a.B(f's_cbranch_vccz {lab}')
            I('s_mov_b64 exec, vcc')
            I(f5(k))
            I('s_mov_b64 exec, -1')
            a.label(lab)
        I('s_waitcnt vmcnt(0)')
        I('s_branch L_T5_chk')
    else:
        a.B('s_cbranch_vccnz L_T5_retry')
    a.label('L_T5_go')
    TS(13)
    TSN(3)
    if args.fin:
        I("""
        v_permlane32_swap_b32 v20, v21
        v_add_f32 v20, v20, v21
        v_mov_b32 v21, v20
        v_permlane16_swap_b32 v20, v21
        v_add_f32 v20, v20, v21
        """)
        row_allreduce('v_add_f32', [20])
        I(f"""
        v_readlane_b32 {s(sT0)}, v20, 32
        v_add_f32 v108, v108, v20
        v_add_f32 v109, {s(sT0)}, v109
        v_cvt_pk_bf16_f32 v20, v108, v109
        s_lshl_b64 exec, 1, {s(sE)}
        """)
    else:
        I('''
        v_permlane32_swap_b32 v20, v21
        v_add_f32 v20, v20, v21
        v_add_f32 v20, v20, v20 row_ror:4
        v_add_f32 v20, v20, v20 row_ror:8
        ds_write_b32 v8, v20
        s_waitcnt lgkmcnt(0)
        s_barrier
        ''')
        I(f's_cmp_lg_u32 {s(sW)}, 0')
        I('s_cbranch_scc1 L_T_done')
        I('''
        ds_read_b128 v[128:131], v9
        ds_read_b128 v[132:135], v9 offset:16
        s_waitcnt lgkmcnt(1)
        v_add_f32 v128, v128, v129
        v_add_f32 v130, v130, v131
        v_add_f32 v108, v108, v128
        v_add_f32 v108, v108, v130
        s_waitcnt lgkmcnt(0)
        v_add_f32 v132, v132, v133
        v_add_f32 v134, v134, v135
        v_add_f32 v108, v108, v132
        v_add_f32 v108, v108, v134
        ''')
        if args.pert:
            import struct
            kind, val = args.pert.split(',')
            bits = struct.unpack('<I', struct.pack('<f', float(val)))[0]
            if kind == 'm':
                I(f'v_mul_f32 v108, {bits}, v108')
            elif kind == 'a':
                I(f'v_add_f32 v108, {bits}, v108')
            else:
                I('s_cmp_lg_u32 s2, 200')
                I('s_cbranch_scc1 L_nop')
                I('s_mov_b64 exec, 1')
                I(f'v_add_f32 v108, {bits}, v108')
                I('s_mov_b64 exec, -1')
                a.label('L_nop')
                I('s_nop 1')
        I('''
        v_mov_b32 v109, v108 row_shl:4
        v_cvt_pk_bf16_f32 v20, v108, v109
        ''')
        I(f's_mov_b64 exec, {args.oex}')
I(f'global_store_dword v12, v20, {P(pOUT)} {args.of.replace("+", " ")}')
if args.ee:
    I('s_branch L_T_done')
    a.label('L_T_ep')
    I(f's_lshl2_add_u32 {s(sT0)}, s2, {s(sW)}')
    I(f's_cmp_lg_u32 {s(sT0)}, 401')
else:
    I('s_cmp_lg_u32 s2, 0xe0')
I('s_cbranch_scc1 L_T_done')
I(f'v_mov_b32 v22, {W_EP}')
I('s_mov_b64 exec, 1')
I(f'global_store_dword v22, v33, {P(pWS)} {args.ef}')
a.label('L_T_done')
TS(14)
ts_dump()
a.label('L_end')
I('s_endpgm')

a.raw('.section .rodata,"a"')
a.raw('.p2align 6')
a.raw(f'.amdhsa_kernel {NAME}_kernel')
a.raw('''  .amdhsa_next_free_vgpr 256
  .amdhsa_next_free_sgpr 102
  .amdhsa_accum_offset 256
  .amdhsa_group_segment_fixed_size 0
  .amdhsa_kernarg_size 112
  .amdhsa_user_sgpr_count 2
  .amdhsa_user_sgpr_kernarg_segment_ptr 1
  .amdhsa_system_sgpr_workgroup_id_x 1
.end_amdhsa_kernel''')
open(args.o, 'w').write(a.text())
```
